```python
import torch

def _softmax(x, axis=-1):
    return torch.softmax(x, dim=axis)
def _gelu(x):
    return torch.nn.functional.gelu(x, approximate="tanh")
def _silu(x):
    return torch.nn.functional.silu(x)
def _sigmoid(x):
    return torch.sigmoid(x)
def _layernorm(x, axis=-1, eps=1e-5):
    m = x.mean(dim=axis, keepdim=True)
    v = x.var(dim=axis, keepdim=True, unbiased=False)
    return (x - m) / torch.sqrt(v + eps)
def _scatter_add(tgt, idx, src, axis=0):
    return tgt.clone().index_add_(axis, idx, src)
def _segment_sum(src, seg, n):
    out = torch.zeros((n,) + src.shape[1:], dtype=src.dtype)
    return out.index_add_(0, seg, src)
def _pad(x, pw):
    flat = tuple(v for pair in reversed(pw) for v in pair)
    return torch.nn.functional.pad(x, flat)

kernel_name = 'gated_mix__mha_block_cached__geglu_ffn__decode'

def setup_inputs():

    _w = (lambda a: (lambda t: t.to(torch.bfloat16) if t.is_floating_point() else t)(torch.as_tensor(a)))
    def _A_setup():
        B, Sq, D = 2, 1, 512
        H, Sk, Dh = 32, 4096, 128
        return {
            "x": _w((lambda *s: torch.randn(*s, dtype=torch.bfloat16) * 0.05)(B, Sq, D)),
            "k_cache": _w((lambda *s: torch.randn(*s, dtype=torch.bfloat16) * 3.2)(B, H, Sk, Dh)),
            "v_cache": _w((lambda *s: torch.randn(*s, dtype=torch.bfloat16) * 0.8)(B, H, Sk, Dh)),
            "wq": _w((lambda *s: torch.randn(*s, dtype=torch.bfloat16) * 3.2)(D, H * Dh) * (D ** -0.5)),
            "wo": _w((lambda *s: torch.randn(*s, dtype=torch.bfloat16) * 0.8)(H * Dh, D) * ((H * Dh) ** -0.5)),
        }
    _A_in = _A_setup()

    def _B_setup():
        B, S, D, F = 2, 1, 512, 1376
        return {
            "x": _w((lambda *s: torch.randn(*s, dtype=torch.bfloat16) * 0.05)(B, S, D)),
            "w_gate": _w((lambda *s: torch.randn(*s, dtype=torch.bfloat16) * 0.05)(D, F)),
            "w_up": _w((lambda *s: torch.randn(*s, dtype=torch.bfloat16) * 0.05)(D, F)),
            "w_down": _w((lambda *s: torch.randn(*s, dtype=torch.bfloat16) * 0.05)(F, D)),
        }
    _B_in = _B_setup()

    return {
        "A_x": _A_in["x"],
        "A_k_cache": _A_in["k_cache"],
        "A_v_cache": _A_in["v_cache"],
        "A_wq": _A_in["wq"],
        "A_wo": _A_in["wo"],
        "B_x": _B_in["x"],
        "B_w_gate": _B_in["w_gate"],
        "B_w_up": _B_in["w_up"],
        "B_w_down": _B_in["w_down"],
        "gate_w": _w((lambda *s: torch.randn(*s, dtype=torch.bfloat16) * 0.05)(512) * 16.0),
    }

def reference(A_x, A_k_cache, A_v_cache, A_wq, A_wo, B_x, B_w_gate, B_w_up, B_w_down, gate_w):
    def _A_ref(x, k_cache, v_cache, wq, wo):
        B, Sq, D = x.shape
        H, Dh = 32, 128
        q = (lambda x, *d: x.permute(*d))((x @ wq).reshape(B, Sq, H, Dh), 0, 2, 1, 3)
        scores = torch.einsum("bhqd,bhkd->bhqk", q, k_cache) * (Dh ** -0.5)
        p = _softmax(scores, axis=-1)
        o = torch.einsum("bhqk,bhkd->bhqd", p, v_cache)
        return (lambda x, *d: x.permute(*d))(o, 0, 2, 1, 3).reshape(B, Sq, H * Dh) @ wo

    def _B_ref(x, w_gate, w_up, w_down):
        return (_gelu(x @ w_gate) * (x @ w_up)) @ w_down

    x = A_x
    g = _sigmoid((x * gate_w).sum(-1, keepdims=True))
    a = _A_ref(x, A_k_cache, A_v_cache, A_wq, A_wo)
    b = _B_ref(x, B_w_gate, B_w_up, B_w_down)
    return g * a + (1 - g) * b
```

```python
import sys, struct, math

NAME = "gated_mix__mha_block_cached__geglu_ffn__decode"
HEADER = open("cdna_kernels/" + NAME + ".s.ref").read().split("; Override launch")[0]

def f32(x):
    return "0x%08x" % struct.unpack("<I", struct.pack("<f", x))[0]

L_QP = 0
L_QS = L_QP + 4096
L_FP = L_QS + 2048
L_HS = L_FP + 2048
L_MX = L_HS + 256
L_LS = L_MX + 64
L_OB = L_LS + 64
L_WD = 11264
L_WO = L_WD + 16384
L_END = L_WO + 131072
assert L_OB + 8 * 288 <= L_WD
LDS_BYTES = (L_END + 255) // 256 * 256

WS_Y = 0
WS_S = 0x80000
WS_BYTES = WS_S + 2048
NCLR = 32
STAMP_OFF = 128 << 20

sW = "s3"
P_X, P_K, P_V, P_WQ, P_WO, P_WG, P_WU = 16, 18, 20, 22, 24, 28, 30
P_WD, P_GW, P_OUT, P_DBG, P_WS = 32, 34, 36, 38, 40
R_K, R_V, R_WQ, R_WO, R_X, R_GW, R_WG, R_WU, R_WD, R_WS = 44, 48, 52, 56, 60, 64, 68, 72, 76, 80
sH, sB, sS, sSL, sT0, sT1, sT2 = "s4", "s5", "s6", "s7", "s8", "s9", "s10"
sTK, sTV, sTQ, sTF, sTD = "s11", "s12", "s13", "s14", "s15"
sWOL, sWDL = "s84", "s85"
sDUP0, sDUP1 = "s86", "s87"
sC = "s88"; sCNT = "s89"; sXCC = "s90"; sBH = "s91"
sST = 92
def srd(r): return f"s[{r}:{r+3}]"

vL, vI, vG = 1, 2, 3
vOK, vOV, vOQ, vOW, vOF, vOD, vT0, vT1 = 4, 5, 6, 7, 8, 9, 10, 11
vM = 12
vXR = 16
vBF = 24
vACC = 32
vAC2 = 36
vQF = 40
vSP = 56
vDF = 88
vWQ = 40
vTM = 104
vK = 112
vX = 240
vFF = 224
def vr(a, n): return f"v[{a}:{a+n-1}]"

class Gen:
    def __init__(self, W=60, LA=64, W_even=None, LA_even=None, two_kernel=False, stamps=False,
                 nt_w=False, dry=False):
        self.o = []
        self.W, self.LA, self.W_even, self.LA_even = W, LA, W_even, LA_even
        self.two_kernel, self.stamps, self.nt_w, self.dry = two_kernel, stamps, nt_w, dry
        self.lab = 0
    def A(self, s): self.o.append("    " + s)
    def L(self, s): self.o.append(s + ":")
    def nop(self, n):
        while n > 0:
            k = min(n, 16); self.A(f"s_nop {k-1}"); n -= k
    def label(self, p):
        self.lab += 1; return f"L_{p}_{self.lab}"
    def stamp(self, k):
        if self.stamps: self.A(f"s_memrealtime s[{sST+2*k}:{sST+2*k+1}]")

    def swap_reduce(self, op, v, tmp, which):
        A = self.A
        A(f"v_mov_b32 v{tmp}, v{v}")
        self.nop(2)
        A(f"v_permlane{which}_swap_b32 v{v}, v{tmp}")
        self.nop(1)
        A(f"{op} v{v}, v{v}, v{tmp}")
    def dpp_add(self, v, ctl):
        self.nop(2)
        self.A(f"v_add_f32_dpp v{v}, v{v}, v{v} {ctl} row_mask:0xf bank_mask:0xf")

    def prologue(self):
        A = self.A
        A("s_cmp_ge_u32 s2, 256")
        A("s_cbranch_scc1 L_end")
        A("s_load_dwordx16 s[16:31], s[0:1], 0")
        A("s_load_dwordx8 s[32:39], s[0:1], 64")
        A("s_load_dwordx2 s[40:41], s[0:1], 96")
        self.stamp(0)
        A("v_lshrrev_b32 v10, 6, v0")
        A(f"v_and_b32 v{vL}, 63, v0")
        A(f"v_readfirstlane_b32 {sW}, v10")
        A(f"v_and_b32 v{vI}, 15, v0")
        A(f"v_bfe_u32 v{vG}, v0, 4, 2")
        A(f"s_and_b32 {sT0}, s2, 7")
        A(f"s_lshr_b32 {sT1}, s2, 3")
        A(f"s_and_b32 {sT2}, {sT1}, 3")
        A(f"s_lshl_b32 {sH}, {sT0}, 2")
        A(f"s_add_u32 {sH}, {sH}, {sT2}")
        A(f"s_lshr_b32 {sB}, {sT1}, 4")
        A(f"s_bfe_u32 {sS}, {sT1}, 0x20002")
        A(f"s_lshl_b32 {sBH}, {sB}, 5")
        A(f"s_add_u32 {sBH}, {sBH}, {sH}")
        A(f"s_and_b32 {sT1}, {sT1}, 15")
        A(f"s_mul_i32 {sSL}, {sT0}, 11")
        A(f"s_add_u32 {sSL}, {sSL}, {sT1}")
        A(f"s_cmp_lt_u32 {sT1}, 11")
        A(f"s_cselect_b32 {sSL}, {sSL}, 1000")
        A(f"s_cmp_lt_u32 {sSL}, 86")
        A(f"s_cselect_b32 {sT2}, 1, 0")
        A(f"s_cselect_b32 {sSL}, {sSL}, 0")
        A(f"v_lshlrev_b32 v{vOK}, 8, v{vI}")
        A(f"v_lshl_add_u32 v{vOK}, v{vG}, 4, v{vOK}")
        A(f"v_lshlrev_b32 v{vOV}, 4, v{vI}")
        A(f"v_lshl_add_u32 v{vOQ}, v{vG}, 17, v{vOV}")
        A(f"v_lshl_add_u32 v{vOV}, v{vG}, 10, v{vOV}")
        A(f"s_lshl_b32 {sT0}, {sBH}, 20")
        A(f"s_lshl_b32 {sT1}, {sS}, 18")
        A(f"s_add_u32 {sT0}, {sT0}, {sT1}")
        A(f"s_lshl_b32 {sT1}, {sW}, 15")
        A(f"s_add_u32 {sT0}, {sT0}, {sT1}")
        A(f"s_mov_b32 s{R_K+2}, 32768"); A(f"s_mov_b32 s{R_K+3}, 0x20000")
        A(f"s_mov_b32 s{R_V+2}, 32768"); A(f"s_mov_b32 s{R_V+3}, 0x20000")
        A(f"s_getreg_b32 {sXCC}, hwreg(HW_REG_XCC_ID)")
        A("s_waitcnt lgkmcnt(0)")
        A(f"s_add_u32 s{R_K}, s{P_K}, {sT0}"); A(f"s_addc_u32 s{R_K+1}, s{P_K+1}, 0")
        A(f"s_add_u32 s{R_V}, s{P_V}, {sT0}"); A(f"s_addc_u32 s{R_V+1}, s{P_V+1}, 0")

    def setup_rest(self):
        A = self.A
        def mk(r, p, off, size):
            if off is None:
                A(f"s_mov_b32 s{r}, s{p}"); A(f"s_mov_b32 s{r+1}, s{p+1}")
            else:
                A(f"s_add_u32 s{r}, s{p}, {off}"); A(f"s_addc_u32 s{r+1}, s{p+1}, 0")
            if size is not None: A(f"s_mov_b32 s{r+2}, {size}")
            A(f"s_mov_b32 s{r+3}, 0x20000")
        A(f"s_lshl_b32 {sT0}, {sB}, 10"); mk(R_X, P_X, sT0, 1024)
        mk(R_GW, P_GW, None, 1024)
        A(f"s_lshl_b32 {sT0}, {sH}, 8"); A(f"s_lshl_b32 {sT1}, {sW}, 19"); A(f"s_add_u32 {sT0}, {sT0}, {sT1}")
        mk(R_WQ, P_WQ, sT0, 63 * 8192 + 256)
        A(f"s_lshl_b32 {sT1}, {sW}, 7")
        A(f"v_lshl_add_u32 v{vT0}, v{vG}, 5, {sT1}")
        A(f"v_lshlrev_b32 v{vT1}, 4, v{vL}")
    def setup_rest2(self):
        A = self.A
        def mk(r, p, off, size):
            A(f"s_add_u32 s{r}, s{p}, {off}"); A(f"s_addc_u32 s{r+1}, s{p+1}, 0")
            if size is not None: A(f"s_mov_b32 s{r+2}, {size}")
            A(f"s_mov_b32 s{r+3}, 0x20000")
        A(f"s_lshl_b32 {sT0}, {sSL}, 5"); A(f"s_mul_i32 {sT1}, {sW}, {64*2752}"); A(f"s_add_u32 {sT0}, {sT0}, {sT1}")
        mk(R_WG, P_WG, sT0, None); mk(R_WU, P_WU, sT0, None)
        A(f"s_mul_i32 s{R_WG+2}, {sT2}, {63*2752+32}")
        A(f"s_mov_b32 s{R_WU+2}, s{R_WG+2}")
        A(f"v_lshrrev_b32 v{vTM}, 3, v{vI}")
        A(f"v_lshl_add_u32 v{vTM}, v{vG}, 1, v{vTM}")
        A(f"v_mul_u32_u24 v{vOF}, {8*2752}, v{vTM}")
        A(f"v_and_b32 v{vTM}, 1, v{vI}")
        A(f"v_lshl_add_u32 v{vOF}, v{vTM}, 4, v{vOF}")
        A(f"s_lshl_b32 {sT0}, {sSL}, 14"); A(f"s_lshl_b32 {sT1}, {sW}, 7"); A(f"s_add_u32 {sT0}, {sT0}, {sT1}")
        mk(R_WD, P_WD, sT0, None)
        A(f"s_mul_i32 s{R_WD+2}, {sT2}, {15*1024+128}")
        A(f"s_lshl_b32 {sT0}, {sH}, 17"); A(f"s_add_u32 {sT0}, {sT0}, {sT1}")
        mk(R_WO, P_WO, sT0, 127 * 1024 + 128)
        A(f"v_and_b32 v{vTM}, 7, v{vL}")
        A(f"v_lshlrev_b32 v{vTM}, 4, v{vTM}")
        A(f"v_lshrrev_b32 v{vTM+1}, 3, v{vL}")
        A(f"v_lshl_add_u32 v{vOD}, v{vTM+1}, 10, v{vTM}")
        A(f"v_and_b32 v{vTM+2}, 3, v{vTM+1}")
        A(f"v_lshlrev_b32 v{vTM+2}, 3, v{vTM+2}")
        A(f"v_lshrrev_b32 v{vTM+1}, 2, v{vTM+1}")
        A(f"v_add_u32 v{vTM+1}, v{vTM+1}, v{vTM+2}")
        A(f"v_lshl_add_u32 v{vOW}, v{vTM+1}, 10, v{vTM}")
        A(f"s_lshl_b32 {sWOL}, {sW}, 14"); A(f"s_add_u32 {sWOL}, {sWOL}, {L_WO}")
        A(f"s_lshl_b32 {sWDL}, {sW}, 11"); A(f"s_add_u32 {sWDL}, {sWDL}, {L_WD}")

    def setup_masks(self):
        A = self.A
        A(f"v_and_b32 v{vTM}, 1, v{vI}")
        A(f"v_lshlrev_b32 v{vTM}, 4, v{vTM}")
        A(f"v_mov_b32 v{vTM+1}, 0xffff")
        A(f"v_lshlrev_b32 v{vTM+1}, v{vTM}, v{vTM+1}")
        A(f"v_bfe_u32 v{vTM}, v{vI}, 1, 2")
        for u in range(4):
            A(f"v_cmp_eq_u32 vcc, {u}, v{vTM}")
            self.nop(2)
            A(f"v_cndmask_b32 v{vM+u}, 0, v{vTM+1}, vcc")
        A(f"s_mov_b32 {sDUP0}, 0x01000100"); A(f"s_mov_b32 {sDUP1}, 0x03020302")
        A(f"s_mov_b32 {sC}, {f32(math.log2(math.e) / math.sqrt(128.0))}")

    def ws_srd(self):
        A = self.A
        A(f"s_mov_b32 s{R_WS}, s{P_WS}"); A(f"s_mov_b32 s{R_WS+1}, s{P_WS+1}")
        A(f"s_mov_b32 s{R_WS+2}, {WS_BYTES}"); A(f"s_mov_b32 s{R_WS+3}, 0x20000")

    def clear_block(self):
        A = self.A
        skip = self.label("noclr")
        A(f"s_cmp_lg_u32 {sW}, 7"); A(f"s_cbranch_scc1 {skip}")
        A(f"s_cmp_ge_u32 s2, {NCLR}"); A(f"s_cbranch_scc1 {skip}")
        for k in range(4): A(f"v_mov_b32 v{vTM+k}, -1")
        A(f"v_lshlrev_b32 v{vT1}, 4, v{vL}")
        per = 0x80000 // NCLR
        A(f"s_mul_i32 {sT0}, s2, {per}")
        n = per // 1024
        if not self.two_kernel:
            for k in range(n):
                A(f"buffer_store_dwordx4 {vr(vTM,4)}, v{vT1}, {srd(R_WS)}, {sT0} offen offset:{(k%4)*1024} sc1")
                if k % 4 == 3 and k != n - 1: A(f"s_add_u32 {sT0}, {sT0}, 4096")
        A(f"s_mul_i32 {sT0}, s2, {2048//NCLR}"); A(f"s_add_u32 {sT0}, {sT0}, {WS_S}")
        A(f"s_mov_b64 exec, {(1 << (2048//NCLR//16)) - 1}")
        A(f"buffer_store_dwordx4 {vr(vTM,4)}, v{vT1}, {srd(R_WS)}, {sT0} offen sc1")
        A("s_waitcnt vmcnt(0)")
        A("s_mov_b64 exec, 1")
        A(f"v_mov_b32 v{vTM+4}, 0"); A(f"v_mov_b32 v{vTM+5}, 1")
        A(f"global_atomic_add v{vTM+4}, v{vTM+5}, s[{P_DBG}:{P_DBG+1}]")
        A("s_mov_b64 exec, -1")
        self.L(skip)

    def items(self):
        A = self.A
        it = []
        ntw = " nt" if self.nt_w else ""
        def add(name, fn, dep=None, glue=False): it.append(dict(name=name, fn=fn, dep=dep, glue=glue))
        def kv(kind, G, t, dst):
            def fn():
                st = sTK if kind == "K" else sTV
                if t == 0 and G > 0: A(f"s_movk_i32 {st}, {G*4096}")
                so = st if G > 0 else "0"
                if kind == "K": A(f"buffer_load_dwordx4 {vr(dst+4*t,4)}, v{vOK}, {srd(R_K)}, {so} offen offset:{64*t} nt")
                else: A(f"buffer_load_dwordx4 {vr(dst+4*t,4)}, v{vOV}, {srd(R_V)}, {so} offen offset:{256*t} nt")
            return fn
        def grp(kind, G, dst, dep):
            for t in range(4): add(f"{kind}{G}_{t}", kv(kind, G, t, dst), dep if t == 0 else None)
        grp("K", 0, vK, None)
        def x0(): self.setup_rest(); A(f"buffer_load_dwordx4 {vr(vXR,4)}, v{vT0}, {srd(R_X)}, 0 offen")
        add("x0", x0)
        add("x1", lambda: A(f"buffer_load_dwordx4 {vr(vXR+4,4)}, v{vT0}, {srd(R_X)}, 0 offen offset:16"))
        add("gx", lambda: A(f"buffer_load_dwordx4 {vr(vBF,4)}, v{vT1}, {srd(R_X)}, 0 offen"))
        add("gw", lambda: A(f"buffer_load_dwordx4 {vr(vBF+4,4)}, v{vT1}, {srd(R_GW)}, 0 offen"))
        for t in range(16):
            def fn(t=t):
                if t > 0: A(f"s_mov_b32 {sTQ}, {t*8192}")
                A(f"buffer_load_dwordx4 {vr(vWQ+4*t,4)}, v{vOQ}, {srd(R_WQ)}, {sTQ if t else 0} offen{ntw}")
            add(f"wq{t}", fn)
        for m in range(2):
            for t in range(8):
                def fn(t=t, m=m):
                    if t == 0:
                        if m == 0: self.setup_rest2()
                        msk = "0x03030303" if m == 0 else "0x0c0c0c0c"
                        A(f"s_mov_b32 exec_lo, {msk}"); A(f"s_mov_b32 exec_hi, {msk}")
                    if t % 2 == 0 and t > 0: A(f"s_movk_i32 {sTF}, {t*2752}")
                    so = sTF if t >= 2 else "0"
                    A(f"buffer_load_dwordx4 {vr(vFF+4*t,4)}, v{vOF}, {srd(R_WG if m == 0 else R_WU)}, {so} offen offset:{(t%2)*2752}{ntw}")
                    if t == 7 and m == 1: A("s_mov_b64 exec, -1")
                add(f"ff{m}_{t}", fn, glue=not (m == 0 and t == 0))
        for G in range(1, 7): grp("K", G, vK + 16 * G, None)
        grp("K", 7, vK + 16 * 7, "qk2")
        def cnt():
            A(f"v_mov_b32 v{vT0}, 0")
            A(f"global_load_dword v{vTM+7}, v{vT0}, s[{P_DBG}:{P_DBG+1}] sc1")
        add("cnt", cnt)
        grp("V", 0, vX, None)
        for t in range(2):
            def fn(t=t):
                A(f"s_add_u32 m0, {sWDL}, {t*1024}")
                A(f"s_movk_i32 {sTD}, {t*8192}")
                A(f"buffer_load_dwordx4 v{vOD}, {srd(R_WD)}, {sTD} offen{ntw} lds")
            add(f"wd{t}", fn)
        for t in range(16):
            def fn(t=t):
                A(f"s_add_u32 m0, {sWOL}, {t*1024}")
                A(f"s_mov_b32 {sTD}, {(32*(t>>2) + 2*(t&3))*1024}")
                A(f"buffer_load_dwordx4 v{vOW}, {srd(R_WO)}, {sTD} offen{ntw} lds")
            add(f"wo{t}", fn)
        for G in range(1, 7): grp("V", G, vK + 16 * (G - 1), f"qk{G-1}")
        def st(k):
            def fn():
                if k == 0:
                    A(f"s_lshl_b32 {sT0}, {sBH}, 5"); A(f"s_add_u32 {sT0}, {sT0}, {WS_S}")
                    A(f"v_mov_b32 v{vT0}, 0")
                A(f"buffer_load_dwordx4 {vr(vXR+4*k,4)}, v{vT0}, {srd(R_WS)}, {sT0} offen offset:{16*k} sc1")
            return fn
        add("st0", st(0), "pv3"); add("st1", st(1), glue=True)
        grp("V", 7, vK + 16 * 6, "qk6")
        return it

    def bsel(self, src, half, bset):
        A = self.A
        t = vTM + 4 + bset
        A(f"v_perm_b32 v{t}, v{src}, v{src}, {sDUP1 if half else sDUP0}")
        for u in range(4): A(f"v_and_b32 v{vBF+4*bset+u}, v{t}, v{vM+u}")

    def step_gate(self):
        A = self.A
        x, w = vBF, vBF + 4
        t = vTM
        acc = vT0
        A(f"v_mov_b32 v{acc}, 0")
        for k in range(4):
            A(f"v_lshlrev_b32 v{t}, 16, v{x+k}"); A(f"v_lshlrev_b32 v{t+1}, 16, v{w+k}")
            A(f"v_and_b32 v{t+2}, 0xffff0000, v{x+k}"); A(f"v_and_b32 v{t+3}, 0xffff0000, v{w+k}")
            A(f"v_mul_f32 v{t}, v{t}, v{t+1}"); A(f"v_mul_f32 v{t+2}, v{t+2}, v{t+3}")
            A(f"v_cvt_pk_bf16_f32 v{t}, v{t}, v{t+2}")
            A(f"v_lshlrev_b32 v{t+1}, 16, v{t}"); A(f"v_and_b32 v{t}, 0xffff0000, v{t}")
            A(f"v_add_f32 v{acc}, v{acc}, v{t+1}"); A(f"v_add_f32 v{acc}, v{acc}, v{t}")
        for ctl in ("quad_perm:[1,0,3,2]", "quad_perm:[2,3,0,1]", "row_half_mirror", "row_mirror"):
            self.dpp_add(acc, ctl)
        self.swap_reduce("v_add_f32", acc, t, 16)
        self.swap_reduce("v_add_f32", acc, t, 32)
        A(f"v_cvt_pk_bf16_f32 v{acc}, v{acc}, v{acc}")
        A(f"v_and_b32 v{acc}, 0xffff0000, v{acc}")
        A(f"v_mul_f32 v{acc}, {f32(-math.log2(math.e))}, v{acc}")
        A(f"v_exp_f32 v{acc}, v{acc}")
        self.nop(1)
        A(f"v_add_f32 v{acc}, 1.0, v{acc}")
        A(f"v_rcp_f32 v{acc}, v{acc}")
        self.nop(1)
        A(f"v_cvt_pk_bf16_f32 v{acc}, v{acc}, v{acc}")
        A(f"v_and_b32 v{acc}, 0xffff0000, v{acc}")
        A(f"v_sub_f32 v{t}, 1.0, v{acc}")
        A(f"v_cvt_pk_bf16_f32 v{t}, v{t}, v{t}")
        A(f"v_and_b32 v{t}, 0xffff0000, v{t}")
        self.nop(1)
        A(f"v_readfirstlane_b32 s42, v{acc}")
        A(f"v_readfirstlane_b32 s43, v{t}")

    def step_q(self, lo, hi):
        A = self.A
        for t in range(lo, hi):
            if t == 0: self.setup_masks(); self.bsel(vXR, 0, 0)
            if t + 1 < 16: self.bsel(vXR + (t + 1) // 2, (t + 1) & 1, (t + 1) & 1)
            else: self.nop(2)
            c = "0" if t == 0 else vr(vACC, 4)
            A(f"v_mfma_f32_16x16x32_bf16 {vr(vACC,4)}, {vr(vWQ+4*t,4)}, {vr(vBF+4*(t&1),4)}, {c}")

    def step_ffn1(self):
        A = self.A
        A(f"v_cmp_lt_u32 vcc, 7, v{vI}")
        self.nop(2)
        for k in range(4): A(f"v_cndmask_b32 v{vXR+k}, v{vXR+k}, v{vXR+4+k}, vcc")
        for t in range(8):
            if t == 0: self.bsel(vXR, 0, 0)
            if t + 1 < 8: self.bsel(vXR + (t + 1) // 2, (t + 1) & 1, (t + 1) & 1)
            else: self.nop(2)
            c = "0" if t == 0 else vr(vAC2, 4)
            A(f"v_mfma_f32_16x16x32_bf16 {vr(vAC2,4)}, {vr(vFF+4*t,4)}, {vr(vBF+4*(t&1),4)}, {c}")
        t = vTM
        A(f"v_and_b32 v{t+1}, 7, v{vI}")
        A(f"s_lshl_b32 {sT0}, {sW}, 9"); A(f"s_add_u32 {sT0}, {sT0}, {L_QP}")
        A(f"v_lshl_add_u32 v{t}, v{vG}, 7, {sT0}")
        A(f"v_lshl_add_u32 v{t}, v{t+1}, 2, v{t}")
        for r in range(4): A(f"ds_write_b32 v{t}, v{vACC+r} offset:{32*r}")
        A(f"s_lshl_b32 {sT0}, {sW}, 8"); A(f"s_add_u32 {sT0}, {sT0}, {L_FP}")
        A(f"v_lshrrev_b32 v{t+2}, 1, v{vG}")
        A(f"v_lshl_add_u32 v{t+2}, v{t+2}, 7, {sT0}")
        A(f"v_lshl_add_u32 v{t+2}, v{t+1}, 4, v{t+2}")
        self.nop(2)
        A("s_mov_b32 exec_lo, 0xff"); A("s_mov_b32 exec_hi, 0xff00")
        A(f"ds_write_b128 v{t+2}, {vr(vAC2,4)}")
        A("s_mov_b64 exec, -1")
        A("s_waitcnt lgkmcnt(0)")
        A("s_barrier")

    def step_qred(self):
        A = self.A
        t = vTM
        d = vSP
        A(f"v_lshlrev_b32 v{t}, 3, v{vL}")
        for w in range(8): A(f"ds_read_b64 {vr(d+2*w,2)}, v{t} offset:{L_QP + 512*w}")
        e = vSP + 16
        A(f"v_lshlrev_b32 v{t+1}, 4, v{vL}")
        A(f"ds_read_b128 {vr(e,4)}, v{t+1} offset:{L_FP}")
        A(f"ds_read_b128 {vr(e+4,4)}, v{t+1} offset:{L_FP+1024}")
        A("s_waitcnt lgkmcnt(2)")
        for w in range(1, 8):
            A(f"v_add_f32 v{d}, v{d}, v{d+2*w}"); A(f"v_add_f32 v{d+1}, v{d+1}, v{d+2*w+1}")
        A(f"v_cvt_pk_bf16_f32 v{d}, v{d}, v{d+1}")
        A(f"s_lshl_b32 {sT0}, {sW}, 8"); A(f"s_add_u32 {sT0}, {sT0}, {L_QS}")
        A(f"v_lshl_add_u32 v{t}, v{vL}, 2, {sT0}")
        A(f"ds_write_b32 v{t}, v{d}")
        A(f"v_lshl_add_u32 v{t}, v{vG}, 4, {sT0}")
        A("s_waitcnt lgkmcnt(0)")
        for T in range(4): A(f"ds_read_b128 {vr(vQF+4*T,4)}, v{t} offset:{64*T}")
        for k in range(4): A(f"v_add_f32 v{e+k}, v{e+k}, v{e+4+k}")
        self.nop(2)
        A(f"v_permlane32_swap_b32 v{e}, v{e+1}"); A(f"v_permlane32_swap_b32 v{e+2}, v{e+3}")
        self.nop(1)
        A(f"v_add_f32 v{e}, v{e}, v{e+1}"); A(f"v_add_f32 v{e+2}, v{e+2}, v{e+3}")
        self.swap_reduce("v_add_f32", e, e + 1, 16)
        self.swap_reduce("v_add_f32", e + 2, e + 3, 16)
        self.dpp_add(e, "row_ror:8"); self.dpp_add(e + 2, "row_ror:8")
        A(f"v_cvt_pk_bf16_f32 v{e}, v{e}, v{e+2}")
        A(f"v_and_b32 v{e+2}, 0xffff0000, v{e}")
        A(f"v_lshlrev_b32 v{e}, 16, v{e}")
        k0 = math.sqrt(2.0 / math.pi)
        A(f"v_mul_f32 v{e+1}, v{e}, v{e}")
        A(f"v_mov_b32 v{e+3}, {f32(-2.0 * k0 * math.log2(math.e))}")
        A(f"v_mul_f32 v{e+1}, {f32(0.044715)}, v{e+1}")
        A(f"v_add_f32 v{e+1}, 1.0, v{e+1}")
        A(f"v_mul_f32 v{e+1}, v{e+1}, v{e}")
        A(f"v_mul_f32 v{e+1}, v{e+1}, v{e+3}")
        A(f"v_exp_f32 v{e+1}, v{e+1}")
        self.nop(1)
        A(f"v_add_f32 v{e+1}, 1.0, v{e+1}")
        A(f"v_rcp_f32 v{e+1}, v{e+1}")
        self.nop(1)
        A(f"v_mul_f32 v{e}, v{e}, v{e+1}")
        A(f"v_cvt_pk_bf16_f32 v{e}, v{e}, v{e}")
        A(f"v_and_b32 v{e}, 0xffff0000, v{e}")
        A(f"v_mul_f32 v{e}, v{e}, v{e+2}")
        A(f"v_cvt_pk_bf16_f32 v{e}, v{e}, v{e}")
        A(f"s_lshl_b32 {sT0}, {sW}, 5"); A(f"s_add_u32 {sT0}, {sT0}, {L_HS}")
        A(f"v_lshrrev_b32 v{t+1}, 5, v{vL}"); A(f"v_and_b32 v{t+2}, 7, v{vL}")
        A(f"v_lshl_add_u32 v{t+1}, v{t+1}, 3, v{t+2}")
        A(f"v_lshl_add_u32 v{t+1}, v{t+1}, 1, {sT0}")
        A(f"ds_write_b16 v{t+1}, v{e}")
        A(f"v_lshl_add_u32 v{t+1}, v{vG}, 3, {sT0}")
        A("s_waitcnt lgkmcnt(0)")
        A(f"ds_read_b64 {vr(vAC2,2)}, v{t+1}")
        A(f"v_cmp_eq_u32 vcc, 0, v{t+2}")
        A("s_waitcnt lgkmcnt(0)")
        self.nop(1)
        A(f"v_cndmask_b32 v{vAC2}, 0, v{vAC2}, vcc"); A(f"v_cndmask_b32 v{vAC2+1}, 0, v{vAC2+1}, vcc")

    def step_qk(self, G):
        A = self.A
        for t in range(4):
            c = "0" if t == 0 else vr(vSP + 4 * G, 4)
            A(f"v_mfma_f32_16x16x32_bf16 {vr(vSP+4*G,4)}, {vr(vK+16*G+4*t,4)}, {vr(vQF+4*t,4)}, {c}")

    def step_softmax(self):
        A = self.A
        t = vTM
        m = vT1
        self.nop(8)
        A(f"v_max3_f32 v{m}, v{vSP}, v{vSP+1}, v{vSP+2}")
        for k in range(3, 31, 2): A(f"v_max3_f32 v{m}, v{m}, v{vSP+k}, v{vSP+k+1}")
        A(f"v_max_f32 v{m}, v{m}, v{vSP+31}")
        self.swap_reduce("v_max_f32", m, t, 16)
        self.swap_reduce("v_max_f32", m, t, 32)
        A(f"s_lshl_b32 {sT0}, {sW}, 2")
        A(f"v_mov_b32 v{t+4}, {sT0}")
        A(f"ds_write_b32 v{t+4}, v{m} offset:{L_MX}")
        A(f"v_mov_b32 v{t+5}, 0")
        A("s_waitcnt lgkmcnt(0)")
        A("s_barrier")
        A(f"ds_read_b128 {vr(vBF,4)}, v{t+5} offset:{L_MX}")
        A(f"ds_read_b128 {vr(vBF+4,4)}, v{t+5} offset:{L_MX+16}")
        A("s_waitcnt lgkmcnt(0)")
        A(f"v_max3_f32 v{m}, v{vBF}, v{vBF+1}, v{vBF+2}")
        A(f"v_max3_f32 v{m}, v{m}, v{vBF+3}, v{vBF+4}")
        A(f"v_max3_f32 v{m}, v{m}, v{vBF+5}, v{vBF+6}")
        A(f"v_max_f32 v{m}, v{m}, v{vBF+7}")
        A(f"v_mul_f32 v{m}, {sC}, v{m}")
        l = vT0
        for k in range(32):
            A(f"v_fma_f32 v{vSP+k}, v{vSP+k}, {sC}, -v{m}")
        for k in range(32):
            A(f"v_exp_f32 v{vSP+k}, v{vSP+k}")
        A(f"v_add_f32 v{l}, v{vSP}, v{vSP+1}"); A(f"v_add_f32 v{t}, v{vSP+2}, v{vSP+3}")
        for k in range(4, 32, 2):
            A(f"v_add_f32 v{l}, v{l}, v{vSP+k}"); A(f"v_add_f32 v{t}, v{t}, v{vSP+k+1}")
        A(f"v_add_f32 v{l}, v{l}, v{t}")
        self.swap_reduce("v_add_f32", l, t, 16)
        self.swap_reduce("v_add_f32", l, t, 32)
        A(f"ds_write_b32 v{t+4}, v{l} offset:{L_LS}")
        for k in range(32):
            A(f"v_cvt_pk_bf16_f32 v{vSP+k}, v{vSP+k}, v{vSP+k}")
        A(f"v_mov_b32 v{vAC2+2}, v{m}")
        ok = self.label("cntok"); sp = self.label("cntspin")
        A(f"v_readfirstlane_b32 {sT1}, v{vTM+7}")
        self.nop(3)
        A(f"s_cmp_ge_u32 {sT1}, {NCLR}"); A(f"s_cbranch_scc1 {ok}")
        A(f"s_mov_b32 {sCNT}, 0")
        self.L(sp)
        A(f"global_load_dword v{vTM+7}, v{t+5}, s[{P_DBG}:{P_DBG+1}] sc1")
        A("s_waitcnt vmcnt(0)")
        A(f"v_readfirstlane_b32 {sT1}, v{vTM+7}")
        A(f"s_add_u32 {sCNT}, {sCNT}, 1")
        A(f"s_cmp_ge_u32 {sCNT}, 0x40000"); A(f"s_cbranch_scc1 {ok}")
        A(f"s_cmp_lt_u32 {sT1}, {NCLR}"); A(f"s_cbranch_scc1 {sp}")
        self.L(ok)
        A("s_waitcnt lgkmcnt(0)")
        A("s_barrier")
        skip = self.label("nopub")
        A(f"s_cmp_lg_u32 {sW}, 0"); A(f"s_cbranch_scc1 {skip}")
        A(f"ds_read_b128 {vr(vBF,4)}, v{t+5} offset:{L_LS}")
        A(f"ds_read_b128 {vr(vBF+4,4)}, v{t+5} offset:{L_LS+16}")
        A(f"s_lshl_b32 {sT0}, {sBH}, 2"); A(f"s_add_u32 {sT0}, {sT0}, {sS}")
        A(f"s_lshl_b32 {sT0}, {sT0}, 3"); A(f"s_add_u32 {sT0}, {sT0}, {WS_S}")
        A("s_waitcnt lgkmcnt(0)")
        for k in range(1, 8): A(f"v_add_f32 v{vBF}, v{vBF}, v{vBF+k}")
        A(f"v_min_u32 v{t+1}, -2, v{vBF}")
        A(f"v_mov_b32 v{t}, v{m}")
        A("s_mov_b64 exec, 1")
        A(f"buffer_store_dwordx2 {vr(t,2)}, v{t+5}, {srd(R_WS)}, {sT0} offen sc1")
        A("s_mov_b64 exec, -1")
        self.L(skip)

    def step_pv(self, G):
        A = self.A
        base = vX if G == 0 else vK + 16 * (G - 1)
        def build(k, bset):
            for u in range(4): A(f"v_and_b32 v{vBF+4*bset+u}, v{vSP+k}, v{vM+u}")
        for r in range(4):
            k = 4 * G + r
            if k == 0: build(0, 0)
            if k + 1 < 32: build(k + 1, (k + 1) & 1)
            else: self.nop(2)
            c = "0" if k == 0 else vr(vACC, 4)
            A(f"v_mfma_f32_16x16x32_bf16 {vr(vACC,4)}, {vr(base+4*r,4)}, {vr(vBF+4*(k&1),4)}, {c}")

    WF = [vQF, vK + 16 * 7, vK, vK + 16]
    def tr_addr(self):
        A = self.A
        t = vTM
        A(f"v_lshrrev_b32 v{t}, 2, v{vI}"); A(f"v_and_b32 v{t+1}, 3, v{vI}")
        A(f"v_lshlrev_b32 v{t+1}, 3, v{t+1}")
        A(f"v_lshl_add_u32 v{t+1}, v{t}, 7, v{t+1}")
        A(f"v_lshl_add_u32 v{t+2}, v{vG}, 10, v{t+1}")
        A(f"v_add_u32 v{vOQ}, {sWOL}, v{t+2}")
        A(f"v_lshl_add_u32 v{t+2}, v{vG}, 9, v{t+1}")
        A(f"v_add_u32 v{vOF}, {sWDL}, v{t+2}")
    def step_wof(self, tiles):
        A = self.A
        for tau in tiles:
            for T in range(4):
                for hi in range(2):
                    A(f"ds_read_b64_tr_b16 {vr(self.WF[tau]+4*T+2*hi,2)}, v{vOQ} offset:{T*4096 + hi*512 + tau*32}")
            A("s_waitcnt lgkmcnt(0)")
    def step_ffn2(self):
        A = self.A
        self.tr_addr()
        t = vTM
        for tau in range(4): A(f"ds_read_b64_tr_b16 {vr(t+2*tau,2)}, v{vOF} offset:{tau*32}")
        A("s_waitcnt lgkmcnt(0)")
        for tau in range(4):
            A(f"v_mfma_f32_16x16x16_bf16 {vr(vDF+4*tau,4)}, {vr(vAC2,2)}, {vr(t+2*tau,2)}, 0")
        self.nop(8)
        for k in range(16): A(f"v_mul_f32 v{vDF+k}, s43, v{vDF+k}")

    def step_scale(self):
        A = self.A
        t = vTM
        s = vXR
        ok = self.label("stok"); sp = self.label("stspin")
        A(f"s_mov_b32 {sCNT}, 0")
        A(f"v_max3_u32 v{t}, v{s+1}, v{s+3}, v{s+5}")
        A(f"v_max_u32 v{t}, v{t}, v{s+7}")
        A(f"v_cmp_eq_u32 vcc, -1, v{t}")
        A(f"s_cbranch_vccz {ok}")
        self.L(sp)
        A(f"buffer_load_dwordx4 {vr(s,4)}, v{vT0}, {srd(R_WS)}, {sT0} offen sc1")
        A(f"buffer_load_dwordx4 {vr(s+4,4)}, v{vT0}, {srd(R_WS)}, {sT0} offen offset:16 sc1")
        A(f"s_add_u32 {sCNT}, {sCNT}, 1")
        A(f"s_cmp_ge_u32 {sCNT}, 0x40000")
        A("s_waitcnt vmcnt(0)")
        A(f"s_cbranch_scc1 {ok}")
        A(f"v_max3_u32 v{t}, v{s+1}, v{s+3}, v{s+5}")
        A(f"v_max_u32 v{t}, v{t}, v{s+7}")
        A(f"v_cmp_eq_u32 vcc, -1, v{t}")
        A(f"s_cbranch_vccnz {sp}")
        self.L(ok)
        A(f"v_max3_f32 v{t}, v{s}, v{s+2}, v{s+4}")
        A(f"v_max_f32 v{t}, v{t}, v{s+6}")
        for k in range(4): A(f"v_sub_f32 v{s+2*k}, v{s+2*k}, v{t}")
        A(f"v_sub_f32 v{t+1}, v{vAC2+2}, v{t}")
        for k in range(4): A(f"v_exp_f32 v{s+2*k}, v{s+2*k}")
        A(f"v_exp_f32 v{t+1}, v{t+1}")
        A(f"v_mul_f32 v{t}, v{s}, v{s+1}")
        for k in range(1, 4): A(f"v_fmac_f32 v{t}, v{s+2*k}, v{s+2*k+1}")
        A(f"v_rcp_f32 v{t}, v{t}")
        A(f"v_mul_f32 v{t+1}, s42, v{t+1}")
        A(f"v_mul_f32 v{vAC2+3}, v{t}, v{t+1}")
        A(f"v_and_b32 v{t}, 7, v{vI}")
        A(f"s_mul_i32 {sT1}, {sW}, 288"); A(f"s_add_u32 {sT1}, {sT1}, {L_OB}")
        A(f"v_lshl_add_u32 v{vOK}, v{vG}, 6, {sT1}")
        A(f"v_lshl_add_u32 v{vOK}, v{t}, 3, v{vOK}")
        A(f"v_mul_u32_u24 v{vOQ}, 288, v{t}")
        A(f"v_lshl_add_u32 v{vOQ}, v{vG}, 4, v{vOQ}")
        A(f"v_lshrrev_b32 v{t}, 2, v{vI}")
        A(f"v_lshl_add_u32 v{t}, v{vG}, 2, v{t}")
        A(f"v_lshlrev_b32 v{vOF}, 11, v{t}")
        A(f"s_lshl_b32 {sTF}, {sW}, 15")
        A(f"s_lshl_b32 {sT1}, {sB}, 18"); A(f"s_add_u32 {sTF}, {sTF}, {sT1}")
        A(f"s_lshl_b32 {sT1}, {sH}, 6"); A(f"s_add_u32 {sTF}, {sTF}, {sT1}")
        A(f"s_lshl_b32 {sT1}, {sS}, 4"); A(f"s_add_u32 {sTF}, {sTF}, {sT1}")
        A(f"v_cmp_gt_u32 s[0:1], 2, v{vG}")
        A(f"v_lshlrev_b32 v{vOD}, 4, v{vL}")
        A(f"s_lshl_b32 {sTQ}, s2, 11")
        A(f"v_and_b32 v{t}, 1, v{vG}"); A(f"v_lshrrev_b32 v{t+1}, 1, v{vG}")
        A(f"v_lshl_add_u32 v{t}, v{t}, 1, v{t+1}")
        A(f"s_lshl_b32 {sT1}, s2, 3")
        A(f"v_lshl_add_u32 v{vT1}, v{t}, 1, {sT1}")

    def step_tail(self):
        A = self.A
        t = vTM
        self.nop(8)
        for r in range(4): A(f"v_mul_f32 v{vACC+r}, v{vACC+r}, v{vAC2+3}")
        A(f"v_cvt_pk_bf16_f32 v{t}, v{vACC}, v{vACC+1}")
        A(f"v_cvt_pk_bf16_f32 v{t+1}, v{vACC+2}, v{vACC+3}")
        A(f"ds_write_b64 v{vOK}, {vr(t,2)}")
        A("s_waitcnt lgkmcnt(0)")
        self.stamp(2)
        A("s_barrier")
        af = vSP
        for T in range(4): A(f"ds_read_b128 {vr(af+4*T,4)}, v{vOQ} offset:{L_OB + 64*T}")
        for T in range(4):
            A(f"s_waitcnt lgkmcnt({3-T})")
            for tau in range(4):
                A(f"v_mfma_f32_16x16x32_bf16 {vr(vDF+4*tau,4)}, {vr(af+4*T,4)}, {vr(self.WF[tau]+4*T,4)}, {vr(vDF+4*tau,4)}")
        self.nop(5)
        for tau in range(4):
            d = vDF + 4 * tau
            A(f"v_add_f32 v{d}, v{d}, v{d+1}"); A(f"v_add_f32 v{d+2}, v{d+2}, v{d+3}")
            A(f"v_add_f32 v{d}, v{d}, v{d+2}")
        self.nop(1)
        A(f"v_permlane16_swap_b32 v{vDF}, v{vDF+4}")
        A(f"v_permlane16_swap_b32 v{vDF+8}, v{vDF+12}")
        self.nop(1)
        A(f"v_add_f32 v{vDF}, v{vDF}, v{vDF+4}")
        A(f"v_add_f32 v{vDF+8}, v{vDF+8}, v{vDF+12}")
        A(f"v_cndmask_b32 v{t}, v{vDF+8}, v{vDF}, s[0:1]")
        A(f"v_min_u32 v{t}, -2, v{t}")
        self.nop(2)
        for k in range(1, 4):
            A(f"v_mov_b32_dpp v{t+k}, v{t} quad_perm:[{k},{k},{k},{k}] row_mask:0xf bank_mask:0xf")
        A("s_mov_b32 exec_lo, 0x11111111"); A("s_mov_b32 exec_hi, 0x11111111")
        A(f"buffer_store_dwordx4 {vr(t,4)}, v{vOF}, {srd(R_WS)}, {sTF} offen{'' if self.two_kernel else ' sc1'}")
        A("s_mov_b64 exec, -1")
        self.stamp(3)

    def consumer(self, poll=True):
        A = self.A
        y = vSP
        t = vTM + 4
        sp = self.label("yspin"); ok = self.label("yok")
        A(f"s_mov_b32 {sCNT}, 0")
        self.L(sp)
        fl = " sc1" if poll else ""
        A(f"buffer_load_dwordx4 {vr(y,4)}, v{vOD}, {srd(R_WS)}, {sTQ} offen{fl}")
        A(f"buffer_load_dwordx4 {vr(y+4,4)}, v{vOD}, {srd(R_WS)}, {sTQ} offen offset:1024{fl}")
        if poll:
            A(f"s_add_u32 {sCNT}, {sCNT}, 1")
            A(f"s_cmp_ge_u32 {sCNT}, 0x40000")
            A("s_waitcnt vmcnt(0)")
            A(f"s_cbranch_scc1 {ok}")
            A(f"v_max3_u32 v{t}, v{y}, v{y+1}, v{y+2}")
            A(f"v_max3_u32 v{t+1}, v{y+3}, v{y+4}, v{y+5}")
            A(f"v_max3_u32 v{t}, v{t}, v{y+6}, v{y+7}")
            A(f"v_max_u32 v{t}, v{t}, v{t+1}")
            A(f"v_cmp_eq_u32 vcc, -1, v{t}")
            A(f"s_cbranch_vccnz {sp}")
            self.L(ok)
        else:
            A("s_waitcnt vmcnt(0)")
        for k in range(4): A(f"v_add_f32 v{y+k}, v{y+k}, v{y+4+k}")
        self.nop(1)
        A(f"v_permlane32_swap_b32 v{y}, v{y+1}"); A(f"v_permlane32_swap_b32 v{y+2}, v{y+3}")
        self.nop(1)
        A(f"v_add_f32 v{y}, v{y}, v{y+1}"); A(f"v_add_f32 v{y+2}, v{y+2}, v{y+3}")
        self.nop(2)
        A(f"v_permlane16_swap_b32 v{y}, v{y+2}")
        self.nop(1)
        A(f"v_add_f32 v{y}, v{y}, v{y+2}")
        for ctl in ("quad_perm:[1,0,3,2]", "quad_perm:[2,3,0,1]", "row_half_mirror", "row_mirror"):
            self.dpp_add(y, ctl)
        A(f"v_cvt_pk_bf16_f32 v{y}, v{y}, v{y}")
        A("s_mov_b32 exec_lo, 0x00010001"); A("s_mov_b32 exec_hi, 0x00010001")
        A(f"global_store_short v{vT1}, v{y}, s[{P_OUT}:{P_OUT+1}]")

    def steps(self):
        S = []
        def add(name, needs, fn): S.append(dict(name=name, needs=needs, fn=fn))
        add("gate", ["gx", "gw"], self.step_gate)
        add("q0", ["x1", "wq7"], lambda: self.step_q(0, 8))
        add("q1", ["wq15"], lambda: self.step_q(8, 16))
        add("ffn1", ["ff1_7"], self.step_ffn1)
        add("qred", [], lambda: (self.step_qred(), self.stamp(1)))
        for G in range(8): add(f"qk{G}", [f"K{G}_3"], lambda G=G: self.step_qk(G))
        add("softmax", ["cnt"], self.step_softmax)
        add("pv0", ["V0_3"], lambda: self.step_pv(0))
        add("ffn2", ["wd1"], self.step_ffn2)
        add("wof01", ["wo15"], lambda: self.step_wof([0, 1]))
        for G in range(1, 3): add(f"pv{G}", [f"V{G}_3"], lambda G=G: self.step_pv(G))
        add("wof23", [], lambda: self.step_wof([2, 3]))
        for G in range(3, 7): add(f"pv{G}", [f"V{G}_3"], lambda G=G: self.step_pv(G))
        add("scale", ["st1"], self.step_scale)
        add("pv7", ["V7_3"], lambda: self.step_pv(7))
        add("tail", [], self.step_tail)
        return S

    def schedule(self, W, LA):
        items = self.items(); steps = self.steps()
        idx = {it["name"]: n for n, it in enumerate(items)}
        issued = 0; comp = -1; done = set(); pos = -1
        for st in steps:
            need = max([idx[n] for n in st["needs"]], default=-1)
            pos = max(pos, need)
            while issued < len(items):
                it = items[issued]
                if not it["glue"]:
                    if issued > pos + LA: break
                    if it["dep"] and it["dep"] not in done:
                        assert issued > need, (st["name"], it["name"])
                        break
                if issued - (comp + 1) >= W:
                    self.A(f"s_waitcnt vmcnt({W-1})"); comp = issued - W
                it["fn"](); issued += 1
            if comp < need:
                self.A(f"s_waitcnt vmcnt({issued-1-need})"); comp = need
            st["fn"](); done.add(st["name"])
        assert issued == len(items)

    def kd(self, name, vg, sg):
        return [f".amdhsa_kernel {name}", f"  .amdhsa_next_free_vgpr {vg}", f"  .amdhsa_next_free_sgpr {sg}",
                f"  .amdhsa_accum_offset {vg}", "  .amdhsa_group_segment_fixed_size 0", "  .amdhsa_kernarg_size 104",
                "  .amdhsa_user_sgpr_count 2", "  .amdhsa_user_sgpr_kernarg_segment_ptr 1",
                "  .amdhsa_system_sgpr_workgroup_id_x 1", ".end_amdhsa_kernel"]

    def build(self):
        A = self.A
        K1 = NAME + "_kernel"; K2 = "gated_mix_reduce_kernel"
        o = self.o
        o.append(HEADER.rstrip("\n"))
        if self.two_kernel:
            o.append(f"; @launch kernel={K1} grid=(256,1,1) block=(512,1,1) lds={LDS_BYTES}")
            o.append(f"; @launch kernel={K2} grid=(256,1,1) block=(64,1,1) lds=0")
        else:
            o.append(f"; @launch grid=(256,1,1) block=(512,1,1) lds={LDS_BYTES}")
        o += ['.amdgcn_target "amdgcn-amd-amdhsa--gfx950"', ".text", f".globl {K1}", ".p2align 8",
              f".type {K1},@function", f"{K1}:"]
        self.prologue()
        self.ws_srd()
        self.clear_block()
        if self.W_even is not None:
            A(f"s_and_b32 {sT0}, {sXCC}, 1"); A("s_cbranch_scc1 L_odd")
            self.schedule(self.W_even, self.LA_even)
            A("s_branch L_join")
            self.L("L_odd")
            self.schedule(self.W, self.LA)
            self.L("L_join")
        else:
            self.schedule(self.W, self.LA)
        A(f"s_cmp_lg_u32 {sW}, 0"); A("s_cbranch_scc1 L_end")
        if not self.two_kernel:
            self.consumer()
        if self.stamps:
            self.stamp(4)
            A("s_mov_b64 exec, 1")
            A("s_waitcnt lgkmcnt(0)")
            A(f"s_add_u32 s40, s40, {STAMP_OFF}"); A("s_addc_u32 s41, s41, 0")
            A("s_lshl_b32 s8, s2, 6"); A("v_mov_b32 v1, s8")
            order = [0, 1, 2, 3]
            for k in range(4):
                A(f"v_mov_b32 v{8+2*k}, s{sST+2*k}"); A(f"v_mov_b32 v{9+2*k}, s{sST+2*k+1}")
            A(f"v_mov_b32 v16, {sXCC}"); A("v_mov_b32 v17, 0")
            A(f"v_mov_b32 v18, s{sST+8}"); A(f"v_mov_b32 v19, s{sST+9}")
            A("global_store_dwordx4 v1, v[8:11], s[40:41]")
            A("global_store_dwordx4 v1, v[12:15], s[40:41] offset:16")
            A("global_store_dwordx4 v1, v[16:19], s[40:41] offset:32")
        self.L("L_end"); A("s_endpgm")
        if self.two_kernel:
            o += [f".globl {K2}", ".p2align 8", f".type {K2},@function", f"{K2}:"]
            A("s_cmp_ge_u32 s2, 256"); A("s_cbranch_scc1 L_end2")
            A(f"s_load_dwordx2 s[{P_OUT}:{P_OUT+1}], s[0:1], 80")
            A(f"s_load_dwordx2 s[{P_WS}:{P_WS+1}], s[0:1], 96")
            t = vTM
            A(f"v_bfe_u32 v{vG}, v0, 4, 2")
            A(f"v_lshlrev_b32 v{vOD}, 4, v0")
            A(f"s_lshl_b32 {sTQ}, s2, 11")
            A(f"v_and_b32 v{t}, 1, v{vG}"); A(f"v_lshrrev_b32 v{t+1}, 1, v{vG}")
            A(f"v_lshl_add_u32 v{t}, v{t}, 1, v{t+1}")
            A(f"s_lshl_b32 {sT1}, s2, 3")
            A(f"v_lshl_add_u32 v{vT1}, v{t}, 1, {sT1}")
            A("s_waitcnt lgkmcnt(0)")
            self.ws_srd()
            self.consumer(poll=False)
            self.L("L_end2"); A("s_endpgm")
        o += ['.section .rodata,"a"', ".p2align 6"] + self.kd(K1, 256, 102)
        if self.two_kernel:
            o += [".p2align 6"] + self.kd(K2, 112, 102)
        return "\n".join(o) + "\n"

if __name__ == "__main__":
    import argparse, json
    ap = argparse.ArgumentParser()
    ap.add_argument("out"); ap.add_argument("--opt", default="{}")
    a = ap.parse_args()
    open(a.out, "w").write(Gen(**json.loads(a.opt)).build())
```

```python
import sys, struct, math

NAME = "gated_mix__mha_block_cached__geglu_ffn__decode"
HEADER = open("cdna_kernels/" + NAME + ".s.ref").read().split("; Override launch")[0]

def f32(x):
    return "0x%08x" % struct.unpack("<I", struct.pack("<f", x))[0]

L_QP = 0
L_QS = L_QP + 4096
L_FP = L_QS + 2048
L_HS = L_FP + 2048
L_MX = L_HS + 256
L_LS = L_MX + 64
L_OB = L_LS + 64
L_P0 = 11264
L_WD = L_P0 + 16384
L_WO = L_WD + 16384
L_END = L_WO + 131072
assert L_OB + 8 * 288 <= L_P0
L_P0 = L_WD
L_WD = 11264; L_P0 = L_WD; L_WO = L_WD + 16384; L_END = L_WO + 131072
LDS_BYTES = (L_END + 255) // 256 * 256

WS_Y = 0
WS_S = 0x80000
WS_Q = 0x81000
WS_F = WS_Q + 0x40000
WS_BYTES = WS_F + 176 * 1024
STAMP_OFF = 128 << 20
SPIN = "0x40000"

sW = "s3"
P_X, P_K, P_V, P_WQ, P_WO, P_WG, P_WU = 16, 18, 20, 22, 24, 28, 30
P_WD, P_GW, P_OUT, P_DBG, P_WS = 32, 34, 36, 38, 40
R_K, R_V, R_WQ, R_WO, R_X, R_GW, R_FT, R_WD, R_WS = 44, 48, 52, 56, 60, 64, 68, 76, 80
sH, sB, sS, sSL, sT0, sT1, sT2 = "s4", "s5", "s6", "s7", "s8", "s9", "s10"
sTK, sTV, sTQ, sTF, sTD = "s11", "s12", "s13", "s14", "s15"
sJ, sFT, sCLR, sGA = "s72", "s73", "s74", "s75"
sWOL, sWDL = "s84", "s85"
sDUP0, sDUP1 = "s86", "s87"
sC = "s88"; sCNT = "s89"; sXCC = "s90"; sBH = "s91"
sG, sG1 = "s42", "s43"
sST = 92
def srd(r): return f"s[{r}:{r+3}]"

vL, vI, vG = 1, 2, 3
vOK, vOV, vOQ, vOW, vOF, vOD, vT0, vT1 = 4, 5, 6, 7, 8, 9, 10, 11
vM = 12
vXR = 16
vGA = 20
vBF = 24
vACC = 32
vAC2 = 36
vQF = 40
vSP = 56
vDF = 88
vTM = 104
vK = 112
vX = 240
def vr(a, n): return f"v[{a}:{a+n-1}]"

class Gen:
    def __init__(self, W=60, LA=8, W_even=None, LA_even=None, two_kernel=False, stamps=False,
                 nt_w=False, ga_after=2, k0_first=False, sleep=64, wo_sched=None, st_dep="pv3", diag=0, obar=True, boost=0, k0_late=True, fl2_after=6, p0only=None):
        self.o = []
        self.W, self.LA, self.W_even, self.LA_even = W, LA, W_even, LA_even
        self.two_kernel, self.stamps, self.nt_w = two_kernel, stamps, nt_w
        self.ga_after, self.k0_first, self.st_dep, self.sleep = ga_after, k0_first, st_dep, sleep
        self.wo_sched = wo_sched or [0, 1, 1, 2, 1, 2, 1, 2, 1, 2, 1, 2, 2, 0, 0, 0]
        assert sum(self.wo_sched) == 18
        self.lab = 0
        self.diag = diag
        self.obar = obar
        self.boost = boost
        self.p0only = p0only
        self.k0_late = k0_late
        self.fl2_after = fl2_after
    def A(self, s): self.o.append("    " + s)
    def L(self, s): self.o.append(s + ":")
    def nop(self, n):
        while n > 0:
            k = min(n, 16); self.A(f"s_nop {k-1}"); n -= k
    def label(self, p):
        self.lab += 1; return f"L_{p}_{self.lab}"
    def stamp(self, k):
        if self.stamps: self.A(f"s_memrealtime s[{sST+2*k}:{sST+2*k+1}]")

    def swap_reduce(self, op, v, tmp, which):
        A = self.A
        A(f"v_mov_b32 v{tmp}, v{v}")
        self.nop(2)
        A(f"v_permlane{which}_swap_b32 v{v}, v{tmp}")
        self.nop(1)
        A(f"{op} v{v}, v{v}, v{tmp}")
    def dpp_add(self, v, ctl):
        self.nop(2)
        self.A(f"v_add_f32_dpp v{v}, v{v}, v{v} {ctl} row_mask:0xf bank_mask:0xf")
    def mk(self, r, p, off, size):
        A = self.A
        if off is None:
            A(f"s_mov_b32 s{r}, s{p}"); A(f"s_mov_b32 s{r+1}, s{p+1}")
        else:
            A(f"s_add_u32 s{r}, s{p}, {off}"); A(f"s_addc_u32 s{r+1}, s{p+1}, 0")
        if size is not None: A(f"s_mov_b32 s{r+2}, {size}")
        A(f"s_mov_b32 s{r+3}, 0x20000")

    def prologue(self):
        A = self.A
        A("s_cmp_ge_u32 s2, 256")
        A("s_cbranch_scc1 L_end")
        A("s_load_dwordx16 s[16:31], s[0:1], 0")
        A("s_load_dwordx8 s[32:39], s[0:1], 64")
        A("s_load_dwordx2 s[40:41], s[0:1], 96")
        self.stamp(0)
        A("v_lshrrev_b32 v10, 6, v0")
        A(f"v_and_b32 v{vL}, 63, v0")
        A(f"v_readfirstlane_b32 {sW}, v10")
        A(f"v_and_b32 v{vI}, 15, v0")
        A(f"v_bfe_u32 v{vG}, v0, 4, 2")
        A(f"s_and_b32 {sT0}, s2, 7")
        A(f"s_lshr_b32 {sT1}, s2, 3")
        A(f"s_and_b32 {sT2}, {sT1}, 3")
        A(f"s_lshl_b32 {sH}, {sT0}, 2")
        A(f"s_add_u32 {sH}, {sH}, {sT2}")
        A(f"s_lshr_b32 {sJ}, {sT1}, 2")
        A(f"s_lshr_b32 {sB}, {sT1}, 4")
        A(f"s_and_b32 {sS}, {sJ}, 3")
        A(f"s_lshl_b32 {sBH}, {sB}, 5")
        A(f"s_add_u32 {sBH}, {sBH}, {sH}")
        A(f"s_lshl_b32 {sFT}, {sT2}, 3")
        A(f"s_add_u32 {sFT}, {sFT}, {sT0}")
        A(f"s_and_b32 {sT1}, {sT1}, 15")
        A(f"s_mul_i32 {sSL}, {sT0}, 11")
        A(f"s_add_u32 {sSL}, {sSL}, {sT1}")
        A(f"s_cmp_lt_u32 {sT1}, 11")
        A(f"s_cselect_b32 {sSL}, {sSL}, 1000")
        A(f"s_cmp_lt_u32 {sSL}, 86")
        A(f"s_cselect_b32 {sT2}, 1, 0")
        A(f"s_cselect_b32 {sSL}, {sSL}, 0")
        A(f"v_and_b32 v{vOK}, 7, v0")
        A(f"v_lshlrev_b32 v{vOK}, 8, v{vOK}")
        A(f"v_lshl_add_u32 v{vOK}, v{vG}, 4, v{vOK}")
        A(f"v_and_b32 v{vT1}, 8, v0")
        A(f"v_lshl_add_u32 v{vOK}, v{vT1}, 3, v{vOK}")
        A(f"v_lshlrev_b32 v{vT1}, 4, v{vI}")
        A(f"v_lshl_add_u32 v{vOV}, v{vG}, 10, v{vT1}")
        A(f"s_lshl_b32 {sT0}, {sBH}, 20")
        A(f"s_lshl_b32 {sT1}, {sS}, 18")
        A(f"s_add_u32 {sT0}, {sT0}, {sT1}")
        A(f"s_lshl_b32 {sT1}, {sW}, 15")
        A(f"s_add_u32 {sT0}, {sT0}, {sT1}")
        A(f"s_mov_b32 s{R_K+2}, 32768"); A(f"s_mov_b32 s{R_K+3}, 0x20000")
        A("s_waitcnt lgkmcnt(0)")
        A(f"s_add_u32 s{R_K}, s{P_K}, {sT0}"); A(f"s_addc_u32 s{R_K+1}, s{P_K+1}, 0")
        A(f"s_add_u32 s{R_V}, s{P_V}, {sT0}"); A(f"s_addc_u32 s{R_V+1}, s{P_V+1}, 0")
        self.mk(R_WS, P_WS, None, WS_BYTES)

    def kv_load(self, kind, G, t):
        A = self.A
        st = sTK if kind == "K" else sTV
        if t == 0 and G > 0: A(f"s_movk_i32 {st}, {G*4096}")
        so = st if G > 0 else "0"
        if kind == "K":
            A(f"buffer_load_dwordx4 {vr(vK+16*G+4*t,4)}, v{vOK}, {srd(R_K)}, {so} offen offset:{(t>>1)*2048 + (t&1)*128} nt")
        else:
            dst = vX if G == 0 else vK + 16 * (G - 1)
            A(f"buffer_load_dwordx4 {vr(dst+4*t,4)}, v{vOV}, {srd(R_V)}, {so} offen offset:{256*t} nt")

    def bsel(self, src, half, bset):
        A = self.A
        t = vTM + 4 + bset
        A(f"v_perm_b32 v{t}, v{src}, v{src}, {sDUP1 if half else sDUP0}")
        for u in range(4): A(f"v_and_b32 v{vBF+4*bset+u}, v{t}, v{vM+u}")

    def phase0(self):
        A = self.A
        ntw = " nt" if self.nt_w else ""
        if self.k0_first:
            for t in range(4): self.kv_load("K", 0, t)
        self.mk(R_X, P_X, None, 2048)
        A(f"s_lshl_b32 {sT0}, {sJ}, 3"); A(f"s_add_u32 {sT0}, {sT0}, {sW}")
        A(f"s_lshl_b32 {sT1}, {sT0}, 4")
        A(f"v_lshrrev_b32 v{vT0}, 3, v{vI}")
        A(f"v_lshlrev_b32 v{vT0}, 10, v{vT0}")
        A(f"v_lshl_add_u32 v{vT0}, v{vG}, 2, v{vT0}")
        A(f"buffer_load_dword v{vXR}, v{vT0}, {srd(R_X)}, {sT1} offen")
        A(f"s_lshl_b32 {sT1}, {sT0}, 16"); A(f"s_lshl_b32 {sTQ}, {sH}, 8"); A(f"s_add_u32 {sT1}, {sT1}, {sTQ}")
        self.mk(R_WQ, P_WQ, sT1, 7 * 8192 + 256)
        A(f"v_lshl_add_u32 v{vOQ}, v{vG}, 14, v{vT1}")
        A(f"s_movk_i32 {sTQ}, 8192")
        if self.p0only in (None, "wq", "both"):
            A(f"buffer_load_dwordx4 {vr(vDF,4)}, v{vOQ}, {srd(R_WQ)}, 0 offen{ntw}")
            A(f"buffer_load_dwordx4 {vr(vDF+4,4)}, v{vOQ}, {srd(R_WQ)}, {sTQ} offen{ntw}")
        A(f"s_cmp_ge_u32 {sFT}, 11")
        A(f"s_cselect_b32 s{R_FT}, s{P_WU}, s{P_WG}"); A(f"s_cselect_b32 s{R_FT+1}, s{P_WU+1}, s{P_WG+1}")
        A(f"s_cselect_b32 {sT1}, 11, 0")
        A(f"s_sub_u32 {sT1}, {sFT}, {sT1}")
        A(f"s_lshl_b32 {sT1}, {sT1}, 8")
        A(f"s_mul_i32 {sT0}, {sT0}, {8*2752}")
        A(f"s_add_u32 {sT1}, {sT1}, {sT0}")
        A(f"s_sub_u32 s{R_FT+2}, {512*2752}, {sT1}")
        A(f"s_cmp_lt_u32 {sFT}, 22")
        A(f"s_cselect_b32 s{R_FT+2}, s{R_FT+2}, 0")
        A(f"s_cselect_b32 {sT1}, {sT1}, 0")
        A(f"s_add_u32 s{R_FT}, s{R_FT}, {sT1}"); A(f"s_addc_u32 s{R_FT+1}, s{R_FT+1}, 0")
        A(f"s_mov_b32 s{R_FT+3}, 0x20000")
        A(f"v_mul_u32_u24 v{vOF}, {2*2752}, v{vG}")
        A(f"v_add_u32 v{vOF}, v{vOF}, v{vT1}")
        if self.p0only in (None, "ft", "both"):
            A(f"buffer_load_dwordx4 {vr(vDF+8,4)}, v{vOF}, {srd(R_FT)}, 0 offen{ntw}")
            A(f"buffer_load_dwordx4 {vr(vDF+12,4)}, v{vOF}, {srd(R_FT)}, 0 offen offset:2752{ntw}")
        if self.p0only == "k0":
            for t in range(4): self.kv_load("K", 0, t)
        if self.p0only:
            self.stamp(1); A("s_waitcnt vmcnt(0)"); self.stamp(2); A("s_barrier"); self.stamp(3)
            A(f"s_getreg_b32 {sXCC}, hwreg(HW_REG_XCC_ID)")
            return
        A(f"v_lshlrev_b32 v{vT1}, 4, v{vL}")
        if self.obar and not self.k0_late: A("s_barrier")
        lj = self.label("clsJ")
        if not self.k0_first and not self.k0_late:
            for t in range(4): self.kv_load("K", 0, t)
        self.mk(R_GW, P_GW, None, 1024)
        A(f"s_mov_b32 s{R_V+2}, 32768"); A(f"s_mov_b32 s{R_V+3}, 0x20000")
        A(f"s_lshl_b32 {sT0}, {sSL}, 14"); A(f"s_lshl_b32 {sT1}, {sW}, 7"); A(f"s_add_u32 {sT0}, {sT0}, {sT1}")
        self.mk(R_WD, P_WD, sT0, None)
        A(f"s_mul_i32 s{R_WD+2}, {sT2}, {15*1024+128}")
        A(f"s_lshl_b32 {sT0}, {sH}, 17"); A(f"s_add_u32 {sT0}, {sT0}, {sT1}")
        self.mk(R_WO, P_WO, sT0, 127 * 1024 + 128)
        t = vTM + 4
        A(f"v_and_b32 v{t}, 7, v{vL}")
        A(f"v_lshlrev_b32 v{t}, 4, v{t}")
        A(f"v_lshrrev_b32 v{t+1}, 3, v{vL}")
        A(f"v_lshl_add_u32 v{vOD}, v{t+1}, 10, v{t}")
        A(f"v_and_b32 v{t+2}, 3, v{t+1}")
        A(f"v_lshlrev_b32 v{t+2}, 3, v{t+2}")
        A(f"v_lshrrev_b32 v{t+1}, 2, v{t+1}")
        A(f"v_add_u32 v{t+1}, v{t+1}, v{t+2}")
        A(f"v_lshl_add_u32 v{vOW}, v{t+1}, 10, v{t}")
        A(f"s_lshl_b32 {sWOL}, {sW}, 14"); A(f"s_add_u32 {sWOL}, {sWOL}, {L_WO}")
        A(f"s_lshl_b32 {sWDL}, {sW}, 11"); A(f"s_add_u32 {sWDL}, {sWDL}, {L_WD}")
        A(f"v_and_b32 v{t}, 1, v{vI}")
        A(f"v_lshlrev_b32 v{t}, 4, v{t}")
        A(f"v_mov_b32 v{t+1}, 0xffff")
        A(f"v_lshlrev_b32 v{t+1}, v{t}, v{t+1}")
        A(f"v_bfe_u32 v{t}, v{vI}, 1, 2")
        for u in range(4):
            A(f"v_cmp_eq_u32 vcc, {u}, v{t}")
            self.nop(2)
            A(f"v_cndmask_b32 v{vM+u}, 0, v{t+1}, vcc")
        A(f"s_mov_b32 {sDUP0}, 0x01000100"); A(f"s_mov_b32 {sDUP1}, 0x03020302")
        A(f"s_mov_b32 {sC}, {f32(math.log2(math.e) / math.sqrt(128.0))}")
        A(f"s_getreg_b32 {sXCC}, hwreg(HW_REG_XCC_ID)")
        A(f"s_lshr_b32 {sT0}, {sSL}, 3")
        A(f"s_lshl_b32 {sCLR}, 0x801, {sT0}")
        A(f"s_lshl_b32 {sT0}, 1, {sFT}")
        A(f"s_or_b32 {sCLR}, {sCLR}, {sT0}"); A(f"s_mov_b32 {sGA}, {sCLR}")
        A(f"s_lshl_b32 {sT0}, {sH}, 13"); A(f"s_lshl_b32 {sT1}, {sB}, 7"); A(f"s_add_u32 {sT0}, {sT0}, {sT1}")
        A(f"s_add_u32 {sT0}, {sT0}, {WS_Q}")
        A(f"v_lshrrev_b32 v{t}, 3, v{vL}")
        A(f"v_and_b32 v{t+1}, 7, v{vL}")
        A(f"v_lshlrev_b32 v{t+1}, 4, v{t+1}")
        A(f"v_lshl_add_u32 v{t+2}, v{t}, 8, {sT0}")
        A(f"s_lshr_b32 {sT0}, {sSL}, 3"); A(f"s_lshl_b32 {sT0}, {sT0}, 13"); A(f"s_add_u32 {sT0}, {sT0}, {sT1}")
        A(f"s_bfe_u32 {sT1}, {sSL}, 0x20001"); A(f"s_lshl_b32 {sT1}, {sT1}, 8"); A(f"s_add_u32 {sT0}, {sT0}, {sT1}")
        A(f"s_add_u32 {sT0}, {sT0}, {WS_F}")
        A(f"v_and_b32 v{t}, 1, v{t}")
        A(f"v_mul_u32_u24 v{t}, {11*8192}, v{t}")
        A(f"v_add_u32 v{t}, {sT0}, v{t}")
        A(f"v_cmp_gt_u32 vcc, 32, v{vL}")
        A(f"s_lshl_b32 {sT1}, {sW}, 10")
        self.nop(1)
        A(f"v_cndmask_b32 v{t}, v{t}, v{t+2}, vcc")
        A(f"v_add3_u32 v{vXR+1}, v{t}, v{t+1}, {sT1}")
        if self.k0_late:
            for t in range(4):
                A(f"s_waitcnt vmcnt({[2,2,2,3][t]})")
                self.kv_load("K", 0, t)
        else:
            A(f"s_waitcnt vmcnt({0 if self.k0_first else 4})")
        if self.diag == 2: self.stamp(1)
        self.bsel(vXR, 0, 0); self.bsel(vXR, 1, 1)
        A(f"s_lshl_b32 {sT0}, {sW}, 10"); A(f"s_add_u32 {sT0}, {sT0}, {L_P0}")
        A(f"v_mfma_f32_16x16x32_bf16 {vr(vACC,4)}, {vr(vDF,4)}, {vr(vBF,4)}, 0")
        A(f"v_mfma_f32_16x16x32_bf16 {vr(vAC2,4)}, {vr(vDF+8,4)}, {vr(vBF,4)}, 0")
        A(f"v_mfma_f32_16x16x32_bf16 {vr(vACC,4)}, {vr(vDF+4,4)}, {vr(vBF+4,4)}, {vr(vACC,4)}")
        A(f"v_mfma_f32_16x16x32_bf16 {vr(vAC2,4)}, {vr(vDF+12,4)}, {vr(vBF+4,4)}, {vr(vAC2,4)}")
        A(f"v_lshl_add_u32 v{vT0}, v{vL}, 4, {sT0}")
        self.nop(7)
        A(f"ds_write_b128 v{vT0}, {vr(vACC,4)}")
        A(f"ds_write_b128 v{vT0}, {vr(vAC2,4)} offset:8192")
        A("s_waitcnt lgkmcnt(0)")
        A("s_barrier")
        if self.diag == 2: self.stamp(2)
        A(f"s_cmp_lg_u32 {sW}, 0"); A(f"s_cbranch_scc1 {lj}")
        d = vSP; d2 = vK + 96
        for w in range(8): A(f"ds_read_b128 {vr(d+4*w,4)}, v{vT0} offset:{1024*w}")
        for w in range(4): A(f"ds_read_b128 {vr(d2+4*w,4)}, v{vT0} offset:{8192+1024*w}")
        A(f"s_lshl_b32 {sT0}, {sH}, 3"); A(f"s_add_u32 {sT0}, {sT0}, {sJ}"); A(f"s_lshl_b32 {sT0}, {sT0}, 10")
        A(f"s_add_u32 {sT0}, {sT0}, {WS_Q}")
        A(f"s_lshl_b32 {sT1}, {sFT}, 3"); A(f"s_add_u32 {sT1}, {sT1}, {sJ}"); A(f"s_lshl_b32 {sT1}, {sT1}, 10")
        A(f"s_add_u32 {sT1}, {sT1}, {WS_F}")
        A("s_waitcnt lgkmcnt(4)")
        for w in range(4, 8): A(f"ds_read_b128 {vr(d2+4*w,4)}, v{vT0} offset:{8192+1024*w}")
        for w in range(1, 8):
            for r in range(4): A(f"v_add_f32 v{d+r}, v{d+r}, v{d+4*w+r}")
        A(f"buffer_store_dwordx4 {vr(d,4)}, v{vT1}, {srd(R_WS)}, {sT0} offen sc1")
        A("s_waitcnt lgkmcnt(0)")
        for w in range(1, 8):
            for r in range(4): A(f"v_add_f32 v{d2+r}, v{d2+r}, v{d2+4*w+r}")
        A(f"buffer_store_dwordx4 {vr(d2,4)}, v{vT1}, {srd(R_WS)}, {sT1} offen sc1")
        for k in range(4): A(f"v_mov_b32 v{vTM+k}, -1")
        if not self.two_kernel:
            A(f"s_lshl_b32 {sT0}, s2, 11")
            A(f"buffer_store_dwordx4 {vr(vTM,4)}, v{vT1}, {srd(R_WS)}, {sT0} offen sc1")
            A(f"buffer_store_dwordx4 {vr(vTM,4)}, v{vT1}, {srd(R_WS)}, {sT0} offen offset:1024 sc1")
        A(f"s_lshl_b32 {sT0}, s2, 3"); A(f"s_add_u32 {sT0}, {sT0}, {WS_S}")
        A("s_mov_b64 exec, 1")
        A(f"buffer_store_dwordx2 {vr(vTM,2)}, v{vT1}, {srd(R_WS)}, {sT0} offen sc1")
        A("s_mov_b64 exec, -1")
        self.nop(2)
        self.L(lj)

    def items(self, LA):
        A = self.A
        it = []
        ntw = " nt" if self.nt_w else ""
        def add(name, fn, dep=None, glue=False): it.append(dict(name=name, fn=fn, dep=dep, glue=glue))
        def grp(kind, G, dep):
            for t in range(4): add(f"{kind}{G}_{t}", lambda t=t: self.kv_load(kind, G, t), dep if t == 0 else None)
        dma = []
        for t in range(2):
            def fn(t=t):
                A(f"s_add_u32 m0, {sWDL}, {t*1024}")
                A(f"s_movk_i32 {sTD}, {t*8192}")
                A(f"buffer_load_dwordx4 v{vOD}, {srd(R_WD)}, {sTD} offen{ntw} lds")
            dma.append((f"wd{t}", fn, "qred"))
        wo = []
        for t in range(16):
            def fn(t=t):
                A(f"s_add_u32 m0, {sWOL}, {t*1024}")
                A(f"s_mov_b32 {sTD}, {(32*(t>>2) + 2*(t&3))*1024}")
                A(f"buffer_load_dwordx4 v{vOW}, {srd(R_WO)}, {sTD} offen{ntw} lds")
            wo.append((f"wo{t}", fn, None))
        dma = wo[:14] + dma + wo[14:]
        def put(slot):
            for _ in range(self.wo_sched[slot]):
                n, fn, dep = dma.pop(0); add(n, fn, dep)
        def ga():
            A("s_mov_b32 exec_hi, 0xffff")
            A(f"buffer_load_dwordx4 {vr(vGA,4)}, v{vXR+1}, {srd(R_WS)}, 0 offen sc1")
            A("s_mov_b32 exec_hi, -1")
        def fl():
            A(f"v_lshlrev_b32 v{vT0}, 2, v{vL}")
            A(f"global_load_dword v{vTM+7}, v{vT0}, s[{P_DBG}:{P_DBG+1}] sc1")
        ga_pos = None
        for G in range(8):
            grp("K", G, None); put(G)
            if G == 1:
                def gx():
                    A(f"s_lshl_b32 {sT1}, {sB}, 10")
                    A(f"buffer_load_dwordx4 {vr(vQF,4)}, v{vT1}, {srd(R_X)}, {sT1} offen")
                add("gx", gx)
                add("gw", lambda: A(f"buffer_load_dwordx4 {vr(vQF+4,4)}, v{vT1}, {srd(R_GW)}, 0 offen"))
            if G == self.ga_after: add("fl", fl); ga_pos = len(it) + LA
        add("fl2", fl, "qred")
        it.insert(min(ga_pos, [n for n, x in enumerate(it) if x["name"] == "K7_3"][0]), dict(name="ga", fn=ga, dep="flchk", glue=False))
        def st(k):
            def fn():
                if k == 0:
                    A(f"s_lshl_b32 {sT0}, {sBH}, 5"); A(f"s_add_u32 {sT0}, {sT0}, {WS_S}")
                    A(f"v_mov_b32 v{vT0}, 0")
                A(f"buffer_load_dwordx4 {vr(vXR+4*k,4)}, v{vT0}, {srd(R_WS)}, {sT0} offen offset:{16*k} sc1")
            return fn
        for G in range(8):
            if G == 7:
                add("st0", st(0), self.st_dep); add("st1", st(1), glue=True)
            grp("V", G, f"qk{G-1}" if G else None); put(8 + G)
        return it

    def step_gate(self):
        A = self.A
        x, w = vQF, vQF + 4
        t = vTM
        acc = vT0
        A(f"v_mov_b32 v{acc}, 0")
        for k in range(4):
            A(f"v_lshlrev_b32 v{t}, 16, v{x+k}"); A(f"v_lshlrev_b32 v{t+1}, 16, v{w+k}")
            A(f"v_and_b32 v{t+2}, 0xffff0000, v{x+k}"); A(f"v_and_b32 v{t+3}, 0xffff0000, v{w+k}")
            A(f"v_mul_f32 v{t}, v{t}, v{t+1}"); A(f"v_mul_f32 v{t+2}, v{t+2}, v{t+3}")
            A(f"v_cvt_pk_bf16_f32 v{t}, v{t}, v{t+2}")
            A(f"v_lshlrev_b32 v{t+1}, 16, v{t}"); A(f"v_and_b32 v{t}, 0xffff0000, v{t}")
            A(f"v_add_f32 v{acc}, v{acc}, v{t+1}"); A(f"v_add_f32 v{acc}, v{acc}, v{t}")
        for ctl in ("quad_perm:[1,0,3,2]", "quad_perm:[2,3,0,1]", "row_half_mirror", "row_mirror"):
            self.dpp_add(acc, ctl)
        self.swap_reduce("v_add_f32", acc, t, 16)
        self.swap_reduce("v_add_f32", acc, t, 32)
        A(f"v_cvt_pk_bf16_f32 v{acc}, v{acc}, v{acc}")
        A(f"v_and_b32 v{acc}, 0xffff0000, v{acc}")
        A(f"v_mul_f32 v{acc}, {f32(-math.log2(math.e))}, v{acc}")
        A(f"v_exp_f32 v{acc}, v{acc}")
        self.nop(1)
        A(f"v_add_f32 v{acc}, 1.0, v{acc}")
        A(f"v_rcp_f32 v{acc}, v{acc}")
        self.nop(1)
        A(f"v_cvt_pk_bf16_f32 v{acc}, v{acc}, v{acc}")
        A(f"v_and_b32 v{acc}, 0xffff0000, v{acc}")
        A(f"v_sub_f32 v{t}, 1.0, v{acc}")
        A(f"v_cvt_pk_bf16_f32 v{t}, v{t}, v{t}")
        A(f"v_and_b32 v{t}, 0xffff0000, v{t}")
        self.nop(1)
        A(f"v_readfirstlane_b32 {sG}, v{acc}")
        A(f"v_readfirstlane_b32 {sG1}, v{t}")

    def step_flag(self):
        A = self.A
        sk = self.label("noflag")
        A(f"s_cmp_lg_u32 {sW}, 0"); A(f"s_cbranch_scc1 {sk}")
        A(f"s_and_b32 {sT0}, s2, 63"); A(f"s_lshl_b32 {sT0}, {sT0}, 2")
        A(f"v_mov_b32 v{vTM+5}, {sT0}"); A(f"v_mov_b32 v{vTM+6}, 1")
        A("s_mov_b64 exec, 1")
        A(f"global_atomic_add v{vTM+5}, v{vTM+6}, s[{P_DBG}:{P_DBG+1}]")
        A("s_mov_b64 exec, -1")
        if self.diag == 2: self.stamp(3)
        self.L(sk)

    def step_flchk(self, full):
        A = self.A
        ok = self.label("flok"); sp = self.label("flspin")
        def test():
            A(f"v_cmp_ne_u32 vcc, 4, v{vTM+7}")
            if not full: A("s_and_b64 vcc, vcc, s[74:75]")
        test()
        A(f"s_cbranch_vccz {ok}")
        A(f"s_mov_b32 {sCNT}, 0")
        A(f"v_lshlrev_b32 v{vT0}, 2, v{vL}")
        self.L(sp)
        A(f"s_sleep {self.sleep}")
        A(f"global_load_dword v{vTM+7}, v{vT0}, s[{P_DBG}:{P_DBG+1}] sc1")
        A(f"s_add_u32 {sCNT}, {sCNT}, 1")
        A(f"s_cmp_ge_u32 {sCNT}, {SPIN}")
        A("s_waitcnt vmcnt(0)")
        A(f"s_cbranch_scc1 {ok}")
        test()
        A(f"s_cbranch_vccnz {sp}")
        self.L(ok)
        if self.diag != 2 and not full: self.stamp(1)

    def step_qred(self):
        A = self.A
        t = vTM
        A(f"v_and_b32 v{t+1}, 7, v{vL}"); A(f"v_lshrrev_b32 v{t+2}, 3, v{vL}")
        A(f"s_lshl_b32 {sT0}, {sW}, 9"); A(f"s_add_u32 {sT0}, {sT0}, {L_QP}")
        A(f"v_lshl_add_u32 v{t}, v{t+2}, 7, {sT0}")
        A(f"v_lshl_add_u32 v{t}, v{t+1}, 2, v{t}")
        A("s_mov_b32 exec_hi, 0")
        for r in range(4): A(f"ds_write_b32 v{t}, v{vGA+r} offset:{32*r}")
        A("s_mov_b32 exec_lo, 0"); A("s_mov_b32 exec_hi, 0xffff")
        A(f"s_lshl_b32 {sT0}, {sW}, 8"); A(f"s_add_u32 {sT0}, {sT0}, {L_FP - 512}")
        A(f"v_lshl_add_u32 v{t}, v{vL}, 4, {sT0}")
        A(f"ds_write_b128 v{t}, {vr(vGA,4)}")
        A("s_mov_b64 exec, -1")
        A("s_waitcnt lgkmcnt(0)")
        A("s_barrier")
        d = vSP
        A(f"v_lshlrev_b32 v{t}, 3, v{vL}")
        for w in range(8): A(f"ds_read_b64 {vr(d+2*w,2)}, v{t} offset:{L_QP + 512*w}")
        e = vSP + 16
        A(f"s_and_b32 {sT0}, {sSL}, 1"); A(f"s_lshl_b32 {sT0}, {sT0}, 3")
        A(f"v_lshl_add_u32 v{t+3}, v{t+2}, 8, {sT0}")
        A(f"v_lshl_add_u32 v{t+3}, v{t+1}, 4, v{t+3}")
        A(f"ds_read_b64 {vr(e,2)}, v{t+3} offset:{L_FP}")
        A(f"ds_read_b64 {vr(e+2,2)}, v{t+3} offset:{L_FP+128}")
        A("s_waitcnt lgkmcnt(2)")
        for w in range(1, 8):
            A(f"v_add_f32 v{d}, v{d}, v{d+2*w}"); A(f"v_add_f32 v{d+1}, v{d+1}, v{d+2*w+1}")
        A(f"v_cvt_pk_bf16_f32 v{d}, v{d}, v{d+1}")
        A(f"s_lshl_b32 {sT0}, {sW}, 8"); A(f"s_add_u32 {sT0}, {sT0}, {L_QS}")
        A(f"v_lshl_add_u32 v{t}, v{vL}, 2, {sT0}")
        A(f"ds_write_b32 v{t}, v{d}")
        A(f"v_lshl_add_u32 v{t}, v{vG}, 4, {sT0}")
        A(f"v_and_b32 v{t+3}, 8, v{vL}")
        A(f"v_lshl_add_u32 v{t}, v{t+3}, 3, v{t}")
        A("s_waitcnt lgkmcnt(0)")
        for T in range(2): A(f"ds_read_b128 {vr(vQF+4*T,4)}, v{t} offset:{128*T}")
        A(f"v_permlane32_swap_b32 v{e}, v{e+1}"); A(f"v_permlane32_swap_b32 v{e+2}, v{e+3}")
        self.nop(1)
        A(f"v_add_f32 v{e}, v{e}, v{e+1}"); A(f"v_add_f32 v{e+2}, v{e+2}, v{e+3}")
        self.swap_reduce("v_add_f32", e, e + 1, 16)
        self.swap_reduce("v_add_f32", e + 2, e + 3, 16)
        self.dpp_add(e, "row_ror:8"); self.dpp_add(e + 2, "row_ror:8")
        A(f"v_cvt_pk_bf16_f32 v{e}, v{e}, v{e+2}")
        A(f"v_and_b32 v{e+2}, 0xffff0000, v{e}")
        A(f"v_lshlrev_b32 v{e}, 16, v{e}")
        k0 = math.sqrt(2.0 / math.pi)
        A(f"v_mul_f32 v{e+1}, v{e}, v{e}")
        A(f"v_mov_b32 v{e+3}, {f32(-2.0 * k0 * math.log2(math.e))}")
        A(f"v_mul_f32 v{e+1}, {f32(0.044715)}, v{e+1}")
        A(f"v_add_f32 v{e+1}, 1.0, v{e+1}")
        A(f"v_mul_f32 v{e+1}, v{e+1}, v{e}")
        A(f"v_mul_f32 v{e+1}, v{e+1}, v{e+3}")
        A(f"v_exp_f32 v{e+1}, v{e+1}")
        self.nop(1)
        A(f"v_add_f32 v{e+1}, 1.0, v{e+1}")
        A(f"v_rcp_f32 v{e+1}, v{e+1}")
        self.nop(1)
        A(f"v_mul_f32 v{e}, v{e}, v{e+1}")
        A(f"v_cvt_pk_bf16_f32 v{e}, v{e}, v{e}")
        A(f"v_and_b32 v{e}, 0xffff0000, v{e}")
        A(f"v_mul_f32 v{e}, v{e}, v{e+2}")
        A(f"v_cvt_pk_bf16_f32 v{e}, v{e}, v{e}")
        A(f"s_lshl_b32 {sT0}, {sW}, 5"); A(f"s_add_u32 {sT0}, {sT0}, {L_HS}")
        A(f"v_lshrrev_b32 v{t+2}, 5, v{vL}")
        A(f"v_lshl_add_u32 v{t+2}, v{t+2}, 3, v{t+1}")
        A(f"v_lshl_add_u32 v{t+2}, v{t+2}, 1, {sT0}")
        A(f"ds_write_b16 v{t+2}, v{e}")
        A(f"v_lshl_add_u32 v{t+2}, v{vG}, 3, {sT0}")
        A("s_waitcnt lgkmcnt(0)")
        A(f"ds_read_b64 {vr(vAC2,2)}, v{t+2}")
        A(f"v_cmp_eq_u32 vcc, 0, v{t+1}")
        A("s_waitcnt lgkmcnt(0)")
        self.nop(1)
        A(f"v_cndmask_b32 v{vAC2}, 0, v{vAC2}, vcc"); A(f"v_cndmask_b32 v{vAC2+1}, 0, v{vAC2+1}, vcc")

    def qk_combine(self, G):
        A = self.A
        a = vSP + 4 * G; b = vQF + 8 + 4 * (G & 1)
        for r in range(4): A(f"v_permlane32_swap_b32 v{a+r}, v{b+r}")
        for r in range(4): A(f"v_add_f32_dpp v{a+r}, v{b+r}, v{a+r} row_ror:8 row_mask:0xf bank_mask:0xf")
    def step_qk(self, G):
        A = self.A
        a = vSP + 4 * G; b = vQF + 8 + 4 * (G & 1); k = vK + 16 * G
        A(f"v_mfma_f32_16x16x32_bf16 {vr(a,4)}, {vr(k,4)}, {vr(vQF,4)}, 0")
        A(f"v_mfma_f32_16x16x32_bf16 {vr(b,4)}, {vr(k+8,4)}, {vr(vQF,4)}, 0")
        A(f"v_mfma_f32_16x16x32_bf16 {vr(a,4)}, {vr(k+4,4)}, {vr(vQF+4,4)}, {vr(a,4)}")
        A(f"v_mfma_f32_16x16x32_bf16 {vr(b,4)}, {vr(k+12,4)}, {vr(vQF+4,4)}, {vr(b,4)}")
        if G > 0:
            self.nop(4)
            self.qk_combine(G - 1)

    def step_softmax(self):
        A = self.A
        t = vTM
        m = vT1
        self.qk_combine(7)
        A(f"v_max3_f32 v{m}, v{vSP}, v{vSP+1}, v{vSP+2}")
        for k in range(3, 31, 2): A(f"v_max3_f32 v{m}, v{m}, v{vSP+k}, v{vSP+k+1}")
        A(f"v_max_f32 v{m}, v{m}, v{vSP+31}")
        self.swap_reduce("v_max_f32", m, t, 16)
        self.swap_reduce("v_max_f32", m, t, 32)
        A(f"s_lshl_b32 {sT0}, {sW}, 2")
        A(f"v_mov_b32 v{t+4}, {sT0}")
        A("s_mov_b64 exec, 1")
        A(f"ds_write_b32 v{t+4}, v{m} offset:{L_MX}")
        A("s_mov_b64 exec, -1")
        A(f"v_mov_b32 v{t+5}, 0")
        A("s_waitcnt lgkmcnt(0)")
        A("s_barrier")
        A(f"ds_read_b128 {vr(vBF,4)}, v{t+5} offset:{L_MX}")
        A(f"ds_read_b128 {vr(vBF+4,4)}, v{t+5} offset:{L_MX+16}")
        A("s_waitcnt lgkmcnt(0)")
        A(f"v_max3_f32 v{m}, v{vBF}, v{vBF+1}, v{vBF+2}")
        A(f"v_max3_f32 v{m}, v{m}, v{vBF+3}, v{vBF+4}")
        A(f"v_max3_f32 v{m}, v{m}, v{vBF+5}, v{vBF+6}")
        A(f"v_max_f32 v{m}, v{m}, v{vBF+7}")
        A(f"v_mul_f32 v{m}, {sC}, v{m}")
        l = vT0
        for k in range(32):
            A(f"v_fma_f32 v{vSP+k}, v{vSP+k}, {sC}, -v{m}")
        for k in range(32):
            A(f"v_exp_f32 v{vSP+k}, v{vSP+k}")
        A(f"v_add_f32 v{l}, v{vSP}, v{vSP+1}"); A(f"v_add_f32 v{t}, v{vSP+2}, v{vSP+3}")
        for k in range(4, 32, 2):
            A(f"v_add_f32 v{l}, v{l}, v{vSP+k}"); A(f"v_add_f32 v{t}, v{t}, v{vSP+k+1}")
        A(f"v_add_f32 v{l}, v{l}, v{t}")
        self.swap_reduce("v_add_f32", l, t, 16)
        self.swap_reduce("v_add_f32", l, t, 32)
        A("s_mov_b64 exec, 1")
        A(f"ds_write_b32 v{t+4}, v{l} offset:{L_LS}")
        A("s_mov_b64 exec, -1")
        for k in range(32):
            A(f"v_cvt_pk_bf16_f32 v{vSP+k}, v{vSP+k}, v{vSP+k}")
        A(f"v_mov_b32 v{vAC2+2}, v{m}")
        A("s_waitcnt lgkmcnt(0)")
        A("s_barrier")
        skip = self.label("nopub")
        A(f"s_cmp_lg_u32 {sW}, 0"); A(f"s_cbranch_scc1 {skip}")
        A(f"ds_read_b128 {vr(vBF,4)}, v{t+5} offset:{L_LS}")
        A(f"ds_read_b128 {vr(vBF+4,4)}, v{t+5} offset:{L_LS+16}")
        A(f"s_lshl_b32 {sT0}, {sBH}, 2"); A(f"s_add_u32 {sT0}, {sT0}, {sS}")
        A(f"s_lshl_b32 {sT0}, {sT0}, 3"); A(f"s_add_u32 {sT0}, {sT0}, {WS_S}")
        A("s_waitcnt lgkmcnt(0)")
        for k in range(1, 8): A(f"v_add_f32 v{vBF}, v{vBF}, v{vBF+k}")
        A(f"v_min_u32 v{t+1}, -2, v{vBF}")
        A(f"v_mov_b32 v{t}, v{m}")
        A("s_mov_b64 exec, 1")
        A(f"buffer_store_dwordx2 {vr(t,2)}, v{t+5}, {srd(R_WS)}, {sT0} offen sc1")
        A("s_mov_b64 exec, -1")
        self.L(skip)

    def step_pv(self, G):
        A = self.A
        base = vX if G == 0 else vK + 16 * (G - 1)
        def build(k, bset):
            for u in range(4): A(f"v_and_b32 v{vBF+4*bset+u}, v{vSP+k}, v{vM+u}")
        for r in range(4):
            k = 4 * G + r
            if k == 0: build(0, 0)
            if k + 1 < 32: build(k + 1, (k + 1) & 1)
            else: self.nop(2)
            c = "0" if k == 0 else vr(vACC, 4)
            A(f"v_mfma_f32_16x16x32_bf16 {vr(vACC,4)}, {vr(base+4*r,4)}, {vr(vBF+4*(k&1),4)}, {c}")

    WF = [vQF, vK + 16 * 7, vX, vK]
    def step_wof(self):
        A = self.A
        t = vTM
        A(f"v_lshrrev_b32 v{t}, 2, v{vI}"); A(f"v_and_b32 v{t+1}, 3, v{vI}")
        A(f"v_lshlrev_b32 v{t+1}, 3, v{t+1}")
        A(f"v_lshl_add_u32 v{t+1}, v{t}, 7, v{t+1}")
        A(f"v_lshl_add_u32 v{t+2}, v{vG}, 10, v{t+1}")
        A(f"v_add_u32 v{vOQ}, {sWOL}, v{t+2}")
        A(f"v_lshl_add_u32 v{t+2}, v{vG}, 9, v{t+1}")
        A(f"v_add_u32 v{vOF}, {sWDL}, v{t+2}")
        for tau in range(4): A(f"ds_read_b64_tr_b16 {vr(t+2*tau,2)}, v{vOF} offset:{tau*32}")
        for tau in range(4):
            for T in range(4):
                for hi in range(2):
                    A(f"ds_read_b64_tr_b16 {vr(self.WF[tau]+4*T+2*hi,2)}, v{vOQ} offset:{T*4096 + hi*512 + tau*32}")
            if tau == 0:
                A("s_waitcnt lgkmcnt(6)")
                for ta in range(4):
                    A(f"v_mfma_f32_16x16x16_bf16 {vr(vDF+4*ta,4)}, {vr(vAC2,2)}, {vr(t+2*ta,2)}, 0")
            else:
                A("s_waitcnt lgkmcnt(4)")
        for k in range(16): A(f"v_mul_f32 v{vDF+k}, {sG1}, v{vDF+k}")
        A("s_waitcnt lgkmcnt(0)")

    def step_scale(self):
        A = self.A
        t = vTM
        s = vXR
        ok = self.label("stok"); sp = self.label("stspin")
        A(f"s_mov_b32 {sCNT}, 0")
        A(f"v_max3_u32 v{t}, v{s+1}, v{s+3}, v{s+5}")
        A(f"v_max_u32 v{t}, v{t}, v{s+7}")
        A(f"v_cmp_eq_u32 vcc, -1, v{t}")
        A(f"s_cbranch_vccz {ok}")
        self.L(sp)
        A(f"buffer_load_dwordx4 {vr(s,4)}, v{vT0}, {srd(R_WS)}, {sT0} offen sc1")
        A(f"buffer_load_dwordx4 {vr(s+4,4)}, v{vT0}, {srd(R_WS)}, {sT0} offen offset:16 sc1")
        A(f"s_add_u32 {sCNT}, {sCNT}, 1")
        A(f"s_cmp_ge_u32 {sCNT}, {SPIN}")
        A("s_waitcnt vmcnt(0)")
        A(f"s_cbranch_scc1 {ok}")
        A(f"v_max3_u32 v{t}, v{s+1}, v{s+3}, v{s+5}")
        A(f"v_max_u32 v{t}, v{t}, v{s+7}")
        A(f"v_cmp_eq_u32 vcc, -1, v{t}")
        A(f"s_cbranch_vccnz {sp}")
        self.L(ok)
        A(f"v_max3_f32 v{t}, v{s}, v{s+2}, v{s+4}")
        A(f"v_max_f32 v{t}, v{t}, v{s+6}")
        for k in range(4): A(f"v_sub_f32 v{s+2*k}, v{s+2*k}, v{t}")
        A(f"v_sub_f32 v{t+1}, v{vAC2+2}, v{t}")
        for k in range(4): A(f"v_exp_f32 v{s+2*k}, v{s+2*k}")
        A(f"v_exp_f32 v{t+1}, v{t+1}")
        A(f"v_mul_f32 v{t}, v{s}, v{s+1}")
        for k in range(1, 4): A(f"v_fmac_f32 v{t}, v{s+2*k}, v{s+2*k+1}")
        A(f"v_rcp_f32 v{t}, v{t}")
        A(f"v_mul_f32 v{t+1}, {sG}, v{t+1}")
        A(f"v_mul_f32 v{vAC2+3}, v{t}, v{t+1}")
        A(f"v_and_b32 v{t}, 7, v{vI}")
        A(f"s_mul_i32 {sT1}, {sW}, 288"); A(f"s_add_u32 {sT1}, {sT1}, {L_OB}")
        A(f"v_lshl_add_u32 v{vOK}, v{vG}, 6, {sT1}")
        A(f"v_lshl_add_u32 v{vOK}, v{t}, 3, v{vOK}")
        A(f"v_mul_u32_u24 v{vOQ}, 288, v{t}")
        A(f"v_lshl_add_u32 v{vOQ}, v{vG}, 4, v{vOQ}")
        A(f"v_lshrrev_b32 v{t}, 2, v{vI}")
        A(f"v_lshl_add_u32 v{t}, v{vG}, 2, v{t}")
        A(f"v_lshlrev_b32 v{vOF}, 11, v{t}")
        A(f"s_lshl_b32 {sTF}, {sW}, 15")
        A(f"s_lshl_b32 {sT1}, {sB}, 18"); A(f"s_add_u32 {sTF}, {sTF}, {sT1}")
        A(f"s_lshl_b32 {sT1}, {sH}, 6"); A(f"s_add_u32 {sTF}, {sTF}, {sT1}")
        A(f"s_lshl_b32 {sT1}, {sS}, 4"); A(f"s_add_u32 {sTF}, {sTF}, {sT1}")
        A(f"v_cmp_gt_u32 s[0:1], 2, v{vG}")
        A(f"v_lshlrev_b32 v{vOD}, 4, v{vL}")
        A(f"s_lshl_b32 {sTQ}, s2, 11")
        A(f"v_and_b32 v{t}, 1, v{vG}"); A(f"v_lshrrev_b32 v{t+1}, 1, v{vG}")
        A(f"v_lshl_add_u32 v{t}, v{t}, 1, v{t+1}")
        A(f"s_lshl_b32 {sT1}, s2, 3")
        A(f"v_lshl_add_u32 v{vT1}, v{t}, 1, {sT1}")

    def step_tail(self):
        A = self.A
        t = vTM
        A("s_mov_b32 exec_lo, 0x00ff00ff"); A("s_mov_b32 exec_hi, 0x00ff00ff")
        self.nop(6)
        for r in range(4): A(f"v_mul_f32 v{vACC+r}, v{vACC+r}, v{vAC2+3}")
        A(f"v_cvt_pk_bf16_f32 v{t}, v{vACC}, v{vACC+1}")
        A(f"v_cvt_pk_bf16_f32 v{t+1}, v{vACC+2}, v{vACC+3}")
        A(f"ds_write_b64 v{vOK}, {vr(t,2)}")
        A("s_mov_b64 exec, -1")
        A("s_waitcnt lgkmcnt(0)")
        A("s_barrier")
        if self.diag == 0: self.stamp(2)
        af = vSP
        for T in range(4): A(f"ds_read_b128 {vr(af+4*T,4)}, v{vOQ} offset:{L_OB + 64*T}")
        for T in range(4):
            A(f"s_waitcnt lgkmcnt({3-T})" if not self.stamps else "s_waitcnt lgkmcnt(0)")
            for tau in range(4):
                A(f"v_mfma_f32_16x16x32_bf16 {vr(vDF+4*tau,4)}, {vr(af+4*T,4)}, {vr(self.WF[tau]+4*T,4)}, {vr(vDF+4*tau,4)}")
        self.nop(5)
        for tau in range(4):
            d = vDF + 4 * tau
            A(f"v_add_f32 v{d}, v{d}, v{d+1}"); A(f"v_add_f32 v{d+2}, v{d+2}, v{d+3}")
            A(f"v_add_f32 v{d}, v{d}, v{d+2}")
        self.nop(1)
        A(f"v_permlane16_swap_b32 v{vDF}, v{vDF+4}")
        A(f"v_permlane16_swap_b32 v{vDF+8}, v{vDF+12}")
        self.nop(1)
        A(f"v_add_f32 v{vDF}, v{vDF}, v{vDF+4}")
        A(f"v_add_f32 v{vDF+8}, v{vDF+8}, v{vDF+12}")
        A(f"v_cndmask_b32 v{t}, v{vDF+8}, v{vDF}, s[0:1]")
        A(f"v_min_u32 v{t}, -2, v{t}")
        self.nop(2)
        for k in range(1, 4):
            A(f"v_mov_b32_dpp v{t+k}, v{t} quad_perm:[{k},{k},{k},{k}] row_mask:0xf bank_mask:0xf")
        A("s_mov_b32 exec_lo, 0x11111111"); A("s_mov_b32 exec_hi, 0x11111111")
        A(f"buffer_store_dwordx4 {vr(t,4)}, v{vOF}, {srd(R_WS)}, {sTF} offen{'' if self.two_kernel else ' sc1'}")
        A("s_mov_b64 exec, -1")
        if self.diag == 0: self.stamp(3)

    def consumer(self, poll=True):
        A = self.A
        y = vSP
        t = vTM + 4
        sp = self.label("yspin"); ok = self.label("yok")
        A(f"s_mov_b32 {sCNT}, 0")
        self.L(sp)
        fl = " sc1" if poll else ""
        A(f"buffer_load_dwordx4 {vr(y,4)}, v{vOD}, {srd(R_WS)}, {sTQ} offen{fl}")
        A(f"buffer_load_dwordx4 {vr(y+4,4)}, v{vOD}, {srd(R_WS)}, {sTQ} offen offset:1024{fl}")
        if poll:
            A(f"s_add_u32 {sCNT}, {sCNT}, 1")
            A(f"s_cmp_ge_u32 {sCNT}, {SPIN}")
            A("s_waitcnt vmcnt(0)")
            A(f"s_cbranch_scc1 {ok}")
            A(f"v_max3_u32 v{t}, v{y}, v{y+1}, v{y+2}")
            A(f"v_max3_u32 v{t+1}, v{y+3}, v{y+4}, v{y+5}")
            A(f"v_max3_u32 v{t}, v{t}, v{y+6}, v{y+7}")
            A(f"v_max_u32 v{t}, v{t}, v{t+1}")
            A(f"v_cmp_eq_u32 vcc, -1, v{t}")
            A(f"s_cbranch_vccnz {sp}")
            self.L(ok)
        else:
            A("s_waitcnt vmcnt(0)")
        for k in range(4): A(f"v_add_f32 v{y+k}, v{y+k}, v{y+4+k}")
        self.nop(1)
        A(f"v_permlane32_swap_b32 v{y}, v{y+1}"); A(f"v_permlane32_swap_b32 v{y+2}, v{y+3}")
        self.nop(1)
        A(f"v_add_f32 v{y}, v{y}, v{y+1}"); A(f"v_add_f32 v{y+2}, v{y+2}, v{y+3}")
        self.nop(2)
        A(f"v_permlane16_swap_b32 v{y}, v{y+2}")
        self.nop(1)
        A(f"v_add_f32 v{y}, v{y}, v{y+2}")
        for ctl in ("quad_perm:[1,0,3,2]", "quad_perm:[2,3,0,1]", "row_half_mirror", "row_mirror"):
            self.dpp_add(y, ctl)
        A(f"v_cvt_pk_bf16_f32 v{y}, v{y}, v{y}")
        A("s_mov_b32 exec_lo, 0x00010001"); A("s_mov_b32 exec_hi, 0x00010001")
        A(f"global_store_short v{vT1}, v{y}, s[{P_OUT}:{P_OUT+1}]")

    def steps(self, idx):
        S = []
        def add(name, needs, fn): S.append(dict(name=name, needs=needs, fn=fn))
        add("flag", ["K0_3"], self.step_flag)
        add("gate", ["gw"], self.step_gate)
        add("flchk", ["fl"], lambda: self.step_flchk(False))
        add("qred", ["ga"], self.step_qred)
        for G in range(8): add(f"qk{G}", [f"K{G}_3"], lambda G=G: self.step_qk(G))
        add("flchk2", ["fl2"], lambda: self.step_flchk(True))
        add("softmax", [], self.step_softmax)
        lastdma = max(idx["wo15"], idx["wd1"])
        placed = False
        for G in range(8):
            if G == 7: add("scale", ["st1"], self.step_scale)
            if not placed and G >= 2 and idx[f"V{G}_3"] > lastdma:
                add("wof", ["wo15", "wd1"], self.step_wof); placed = True
            add(f"pv{G}", [f"V{G}_3"], lambda G=G: self.step_pv(G))
        names = [s["name"] for s in S]
        assert placed and names.index("wof") < names.index("scale")
        add("tail", [], self.step_tail)
        return S

    def schedule(self, W, LA):
        items = self.items(LA)
        idx = {it["name"]: n for n, it in enumerate(items)}
        steps = self.steps(idx)
        issued = 4
        comp = -1; done = set(); pos = -1
        for st in steps:
            need = max([idx[n] for n in st["needs"]], default=-1)
            pos = max(pos, need)
            def issue(la, w):
                nonlocal issued, comp
                while issued < len(items):
                    it = items[issued]
                    if not it["glue"]:
                        if issued > pos + la: break
                        if it["dep"] and it["dep"] not in done:
                            assert issued > need, (st["name"], it["name"])
                            break
                    if issued - (comp + 1) >= w:
                        self.A(f"s_waitcnt vmcnt({w-1})"); comp = issued - w
                    it["fn"](); issued += 1
            issue(LA, W)
            if comp < need or st["name"] == "flag":
                self.A(f"s_waitcnt vmcnt({issued-1-need})"); comp = max(comp, need)
            if st["name"] in ("qred", "softmax", "wof"): issue(LA + self.boost, W + self.boost)
            self.o.append(f"    ; ---- {st['name']}")
            st["fn"](); done.add(st["name"])
        assert issued == len(items)

    def kd(self, name, vg, sg):
        return [f".amdhsa_kernel {name}", f"  .amdhsa_next_free_vgpr {vg}", f"  .amdhsa_next_free_sgpr {sg}",
                f"  .amdhsa_accum_offset {vg}", "  .amdhsa_group_segment_fixed_size 0", "  .amdhsa_kernarg_size 104",
                "  .amdhsa_user_sgpr_count 2", "  .amdhsa_user_sgpr_kernarg_segment_ptr 1",
                "  .amdhsa_system_sgpr_workgroup_id_x 1", ".end_amdhsa_kernel"]

    def build(self):
        A = self.A
        K1 = NAME + "_kernel"; K2 = "gated_mix_reduce_kernel"
        o = self.o
        o.append(HEADER.rstrip("\n"))
        if self.two_kernel:
            o.append(f"; @launch kernel={K1} grid=(256,1,1) block=(512,1,1) lds={LDS_BYTES}")
            o.append(f"; @launch kernel={K2} grid=(256,1,1) block=(64,1,1) lds=0")
        else:
            o.append(f"; @launch grid=(256,1,1) block=(512,1,1) lds={LDS_BYTES}")
        o += ['.amdgcn_target "amdgcn-amd-amdhsa--gfx950"', ".text", f".globl {K1}", ".p2align 8",
              f".type {K1},@function", f"{K1}:"]
        self.prologue()
        self.phase0()
        if self.p0only: pass
        elif self.W_even is not None:
            A(f"s_and_b32 {sT0}, {sXCC}, 1"); A("s_cbranch_scc1 L_odd")
            self.schedule(self.W_even, self.LA_even)
            A("s_branch L_join")
            self.L("L_odd")
            self.schedule(self.W, self.LA)
            self.L("L_join")
        else:
            self.schedule(self.W, self.LA)
        A(f"s_cmp_lg_u32 {sW}, 0"); A("s_cbranch_scc1 L_end")
        if not self.two_kernel and not self.p0only:
            self.consumer()
        if self.stamps:
            self.stamp(4)
            A("s_mov_b64 exec, 1")
            A("s_waitcnt lgkmcnt(0)")
            A(f"s_add_u32 s40, s40, {STAMP_OFF}"); A("s_addc_u32 s41, s41, 0")
            A("s_lshl_b32 s8, s2, 6"); A("v_mov_b32 v1, s8")
            for k in range(4):
                A(f"v_mov_b32 v{8+2*k}, s{sST+2*k}"); A(f"v_mov_b32 v{9+2*k}, s{sST+2*k+1}")
            A(f"v_mov_b32 v16, {sXCC}"); A("v_mov_b32 v17, 0")
            A(f"v_mov_b32 v18, s{sST+8}"); A(f"v_mov_b32 v19, s{sST+9}")
            A("global_store_dwordx4 v1, v[8:11], s[40:41]")
            A("global_store_dwordx4 v1, v[12:15], s[40:41] offset:16")
            A("global_store_dwordx4 v1, v[16:19], s[40:41] offset:32")
        self.L("L_end"); A("s_endpgm")
        if self.two_kernel:
            o += [f".globl {K2}", ".p2align 8", f".type {K2},@function", f"{K2}:"]
            A("s_cmp_ge_u32 s2, 256"); A("s_cbranch_scc1 L_end2")
            A(f"s_load_dwordx2 s[{P_OUT}:{P_OUT+1}], s[0:1], 80")
            A(f"s_load_dwordx2 s[{P_WS}:{P_WS+1}], s[0:1], 96")
            t = vTM
            A(f"v_bfe_u32 v{vG}, v0, 4, 2")
            A(f"v_lshlrev_b32 v{vOD}, 4, v0")
            A(f"s_lshl_b32 {sTQ}, s2, 11")
            A(f"v_and_b32 v{t}, 1, v{vG}"); A(f"v_lshrrev_b32 v{t+1}, 1, v{vG}")
            A(f"v_lshl_add_u32 v{t}, v{t}, 1, v{t+1}")
            A(f"s_lshl_b32 {sT1}, s2, 3")
            A(f"v_lshl_add_u32 v{vT1}, v{t}, 1, {sT1}")
            A("s_waitcnt lgkmcnt(0)")
            self.mk(R_WS, P_WS, None, WS_BYTES)
            self.consumer(poll=False)
            self.L("L_end2"); A("s_endpgm")
        o += ['.section .rodata,"a"', ".p2align 6"] + self.kd(K1, 256, 102)
        if self.two_kernel:
            o += [".p2align 6"] + self.kd(K2, 112, 102)
        return "\n".join(o) + "\n"

if __name__ == "__main__":
    import argparse, json
    ap = argparse.ArgumentParser()
    ap.add_argument("out"); ap.add_argument("--opt", default="{}")
    a = ap.parse_args()
    open(a.out, "w").write(Gen(**json.loads(a.opt)).build())
```

```python
import sys, struct, math

NAME = "gated_mix__mha_block_cached__geglu_ffn__decode"
HEADER = open("cdna_kernels/" + NAME + ".s.ref").read().split("; Override launch")[0]

def f32(x):
    return "0x%08x" % struct.unpack("<I", struct.pack("<f", x))[0]

L_QP = 0
L_QS = L_QP + 4096
L_FP = L_QS + 2048
L_HS = L_FP + 2048
L_MX = L_HS + 256
L_LS = L_MX + 64
L_OB = L_LS + 64
L_P0 = 11264
L_WD = L_P0 + 16384
L_WO = L_WD + 16384
L_END = L_WO + 131072
assert L_OB + 8 * 288 <= L_P0
L_P0 = L_WD
L_WD = 11264; L_P0 = L_WD; L_WO = L_WD + 16384; L_END = L_WO + 131072
LDS_BYTES = (L_END + 255) // 256 * 256

WS_Y = 0
WS_S = 0x80000
WS_Q = 0x81000
WS_F = WS_Q + 0x40000
WS_BYTES = WS_F + 176 * 1024
STAMP_OFF = 128 << 20
SPIN = "0x4000"

sW = "s3"
P_X, P_K, P_V, P_WQ, P_WO, P_WG, P_WU = 16, 18, 20, 22, 24, 28, 30
P_WD, P_GW, P_OUT, P_DBG, P_WS = 32, 34, 36, 38, 40
R_K, R_V, R_WQ, R_WO, R_X, R_GW, R_FT, R_WD, R_WS = 44, 48, 52, 56, 60, 64, 68, 76, 80
sH, sB, sS, sSL, sT0, sT1, sT2 = "s4", "s5", "s6", "s7", "s8", "s9", "s10"
sTK, sTV, sTQ, sTF, sTD = "s11", "s12", "s13", "s14", "s15"
sJ, sFT, sCLR, sGA = "s72", "s73", "s74", "s75"
sWOL, sWDL = "s84", "s85"
sDUP0, sDUP1 = "s86", "s87"
sC = "s88"; sCNT = "s89"; sXCC = "s90"; sBH = "s91"
sG, sG1 = "s42", "s43"
sST = 92
def srd(r): return f"s[{r}:{r+3}]"

vL, vI, vG = 1, 2, 3
vOK, vOV, vOQ, vOW, vOF, vOD, vT0, vT1 = 4, 5, 6, 7, 8, 9, 10, 11
vM = 12
vXR = 16
vGA = 20
vBF = 24
vACC = 32
vAC2 = 36
vQF = 40
vSP = 56
vDF = 88
vTM = 104
vK = 112
vX = 240
def vr(a, n): return f"v[{a}:{a+n-1}]"

class Gen:
    def __init__(self, W=60, LA=8, W_even=None, LA_even=None, two_kernel=False, stamps=False,
                 nt_w=False, ga_after=2, k0_first=False, sleep=64, wo_sched=None, st_dep="pv3", diag=0, obar=True, boost=0, k0_late=True, fl2_after=6, p0only=None, dbgdiag=False):
        self.o = []
        self.W, self.LA, self.W_even, self.LA_even = W, LA, W_even, LA_even
        self.two_kernel, self.stamps, self.nt_w = two_kernel, stamps, nt_w
        self.ga_after, self.k0_first, self.st_dep, self.sleep = ga_after, k0_first, st_dep, sleep
        self.wo_sched = wo_sched or [0, 1, 1, 2, 1, 2, 1, 2, 1, 2, 1, 2, 2, 0, 0, 0]
        assert sum(self.wo_sched) == 18
        self.lab = 0
        self.diag = diag
        self.obar = obar
        self.boost = boost
        self.dbgdiag = dbgdiag
        if dbgdiag: self.stamps = True
        self.p0only = p0only
        self.k0_late = k0_late
        self.fl2_after = fl2_after
    def A(self, s): self.o.append("    " + s)
    def L(self, s): self.o.append(s + ":")
    def nop(self, n):
        while n > 0:
            k = min(n, 16); self.A(f"s_nop {k-1}"); n -= k
    def label(self, p):
        self.lab += 1; return f"L_{p}_{self.lab}"
    def stamp(self, k):
        if self.stamps: self.A(f"s_memrealtime s[{sST+2*k}:{sST+2*k+1}]")

    def swap_reduce(self, op, v, tmp, which):
        A = self.A
        A(f"v_mov_b32 v{tmp}, v{v}")
        self.nop(2)
        A(f"v_permlane{which}_swap_b32 v{v}, v{tmp}")
        self.nop(1)
        A(f"{op} v{v}, v{v}, v{tmp}")
    def dpp_add(self, v, ctl):
        self.nop(2)
        self.A(f"v_add_f32_dpp v{v}, v{v}, v{v} {ctl} row_mask:0xf bank_mask:0xf")
    def mk(self, r, p, off, size):
        A = self.A
        if off is None:
            A(f"s_mov_b32 s{r}, s{p}"); A(f"s_mov_b32 s{r+1}, s{p+1}")
        else:
            A(f"s_add_u32 s{r}, s{p}, {off}"); A(f"s_addc_u32 s{r+1}, s{p+1}, 0")
        if size is not None: A(f"s_mov_b32 s{r+2}, {size}")
        A(f"s_mov_b32 s{r+3}, 0x20000")

    def prologue(self):
        A = self.A
        A("s_cmp_ge_u32 s2, 256")
        A("s_cbranch_scc1 L_end")
        A("s_load_dwordx16 s[16:31], s[0:1], 0")
        A("s_load_dwordx8 s[32:39], s[0:1], 64")
        A("s_load_dwordx2 s[40:41], s[0:1], 96")
        self.stamp(0)
        A("v_lshrrev_b32 v10, 6, v0")
        A(f"v_and_b32 v{vL}, 63, v0")
        A(f"v_readfirstlane_b32 {sW}, v10")
        A(f"v_and_b32 v{vI}, 15, v0")
        A(f"v_bfe_u32 v{vG}, v0, 4, 2")
        A(f"s_and_b32 {sT0}, s2, 7")
        A(f"s_lshr_b32 {sT1}, s2, 3")
        A(f"s_and_b32 {sT2}, {sT1}, 3")
        A(f"s_lshl_b32 {sH}, {sT0}, 2")
        A(f"s_add_u32 {sH}, {sH}, {sT2}")
        A(f"s_lshr_b32 {sJ}, {sT1}, 2")
        A(f"s_lshr_b32 {sB}, {sT1}, 4")
        A(f"s_and_b32 {sS}, {sJ}, 3")
        A(f"s_lshl_b32 {sBH}, {sB}, 5")
        A(f"s_add_u32 {sBH}, {sBH}, {sH}")
        A(f"s_lshl_b32 {sFT}, {sT2}, 3")
        A(f"s_add_u32 {sFT}, {sFT}, {sT0}")
        A(f"s_and_b32 {sT1}, {sT1}, 15")
        A(f"s_mul_i32 {sSL}, {sT0}, 11")
        A(f"s_add_u32 {sSL}, {sSL}, {sT1}")
        A(f"s_cmp_lt_u32 {sT1}, 11")
        A(f"s_cselect_b32 {sSL}, {sSL}, 1000")
        A(f"s_cmp_lt_u32 {sSL}, 86")
        A(f"s_cselect_b32 {sT2}, 1, 0")
        A(f"s_cselect_b32 {sSL}, {sSL}, 0")
        A(f"v_and_b32 v{vOK}, 7, v0")
        A(f"v_lshlrev_b32 v{vOK}, 8, v{vOK}")
        A(f"v_lshl_add_u32 v{vOK}, v{vG}, 4, v{vOK}")
        A(f"v_and_b32 v{vT1}, 8, v0")
        A(f"v_lshl_add_u32 v{vOK}, v{vT1}, 3, v{vOK}")
        A(f"v_lshlrev_b32 v{vT1}, 4, v{vI}")
        A(f"v_lshl_add_u32 v{vOV}, v{vG}, 10, v{vT1}")
        A(f"s_lshl_b32 {sT0}, {sBH}, 20")
        A(f"s_lshl_b32 {sT1}, {sS}, 18")
        A(f"s_add_u32 {sT0}, {sT0}, {sT1}")
        A(f"s_lshl_b32 {sT1}, {sW}, 15")
        A(f"s_add_u32 {sT0}, {sT0}, {sT1}")
        A(f"s_mov_b32 s{R_K+2}, 32768"); A(f"s_mov_b32 s{R_K+3}, 0x20000")
        A("s_waitcnt lgkmcnt(0)")
        A(f"s_add_u32 s{R_K}, s{P_K}, {sT0}"); A(f"s_addc_u32 s{R_K+1}, s{P_K+1}, 0")
        A(f"s_add_u32 s{R_V}, s{P_V}, {sT0}"); A(f"s_addc_u32 s{R_V+1}, s{P_V+1}, 0")
        self.mk(R_WS, P_WS, None, WS_BYTES)

    def kv_load(self, kind, G, t):
        A = self.A
        st = sTK if kind == "K" else sTV
        if t == 0 and G > 0: A(f"s_movk_i32 {st}, {G*4096}")
        so = st if G > 0 else "0"
        if kind == "K":
            A(f"buffer_load_dwordx4 {vr(vK+16*G+4*t,4)}, v{vOK}, {srd(R_K)}, {so} offen offset:{(t>>1)*2048 + (t&1)*128} nt")
        else:
            dst = vX if G == 0 else vK + 16 * (G - 1)
            A(f"buffer_load_dwordx4 {vr(dst+4*t,4)}, v{vOV}, {srd(R_V)}, {so} offen offset:{256*t} nt")

    def bsel(self, src, half, bset):
        A = self.A
        t = vTM + 4 + bset
        A(f"v_perm_b32 v{t}, v{src}, v{src}, {sDUP1 if half else sDUP0}")
        for u in range(4): A(f"v_and_b32 v{vBF+4*bset+u}, v{t}, v{vM+u}")

    def phase0(self):
        A = self.A
        ntw = " nt" if self.nt_w else ""
        if self.k0_first:
            for t in range(4): self.kv_load("K", 0, t)
        self.mk(R_X, P_X, None, 2048)
        A(f"s_lshl_b32 {sT0}, {sJ}, 3"); A(f"s_add_u32 {sT0}, {sT0}, {sW}")
        A(f"s_lshl_b32 {sT1}, {sT0}, 4")
        A(f"v_lshrrev_b32 v{vT0}, 3, v{vI}")
        A(f"v_lshlrev_b32 v{vT0}, 10, v{vT0}")
        A(f"v_lshl_add_u32 v{vT0}, v{vG}, 2, v{vT0}")
        A(f"buffer_load_dword v{vXR}, v{vT0}, {srd(R_X)}, {sT1} offen")
        A(f"s_lshl_b32 {sT1}, {sT0}, 16"); A(f"s_lshl_b32 {sTQ}, {sH}, 8"); A(f"s_add_u32 {sT1}, {sT1}, {sTQ}")
        self.mk(R_WQ, P_WQ, sT1, 7 * 8192 + 256)
        A(f"v_lshl_add_u32 v{vOQ}, v{vG}, 14, v{vT1}")
        A(f"s_movk_i32 {sTQ}, 8192")
        if self.p0only in (None, "wq", "both"):
            A(f"buffer_load_dwordx4 {vr(vDF,4)}, v{vOQ}, {srd(R_WQ)}, 0 offen{ntw}")
            A(f"buffer_load_dwordx4 {vr(vDF+4,4)}, v{vOQ}, {srd(R_WQ)}, {sTQ} offen{ntw}")
        A(f"s_cmp_ge_u32 {sFT}, 11")
        A(f"s_cselect_b32 s{R_FT}, s{P_WU}, s{P_WG}"); A(f"s_cselect_b32 s{R_FT+1}, s{P_WU+1}, s{P_WG+1}")
        A(f"s_cselect_b32 {sT1}, 11, 0")
        A(f"s_sub_u32 {sT1}, {sFT}, {sT1}")
        A(f"s_lshl_b32 {sT1}, {sT1}, 8")
        A(f"s_mul_i32 {sT0}, {sT0}, {8*2752}")
        A(f"s_add_u32 {sT1}, {sT1}, {sT0}")
        A(f"s_sub_u32 s{R_FT+2}, {512*2752}, {sT1}")
        A(f"s_cmp_lt_u32 {sFT}, 22")
        A(f"s_cselect_b32 s{R_FT+2}, s{R_FT+2}, 0")
        A(f"s_cselect_b32 {sT1}, {sT1}, 0")
        A(f"s_add_u32 s{R_FT}, s{R_FT}, {sT1}"); A(f"s_addc_u32 s{R_FT+1}, s{R_FT+1}, 0")
        A(f"s_mov_b32 s{R_FT+3}, 0x20000")
        A(f"v_mul_u32_u24 v{vOF}, {2*2752}, v{vG}")
        A(f"v_add_u32 v{vOF}, v{vOF}, v{vT1}")
        if self.p0only in (None, "ft", "both"):
            A(f"buffer_load_dwordx4 {vr(vDF+8,4)}, v{vOF}, {srd(R_FT)}, 0 offen{ntw}")
            A(f"buffer_load_dwordx4 {vr(vDF+12,4)}, v{vOF}, {srd(R_FT)}, 0 offen offset:2752{ntw}")
        if self.p0only == "k0":
            for t in range(4): self.kv_load("K", 0, t)
        if self.p0only:
            self.stamp(1); A("s_waitcnt vmcnt(0)"); self.stamp(2); A("s_barrier"); self.stamp(3)
            A(f"s_getreg_b32 {sXCC}, hwreg(HW_REG_XCC_ID)")
            return
        A(f"v_lshlrev_b32 v{vT1}, 4, v{vL}")
        if self.obar and not self.k0_late: A("s_barrier")
        lj = self.label("clsJ")
        if not self.k0_first and not self.k0_late:
            for t in range(4): self.kv_load("K", 0, t)
        self.mk(R_GW, P_GW, None, 1024)
        A(f"s_mov_b32 s{R_V+2}, 32768"); A(f"s_mov_b32 s{R_V+3}, 0x20000")
        A(f"s_lshl_b32 {sT0}, {sSL}, 14"); A(f"s_lshl_b32 {sT1}, {sW}, 7"); A(f"s_add_u32 {sT0}, {sT0}, {sT1}")
        self.mk(R_WD, P_WD, sT0, None)
        A(f"s_mul_i32 s{R_WD+2}, {sT2}, {15*1024+128}")
        A(f"s_lshl_b32 {sT0}, {sH}, 17"); A(f"s_add_u32 {sT0}, {sT0}, {sT1}")
        self.mk(R_WO, P_WO, sT0, 127 * 1024 + 128)
        t = vTM + 4
        A(f"v_and_b32 v{t}, 7, v{vL}")
        A(f"v_lshlrev_b32 v{t}, 4, v{t}")
        A(f"v_lshrrev_b32 v{t+1}, 3, v{vL}")
        A(f"v_lshl_add_u32 v{vOD}, v{t+1}, 10, v{t}")
        A(f"v_and_b32 v{t+2}, 3, v{t+1}")
        A(f"v_lshlrev_b32 v{t+2}, 3, v{t+2}")
        A(f"v_lshrrev_b32 v{t+1}, 2, v{t+1}")
        A(f"v_add_u32 v{t+1}, v{t+1}, v{t+2}")
        A(f"v_lshl_add_u32 v{vOW}, v{t+1}, 10, v{t}")
        A(f"s_lshl_b32 {sWOL}, {sW}, 14"); A(f"s_add_u32 {sWOL}, {sWOL}, {L_WO}")
        A(f"s_lshl_b32 {sWDL}, {sW}, 11"); A(f"s_add_u32 {sWDL}, {sWDL}, {L_WD}")
        A(f"v_and_b32 v{t}, 1, v{vI}")
        A(f"v_lshlrev_b32 v{t}, 4, v{t}")
        A(f"v_mov_b32 v{t+1}, 0xffff")
        A(f"v_lshlrev_b32 v{t+1}, v{t}, v{t+1}")
        A(f"v_bfe_u32 v{t}, v{vI}, 1, 2")
        for u in range(4):
            A(f"v_cmp_eq_u32 vcc, {u}, v{t}")
            self.nop(2)
            A(f"v_cndmask_b32 v{vM+u}, 0, v{t+1}, vcc")
        A(f"s_mov_b32 {sDUP0}, 0x01000100"); A(f"s_mov_b32 {sDUP1}, 0x03020302")
        A(f"s_mov_b32 {sC}, {f32(math.log2(math.e) / math.sqrt(128.0))}")
        A(f"s_getreg_b32 {sXCC}, hwreg(HW_REG_XCC_ID)")
        A(f"s_lshr_b32 {sT0}, {sSL}, 3")
        A(f"s_lshl_b32 {sCLR}, 0x801, {sT0}")
        A(f"s_lshl_b32 {sT0}, 1, {sFT}")
        A(f"s_or_b32 {sCLR}, {sCLR}, {sT0}"); A(f"s_mov_b32 {sGA}, {sCLR}")
        A(f"s_lshl_b32 {sT0}, {sH}, 13"); A(f"s_lshl_b32 {sT1}, {sB}, 7"); A(f"s_add_u32 {sT0}, {sT0}, {sT1}")
        A(f"s_add_u32 {sT0}, {sT0}, {WS_Q}")
        A(f"v_lshrrev_b32 v{t}, 3, v{vL}")
        A(f"v_and_b32 v{t+1}, 7, v{vL}")
        A(f"v_lshlrev_b32 v{t+1}, 4, v{t+1}")
        A(f"v_lshl_add_u32 v{t+2}, v{t}, 8, {sT0}")
        A(f"s_lshr_b32 {sT0}, {sSL}, 3"); A(f"s_lshl_b32 {sT0}, {sT0}, 13"); A(f"s_add_u32 {sT0}, {sT0}, {sT1}")
        A(f"s_bfe_u32 {sT1}, {sSL}, 0x20001"); A(f"s_lshl_b32 {sT1}, {sT1}, 8"); A(f"s_add_u32 {sT0}, {sT0}, {sT1}")
        A(f"s_add_u32 {sT0}, {sT0}, {WS_F}")
        A(f"v_and_b32 v{t}, 1, v{t}")
        A(f"v_mul_u32_u24 v{t}, {11*8192}, v{t}")
        A(f"v_add_u32 v{t}, {sT0}, v{t}")
        A(f"v_cmp_gt_u32 vcc, 32, v{vL}")
        A(f"s_lshl_b32 {sT1}, {sW}, 10")
        self.nop(1)
        A(f"v_cndmask_b32 v{t}, v{t}, v{t+2}, vcc")
        A(f"v_add3_u32 v{vXR+1}, v{t}, v{t+1}, {sT1}")
        if self.k0_late:
            for t in range(4):
                A(f"s_waitcnt vmcnt({[2,2,2,3][t]})")
                self.kv_load("K", 0, t)
        else:
            A(f"s_waitcnt vmcnt({0 if self.k0_first else 4})")
        if self.diag == 2: self.stamp(1)
        self.bsel(vXR, 0, 0); self.bsel(vXR, 1, 1)
        A(f"s_lshl_b32 {sT0}, {sW}, 10"); A(f"s_add_u32 {sT0}, {sT0}, {L_P0}")
        A(f"v_mfma_f32_16x16x32_bf16 {vr(vACC,4)}, {vr(vDF,4)}, {vr(vBF,4)}, 0")
        A(f"v_mfma_f32_16x16x32_bf16 {vr(vAC2,4)}, {vr(vDF+8,4)}, {vr(vBF,4)}, 0")
        A(f"v_mfma_f32_16x16x32_bf16 {vr(vACC,4)}, {vr(vDF+4,4)}, {vr(vBF+4,4)}, {vr(vACC,4)}")
        A(f"v_mfma_f32_16x16x32_bf16 {vr(vAC2,4)}, {vr(vDF+12,4)}, {vr(vBF+4,4)}, {vr(vAC2,4)}")
        A(f"v_lshl_add_u32 v{vT0}, v{vL}, 4, {sT0}")
        self.nop(7)
        A(f"ds_write_b128 v{vT0}, {vr(vACC,4)}")
        A(f"ds_write_b128 v{vT0}, {vr(vAC2,4)} offset:8192")
        A("s_waitcnt lgkmcnt(0)")
        A("s_barrier")
        if self.diag == 2: self.stamp(2)
        A(f"s_cmp_lg_u32 {sW}, 0"); A(f"s_cbranch_scc1 {lj}")
        d = vSP; d2 = vK + 96
        for w in range(8): A(f"ds_read_b128 {vr(d+4*w,4)}, v{vT0} offset:{1024*w}")
        for w in range(4): A(f"ds_read_b128 {vr(d2+4*w,4)}, v{vT0} offset:{8192+1024*w}")
        A(f"s_lshl_b32 {sT0}, {sH}, 3"); A(f"s_add_u32 {sT0}, {sT0}, {sJ}"); A(f"s_lshl_b32 {sT0}, {sT0}, 10")
        A(f"s_add_u32 {sT0}, {sT0}, {WS_Q}")
        A(f"s_lshl_b32 {sT1}, {sFT}, 3"); A(f"s_add_u32 {sT1}, {sT1}, {sJ}"); A(f"s_lshl_b32 {sT1}, {sT1}, 10")
        A(f"s_add_u32 {sT1}, {sT1}, {WS_F}")
        A("s_waitcnt lgkmcnt(4)")
        for w in range(4, 8): A(f"ds_read_b128 {vr(d2+4*w,4)}, v{vT0} offset:{8192+1024*w}")
        for w in range(1, 8):
            for r in range(4): A(f"v_add_f32 v{d+r}, v{d+r}, v{d+4*w+r}")
        A(f"buffer_store_dwordx4 {vr(d,4)}, v{vT1}, {srd(R_WS)}, {sT0} offen sc1")
        A("s_waitcnt lgkmcnt(0)")
        for w in range(1, 8):
            for r in range(4): A(f"v_add_f32 v{d2+r}, v{d2+r}, v{d2+4*w+r}")
        A(f"buffer_store_dwordx4 {vr(d2,4)}, v{vT1}, {srd(R_WS)}, {sT1} offen sc1")
        for k in range(4): A(f"v_mov_b32 v{vTM+k}, -1")
        if not self.two_kernel:
            A(f"s_lshl_b32 {sT0}, s2, 11")
            A(f"buffer_store_dwordx4 {vr(vTM,4)}, v{vT1}, {srd(R_WS)}, {sT0} offen sc1")
            A(f"buffer_store_dwordx4 {vr(vTM,4)}, v{vT1}, {srd(R_WS)}, {sT0} offen offset:1024 sc1")
        A(f"s_lshl_b32 {sT0}, s2, 3"); A(f"s_add_u32 {sT0}, {sT0}, {WS_S}")
        A("s_mov_b64 exec, 1")
        A(f"buffer_store_dwordx2 {vr(vTM,2)}, v{vT1}, {srd(R_WS)}, {sT0} offen sc1")
        A("s_mov_b64 exec, -1")
        self.nop(2)
        self.L(lj)

    def items(self, LA):
        A = self.A
        it = []
        ntw = " nt" if self.nt_w else ""
        def add(name, fn, dep=None, glue=False): it.append(dict(name=name, fn=fn, dep=dep, glue=glue))
        def grp(kind, G, dep):
            for t in range(4): add(f"{kind}{G}_{t}", lambda t=t: self.kv_load(kind, G, t), dep if t == 0 else None)
        dma = []
        for t in range(2):
            def fn(t=t):
                A(f"s_add_u32 m0, {sWDL}, {t*1024}")
                A(f"s_movk_i32 {sTD}, {t*8192}")
                A(f"buffer_load_dwordx4 v{vOD}, {srd(R_WD)}, {sTD} offen{ntw} lds")
            dma.append((f"wd{t}", fn, "qred"))
        wo = []
        for t in range(16):
            def fn(t=t):
                A(f"s_add_u32 m0, {sWOL}, {t*1024}")
                A(f"s_mov_b32 {sTD}, {(32*(t>>2) + 2*(t&3))*1024}")
                A(f"buffer_load_dwordx4 v{vOW}, {srd(R_WO)}, {sTD} offen{ntw} lds")
            wo.append((f"wo{t}", fn, None))
        dma = wo[:14] + dma + wo[14:]
        def put(slot):
            for _ in range(self.wo_sched[slot]):
                n, fn, dep = dma.pop(0); add(n, fn, dep)
        def ga():
            A("s_mov_b32 exec_hi, 0xffff")
            A(f"buffer_load_dwordx4 {vr(vGA,4)}, v{vXR+1}, {srd(R_WS)}, 0 offen sc1")
            A("s_mov_b32 exec_hi, -1")
        def fl():
            A(f"v_lshlrev_b32 v{vT0}, 2, v{vL}")
            A(f"global_load_dword v{vTM+7}, v{vT0}, s[{P_DBG}:{P_DBG+1}] sc1")
        ga_pos = None
        for G in range(8):
            grp("K", G, None); put(G)
            if G == 1:
                def gx():
                    A(f"s_lshl_b32 {sT1}, {sB}, 10")
                    A(f"buffer_load_dwordx4 {vr(vQF,4)}, v{vT1}, {srd(R_X)}, {sT1} offen")
                add("gx", gx)
                add("gw", lambda: A(f"buffer_load_dwordx4 {vr(vQF+4,4)}, v{vT1}, {srd(R_GW)}, 0 offen"))
            if G == self.ga_after: add("fl", fl); ga_pos = len(it) + LA
        add("fl2", fl, "qred")
        it.insert(min(ga_pos, [n for n, x in enumerate(it) if x["name"] == "K7_3"][0]), dict(name="ga", fn=ga, dep="flchk", glue=False))
        def st(k):
            def fn():
                if k == 0:
                    A(f"s_lshl_b32 {sT0}, {sBH}, 5"); A(f"s_add_u32 {sT0}, {sT0}, {WS_S}")
                    A(f"v_mov_b32 v{vT0}, 0")
                A(f"buffer_load_dwordx4 {vr(vXR+4*k,4)}, v{vT0}, {srd(R_WS)}, {sT0} offen offset:{16*k} sc1")
            return fn
        for G in range(8):
            if G == 7:
                add("st0", st(0), self.st_dep); add("st1", st(1), glue=True)
            grp("V", G, f"qk{G-1}" if G else None); put(8 + G)
        return it

    def step_gate(self):
        A = self.A
        x, w = vQF, vQF + 4
        t = vTM
        acc = vT0
        A(f"v_mov_b32 v{acc}, 0")
        for k in range(4):
            A(f"v_lshlrev_b32 v{t}, 16, v{x+k}"); A(f"v_lshlrev_b32 v{t+1}, 16, v{w+k}")
            A(f"v_and_b32 v{t+2}, 0xffff0000, v{x+k}"); A(f"v_and_b32 v{t+3}, 0xffff0000, v{w+k}")
            A(f"v_mul_f32 v{t}, v{t}, v{t+1}"); A(f"v_mul_f32 v{t+2}, v{t+2}, v{t+3}")
            A(f"v_cvt_pk_bf16_f32 v{t}, v{t}, v{t+2}")
            A(f"v_lshlrev_b32 v{t+1}, 16, v{t}"); A(f"v_and_b32 v{t}, 0xffff0000, v{t}")
            A(f"v_add_f32 v{acc}, v{acc}, v{t+1}"); A(f"v_add_f32 v{acc}, v{acc}, v{t}")
        for ctl in ("quad_perm:[1,0,3,2]", "quad_perm:[2,3,0,1]", "row_half_mirror", "row_mirror"):
            self.dpp_add(acc, ctl)
        self.swap_reduce("v_add_f32", acc, t, 16)
        self.swap_reduce("v_add_f32", acc, t, 32)
        A(f"v_cvt_pk_bf16_f32 v{acc}, v{acc}, v{acc}")
        A(f"v_and_b32 v{acc}, 0xffff0000, v{acc}")
        A(f"v_mul_f32 v{acc}, {f32(-math.log2(math.e))}, v{acc}")
        A(f"v_exp_f32 v{acc}, v{acc}")
        self.nop(1)
        A(f"v_add_f32 v{acc}, 1.0, v{acc}")
        A(f"v_rcp_f32 v{acc}, v{acc}")
        self.nop(1)
        A(f"v_cvt_pk_bf16_f32 v{acc}, v{acc}, v{acc}")
        A(f"v_and_b32 v{acc}, 0xffff0000, v{acc}")
        A(f"v_sub_f32 v{t}, 1.0, v{acc}")
        A(f"v_cvt_pk_bf16_f32 v{t}, v{t}, v{t}")
        A(f"v_and_b32 v{t}, 0xffff0000, v{t}")
        self.nop(1)
        A(f"v_readfirstlane_b32 {sG}, v{acc}")
        A(f"v_readfirstlane_b32 {sG1}, v{t}")

    def step_flag(self):
        A = self.A
        sk = self.label("noflag")
        A(f"s_cmp_lg_u32 {sW}, 0"); A(f"s_cbranch_scc1 {sk}")
        if self.dbgdiag:
            A(f"s_and_b32 {sT0}, s2, 31"); A(f"s_add_u32 {sT0}, {sT0}, 32"); A(f"s_lshl_b32 {sT0}, {sT0}, 2")
        else:
            A(f"s_and_b32 {sT0}, s2, 63"); A(f"s_lshl_b32 {sT0}, {sT0}, 2")
        A(f"v_mov_b32 v{vTM+5}, {sT0}"); A(f"v_mov_b32 v{vTM+6}, 1")
        A("s_mov_b64 exec, 1")
        A(f"global_atomic_add v{vTM+5}, v{vTM+6}, s[{P_DBG}:{P_DBG+1}]")
        A("s_mov_b64 exec, -1")
        if self.diag == 2: self.stamp(3)
        self.L(sk)

    def step_flchk(self, full):
        A = self.A
        ok = self.label("flok"); sp = self.label("flspin")
        def test():
            A(f"v_cmp_gt_u32 vcc, {8 if self.dbgdiag else 4}, v{vTM+7}")
            if not full: A("s_and_b64 vcc, vcc, s[74:75]")
            if self.dbgdiag: A("s_mov_b32 s0, 0"); A("s_mov_b32 s1, -1"); A("s_and_b64 vcc, vcc, s[0:1]")
        test()
        A(f"s_cbranch_vccz {ok}")
        A(f"s_mov_b32 {sCNT}, 0")
        A(f"v_lshlrev_b32 v{vT0}, 2, v{vL}")
        self.L(sp)
        A(f"s_sleep {self.sleep}")
        A(f"global_load_dword v{vTM+7}, v{vT0}, s[{P_DBG}:{P_DBG+1}] sc1")
        A(f"s_add_u32 {sCNT}, {sCNT}, 1")
        A(f"s_cmp_ge_u32 {sCNT}, {SPIN}")
        A("s_waitcnt vmcnt(0)")
        A(f"s_cbranch_scc1 {ok}")
        test()
        A(f"s_cbranch_vccnz {sp}")
        self.L(ok)
        if self.diag != 2 and not full: self.stamp(1)

    def step_qred(self):
        A = self.A
        t = vTM
        A(f"v_and_b32 v{t+1}, 7, v{vL}"); A(f"v_lshrrev_b32 v{t+2}, 3, v{vL}")
        A(f"s_lshl_b32 {sT0}, {sW}, 9"); A(f"s_add_u32 {sT0}, {sT0}, {L_QP}")
        A(f"v_lshl_add_u32 v{t}, v{t+2}, 7, {sT0}")
        A(f"v_lshl_add_u32 v{t}, v{t+1}, 2, v{t}")
        A("s_mov_b32 exec_hi, 0")
        for r in range(4): A(f"ds_write_b32 v{t}, v{vGA+r} offset:{32*r}")
        A("s_mov_b32 exec_lo, 0"); A("s_mov_b32 exec_hi, 0xffff")
        A(f"s_lshl_b32 {sT0}, {sW}, 8"); A(f"s_add_u32 {sT0}, {sT0}, {L_FP - 512}")
        A(f"v_lshl_add_u32 v{t}, v{vL}, 4, {sT0}")
        A(f"ds_write_b128 v{t}, {vr(vGA,4)}")
        A("s_mov_b64 exec, -1")
        A("s_waitcnt lgkmcnt(0)")
        A("s_barrier")
        d = vSP
        A(f"v_lshlrev_b32 v{t}, 3, v{vL}")
        for w in range(8): A(f"ds_read_b64 {vr(d+2*w,2)}, v{t} offset:{L_QP + 512*w}")
        e = vSP + 16
        A(f"s_and_b32 {sT0}, {sSL}, 1"); A(f"s_lshl_b32 {sT0}, {sT0}, 3")
        A(f"v_lshl_add_u32 v{t+3}, v{t+2}, 8, {sT0}")
        A(f"v_lshl_add_u32 v{t+3}, v{t+1}, 4, v{t+3}")
        A(f"ds_read_b64 {vr(e,2)}, v{t+3} offset:{L_FP}")
        A(f"ds_read_b64 {vr(e+2,2)}, v{t+3} offset:{L_FP+128}")
        A("s_waitcnt lgkmcnt(2)")
        for w in range(1, 8):
            A(f"v_add_f32 v{d}, v{d}, v{d+2*w}"); A(f"v_add_f32 v{d+1}, v{d+1}, v{d+2*w+1}")
        A(f"v_cvt_pk_bf16_f32 v{d}, v{d}, v{d+1}")
        A(f"s_lshl_b32 {sT0}, {sW}, 8"); A(f"s_add_u32 {sT0}, {sT0}, {L_QS}")
        A(f"v_lshl_add_u32 v{t}, v{vL}, 2, {sT0}")
        A(f"ds_write_b32 v{t}, v{d}")
        A(f"v_lshl_add_u32 v{t}, v{vG}, 4, {sT0}")
        A(f"v_and_b32 v{t+3}, 8, v{vL}")
        A(f"v_lshl_add_u32 v{t}, v{t+3}, 3, v{t}")
        A("s_waitcnt lgkmcnt(0)")
        for T in range(2): A(f"ds_read_b128 {vr(vQF+4*T,4)}, v{t} offset:{128*T}")
        A(f"v_permlane32_swap_b32 v{e}, v{e+1}"); A(f"v_permlane32_swap_b32 v{e+2}, v{e+3}")
        self.nop(1)
        A(f"v_add_f32 v{e}, v{e}, v{e+1}"); A(f"v_add_f32 v{e+2}, v{e+2}, v{e+3}")
        self.swap_reduce("v_add_f32", e, e + 1, 16)
        self.swap_reduce("v_add_f32", e + 2, e + 3, 16)
        self.dpp_add(e, "row_ror:8"); self.dpp_add(e + 2, "row_ror:8")
        A(f"v_cvt_pk_bf16_f32 v{e}, v{e}, v{e+2}")
        A(f"v_and_b32 v{e+2}, 0xffff0000, v{e}")
        A(f"v_lshlrev_b32 v{e}, 16, v{e}")
        k0 = math.sqrt(2.0 / math.pi)
        A(f"v_mul_f32 v{e+1}, v{e}, v{e}")
        A(f"v_mov_b32 v{e+3}, {f32(-2.0 * k0 * math.log2(math.e))}")
        A(f"v_mul_f32 v{e+1}, {f32(0.044715)}, v{e+1}")
        A(f"v_add_f32 v{e+1}, 1.0, v{e+1}")
        A(f"v_mul_f32 v{e+1}, v{e+1}, v{e}")
        A(f"v_mul_f32 v{e+1}, v{e+1}, v{e+3}")
        A(f"v_exp_f32 v{e+1}, v{e+1}")
        self.nop(1)
        A(f"v_add_f32 v{e+1}, 1.0, v{e+1}")
        A(f"v_rcp_f32 v{e+1}, v{e+1}")
        self.nop(1)
        A(f"v_mul_f32 v{e}, v{e}, v{e+1}")
        A(f"v_cvt_pk_bf16_f32 v{e}, v{e}, v{e}")
        A(f"v_and_b32 v{e}, 0xffff0000, v{e}")
        A(f"v_mul_f32 v{e}, v{e}, v{e+2}")
        A(f"v_cvt_pk_bf16_f32 v{e}, v{e}, v{e}")
        A(f"s_lshl_b32 {sT0}, {sW}, 5"); A(f"s_add_u32 {sT0}, {sT0}, {L_HS}")
        A(f"v_lshrrev_b32 v{t+2}, 5, v{vL}")
        A(f"v_lshl_add_u32 v{t+2}, v{t+2}, 3, v{t+1}")
        A(f"v_lshl_add_u32 v{t+2}, v{t+2}, 1, {sT0}")
        A(f"ds_write_b16 v{t+2}, v{e}")
        A(f"v_lshl_add_u32 v{t+2}, v{vG}, 3, {sT0}")
        A("s_waitcnt lgkmcnt(0)")
        A(f"ds_read_b64 {vr(vAC2,2)}, v{t+2}")
        A(f"v_cmp_eq_u32 vcc, 0, v{t+1}")
        A("s_waitcnt lgkmcnt(0)")
        self.nop(1)
        A(f"v_cndmask_b32 v{vAC2}, 0, v{vAC2}, vcc"); A(f"v_cndmask_b32 v{vAC2+1}, 0, v{vAC2+1}, vcc")

    def qk_combine(self, G):
        A = self.A
        a = vSP + 4 * G; b = vQF + 8 + 4 * (G & 1)
        for r in range(4): A(f"v_permlane32_swap_b32 v{a+r}, v{b+r}")
        for r in range(4): A(f"v_add_f32_dpp v{a+r}, v{b+r}, v{a+r} row_ror:8 row_mask:0xf bank_mask:0xf")
    def step_qk(self, G):
        A = self.A
        a = vSP + 4 * G; b = vQF + 8 + 4 * (G & 1); k = vK + 16 * G
        A(f"v_mfma_f32_16x16x32_bf16 {vr(a,4)}, {vr(k,4)}, {vr(vQF,4)}, 0")
        A(f"v_mfma_f32_16x16x32_bf16 {vr(b,4)}, {vr(k+8,4)}, {vr(vQF,4)}, 0")
        A(f"v_mfma_f32_16x16x32_bf16 {vr(a,4)}, {vr(k+4,4)}, {vr(vQF+4,4)}, {vr(a,4)}")
        A(f"v_mfma_f32_16x16x32_bf16 {vr(b,4)}, {vr(k+12,4)}, {vr(vQF+4,4)}, {vr(b,4)}")
        if G > 0:
            self.nop(4)
            self.qk_combine(G - 1)

    def step_softmax(self):
        A = self.A
        t = vTM
        m = vT1
        self.qk_combine(7)
        A(f"v_max3_f32 v{m}, v{vSP}, v{vSP+1}, v{vSP+2}")
        for k in range(3, 31, 2): A(f"v_max3_f32 v{m}, v{m}, v{vSP+k}, v{vSP+k+1}")
        A(f"v_max_f32 v{m}, v{m}, v{vSP+31}")
        self.swap_reduce("v_max_f32", m, t, 16)
        self.swap_reduce("v_max_f32", m, t, 32)
        A(f"s_lshl_b32 {sT0}, {sW}, 2")
        A(f"v_mov_b32 v{t+4}, {sT0}")
        A("s_mov_b64 exec, 1")
        A(f"ds_write_b32 v{t+4}, v{m} offset:{L_MX}")
        A("s_mov_b64 exec, -1")
        A(f"v_mov_b32 v{t+5}, 0")
        A("s_waitcnt lgkmcnt(0)")
        A("s_barrier")
        A(f"ds_read_b128 {vr(vBF,4)}, v{t+5} offset:{L_MX}")
        A(f"ds_read_b128 {vr(vBF+4,4)}, v{t+5} offset:{L_MX+16}")
        A("s_waitcnt lgkmcnt(0)")
        A(f"v_max3_f32 v{m}, v{vBF}, v{vBF+1}, v{vBF+2}")
        A(f"v_max3_f32 v{m}, v{m}, v{vBF+3}, v{vBF+4}")
        A(f"v_max3_f32 v{m}, v{m}, v{vBF+5}, v{vBF+6}")
        A(f"v_max_f32 v{m}, v{m}, v{vBF+7}")
        A(f"v_mul_f32 v{m}, {sC}, v{m}")
        l = vT0
        for k in range(32):
            A(f"v_fma_f32 v{vSP+k}, v{vSP+k}, {sC}, -v{m}")
        for k in range(32):
            A(f"v_exp_f32 v{vSP+k}, v{vSP+k}")
        A(f"v_add_f32 v{l}, v{vSP}, v{vSP+1}"); A(f"v_add_f32 v{t}, v{vSP+2}, v{vSP+3}")
        for k in range(4, 32, 2):
            A(f"v_add_f32 v{l}, v{l}, v{vSP+k}"); A(f"v_add_f32 v{t}, v{t}, v{vSP+k+1}")
        A(f"v_add_f32 v{l}, v{l}, v{t}")
        self.swap_reduce("v_add_f32", l, t, 16)
        self.swap_reduce("v_add_f32", l, t, 32)
        A("s_mov_b64 exec, 1")
        A(f"ds_write_b32 v{t+4}, v{l} offset:{L_LS}")
        A("s_mov_b64 exec, -1")
        for k in range(32):
            A(f"v_cvt_pk_bf16_f32 v{vSP+k}, v{vSP+k}, v{vSP+k}")
        A(f"v_mov_b32 v{vAC2+2}, v{m}")
        A("s_waitcnt lgkmcnt(0)")
        A("s_barrier")
        skip = self.label("nopub")
        A(f"s_cmp_lg_u32 {sW}, 0"); A(f"s_cbranch_scc1 {skip}")
        A(f"ds_read_b128 {vr(vBF,4)}, v{t+5} offset:{L_LS}")
        A(f"ds_read_b128 {vr(vBF+4,4)}, v{t+5} offset:{L_LS+16}")
        A(f"s_lshl_b32 {sT0}, {sBH}, 2"); A(f"s_add_u32 {sT0}, {sT0}, {sS}")
        A(f"s_lshl_b32 {sT0}, {sT0}, 3"); A(f"s_add_u32 {sT0}, {sT0}, {WS_S}")
        A("s_waitcnt lgkmcnt(0)")
        for k in range(1, 8): A(f"v_add_f32 v{vBF}, v{vBF}, v{vBF+k}")
        A(f"v_min_u32 v{t+1}, -2, v{vBF}")
        A(f"v_mov_b32 v{t}, v{m}")
        A("s_mov_b64 exec, 1")
        A(f"buffer_store_dwordx2 {vr(t,2)}, v{t+5}, {srd(R_WS)}, {sT0} offen sc1")
        A("s_mov_b64 exec, -1")
        self.L(skip)

    def step_pv(self, G):
        A = self.A
        base = vX if G == 0 else vK + 16 * (G - 1)
        def build(k, bset):
            for u in range(4): A(f"v_and_b32 v{vBF+4*bset+u}, v{vSP+k}, v{vM+u}")
        for r in range(4):
            k = 4 * G + r
            if k == 0: build(0, 0)
            if k + 1 < 32: build(k + 1, (k + 1) & 1)
            else: self.nop(2)
            c = "0" if k == 0 else vr(vACC, 4)
            A(f"v_mfma_f32_16x16x32_bf16 {vr(vACC,4)}, {vr(base+4*r,4)}, {vr(vBF+4*(k&1),4)}, {c}")

    WF = [vQF, vK + 16 * 7, vX, vK]
    def step_wof(self):
        A = self.A
        t = vTM
        A(f"v_lshrrev_b32 v{t}, 2, v{vI}"); A(f"v_and_b32 v{t+1}, 3, v{vI}")
        A(f"v_lshlrev_b32 v{t+1}, 3, v{t+1}")
        A(f"v_lshl_add_u32 v{t+1}, v{t}, 7, v{t+1}")
        A(f"v_lshl_add_u32 v{t+2}, v{vG}, 10, v{t+1}")
        A(f"v_add_u32 v{vOQ}, {sWOL}, v{t+2}")
        A(f"v_lshl_add_u32 v{t+2}, v{vG}, 9, v{t+1}")
        A(f"v_add_u32 v{vOF}, {sWDL}, v{t+2}")
        for tau in range(4): A(f"ds_read_b64_tr_b16 {vr(t+2*tau,2)}, v{vOF} offset:{tau*32}")
        for tau in range(4):
            for T in range(4):
                for hi in range(2):
                    A(f"ds_read_b64_tr_b16 {vr(self.WF[tau]+4*T+2*hi,2)}, v{vOQ} offset:{T*4096 + hi*512 + tau*32}")
            if tau == 0:
                A("s_waitcnt lgkmcnt(6)")
                for ta in range(4):
                    A(f"v_mfma_f32_16x16x16_bf16 {vr(vDF+4*ta,4)}, {vr(vAC2,2)}, {vr(t+2*ta,2)}, 0")
            else:
                A("s_waitcnt lgkmcnt(4)")
        for k in range(16): A(f"v_mul_f32 v{vDF+k}, {sG1}, v{vDF+k}")
        A("s_waitcnt lgkmcnt(0)")

    def step_scale(self):
        A = self.A
        t = vTM
        s = vXR
        ok = self.label("stok"); sp = self.label("stspin")
        A(f"s_mov_b32 {sCNT}, 0")
        A(f"v_max3_u32 v{t}, v{s+1}, v{s+3}, v{s+5}")
        A(f"v_max_u32 v{t}, v{t}, v{s+7}")
        A(f"v_cmp_eq_u32 vcc, -1, v{t}")
        A(f"s_cbranch_vccz {ok}")
        self.L(sp)
        A(f"buffer_load_dwordx4 {vr(s,4)}, v{vT0}, {srd(R_WS)}, {sT0} offen sc1")
        A(f"buffer_load_dwordx4 {vr(s+4,4)}, v{vT0}, {srd(R_WS)}, {sT0} offen offset:16 sc1")
        A(f"s_add_u32 {sCNT}, {sCNT}, 1")
        A(f"s_cmp_ge_u32 {sCNT}, {SPIN}")
        A("s_waitcnt vmcnt(0)")
        A(f"s_cbranch_scc1 {ok}")
        A(f"v_max3_u32 v{t}, v{s+1}, v{s+3}, v{s+5}")
        A(f"v_max_u32 v{t}, v{t}, v{s+7}")
        A(f"v_cmp_eq_u32 vcc, -1, v{t}")
        A(f"s_cbranch_vccnz {sp}")
        self.L(ok)
        A(f"v_max3_f32 v{t}, v{s}, v{s+2}, v{s+4}")
        A(f"v_max_f32 v{t}, v{t}, v{s+6}")
        for k in range(4): A(f"v_sub_f32 v{s+2*k}, v{s+2*k}, v{t}")
        A(f"v_sub_f32 v{t+1}, v{vAC2+2}, v{t}")
        for k in range(4): A(f"v_exp_f32 v{s+2*k}, v{s+2*k}")
        A(f"v_exp_f32 v{t+1}, v{t+1}")
        A(f"v_mul_f32 v{t}, v{s}, v{s+1}")
        for k in range(1, 4): A(f"v_fmac_f32 v{t}, v{s+2*k}, v{s+2*k+1}")
        A(f"v_rcp_f32 v{t}, v{t}")
        A(f"v_mul_f32 v{t+1}, {sG}, v{t+1}")
        A(f"v_mul_f32 v{vAC2+3}, v{t}, v{t+1}")
        A(f"v_and_b32 v{t}, 7, v{vI}")
        A(f"s_mul_i32 {sT1}, {sW}, 288"); A(f"s_add_u32 {sT1}, {sT1}, {L_OB}")
        A(f"v_lshl_add_u32 v{vOK}, v{vG}, 6, {sT1}")
        A(f"v_lshl_add_u32 v{vOK}, v{t}, 3, v{vOK}")
        A(f"v_mul_u32_u24 v{vOQ}, 288, v{t}")
        A(f"v_lshl_add_u32 v{vOQ}, v{vG}, 4, v{vOQ}")
        A(f"v_lshrrev_b32 v{t}, 2, v{vI}")
        A(f"v_lshl_add_u32 v{t}, v{vG}, 2, v{t}")
        A(f"v_lshlrev_b32 v{vOF}, 11, v{t}")
        A(f"s_lshl_b32 {sTF}, {sW}, 15")
        A(f"s_lshl_b32 {sT1}, {sB}, 18"); A(f"s_add_u32 {sTF}, {sTF}, {sT1}")
        A(f"s_lshl_b32 {sT1}, {sH}, 6"); A(f"s_add_u32 {sTF}, {sTF}, {sT1}")
        A(f"s_lshl_b32 {sT1}, {sS}, 4"); A(f"s_add_u32 {sTF}, {sTF}, {sT1}")
        A(f"v_cmp_gt_u32 s[0:1], 2, v{vG}")
        A(f"v_lshlrev_b32 v{vOD}, 4, v{vL}")
        A(f"s_lshl_b32 {sTQ}, s2, 11")
        A(f"v_and_b32 v{t}, 1, v{vG}"); A(f"v_lshrrev_b32 v{t+1}, 1, v{vG}")
        A(f"v_lshl_add_u32 v{t}, v{t}, 1, v{t+1}")
        A(f"s_lshl_b32 {sT1}, s2, 3")
        A(f"v_lshl_add_u32 v{vT1}, v{t}, 1, {sT1}")

    def step_tail(self):
        A = self.A
        t = vTM
        A("s_mov_b32 exec_lo, 0x00ff00ff"); A("s_mov_b32 exec_hi, 0x00ff00ff")
        self.nop(6)
        for r in range(4): A(f"v_mul_f32 v{vACC+r}, v{vACC+r}, v{vAC2+3}")
        A(f"v_cvt_pk_bf16_f32 v{t}, v{vACC}, v{vACC+1}")
        A(f"v_cvt_pk_bf16_f32 v{t+1}, v{vACC+2}, v{vACC+3}")
        A(f"ds_write_b64 v{vOK}, {vr(t,2)}")
        A("s_mov_b64 exec, -1")
        A("s_waitcnt lgkmcnt(0)")
        A("s_barrier")
        if self.diag == 0: self.stamp(2)
        af = vSP
        for T in range(4): A(f"ds_read_b128 {vr(af+4*T,4)}, v{vOQ} offset:{L_OB + 64*T}")
        for T in range(4):
            A(f"s_waitcnt lgkmcnt({3-T})" if not self.stamps else "s_waitcnt lgkmcnt(0)")
            for tau in range(4):
                A(f"v_mfma_f32_16x16x32_bf16 {vr(vDF+4*tau,4)}, {vr(af+4*T,4)}, {vr(self.WF[tau]+4*T,4)}, {vr(vDF+4*tau,4)}")
        self.nop(5)
        for tau in range(4):
            d = vDF + 4 * tau
            A(f"v_add_f32 v{d}, v{d}, v{d+1}"); A(f"v_add_f32 v{d+2}, v{d+2}, v{d+3}")
            A(f"v_add_f32 v{d}, v{d}, v{d+2}")
        self.nop(1)
        A(f"v_permlane16_swap_b32 v{vDF}, v{vDF+4}")
        A(f"v_permlane16_swap_b32 v{vDF+8}, v{vDF+12}")
        self.nop(1)
        A(f"v_add_f32 v{vDF}, v{vDF}, v{vDF+4}")
        A(f"v_add_f32 v{vDF+8}, v{vDF+8}, v{vDF+12}")
        A(f"v_cndmask_b32 v{t}, v{vDF+8}, v{vDF}, s[0:1]")
        A(f"v_min_u32 v{t}, -2, v{t}")
        self.nop(2)
        for k in range(1, 4):
            A(f"v_mov_b32_dpp v{t+k}, v{t} quad_perm:[{k},{k},{k},{k}] row_mask:0xf bank_mask:0xf")
        A("s_mov_b32 exec_lo, 0x11111111"); A("s_mov_b32 exec_hi, 0x11111111")
        A(f"buffer_store_dwordx4 {vr(t,4)}, v{vOF}, {srd(R_WS)}, {sTF} offen{'' if self.two_kernel else ' sc1'}")
        A("s_mov_b64 exec, -1")
        if self.diag == 0: self.stamp(3)

    def consumer(self, poll=True):
        A = self.A
        y = vSP
        t = vTM + 4
        sp = self.label("yspin"); ok = self.label("yok")
        A(f"s_mov_b32 {sCNT}, 0")
        self.L(sp)
        fl = " sc1" if poll else ""
        A(f"buffer_load_dwordx4 {vr(y,4)}, v{vOD}, {srd(R_WS)}, {sTQ} offen{fl}")
        A(f"buffer_load_dwordx4 {vr(y+4,4)}, v{vOD}, {srd(R_WS)}, {sTQ} offen offset:1024{fl}")
        if poll:
            A(f"s_add_u32 {sCNT}, {sCNT}, 1")
            A(f"s_cmp_ge_u32 {sCNT}, {SPIN}")
            A("s_waitcnt vmcnt(0)")
            A(f"s_cbranch_scc1 {ok}")
            A(f"v_max3_u32 v{t}, v{y}, v{y+1}, v{y+2}")
            A(f"v_max3_u32 v{t+1}, v{y+3}, v{y+4}, v{y+5}")
            A(f"v_max3_u32 v{t}, v{t}, v{y+6}, v{y+7}")
            A(f"v_max_u32 v{t}, v{t}, v{t+1}")
            A(f"v_cmp_eq_u32 vcc, -1, v{t}")
            A(f"s_cbranch_vccnz {sp}")
            self.L(ok)
        else:
            A("s_waitcnt vmcnt(0)")
        for k in range(4): A(f"v_add_f32 v{y+k}, v{y+k}, v{y+4+k}")
        self.nop(1)
        A(f"v_permlane32_swap_b32 v{y}, v{y+1}"); A(f"v_permlane32_swap_b32 v{y+2}, v{y+3}")
        self.nop(1)
        A(f"v_add_f32 v{y}, v{y}, v{y+1}"); A(f"v_add_f32 v{y+2}, v{y+2}, v{y+3}")
        self.nop(2)
        A(f"v_permlane16_swap_b32 v{y}, v{y+2}")
        self.nop(1)
        A(f"v_add_f32 v{y}, v{y}, v{y+2}")
        for ctl in ("quad_perm:[1,0,3,2]", "quad_perm:[2,3,0,1]", "row_half_mirror", "row_mirror"):
            self.dpp_add(y, ctl)
        A(f"v_cvt_pk_bf16_f32 v{y}, v{y}, v{y}")
        A("s_mov_b32 exec_lo, 0x00010001"); A("s_mov_b32 exec_hi, 0x00010001")
        A(f"global_store_short v{vT1}, v{y}, s[{P_OUT}:{P_OUT+1}]")

    def steps(self, idx):
        S = []
        def add(name, needs, fn): S.append(dict(name=name, needs=needs, fn=fn))
        add("flag", ["K0_3"], self.step_flag)
        add("gate", ["gw"], self.step_gate)
        add("flchk", ["fl"], lambda: self.step_flchk(False))
        add("qred", ["ga"], self.step_qred)
        for G in range(8): add(f"qk{G}", [f"K{G}_3"], lambda G=G: self.step_qk(G))
        add("flchk2", ["fl2"], lambda: self.step_flchk(True))
        add("softmax", [], self.step_softmax)
        lastdma = max(idx["wo15"], idx["wd1"])
        placed = False
        for G in range(8):
            if G == 7: add("scale", ["st1"], self.step_scale)
            if not placed and G >= 2 and idx[f"V{G}_3"] > lastdma:
                add("wof", ["wo15", "wd1"], self.step_wof); placed = True
            add(f"pv{G}", [f"V{G}_3"], lambda G=G: self.step_pv(G))
        names = [s["name"] for s in S]
        assert placed and names.index("wof") < names.index("scale")
        add("tail", [], self.step_tail)
        return S

    def schedule(self, W, LA):
        items = self.items(LA)
        idx = {it["name"]: n for n, it in enumerate(items)}
        steps = self.steps(idx)
        issued = 4
        comp = -1; done = set(); pos = -1
        for st in steps:
            need = max([idx[n] for n in st["needs"]], default=-1)
            pos = max(pos, need)
            def issue(la, w):
                nonlocal issued, comp
                while issued < len(items):
                    it = items[issued]
                    if not it["glue"]:
                        if issued > pos + la: break
                        if it["dep"] and it["dep"] not in done:
                            assert issued > need, (st["name"], it["name"])
                            break
                    if issued - (comp + 1) >= w:
                        self.A(f"s_waitcnt vmcnt({w-1})"); comp = issued - w
                    it["fn"](); issued += 1
            issue(LA, W)
            if comp < need or st["name"] == "flag":
                self.A(f"s_waitcnt vmcnt({issued-1-need})"); comp = max(comp, need)
            if st["name"] in ("qred", "softmax", "wof"): issue(LA + self.boost, W + self.boost)
            self.o.append(f"    ; ---- {st['name']}")
            st["fn"](); done.add(st["name"])
        assert issued == len(items)

    def kd(self, name, vg, sg):
        return [f".amdhsa_kernel {name}", f"  .amdhsa_next_free_vgpr {vg}", f"  .amdhsa_next_free_sgpr {sg}",
                f"  .amdhsa_accum_offset {vg}", "  .amdhsa_group_segment_fixed_size 0", "  .amdhsa_kernarg_size 104",
                "  .amdhsa_user_sgpr_count 2", "  .amdhsa_user_sgpr_kernarg_segment_ptr 1",
                "  .amdhsa_system_sgpr_workgroup_id_x 1", ".end_amdhsa_kernel"]

    def build(self):
        A = self.A
        K1 = NAME + "_kernel"; K2 = "gated_mix_reduce_kernel"
        o = self.o
        o.append(HEADER.rstrip("\n"))
        if self.two_kernel:
            o.append(f"; @launch kernel={K1} grid=(256,1,1) block=(512,1,1) lds={LDS_BYTES}")
            o.append(f"; @launch kernel={K2} grid=(256,1,1) block=(64,1,1) lds=0")
        else:
            o.append(f"; @launch grid=(256,1,1) block=(512,1,1) lds={LDS_BYTES}")
        o += ['.amdgcn_target "amdgcn-amd-amdhsa--gfx950"', ".text", f".globl {K1}", ".p2align 8",
              f".type {K1},@function", f"{K1}:"]
        self.prologue()
        self.phase0()
        if self.p0only: pass
        elif self.W_even is not None:
            A(f"s_and_b32 {sT0}, {sXCC}, 1"); A("s_cbranch_scc1 L_odd")
            self.schedule(self.W_even, self.LA_even)
            A("s_branch L_join")
            self.L("L_odd")
            self.schedule(self.W, self.LA)
            self.L("L_join")
        else:
            self.schedule(self.W, self.LA)
        A(f"s_cmp_lg_u32 {sW}, 0"); A("s_cbranch_scc1 L_end")
        if not self.two_kernel and not self.p0only:
            self.consumer()
        if self.dbgdiag:
            self.stamp(4)
            A("s_mov_b64 exec, 1")
            A("s_waitcnt lgkmcnt(0)")
            A("v_mov_b32 v1, 0")
            for k in range(5):
                A(f"v_mov_b32 v2, s{sST+2*k}"); A(f"v_not_b32 v3, v2")
                A(f"global_atomic_umax v1, v3, s[{P_DBG}:{P_DBG+1}] offset:{8*k}")
                A(f"global_atomic_umax v1, v2, s[{P_DBG}:{P_DBG+1}] offset:{8*k+4}")
                A("s_waitcnt vmcnt(0)")
        elif self.stamps:
            self.stamp(4)
            A("s_mov_b64 exec, 1")
            A("s_waitcnt lgkmcnt(0)")
            A(f"s_add_u32 s40, s40, {STAMP_OFF}"); A("s_addc_u32 s41, s41, 0")
            A("s_lshl_b32 s8, s2, 6"); A("v_mov_b32 v1, s8")
            for k in range(4):
                A(f"v_mov_b32 v{8+2*k}, s{sST+2*k}"); A(f"v_mov_b32 v{9+2*k}, s{sST+2*k+1}")
            A(f"v_mov_b32 v16, {sXCC}"); A("v_mov_b32 v17, 0")
            A(f"v_mov_b32 v18, s{sST+8}"); A(f"v_mov_b32 v19, s{sST+9}")
            A("global_store_dwordx4 v1, v[8:11], s[40:41]")
            A("global_store_dwordx4 v1, v[12:15], s[40:41] offset:16")
            A("global_store_dwordx4 v1, v[16:19], s[40:41] offset:32")
        self.L("L_end"); A("s_endpgm")
        if self.two_kernel:
            o += [f".globl {K2}", ".p2align 8", f".type {K2},@function", f"{K2}:"]
            A("s_cmp_ge_u32 s2, 256"); A("s_cbranch_scc1 L_end2")
            A(f"s_load_dwordx2 s[{P_OUT}:{P_OUT+1}], s[0:1], 80")
            A(f"s_load_dwordx2 s[{P_WS}:{P_WS+1}], s[0:1], 96")
            t = vTM
            A(f"v_bfe_u32 v{vG}, v0, 4, 2")
            A(f"v_lshlrev_b32 v{vOD}, 4, v0")
            A(f"s_lshl_b32 {sTQ}, s2, 11")
            A(f"v_and_b32 v{t}, 1, v{vG}"); A(f"v_lshrrev_b32 v{t+1}, 1, v{vG}")
            A(f"v_lshl_add_u32 v{t}, v{t}, 1, v{t+1}")
            A(f"s_lshl_b32 {sT1}, s2, 3")
            A(f"v_lshl_add_u32 v{vT1}, v{t}, 1, {sT1}")
            A("s_waitcnt lgkmcnt(0)")
            self.mk(R_WS, P_WS, None, WS_BYTES)
            self.consumer(poll=False)
            self.L("L_end2"); A("s_endpgm")
        o += ['.section .rodata,"a"', ".p2align 6"] + self.kd(K1, 256, 102)
        if self.two_kernel:
            o += [".p2align 6"] + self.kd(K2, 112, 102)
        return "\n".join(o) + "\n"

if __name__ == "__main__":
    import argparse, json
    ap = argparse.ArgumentParser()
    ap.add_argument("out"); ap.add_argument("--opt", default="{}")
    a = ap.parse_args()
    open(a.out, "w").write(Gen(**json.loads(a.opt)).build())
```

```python
import sys, struct, math

NAME = "gated_mix__mha_block_cached__geglu_ffn__decode"
HEADER = open("cdna_kernels/" + NAME + ".s.ref").read().split("; Override launch")[0]

def f32(x):
    return "0x%08x" % struct.unpack("<I", struct.pack("<f", x))[0]

L_QP = 0
L_QS = L_QP + 4096
L_FP = L_QS + 2048
L_HS = L_FP + 2048
L_MX = L_HS + 256
L_LS = L_MX + 64
L_OB = L_LS + 64
L_P0 = 11264
L_WD = L_P0 + 16384
L_WO = L_WD + 16384
L_END = L_WO + 131072
assert L_OB + 8 * 288 <= L_P0
L_P0 = L_WD
L_WD = 11264; L_P0 = L_WD; L_WO = L_WD + 16384; L_END = L_WO + 131072
LDS_BYTES = (L_END + 255) // 256 * 256

WS_Y = 0
WS_S = 0x80000
WS_Q = 0x81000
WS_F = WS_Q + 0x40000
WS_BYTES = WS_F + 176 * 1024
STAMP_OFF = 128 << 20
SPIN = "0x4000"

sW = "s3"
P_X, P_K, P_V, P_WQ, P_WO, P_WG, P_WU = 16, 18, 20, 22, 24, 28, 30
P_WD, P_GW, P_OUT, P_DBG, P_WS = 32, 34, 36, 38, 40
R_K, R_V, R_WQ, R_WO, R_X, R_GW, R_FT, R_WD, R_WS = 44, 48, 52, 56, 60, 64, 68, 76, 80
sH, sB, sS, sSL, sT0, sT1, sT2 = "s4", "s5", "s6", "s7", "s8", "s9", "s10"
sTK, sTV, sTQ, sTF, sTD = "s11", "s12", "s13", "s14", "s15"
sJ, sFT, sCLR, sGA = "s72", "s73", "s74", "s75"
sWOL, sWDL = "s84", "s85"
sDUP0, sDUP1 = "s86", "s87"
sC = "s88"; sCNT = "s89"; sXCC = "s90"; sBH = "s91"
sG, sG1 = "s42", "s43"
sST = 92
def srd(r): return f"s[{r}:{r+3}]"

vL, vI, vG = 1, 2, 3
vOK, vOV, vOQ, vOW, vOF, vOD, vT0, vT1 = 4, 5, 6, 7, 8, 9, 10, 11
vM = 12
vXR = 16
vGA = 20
vBF = 24
vACC = 32
vAC2 = 36
vQF = 40
vSP = 56
vDF = 88
vTM = 104
vK = 112
vX = 240
def vr(a, n): return f"v[{a}:{a+n-1}]"

class Gen:
    def __init__(self, W=60, LA=8, W_even=None, LA_even=None, two_kernel=False, stamps=False,
                 nt_w=False, ga_after=2, k0_first=False, sleep=64, wo_sched=None, st_dep="pv3", diag=0, obar=True, boost=0, k0_late=True, fl2_after=6, p0only=None, dbgdiag=False, stamp_after=None, wavestamp=None, Wv=None, wo_bytes=127*1024+128, nt_k=True, nt_v=True):
        self.o = []
        self.W, self.LA, self.W_even, self.LA_even = W, LA, W_even, LA_even
        self.two_kernel, self.stamps, self.nt_w = two_kernel, stamps, nt_w
        self.ga_after, self.k0_first, self.st_dep, self.sleep = ga_after, k0_first, st_dep, sleep
        self.wo_sched = wo_sched or [0, 1, 1, 2, 1, 2, 1, 2, 1, 2, 1, 2, 2, 0, 0, 0]
        assert sum(self.wo_sched) == 18
        self.lab = 0
        self.diag = diag
        self.obar = obar
        self.boost = boost
        self.nt_k = nt_k; self.nt_v = nt_v
        self.wo_bytes = wo_bytes
        self.wavestamp = wavestamp
        self.Wv = Wv
        self.stamp_after = stamp_after or {}
        if stamp_after: self.diag = 9
        self.dbgdiag = dbgdiag
        if dbgdiag: self.stamps = True
        self.p0only = p0only
        self.k0_late = k0_late
        self.fl2_after = fl2_after
    def A(self, s): self.o.append("    " + s)
    def L(self, s): self.o.append(s + ":")
    def nop(self, n):
        while n > 0:
            k = min(n, 16); self.A(f"s_nop {k-1}"); n -= k
    def label(self, p):
        self.lab += 1; return f"L_{p}_{self.lab}"
    def stamp(self, k):
        if self.stamps: self.A(f"s_memrealtime s[{sST+2*k}:{sST+2*k+1}]")

    def swap_reduce(self, op, v, tmp, which):
        A = self.A
        A(f"v_mov_b32 v{tmp}, v{v}")
        self.nop(2)
        A(f"v_permlane{which}_swap_b32 v{v}, v{tmp}")
        self.nop(1)
        A(f"{op} v{v}, v{v}, v{tmp}")
    def dpp_add(self, v, ctl):
        self.nop(2)
        self.A(f"v_add_f32_dpp v{v}, v{v}, v{v} {ctl} row_mask:0xf bank_mask:0xf")
    def mk(self, r, p, off, size):
        A = self.A
        if off is None:
            A(f"s_mov_b32 s{r}, s{p}"); A(f"s_mov_b32 s{r+1}, s{p+1}")
        else:
            A(f"s_add_u32 s{r}, s{p}, {off}"); A(f"s_addc_u32 s{r+1}, s{p+1}, 0")
        if size is not None: A(f"s_mov_b32 s{r+2}, {size}")
        A(f"s_mov_b32 s{r+3}, 0x20000")

    def prologue(self):
        A = self.A
        A("s_cmp_ge_u32 s2, 256")
        A("s_cbranch_scc1 L_end")
        A("s_load_dwordx16 s[16:31], s[0:1], 0")
        A("s_load_dwordx8 s[32:39], s[0:1], 64")
        A("s_load_dwordx2 s[40:41], s[0:1], 96")
        self.stamp(0)
        A("v_lshrrev_b32 v10, 6, v0")
        A(f"v_and_b32 v{vL}, 63, v0")
        A(f"v_readfirstlane_b32 {sW}, v10")
        A(f"v_and_b32 v{vI}, 15, v0")
        A(f"v_bfe_u32 v{vG}, v0, 4, 2")
        A(f"s_and_b32 {sT0}, s2, 7")
        A(f"s_lshr_b32 {sT1}, s2, 3")
        A(f"s_and_b32 {sT2}, {sT1}, 3")
        A(f"s_lshl_b32 {sH}, {sT0}, 2")
        A(f"s_add_u32 {sH}, {sH}, {sT2}")
        A(f"s_lshr_b32 {sJ}, {sT1}, 2")
        A(f"s_lshr_b32 {sB}, {sT1}, 4")
        A(f"s_and_b32 {sS}, {sJ}, 3")
        A(f"s_lshl_b32 {sBH}, {sB}, 5")
        A(f"s_add_u32 {sBH}, {sBH}, {sH}")
        A(f"s_lshl_b32 {sFT}, {sT2}, 3")
        A(f"s_add_u32 {sFT}, {sFT}, {sT0}")
        A(f"s_and_b32 {sT1}, {sT1}, 15")
        A(f"s_mul_i32 {sSL}, {sT0}, 11")
        A(f"s_add_u32 {sSL}, {sSL}, {sT1}")
        A(f"s_cmp_lt_u32 {sT1}, 11")
        A(f"s_cselect_b32 {sSL}, {sSL}, 1000")
        A(f"s_cmp_lt_u32 {sSL}, 86")
        A(f"s_cselect_b32 {sT2}, 1, 0")
        A(f"s_cselect_b32 {sSL}, {sSL}, 0")
        A(f"v_and_b32 v{vOK}, 7, v0")
        A(f"v_lshlrev_b32 v{vOK}, 8, v{vOK}")
        A(f"v_lshl_add_u32 v{vOK}, v{vG}, 4, v{vOK}")
        A(f"v_and_b32 v{vT1}, 8, v0")
        A(f"v_lshl_add_u32 v{vOK}, v{vT1}, 3, v{vOK}")
        A(f"v_lshlrev_b32 v{vT1}, 4, v{vI}")
        A(f"v_lshl_add_u32 v{vOV}, v{vG}, 10, v{vT1}")
        A(f"s_lshl_b32 {sT0}, {sBH}, 20")
        A(f"s_lshl_b32 {sT1}, {sS}, 18")
        A(f"s_add_u32 {sT0}, {sT0}, {sT1}")
        A(f"s_lshl_b32 {sT1}, {sW}, 15")
        A(f"s_add_u32 {sT0}, {sT0}, {sT1}")
        A(f"s_mov_b32 s{R_K+2}, 32768"); A(f"s_mov_b32 s{R_K+3}, 0x20000")
        A("s_waitcnt lgkmcnt(0)")
        A(f"s_add_u32 s{R_K}, s{P_K}, {sT0}"); A(f"s_addc_u32 s{R_K+1}, s{P_K+1}, 0")
        A(f"s_add_u32 s{R_V}, s{P_V}, {sT0}"); A(f"s_addc_u32 s{R_V+1}, s{P_V+1}, 0")
        self.mk(R_WS, P_WS, None, WS_BYTES)

    def kv_load(self, kind, G, t):
        A = self.A
        st = sTK if kind == "K" else sTV
        if t == 0 and G > 0: A(f"s_movk_i32 {st}, {G*4096}")
        so = st if G > 0 else "0"
        if kind == "K":
            A(f"buffer_load_dwordx4 {vr(vK+16*G+4*t,4)}, v{vOK}, {srd(R_K)}, {so} offen offset:{(t>>1)*2048 + (t&1)*128}{' nt' if self.nt_k else ''}")
        else:
            dst = vX if G == 0 else vK + 16 * (G - 1)
            A(f"buffer_load_dwordx4 {vr(dst+4*t,4)}, v{vOV}, {srd(R_V)}, {so} offen offset:{256*t}{' nt' if self.nt_v else ''}")

    def bsel(self, src, half, bset):
        A = self.A
        t = vTM + 4 + bset
        A(f"v_perm_b32 v{t}, v{src}, v{src}, {sDUP1 if half else sDUP0}")
        for u in range(4): A(f"v_and_b32 v{vBF+4*bset+u}, v{t}, v{vM+u}")

    def phase0(self):
        A = self.A
        ntw = " nt" if self.nt_w else ""
        if self.k0_first:
            for t in range(4): self.kv_load("K", 0, t)
        self.mk(R_X, P_X, None, 2048)
        A(f"s_lshl_b32 {sT0}, {sJ}, 3"); A(f"s_add_u32 {sT0}, {sT0}, {sW}")
        A(f"s_lshl_b32 {sT1}, {sT0}, 4")
        A(f"v_lshrrev_b32 v{vT0}, 3, v{vI}")
        A(f"v_lshlrev_b32 v{vT0}, 10, v{vT0}")
        A(f"v_lshl_add_u32 v{vT0}, v{vG}, 2, v{vT0}")
        A(f"buffer_load_dword v{vXR}, v{vT0}, {srd(R_X)}, {sT1} offen")
        A(f"s_lshl_b32 {sT1}, {sT0}, 16"); A(f"s_lshl_b32 {sTQ}, {sH}, 8"); A(f"s_add_u32 {sT1}, {sT1}, {sTQ}")
        self.mk(R_WQ, P_WQ, sT1, 7 * 8192 + 256)
        A(f"v_lshl_add_u32 v{vOQ}, v{vG}, 14, v{vT1}")
        A(f"s_movk_i32 {sTQ}, 8192")
        if self.p0only in (None, "wq", "both"):
            A(f"buffer_load_dwordx4 {vr(vDF,4)}, v{vOQ}, {srd(R_WQ)}, 0 offen{ntw}")
            A(f"buffer_load_dwordx4 {vr(vDF+4,4)}, v{vOQ}, {srd(R_WQ)}, {sTQ} offen{ntw}")
        A(f"s_cmp_ge_u32 {sFT}, 11")
        A(f"s_cselect_b32 s{R_FT}, s{P_WU}, s{P_WG}"); A(f"s_cselect_b32 s{R_FT+1}, s{P_WU+1}, s{P_WG+1}")
        A(f"s_cselect_b32 {sT1}, 11, 0")
        A(f"s_sub_u32 {sT1}, {sFT}, {sT1}")
        A(f"s_lshl_b32 {sT1}, {sT1}, 8")
        A(f"s_mul_i32 {sT0}, {sT0}, {8*2752}")
        A(f"s_add_u32 {sT1}, {sT1}, {sT0}")
        A(f"s_sub_u32 s{R_FT+2}, {512*2752}, {sT1}")
        A(f"s_cmp_lt_u32 {sFT}, 22")
        A(f"s_cselect_b32 s{R_FT+2}, s{R_FT+2}, 0")
        A(f"s_cselect_b32 {sT1}, {sT1}, 0")
        A(f"s_add_u32 s{R_FT}, s{R_FT}, {sT1}"); A(f"s_addc_u32 s{R_FT+1}, s{R_FT+1}, 0")
        A(f"s_mov_b32 s{R_FT+3}, 0x20000")
        A(f"v_mul_u32_u24 v{vOF}, {2*2752}, v{vG}")
        A(f"v_add_u32 v{vOF}, v{vOF}, v{vT1}")
        if self.p0only in (None, "ft", "both"):
            A(f"buffer_load_dwordx4 {vr(vDF+8,4)}, v{vOF}, {srd(R_FT)}, 0 offen{ntw}")
            A(f"buffer_load_dwordx4 {vr(vDF+12,4)}, v{vOF}, {srd(R_FT)}, 0 offen offset:2752{ntw}")
        if self.p0only == "k0":
            for t in range(4): self.kv_load("K", 0, t)
        if self.p0only:
            self.stamp(1); A("s_waitcnt vmcnt(0)"); self.stamp(2); A("s_barrier"); self.stamp(3)
            A(f"s_getreg_b32 {sXCC}, hwreg(HW_REG_XCC_ID)")
            return
        A(f"v_lshlrev_b32 v{vT1}, 4, v{vL}")
        if self.obar and not self.k0_late: A("s_barrier")
        lj = self.label("clsJ")
        if not self.k0_first and not self.k0_late:
            for t in range(4): self.kv_load("K", 0, t)
        self.mk(R_GW, P_GW, None, 1024)
        A(f"s_mov_b32 s{R_V+2}, 32768"); A(f"s_mov_b32 s{R_V+3}, 0x20000")
        A(f"s_lshl_b32 {sT0}, {sSL}, 14"); A(f"s_lshl_b32 {sT1}, {sW}, 7"); A(f"s_add_u32 {sT0}, {sT0}, {sT1}")
        self.mk(R_WD, P_WD, sT0, None)
        A(f"s_mul_i32 s{R_WD+2}, {sT2}, {15*1024+128}")
        A(f"s_lshl_b32 {sT0}, {sH}, 17"); A(f"s_add_u32 {sT0}, {sT0}, {sT1}")
        self.mk(R_WO, P_WO, sT0, self.wo_bytes)
        t = vTM + 4
        A(f"v_and_b32 v{t}, 7, v{vL}")
        A(f"v_lshlrev_b32 v{t}, 4, v{t}")
        A(f"v_lshrrev_b32 v{t+1}, 3, v{vL}")
        A(f"v_lshl_add_u32 v{vOD}, v{t+1}, 10, v{t}")
        A(f"v_and_b32 v{t+2}, 3, v{t+1}")
        A(f"v_lshlrev_b32 v{t+2}, 3, v{t+2}")
        A(f"v_lshrrev_b32 v{t+1}, 2, v{t+1}")
        A(f"v_add_u32 v{t+1}, v{t+1}, v{t+2}")
        A(f"v_lshl_add_u32 v{vOW}, v{t+1}, 10, v{t}")
        A(f"s_lshl_b32 {sWOL}, {sW}, 14"); A(f"s_add_u32 {sWOL}, {sWOL}, {L_WO}")
        A(f"s_lshl_b32 {sWDL}, {sW}, 11"); A(f"s_add_u32 {sWDL}, {sWDL}, {L_WD}")
        A(f"v_and_b32 v{t}, 1, v{vI}")
        A(f"v_lshlrev_b32 v{t}, 4, v{t}")
        A(f"v_mov_b32 v{t+1}, 0xffff")
        A(f"v_lshlrev_b32 v{t+1}, v{t}, v{t+1}")
        A(f"v_bfe_u32 v{t}, v{vI}, 1, 2")
        for u in range(4):
            A(f"v_cmp_eq_u32 vcc, {u}, v{t}")
            self.nop(2)
            A(f"v_cndmask_b32 v{vM+u}, 0, v{t+1}, vcc")
        A(f"s_mov_b32 {sDUP0}, 0x01000100"); A(f"s_mov_b32 {sDUP1}, 0x03020302")
        A(f"s_mov_b32 {sC}, {f32(math.log2(math.e) / math.sqrt(128.0))}")
        A(f"s_getreg_b32 {sXCC}, hwreg(HW_REG_XCC_ID)")
        A(f"s_lshr_b32 {sT0}, {sSL}, 3")
        A(f"s_lshl_b32 {sCLR}, 0x801, {sT0}")
        A(f"s_lshl_b32 {sT0}, 1, {sFT}")
        A(f"s_or_b32 {sCLR}, {sCLR}, {sT0}"); A(f"s_mov_b32 {sGA}, {sCLR}")
        A(f"s_lshl_b32 {sT0}, {sH}, 13"); A(f"s_lshl_b32 {sT1}, {sB}, 7"); A(f"s_add_u32 {sT0}, {sT0}, {sT1}")
        A(f"s_add_u32 {sT0}, {sT0}, {WS_Q}")
        A(f"v_lshrrev_b32 v{t}, 3, v{vL}")
        A(f"v_and_b32 v{t+1}, 7, v{vL}")
        A(f"v_lshlrev_b32 v{t+1}, 4, v{t+1}")
        A(f"v_lshl_add_u32 v{t+2}, v{t}, 8, {sT0}")
        A(f"s_lshr_b32 {sT0}, {sSL}, 3"); A(f"s_lshl_b32 {sT0}, {sT0}, 13"); A(f"s_add_u32 {sT0}, {sT0}, {sT1}")
        A(f"s_bfe_u32 {sT1}, {sSL}, 0x20001"); A(f"s_lshl_b32 {sT1}, {sT1}, 8"); A(f"s_add_u32 {sT0}, {sT0}, {sT1}")
        A(f"s_add_u32 {sT0}, {sT0}, {WS_F}")
        A(f"v_and_b32 v{t}, 1, v{t}")
        A(f"v_mul_u32_u24 v{t}, {11*8192}, v{t}")
        A(f"v_add_u32 v{t}, {sT0}, v{t}")
        A(f"v_cmp_gt_u32 vcc, 32, v{vL}")
        A(f"s_lshl_b32 {sT1}, {sW}, 10")
        self.nop(1)
        A(f"v_cndmask_b32 v{t}, v{t}, v{t+2}, vcc")
        A(f"v_add3_u32 v{vXR+1}, v{t}, v{t+1}, {sT1}")
        if self.k0_late:
            for t in range(4):
                A(f"s_waitcnt vmcnt({[2,2,2,3][t]})")
                self.kv_load("K", 0, t)
        else:
            A(f"s_waitcnt vmcnt({0 if self.k0_first else 4})")
        if self.diag == 2: self.stamp(1)
        self.bsel(vXR, 0, 0); self.bsel(vXR, 1, 1)
        A(f"s_lshl_b32 {sT0}, {sW}, 10"); A(f"s_add_u32 {sT0}, {sT0}, {L_P0}")
        A(f"v_mfma_f32_16x16x32_bf16 {vr(vACC,4)}, {vr(vDF,4)}, {vr(vBF,4)}, 0")
        A(f"v_mfma_f32_16x16x32_bf16 {vr(vAC2,4)}, {vr(vDF+8,4)}, {vr(vBF,4)}, 0")
        A(f"v_mfma_f32_16x16x32_bf16 {vr(vACC,4)}, {vr(vDF+4,4)}, {vr(vBF+4,4)}, {vr(vACC,4)}")
        A(f"v_mfma_f32_16x16x32_bf16 {vr(vAC2,4)}, {vr(vDF+12,4)}, {vr(vBF+4,4)}, {vr(vAC2,4)}")
        A(f"v_lshl_add_u32 v{vT0}, v{vL}, 4, {sT0}")
        self.nop(7)
        A(f"ds_write_b128 v{vT0}, {vr(vACC,4)}")
        A(f"ds_write_b128 v{vT0}, {vr(vAC2,4)} offset:8192")
        A("s_waitcnt lgkmcnt(0)")
        A("s_barrier")
        if self.diag == 2: self.stamp(2)
        A(f"s_cmp_lg_u32 {sW}, 0"); A(f"s_cbranch_scc1 {lj}")
        d = vSP; d2 = vK + 96
        for w in range(8): A(f"ds_read_b128 {vr(d+4*w,4)}, v{vT0} offset:{1024*w}")
        for w in range(4): A(f"ds_read_b128 {vr(d2+4*w,4)}, v{vT0} offset:{8192+1024*w}")
        A(f"s_lshl_b32 {sT0}, {sH}, 3"); A(f"s_add_u32 {sT0}, {sT0}, {sJ}"); A(f"s_lshl_b32 {sT0}, {sT0}, 10")
        A(f"s_add_u32 {sT0}, {sT0}, {WS_Q}")
        A(f"s_lshl_b32 {sT1}, {sFT}, 3"); A(f"s_add_u32 {sT1}, {sT1}, {sJ}"); A(f"s_lshl_b32 {sT1}, {sT1}, 10")
        A(f"s_add_u32 {sT1}, {sT1}, {WS_F}")
        A("s_waitcnt lgkmcnt(4)")
        for w in range(4, 8): A(f"ds_read_b128 {vr(d2+4*w,4)}, v{vT0} offset:{8192+1024*w}")
        for w in range(1, 8):
            for r in range(4): A(f"v_add_f32 v{d+r}, v{d+r}, v{d+4*w+r}")
        A(f"buffer_store_dwordx4 {vr(d,4)}, v{vT1}, {srd(R_WS)}, {sT0} offen sc1")
        A("s_waitcnt lgkmcnt(0)")
        for w in range(1, 8):
            for r in range(4): A(f"v_add_f32 v{d2+r}, v{d2+r}, v{d2+4*w+r}")
        A(f"buffer_store_dwordx4 {vr(d2,4)}, v{vT1}, {srd(R_WS)}, {sT1} offen sc1")
        for k in range(4): A(f"v_mov_b32 v{vTM+k}, -1")
        if not self.two_kernel:
            A(f"s_lshl_b32 {sT0}, s2, 11")
            A(f"buffer_store_dwordx4 {vr(vTM,4)}, v{vT1}, {srd(R_WS)}, {sT0} offen sc1")
            A(f"buffer_store_dwordx4 {vr(vTM,4)}, v{vT1}, {srd(R_WS)}, {sT0} offen offset:1024 sc1")
        A(f"s_lshl_b32 {sT0}, s2, 3"); A(f"s_add_u32 {sT0}, {sT0}, {WS_S}")
        A("s_mov_b64 exec, 1")
        A(f"buffer_store_dwordx2 {vr(vTM,2)}, v{vT1}, {srd(R_WS)}, {sT0} offen sc1")
        A("s_mov_b64 exec, -1")
        self.nop(2)
        self.L(lj)

    def items(self, LA):
        A = self.A
        it = []
        ntw = " nt" if self.nt_w else ""
        def add(name, fn, dep=None, glue=False): it.append(dict(name=name, fn=fn, dep=dep, glue=glue))
        def grp(kind, G, dep):
            for t in range(4): add(f"{kind}{G}_{t}", lambda t=t: self.kv_load(kind, G, t), dep if t == 0 else None)
        dma = []
        for t in range(2):
            def fn(t=t):
                A(f"s_add_u32 m0, {sWDL}, {t*1024}")
                A(f"s_movk_i32 {sTD}, {t*8192}")
                A(f"buffer_load_dwordx4 v{vOD}, {srd(R_WD)}, {sTD} offen{ntw} lds")
            dma.append((f"wd{t}", fn, "qred"))
        wo = []
        for t in range(16):
            def fn(t=t):
                A(f"s_add_u32 m0, {sWOL}, {t*1024}")
                A(f"s_mov_b32 {sTD}, {(32*(t>>2) + 2*(t&3))*1024}")
                A(f"buffer_load_dwordx4 v{vOW}, {srd(R_WO)}, {sTD} offen{ntw} lds")
            wo.append((f"wo{t}", fn, None))
        dma = wo[:14] + dma + wo[14:]
        def put(slot):
            for _ in range(self.wo_sched[slot]):
                n, fn, dep = dma.pop(0); add(n, fn, dep)
        def ga():
            A("s_mov_b32 exec_hi, 0xffff")
            A(f"buffer_load_dwordx4 {vr(vGA,4)}, v{vXR+1}, {srd(R_WS)}, 0 offen sc1")
            A("s_mov_b32 exec_hi, -1")
        def fl():
            A(f"v_lshlrev_b32 v{vT0}, 2, v{vL}")
            A(f"global_load_dword v{vTM+7}, v{vT0}, s[{P_DBG}:{P_DBG+1}] sc1")
        ga_pos = None
        for G in range(8):
            grp("K", G, None); put(G)
            if G == 1:
                def gx():
                    A(f"s_lshl_b32 {sT1}, {sB}, 10")
                    A(f"buffer_load_dwordx4 {vr(vQF,4)}, v{vT1}, {srd(R_X)}, {sT1} offen")
                add("gx", gx)
                add("gw", lambda: A(f"buffer_load_dwordx4 {vr(vQF+4,4)}, v{vT1}, {srd(R_GW)}, 0 offen"))
            if G == self.ga_after: add("fl", fl); ga_pos = len(it) + LA
        add("fl2", fl, "qred")
        it.insert(min(ga_pos, [n for n, x in enumerate(it) if x["name"] == "K7_3"][0]), dict(name="ga", fn=ga, dep="flchk", glue=False))
        def st(k):
            def fn():
                if k == 0:
                    A(f"s_lshl_b32 {sT0}, {sBH}, 5"); A(f"s_add_u32 {sT0}, {sT0}, {WS_S}")
                    A(f"v_mov_b32 v{vT0}, 0")
                A(f"buffer_load_dwordx4 {vr(vXR+4*k,4)}, v{vT0}, {srd(R_WS)}, {sT0} offen offset:{16*k} sc1")
            return fn
        for G in range(8):
            if G == 7:
                add("st0", st(0), self.st_dep); add("st1", st(1), glue=True)
            grp("V", G, f"qk{G-1}" if G else None); put(8 + G)
        return it

    def step_gate(self):
        A = self.A
        x, w = vQF, vQF + 4
        t = vTM
        acc = vT0
        A(f"v_mov_b32 v{acc}, 0")
        for k in range(4):
            A(f"v_lshlrev_b32 v{t}, 16, v{x+k}"); A(f"v_lshlrev_b32 v{t+1}, 16, v{w+k}")
            A(f"v_and_b32 v{t+2}, 0xffff0000, v{x+k}"); A(f"v_and_b32 v{t+3}, 0xffff0000, v{w+k}")
            A(f"v_mul_f32 v{t}, v{t}, v{t+1}"); A(f"v_mul_f32 v{t+2}, v{t+2}, v{t+3}")
            A(f"v_cvt_pk_bf16_f32 v{t}, v{t}, v{t+2}")
            A(f"v_lshlrev_b32 v{t+1}, 16, v{t}"); A(f"v_and_b32 v{t}, 0xffff0000, v{t}")
            A(f"v_add_f32 v{acc}, v{acc}, v{t+1}"); A(f"v_add_f32 v{acc}, v{acc}, v{t}")
        for ctl in ("quad_perm:[1,0,3,2]", "quad_perm:[2,3,0,1]", "row_half_mirror", "row_mirror"):
            self.dpp_add(acc, ctl)
        self.swap_reduce("v_add_f32", acc, t, 16)
        self.swap_reduce("v_add_f32", acc, t, 32)
        A(f"v_cvt_pk_bf16_f32 v{acc}, v{acc}, v{acc}")
        A(f"v_and_b32 v{acc}, 0xffff0000, v{acc}")
        A(f"v_mul_f32 v{acc}, {f32(-math.log2(math.e))}, v{acc}")
        A(f"v_exp_f32 v{acc}, v{acc}")
        self.nop(1)
        A(f"v_add_f32 v{acc}, 1.0, v{acc}")
        A(f"v_rcp_f32 v{acc}, v{acc}")
        self.nop(1)
        A(f"v_cvt_pk_bf16_f32 v{acc}, v{acc}, v{acc}")
        A(f"v_and_b32 v{acc}, 0xffff0000, v{acc}")
        A(f"v_sub_f32 v{t}, 1.0, v{acc}")
        A(f"v_cvt_pk_bf16_f32 v{t}, v{t}, v{t}")
        A(f"v_and_b32 v{t}, 0xffff0000, v{t}")
        self.nop(1)
        A(f"v_readfirstlane_b32 {sG}, v{acc}")
        A(f"v_readfirstlane_b32 {sG1}, v{t}")

    def step_flag(self):
        A = self.A
        sk = self.label("noflag")
        A(f"s_cmp_lg_u32 {sW}, 0"); A(f"s_cbranch_scc1 {sk}")
        if self.dbgdiag:
            A(f"s_and_b32 {sT0}, s2, 31"); A(f"s_add_u32 {sT0}, {sT0}, 32"); A(f"s_lshl_b32 {sT0}, {sT0}, 2")
        else:
            A(f"s_and_b32 {sT0}, s2, 63"); A(f"s_lshl_b32 {sT0}, {sT0}, 2")
        A(f"v_mov_b32 v{vTM+5}, {sT0}"); A(f"v_mov_b32 v{vTM+6}, 1")
        A("s_mov_b64 exec, 1")
        A(f"global_atomic_add v{vTM+5}, v{vTM+6}, s[{P_DBG}:{P_DBG+1}]")
        A("s_mov_b64 exec, -1")
        if self.diag == 2: self.stamp(3)
        self.L(sk)

    def step_flchk(self, full):
        A = self.A
        ok = self.label("flok"); sp = self.label("flspin")
        def test():
            A(f"v_cmp_gt_u32 vcc, {8 if self.dbgdiag else 4}, v{vTM+7}")
            if not full: A("s_and_b64 vcc, vcc, s[74:75]")
            if self.dbgdiag: A("s_mov_b32 s0, 0"); A("s_mov_b32 s1, -1"); A("s_and_b64 vcc, vcc, s[0:1]")
        test()
        A(f"s_cbranch_vccz {ok}")
        A(f"s_mov_b32 {sCNT}, 0")
        A(f"v_lshlrev_b32 v{vT0}, 2, v{vL}")
        self.L(sp)
        A(f"s_sleep {self.sleep}")
        A(f"global_load_dword v{vTM+7}, v{vT0}, s[{P_DBG}:{P_DBG+1}] sc1")
        A(f"s_add_u32 {sCNT}, {sCNT}, 1")
        A(f"s_cmp_ge_u32 {sCNT}, {SPIN}")
        A("s_waitcnt vmcnt(0)")
        A(f"s_cbranch_scc1 {ok}")
        test()
        A(f"s_cbranch_vccnz {sp}")
        self.L(ok)
        if self.diag == 0 and not full: self.stamp(1)

    def step_qred(self):
        A = self.A
        t = vTM
        A(f"v_and_b32 v{t+1}, 7, v{vL}"); A(f"v_lshrrev_b32 v{t+2}, 3, v{vL}")
        A(f"s_lshl_b32 {sT0}, {sW}, 9"); A(f"s_add_u32 {sT0}, {sT0}, {L_QP}")
        A(f"v_lshl_add_u32 v{t}, v{t+2}, 7, {sT0}")
        A(f"v_lshl_add_u32 v{t}, v{t+1}, 2, v{t}")
        A("s_mov_b32 exec_hi, 0")
        for r in range(4): A(f"ds_write_b32 v{t}, v{vGA+r} offset:{32*r}")
        A("s_mov_b32 exec_lo, 0"); A("s_mov_b32 exec_hi, 0xffff")
        A(f"s_lshl_b32 {sT0}, {sW}, 8"); A(f"s_add_u32 {sT0}, {sT0}, {L_FP - 512}")
        A(f"v_lshl_add_u32 v{t}, v{vL}, 4, {sT0}")
        A(f"ds_write_b128 v{t}, {vr(vGA,4)}")
        A("s_mov_b64 exec, -1")
        A("s_waitcnt lgkmcnt(0)")
        A("s_barrier")
        d = vSP
        A(f"v_lshlrev_b32 v{t}, 3, v{vL}")
        for w in range(8): A(f"ds_read_b64 {vr(d+2*w,2)}, v{t} offset:{L_QP + 512*w}")
        e = vSP + 16
        A(f"s_and_b32 {sT0}, {sSL}, 1"); A(f"s_lshl_b32 {sT0}, {sT0}, 3")
        A(f"v_lshl_add_u32 v{t+3}, v{t+2}, 8, {sT0}")
        A(f"v_lshl_add_u32 v{t+3}, v{t+1}, 4, v{t+3}")
        A(f"ds_read_b64 {vr(e,2)}, v{t+3} offset:{L_FP}")
        A(f"ds_read_b64 {vr(e+2,2)}, v{t+3} offset:{L_FP+128}")
        A("s_waitcnt lgkmcnt(2)")
        for w in range(1, 8):
            A(f"v_add_f32 v{d}, v{d}, v{d+2*w}"); A(f"v_add_f32 v{d+1}, v{d+1}, v{d+2*w+1}")
        A(f"v_cvt_pk_bf16_f32 v{d}, v{d}, v{d+1}")
        A(f"s_lshl_b32 {sT0}, {sW}, 8"); A(f"s_add_u32 {sT0}, {sT0}, {L_QS}")
        A(f"v_lshl_add_u32 v{t}, v{vL}, 2, {sT0}")
        A(f"ds_write_b32 v{t}, v{d}")
        A(f"v_lshl_add_u32 v{t}, v{vG}, 4, {sT0}")
        A(f"v_and_b32 v{t+3}, 8, v{vL}")
        A(f"v_lshl_add_u32 v{t}, v{t+3}, 3, v{t}")
        A("s_waitcnt lgkmcnt(0)")
        for T in range(2): A(f"ds_read_b128 {vr(vQF+4*T,4)}, v{t} offset:{128*T}")
        A(f"v_permlane32_swap_b32 v{e}, v{e+1}"); A(f"v_permlane32_swap_b32 v{e+2}, v{e+3}")
        self.nop(1)
        A(f"v_add_f32 v{e}, v{e}, v{e+1}"); A(f"v_add_f32 v{e+2}, v{e+2}, v{e+3}")
        self.swap_reduce("v_add_f32", e, e + 1, 16)
        self.swap_reduce("v_add_f32", e + 2, e + 3, 16)
        self.dpp_add(e, "row_ror:8"); self.dpp_add(e + 2, "row_ror:8")
        A(f"v_cvt_pk_bf16_f32 v{e}, v{e}, v{e+2}")
        A(f"v_and_b32 v{e+2}, 0xffff0000, v{e}")
        A(f"v_lshlrev_b32 v{e}, 16, v{e}")
        k0 = math.sqrt(2.0 / math.pi)
        A(f"v_mul_f32 v{e+1}, v{e}, v{e}")
        A(f"v_mov_b32 v{e+3}, {f32(-2.0 * k0 * math.log2(math.e))}")
        A(f"v_mul_f32 v{e+1}, {f32(0.044715)}, v{e+1}")
        A(f"v_add_f32 v{e+1}, 1.0, v{e+1}")
        A(f"v_mul_f32 v{e+1}, v{e+1}, v{e}")
        A(f"v_mul_f32 v{e+1}, v{e+1}, v{e+3}")
        A(f"v_exp_f32 v{e+1}, v{e+1}")
        self.nop(1)
        A(f"v_add_f32 v{e+1}, 1.0, v{e+1}")
        A(f"v_rcp_f32 v{e+1}, v{e+1}")
        self.nop(1)
        A(f"v_mul_f32 v{e}, v{e}, v{e+1}")
        A(f"v_cvt_pk_bf16_f32 v{e}, v{e}, v{e}")
        A(f"v_and_b32 v{e}, 0xffff0000, v{e}")
        A(f"v_mul_f32 v{e}, v{e}, v{e+2}")
        A(f"v_cvt_pk_bf16_f32 v{e}, v{e}, v{e}")
        A(f"s_lshl_b32 {sT0}, {sW}, 5"); A(f"s_add_u32 {sT0}, {sT0}, {L_HS}")
        A(f"v_lshrrev_b32 v{t+2}, 5, v{vL}")
        A(f"v_lshl_add_u32 v{t+2}, v{t+2}, 3, v{t+1}")
        A(f"v_lshl_add_u32 v{t+2}, v{t+2}, 1, {sT0}")
        A(f"ds_write_b16 v{t+2}, v{e}")
        A(f"v_lshl_add_u32 v{t+2}, v{vG}, 3, {sT0}")
        A("s_waitcnt lgkmcnt(0)")
        A(f"ds_read_b64 {vr(vAC2,2)}, v{t+2}")
        A(f"v_cmp_eq_u32 vcc, 0, v{t+1}")
        A("s_waitcnt lgkmcnt(0)")
        self.nop(1)
        A(f"v_cndmask_b32 v{vAC2}, 0, v{vAC2}, vcc"); A(f"v_cndmask_b32 v{vAC2+1}, 0, v{vAC2+1}, vcc")

    def qk_combine(self, G):
        A = self.A
        a = vSP + 4 * G; b = vQF + 8 + 4 * (G & 1)
        for r in range(4): A(f"v_permlane32_swap_b32 v{a+r}, v{b+r}")
        for r in range(4): A(f"v_add_f32_dpp v{a+r}, v{b+r}, v{a+r} row_ror:8 row_mask:0xf bank_mask:0xf")
    def step_qk(self, G):
        A = self.A
        a = vSP + 4 * G; b = vQF + 8 + 4 * (G & 1); k = vK + 16 * G
        A(f"v_mfma_f32_16x16x32_bf16 {vr(a,4)}, {vr(k,4)}, {vr(vQF,4)}, 0")
        A(f"v_mfma_f32_16x16x32_bf16 {vr(b,4)}, {vr(k+8,4)}, {vr(vQF,4)}, 0")
        A(f"v_mfma_f32_16x16x32_bf16 {vr(a,4)}, {vr(k+4,4)}, {vr(vQF+4,4)}, {vr(a,4)}")
        A(f"v_mfma_f32_16x16x32_bf16 {vr(b,4)}, {vr(k+12,4)}, {vr(vQF+4,4)}, {vr(b,4)}")
        if G > 0:
            self.nop(4)
            self.qk_combine(G - 1)

    def step_softmax(self):
        A = self.A
        t = vTM
        m = vT1
        self.qk_combine(7)
        A(f"v_max3_f32 v{m}, v{vSP}, v{vSP+1}, v{vSP+2}")
        for k in range(3, 31, 2): A(f"v_max3_f32 v{m}, v{m}, v{vSP+k}, v{vSP+k+1}")
        A(f"v_max_f32 v{m}, v{m}, v{vSP+31}")
        self.swap_reduce("v_max_f32", m, t, 16)
        self.swap_reduce("v_max_f32", m, t, 32)
        A(f"s_lshl_b32 {sT0}, {sW}, 2")
        A(f"v_mov_b32 v{t+4}, {sT0}")
        A("s_mov_b64 exec, 1")
        A(f"ds_write_b32 v{t+4}, v{m} offset:{L_MX}")
        A("s_mov_b64 exec, -1")
        A(f"v_mov_b32 v{t+5}, 0")
        A("s_waitcnt lgkmcnt(0)")
        A("s_barrier")
        A(f"ds_read_b128 {vr(vBF,4)}, v{t+5} offset:{L_MX}")
        A(f"ds_read_b128 {vr(vBF+4,4)}, v{t+5} offset:{L_MX+16}")
        A("s_waitcnt lgkmcnt(0)")
        A(f"v_max3_f32 v{m}, v{vBF}, v{vBF+1}, v{vBF+2}")
        A(f"v_max3_f32 v{m}, v{m}, v{vBF+3}, v{vBF+4}")
        A(f"v_max3_f32 v{m}, v{m}, v{vBF+5}, v{vBF+6}")
        A(f"v_max_f32 v{m}, v{m}, v{vBF+7}")
        A(f"v_mul_f32 v{m}, {sC}, v{m}")
        l = vT0
        for k in range(32):
            A(f"v_fma_f32 v{vSP+k}, v{vSP+k}, {sC}, -v{m}")
        for k in range(32):
            A(f"v_exp_f32 v{vSP+k}, v{vSP+k}")
        A(f"v_add_f32 v{l}, v{vSP}, v{vSP+1}"); A(f"v_add_f32 v{t}, v{vSP+2}, v{vSP+3}")
        for k in range(4, 32, 2):
            A(f"v_add_f32 v{l}, v{l}, v{vSP+k}"); A(f"v_add_f32 v{t}, v{t}, v{vSP+k+1}")
        A(f"v_add_f32 v{l}, v{l}, v{t}")
        self.swap_reduce("v_add_f32", l, t, 16)
        self.swap_reduce("v_add_f32", l, t, 32)
        A("s_mov_b64 exec, 1")
        A(f"ds_write_b32 v{t+4}, v{l} offset:{L_LS}")
        A("s_mov_b64 exec, -1")
        for k in range(32):
            A(f"v_cvt_pk_bf16_f32 v{vSP+k}, v{vSP+k}, v{vSP+k}")
        A(f"v_mov_b32 v{vAC2+2}, v{m}")
        A("s_waitcnt lgkmcnt(0)")
        A("s_barrier")
        skip = self.label("nopub")
        A(f"s_cmp_lg_u32 {sW}, 0"); A(f"s_cbranch_scc1 {skip}")
        A(f"ds_read_b128 {vr(vBF,4)}, v{t+5} offset:{L_LS}")
        A(f"ds_read_b128 {vr(vBF+4,4)}, v{t+5} offset:{L_LS+16}")
        A(f"s_lshl_b32 {sT0}, {sBH}, 2"); A(f"s_add_u32 {sT0}, {sT0}, {sS}")
        A(f"s_lshl_b32 {sT0}, {sT0}, 3"); A(f"s_add_u32 {sT0}, {sT0}, {WS_S}")
        A("s_waitcnt lgkmcnt(0)")
        for k in range(1, 8): A(f"v_add_f32 v{vBF}, v{vBF}, v{vBF+k}")
        A(f"v_min_u32 v{t+1}, -2, v{vBF}")
        A(f"v_mov_b32 v{t}, v{m}")
        A("s_mov_b64 exec, 1")
        A(f"buffer_store_dwordx2 {vr(t,2)}, v{t+5}, {srd(R_WS)}, {sT0} offen sc1")
        A("s_mov_b64 exec, -1")
        self.L(skip)

    def step_pv(self, G):
        A = self.A
        base = vX if G == 0 else vK + 16 * (G - 1)
        def build(k, bset):
            for u in range(4): A(f"v_and_b32 v{vBF+4*bset+u}, v{vSP+k}, v{vM+u}")
        for r in range(4):
            k = 4 * G + r
            if k == 0: build(0, 0)
            if k + 1 < 32: build(k + 1, (k + 1) & 1)
            else: self.nop(2)
            c = "0" if k == 0 else vr(vACC, 4)
            A(f"v_mfma_f32_16x16x32_bf16 {vr(vACC,4)}, {vr(base+4*r,4)}, {vr(vBF+4*(k&1),4)}, {c}")

    WF = [vQF, vK + 16 * 7, vX, vK]
    def step_wof(self):
        A = self.A
        t = vTM
        A(f"v_lshrrev_b32 v{t}, 2, v{vI}"); A(f"v_and_b32 v{t+1}, 3, v{vI}")
        A(f"v_lshlrev_b32 v{t+1}, 3, v{t+1}")
        A(f"v_lshl_add_u32 v{t+1}, v{t}, 7, v{t+1}")
        A(f"v_lshl_add_u32 v{t+2}, v{vG}, 10, v{t+1}")
        A(f"v_add_u32 v{vOQ}, {sWOL}, v{t+2}")
        A(f"v_lshl_add_u32 v{t+2}, v{vG}, 9, v{t+1}")
        A(f"v_add_u32 v{vOF}, {sWDL}, v{t+2}")
        for tau in range(4): A(f"ds_read_b64_tr_b16 {vr(t+2*tau,2)}, v{vOF} offset:{tau*32}")
        for tau in range(4):
            for T in range(4):
                for hi in range(2):
                    A(f"ds_read_b64_tr_b16 {vr(self.WF[tau]+4*T+2*hi,2)}, v{vOQ} offset:{T*4096 + hi*512 + tau*32}")
            if tau == 0:
                A("s_waitcnt lgkmcnt(6)")
                for ta in range(4):
                    A(f"v_mfma_f32_16x16x16_bf16 {vr(vDF+4*ta,4)}, {vr(vAC2,2)}, {vr(t+2*ta,2)}, 0")
            else:
                A("s_waitcnt lgkmcnt(4)")
        for k in range(16): A(f"v_mul_f32 v{vDF+k}, {sG1}, v{vDF+k}")
        A("s_waitcnt lgkmcnt(0)")

    def step_scale(self):
        A = self.A
        t = vTM
        s = vXR
        ok = self.label("stok"); sp = self.label("stspin")
        A(f"s_mov_b32 {sCNT}, 0")
        A(f"v_max3_u32 v{t}, v{s+1}, v{s+3}, v{s+5}")
        A(f"v_max_u32 v{t}, v{t}, v{s+7}")
        A(f"v_cmp_eq_u32 vcc, -1, v{t}")
        A(f"s_cbranch_vccz {ok}")
        self.L(sp)
        A(f"buffer_load_dwordx4 {vr(s,4)}, v{vT0}, {srd(R_WS)}, {sT0} offen sc1")
        A(f"buffer_load_dwordx4 {vr(s+4,4)}, v{vT0}, {srd(R_WS)}, {sT0} offen offset:16 sc1")
        A(f"s_add_u32 {sCNT}, {sCNT}, 1")
        A(f"s_cmp_ge_u32 {sCNT}, {SPIN}")
        A("s_waitcnt vmcnt(0)")
        A(f"s_cbranch_scc1 {ok}")
        A(f"v_max3_u32 v{t}, v{s+1}, v{s+3}, v{s+5}")
        A(f"v_max_u32 v{t}, v{t}, v{s+7}")
        A(f"v_cmp_eq_u32 vcc, -1, v{t}")
        A(f"s_cbranch_vccnz {sp}")
        self.L(ok)
        A(f"v_max3_f32 v{t}, v{s}, v{s+2}, v{s+4}")
        A(f"v_max_f32 v{t}, v{t}, v{s+6}")
        for k in range(4): A(f"v_sub_f32 v{s+2*k}, v{s+2*k}, v{t}")
        A(f"v_sub_f32 v{t+1}, v{vAC2+2}, v{t}")
        for k in range(4): A(f"v_exp_f32 v{s+2*k}, v{s+2*k}")
        A(f"v_exp_f32 v{t+1}, v{t+1}")
        A(f"v_mul_f32 v{t}, v{s}, v{s+1}")
        for k in range(1, 4): A(f"v_fmac_f32 v{t}, v{s+2*k}, v{s+2*k+1}")
        A(f"v_rcp_f32 v{t}, v{t}")
        A(f"v_mul_f32 v{t+1}, {sG}, v{t+1}")
        A(f"v_mul_f32 v{vAC2+3}, v{t}, v{t+1}")
        A(f"v_and_b32 v{t}, 7, v{vI}")
        A(f"s_mul_i32 {sT1}, {sW}, 288"); A(f"s_add_u32 {sT1}, {sT1}, {L_OB}")
        A(f"v_lshl_add_u32 v{vOK}, v{vG}, 6, {sT1}")
        A(f"v_lshl_add_u32 v{vOK}, v{t}, 3, v{vOK}")
        A(f"v_mul_u32_u24 v{vOQ}, 288, v{t}")
        A(f"v_lshl_add_u32 v{vOQ}, v{vG}, 4, v{vOQ}")
        A(f"v_lshrrev_b32 v{t}, 2, v{vI}")
        A(f"v_lshl_add_u32 v{t}, v{vG}, 2, v{t}")
        A(f"v_lshlrev_b32 v{vOF}, 11, v{t}")
        A(f"s_lshl_b32 {sTF}, {sW}, 15")
        A(f"s_lshl_b32 {sT1}, {sB}, 18"); A(f"s_add_u32 {sTF}, {sTF}, {sT1}")
        A(f"s_lshl_b32 {sT1}, {sH}, 6"); A(f"s_add_u32 {sTF}, {sTF}, {sT1}")
        A(f"s_lshl_b32 {sT1}, {sS}, 4"); A(f"s_add_u32 {sTF}, {sTF}, {sT1}")
        A(f"v_cmp_gt_u32 s[0:1], 2, v{vG}")
        A(f"v_lshlrev_b32 v{vOD}, 4, v{vL}")
        A(f"s_lshl_b32 {sTQ}, s2, 11")
        A(f"v_and_b32 v{t}, 1, v{vG}"); A(f"v_lshrrev_b32 v{t+1}, 1, v{vG}")
        A(f"v_lshl_add_u32 v{t}, v{t}, 1, v{t+1}")
        A(f"s_lshl_b32 {sT1}, s2, 3")
        A(f"v_lshl_add_u32 v{vT1}, v{t}, 1, {sT1}")

    def step_tail(self):
        A = self.A
        t = vTM
        A("s_mov_b32 exec_lo, 0x00ff00ff"); A("s_mov_b32 exec_hi, 0x00ff00ff")
        self.nop(6)
        for r in range(4): A(f"v_mul_f32 v{vACC+r}, v{vACC+r}, v{vAC2+3}")
        A(f"v_cvt_pk_bf16_f32 v{t}, v{vACC}, v{vACC+1}")
        A(f"v_cvt_pk_bf16_f32 v{t+1}, v{vACC+2}, v{vACC+3}")
        A(f"ds_write_b64 v{vOK}, {vr(t,2)}")
        A("s_mov_b64 exec, -1")
        A("s_waitcnt lgkmcnt(0)")
        A("s_barrier")
        if self.diag == 0: self.stamp(2)
        af = vSP
        for T in range(4): A(f"ds_read_b128 {vr(af+4*T,4)}, v{vOQ} offset:{L_OB + 64*T}")
        for T in range(4):
            A(f"s_waitcnt lgkmcnt({3-T})" if not self.stamps else "s_waitcnt lgkmcnt(0)")
            for tau in range(4):
                A(f"v_mfma_f32_16x16x32_bf16 {vr(vDF+4*tau,4)}, {vr(af+4*T,4)}, {vr(self.WF[tau]+4*T,4)}, {vr(vDF+4*tau,4)}")
        self.nop(5)
        for tau in range(4):
            d = vDF + 4 * tau
            A(f"v_add_f32 v{d}, v{d}, v{d+1}"); A(f"v_add_f32 v{d+2}, v{d+2}, v{d+3}")
            A(f"v_add_f32 v{d}, v{d}, v{d+2}")
        self.nop(1)
        A(f"v_permlane16_swap_b32 v{vDF}, v{vDF+4}")
        A(f"v_permlane16_swap_b32 v{vDF+8}, v{vDF+12}")
        self.nop(1)
        A(f"v_add_f32 v{vDF}, v{vDF}, v{vDF+4}")
        A(f"v_add_f32 v{vDF+8}, v{vDF+8}, v{vDF+12}")
        A(f"v_cndmask_b32 v{t}, v{vDF+8}, v{vDF}, s[0:1]")
        A(f"v_min_u32 v{t}, -2, v{t}")
        self.nop(2)
        for k in range(1, 4):
            A(f"v_mov_b32_dpp v{t+k}, v{t} quad_perm:[{k},{k},{k},{k}] row_mask:0xf bank_mask:0xf")
        A("s_mov_b32 exec_lo, 0x11111111"); A("s_mov_b32 exec_hi, 0x11111111")
        A(f"buffer_store_dwordx4 {vr(t,4)}, v{vOF}, {srd(R_WS)}, {sTF} offen{'' if self.two_kernel else ' sc1'}")
        A("s_mov_b64 exec, -1")
        if self.diag == 0: self.stamp(3)

    def consumer(self, poll=True):
        A = self.A
        y = vSP
        t = vTM + 4
        sp = self.label("yspin"); ok = self.label("yok")
        A(f"s_mov_b32 {sCNT}, 0")
        self.L(sp)
        fl = " sc1" if poll else ""
        A(f"buffer_load_dwordx4 {vr(y,4)}, v{vOD}, {srd(R_WS)}, {sTQ} offen{fl}")
        A(f"buffer_load_dwordx4 {vr(y+4,4)}, v{vOD}, {srd(R_WS)}, {sTQ} offen offset:1024{fl}")
        if poll:
            A(f"s_add_u32 {sCNT}, {sCNT}, 1")
            A(f"s_cmp_ge_u32 {sCNT}, {SPIN}")
            A("s_waitcnt vmcnt(0)")
            A(f"s_cbranch_scc1 {ok}")
            A(f"v_max3_u32 v{t}, v{y}, v{y+1}, v{y+2}")
            A(f"v_max3_u32 v{t+1}, v{y+3}, v{y+4}, v{y+5}")
            A(f"v_max3_u32 v{t}, v{t}, v{y+6}, v{y+7}")
            A(f"v_max_u32 v{t}, v{t}, v{t+1}")
            A(f"v_cmp_eq_u32 vcc, -1, v{t}")
            A(f"s_cbranch_vccnz {sp}")
            self.L(ok)
        else:
            A("s_waitcnt vmcnt(0)")
        for k in range(4): A(f"v_add_f32 v{y+k}, v{y+k}, v{y+4+k}")
        self.nop(1)
        A(f"v_permlane32_swap_b32 v{y}, v{y+1}"); A(f"v_permlane32_swap_b32 v{y+2}, v{y+3}")
        self.nop(1)
        A(f"v_add_f32 v{y}, v{y}, v{y+1}"); A(f"v_add_f32 v{y+2}, v{y+2}, v{y+3}")
        self.nop(2)
        A(f"v_permlane16_swap_b32 v{y}, v{y+2}")
        self.nop(1)
        A(f"v_add_f32 v{y}, v{y}, v{y+2}")
        for ctl in ("quad_perm:[1,0,3,2]", "quad_perm:[2,3,0,1]", "row_half_mirror", "row_mirror"):
            self.dpp_add(y, ctl)
        A(f"v_cvt_pk_bf16_f32 v{y}, v{y}, v{y}")
        A("s_mov_b32 exec_lo, 0x00010001"); A("s_mov_b32 exec_hi, 0x00010001")
        A(f"global_store_short v{vT1}, v{y}, s[{P_OUT}:{P_OUT+1}]")

    def steps(self, idx):
        S = []
        def add(name, needs, fn): S.append(dict(name=name, needs=needs, fn=fn))
        add("flag", ["K0_3"], self.step_flag)
        add("gate", ["gw"], self.step_gate)
        add("flchk", ["fl"], lambda: self.step_flchk(False))
        add("qred", ["ga"], self.step_qred)
        for G in range(8): add(f"qk{G}", [f"K{G}_3"], lambda G=G: self.step_qk(G))
        add("flchk2", ["fl2"], lambda: self.step_flchk(True))
        add("softmax", [], self.step_softmax)
        lastdma = max(idx["wo15"], idx["wd1"])
        placed = False
        for G in range(8):
            if G == 7: add("scale", ["st1"], self.step_scale)
            if not placed and G >= 2 and idx[f"V{G}_3"] > lastdma:
                add("wof", ["wo15", "wd1"], self.step_wof); placed = True
            add(f"pv{G}", [f"V{G}_3"], lambda G=G: self.step_pv(G))
        names = [s["name"] for s in S]
        assert placed and names.index("wof") < names.index("scale")
        add("tail", [], self.step_tail)
        return S

    def schedule(self, W, LA):
        items = self.items(LA)
        idx = {it["name"]: n for n, it in enumerate(items)}
        steps = self.steps(idx)
        issued = 4
        comp = -1; done = set(); pos = -1
        for st in steps:
            need = max([idx[n] for n in st["needs"]], default=-1)
            pos = max(pos, need)
            def issue(la, w):
                nonlocal issued, comp
                while issued < len(items):
                    it = items[issued]
                    if not it["glue"]:
                        if issued > pos + la: break
                        if it["dep"] and it["dep"] not in done:
                            assert issued > need, (st["name"], it["name"])
                            break
                    if issued - (comp + 1) >= w:
                        self.A(f"s_waitcnt vmcnt({w-1})"); comp = issued - w
                    it["fn"](); issued += 1
            issue(LA, W)
            if comp < need or st["name"] == "flag":
                self.A(f"s_waitcnt vmcnt({issued-1-need})"); comp = max(comp, need)
            if st["name"] in ("qred", "softmax", "wof"): issue(LA + self.boost, W + self.boost)
            self.o.append(f"    ; ---- {st['name']}")
            st["fn"](); done.add(st["name"])
            if st["name"] in self.stamp_after: self.stamp(self.stamp_after[st["name"]])
            if st["name"] == self.wavestamp: self.A("s_memrealtime s[26:27]")
            if st["name"] == "softmax" and self.Wv: LA = self.Wv - 1; W = self.Wv
        assert issued == len(items)

    def kd(self, name, vg, sg):
        return [f".amdhsa_kernel {name}", f"  .amdhsa_next_free_vgpr {vg}", f"  .amdhsa_next_free_sgpr {sg}",
                f"  .amdhsa_accum_offset {vg}", "  .amdhsa_group_segment_fixed_size 0", "  .amdhsa_kernarg_size 104",
                "  .amdhsa_user_sgpr_count 2", "  .amdhsa_user_sgpr_kernarg_segment_ptr 1",
                "  .amdhsa_system_sgpr_workgroup_id_x 1", ".end_amdhsa_kernel"]

    def build(self):
        A = self.A
        K1 = NAME + "_kernel"; K2 = "gated_mix_reduce_kernel"
        o = self.o
        o.append(HEADER.rstrip("\n"))
        if self.two_kernel:
            o.append(f"; @launch kernel={K1} grid=(256,1,1) block=(512,1,1) lds={LDS_BYTES}")
            o.append(f"; @launch kernel={K2} grid=(256,1,1) block=(64,1,1) lds=0")
        else:
            o.append(f"; @launch grid=(256,1,1) block=(512,1,1) lds={LDS_BYTES}")
        o += ['.amdgcn_target "amdgcn-amd-amdhsa--gfx950"', ".text", f".globl {K1}", ".p2align 8",
              f".type {K1},@function", f"{K1}:"]
        self.prologue()
        self.phase0()
        if self.p0only: pass
        elif self.W_even is not None:
            A(f"s_and_b32 {sT0}, {sXCC}, 1"); A("s_cbranch_scc1 L_odd")
            self.schedule(self.W_even, self.LA_even)
            A("s_branch L_join")
            self.L("L_odd")
            self.schedule(self.W, self.LA)
            self.L("L_join")
        else:
            self.schedule(self.W, self.LA)
        if self.wavestamp:
            A("s_waitcnt lgkmcnt(0)")
            A(f"s_add_u32 s28, s40, {STAMP_OFF + 65536}"); A("s_addc_u32 s29, s41, 0")
            A(f"s_lshl_b32 s8, s2, 3"); A(f"s_add_u32 s8, s8, {sW}"); A("s_lshl_b32 s8, s8, 3")
            A("v_mov_b32 v112, s8"); A("v_mov_b32 v114, s26"); A("v_mov_b32 v115, s27")
            A("s_mov_b64 exec, 1")
            A("global_store_dwordx2 v112, v[114:115], s[28:29]")
            A("s_mov_b64 exec, -1")
        A(f"s_cmp_lg_u32 {sW}, 0"); A("s_cbranch_scc1 L_end")
        if not self.two_kernel and not self.p0only:
            self.consumer()
        if self.dbgdiag:
            self.stamp(4)
            A("s_mov_b64 exec, 1")
            A("s_waitcnt lgkmcnt(0)")
            A("v_mov_b32 v1, 0")
            for k in range(5):
                A(f"v_mov_b32 v2, s{sST+2*k}"); A(f"v_not_b32 v3, v2")
                A(f"global_atomic_umax v1, v3, s[{P_DBG}:{P_DBG+1}] offset:{8*k}")
                A(f"global_atomic_umax v1, v2, s[{P_DBG}:{P_DBG+1}] offset:{8*k+4}")
                A("s_waitcnt vmcnt(0)")
        elif self.stamps:
            self.stamp(4)
            A("s_mov_b64 exec, 1")
            A("s_waitcnt lgkmcnt(0)")
            A(f"s_add_u32 s40, s40, {STAMP_OFF}"); A("s_addc_u32 s41, s41, 0")
            A("s_lshl_b32 s8, s2, 6"); A("v_mov_b32 v1, s8")
            for k in range(4):
                A(f"v_mov_b32 v{8+2*k}, s{sST+2*k}"); A(f"v_mov_b32 v{9+2*k}, s{sST+2*k+1}")
            A(f"v_mov_b32 v16, {sXCC}"); A("v_mov_b32 v17, 0")
            A(f"v_mov_b32 v18, s{sST+8}"); A(f"v_mov_b32 v19, s{sST+9}")
            A("global_store_dwordx4 v1, v[8:11], s[40:41]")
            A("global_store_dwordx4 v1, v[12:15], s[40:41] offset:16")
            A("global_store_dwordx4 v1, v[16:19], s[40:41] offset:32")
        self.L("L_end"); A("s_endpgm")
        if self.two_kernel:
            o += [f".globl {K2}", ".p2align 8", f".type {K2},@function", f"{K2}:"]
            A("s_cmp_ge_u32 s2, 256"); A("s_cbranch_scc1 L_end2")
            A(f"s_load_dwordx2 s[{P_OUT}:{P_OUT+1}], s[0:1], 80")
            A(f"s_load_dwordx2 s[{P_WS}:{P_WS+1}], s[0:1], 96")
            t = vTM
            A(f"v_bfe_u32 v{vG}, v0, 4, 2")
            A(f"v_lshlrev_b32 v{vOD}, 4, v0")
            A(f"s_lshl_b32 {sTQ}, s2, 11")
            A(f"v_and_b32 v{t}, 1, v{vG}"); A(f"v_lshrrev_b32 v{t+1}, 1, v{vG}")
            A(f"v_lshl_add_u32 v{t}, v{t}, 1, v{t+1}")
            A(f"s_lshl_b32 {sT1}, s2, 3")
            A(f"v_lshl_add_u32 v{vT1}, v{t}, 1, {sT1}")
            A("s_waitcnt lgkmcnt(0)")
            self.mk(R_WS, P_WS, None, WS_BYTES)
            self.consumer(poll=False)
            self.L("L_end2"); A("s_endpgm")
        o += ['.section .rodata,"a"', ".p2align 6"] + self.kd(K1, 256, 102)
        if self.two_kernel:
            o += [".p2align 6"] + self.kd(K2, 112, 102)
        return "\n".join(o) + "\n"

if __name__ == "__main__":
    import argparse, json
    ap = argparse.ArgumentParser()
    ap.add_argument("out"); ap.add_argument("--opt", default="{}")
    a = ap.parse_args()
    open(a.out, "w").write(Gen(**json.loads(a.opt)).build())
```

```python
import sys, struct, math

NAME = "gated_mix__mha_block_cached__geglu_ffn__decode"
HEADER = open("cdna_kernels/" + NAME + ".s.ref").read().split("; Override launch")[0]

def f32(x):
    return "0x%08x" % struct.unpack("<I", struct.pack("<f", x))[0]

L_QP = 0
L_QS = L_QP + 4096
L_FP = L_QS + 2048
L_HS = L_FP + 2048
L_MX = L_HS + 256
L_LS = L_MX + 64
L_OB = L_LS + 64
L_P0 = 11264
L_WD = L_P0 + 16384
L_WO = L_WD + 16384
L_END = L_WO + 131072
assert L_OB + 8 * 288 <= L_P0
L_P0 = L_WD
L_WD = 11264; L_P0 = L_WD; L_WO = L_WD + 16384; L_END = L_WO + 131072
LDS_BYTES = (L_END + 255) // 256 * 256

WS_Y = 0
WS_S = 0x80000
WS_Q = 0x81000
WS_F = WS_Q + 0x40000
WS_BYTES = WS_F + 176 * 1024
STAMP_OFF = 128 << 20
SPIN = "0x4000"

sW = "s3"
P_X, P_K, P_V, P_WQ, P_WO, P_WG, P_WU = 16, 18, 20, 22, 24, 28, 30
P_WD, P_GW, P_OUT, P_DBG, P_WS = 32, 34, 36, 38, 40
R_K, R_V, R_WQ, R_WO, R_X, R_GW, R_FT, R_WD, R_WS = 44, 48, 52, 56, 60, 64, 68, 76, 80
sH, sB, sS, sSL, sT0, sT1, sT2 = "s4", "s5", "s6", "s7", "s8", "s9", "s10"
sTK, sTV, sTQ, sTF, sTD = "s11", "s12", "s13", "s14", "s15"
sJ, sFT, sCLR, sGA = "s72", "s73", "s74", "s75"
sWOL, sWDL = "s84", "s85"
sDUP0, sDUP1 = "s86", "s87"
sC = "s88"; sCNT = "s89"; sXCC = "s90"; sBH = "s91"
sG, sG1 = "s42", "s43"
sST = 92
def srd(r): return f"s[{r}:{r+3}]"

vL, vI, vG = 1, 2, 3
vOK, vOV, vOQ, vOW, vOF, vOD, vT0, vT1 = 4, 5, 6, 7, 8, 9, 10, 11
vM = 12
vXR = 16
vGA = 20
vBF = 24
vACC = 32
vAC2 = 36
vQF = 40
vSP = 56
vDF = 88
vTM = 104
vK = 112
vX = 240
def vr(a, n): return f"v[{a}:{a+n-1}]"

class Gen:
    def __init__(self, W=60, LA=8, W_even=None, LA_even=None, two_kernel=False, stamps=False,
                 nt_w=False, ga_after=2, k0_first=False, sleep=64, wo_sched=None, st_dep="pv3", diag=0, obar=True, boost=0, k0_late=True, fl2_after=6, p0only=None, dbgdiag=False, stamp_after=None, wavestamp=None, Wv=None, wo_bytes=127*1024+128, nt_k=True, nt_v=True, kvflags=None):
        self.o = []
        self.W, self.LA, self.W_even, self.LA_even = W, LA, W_even, LA_even
        self.two_kernel, self.stamps, self.nt_w = two_kernel, stamps, nt_w
        self.ga_after, self.k0_first, self.st_dep, self.sleep = ga_after, k0_first, st_dep, sleep
        self.wo_sched = wo_sched or [0, 1, 1, 2, 1, 2, 1, 2, 1, 2, 1, 2, 2, 0, 0, 0]
        assert sum(self.wo_sched) == 18
        self.lab = 0
        self.diag = diag
        self.obar = obar
        self.boost = boost
        self.nt_k = nt_k; self.nt_v = nt_v; self.kvflags = kvflags
        self.wo_bytes = wo_bytes
        self.wavestamp = wavestamp
        self.Wv = Wv
        self.stamp_after = stamp_after or {}
        if stamp_after: self.diag = 9
        self.dbgdiag = dbgdiag
        if dbgdiag: self.stamps = True
        self.p0only = p0only
        self.k0_late = k0_late
        self.fl2_after = fl2_after
    def A(self, s): self.o.append("    " + s)
    def L(self, s): self.o.append(s + ":")
    def nop(self, n):
        while n > 0:
            k = min(n, 16); self.A(f"s_nop {k-1}"); n -= k
    def label(self, p):
        self.lab += 1; return f"L_{p}_{self.lab}"
    def stamp(self, k):
        if self.stamps: self.A(f"s_memrealtime s[{sST+2*k}:{sST+2*k+1}]")

    def swap_reduce(self, op, v, tmp, which):
        A = self.A
        A(f"v_mov_b32 v{tmp}, v{v}")
        self.nop(2)
        A(f"v_permlane{which}_swap_b32 v{v}, v{tmp}")
        self.nop(1)
        A(f"{op} v{v}, v{v}, v{tmp}")
    def dpp_add(self, v, ctl):
        self.nop(2)
        self.A(f"v_add_f32_dpp v{v}, v{v}, v{v} {ctl} row_mask:0xf bank_mask:0xf")
    def mk(self, r, p, off, size):
        A = self.A
        if off is None:
            A(f"s_mov_b32 s{r}, s{p}"); A(f"s_mov_b32 s{r+1}, s{p+1}")
        else:
            A(f"s_add_u32 s{r}, s{p}, {off}"); A(f"s_addc_u32 s{r+1}, s{p+1}, 0")
        if size is not None: A(f"s_mov_b32 s{r+2}, {size}")
        A(f"s_mov_b32 s{r+3}, 0x20000")

    def prologue(self):
        A = self.A
        A("s_cmp_ge_u32 s2, 256")
        A("s_cbranch_scc1 L_end")
        A("s_load_dwordx16 s[16:31], s[0:1], 0")
        A("s_load_dwordx8 s[32:39], s[0:1], 64")
        A("s_load_dwordx2 s[40:41], s[0:1], 96")
        self.stamp(0)
        A("v_lshrrev_b32 v10, 6, v0")
        A(f"v_and_b32 v{vL}, 63, v0")
        A(f"v_readfirstlane_b32 {sW}, v10")
        A(f"v_and_b32 v{vI}, 15, v0")
        A(f"v_bfe_u32 v{vG}, v0, 4, 2")
        A(f"s_and_b32 {sT0}, s2, 7")
        A(f"s_lshr_b32 {sT1}, s2, 3")
        A(f"s_and_b32 {sT2}, {sT1}, 3")
        A(f"s_lshl_b32 {sH}, {sT0}, 2")
        A(f"s_add_u32 {sH}, {sH}, {sT2}")
        A(f"s_lshr_b32 {sJ}, {sT1}, 2")
        A(f"s_lshr_b32 {sB}, {sT1}, 4")
        A(f"s_and_b32 {sS}, {sJ}, 3")
        A(f"s_lshl_b32 {sBH}, {sB}, 5")
        A(f"s_add_u32 {sBH}, {sBH}, {sH}")
        A(f"s_lshl_b32 {sFT}, {sT2}, 3")
        A(f"s_add_u32 {sFT}, {sFT}, {sT0}")
        A(f"s_and_b32 {sT1}, {sT1}, 15")
        A(f"s_mul_i32 {sSL}, {sT0}, 11")
        A(f"s_add_u32 {sSL}, {sSL}, {sT1}")
        A(f"s_cmp_lt_u32 {sT1}, 11")
        A(f"s_cselect_b32 {sSL}, {sSL}, 1000")
        A(f"s_cmp_lt_u32 {sSL}, 86")
        A(f"s_cselect_b32 {sT2}, 1, 0")
        A(f"s_cselect_b32 {sSL}, {sSL}, 0")
        A(f"v_and_b32 v{vOK}, 7, v0")
        A(f"v_lshlrev_b32 v{vOK}, 8, v{vOK}")
        A(f"v_lshl_add_u32 v{vOK}, v{vG}, 4, v{vOK}")
        A(f"v_and_b32 v{vT1}, 8, v0")
        A(f"v_lshl_add_u32 v{vOK}, v{vT1}, 3, v{vOK}")
        A(f"v_lshlrev_b32 v{vT1}, 4, v{vI}")
        A(f"v_lshl_add_u32 v{vOV}, v{vG}, 10, v{vT1}")
        A(f"s_lshl_b32 {sT0}, {sBH}, 20")
        A(f"s_lshl_b32 {sT1}, {sS}, 18")
        A(f"s_add_u32 {sT0}, {sT0}, {sT1}")
        A(f"s_lshl_b32 {sT1}, {sW}, 15")
        A(f"s_add_u32 {sT0}, {sT0}, {sT1}")
        A(f"s_mov_b32 s{R_K+2}, 32768"); A(f"s_mov_b32 s{R_K+3}, 0x20000")
        A("s_waitcnt lgkmcnt(0)")
        A(f"s_add_u32 s{R_K}, s{P_K}, {sT0}"); A(f"s_addc_u32 s{R_K+1}, s{P_K+1}, 0")
        A(f"s_add_u32 s{R_V}, s{P_V}, {sT0}"); A(f"s_addc_u32 s{R_V+1}, s{P_V+1}, 0")
        self.mk(R_WS, P_WS, None, WS_BYTES)

    def kv_load(self, kind, G, t):
        A = self.A
        st = sTK if kind == "K" else sTV
        if t == 0 and G > 0: A(f"s_movk_i32 {st}, {G*4096}")
        so = st if G > 0 else "0"
        if kind == "K":
            A(f"buffer_load_dwordx4 {vr(vK+16*G+4*t,4)}, v{vOK}, {srd(R_K)}, {so} offen offset:{(t>>1)*2048 + (t&1)*128}{' ' + self.kvflags if self.kvflags is not None else ' nt' if self.nt_k else ''}")
        else:
            dst = vX if G == 0 else vK + 16 * (G - 1)
            A(f"buffer_load_dwordx4 {vr(dst+4*t,4)}, v{vOV}, {srd(R_V)}, {so} offen offset:{256*t}{' ' + self.kvflags if self.kvflags is not None else ' nt' if self.nt_v else ''}")

    def bsel(self, src, half, bset):
        A = self.A
        t = vTM + 4 + bset
        A(f"v_perm_b32 v{t}, v{src}, v{src}, {sDUP1 if half else sDUP0}")
        for u in range(4): A(f"v_and_b32 v{vBF+4*bset+u}, v{t}, v{vM+u}")

    def phase0(self):
        A = self.A
        ntw = " nt" if self.nt_w else ""
        if self.k0_first:
            for t in range(4): self.kv_load("K", 0, t)
        self.mk(R_X, P_X, None, 2048)
        A(f"s_lshl_b32 {sT0}, {sJ}, 3"); A(f"s_add_u32 {sT0}, {sT0}, {sW}")
        A(f"s_lshl_b32 {sT1}, {sT0}, 4")
        A(f"v_lshrrev_b32 v{vT0}, 3, v{vI}")
        A(f"v_lshlrev_b32 v{vT0}, 10, v{vT0}")
        A(f"v_lshl_add_u32 v{vT0}, v{vG}, 2, v{vT0}")
        A(f"buffer_load_dword v{vXR}, v{vT0}, {srd(R_X)}, {sT1} offen")
        A(f"s_lshl_b32 {sT1}, {sT0}, 16"); A(f"s_lshl_b32 {sTQ}, {sH}, 8"); A(f"s_add_u32 {sT1}, {sT1}, {sTQ}")
        self.mk(R_WQ, P_WQ, sT1, 7 * 8192 + 256)
        A(f"v_lshl_add_u32 v{vOQ}, v{vG}, 14, v{vT1}")
        A(f"s_movk_i32 {sTQ}, 8192")
        if self.p0only in (None, "wq", "both"):
            A(f"buffer_load_dwordx4 {vr(vDF,4)}, v{vOQ}, {srd(R_WQ)}, 0 offen{ntw}")
            A(f"buffer_load_dwordx4 {vr(vDF+4,4)}, v{vOQ}, {srd(R_WQ)}, {sTQ} offen{ntw}")
        A(f"s_cmp_ge_u32 {sFT}, 11")
        A(f"s_cselect_b32 s{R_FT}, s{P_WU}, s{P_WG}"); A(f"s_cselect_b32 s{R_FT+1}, s{P_WU+1}, s{P_WG+1}")
        A(f"s_cselect_b32 {sT1}, 11, 0")
        A(f"s_sub_u32 {sT1}, {sFT}, {sT1}")
        A(f"s_lshl_b32 {sT1}, {sT1}, 8")
        A(f"s_mul_i32 {sT0}, {sT0}, {8*2752}")
        A(f"s_add_u32 {sT1}, {sT1}, {sT0}")
        A(f"s_sub_u32 s{R_FT+2}, {512*2752}, {sT1}")
        A(f"s_cmp_lt_u32 {sFT}, 22")
        A(f"s_cselect_b32 s{R_FT+2}, s{R_FT+2}, 0")
        A(f"s_cselect_b32 {sT1}, {sT1}, 0")
        A(f"s_add_u32 s{R_FT}, s{R_FT}, {sT1}"); A(f"s_addc_u32 s{R_FT+1}, s{R_FT+1}, 0")
        A(f"s_mov_b32 s{R_FT+3}, 0x20000")
        A(f"v_mul_u32_u24 v{vOF}, {2*2752}, v{vG}")
        A(f"v_add_u32 v{vOF}, v{vOF}, v{vT1}")
        if self.p0only in (None, "ft", "both"):
            A(f"buffer_load_dwordx4 {vr(vDF+8,4)}, v{vOF}, {srd(R_FT)}, 0 offen{ntw}")
            A(f"buffer_load_dwordx4 {vr(vDF+12,4)}, v{vOF}, {srd(R_FT)}, 0 offen offset:2752{ntw}")
        if self.p0only == "k0":
            for t in range(4): self.kv_load("K", 0, t)
        if self.p0only:
            self.stamp(1); A("s_waitcnt vmcnt(0)"); self.stamp(2); A("s_barrier"); self.stamp(3)
            A(f"s_getreg_b32 {sXCC}, hwreg(HW_REG_XCC_ID)")
            return
        A(f"v_lshlrev_b32 v{vT1}, 4, v{vL}")
        if self.obar and not self.k0_late: A("s_barrier")
        lj = self.label("clsJ")
        if not self.k0_first and not self.k0_late:
            for t in range(4): self.kv_load("K", 0, t)
        self.mk(R_GW, P_GW, None, 1024)
        A(f"s_mov_b32 s{R_V+2}, 32768"); A(f"s_mov_b32 s{R_V+3}, 0x20000")
        A(f"s_lshl_b32 {sT0}, {sSL}, 14"); A(f"s_lshl_b32 {sT1}, {sW}, 7"); A(f"s_add_u32 {sT0}, {sT0}, {sT1}")
        self.mk(R_WD, P_WD, sT0, None)
        A(f"s_mul_i32 s{R_WD+2}, {sT2}, {15*1024+128}")
        A(f"s_lshl_b32 {sT0}, {sH}, 17"); A(f"s_add_u32 {sT0}, {sT0}, {sT1}")
        self.mk(R_WO, P_WO, sT0, self.wo_bytes)
        t = vTM + 4
        A(f"v_and_b32 v{t}, 7, v{vL}")
        A(f"v_lshlrev_b32 v{t}, 4, v{t}")
        A(f"v_lshrrev_b32 v{t+1}, 3, v{vL}")
        A(f"v_lshl_add_u32 v{vOD}, v{t+1}, 10, v{t}")
        A(f"v_and_b32 v{t+2}, 3, v{t+1}")
        A(f"v_lshlrev_b32 v{t+2}, 3, v{t+2}")
        A(f"v_lshrrev_b32 v{t+1}, 2, v{t+1}")
        A(f"v_add_u32 v{t+1}, v{t+1}, v{t+2}")
        A(f"v_lshl_add_u32 v{vOW}, v{t+1}, 10, v{t}")
        A(f"s_lshl_b32 {sWOL}, {sW}, 14"); A(f"s_add_u32 {sWOL}, {sWOL}, {L_WO}")
        A(f"s_lshl_b32 {sWDL}, {sW}, 11"); A(f"s_add_u32 {sWDL}, {sWDL}, {L_WD}")
        A(f"v_and_b32 v{t}, 1, v{vI}")
        A(f"v_lshlrev_b32 v{t}, 4, v{t}")
        A(f"v_mov_b32 v{t+1}, 0xffff")
        A(f"v_lshlrev_b32 v{t+1}, v{t}, v{t+1}")
        A(f"v_bfe_u32 v{t}, v{vI}, 1, 2")
        for u in range(4):
            A(f"v_cmp_eq_u32 vcc, {u}, v{t}")
            self.nop(2)
            A(f"v_cndmask_b32 v{vM+u}, 0, v{t+1}, vcc")
        A(f"s_mov_b32 {sDUP0}, 0x01000100"); A(f"s_mov_b32 {sDUP1}, 0x03020302")
        A(f"s_mov_b32 {sC}, {f32(math.log2(math.e) / math.sqrt(128.0))}")
        A(f"s_getreg_b32 {sXCC}, hwreg(HW_REG_XCC_ID)")
        A(f"s_lshr_b32 {sT0}, {sSL}, 3")
        A(f"s_lshl_b32 {sCLR}, 0x801, {sT0}")
        A(f"s_lshl_b32 {sT0}, 1, {sFT}")
        A(f"s_or_b32 {sCLR}, {sCLR}, {sT0}"); A(f"s_mov_b32 {sGA}, {sCLR}")
        A(f"s_lshl_b32 {sT0}, {sH}, 13"); A(f"s_lshl_b32 {sT1}, {sB}, 7"); A(f"s_add_u32 {sT0}, {sT0}, {sT1}")
        A(f"s_add_u32 {sT0}, {sT0}, {WS_Q}")
        A(f"v_lshrrev_b32 v{t}, 3, v{vL}")
        A(f"v_and_b32 v{t+1}, 7, v{vL}")
        A(f"v_lshlrev_b32 v{t+1}, 4, v{t+1}")
        A(f"v_lshl_add_u32 v{t+2}, v{t}, 8, {sT0}")
        A(f"s_lshr_b32 {sT0}, {sSL}, 3"); A(f"s_lshl_b32 {sT0}, {sT0}, 13"); A(f"s_add_u32 {sT0}, {sT0}, {sT1}")
        A(f"s_bfe_u32 {sT1}, {sSL}, 0x20001"); A(f"s_lshl_b32 {sT1}, {sT1}, 8"); A(f"s_add_u32 {sT0}, {sT0}, {sT1}")
        A(f"s_add_u32 {sT0}, {sT0}, {WS_F}")
        A(f"v_and_b32 v{t}, 1, v{t}")
        A(f"v_mul_u32_u24 v{t}, {11*8192}, v{t}")
        A(f"v_add_u32 v{t}, {sT0}, v{t}")
        A(f"v_cmp_gt_u32 vcc, 32, v{vL}")
        A(f"s_lshl_b32 {sT1}, {sW}, 10")
        self.nop(1)
        A(f"v_cndmask_b32 v{t}, v{t}, v{t+2}, vcc")
        A(f"v_add3_u32 v{vXR+1}, v{t}, v{t+1}, {sT1}")
        if self.k0_late:
            for t in range(4):
                A(f"s_waitcnt vmcnt({[2,2,2,3][t]})")
                self.kv_load("K", 0, t)
        else:
            A(f"s_waitcnt vmcnt({0 if self.k0_first else 4})")
        if self.diag == 2: self.stamp(1)
        self.bsel(vXR, 0, 0); self.bsel(vXR, 1, 1)
        A(f"s_lshl_b32 {sT0}, {sW}, 10"); A(f"s_add_u32 {sT0}, {sT0}, {L_P0}")
        A(f"v_mfma_f32_16x16x32_bf16 {vr(vACC,4)}, {vr(vDF,4)}, {vr(vBF,4)}, 0")
        A(f"v_mfma_f32_16x16x32_bf16 {vr(vAC2,4)}, {vr(vDF+8,4)}, {vr(vBF,4)}, 0")
        A(f"v_mfma_f32_16x16x32_bf16 {vr(vACC,4)}, {vr(vDF+4,4)}, {vr(vBF+4,4)}, {vr(vACC,4)}")
        A(f"v_mfma_f32_16x16x32_bf16 {vr(vAC2,4)}, {vr(vDF+12,4)}, {vr(vBF+4,4)}, {vr(vAC2,4)}")
        A(f"v_lshl_add_u32 v{vT0}, v{vL}, 4, {sT0}")
        self.nop(7)
        A(f"ds_write_b128 v{vT0}, {vr(vACC,4)}")
        A(f"ds_write_b128 v{vT0}, {vr(vAC2,4)} offset:8192")
        A("s_waitcnt lgkmcnt(0)")
        A("s_barrier")
        if self.diag == 2: self.stamp(2)
        A(f"s_cmp_lg_u32 {sW}, 0"); A(f"s_cbranch_scc1 {lj}")
        d = vSP; d2 = vK + 96
        for w in range(8): A(f"ds_read_b128 {vr(d+4*w,4)}, v{vT0} offset:{1024*w}")
        for w in range(4): A(f"ds_read_b128 {vr(d2+4*w,4)}, v{vT0} offset:{8192+1024*w}")
        A(f"s_lshl_b32 {sT0}, {sH}, 3"); A(f"s_add_u32 {sT0}, {sT0}, {sJ}"); A(f"s_lshl_b32 {sT0}, {sT0}, 10")
        A(f"s_add_u32 {sT0}, {sT0}, {WS_Q}")
        A(f"s_lshl_b32 {sT1}, {sFT}, 3"); A(f"s_add_u32 {sT1}, {sT1}, {sJ}"); A(f"s_lshl_b32 {sT1}, {sT1}, 10")
        A(f"s_add_u32 {sT1}, {sT1}, {WS_F}")
        A("s_waitcnt lgkmcnt(4)")
        for w in range(4, 8): A(f"ds_read_b128 {vr(d2+4*w,4)}, v{vT0} offset:{8192+1024*w}")
        for w in range(1, 8):
            for r in range(4): A(f"v_add_f32 v{d+r}, v{d+r}, v{d+4*w+r}")
        A(f"buffer_store_dwordx4 {vr(d,4)}, v{vT1}, {srd(R_WS)}, {sT0} offen sc1")
        A("s_waitcnt lgkmcnt(0)")
        for w in range(1, 8):
            for r in range(4): A(f"v_add_f32 v{d2+r}, v{d2+r}, v{d2+4*w+r}")
        A(f"buffer_store_dwordx4 {vr(d2,4)}, v{vT1}, {srd(R_WS)}, {sT1} offen sc1")
        for k in range(4): A(f"v_mov_b32 v{vTM+k}, -1")
        if not self.two_kernel:
            A(f"s_lshl_b32 {sT0}, s2, 11")
            A(f"buffer_store_dwordx4 {vr(vTM,4)}, v{vT1}, {srd(R_WS)}, {sT0} offen sc1")
            A(f"buffer_store_dwordx4 {vr(vTM,4)}, v{vT1}, {srd(R_WS)}, {sT0} offen offset:1024 sc1")
        A(f"s_lshl_b32 {sT0}, s2, 3"); A(f"s_add_u32 {sT0}, {sT0}, {WS_S}")
        A("s_mov_b64 exec, 1")
        A(f"buffer_store_dwordx2 {vr(vTM,2)}, v{vT1}, {srd(R_WS)}, {sT0} offen sc1")
        A("s_mov_b64 exec, -1")
        self.nop(2)
        self.L(lj)

    def items(self, LA):
        A = self.A
        it = []
        ntw = " nt" if self.nt_w else ""
        def add(name, fn, dep=None, glue=False): it.append(dict(name=name, fn=fn, dep=dep, glue=glue))
        def grp(kind, G, dep):
            for t in range(4): add(f"{kind}{G}_{t}", lambda t=t: self.kv_load(kind, G, t), dep if t == 0 else None)
        dma = []
        for t in range(2):
            def fn(t=t):
                A(f"s_add_u32 m0, {sWDL}, {t*1024}")
                A(f"s_movk_i32 {sTD}, {t*8192}")
                A(f"buffer_load_dwordx4 v{vOD}, {srd(R_WD)}, {sTD} offen{ntw} lds")
            dma.append((f"wd{t}", fn, "qred"))
        wo = []
        for t in range(16):
            def fn(t=t):
                A(f"s_add_u32 m0, {sWOL}, {t*1024}")
                A(f"s_mov_b32 {sTD}, {(32*(t>>2) + 2*(t&3))*1024}")
                A(f"buffer_load_dwordx4 v{vOW}, {srd(R_WO)}, {sTD} offen{ntw} lds")
            wo.append((f"wo{t}", fn, None))
        dma = wo[:14] + dma + wo[14:]
        def put(slot):
            for _ in range(self.wo_sched[slot]):
                n, fn, dep = dma.pop(0); add(n, fn, dep)
        def ga():
            A("s_mov_b32 exec_hi, 0xffff")
            A(f"buffer_load_dwordx4 {vr(vGA,4)}, v{vXR+1}, {srd(R_WS)}, 0 offen sc1")
            A("s_mov_b32 exec_hi, -1")
        def fl():
            A(f"v_lshlrev_b32 v{vT0}, 2, v{vL}")
            A(f"global_load_dword v{vTM+7}, v{vT0}, s[{P_DBG}:{P_DBG+1}] sc1")
        ga_pos = None
        for G in range(8):
            grp("K", G, None); put(G)
            if G == 1:
                def gx():
                    A(f"s_lshl_b32 {sT1}, {sB}, 10")
                    A(f"buffer_load_dwordx4 {vr(vQF,4)}, v{vT1}, {srd(R_X)}, {sT1} offen")
                add("gx", gx)
                add("gw", lambda: A(f"buffer_load_dwordx4 {vr(vQF+4,4)}, v{vT1}, {srd(R_GW)}, 0 offen"))
            if G == self.ga_after: add("fl", fl); ga_pos = len(it) + LA
        add("fl2", fl, "qred")
        it.insert(min(ga_pos, [n for n, x in enumerate(it) if x["name"] == "K7_3"][0]), dict(name="ga", fn=ga, dep="flchk", glue=False))
        def st(k):
            def fn():
                if k == 0:
                    A(f"s_lshl_b32 {sT0}, {sBH}, 5"); A(f"s_add_u32 {sT0}, {sT0}, {WS_S}")
                    A(f"v_mov_b32 v{vT0}, 0")
                A(f"buffer_load_dwordx4 {vr(vXR+4*k,4)}, v{vT0}, {srd(R_WS)}, {sT0} offen offset:{16*k} sc1")
            return fn
        for G in range(8):
            if G == 7:
                add("st0", st(0), self.st_dep); add("st1", st(1), glue=True)
            grp("V", G, f"qk{G-1}" if G else None); put(8 + G)
        return it

    def step_gate(self):
        A = self.A
        x, w = vQF, vQF + 4
        t = vTM
        acc = vT0
        A(f"v_mov_b32 v{acc}, 0")
        for k in range(4):
            A(f"v_lshlrev_b32 v{t}, 16, v{x+k}"); A(f"v_lshlrev_b32 v{t+1}, 16, v{w+k}")
            A(f"v_and_b32 v{t+2}, 0xffff0000, v{x+k}"); A(f"v_and_b32 v{t+3}, 0xffff0000, v{w+k}")
            A(f"v_mul_f32 v{t}, v{t}, v{t+1}"); A(f"v_mul_f32 v{t+2}, v{t+2}, v{t+3}")
            A(f"v_cvt_pk_bf16_f32 v{t}, v{t}, v{t+2}")
            A(f"v_lshlrev_b32 v{t+1}, 16, v{t}"); A(f"v_and_b32 v{t}, 0xffff0000, v{t}")
            A(f"v_add_f32 v{acc}, v{acc}, v{t+1}"); A(f"v_add_f32 v{acc}, v{acc}, v{t}")
        for ctl in ("quad_perm:[1,0,3,2]", "quad_perm:[2,3,0,1]", "row_half_mirror", "row_mirror"):
            self.dpp_add(acc, ctl)
        self.swap_reduce("v_add_f32", acc, t, 16)
        self.swap_reduce("v_add_f32", acc, t, 32)
        A(f"v_cvt_pk_bf16_f32 v{acc}, v{acc}, v{acc}")
        A(f"v_and_b32 v{acc}, 0xffff0000, v{acc}")
        A(f"v_mul_f32 v{acc}, {f32(-math.log2(math.e))}, v{acc}")
        A(f"v_exp_f32 v{acc}, v{acc}")
        self.nop(1)
        A(f"v_add_f32 v{acc}, 1.0, v{acc}")
        A(f"v_rcp_f32 v{acc}, v{acc}")
        self.nop(1)
        A(f"v_cvt_pk_bf16_f32 v{acc}, v{acc}, v{acc}")
        A(f"v_and_b32 v{acc}, 0xffff0000, v{acc}")
        A(f"v_sub_f32 v{t}, 1.0, v{acc}")
        A(f"v_cvt_pk_bf16_f32 v{t}, v{t}, v{t}")
        A(f"v_and_b32 v{t}, 0xffff0000, v{t}")
        self.nop(1)
        A(f"v_readfirstlane_b32 {sG}, v{acc}")
        A(f"v_readfirstlane_b32 {sG1}, v{t}")

    def step_flag(self):
        A = self.A
        sk = self.label("noflag")
        A(f"s_cmp_lg_u32 {sW}, 0"); A(f"s_cbranch_scc1 {sk}")
        if self.dbgdiag:
            A(f"s_and_b32 {sT0}, s2, 31"); A(f"s_add_u32 {sT0}, {sT0}, 32"); A(f"s_lshl_b32 {sT0}, {sT0}, 2")
        else:
            A(f"s_and_b32 {sT0}, s2, 63"); A(f"s_lshl_b32 {sT0}, {sT0}, 2")
        A(f"v_mov_b32 v{vTM+5}, {sT0}"); A(f"v_mov_b32 v{vTM+6}, 1")
        A("s_mov_b64 exec, 1")
        A(f"global_atomic_add v{vTM+5}, v{vTM+6}, s[{P_DBG}:{P_DBG+1}]")
        A("s_mov_b64 exec, -1")
        if self.diag == 2: self.stamp(3)
        self.L(sk)

    def step_flchk(self, full):
        A = self.A
        ok = self.label("flok"); sp = self.label("flspin")
        def test():
            A(f"v_cmp_gt_u32 vcc, {8 if self.dbgdiag else 4}, v{vTM+7}")
            if not full: A("s_and_b64 vcc, vcc, s[74:75]")
            if self.dbgdiag: A("s_mov_b32 s0, 0"); A("s_mov_b32 s1, -1"); A("s_and_b64 vcc, vcc, s[0:1]")
        test()
        A(f"s_cbranch_vccz {ok}")
        A(f"s_mov_b32 {sCNT}, 0")
        A(f"v_lshlrev_b32 v{vT0}, 2, v{vL}")
        self.L(sp)
        A(f"s_sleep {self.sleep}")
        A(f"global_load_dword v{vTM+7}, v{vT0}, s[{P_DBG}:{P_DBG+1}] sc1")
        A(f"s_add_u32 {sCNT}, {sCNT}, 1")
        A(f"s_cmp_ge_u32 {sCNT}, {SPIN}")
        A("s_waitcnt vmcnt(0)")
        A(f"s_cbranch_scc1 {ok}")
        test()
        A(f"s_cbranch_vccnz {sp}")
        self.L(ok)
        if self.diag == 0 and not full: self.stamp(1)

    def step_qred(self):
        A = self.A
        t = vTM
        A(f"v_and_b32 v{t+1}, 7, v{vL}"); A(f"v_lshrrev_b32 v{t+2}, 3, v{vL}")
        A(f"s_lshl_b32 {sT0}, {sW}, 9"); A(f"s_add_u32 {sT0}, {sT0}, {L_QP}")
        A(f"v_lshl_add_u32 v{t}, v{t+2}, 7, {sT0}")
        A(f"v_lshl_add_u32 v{t}, v{t+1}, 2, v{t}")
        A("s_mov_b32 exec_hi, 0")
        for r in range(4): A(f"ds_write_b32 v{t}, v{vGA+r} offset:{32*r}")
        A("s_mov_b32 exec_lo, 0"); A("s_mov_b32 exec_hi, 0xffff")
        A(f"s_lshl_b32 {sT0}, {sW}, 8"); A(f"s_add_u32 {sT0}, {sT0}, {L_FP - 512}")
        A(f"v_lshl_add_u32 v{t}, v{vL}, 4, {sT0}")
        A(f"ds_write_b128 v{t}, {vr(vGA,4)}")
        A("s_mov_b64 exec, -1")
        A("s_waitcnt lgkmcnt(0)")
        A("s_barrier")
        d = vSP
        A(f"v_lshlrev_b32 v{t}, 3, v{vL}")
        for w in range(8): A(f"ds_read_b64 {vr(d+2*w,2)}, v{t} offset:{L_QP + 512*w}")
        e = vSP + 16
        A(f"s_and_b32 {sT0}, {sSL}, 1"); A(f"s_lshl_b32 {sT0}, {sT0}, 3")
        A(f"v_lshl_add_u32 v{t+3}, v{t+2}, 8, {sT0}")
        A(f"v_lshl_add_u32 v{t+3}, v{t+1}, 4, v{t+3}")
        A(f"ds_read_b64 {vr(e,2)}, v{t+3} offset:{L_FP}")
        A(f"ds_read_b64 {vr(e+2,2)}, v{t+3} offset:{L_FP+128}")
        A("s_waitcnt lgkmcnt(2)")
        for w in range(1, 8):
            A(f"v_add_f32 v{d}, v{d}, v{d+2*w}"); A(f"v_add_f32 v{d+1}, v{d+1}, v{d+2*w+1}")
        A(f"v_cvt_pk_bf16_f32 v{d}, v{d}, v{d+1}")
        A(f"s_lshl_b32 {sT0}, {sW}, 8"); A(f"s_add_u32 {sT0}, {sT0}, {L_QS}")
        A(f"v_lshl_add_u32 v{t}, v{vL}, 2, {sT0}")
        A(f"ds_write_b32 v{t}, v{d}")
        A(f"v_lshl_add_u32 v{t}, v{vG}, 4, {sT0}")
        A(f"v_and_b32 v{t+3}, 8, v{vL}")
        A(f"v_lshl_add_u32 v{t}, v{t+3}, 3, v{t}")
        A("s_waitcnt lgkmcnt(0)")
        for T in range(2): A(f"ds_read_b128 {vr(vQF+4*T,4)}, v{t} offset:{128*T}")
        A(f"v_permlane32_swap_b32 v{e}, v{e+1}"); A(f"v_permlane32_swap_b32 v{e+2}, v{e+3}")
        self.nop(1)
        A(f"v_add_f32 v{e}, v{e}, v{e+1}"); A(f"v_add_f32 v{e+2}, v{e+2}, v{e+3}")
        self.swap_reduce("v_add_f32", e, e + 1, 16)
        self.swap_reduce("v_add_f32", e + 2, e + 3, 16)
        self.dpp_add(e, "row_ror:8"); self.dpp_add(e + 2, "row_ror:8")
        A(f"v_cvt_pk_bf16_f32 v{e}, v{e}, v{e+2}")
        A(f"v_and_b32 v{e+2}, 0xffff0000, v{e}")
        A(f"v_lshlrev_b32 v{e}, 16, v{e}")
        k0 = math.sqrt(2.0 / math.pi)
        A(f"v_mul_f32 v{e+1}, v{e}, v{e}")
        A(f"v_mov_b32 v{e+3}, {f32(-2.0 * k0 * math.log2(math.e))}")
        A(f"v_mul_f32 v{e+1}, {f32(0.044715)}, v{e+1}")
        A(f"v_add_f32 v{e+1}, 1.0, v{e+1}")
        A(f"v_mul_f32 v{e+1}, v{e+1}, v{e}")
        A(f"v_mul_f32 v{e+1}, v{e+1}, v{e+3}")
        A(f"v_exp_f32 v{e+1}, v{e+1}")
        self.nop(1)
        A(f"v_add_f32 v{e+1}, 1.0, v{e+1}")
        A(f"v_rcp_f32 v{e+1}, v{e+1}")
        self.nop(1)
        A(f"v_mul_f32 v{e}, v{e}, v{e+1}")
        A(f"v_cvt_pk_bf16_f32 v{e}, v{e}, v{e}")
        A(f"v_and_b32 v{e}, 0xffff0000, v{e}")
        A(f"v_mul_f32 v{e}, v{e}, v{e+2}")
        A(f"v_cvt_pk_bf16_f32 v{e}, v{e}, v{e}")
        A(f"s_lshl_b32 {sT0}, {sW}, 5"); A(f"s_add_u32 {sT0}, {sT0}, {L_HS}")
        A(f"v_lshrrev_b32 v{t+2}, 5, v{vL}")
        A(f"v_lshl_add_u32 v{t+2}, v{t+2}, 3, v{t+1}")
        A(f"v_lshl_add_u32 v{t+2}, v{t+2}, 1, {sT0}")
        A(f"ds_write_b16 v{t+2}, v{e}")
        A(f"v_lshl_add_u32 v{t+2}, v{vG}, 3, {sT0}")
        A("s_waitcnt lgkmcnt(0)")
        A(f"ds_read_b64 {vr(vAC2,2)}, v{t+2}")
        A(f"v_cmp_eq_u32 vcc, 0, v{t+1}")
        A("s_waitcnt lgkmcnt(0)")
        self.nop(1)
        A(f"v_cndmask_b32 v{vAC2}, 0, v{vAC2}, vcc"); A(f"v_cndmask_b32 v{vAC2+1}, 0, v{vAC2+1}, vcc")

    def qk_combine(self, G):
        A = self.A
        a = vSP + 4 * G; b = vQF + 8 + 4 * (G & 1)
        for r in range(4): A(f"v_permlane32_swap_b32 v{a+r}, v{b+r}")
        for r in range(4): A(f"v_add_f32_dpp v{a+r}, v{b+r}, v{a+r} row_ror:8 row_mask:0xf bank_mask:0xf")
    def step_qk(self, G):
        A = self.A
        a = vSP + 4 * G; b = vQF + 8 + 4 * (G & 1); k = vK + 16 * G
        A(f"v_mfma_f32_16x16x32_bf16 {vr(a,4)}, {vr(k,4)}, {vr(vQF,4)}, 0")
        A(f"v_mfma_f32_16x16x32_bf16 {vr(b,4)}, {vr(k+8,4)}, {vr(vQF,4)}, 0")
        A(f"v_mfma_f32_16x16x32_bf16 {vr(a,4)}, {vr(k+4,4)}, {vr(vQF+4,4)}, {vr(a,4)}")
        A(f"v_mfma_f32_16x16x32_bf16 {vr(b,4)}, {vr(k+12,4)}, {vr(vQF+4,4)}, {vr(b,4)}")
        if G > 0:
            self.nop(4)
            self.qk_combine(G - 1)

    def step_softmax(self):
        A = self.A
        t = vTM
        m = vT1
        self.qk_combine(7)
        A(f"v_max3_f32 v{m}, v{vSP}, v{vSP+1}, v{vSP+2}")
        for k in range(3, 31, 2): A(f"v_max3_f32 v{m}, v{m}, v{vSP+k}, v{vSP+k+1}")
        A(f"v_max_f32 v{m}, v{m}, v{vSP+31}")
        self.swap_reduce("v_max_f32", m, t, 16)
        self.swap_reduce("v_max_f32", m, t, 32)
        A(f"s_lshl_b32 {sT0}, {sW}, 2")
        A(f"v_mov_b32 v{t+4}, {sT0}")
        A("s_mov_b64 exec, 1")
        A(f"ds_write_b32 v{t+4}, v{m} offset:{L_MX}")
        A("s_mov_b64 exec, -1")
        A(f"v_mov_b32 v{t+5}, 0")
        A("s_waitcnt lgkmcnt(0)")
        A("s_barrier")
        A(f"ds_read_b128 {vr(vBF,4)}, v{t+5} offset:{L_MX}")
        A(f"ds_read_b128 {vr(vBF+4,4)}, v{t+5} offset:{L_MX+16}")
        A("s_waitcnt lgkmcnt(0)")
        A(f"v_max3_f32 v{m}, v{vBF}, v{vBF+1}, v{vBF+2}")
        A(f"v_max3_f32 v{m}, v{m}, v{vBF+3}, v{vBF+4}")
        A(f"v_max3_f32 v{m}, v{m}, v{vBF+5}, v{vBF+6}")
        A(f"v_max_f32 v{m}, v{m}, v{vBF+7}")
        A(f"v_mul_f32 v{m}, {sC}, v{m}")
        l = vT0
        for k in range(32):
            A(f"v_fma_f32 v{vSP+k}, v{vSP+k}, {sC}, -v{m}")
        for k in range(32):
            A(f"v_exp_f32 v{vSP+k}, v{vSP+k}")
        A(f"v_add_f32 v{l}, v{vSP}, v{vSP+1}"); A(f"v_add_f32 v{t}, v{vSP+2}, v{vSP+3}")
        for k in range(4, 32, 2):
            A(f"v_add_f32 v{l}, v{l}, v{vSP+k}"); A(f"v_add_f32 v{t}, v{t}, v{vSP+k+1}")
        A(f"v_add_f32 v{l}, v{l}, v{t}")
        self.swap_reduce("v_add_f32", l, t, 16)
        self.swap_reduce("v_add_f32", l, t, 32)
        A("s_mov_b64 exec, 1")
        A(f"ds_write_b32 v{t+4}, v{l} offset:{L_LS}")
        A("s_mov_b64 exec, -1")
        for k in range(32):
            A(f"v_cvt_pk_bf16_f32 v{vSP+k}, v{vSP+k}, v{vSP+k}")
        A(f"v_mov_b32 v{vAC2+2}, v{m}")
        A("s_waitcnt lgkmcnt(0)")
        A("s_barrier")
        skip = self.label("nopub")
        A(f"s_cmp_lg_u32 {sW}, 0"); A(f"s_cbranch_scc1 {skip}")
        A(f"ds_read_b128 {vr(vBF,4)}, v{t+5} offset:{L_LS}")
        A(f"ds_read_b128 {vr(vBF+4,4)}, v{t+5} offset:{L_LS+16}")
        A(f"s_lshl_b32 {sT0}, {sBH}, 2"); A(f"s_add_u32 {sT0}, {sT0}, {sS}")
        A(f"s_lshl_b32 {sT0}, {sT0}, 3"); A(f"s_add_u32 {sT0}, {sT0}, {WS_S}")
        A("s_waitcnt lgkmcnt(0)")
        for k in range(1, 8): A(f"v_add_f32 v{vBF}, v{vBF}, v{vBF+k}")
        A(f"v_min_u32 v{t+1}, -2, v{vBF}")
        A(f"v_mov_b32 v{t}, v{m}")
        A("s_mov_b64 exec, 1")
        A(f"buffer_store_dwordx2 {vr(t,2)}, v{t+5}, {srd(R_WS)}, {sT0} offen sc1")
        A("s_mov_b64 exec, -1")
        self.L(skip)

    def step_pv(self, G):
        A = self.A
        base = vX if G == 0 else vK + 16 * (G - 1)
        def build(k, bset):
            for u in range(4): A(f"v_and_b32 v{vBF+4*bset+u}, v{vSP+k}, v{vM+u}")
        for r in range(4):
            k = 4 * G + r
            if k == 0: build(0, 0)
            if k + 1 < 32: build(k + 1, (k + 1) & 1)
            else: self.nop(2)
            c = "0" if k == 0 else vr(vACC, 4)
            A(f"v_mfma_f32_16x16x32_bf16 {vr(vACC,4)}, {vr(base+4*r,4)}, {vr(vBF+4*(k&1),4)}, {c}")

    WF = [vQF, vK + 16 * 7, vX, vK]
    def step_wof(self):
        A = self.A
        t = vTM
        A(f"v_lshrrev_b32 v{t}, 2, v{vI}"); A(f"v_and_b32 v{t+1}, 3, v{vI}")
        A(f"v_lshlrev_b32 v{t+1}, 3, v{t+1}")
        A(f"v_lshl_add_u32 v{t+1}, v{t}, 7, v{t+1}")
        A(f"v_lshl_add_u32 v{t+2}, v{vG}, 10, v{t+1}")
        A(f"v_add_u32 v{vOQ}, {sWOL}, v{t+2}")
        A(f"v_lshl_add_u32 v{t+2}, v{vG}, 9, v{t+1}")
        A(f"v_add_u32 v{vOF}, {sWDL}, v{t+2}")
        for tau in range(4): A(f"ds_read_b64_tr_b16 {vr(t+2*tau,2)}, v{vOF} offset:{tau*32}")
        for tau in range(4):
            for T in range(4):
                for hi in range(2):
                    A(f"ds_read_b64_tr_b16 {vr(self.WF[tau]+4*T+2*hi,2)}, v{vOQ} offset:{T*4096 + hi*512 + tau*32}")
            if tau == 0:
                A("s_waitcnt lgkmcnt(6)")
                for ta in range(4):
                    A(f"v_mfma_f32_16x16x16_bf16 {vr(vDF+4*ta,4)}, {vr(vAC2,2)}, {vr(t+2*ta,2)}, 0")
            else:
                A("s_waitcnt lgkmcnt(4)")
        for k in range(16): A(f"v_mul_f32 v{vDF+k}, {sG1}, v{vDF+k}")
        A("s_waitcnt lgkmcnt(0)")

    def step_scale(self):
        A = self.A
        t = vTM
        s = vXR
        ok = self.label("stok"); sp = self.label("stspin")
        A(f"s_mov_b32 {sCNT}, 0")
        A(f"v_max3_u32 v{t}, v{s+1}, v{s+3}, v{s+5}")
        A(f"v_max_u32 v{t}, v{t}, v{s+7}")
        A(f"v_cmp_eq_u32 vcc, -1, v{t}")
        A(f"s_cbranch_vccz {ok}")
        self.L(sp)
        A(f"buffer_load_dwordx4 {vr(s,4)}, v{vT0}, {srd(R_WS)}, {sT0} offen sc1")
        A(f"buffer_load_dwordx4 {vr(s+4,4)}, v{vT0}, {srd(R_WS)}, {sT0} offen offset:16 sc1")
        A(f"s_add_u32 {sCNT}, {sCNT}, 1")
        A(f"s_cmp_ge_u32 {sCNT}, {SPIN}")
        A("s_waitcnt vmcnt(0)")
        A(f"s_cbranch_scc1 {ok}")
        A(f"v_max3_u32 v{t}, v{s+1}, v{s+3}, v{s+5}")
        A(f"v_max_u32 v{t}, v{t}, v{s+7}")
        A(f"v_cmp_eq_u32 vcc, -1, v{t}")
        A(f"s_cbranch_vccnz {sp}")
        self.L(ok)
        A(f"v_max3_f32 v{t}, v{s}, v{s+2}, v{s+4}")
        A(f"v_max_f32 v{t}, v{t}, v{s+6}")
        for k in range(4): A(f"v_sub_f32 v{s+2*k}, v{s+2*k}, v{t}")
        A(f"v_sub_f32 v{t+1}, v{vAC2+2}, v{t}")
        for k in range(4): A(f"v_exp_f32 v{s+2*k}, v{s+2*k}")
        A(f"v_exp_f32 v{t+1}, v{t+1}")
        A(f"v_mul_f32 v{t}, v{s}, v{s+1}")
        for k in range(1, 4): A(f"v_fmac_f32 v{t}, v{s+2*k}, v{s+2*k+1}")
        A(f"v_rcp_f32 v{t}, v{t}")
        A(f"v_mul_f32 v{t+1}, {sG}, v{t+1}")
        A(f"v_mul_f32 v{vAC2+3}, v{t}, v{t+1}")
        A(f"v_and_b32 v{t}, 7, v{vI}")
        A(f"s_mul_i32 {sT1}, {sW}, 288"); A(f"s_add_u32 {sT1}, {sT1}, {L_OB}")
        A(f"v_lshl_add_u32 v{vOK}, v{vG}, 6, {sT1}")
        A(f"v_lshl_add_u32 v{vOK}, v{t}, 3, v{vOK}")
        A(f"v_mul_u32_u24 v{vOQ}, 288, v{t}")
        A(f"v_lshl_add_u32 v{vOQ}, v{vG}, 4, v{vOQ}")
        A(f"v_lshrrev_b32 v{t}, 2, v{vI}")
        A(f"v_lshl_add_u32 v{t}, v{vG}, 2, v{t}")
        A(f"v_lshlrev_b32 v{vOF}, 11, v{t}")
        A(f"s_lshl_b32 {sTF}, {sW}, 15")
        A(f"s_lshl_b32 {sT1}, {sB}, 18"); A(f"s_add_u32 {sTF}, {sTF}, {sT1}")
        A(f"s_lshl_b32 {sT1}, {sH}, 6"); A(f"s_add_u32 {sTF}, {sTF}, {sT1}")
        A(f"s_lshl_b32 {sT1}, {sS}, 4"); A(f"s_add_u32 {sTF}, {sTF}, {sT1}")
        A(f"v_cmp_gt_u32 s[0:1], 2, v{vG}")
        A(f"v_lshlrev_b32 v{vOD}, 4, v{vL}")
        A(f"s_lshl_b32 {sTQ}, s2, 11")
        A(f"v_and_b32 v{t}, 1, v{vG}"); A(f"v_lshrrev_b32 v{t+1}, 1, v{vG}")
        A(f"v_lshl_add_u32 v{t}, v{t}, 1, v{t+1}")
        A(f"s_lshl_b32 {sT1}, s2, 3")
        A(f"v_lshl_add_u32 v{vT1}, v{t}, 1, {sT1}")

    def step_tail(self):
        A = self.A
        t = vTM
        A("s_mov_b32 exec_lo, 0x00ff00ff"); A("s_mov_b32 exec_hi, 0x00ff00ff")
        self.nop(6)
        for r in range(4): A(f"v_mul_f32 v{vACC+r}, v{vACC+r}, v{vAC2+3}")
        A(f"v_cvt_pk_bf16_f32 v{t}, v{vACC}, v{vACC+1}")
        A(f"v_cvt_pk_bf16_f32 v{t+1}, v{vACC+2}, v{vACC+3}")
        A(f"ds_write_b64 v{vOK}, {vr(t,2)}")
        A("s_mov_b64 exec, -1")
        A("s_waitcnt lgkmcnt(0)")
        A("s_barrier")
        if self.diag == 0: self.stamp(2)
        af = vSP
        for T in range(4): A(f"ds_read_b128 {vr(af+4*T,4)}, v{vOQ} offset:{L_OB + 64*T}")
        for T in range(4):
            A(f"s_waitcnt lgkmcnt({3-T})" if not self.stamps else "s_waitcnt lgkmcnt(0)")
            for tau in range(4):
                A(f"v_mfma_f32_16x16x32_bf16 {vr(vDF+4*tau,4)}, {vr(af+4*T,4)}, {vr(self.WF[tau]+4*T,4)}, {vr(vDF+4*tau,4)}")
        self.nop(5)
        for tau in range(4):
            d = vDF + 4 * tau
            A(f"v_add_f32 v{d}, v{d}, v{d+1}"); A(f"v_add_f32 v{d+2}, v{d+2}, v{d+3}")
            A(f"v_add_f32 v{d}, v{d}, v{d+2}")
        self.nop(1)
        A(f"v_permlane16_swap_b32 v{vDF}, v{vDF+4}")
        A(f"v_permlane16_swap_b32 v{vDF+8}, v{vDF+12}")
        self.nop(1)
        A(f"v_add_f32 v{vDF}, v{vDF}, v{vDF+4}")
        A(f"v_add_f32 v{vDF+8}, v{vDF+8}, v{vDF+12}")
        A(f"v_cndmask_b32 v{t}, v{vDF+8}, v{vDF}, s[0:1]")
        A(f"v_min_u32 v{t}, -2, v{t}")
        self.nop(2)
        for k in range(1, 4):
            A(f"v_mov_b32_dpp v{t+k}, v{t} quad_perm:[{k},{k},{k},{k}] row_mask:0xf bank_mask:0xf")
        A("s_mov_b32 exec_lo, 0x11111111"); A("s_mov_b32 exec_hi, 0x11111111")
        A(f"buffer_store_dwordx4 {vr(t,4)}, v{vOF}, {srd(R_WS)}, {sTF} offen{'' if self.two_kernel else ' sc1'}")
        A("s_mov_b64 exec, -1")
        if self.diag == 0: self.stamp(3)

    def consumer(self, poll=True):
        A = self.A
        y = vSP
        t = vTM + 4
        sp = self.label("yspin"); ok = self.label("yok")
        A(f"s_mov_b32 {sCNT}, 0")
        self.L(sp)
        fl = " sc1" if poll else ""
        A(f"buffer_load_dwordx4 {vr(y,4)}, v{vOD}, {srd(R_WS)}, {sTQ} offen{fl}")
        A(f"buffer_load_dwordx4 {vr(y+4,4)}, v{vOD}, {srd(R_WS)}, {sTQ} offen offset:1024{fl}")
        if poll:
            A(f"s_add_u32 {sCNT}, {sCNT}, 1")
            A(f"s_cmp_ge_u32 {sCNT}, {SPIN}")
            A("s_waitcnt vmcnt(0)")
            A(f"s_cbranch_scc1 {ok}")
            A(f"v_max3_u32 v{t}, v{y}, v{y+1}, v{y+2}")
            A(f"v_max3_u32 v{t+1}, v{y+3}, v{y+4}, v{y+5}")
            A(f"v_max3_u32 v{t}, v{t}, v{y+6}, v{y+7}")
            A(f"v_max_u32 v{t}, v{t}, v{t+1}")
            A(f"v_cmp_eq_u32 vcc, -1, v{t}")
            A(f"s_cbranch_vccnz {sp}")
            self.L(ok)
        else:
            A("s_waitcnt vmcnt(0)")
        for k in range(4): A(f"v_add_f32 v{y+k}, v{y+k}, v{y+4+k}")
        self.nop(1)
        A(f"v_permlane32_swap_b32 v{y}, v{y+1}"); A(f"v_permlane32_swap_b32 v{y+2}, v{y+3}")
        self.nop(1)
        A(f"v_add_f32 v{y}, v{y}, v{y+1}"); A(f"v_add_f32 v{y+2}, v{y+2}, v{y+3}")
        self.nop(2)
        A(f"v_permlane16_swap_b32 v{y}, v{y+2}")
        self.nop(1)
        A(f"v_add_f32 v{y}, v{y}, v{y+2}")
        for ctl in ("quad_perm:[1,0,3,2]", "quad_perm:[2,3,0,1]", "row_half_mirror", "row_mirror"):
            self.dpp_add(y, ctl)
        A(f"v_cvt_pk_bf16_f32 v{y}, v{y}, v{y}")
        A("s_mov_b32 exec_lo, 0x00010001"); A("s_mov_b32 exec_hi, 0x00010001")
        A(f"global_store_short v{vT1}, v{y}, s[{P_OUT}:{P_OUT+1}]")

    def steps(self, idx):
        S = []
        def add(name, needs, fn): S.append(dict(name=name, needs=needs, fn=fn))
        add("flag", ["K0_3"], self.step_flag)
        add("gate", ["gw"], self.step_gate)
        add("flchk", ["fl"], lambda: self.step_flchk(False))
        add("qred", ["ga"], self.step_qred)
        for G in range(8): add(f"qk{G}", [f"K{G}_3"], lambda G=G: self.step_qk(G))
        add("flchk2", ["fl2"], lambda: self.step_flchk(True))
        add("softmax", [], self.step_softmax)
        lastdma = max(idx["wo15"], idx["wd1"])
        placed = False
        for G in range(8):
            if G == 7: add("scale", ["st1"], self.step_scale)
            if not placed and G >= 2 and idx[f"V{G}_3"] > lastdma:
                add("wof", ["wo15", "wd1"], self.step_wof); placed = True
            add(f"pv{G}", [f"V{G}_3"], lambda G=G: self.step_pv(G))
        names = [s["name"] for s in S]
        assert placed and names.index("wof") < names.index("scale")
        add("tail", [], self.step_tail)
        return S

    def schedule(self, W, LA):
        items = self.items(LA)
        idx = {it["name"]: n for n, it in enumerate(items)}
        steps = self.steps(idx)
        issued = 4
        comp = -1; done = set(); pos = -1
        for st in steps:
            need = max([idx[n] for n in st["needs"]], default=-1)
            pos = max(pos, need)
            def issue(la, w):
                nonlocal issued, comp
                while issued < len(items):
                    it = items[issued]
                    if not it["glue"]:
                        if issued > pos + la: break
                        if it["dep"] and it["dep"] not in done:
                            assert issued > need, (st["name"], it["name"])
                            break
                    if issued - (comp + 1) >= w:
                        self.A(f"s_waitcnt vmcnt({w-1})"); comp = issued - w
                    it["fn"](); issued += 1
            issue(LA, W)
            if comp < need or st["name"] == "flag":
                self.A(f"s_waitcnt vmcnt({issued-1-need})"); comp = max(comp, need)
            if st["name"] in ("qred", "softmax", "wof"): issue(LA + self.boost, W + self.boost)
            self.o.append(f"    ; ---- {st['name']}")
            st["fn"](); done.add(st["name"])
            if st["name"] in self.stamp_after: self.stamp(self.stamp_after[st["name"]])
            if st["name"] == self.wavestamp: self.A("s_memrealtime s[26:27]")
            if st["name"] == "softmax" and self.Wv: LA = self.Wv - 1; W = self.Wv
        assert issued == len(items)

    def kd(self, name, vg, sg):
        return [f".amdhsa_kernel {name}", f"  .amdhsa_next_free_vgpr {vg}", f"  .amdhsa_next_free_sgpr {sg}",
                f"  .amdhsa_accum_offset {vg}", "  .amdhsa_group_segment_fixed_size 0", "  .amdhsa_kernarg_size 104",
                "  .amdhsa_user_sgpr_count 2", "  .amdhsa_user_sgpr_kernarg_segment_ptr 1",
                "  .amdhsa_system_sgpr_workgroup_id_x 1", ".end_amdhsa_kernel"]

    def build(self):
        A = self.A
        K1 = NAME + "_kernel"; K2 = "gated_mix_reduce_kernel"
        o = self.o
        o.append(HEADER.rstrip("\n"))
        if self.two_kernel:
            o.append(f"; @launch kernel={K1} grid=(256,1,1) block=(512,1,1) lds={LDS_BYTES}")
            o.append(f"; @launch kernel={K2} grid=(256,1,1) block=(64,1,1) lds=0")
        else:
            o.append(f"; @launch grid=(256,1,1) block=(512,1,1) lds={LDS_BYTES}")
        o += ['.amdgcn_target "amdgcn-amd-amdhsa--gfx950"', ".text", f".globl {K1}", ".p2align 8",
              f".type {K1},@function", f"{K1}:"]
        self.prologue()
        self.phase0()
        if self.p0only: pass
        elif self.W_even is not None:
            A(f"s_and_b32 {sT0}, {sXCC}, 1"); A("s_cbranch_scc1 L_odd")
            self.schedule(self.W_even, self.LA_even)
            A("s_branch L_join")
            self.L("L_odd")
            self.schedule(self.W, self.LA)
            self.L("L_join")
        else:
            self.schedule(self.W, self.LA)
        if self.wavestamp:
            A("s_waitcnt lgkmcnt(0)")
            A(f"s_add_u32 s28, s40, {STAMP_OFF + 65536}"); A("s_addc_u32 s29, s41, 0")
            A(f"s_lshl_b32 s8, s2, 3"); A(f"s_add_u32 s8, s8, {sW}"); A("s_lshl_b32 s8, s8, 3")
            A("v_mov_b32 v112, s8"); A("v_mov_b32 v114, s26"); A("v_mov_b32 v115, s27")
            A("s_mov_b64 exec, 1")
            A("global_store_dwordx2 v112, v[114:115], s[28:29]")
            A("s_mov_b64 exec, -1")
        A(f"s_cmp_lg_u32 {sW}, 0"); A("s_cbranch_scc1 L_end")
        if not self.two_kernel and not self.p0only:
            self.consumer()
        if self.dbgdiag:
            self.stamp(4)
            A("s_mov_b64 exec, 1")
            A("s_waitcnt lgkmcnt(0)")
            A("v_mov_b32 v1, 0")
            for k in range(5):
                A(f"v_mov_b32 v2, s{sST+2*k}"); A(f"v_not_b32 v3, v2")
                A(f"global_atomic_umax v1, v3, s[{P_DBG}:{P_DBG+1}] offset:{8*k}")
                A(f"global_atomic_umax v1, v2, s[{P_DBG}:{P_DBG+1}] offset:{8*k+4}")
                A("s_waitcnt vmcnt(0)")
        elif self.stamps:
            self.stamp(4)
            A("s_mov_b64 exec, 1")
            A("s_waitcnt lgkmcnt(0)")
            A(f"s_add_u32 s40, s40, {STAMP_OFF}"); A("s_addc_u32 s41, s41, 0")
            A("s_lshl_b32 s8, s2, 6"); A("v_mov_b32 v1, s8")
            for k in range(4):
                A(f"v_mov_b32 v{8+2*k}, s{sST+2*k}"); A(f"v_mov_b32 v{9+2*k}, s{sST+2*k+1}")
            A(f"v_mov_b32 v16, {sXCC}"); A("v_mov_b32 v17, 0")
            A(f"v_mov_b32 v18, s{sST+8}"); A(f"v_mov_b32 v19, s{sST+9}")
            A("global_store_dwordx4 v1, v[8:11], s[40:41]")
            A("global_store_dwordx4 v1, v[12:15], s[40:41] offset:16")
            A("global_store_dwordx4 v1, v[16:19], s[40:41] offset:32")
        self.L("L_end"); A("s_endpgm")
        if self.two_kernel:
            o += [f".globl {K2}", ".p2align 8", f".type {K2},@function", f"{K2}:"]
            A("s_cmp_ge_u32 s2, 256"); A("s_cbranch_scc1 L_end2")
            A(f"s_load_dwordx2 s[{P_OUT}:{P_OUT+1}], s[0:1], 80")
            A(f"s_load_dwordx2 s[{P_WS}:{P_WS+1}], s[0:1], 96")
            t = vTM
            A(f"v_bfe_u32 v{vG}, v0, 4, 2")
            A(f"v_lshlrev_b32 v{vOD}, 4, v0")
            A(f"s_lshl_b32 {sTQ}, s2, 11")
            A(f"v_and_b32 v{t}, 1, v{vG}"); A(f"v_lshrrev_b32 v{t+1}, 1, v{vG}")
            A(f"v_lshl_add_u32 v{t}, v{t}, 1, v{t+1}")
            A(f"s_lshl_b32 {sT1}, s2, 3")
            A(f"v_lshl_add_u32 v{vT1}, v{t}, 1, {sT1}")
            A("s_waitcnt lgkmcnt(0)")
            self.mk(R_WS, P_WS, None, WS_BYTES)
            self.consumer(poll=False)
            self.L("L_end2"); A("s_endpgm")
        o += ['.section .rodata,"a"', ".p2align 6"] + self.kd(K1, 256, 102)
        if self.two_kernel:
            o += [".p2align 6"] + self.kd(K2, 112, 102)
        return "\n".join(o) + "\n"

if __name__ == "__main__":
    import argparse, json
    ap = argparse.ArgumentParser()
    ap.add_argument("out"); ap.add_argument("--opt", default="{}")
    a = ap.parse_args()
    open(a.out, "w").write(Gen(**json.loads(a.opt)).build())
```

```python
import sys, struct, math

NAME = "gated_mix__mha_block_cached__geglu_ffn__decode"
HEADER = open("cdna_kernels/" + NAME + ".s.ref").read().split("; Override launch")[0]

def f32(x):
    return "0x%08x" % struct.unpack("<I", struct.pack("<f", x))[0]

L_QP = 0
L_QS = L_QP + 4096
L_FP = L_QS + 2048
L_HS = L_FP + 2048
L_MX = L_HS + 256
L_LS = L_MX + 64
L_OB = L_LS + 64
L_P0 = 11264
L_WD = L_P0 + 16384
L_WO = L_WD + 16384
L_END = L_WO + 131072
assert L_OB + 8 * 288 <= L_P0
L_P0 = L_WD
L_WD = 11264; L_P0 = L_WD; L_WO = L_WD + 16384; L_END = L_WO + 131072
LDS_BYTES = (L_END + 255) // 256 * 256

WS_Y = 0
WS_S = 0x80000
WS_Q = 0x81000
WS_F = WS_Q + 0x40000
WS_BYTES = WS_F + 176 * 1024
STAMP_OFF = 128 << 20
SPIN = "0x4000"

sW = "s3"
P_X, P_K, P_V, P_WQ, P_WO, P_WG, P_WU = 16, 18, 20, 22, 24, 28, 30
P_WD, P_GW, P_OUT, P_DBG, P_WS = 32, 34, 36, 38, 40
R_K, R_V, R_WQ, R_WO, R_X, R_GW, R_FT, R_WD, R_WS = 44, 48, 52, 56, 60, 64, 68, 76, 80
sH, sB, sS, sSL, sT0, sT1, sT2 = "s4", "s5", "s6", "s7", "s8", "s9", "s10"
sTK, sTV, sTQ, sTF, sTD = "s11", "s12", "s13", "s14", "s15"
sJ, sFT, sCLR, sGA = "s72", "s73", "s74", "s75"
sWOL, sWDL = "s84", "s85"
sDUP0, sDUP1 = "s86", "s87"
sC = "s88"; sCNT = "s89"; sXCC = "s90"; sBH = "s91"
sG, sG1 = "s42", "s43"
sST = 92
def srd(r): return f"s[{r}:{r+3}]"

vL, vI, vG = 1, 2, 3
vOK, vOV, vOQ, vOW, vOF, vOD, vT0, vT1 = 4, 5, 6, 7, 8, 9, 10, 11
vM = 12
vXR = 16
vGA = 20
vBF = 24
vACC = 32
vAC2 = 36
vQF = 40
vSP = 56
vDF = 88
vTM = 104
vK = 112
vX = 240
def vr(a, n): return f"v[{a}:{a+n-1}]"

class Gen:
    def __init__(self, W=60, LA=8, W_even=None, LA_even=None, two_kernel=False, stamps=False,
                 nt_w=False, ga_after=2, k0_first=False, sleep=64, wo_sched=None, st_dep="pv3", diag=0, obar=True, boost=0, k0_late=True, fl2_after=6, p0only=None, dbgdiag=False, stamp_after=None, wavestamp=None, Wv=None, wo_bytes=127*1024+128, nt_k=True, nt_v=True, kvflags=None, fixdur=0):
        self.o = []
        self.W, self.LA, self.W_even, self.LA_even = W, LA, W_even, LA_even
        self.two_kernel, self.stamps, self.nt_w = two_kernel, stamps, nt_w
        self.ga_after, self.k0_first, self.st_dep, self.sleep = ga_after, k0_first, st_dep, sleep
        self.wo_sched = wo_sched or [0, 1, 1, 2, 1, 2, 1, 2, 1, 2, 1, 2, 2, 0, 0, 0]
        assert sum(self.wo_sched) == 18
        self.lab = 0
        self.diag = diag
        self.obar = obar
        self.boost = boost
        self.fixdur = fixdur
        self.nt_k = nt_k; self.nt_v = nt_v; self.kvflags = kvflags
        self.wo_bytes = wo_bytes
        self.wavestamp = wavestamp
        self.Wv = Wv
        self.stamp_after = stamp_after or {}
        if stamp_after: self.diag = 9
        self.dbgdiag = dbgdiag
        if dbgdiag: self.stamps = True
        self.p0only = p0only
        self.k0_late = k0_late
        self.fl2_after = fl2_after
    def A(self, s): self.o.append("    " + s)
    def L(self, s): self.o.append(s + ":")
    def nop(self, n):
        while n > 0:
            k = min(n, 16); self.A(f"s_nop {k-1}"); n -= k
    def label(self, p):
        self.lab += 1; return f"L_{p}_{self.lab}"
    def stamp(self, k):
        if self.stamps: self.A(f"s_memrealtime s[{sST+2*k}:{sST+2*k+1}]")

    def swap_reduce(self, op, v, tmp, which):
        A = self.A
        A(f"v_mov_b32 v{tmp}, v{v}")
        self.nop(2)
        A(f"v_permlane{which}_swap_b32 v{v}, v{tmp}")
        self.nop(1)
        A(f"{op} v{v}, v{v}, v{tmp}")
    def dpp_add(self, v, ctl):
        self.nop(2)
        self.A(f"v_add_f32_dpp v{v}, v{v}, v{v} {ctl} row_mask:0xf bank_mask:0xf")
    def mk(self, r, p, off, size):
        A = self.A
        if off is None:
            A(f"s_mov_b32 s{r}, s{p}"); A(f"s_mov_b32 s{r+1}, s{p+1}")
        else:
            A(f"s_add_u32 s{r}, s{p}, {off}"); A(f"s_addc_u32 s{r+1}, s{p+1}, 0")
        if size is not None: A(f"s_mov_b32 s{r+2}, {size}")
        A(f"s_mov_b32 s{r+3}, 0x20000")

    def prologue(self):
        A = self.A
        A("s_cmp_ge_u32 s2, 256")
        A("s_cbranch_scc1 L_end")
        A("s_load_dwordx16 s[16:31], s[0:1], 0")
        A("s_load_dwordx8 s[32:39], s[0:1], 64")
        A("s_load_dwordx2 s[40:41], s[0:1], 96")
        self.stamp(0)
        if self.fixdur: A("s_memrealtime s[92:93]")
        A("v_lshrrev_b32 v10, 6, v0")
        A(f"v_and_b32 v{vL}, 63, v0")
        A(f"v_readfirstlane_b32 {sW}, v10")
        A(f"v_and_b32 v{vI}, 15, v0")
        A(f"v_bfe_u32 v{vG}, v0, 4, 2")
        A(f"s_and_b32 {sT0}, s2, 7")
        A(f"s_lshr_b32 {sT1}, s2, 3")
        A(f"s_and_b32 {sT2}, {sT1}, 3")
        A(f"s_lshl_b32 {sH}, {sT0}, 2")
        A(f"s_add_u32 {sH}, {sH}, {sT2}")
        A(f"s_lshr_b32 {sJ}, {sT1}, 2")
        A(f"s_lshr_b32 {sB}, {sT1}, 4")
        A(f"s_and_b32 {sS}, {sJ}, 3")
        A(f"s_lshl_b32 {sBH}, {sB}, 5")
        A(f"s_add_u32 {sBH}, {sBH}, {sH}")
        A(f"s_lshl_b32 {sFT}, {sT2}, 3")
        A(f"s_add_u32 {sFT}, {sFT}, {sT0}")
        A(f"s_and_b32 {sT1}, {sT1}, 15")
        A(f"s_mul_i32 {sSL}, {sT0}, 11")
        A(f"s_add_u32 {sSL}, {sSL}, {sT1}")
        A(f"s_cmp_lt_u32 {sT1}, 11")
        A(f"s_cselect_b32 {sSL}, {sSL}, 1000")
        A(f"s_cmp_lt_u32 {sSL}, 86")
        A(f"s_cselect_b32 {sT2}, 1, 0")
        A(f"s_cselect_b32 {sSL}, {sSL}, 0")
        A(f"v_and_b32 v{vOK}, 7, v0")
        A(f"v_lshlrev_b32 v{vOK}, 8, v{vOK}")
        A(f"v_lshl_add_u32 v{vOK}, v{vG}, 4, v{vOK}")
        A(f"v_and_b32 v{vT1}, 8, v0")
        A(f"v_lshl_add_u32 v{vOK}, v{vT1}, 3, v{vOK}")
        A(f"v_lshlrev_b32 v{vT1}, 4, v{vI}")
        A(f"v_lshl_add_u32 v{vOV}, v{vG}, 10, v{vT1}")
        A(f"s_lshl_b32 {sT0}, {sBH}, 20")
        A(f"s_lshl_b32 {sT1}, {sS}, 18")
        A(f"s_add_u32 {sT0}, {sT0}, {sT1}")
        A(f"s_lshl_b32 {sT1}, {sW}, 15")
        A(f"s_add_u32 {sT0}, {sT0}, {sT1}")
        A(f"s_mov_b32 s{R_K+2}, 32768"); A(f"s_mov_b32 s{R_K+3}, 0x20000")
        A("s_waitcnt lgkmcnt(0)")
        A(f"s_add_u32 s{R_K}, s{P_K}, {sT0}"); A(f"s_addc_u32 s{R_K+1}, s{P_K+1}, 0")
        A(f"s_add_u32 s{R_V}, s{P_V}, {sT0}"); A(f"s_addc_u32 s{R_V+1}, s{P_V+1}, 0")
        self.mk(R_WS, P_WS, None, WS_BYTES)

    def kv_load(self, kind, G, t):
        A = self.A
        st = sTK if kind == "K" else sTV
        if t == 0 and G > 0: A(f"s_movk_i32 {st}, {G*4096}")
        so = st if G > 0 else "0"
        if kind == "K":
            A(f"buffer_load_dwordx4 {vr(vK+16*G+4*t,4)}, v{vOK}, {srd(R_K)}, {so} offen offset:{(t>>1)*2048 + (t&1)*128}{' ' + self.kvflags if self.kvflags is not None else ' nt' if self.nt_k else ''}")
        else:
            dst = vX if G == 0 else vK + 16 * (G - 1)
            A(f"buffer_load_dwordx4 {vr(dst+4*t,4)}, v{vOV}, {srd(R_V)}, {so} offen offset:{256*t}{' ' + self.kvflags if self.kvflags is not None else ' nt' if self.nt_v else ''}")

    def bsel(self, src, half, bset):
        A = self.A
        t = vTM + 4 + bset
        A(f"v_perm_b32 v{t}, v{src}, v{src}, {sDUP1 if half else sDUP0}")
        for u in range(4): A(f"v_and_b32 v{vBF+4*bset+u}, v{t}, v{vM+u}")

    def phase0(self):
        A = self.A
        ntw = " nt" if self.nt_w else ""
        if self.k0_first:
            for t in range(4): self.kv_load("K", 0, t)
        self.mk(R_X, P_X, None, 2048)
        A(f"s_lshl_b32 {sT0}, {sJ}, 3"); A(f"s_add_u32 {sT0}, {sT0}, {sW}")
        A(f"s_lshl_b32 {sT1}, {sT0}, 4")
        A(f"v_lshrrev_b32 v{vT0}, 3, v{vI}")
        A(f"v_lshlrev_b32 v{vT0}, 10, v{vT0}")
        A(f"v_lshl_add_u32 v{vT0}, v{vG}, 2, v{vT0}")
        A(f"buffer_load_dword v{vXR}, v{vT0}, {srd(R_X)}, {sT1} offen")
        A(f"s_lshl_b32 {sT1}, {sT0}, 16"); A(f"s_lshl_b32 {sTQ}, {sH}, 8"); A(f"s_add_u32 {sT1}, {sT1}, {sTQ}")
        self.mk(R_WQ, P_WQ, sT1, 7 * 8192 + 256)
        A(f"v_lshl_add_u32 v{vOQ}, v{vG}, 14, v{vT1}")
        A(f"s_movk_i32 {sTQ}, 8192")
        if self.p0only in (None, "wq", "both"):
            A(f"buffer_load_dwordx4 {vr(vDF,4)}, v{vOQ}, {srd(R_WQ)}, 0 offen{ntw}")
            A(f"buffer_load_dwordx4 {vr(vDF+4,4)}, v{vOQ}, {srd(R_WQ)}, {sTQ} offen{ntw}")
        A(f"s_cmp_ge_u32 {sFT}, 11")
        A(f"s_cselect_b32 s{R_FT}, s{P_WU}, s{P_WG}"); A(f"s_cselect_b32 s{R_FT+1}, s{P_WU+1}, s{P_WG+1}")
        A(f"s_cselect_b32 {sT1}, 11, 0")
        A(f"s_sub_u32 {sT1}, {sFT}, {sT1}")
        A(f"s_lshl_b32 {sT1}, {sT1}, 8")
        A(f"s_mul_i32 {sT0}, {sT0}, {8*2752}")
        A(f"s_add_u32 {sT1}, {sT1}, {sT0}")
        A(f"s_sub_u32 s{R_FT+2}, {512*2752}, {sT1}")
        A(f"s_cmp_lt_u32 {sFT}, 22")
        A(f"s_cselect_b32 s{R_FT+2}, s{R_FT+2}, 0")
        A(f"s_cselect_b32 {sT1}, {sT1}, 0")
        A(f"s_add_u32 s{R_FT}, s{R_FT}, {sT1}"); A(f"s_addc_u32 s{R_FT+1}, s{R_FT+1}, 0")
        A(f"s_mov_b32 s{R_FT+3}, 0x20000")
        A(f"v_mul_u32_u24 v{vOF}, {2*2752}, v{vG}")
        A(f"v_add_u32 v{vOF}, v{vOF}, v{vT1}")
        if self.p0only in (None, "ft", "both"):
            A(f"buffer_load_dwordx4 {vr(vDF+8,4)}, v{vOF}, {srd(R_FT)}, 0 offen{ntw}")
            A(f"buffer_load_dwordx4 {vr(vDF+12,4)}, v{vOF}, {srd(R_FT)}, 0 offen offset:2752{ntw}")
        if self.p0only == "k0":
            for t in range(4): self.kv_load("K", 0, t)
        if self.p0only:
            self.stamp(1); A("s_waitcnt vmcnt(0)"); self.stamp(2); A("s_barrier"); self.stamp(3)
            A(f"s_getreg_b32 {sXCC}, hwreg(HW_REG_XCC_ID)")
            return
        A(f"v_lshlrev_b32 v{vT1}, 4, v{vL}")
        if self.obar and not self.k0_late: A("s_barrier")
        lj = self.label("clsJ")
        if not self.k0_first and not self.k0_late:
            for t in range(4): self.kv_load("K", 0, t)
        self.mk(R_GW, P_GW, None, 1024)
        A(f"s_mov_b32 s{R_V+2}, 32768"); A(f"s_mov_b32 s{R_V+3}, 0x20000")
        A(f"s_lshl_b32 {sT0}, {sSL}, 14"); A(f"s_lshl_b32 {sT1}, {sW}, 7"); A(f"s_add_u32 {sT0}, {sT0}, {sT1}")
        self.mk(R_WD, P_WD, sT0, None)
        A(f"s_mul_i32 s{R_WD+2}, {sT2}, {15*1024+128}")
        A(f"s_lshl_b32 {sT0}, {sH}, 17"); A(f"s_add_u32 {sT0}, {sT0}, {sT1}")
        self.mk(R_WO, P_WO, sT0, self.wo_bytes)
        t = vTM + 4
        A(f"v_and_b32 v{t}, 7, v{vL}")
        A(f"v_lshlrev_b32 v{t}, 4, v{t}")
        A(f"v_lshrrev_b32 v{t+1}, 3, v{vL}")
        A(f"v_lshl_add_u32 v{vOD}, v{t+1}, 10, v{t}")
        A(f"v_and_b32 v{t+2}, 3, v{t+1}")
        A(f"v_lshlrev_b32 v{t+2}, 3, v{t+2}")
        A(f"v_lshrrev_b32 v{t+1}, 2, v{t+1}")
        A(f"v_add_u32 v{t+1}, v{t+1}, v{t+2}")
        A(f"v_lshl_add_u32 v{vOW}, v{t+1}, 10, v{t}")
        A(f"s_lshl_b32 {sWOL}, {sW}, 14"); A(f"s_add_u32 {sWOL}, {sWOL}, {L_WO}")
        A(f"s_lshl_b32 {sWDL}, {sW}, 11"); A(f"s_add_u32 {sWDL}, {sWDL}, {L_WD}")
        A(f"v_and_b32 v{t}, 1, v{vI}")
        A(f"v_lshlrev_b32 v{t}, 4, v{t}")
        A(f"v_mov_b32 v{t+1}, 0xffff")
        A(f"v_lshlrev_b32 v{t+1}, v{t}, v{t+1}")
        A(f"v_bfe_u32 v{t}, v{vI}, 1, 2")
        for u in range(4):
            A(f"v_cmp_eq_u32 vcc, {u}, v{t}")
            self.nop(2)
            A(f"v_cndmask_b32 v{vM+u}, 0, v{t+1}, vcc")
        A(f"s_mov_b32 {sDUP0}, 0x01000100"); A(f"s_mov_b32 {sDUP1}, 0x03020302")
        A(f"s_mov_b32 {sC}, {f32(math.log2(math.e) / math.sqrt(128.0))}")
        A(f"s_getreg_b32 {sXCC}, hwreg(HW_REG_XCC_ID)")
        A(f"s_lshr_b32 {sT0}, {sSL}, 3")
        A(f"s_lshl_b32 {sCLR}, 0x801, {sT0}")
        A(f"s_lshl_b32 {sT0}, 1, {sFT}")
        A(f"s_or_b32 {sCLR}, {sCLR}, {sT0}"); A(f"s_mov_b32 {sGA}, {sCLR}")
        A(f"s_lshl_b32 {sT0}, {sH}, 13"); A(f"s_lshl_b32 {sT1}, {sB}, 7"); A(f"s_add_u32 {sT0}, {sT0}, {sT1}")
        A(f"s_add_u32 {sT0}, {sT0}, {WS_Q}")
        A(f"v_lshrrev_b32 v{t}, 3, v{vL}")
        A(f"v_and_b32 v{t+1}, 7, v{vL}")
        A(f"v_lshlrev_b32 v{t+1}, 4, v{t+1}")
        A(f"v_lshl_add_u32 v{t+2}, v{t}, 8, {sT0}")
        A(f"s_lshr_b32 {sT0}, {sSL}, 3"); A(f"s_lshl_b32 {sT0}, {sT0}, 13"); A(f"s_add_u32 {sT0}, {sT0}, {sT1}")
        A(f"s_bfe_u32 {sT1}, {sSL}, 0x20001"); A(f"s_lshl_b32 {sT1}, {sT1}, 8"); A(f"s_add_u32 {sT0}, {sT0}, {sT1}")
        A(f"s_add_u32 {sT0}, {sT0}, {WS_F}")
        A(f"v_and_b32 v{t}, 1, v{t}")
        A(f"v_mul_u32_u24 v{t}, {11*8192}, v{t}")
        A(f"v_add_u32 v{t}, {sT0}, v{t}")
        A(f"v_cmp_gt_u32 vcc, 32, v{vL}")
        A(f"s_lshl_b32 {sT1}, {sW}, 10")
        self.nop(1)
        A(f"v_cndmask_b32 v{t}, v{t}, v{t+2}, vcc")
        A(f"v_add3_u32 v{vXR+1}, v{t}, v{t+1}, {sT1}")
        if self.k0_late:
            for t in range(4):
                A(f"s_waitcnt vmcnt({[2,2,2,3][t]})")
                self.kv_load("K", 0, t)
        else:
            A(f"s_waitcnt vmcnt({0 if self.k0_first else 4})")
        if self.diag == 2: self.stamp(1)
        self.bsel(vXR, 0, 0); self.bsel(vXR, 1, 1)
        A(f"s_lshl_b32 {sT0}, {sW}, 10"); A(f"s_add_u32 {sT0}, {sT0}, {L_P0}")
        A(f"v_mfma_f32_16x16x32_bf16 {vr(vACC,4)}, {vr(vDF,4)}, {vr(vBF,4)}, 0")
        A(f"v_mfma_f32_16x16x32_bf16 {vr(vAC2,4)}, {vr(vDF+8,4)}, {vr(vBF,4)}, 0")
        A(f"v_mfma_f32_16x16x32_bf16 {vr(vACC,4)}, {vr(vDF+4,4)}, {vr(vBF+4,4)}, {vr(vACC,4)}")
        A(f"v_mfma_f32_16x16x32_bf16 {vr(vAC2,4)}, {vr(vDF+12,4)}, {vr(vBF+4,4)}, {vr(vAC2,4)}")
        A(f"v_lshl_add_u32 v{vT0}, v{vL}, 4, {sT0}")
        self.nop(7)
        A(f"ds_write_b128 v{vT0}, {vr(vACC,4)}")
        A(f"ds_write_b128 v{vT0}, {vr(vAC2,4)} offset:8192")
        A("s_waitcnt lgkmcnt(0)")
        A("s_barrier")
        if self.diag == 2: self.stamp(2)
        A(f"s_cmp_lg_u32 {sW}, 0"); A(f"s_cbranch_scc1 {lj}")
        d = vSP; d2 = vK + 96
        for w in range(8): A(f"ds_read_b128 {vr(d+4*w,4)}, v{vT0} offset:{1024*w}")
        for w in range(4): A(f"ds_read_b128 {vr(d2+4*w,4)}, v{vT0} offset:{8192+1024*w}")
        A(f"s_lshl_b32 {sT0}, {sH}, 3"); A(f"s_add_u32 {sT0}, {sT0}, {sJ}"); A(f"s_lshl_b32 {sT0}, {sT0}, 10")
        A(f"s_add_u32 {sT0}, {sT0}, {WS_Q}")
        A(f"s_lshl_b32 {sT1}, {sFT}, 3"); A(f"s_add_u32 {sT1}, {sT1}, {sJ}"); A(f"s_lshl_b32 {sT1}, {sT1}, 10")
        A(f"s_add_u32 {sT1}, {sT1}, {WS_F}")
        A("s_waitcnt lgkmcnt(4)")
        for w in range(4, 8): A(f"ds_read_b128 {vr(d2+4*w,4)}, v{vT0} offset:{8192+1024*w}")
        for w in range(1, 8):
            for r in range(4): A(f"v_add_f32 v{d+r}, v{d+r}, v{d+4*w+r}")
        A(f"buffer_store_dwordx4 {vr(d,4)}, v{vT1}, {srd(R_WS)}, {sT0} offen sc1")
        A("s_waitcnt lgkmcnt(0)")
        for w in range(1, 8):
            for r in range(4): A(f"v_add_f32 v{d2+r}, v{d2+r}, v{d2+4*w+r}")
        A(f"buffer_store_dwordx4 {vr(d2,4)}, v{vT1}, {srd(R_WS)}, {sT1} offen sc1")
        for k in range(4): A(f"v_mov_b32 v{vTM+k}, -1")
        if not self.two_kernel:
            A(f"s_lshl_b32 {sT0}, s2, 11")
            A(f"buffer_store_dwordx4 {vr(vTM,4)}, v{vT1}, {srd(R_WS)}, {sT0} offen sc1")
            A(f"buffer_store_dwordx4 {vr(vTM,4)}, v{vT1}, {srd(R_WS)}, {sT0} offen offset:1024 sc1")
        A(f"s_lshl_b32 {sT0}, s2, 3"); A(f"s_add_u32 {sT0}, {sT0}, {WS_S}")
        A("s_mov_b64 exec, 1")
        A(f"buffer_store_dwordx2 {vr(vTM,2)}, v{vT1}, {srd(R_WS)}, {sT0} offen sc1")
        A("s_mov_b64 exec, -1")
        self.nop(2)
        self.L(lj)

    def items(self, LA):
        A = self.A
        it = []
        ntw = " nt" if self.nt_w else ""
        def add(name, fn, dep=None, glue=False): it.append(dict(name=name, fn=fn, dep=dep, glue=glue))
        def grp(kind, G, dep):
            for t in range(4): add(f"{kind}{G}_{t}", lambda t=t: self.kv_load(kind, G, t), dep if t == 0 else None)
        dma = []
        for t in range(2):
            def fn(t=t):
                A(f"s_add_u32 m0, {sWDL}, {t*1024}")
                A(f"s_movk_i32 {sTD}, {t*8192}")
                A(f"buffer_load_dwordx4 v{vOD}, {srd(R_WD)}, {sTD} offen{ntw} lds")
            dma.append((f"wd{t}", fn, "qred"))
        wo = []
        for t in range(16):
            def fn(t=t):
                A(f"s_add_u32 m0, {sWOL}, {t*1024}")
                A(f"s_mov_b32 {sTD}, {(32*(t>>2) + 2*(t&3))*1024}")
                A(f"buffer_load_dwordx4 v{vOW}, {srd(R_WO)}, {sTD} offen{ntw} lds")
            wo.append((f"wo{t}", fn, None))
        dma = wo[:14] + dma + wo[14:]
        def put(slot):
            for _ in range(self.wo_sched[slot]):
                n, fn, dep = dma.pop(0); add(n, fn, dep)
        def ga():
            A("s_mov_b32 exec_hi, 0xffff")
            A(f"buffer_load_dwordx4 {vr(vGA,4)}, v{vXR+1}, {srd(R_WS)}, 0 offen sc1")
            A("s_mov_b32 exec_hi, -1")
        def fl():
            A(f"v_lshlrev_b32 v{vT0}, 2, v{vL}")
            A(f"global_load_dword v{vTM+7}, v{vT0}, s[{P_DBG}:{P_DBG+1}] sc1")
        ga_pos = None
        for G in range(8):
            grp("K", G, None); put(G)
            if G == 1:
                def gx():
                    A(f"s_lshl_b32 {sT1}, {sB}, 10")
                    A(f"buffer_load_dwordx4 {vr(vQF,4)}, v{vT1}, {srd(R_X)}, {sT1} offen")
                add("gx", gx)
                add("gw", lambda: A(f"buffer_load_dwordx4 {vr(vQF+4,4)}, v{vT1}, {srd(R_GW)}, 0 offen"))
            if G == self.ga_after: add("fl", fl); ga_pos = len(it) + LA
        add("fl2", fl, "qred")
        it.insert(min(ga_pos, [n for n, x in enumerate(it) if x["name"] == "K7_3"][0]), dict(name="ga", fn=ga, dep="flchk", glue=False))
        def st(k):
            def fn():
                if k == 0:
                    A(f"s_lshl_b32 {sT0}, {sBH}, 5"); A(f"s_add_u32 {sT0}, {sT0}, {WS_S}")
                    A(f"v_mov_b32 v{vT0}, 0")
                A(f"buffer_load_dwordx4 {vr(vXR+4*k,4)}, v{vT0}, {srd(R_WS)}, {sT0} offen offset:{16*k} sc1")
            return fn
        for G in range(8):
            if G == 7:
                add("st0", st(0), self.st_dep); add("st1", st(1), glue=True)
            grp("V", G, f"qk{G-1}" if G else None); put(8 + G)
        return it

    def step_gate(self):
        A = self.A
        x, w = vQF, vQF + 4
        t = vTM
        acc = vT0
        A(f"v_mov_b32 v{acc}, 0")
        for k in range(4):
            A(f"v_lshlrev_b32 v{t}, 16, v{x+k}"); A(f"v_lshlrev_b32 v{t+1}, 16, v{w+k}")
            A(f"v_and_b32 v{t+2}, 0xffff0000, v{x+k}"); A(f"v_and_b32 v{t+3}, 0xffff0000, v{w+k}")
            A(f"v_mul_f32 v{t}, v{t}, v{t+1}"); A(f"v_mul_f32 v{t+2}, v{t+2}, v{t+3}")
            A(f"v_cvt_pk_bf16_f32 v{t}, v{t}, v{t+2}")
            A(f"v_lshlrev_b32 v{t+1}, 16, v{t}"); A(f"v_and_b32 v{t}, 0xffff0000, v{t}")
            A(f"v_add_f32 v{acc}, v{acc}, v{t+1}"); A(f"v_add_f32 v{acc}, v{acc}, v{t}")
        for ctl in ("quad_perm:[1,0,3,2]", "quad_perm:[2,3,0,1]", "row_half_mirror", "row_mirror"):
            self.dpp_add(acc, ctl)
        self.swap_reduce("v_add_f32", acc, t, 16)
        self.swap_reduce("v_add_f32", acc, t, 32)
        A(f"v_cvt_pk_bf16_f32 v{acc}, v{acc}, v{acc}")
        A(f"v_and_b32 v{acc}, 0xffff0000, v{acc}")
        A(f"v_mul_f32 v{acc}, {f32(-math.log2(math.e))}, v{acc}")
        A(f"v_exp_f32 v{acc}, v{acc}")
        self.nop(1)
        A(f"v_add_f32 v{acc}, 1.0, v{acc}")
        A(f"v_rcp_f32 v{acc}, v{acc}")
        self.nop(1)
        A(f"v_cvt_pk_bf16_f32 v{acc}, v{acc}, v{acc}")
        A(f"v_and_b32 v{acc}, 0xffff0000, v{acc}")
        A(f"v_sub_f32 v{t}, 1.0, v{acc}")
        A(f"v_cvt_pk_bf16_f32 v{t}, v{t}, v{t}")
        A(f"v_and_b32 v{t}, 0xffff0000, v{t}")
        self.nop(1)
        A(f"v_readfirstlane_b32 {sG}, v{acc}")
        A(f"v_readfirstlane_b32 {sG1}, v{t}")

    def step_flag(self):
        A = self.A
        sk = self.label("noflag")
        A(f"s_cmp_lg_u32 {sW}, 0"); A(f"s_cbranch_scc1 {sk}")
        if self.dbgdiag:
            A(f"s_and_b32 {sT0}, s2, 31"); A(f"s_add_u32 {sT0}, {sT0}, 32"); A(f"s_lshl_b32 {sT0}, {sT0}, 2")
        else:
            A(f"s_and_b32 {sT0}, s2, 63"); A(f"s_lshl_b32 {sT0}, {sT0}, 2")
        A(f"v_mov_b32 v{vTM+5}, {sT0}"); A(f"v_mov_b32 v{vTM+6}, 1")
        A("s_mov_b64 exec, 1")
        A(f"global_atomic_add v{vTM+5}, v{vTM+6}, s[{P_DBG}:{P_DBG+1}]")
        A("s_mov_b64 exec, -1")
        if self.diag == 2: self.stamp(3)
        self.L(sk)

    def step_flchk(self, full):
        A = self.A
        ok = self.label("flok"); sp = self.label("flspin")
        def test():
            A(f"v_cmp_gt_u32 vcc, {8 if self.dbgdiag else 4}, v{vTM+7}")
            if not full: A("s_and_b64 vcc, vcc, s[74:75]")
            if self.dbgdiag: A("s_mov_b32 s0, 0"); A("s_mov_b32 s1, -1"); A("s_and_b64 vcc, vcc, s[0:1]")
        test()
        A(f"s_cbranch_vccz {ok}")
        A(f"s_mov_b32 {sCNT}, 0")
        A(f"v_lshlrev_b32 v{vT0}, 2, v{vL}")
        self.L(sp)
        A(f"s_sleep {self.sleep}")
        A(f"global_load_dword v{vTM+7}, v{vT0}, s[{P_DBG}:{P_DBG+1}] sc1")
        A(f"s_add_u32 {sCNT}, {sCNT}, 1")
        A(f"s_cmp_ge_u32 {sCNT}, {SPIN}")
        A("s_waitcnt vmcnt(0)")
        A(f"s_cbranch_scc1 {ok}")
        test()
        A(f"s_cbranch_vccnz {sp}")
        self.L(ok)
        if self.diag == 0 and not full: self.stamp(1)

    def step_qred(self):
        A = self.A
        t = vTM
        A(f"v_and_b32 v{t+1}, 7, v{vL}"); A(f"v_lshrrev_b32 v{t+2}, 3, v{vL}")
        A(f"s_lshl_b32 {sT0}, {sW}, 9"); A(f"s_add_u32 {sT0}, {sT0}, {L_QP}")
        A(f"v_lshl_add_u32 v{t}, v{t+2}, 7, {sT0}")
        A(f"v_lshl_add_u32 v{t}, v{t+1}, 2, v{t}")
        A("s_mov_b32 exec_hi, 0")
        for r in range(4): A(f"ds_write_b32 v{t}, v{vGA+r} offset:{32*r}")
        A("s_mov_b32 exec_lo, 0"); A("s_mov_b32 exec_hi, 0xffff")
        A(f"s_lshl_b32 {sT0}, {sW}, 8"); A(f"s_add_u32 {sT0}, {sT0}, {L_FP - 512}")
        A(f"v_lshl_add_u32 v{t}, v{vL}, 4, {sT0}")
        A(f"ds_write_b128 v{t}, {vr(vGA,4)}")
        A("s_mov_b64 exec, -1")
        A("s_waitcnt lgkmcnt(0)")
        A("s_barrier")
        d = vSP
        A(f"v_lshlrev_b32 v{t}, 3, v{vL}")
        for w in range(8): A(f"ds_read_b64 {vr(d+2*w,2)}, v{t} offset:{L_QP + 512*w}")
        e = vSP + 16
        A(f"s_and_b32 {sT0}, {sSL}, 1"); A(f"s_lshl_b32 {sT0}, {sT0}, 3")
        A(f"v_lshl_add_u32 v{t+3}, v{t+2}, 8, {sT0}")
        A(f"v_lshl_add_u32 v{t+3}, v{t+1}, 4, v{t+3}")
        A(f"ds_read_b64 {vr(e,2)}, v{t+3} offset:{L_FP}")
        A(f"ds_read_b64 {vr(e+2,2)}, v{t+3} offset:{L_FP+128}")
        A("s_waitcnt lgkmcnt(2)")
        for w in range(1, 8):
            A(f"v_add_f32 v{d}, v{d}, v{d+2*w}"); A(f"v_add_f32 v{d+1}, v{d+1}, v{d+2*w+1}")
        A(f"v_cvt_pk_bf16_f32 v{d}, v{d}, v{d+1}")
        A(f"s_lshl_b32 {sT0}, {sW}, 8"); A(f"s_add_u32 {sT0}, {sT0}, {L_QS}")
        A(f"v_lshl_add_u32 v{t}, v{vL}, 2, {sT0}")
        A(f"ds_write_b32 v{t}, v{d}")
        A(f"v_lshl_add_u32 v{t}, v{vG}, 4, {sT0}")
        A(f"v_and_b32 v{t+3}, 8, v{vL}")
        A(f"v_lshl_add_u32 v{t}, v{t+3}, 3, v{t}")
        A("s_waitcnt lgkmcnt(0)")
        for T in range(2): A(f"ds_read_b128 {vr(vQF+4*T,4)}, v{t} offset:{128*T}")
        A(f"v_permlane32_swap_b32 v{e}, v{e+1}"); A(f"v_permlane32_swap_b32 v{e+2}, v{e+3}")
        self.nop(1)
        A(f"v_add_f32 v{e}, v{e}, v{e+1}"); A(f"v_add_f32 v{e+2}, v{e+2}, v{e+3}")
        self.swap_reduce("v_add_f32", e, e + 1, 16)
        self.swap_reduce("v_add_f32", e + 2, e + 3, 16)
        self.dpp_add(e, "row_ror:8"); self.dpp_add(e + 2, "row_ror:8")
        A(f"v_cvt_pk_bf16_f32 v{e}, v{e}, v{e+2}")
        A(f"v_and_b32 v{e+2}, 0xffff0000, v{e}")
        A(f"v_lshlrev_b32 v{e}, 16, v{e}")
        k0 = math.sqrt(2.0 / math.pi)
        A(f"v_mul_f32 v{e+1}, v{e}, v{e}")
        A(f"v_mov_b32 v{e+3}, {f32(-2.0 * k0 * math.log2(math.e))}")
        A(f"v_mul_f32 v{e+1}, {f32(0.044715)}, v{e+1}")
        A(f"v_add_f32 v{e+1}, 1.0, v{e+1}")
        A(f"v_mul_f32 v{e+1}, v{e+1}, v{e}")
        A(f"v_mul_f32 v{e+1}, v{e+1}, v{e+3}")
        A(f"v_exp_f32 v{e+1}, v{e+1}")
        self.nop(1)
        A(f"v_add_f32 v{e+1}, 1.0, v{e+1}")
        A(f"v_rcp_f32 v{e+1}, v{e+1}")
        self.nop(1)
        A(f"v_mul_f32 v{e}, v{e}, v{e+1}")
        A(f"v_cvt_pk_bf16_f32 v{e}, v{e}, v{e}")
        A(f"v_and_b32 v{e}, 0xffff0000, v{e}")
        A(f"v_mul_f32 v{e}, v{e}, v{e+2}")
        A(f"v_cvt_pk_bf16_f32 v{e}, v{e}, v{e}")
        A(f"s_lshl_b32 {sT0}, {sW}, 5"); A(f"s_add_u32 {sT0}, {sT0}, {L_HS}")
        A(f"v_lshrrev_b32 v{t+2}, 5, v{vL}")
        A(f"v_lshl_add_u32 v{t+2}, v{t+2}, 3, v{t+1}")
        A(f"v_lshl_add_u32 v{t+2}, v{t+2}, 1, {sT0}")
        A(f"ds_write_b16 v{t+2}, v{e}")
        A(f"v_lshl_add_u32 v{t+2}, v{vG}, 3, {sT0}")
        A("s_waitcnt lgkmcnt(0)")
        A(f"ds_read_b64 {vr(vAC2,2)}, v{t+2}")
        A(f"v_cmp_eq_u32 vcc, 0, v{t+1}")
        A("s_waitcnt lgkmcnt(0)")
        self.nop(1)
        A(f"v_cndmask_b32 v{vAC2}, 0, v{vAC2}, vcc"); A(f"v_cndmask_b32 v{vAC2+1}, 0, v{vAC2+1}, vcc")

    def qk_combine(self, G):
        A = self.A
        a = vSP + 4 * G; b = vQF + 8 + 4 * (G & 1)
        for r in range(4): A(f"v_permlane32_swap_b32 v{a+r}, v{b+r}")
        for r in range(4): A(f"v_add_f32_dpp v{a+r}, v{b+r}, v{a+r} row_ror:8 row_mask:0xf bank_mask:0xf")
    def step_qk(self, G):
        A = self.A
        a = vSP + 4 * G; b = vQF + 8 + 4 * (G & 1); k = vK + 16 * G
        A(f"v_mfma_f32_16x16x32_bf16 {vr(a,4)}, {vr(k,4)}, {vr(vQF,4)}, 0")
        A(f"v_mfma_f32_16x16x32_bf16 {vr(b,4)}, {vr(k+8,4)}, {vr(vQF,4)}, 0")
        A(f"v_mfma_f32_16x16x32_bf16 {vr(a,4)}, {vr(k+4,4)}, {vr(vQF+4,4)}, {vr(a,4)}")
        A(f"v_mfma_f32_16x16x32_bf16 {vr(b,4)}, {vr(k+12,4)}, {vr(vQF+4,4)}, {vr(b,4)}")
        if G > 0:
            self.nop(4)
            self.qk_combine(G - 1)

    def step_softmax(self):
        A = self.A
        t = vTM
        m = vT1
        self.qk_combine(7)
        A(f"v_max3_f32 v{m}, v{vSP}, v{vSP+1}, v{vSP+2}")
        for k in range(3, 31, 2): A(f"v_max3_f32 v{m}, v{m}, v{vSP+k}, v{vSP+k+1}")
        A(f"v_max_f32 v{m}, v{m}, v{vSP+31}")
        self.swap_reduce("v_max_f32", m, t, 16)
        self.swap_reduce("v_max_f32", m, t, 32)
        A(f"s_lshl_b32 {sT0}, {sW}, 2")
        A(f"v_mov_b32 v{t+4}, {sT0}")
        A("s_mov_b64 exec, 1")
        A(f"ds_write_b32 v{t+4}, v{m} offset:{L_MX}")
        A("s_mov_b64 exec, -1")
        A(f"v_mov_b32 v{t+5}, 0")
        A("s_waitcnt lgkmcnt(0)")
        A("s_barrier")
        A(f"ds_read_b128 {vr(vBF,4)}, v{t+5} offset:{L_MX}")
        A(f"ds_read_b128 {vr(vBF+4,4)}, v{t+5} offset:{L_MX+16}")
        A("s_waitcnt lgkmcnt(0)")
        A(f"v_max3_f32 v{m}, v{vBF}, v{vBF+1}, v{vBF+2}")
        A(f"v_max3_f32 v{m}, v{m}, v{vBF+3}, v{vBF+4}")
        A(f"v_max3_f32 v{m}, v{m}, v{vBF+5}, v{vBF+6}")
        A(f"v_max_f32 v{m}, v{m}, v{vBF+7}")
        A(f"v_mul_f32 v{m}, {sC}, v{m}")
        l = vT0
        for k in range(32):
            A(f"v_fma_f32 v{vSP+k}, v{vSP+k}, {sC}, -v{m}")
        for k in range(32):
            A(f"v_exp_f32 v{vSP+k}, v{vSP+k}")
        A(f"v_add_f32 v{l}, v{vSP}, v{vSP+1}"); A(f"v_add_f32 v{t}, v{vSP+2}, v{vSP+3}")
        for k in range(4, 32, 2):
            A(f"v_add_f32 v{l}, v{l}, v{vSP+k}"); A(f"v_add_f32 v{t}, v{t}, v{vSP+k+1}")
        A(f"v_add_f32 v{l}, v{l}, v{t}")
        self.swap_reduce("v_add_f32", l, t, 16)
        self.swap_reduce("v_add_f32", l, t, 32)
        A("s_mov_b64 exec, 1")
        A(f"ds_write_b32 v{t+4}, v{l} offset:{L_LS}")
        A("s_mov_b64 exec, -1")
        for k in range(32):
            A(f"v_cvt_pk_bf16_f32 v{vSP+k}, v{vSP+k}, v{vSP+k}")
        A(f"v_mov_b32 v{vAC2+2}, v{m}")
        A("s_waitcnt lgkmcnt(0)")
        A("s_barrier")
        skip = self.label("nopub")
        A(f"s_cmp_lg_u32 {sW}, 0"); A(f"s_cbranch_scc1 {skip}")
        A(f"ds_read_b128 {vr(vBF,4)}, v{t+5} offset:{L_LS}")
        A(f"ds_read_b128 {vr(vBF+4,4)}, v{t+5} offset:{L_LS+16}")
        A(f"s_lshl_b32 {sT0}, {sBH}, 2"); A(f"s_add_u32 {sT0}, {sT0}, {sS}")
        A(f"s_lshl_b32 {sT0}, {sT0}, 3"); A(f"s_add_u32 {sT0}, {sT0}, {WS_S}")
        A("s_waitcnt lgkmcnt(0)")
        for k in range(1, 8): A(f"v_add_f32 v{vBF}, v{vBF}, v{vBF+k}")
        A(f"v_min_u32 v{t+1}, -2, v{vBF}")
        A(f"v_mov_b32 v{t}, v{m}")
        A("s_mov_b64 exec, 1")
        A(f"buffer_store_dwordx2 {vr(t,2)}, v{t+5}, {srd(R_WS)}, {sT0} offen sc1")
        A("s_mov_b64 exec, -1")
        self.L(skip)

    def step_pv(self, G):
        A = self.A
        base = vX if G == 0 else vK + 16 * (G - 1)
        def build(k, bset):
            for u in range(4): A(f"v_and_b32 v{vBF+4*bset+u}, v{vSP+k}, v{vM+u}")
        for r in range(4):
            k = 4 * G + r
            if k == 0: build(0, 0)
            if k + 1 < 32: build(k + 1, (k + 1) & 1)
            else: self.nop(2)
            c = "0" if k == 0 else vr(vACC, 4)
            A(f"v_mfma_f32_16x16x32_bf16 {vr(vACC,4)}, {vr(base+4*r,4)}, {vr(vBF+4*(k&1),4)}, {c}")

    WF = [vQF, vK + 16 * 7, vX, vK]
    def step_wof(self):
        A = self.A
        t = vTM
        A(f"v_lshrrev_b32 v{t}, 2, v{vI}"); A(f"v_and_b32 v{t+1}, 3, v{vI}")
        A(f"v_lshlrev_b32 v{t+1}, 3, v{t+1}")
        A(f"v_lshl_add_u32 v{t+1}, v{t}, 7, v{t+1}")
        A(f"v_lshl_add_u32 v{t+2}, v{vG}, 10, v{t+1}")
        A(f"v_add_u32 v{vOQ}, {sWOL}, v{t+2}")
        A(f"v_lshl_add_u32 v{t+2}, v{vG}, 9, v{t+1}")
        A(f"v_add_u32 v{vOF}, {sWDL}, v{t+2}")
        for tau in range(4): A(f"ds_read_b64_tr_b16 {vr(t+2*tau,2)}, v{vOF} offset:{tau*32}")
        for tau in range(4):
            for T in range(4):
                for hi in range(2):
                    A(f"ds_read_b64_tr_b16 {vr(self.WF[tau]+4*T+2*hi,2)}, v{vOQ} offset:{T*4096 + hi*512 + tau*32}")
            if tau == 0:
                A("s_waitcnt lgkmcnt(6)")
                for ta in range(4):
                    A(f"v_mfma_f32_16x16x16_bf16 {vr(vDF+4*ta,4)}, {vr(vAC2,2)}, {vr(t+2*ta,2)}, 0")
            else:
                A("s_waitcnt lgkmcnt(4)")
        for k in range(16): A(f"v_mul_f32 v{vDF+k}, {sG1}, v{vDF+k}")
        A("s_waitcnt lgkmcnt(0)")

    def step_scale(self):
        A = self.A
        t = vTM
        s = vXR
        ok = self.label("stok"); sp = self.label("stspin")
        A(f"s_mov_b32 {sCNT}, 0")
        A(f"v_max3_u32 v{t}, v{s+1}, v{s+3}, v{s+5}")
        A(f"v_max_u32 v{t}, v{t}, v{s+7}")
        A(f"v_cmp_eq_u32 vcc, -1, v{t}")
        A(f"s_cbranch_vccz {ok}")
        self.L(sp)
        A(f"buffer_load_dwordx4 {vr(s,4)}, v{vT0}, {srd(R_WS)}, {sT0} offen sc1")
        A(f"buffer_load_dwordx4 {vr(s+4,4)}, v{vT0}, {srd(R_WS)}, {sT0} offen offset:16 sc1")
        A(f"s_add_u32 {sCNT}, {sCNT}, 1")
        A(f"s_cmp_ge_u32 {sCNT}, {SPIN}")
        A("s_waitcnt vmcnt(0)")
        A(f"s_cbranch_scc1 {ok}")
        A(f"v_max3_u32 v{t}, v{s+1}, v{s+3}, v{s+5}")
        A(f"v_max_u32 v{t}, v{t}, v{s+7}")
        A(f"v_cmp_eq_u32 vcc, -1, v{t}")
        A(f"s_cbranch_vccnz {sp}")
        self.L(ok)
        A(f"v_max3_f32 v{t}, v{s}, v{s+2}, v{s+4}")
        A(f"v_max_f32 v{t}, v{t}, v{s+6}")
        for k in range(4): A(f"v_sub_f32 v{s+2*k}, v{s+2*k}, v{t}")
        A(f"v_sub_f32 v{t+1}, v{vAC2+2}, v{t}")
        for k in range(4): A(f"v_exp_f32 v{s+2*k}, v{s+2*k}")
        A(f"v_exp_f32 v{t+1}, v{t+1}")
        A(f"v_mul_f32 v{t}, v{s}, v{s+1}")
        for k in range(1, 4): A(f"v_fmac_f32 v{t}, v{s+2*k}, v{s+2*k+1}")
        A(f"v_rcp_f32 v{t}, v{t}")
        A(f"v_mul_f32 v{t+1}, {sG}, v{t+1}")
        A(f"v_mul_f32 v{vAC2+3}, v{t}, v{t+1}")
        A(f"v_and_b32 v{t}, 7, v{vI}")
        A(f"s_mul_i32 {sT1}, {sW}, 288"); A(f"s_add_u32 {sT1}, {sT1}, {L_OB}")
        A(f"v_lshl_add_u32 v{vOK}, v{vG}, 6, {sT1}")
        A(f"v_lshl_add_u32 v{vOK}, v{t}, 3, v{vOK}")
        A(f"v_mul_u32_u24 v{vOQ}, 288, v{t}")
        A(f"v_lshl_add_u32 v{vOQ}, v{vG}, 4, v{vOQ}")
        A(f"v_lshrrev_b32 v{t}, 2, v{vI}")
        A(f"v_lshl_add_u32 v{t}, v{vG}, 2, v{t}")
        A(f"v_lshlrev_b32 v{vOF}, 11, v{t}")
        A(f"s_lshl_b32 {sTF}, {sW}, 15")
        A(f"s_lshl_b32 {sT1}, {sB}, 18"); A(f"s_add_u32 {sTF}, {sTF}, {sT1}")
        A(f"s_lshl_b32 {sT1}, {sH}, 6"); A(f"s_add_u32 {sTF}, {sTF}, {sT1}")
        A(f"s_lshl_b32 {sT1}, {sS}, 4"); A(f"s_add_u32 {sTF}, {sTF}, {sT1}")
        A(f"v_cmp_gt_u32 s[0:1], 2, v{vG}")
        A(f"v_lshlrev_b32 v{vOD}, 4, v{vL}")
        A(f"s_lshl_b32 {sTQ}, s2, 11")
        A(f"v_and_b32 v{t}, 1, v{vG}"); A(f"v_lshrrev_b32 v{t+1}, 1, v{vG}")
        A(f"v_lshl_add_u32 v{t}, v{t}, 1, v{t+1}")
        A(f"s_lshl_b32 {sT1}, s2, 3")
        A(f"v_lshl_add_u32 v{vT1}, v{t}, 1, {sT1}")

    def step_tail(self):
        A = self.A
        t = vTM
        A("s_mov_b32 exec_lo, 0x00ff00ff"); A("s_mov_b32 exec_hi, 0x00ff00ff")
        self.nop(6)
        for r in range(4): A(f"v_mul_f32 v{vACC+r}, v{vACC+r}, v{vAC2+3}")
        A(f"v_cvt_pk_bf16_f32 v{t}, v{vACC}, v{vACC+1}")
        A(f"v_cvt_pk_bf16_f32 v{t+1}, v{vACC+2}, v{vACC+3}")
        A(f"ds_write_b64 v{vOK}, {vr(t,2)}")
        A("s_mov_b64 exec, -1")
        A("s_waitcnt lgkmcnt(0)")
        A("s_barrier")
        if self.diag == 0: self.stamp(2)
        af = vSP
        for T in range(4): A(f"ds_read_b128 {vr(af+4*T,4)}, v{vOQ} offset:{L_OB + 64*T}")
        for T in range(4):
            A(f"s_waitcnt lgkmcnt({3-T})" if not self.stamps else "s_waitcnt lgkmcnt(0)")
            for tau in range(4):
                A(f"v_mfma_f32_16x16x32_bf16 {vr(vDF+4*tau,4)}, {vr(af+4*T,4)}, {vr(self.WF[tau]+4*T,4)}, {vr(vDF+4*tau,4)}")
        self.nop(5)
        for tau in range(4):
            d = vDF + 4 * tau
            A(f"v_add_f32 v{d}, v{d}, v{d+1}"); A(f"v_add_f32 v{d+2}, v{d+2}, v{d+3}")
            A(f"v_add_f32 v{d}, v{d}, v{d+2}")
        self.nop(1)
        A(f"v_permlane16_swap_b32 v{vDF}, v{vDF+4}")
        A(f"v_permlane16_swap_b32 v{vDF+8}, v{vDF+12}")
        self.nop(1)
        A(f"v_add_f32 v{vDF}, v{vDF}, v{vDF+4}")
        A(f"v_add_f32 v{vDF+8}, v{vDF+8}, v{vDF+12}")
        A(f"v_cndmask_b32 v{t}, v{vDF+8}, v{vDF}, s[0:1]")
        A(f"v_min_u32 v{t}, -2, v{t}")
        self.nop(2)
        for k in range(1, 4):
            A(f"v_mov_b32_dpp v{t+k}, v{t} quad_perm:[{k},{k},{k},{k}] row_mask:0xf bank_mask:0xf")
        A("s_mov_b32 exec_lo, 0x11111111"); A("s_mov_b32 exec_hi, 0x11111111")
        A(f"buffer_store_dwordx4 {vr(t,4)}, v{vOF}, {srd(R_WS)}, {sTF} offen{'' if self.two_kernel else ' sc1'}")
        A("s_mov_b64 exec, -1")
        if self.diag == 0: self.stamp(3)

    def consumer(self, poll=True):
        A = self.A
        y = vSP
        t = vTM + 4
        sp = self.label("yspin"); ok = self.label("yok")
        A(f"s_mov_b32 {sCNT}, 0")
        self.L(sp)
        fl = " sc1" if poll else ""
        A(f"buffer_load_dwordx4 {vr(y,4)}, v{vOD}, {srd(R_WS)}, {sTQ} offen{fl}")
        A(f"buffer_load_dwordx4 {vr(y+4,4)}, v{vOD}, {srd(R_WS)}, {sTQ} offen offset:1024{fl}")
        if poll:
            A(f"s_add_u32 {sCNT}, {sCNT}, 1")
            A(f"s_cmp_ge_u32 {sCNT}, {SPIN}")
            A("s_waitcnt vmcnt(0)")
            A(f"s_cbranch_scc1 {ok}")
            A(f"v_max3_u32 v{t}, v{y}, v{y+1}, v{y+2}")
            A(f"v_max3_u32 v{t+1}, v{y+3}, v{y+4}, v{y+5}")
            A(f"v_max3_u32 v{t}, v{t}, v{y+6}, v{y+7}")
            A(f"v_max_u32 v{t}, v{t}, v{t+1}")
            A(f"v_cmp_eq_u32 vcc, -1, v{t}")
            A(f"s_cbranch_vccnz {sp}")
            self.L(ok)
        else:
            A("s_waitcnt vmcnt(0)")
        for k in range(4): A(f"v_add_f32 v{y+k}, v{y+k}, v{y+4+k}")
        self.nop(1)
        A(f"v_permlane32_swap_b32 v{y}, v{y+1}"); A(f"v_permlane32_swap_b32 v{y+2}, v{y+3}")
        self.nop(1)
        A(f"v_add_f32 v{y}, v{y}, v{y+1}"); A(f"v_add_f32 v{y+2}, v{y+2}, v{y+3}")
        self.nop(2)
        A(f"v_permlane16_swap_b32 v{y}, v{y+2}")
        self.nop(1)
        A(f"v_add_f32 v{y}, v{y}, v{y+2}")
        for ctl in ("quad_perm:[1,0,3,2]", "quad_perm:[2,3,0,1]", "row_half_mirror", "row_mirror"):
            self.dpp_add(y, ctl)
        A(f"v_cvt_pk_bf16_f32 v{y}, v{y}, v{y}")
        A("s_mov_b32 exec_lo, 0x00010001"); A("s_mov_b32 exec_hi, 0x00010001")
        A(f"global_store_short v{vT1}, v{y}, s[{P_OUT}:{P_OUT+1}]")

    def steps(self, idx):
        S = []
        def add(name, needs, fn): S.append(dict(name=name, needs=needs, fn=fn))
        add("flag", ["K0_3"], self.step_flag)
        add("gate", ["gw"], self.step_gate)
        add("flchk", ["fl"], lambda: self.step_flchk(False))
        add("qred", ["ga"], self.step_qred)
        for G in range(8): add(f"qk{G}", [f"K{G}_3"], lambda G=G: self.step_qk(G))
        add("flchk2", ["fl2"], lambda: self.step_flchk(True))
        add("softmax", [], self.step_softmax)
        lastdma = max(idx["wo15"], idx["wd1"])
        placed = False
        for G in range(8):
            if G == 7: add("scale", ["st1"], self.step_scale)
            if not placed and G >= 2 and idx[f"V{G}_3"] > lastdma:
                add("wof", ["wo15", "wd1"], self.step_wof); placed = True
            add(f"pv{G}", [f"V{G}_3"], lambda G=G: self.step_pv(G))
        names = [s["name"] for s in S]
        assert placed and names.index("wof") < names.index("scale")
        add("tail", [], self.step_tail)
        return S

    def schedule(self, W, LA):
        items = self.items(LA)
        idx = {it["name"]: n for n, it in enumerate(items)}
        steps = self.steps(idx)
        issued = 4
        comp = -1; done = set(); pos = -1
        for st in steps:
            need = max([idx[n] for n in st["needs"]], default=-1)
            pos = max(pos, need)
            def issue(la, w):
                nonlocal issued, comp
                while issued < len(items):
                    it = items[issued]
                    if not it["glue"]:
                        if issued > pos + la: break
                        if it["dep"] and it["dep"] not in done:
                            assert issued > need, (st["name"], it["name"])
                            break
                    if issued - (comp + 1) >= w:
                        self.A(f"s_waitcnt vmcnt({w-1})"); comp = issued - w
                    it["fn"](); issued += 1
            issue(LA, W)
            if comp < need or st["name"] == "flag":
                self.A(f"s_waitcnt vmcnt({issued-1-need})"); comp = max(comp, need)
            if st["name"] in ("qred", "softmax", "wof"): issue(LA + self.boost, W + self.boost)
            self.o.append(f"    ; ---- {st['name']}")
            st["fn"](); done.add(st["name"])
            if st["name"] in self.stamp_after: self.stamp(self.stamp_after[st["name"]])
            if st["name"] == self.wavestamp: self.A("s_memrealtime s[26:27]")
            if st["name"] == "softmax" and self.Wv: LA = self.Wv - 1; W = self.Wv
        assert issued == len(items)

    def kd(self, name, vg, sg):
        return [f".amdhsa_kernel {name}", f"  .amdhsa_next_free_vgpr {vg}", f"  .amdhsa_next_free_sgpr {sg}",
                f"  .amdhsa_accum_offset {vg}", "  .amdhsa_group_segment_fixed_size 0", "  .amdhsa_kernarg_size 104",
                "  .amdhsa_user_sgpr_count 2", "  .amdhsa_user_sgpr_kernarg_segment_ptr 1",
                "  .amdhsa_system_sgpr_workgroup_id_x 1", ".end_amdhsa_kernel"]

    def build(self):
        A = self.A
        K1 = NAME + "_kernel"; K2 = "gated_mix_reduce_kernel"
        o = self.o
        o.append(HEADER.rstrip("\n"))
        if self.two_kernel:
            o.append(f"; @launch kernel={K1} grid=(256,1,1) block=(512,1,1) lds={LDS_BYTES}")
            o.append(f"; @launch kernel={K2} grid=(256,1,1) block=(64,1,1) lds=0")
        else:
            o.append(f"; @launch grid=(256,1,1) block=(512,1,1) lds={LDS_BYTES}")
        o += ['.amdgcn_target "amdgcn-amd-amdhsa--gfx950"', ".text", f".globl {K1}", ".p2align 8",
              f".type {K1},@function", f"{K1}:"]
        self.prologue()
        self.phase0()
        if self.p0only: pass
        elif self.W_even is not None:
            A(f"s_and_b32 {sT0}, {sXCC}, 1"); A("s_cbranch_scc1 L_odd")
            self.schedule(self.W_even, self.LA_even)
            A("s_branch L_join")
            self.L("L_odd")
            self.schedule(self.W, self.LA)
            self.L("L_join")
        else:
            self.schedule(self.W, self.LA)
        if self.wavestamp:
            A("s_waitcnt lgkmcnt(0)")
            A(f"s_add_u32 s28, s40, {STAMP_OFF + 65536}"); A("s_addc_u32 s29, s41, 0")
            A(f"s_lshl_b32 s8, s2, 3"); A(f"s_add_u32 s8, s8, {sW}"); A("s_lshl_b32 s8, s8, 3")
            A("v_mov_b32 v112, s8"); A("v_mov_b32 v114, s26"); A("v_mov_b32 v115, s27")
            A("s_mov_b64 exec, 1")
            A("global_store_dwordx2 v112, v[114:115], s[28:29]")
            A("s_mov_b64 exec, -1")
        A(f"s_cmp_lg_u32 {sW}, 0"); A("s_cbranch_scc1 L_end")
        if not self.two_kernel and not self.p0only:
            self.consumer()
        if self.fixdur:
            self.L("L_fix")
            A("s_memrealtime s[94:95]")
            A("s_waitcnt lgkmcnt(0)")
            A("s_sub_u32 s94, s94, s92")
            A(f"s_cmp_lt_u32 s94, {self.fixdur}")
            A("s_cbranch_scc1 L_fix")
        elif self.dbgdiag:
            self.stamp(4)
            A("s_mov_b64 exec, 1")
            A("s_waitcnt lgkmcnt(0)")
            A("v_mov_b32 v1, 0")
            for k in range(5):
                A(f"v_mov_b32 v2, s{sST+2*k}"); A(f"v_not_b32 v3, v2")
                A(f"global_atomic_umax v1, v3, s[{P_DBG}:{P_DBG+1}] offset:{8*k}")
                A(f"global_atomic_umax v1, v2, s[{P_DBG}:{P_DBG+1}] offset:{8*k+4}")
                A("s_waitcnt vmcnt(0)")
        elif self.stamps:
            self.stamp(4)
            A("s_mov_b64 exec, 1")
            A("s_waitcnt lgkmcnt(0)")
            A(f"s_add_u32 s40, s40, {STAMP_OFF}"); A("s_addc_u32 s41, s41, 0")
            A("s_lshl_b32 s8, s2, 6"); A("v_mov_b32 v1, s8")
            for k in range(4):
                A(f"v_mov_b32 v{8+2*k}, s{sST+2*k}"); A(f"v_mov_b32 v{9+2*k}, s{sST+2*k+1}")
            A(f"v_mov_b32 v16, {sXCC}"); A("v_mov_b32 v17, 0")
            A(f"v_mov_b32 v18, s{sST+8}"); A(f"v_mov_b32 v19, s{sST+9}")
            A("global_store_dwordx4 v1, v[8:11], s[40:41]")
            A("global_store_dwordx4 v1, v[12:15], s[40:41] offset:16")
            A("global_store_dwordx4 v1, v[16:19], s[40:41] offset:32")
        self.L("L_end"); A("s_endpgm")
        if self.two_kernel:
            o += [f".globl {K2}", ".p2align 8", f".type {K2},@function", f"{K2}:"]
            A("s_cmp_ge_u32 s2, 256"); A("s_cbranch_scc1 L_end2")
            A(f"s_load_dwordx2 s[{P_OUT}:{P_OUT+1}], s[0:1], 80")
            A(f"s_load_dwordx2 s[{P_WS}:{P_WS+1}], s[0:1], 96")
            t = vTM
            A(f"v_bfe_u32 v{vG}, v0, 4, 2")
            A(f"v_lshlrev_b32 v{vOD}, 4, v0")
            A(f"s_lshl_b32 {sTQ}, s2, 11")
            A(f"v_and_b32 v{t}, 1, v{vG}"); A(f"v_lshrrev_b32 v{t+1}, 1, v{vG}")
            A(f"v_lshl_add_u32 v{t}, v{t}, 1, v{t+1}")
            A(f"s_lshl_b32 {sT1}, s2, 3")
            A(f"v_lshl_add_u32 v{vT1}, v{t}, 1, {sT1}")
            A("s_waitcnt lgkmcnt(0)")
            self.mk(R_WS, P_WS, None, WS_BYTES)
            self.consumer(poll=False)
            self.L("L_end2"); A("s_endpgm")
        o += ['.section .rodata,"a"', ".p2align 6"] + self.kd(K1, 256, 102)
        if self.two_kernel:
            o += [".p2align 6"] + self.kd(K2, 112, 102)
        return "\n".join(o) + "\n"

if __name__ == "__main__":
    import argparse, json
    ap = argparse.ArgumentParser()
    ap.add_argument("out"); ap.add_argument("--opt", default="{}")
    a = ap.parse_args()
    open(a.out, "w").write(Gen(**json.loads(a.opt)).build())
```

```python
import sys, struct, math

NAME = "gated_mix__mha_block_cached__geglu_ffn__decode"
HEADER = open("cdna_kernels/" + NAME + ".s.ref").read().split("; Override launch")[0]

def f32(x):
    return "0x%08x" % struct.unpack("<I", struct.pack("<f", x))[0]

L_QS = 0
L_HS = 256
L_GS = 320
L_FS = 336
L_MX = 384
L_LS = 448
L_OB = 512
L_YF = 3072
L_WD = 5120
L_WO = L_WD + 16384
L_END = L_WO + 131072
LDS_BYTES = (L_END + 255) // 256 * 256

WS_Y = 0
WS_S = 0x80000
WS_Q = 0x89000
WS_F = WS_Q + 0x40000
WS_M = WS_F + 176 * 1024
WS_BYTES = WS_M
WS_MB = 0x81000
STAMP_OFF = 128 << 20
SPIN = "0x4000"

sW = "s3"
P_X, P_K, P_V, P_WQ, P_WO, P_WG, P_WU = 16, 18, 20, 22, 24, 28, 30
P_WD, P_GW, P_OUT, P_DBG, P_WS = 32, 34, 36, 38, 40
R_K, R_V, R_WQ, R_WO, R_X, R_GW, R_FT, R_WD, R_WS = 44, 48, 52, 56, 60, 64, 68, 76, 80
sH, sB, sS, sSL, sT0, sT1, sT2 = "s4", "s5", "s6", "s7", "s8", "s9", "s10"
sTK, sTV, sTQ, sTF, sTD = "s11", "s12", "s13", "s14", "s15"
sJ, sFT = "s72", "s73"
sDONE = sJ
sWOL, sWDL = "s84", "s85"
sDUP0, sDUP1 = "s86", "s87"
sC = "s88"; sCNT = "s89"; sXCC = "s90"; sBH = "s91"
sX0, sX1 = "s42", "s43"
sST = 92
def srd(r): return f"s[{r}:{r+3}]"

vL, vI, vG = 1, 2, 3
vOK, vOV, vOQ, vOW, vOF, vOD, vT0, vT1 = 4, 5, 6, 7, 8, 9, 10, 11
vM = 12
vXR = 16
vBF = 24
vACC = 32
vAC2 = 36
vQF = 40
vSP = 56
vDF = 88
vTM = 104
vFL = 111
vK = 112
vX = 240
vFG = vDF + 8
vFD = vK + 16
def vr(a, n): return f"v[{a}:{a+n-1}]"

class Gen:
    def __init__(self, W=5, W2=16, W_even=None, W2_even=None, two_kernel=False, stamps=False,
                 wo_sched=None, st_after="pv3", q_at="K6_3", boost=4, fga_pos="pv1", ffn_pos="pv5", sleep=32, curve=None, k0_late=True,
                 stamp_after=None, fixdur=0, svc=3, gsvc=2, hs=0, pub=1, hs_pre=12, hs_mid=10, npre=4, boosts=None):
        self.o = []
        self.__dict__.update(locals())
        self.wo_sched = wo_sched or [0, 0, 2, 2, 1, 2, 1, 2, 1, 2, 1, 2, 2, 0, 0, 0]
        assert sum(self.wo_sched) == 18
        self.cpairs = [92, 94, 96, 98, 100, 16, 18, 20, 22, 24, 26, 28, 30, 32, 34]
        if curve: self.stamps = True
        self.stamp_after = stamp_after if stamp_after is not None else ({} if curve else {"qred": 1, "pv7": 2, "tail": 3})
        self.lab = 0
        self.boosts = boosts if boosts is not None else {'softmax': 4, 'wof': 4}
    def A(self, s): self.o.append("    " + s)
    def L(self, s): self.o.append(s + ":")
    def nop(self, n):
        while n > 0:
            k = min(n, 16); self.A(f"s_nop {k-1}"); n -= k
    def label(self, p):
        self.lab += 1; return f"L_{p}_{self.lab}"
    def stamp(self, k):
        if self.stamps: self.A(f"s_memrealtime s[{sST+2*k}:{sST+2*k+1}]")
    def only(self, w, fn):
        sk = self.label("skip")
        self.A(f"s_cmp_lg_u32 {sW}, {w}"); self.A(f"s_cbranch_scc1 {sk}")
        fn()
        self.L(sk)

    def swap_reduce(self, op, v, tmp, which):
        A = self.A
        A(f"v_mov_b32 v{tmp}, v{v}")
        self.nop(2)
        A(f"v_permlane{which}_swap_b32 v{v}, v{tmp}")
        self.nop(1)
        A(f"{op} v{v}, v{v}, v{tmp}")
    def dpp_add(self, v, ctl):
        self.nop(2)
        self.A(f"v_add_f32_dpp v{v}, v{v}, v{v} {ctl} row_mask:0xf bank_mask:0xf")
    def mk(self, r, p, off, size):
        A = self.A
        if off is None:
            A(f"s_mov_b32 s{r}, s{p}"); A(f"s_mov_b32 s{r+1}, s{p+1}")
        else:
            A(f"s_add_u32 s{r}, s{p}, {off}"); A(f"s_addc_u32 s{r+1}, s{p+1}, 0")
        if size is not None: A(f"s_mov_b32 s{r+2}, {size}")
        A(f"s_mov_b32 s{r+3}, 0x20000")

    def kv_load(self, kind, G, t):
        A = self.A
        st = sTK if kind == "K" else sTV
        if t == 0 and G > 0: A(f"s_movk_i32 {st}, {G*4096}")
        so = st if G > 0 else "0"
        if kind == "K":
            A(f"buffer_load_dwordx4 {vr(vK+16*G+4*t,4)}, v{vOK}, {srd(R_K)}, {so} offen offset:{(t>>1)*2048 + (t&1)*128} nt")
        else:
            dst = vX if G == 0 else vK + 16 * (G - 1)
            A(f"buffer_load_dwordx4 {vr(dst+4*t,4)}, v{vOV}, {srd(R_V)}, {so} offen offset:{256*t} nt")

    def bsel(self, src, half, bset):
        A = self.A
        t = vTM + 4 + bset
        A(f"v_perm_b32 v{t}, v{src}, v{src}, {sDUP1 if half else sDUP0}")
        for u in range(4): A(f"v_and_b32 v{vBF+4*bset+u}, v{t}, v{vM+u}")

    def phase0(self):
        A = self.A
        A("s_cmp_ge_u32 s2, 256")
        A("s_cbranch_scc1 L_end")
        A("s_load_dwordx16 s[16:31], s[0:1], 0")
        A("s_load_dwordx8 s[32:39], s[0:1], 64")
        A("s_load_dwordx2 s[40:41], s[0:1], 96")
        self.stamp(0)
        if self.fixdur: A("s_memrealtime s[92:93]")
        A("v_lshrrev_b32 v10, 6, v0")
        A(f"v_and_b32 v{vI}, 15, v0")
        A(f"v_readfirstlane_b32 {sW}, v10")
        A(f"v_bfe_u32 v{vG}, v0, 4, 2")
        A(f"s_and_b32 {sT0}, s2, 7")
        A(f"s_lshr_b32 {sT1}, s2, 3")
        A(f"s_and_b32 {sT2}, {sT1}, 3")
        A(f"s_lshl_b32 {sH}, {sT0}, 2")
        A(f"s_add_u32 {sH}, {sH}, {sT2}")
        A(f"s_lshr_b32 {sJ}, {sT1}, 2")
        A(f"s_and_b32 {sFT}, s2, 31")
        A(f"s_lshl_b32 {sTK}, {sJ}, 3"); A(f"s_add_u32 {sTK}, {sTK}, {sW}")
        A(f"s_lshl_b32 {sTV}, {sTK}, 4")
        A(f"s_lshl_b32 {sX0}, {sTK}, 16"); A(f"s_lshl_b32 {sTQ}, {sH}, 8"); A(f"s_add_u32 {sX0}, {sX0}, {sTQ}")
        A(f"s_cmp_ge_u32 {sFT}, 11")
        A(f"s_cselect_b32 {sX1}, 11, 0")
        A(f"s_sub_u32 {sX1}, {sFT}, {sX1}")
        A(f"s_lshl_b32 {sX1}, {sX1}, 8")
        A(f"s_mul_i32 {sTK}, {sTK}, {8*2752}")
        A(f"s_add_u32 {sX1}, {sX1}, {sTK}")
        A(f"s_sub_u32 s{R_FT+2}, {512*2752}, {sX1}")
        A(f"s_cmp_lt_u32 {sFT}, 22")
        A(f"s_cselect_b32 s{R_FT+2}, s{R_FT+2}, 0")
        A(f"s_cselect_b32 {sX1}, {sX1}, 0")
        A(f"s_mov_b32 s{R_FT+3}, 0x20000")
        A(f"s_mov_b32 s{R_X+2}, 2048"); A(f"s_mov_b32 s{R_X+3}, 0x20000")
        A(f"s_mov_b32 s{R_WQ+2}, {7*8192+256}"); A(f"s_mov_b32 s{R_WQ+3}, 0x20000")
        A(f"s_movk_i32 {sTQ}, 8192")
        A(f"v_lshrrev_b32 v{vT0}, 3, v{vI}")
        A(f"v_lshlrev_b32 v{vT0}, 10, v{vT0}")
        A(f"v_lshl_add_u32 v{vT0}, v{vG}, 2, v{vT0}")
        A(f"v_lshlrev_b32 v{vT1}, 4, v{vI}")
        A(f"v_lshl_add_u32 v{vOQ}, v{vG}, 14, v{vT1}")
        A(f"v_mul_u32_u24 v{vOF}, {2*2752}, v{vG}")
        A(f"v_add_u32 v{vOF}, v{vOF}, v{vT1}")
        A(f"s_cmp_ge_u32 {sFT}, 11")
        A("s_waitcnt lgkmcnt(0)")
        A(f"s_cselect_b32 s{R_FT}, s{P_WU}, s{P_WG}"); A(f"s_cselect_b32 s{R_FT+1}, s{P_WU+1}, s{P_WG+1}")
        A(f"s_add_u32 s{R_WQ}, s{P_WQ}, {sX0}"); A(f"s_addc_u32 s{R_WQ+1}, s{P_WQ+1}, 0")
        A(f"buffer_load_dwordx4 {vr(vDF,4)}, v{vOQ}, {srd(R_WQ)}, 0 offen nt")
        A(f"buffer_load_dwordx4 {vr(vDF+4,4)}, v{vOQ}, {srd(R_WQ)}, {sTQ} offen nt")
        A(f"s_add_u32 s{R_FT}, s{R_FT}, {sX1}"); A(f"s_addc_u32 s{R_FT+1}, s{R_FT+1}, 0")
        A(f"buffer_load_dwordx4 {vr(vDF+8,4)}, v{vOF}, {srd(R_FT)}, 0 offen nt")
        A(f"buffer_load_dwordx4 {vr(vDF+12,4)}, v{vOF}, {srd(R_FT)}, 0 offen offset:2752 nt")
        A(f"s_mov_b32 s{R_X}, s{P_X}"); A(f"s_mov_b32 s{R_X+1}, s{P_X+1}")
        A(f"buffer_load_dword v{vXR}, v{vT0}, {srd(R_X)}, {sTV} offen")
        def clear():
            self.mk(R_WS, P_WS, None, WS_BYTES)
            c = vQF
            for k in range(4): A(f"v_mov_b32 v{c+k}, -1")
            A(f"v_and_b32 v{c+4}, 63, v0"); A(f"v_lshlrev_b32 v{c+4}, 4, v{c+4}")
            A(f"s_lshl_b32 {sTD}, {sH}, 3"); A(f"s_add_u32 {sTD}, {sTD}, {sJ}"); A(f"s_lshl_b32 {sTD}, {sTD}, 10")
            A(f"s_add_u32 {sTD}, {sTD}, {WS_Q}")
            A(f"buffer_store_dwordx4 {vr(c,4)}, v{c+4}, {srd(R_WS)}, {sTD} offen sc1")
            A(f"s_lshl_b32 {sTD}, {sFT}, 3"); A(f"s_add_u32 {sTD}, {sTD}, {sJ}"); A(f"s_lshl_b32 {sTD}, {sTD}, 10")
            A(f"s_add_u32 {sTD}, {sTD}, {WS_F}")
            A(f"buffer_store_dwordx4 {vr(c,4)}, v{c+4}, {srd(R_WS)}, {sTD} offen sc1")
            if not self.two_kernel:
                A(f"s_lshl_b32 {sTD}, s2, 11")
                A(f"buffer_store_dwordx4 {vr(c,4)}, v{c+4}, {srd(R_WS)}, {sTD} offen sc1")
                A(f"buffer_store_dwordx4 {vr(c,4)}, v{c+4}, {srd(R_WS)}, {sTD} offen offset:1024 sc1")
            A(f"s_lshr_b32 {sTD}, {sJ}, 2"); A(f"s_lshl_b32 {sTD}, {sTD}, 5"); A(f"s_add_u32 {sTD}, {sTD}, {sH}")
            A(f"s_lshl_b32 {sTD}, {sTD}, 2"); A(f"s_and_b32 {sTF}, {sJ}, 3"); A(f"s_add_u32 {sTD}, {sTD}, {sTF}")
            A(f"s_lshl_b32 {sTD}, {sTD}, 3"); A(f"s_add_u32 {sTD}, {sTD}, {WS_S}")
            A("s_mov_b64 exec, 1")
            A(f"buffer_store_dwordx2 {vr(c,2)}, v{c+4}, {srd(R_WS)}, {sTD} offen sc1")
            A(f"s_lshl_b32 {sTD}, s2, 7"); A(f"s_add_u32 {sTD}, {sTD}, {WS_MB}")
            A(f"buffer_store_dword v{c}, v{c+4}, {srd(R_WS)}, {sTD} offen sc1")
            A("s_mov_b64 exec, -1")
        self.only(self.hs, clear)
        A(f"v_and_b32 v{vL}, 63, v0")
        A(f"s_lshr_b32 {sB}, {sJ}, 2")
        A(f"s_and_b32 {sS}, {sJ}, 3")
        A(f"s_lshl_b32 {sBH}, {sB}, 5"); A(f"s_add_u32 {sBH}, {sBH}, {sH}")
        A(f"v_and_b32 v{vOK}, 7, v0")
        A(f"v_lshlrev_b32 v{vOK}, 8, v{vOK}")
        A(f"v_lshl_add_u32 v{vOK}, v{vG}, 4, v{vOK}")
        A(f"v_and_b32 v{vOV}, 8, v0")
        A(f"v_lshl_add_u32 v{vOK}, v{vOV}, 3, v{vOK}")
        A(f"v_lshl_add_u32 v{vOV}, v{vG}, 10, v{vT1}")
        A(f"s_lshl_b32 {sTK}, {sBH}, 20")
        A(f"s_lshl_b32 {sTV}, {sS}, 18"); A(f"s_add_u32 {sTK}, {sTK}, {sTV}")
        A(f"s_lshl_b32 {sTV}, {sW}, 15"); A(f"s_add_u32 {sTK}, {sTK}, {sTV}")
        self.mk(R_K, P_K, sTK, 32768)
        self.mk(R_V, P_V, sTK, 32768)
        self.mk(R_WS, P_WS, None, WS_BYTES)
        self.mk(R_GW, P_GW, None, 1024)
        A(f"s_and_b32 {sT1}, {sT1}, 15")
        A(f"s_mul_i32 {sSL}, {sT0}, 11")
        A(f"s_add_u32 {sSL}, {sSL}, {sT1}")
        A(f"s_cmp_lt_u32 {sT1}, 11")
        A(f"s_cselect_b32 {sSL}, {sSL}, 1000")
        A(f"s_cmp_lt_u32 {sSL}, 86")
        A(f"s_cselect_b32 s{R_WD+2}, {15*1024+128}, 0")
        A(f"s_cselect_b32 {sSL}, {sSL}, 0")
        A(f"s_lshl_b32 {sT0}, {sSL}, 14"); A(f"s_lshl_b32 {sT1}, {sW}, 7"); A(f"s_add_u32 {sT0}, {sT0}, {sT1}")
        self.mk(R_WD, P_WD, sT0, None)
        A(f"s_lshl_b32 {sT0}, {sH}, 17"); A(f"s_add_u32 {sT0}, {sT0}, {sT1}")
        self.mk(R_WO, P_WO, sT0, 127 * 1024 + 128)
        A(f"v_lshlrev_b32 v{vT1}, 4, v{vL}")
        t = vTM + 4
        A(f"v_and_b32 v{t}, 7, v{vL}")
        A(f"v_lshlrev_b32 v{t}, 4, v{t}")
        A(f"v_lshrrev_b32 v{t+1}, 3, v{vL}")
        A(f"v_lshl_add_u32 v{vOD}, v{t+1}, 10, v{t}")
        A(f"v_and_b32 v{t+2}, 3, v{t+1}")
        A(f"v_lshlrev_b32 v{t+2}, 3, v{t+2}")
        A(f"v_lshrrev_b32 v{t+1}, 2, v{t+1}")
        A(f"v_add_u32 v{t+1}, v{t+1}, v{t+2}")
        A(f"v_lshl_add_u32 v{vOW}, v{t+1}, 10, v{t}")
        A(f"s_lshl_b32 {sWOL}, {sW}, 14"); A(f"s_add_u32 {sWOL}, {sWOL}, {L_WO}")
        A(f"s_lshl_b32 {sWDL}, {sW}, 11"); A(f"s_add_u32 {sWDL}, {sWDL}, {L_WD}")
        A(f"v_and_b32 v{t}, 1, v{vI}")
        A(f"v_lshlrev_b32 v{t}, 4, v{t}")
        A(f"v_mov_b32 v{t+1}, 0xffff")
        A(f"v_lshlrev_b32 v{t+1}, v{t}, v{t+1}")
        A(f"v_bfe_u32 v{t}, v{vI}, 1, 2")
        for u in range(4):
            A(f"v_cmp_eq_u32 vcc, {u}, v{t}")
            self.nop(2)
            A(f"v_cndmask_b32 v{vM+u}, 0, v{t+1}, vcc")
        A(f"s_mov_b32 {sDUP0}, 0x01000100"); A(f"s_mov_b32 {sDUP1}, 0x03020302")
        A(f"s_mov_b32 {sC}, {f32(math.log2(math.e) / math.sqrt(128.0))}")
        A(f"s_getreg_b32 {sXCC}, hwreg(HW_REG_XCC_ID)")
        A(f"s_add_u32 {sT0}, {sWOL}, {14*1024}")
        A(f"v_lshl_add_u32 v{vT0}, v{vL}, 4, {sT0}")
        lo = self.label("p0o"); lj = self.label("p0j")
        A(f"s_cmp_lg_u32 {sW}, {self.hs}"); A(f"s_cbranch_scc1 {lo}")
        A(f"s_lshl_b32 {sTF}, {sFT}, 3")
        A(f"v_mov_b32 v{vQF+5}, {sTF}"); A(f"v_mov_b32 v{vQF+6}, 1")
        A("s_waitcnt vmcnt(0)")
        A("s_mov_b64 exec, 1")
        A(f"global_atomic_add v{vFL}, v{vQF+5}, v{vQF+6}, s[{P_DBG}:{P_DBG+1}] sc0")
        A("s_mov_b64 exec, -1")
        A(f"s_branch {lj}")
        self.L(lo)
        for t in range(4):
            A(f"s_waitcnt vmcnt({[3,2,2,3][t]})")
            self.kv_load("K", 0, t)
        for n in range(self.npre): self.kv_load("K", 1 + n // 4, n % 4)
        self.L(lj)
        self.bsel(vXR, 0, 0); self.bsel(vXR, 1, 1)
        self.nop(1)
        A(f"v_mfma_f32_16x16x32_bf16 {vr(vACC,4)}, {vr(vDF,4)}, {vr(vBF,4)}, 0")
        A(f"v_mfma_f32_16x16x32_bf16 {vr(vAC2,4)}, {vr(vDF+8,4)}, {vr(vBF,4)}, 0")
        A(f"v_mfma_f32_16x16x32_bf16 {vr(vACC,4)}, {vr(vDF+4,4)}, {vr(vBF+4,4)}, {vr(vACC,4)}")
        A(f"v_mfma_f32_16x16x32_bf16 {vr(vAC2,4)}, {vr(vDF+12,4)}, {vr(vBF+4,4)}, {vr(vAC2,4)}")
        self.nop(8)
        A(f"ds_write_b128 v{vT0}, {vr(vACC,4)}")
        A(f"ds_write_b128 v{vT0}, {vr(vAC2,4)} offset:1024")
        A("s_waitcnt lgkmcnt(0)")
        A("s_barrier")
        def publish():
            d = vSP; d2 = vK + 96
            A(f"v_add_u32 v{vT0}, {L_WO + 14*1024}, v{vT1}")
            A(f"v_add_u32 v{vTM}, 0x10000, v{vT0}")
            for w in range(8): A(f"ds_read_b128 {vr(d+4*w,4)}, v{vT0 if w < 4 else vTM} offset:{16384*(w&3)}")
            for w in range(4): A(f"ds_read_b128 {vr(d2+4*w,4)}, v{vT0} offset:{1024+16384*w}")
            A(f"s_lshl_b32 {sT0}, {sH}, 3"); A(f"s_add_u32 {sT0}, {sT0}, {sJ}"); A(f"s_lshl_b32 {sT0}, {sT0}, 10")
            A(f"s_add_u32 {sT0}, {sT0}, {WS_Q}")
            A(f"s_lshl_b32 {sT1}, {sFT}, 3"); A(f"s_add_u32 {sT1}, {sT1}, {sJ}"); A(f"s_lshl_b32 {sT1}, {sT1}, 10")
            A(f"s_add_u32 {sT1}, {sT1}, {WS_F}")
            A("s_waitcnt lgkmcnt(4)")
            for w in range(4, 8): A(f"ds_read_b128 {vr(d2+4*w,4)}, v{vTM} offset:{1024+16384*(w&3)}")
            for w in range(1, 8):
                for r in range(4): A(f"v_add_f32 v{d+r}, v{d+r}, v{d+4*w+r}")
            for r in range(4): A(f"v_min_u32 v{d+r}, -2, v{d+r}")
            A(f"buffer_store_dwordx4 {vr(d,4)}, v{vT1}, {srd(R_WS)}, {sT0} offen sc1")
            A("s_waitcnt lgkmcnt(0)")
            for w in range(1, 8):
                for r in range(4): A(f"v_add_f32 v{d2+r}, v{d2+r}, v{d2+4*w+r}")
            for r in range(4): A(f"v_min_u32 v{d2+r}, -2, v{d2+r}")
            A(f"buffer_store_dwordx4 {vr(d2,4)}, v{vT1}, {srd(R_WS)}, {sT1} offen sc1")
            if self.curve: A(f"s_memrealtime s[{self.cpairs[1]}:{self.cpairs[1]+1}]")
            self.nop(2)
        self.only(self.pub, publish)

    def bcast(self):
        A = self.A
        sk = self.label("nobc")
        A(f"v_lshlrev_b32 v{vQF+4}, 12, v{vL}"); A(f"v_mov_b32 v{vQF+6}, 1")
        A(f"s_lshl_b32 {sT0}, {sFT}, 7"); A(f"s_add_u32 {sT0}, {sT0}, {WS_MB}")
        A("s_waitcnt vmcnt(0)")
        if self.curve: A(f"s_memrealtime s[{self.cpairs[2]}:{self.cpairs[2]+1}]")
        A(f"v_readfirstlane_b32 {sT1}, v{vFL}")
        self.nop(3)
        A(f"s_and_b32 {sFT}, {sT1}, 7"); A(f"s_cmp_lg_u32 {sFT}, 7"); A(f"s_cbranch_scc1 {sk}")
        A("s_mov_b32 exec_lo, 0xff"); A("s_mov_b32 exec_hi, 0")
        A(f"buffer_store_dword v{vQF+6}, v{vQF+4}, {srd(R_WS)}, {sT0} offen sc1")
        A("s_mov_b64 exec, -1")
        self.L(sk)

    def q_gather(self, pre, mid):
        A = self.A
        go = self.label("go"); sp = self.label("mbspin"); gs = self.label("gaspin"); ok = self.label("gaok"); chk = self.label("gachk")
        A(f"s_mov_b32 {sCNT}, 0")
        A(f"s_mov_b32 {sX0}, {sTD}")
        pre()
        self.ga_addr()
        A(f"s_add_u32 {sT1}, {sT0}, 4096")
        A(f"s_cmp_eq_u32 {sFT}, 7"); A(f"s_cbranch_scc1 {go}")
        self.L(sp)
        A("s_mov_b64 exec, 1")
        A(f"buffer_load_dword v{vFL}, v{vT1}, {srd(R_WS)}, {sX0} offen sc1")
        A("s_mov_b64 exec, -1")
        A(f"s_add_u32 {sCNT}, {sCNT}, 1")
        A("s_waitcnt vmcnt(0)")
        A(f"v_readfirstlane_b32 {sTF}, v{vFL}")
        A(f"s_cmp_ge_u32 {sCNT}, {SPIN}"); A(f"s_cbranch_scc1 {go}")
        A(f"s_cmp_lg_u32 {sTF}, 1"); A(f"s_cbranch_scc1 {sp}")
        self.L(go)
        if self.curve: A(f"s_memrealtime s[{self.cpairs[3]}:{self.cpairs[3]+1}]")
        def loads():
            for k in range(4):
                A(f"buffer_load_dwordx4 {vr(vSP+4*k,4)}, v{vTM}, {srd(R_WS)}, {sT0 if k < 2 else sT1} offen offset:{(k&1)*2048} sc1")
        loads()
        n = mid()
        A(f"s_waitcnt vmcnt({n})")
        A(f"s_branch {chk}")
        self.L(gs)
        loads()
        A(f"s_add_u32 {sCNT}, {sCNT}, 1")
        A(f"s_cmp_ge_u32 {sCNT}, {SPIN}")
        A("s_waitcnt vmcnt(0)")
        A(f"s_cbranch_scc1 {ok}")
        self.L(chk)
        t = vTM + 2
        A(f"v_max3_u32 v{t}, v{vSP}, v{vSP+1}, v{vSP+2}")
        for k in range(3, 15, 2): A(f"v_max3_u32 v{t}, v{t}, v{vSP+k}, v{vSP+k+1}")
        A(f"v_max_u32 v{t}, v{t}, v{vSP+15}")
        A(f"v_cmp_eq_u32 vcc, -1, v{t}")
        A(f"s_cbranch_vccnz {gs}")
        self.L(ok)

    def ga_addr(self):
        A = self.A
        t = vTM
        A(f"s_lshl_b32 {sT0}, {sH}, 13"); A(f"s_lshl_b32 {sT1}, {sB}, 7"); A(f"s_add_u32 {sT0}, {sT0}, {sT1}")
        A(f"s_add_u32 {sT0}, {sT0}, {WS_Q}")
        A(f"v_and_b32 v{t}, 7, v{vL}"); A(f"v_lshlrev_b32 v{t}, 4, v{t}")
        A(f"v_bfe_u32 v{t+1}, v{vL}, 3, 2"); A(f"v_lshl_add_u32 v{t}, v{t+1}, 8, v{t}")
        A(f"v_lshrrev_b32 v{t+1}, 5, v{vL}"); A(f"v_lshl_add_u32 v{t}, v{t+1}, 10, v{t}")

    def q_reduce(self):
        A = self.A
        t = vTM
        d = vSP
        for k in range(1, 4):
            for r in range(4): A(f"v_add_f32 v{d+r}, v{d+r}, v{d+4*k+r}")
        A(f"v_and_b32 v{t+1}, 7, v{vL}")
        A(f"v_lshrrev_b32 v{t+2}, 5, v{vL}")
        A(f"v_permlane32_swap_b32 v{d}, v{d+1}"); A(f"v_permlane32_swap_b32 v{d+2}, v{d+3}")
        A(f"v_lshl_add_u32 v{t+1}, v{t+2}, 3, v{t+1}")
        A(f"v_add_f32 v{d}, v{d}, v{d+1}"); A(f"v_add_f32 v{d+2}, v{d+2}, v{d+3}")
        A(f"v_cvt_pk_bf16_f32 v{d}, v{d}, v{d+2}")
        A(f"v_bfe_u32 v{t}, v{vL}, 3, 2")
        A(f"v_lshl_add_u32 v{t}, v{t}, 5, v{t+1}")
        A(f"v_lshlrev_b32 v{t}, 1, v{t}")
        A(f"ds_write_b16 v{t}, v{d} offset:{L_QS}")
        A(f"ds_write_b16_d16_hi v{t}, v{d} offset:{L_QS+32}")

    def items(self):
        A = self.A
        it = []
        def add(name, fn, dep=None): it.append(dict(name=name, fn=fn, dep=dep))
        def grp(kind, G, dep):
            for t in range(4): add(f"{kind}{G}_{t}", lambda t=t: self.kv_load(kind, G, t), dep if t == 0 else None)
        wd = []
        for t in range(2):
            def fn(t=t):
                A(f"s_add_u32 m0, {sWDL}, {t*1024}")
                A(f"s_movk_i32 {sTD}, {t*8192}")
                A(f"buffer_load_dwordx4 v{vOD}, {srd(R_WD)}, {sTD} offen nt lds")
            wd.append((f"wd{t}", fn, None))
        wo = []
        for t in range(16):
            def fn(t=t):
                A(f"s_add_u32 m0, {sWOL}, {t*1024}")
                A(f"s_mov_b32 {sTD}, {(32*(t>>2) + 2*(t&3))*1024}")
                A(f"buffer_load_dwordx4 v{vOW}, {srd(R_WO)}, {sTD} offen nt lds")
            wo.append((f"wo{t}", fn, "qred" if t >= 14 else None))
        dma = wo[:4] + wd + wo[4:]
        def put(slot):
            for _ in range(self.wo_sched[slot]):
                n, fn, dep = dma.pop(0); add(n, fn, dep)
        for G in range(8): grp("K", G, None); put(G)
        for G in range(8): grp("V", G, (self.st_after if G == 7 else f"qk{G-1}") if G else None); put(8 + G)
        return it

    def step_gate0(self):
        A = self.A
        def fn():
            A(f"s_lshl_b32 {sT1}, {sB}, 10")
            A(f"buffer_load_dwordx4 {vr(vXR,4)}, v{vT1}, {srd(R_X)}, {sT1} offen")
            A(f"buffer_load_dwordx4 {vr(vXR+4,4)}, v{vT1}, {srd(R_GW)}, 0 offen")
        self.only(self.gsvc, fn)
    def step_gate(self):
        A = self.A
        def fn():
            x, w = vXR, vXR + 4
            t = vTM
            acc = vT0
            A(f"v_mov_b32 v{acc}, 0")
            for k in range(4):
                A(f"v_lshlrev_b32 v{t}, 16, v{x+k}"); A(f"v_lshlrev_b32 v{t+1}, 16, v{w+k}")
                A(f"v_and_b32 v{t+2}, 0xffff0000, v{x+k}"); A(f"v_and_b32 v{t+3}, 0xffff0000, v{w+k}")
                A(f"v_mul_f32 v{t}, v{t}, v{t+1}"); A(f"v_mul_f32 v{t+2}, v{t+2}, v{t+3}")
                A(f"v_cvt_pk_bf16_f32 v{t}, v{t}, v{t+2}")
                A(f"v_lshlrev_b32 v{t+1}, 16, v{t}"); A(f"v_and_b32 v{t}, 0xffff0000, v{t}")
                A(f"v_add_f32 v{acc}, v{acc}, v{t+1}"); A(f"v_add_f32 v{acc}, v{acc}, v{t}")
            for ctl in ("quad_perm:[1,0,3,2]", "quad_perm:[2,3,0,1]", "row_half_mirror", "row_mirror"):
                self.dpp_add(acc, ctl)
            self.swap_reduce("v_add_f32", acc, t, 16)
            self.swap_reduce("v_add_f32", acc, t, 32)
            A(f"v_cvt_pk_bf16_f32 v{acc}, v{acc}, v{acc}")
            A(f"v_and_b32 v{acc}, 0xffff0000, v{acc}")
            A(f"v_mul_f32 v{acc}, {f32(-math.log2(math.e))}, v{acc}")
            A(f"v_exp_f32 v{acc}, v{acc}")
            self.nop(1)
            A(f"v_add_f32 v{acc}, 1.0, v{acc}")
            A(f"v_rcp_f32 v{acc}, v{acc}")
            self.nop(1)
            A(f"v_cvt_pk_bf16_f32 v{acc}, v{acc}, v{acc}")
            A(f"v_and_b32 v{t}, 0xffff0000, v{acc}")
            A(f"v_sub_f32 v{t+1}, 1.0, v{t}")
            A(f"v_cvt_pk_bf16_f32 v{t+1}, v{t+1}, v{t+1}")
            A(f"v_and_b32 v{t+1}, 0xffff0000, v{t+1}")
            A(f"v_mov_b32 v{t+2}, 0")
            A(f"ds_write_b64 v{t+2}, {vr(t,2)} offset:{L_GS}")
        self.only(self.gsvc, fn)

    def fl_load(self):
        A = self.A
        A(f"v_and_b32 v{vT0}, 31, v{vL}"); A(f"v_lshlrev_b32 v{vT0}, 3, v{vT0}")
        A(f"global_load_dword v{vFL}, v{vT0}, s[{P_DBG}:{P_DBG+1}] sc1")
    def step_fl(self):
        self.only(self.svc, self.fl_load)
    def step_fga(self):
        A = self.A
        def fn():
            ok = self.label("flok"); sp = self.label("flspin")
            A(f"v_cmp_gt_u32 vcc, 8, v{vFL}")
            A(f"s_cbranch_vccz {ok}")
            A(f"s_mov_b32 {sCNT}, 0")
            self.L(sp)
            A(f"s_sleep {self.sleep}")
            self.fl_load()
            A(f"s_add_u32 {sCNT}, {sCNT}, 1")
            A(f"s_cmp_ge_u32 {sCNT}, {SPIN}")
            A("s_waitcnt vmcnt(0)")
            A(f"s_cbranch_scc1 {ok}")
            A(f"v_cmp_gt_u32 vcc, 8, v{vFL}")
            A(f"s_cbranch_vccnz {sp}")
            self.L(ok)
            self.fg_load()
        self.only(self.svc, fn)
    def fg_load(self):
        A = self.A
        A(f"s_lshr_b32 {sT0}, {sSL}, 3"); A(f"s_lshl_b32 {sT0}, {sT0}, 13")
        A(f"s_lshl_b32 {sT1}, {sB}, 7"); A(f"s_add_u32 {sT0}, {sT0}, {sT1}")
        A(f"s_bfe_u32 {sT1}, {sSL}, 0x20001"); A(f"s_lshl_b32 {sT1}, {sT1}, 8"); A(f"s_add_u32 {sT0}, {sT0}, {sT1}")
        A(f"s_and_b32 {sT1}, {sSL}, 1"); A(f"s_lshl_b32 {sT1}, {sT1}, 3"); A(f"s_add_u32 {sT0}, {sT0}, {sT1}")
        A(f"s_add_u32 {sT0}, {sT0}, {WS_F}")
        A(f"v_and_b32 v{vT0}, 7, v{vL}"); A(f"v_lshlrev_b32 v{vT0}, 4, v{vT0}")
        A(f"v_lshrrev_b32 v{vTM}, 3, v{vL}"); A(f"v_lshl_add_u32 v{vT0}, v{vTM}, 10, v{vT0}")
        A(f"buffer_load_dwordx2 {vr(vFG,2)}, v{vT0}, {srd(R_WS)}, {sT0} offen sc1")
        A(f"s_add_u32 {sT0}, {sT0}, {11*8192}")
        A(f"buffer_load_dwordx2 {vr(vFG+2,2)}, v{vT0}, {srd(R_WS)}, {sT0} offen sc1")
    def step_ffn2(self):
        A = self.A
        t = vTM
        def fn():
            e = vFG
            ok = self.label("fgok"); sp = self.label("fgspin")
            A(f"s_mov_b32 {sCNT}, 0")
            self.L(sp)
            A(f"v_max3_u32 v{t}, v{e}, v{e+1}, v{e+2}"); A(f"v_max_u32 v{t}, v{t}, v{e+3}")
            A(f"v_cmp_eq_u32 vcc, -1, v{t}")
            A(f"s_cbranch_vccz {ok}")
            self.fg_load()
            A(f"s_add_u32 {sCNT}, {sCNT}, 1")
            A(f"s_cmp_lt_u32 {sCNT}, {SPIN}")
            A("s_waitcnt vmcnt(0)")
            A(f"s_cbranch_scc1 {sp}")
            self.L(ok)
            A(f"v_permlane32_swap_b32 v{e}, v{e+1}"); A(f"v_permlane32_swap_b32 v{e+2}, v{e+3}")
            self.nop(1)
            A(f"v_add_f32 v{e}, v{e}, v{e+1}"); A(f"v_add_f32 v{e+2}, v{e+2}, v{e+3}")
            self.swap_reduce("v_add_f32", e, e + 1, 16)
            self.swap_reduce("v_add_f32", e + 2, e + 3, 16)
            self.dpp_add(e, "row_ror:8"); self.dpp_add(e + 2, "row_ror:8")
            A(f"v_cvt_pk_bf16_f32 v{e}, v{e}, v{e+2}")
            A(f"v_and_b32 v{e+2}, 0xffff0000, v{e}")
            A(f"v_lshlrev_b32 v{e}, 16, v{e}")
            k0 = math.sqrt(2.0 / math.pi)
            A(f"v_mul_f32 v{e+1}, v{e}, v{e}")
            A(f"v_mov_b32 v{e+3}, {f32(-2.0 * k0 * math.log2(math.e))}")
            A(f"v_mul_f32 v{e+1}, {f32(0.044715)}, v{e+1}")
            A(f"v_add_f32 v{e+1}, 1.0, v{e+1}")
            A(f"v_mul_f32 v{e+1}, v{e+1}, v{e}")
            A(f"v_mul_f32 v{e+1}, v{e+1}, v{e+3}")
            A(f"v_exp_f32 v{e+1}, v{e+1}")
            self.nop(1)
            A(f"v_add_f32 v{e+1}, 1.0, v{e+1}")
            A(f"v_rcp_f32 v{e+1}, v{e+1}")
            self.nop(1)
            A(f"v_mul_f32 v{e}, v{e}, v{e+1}")
            A(f"v_cvt_pk_bf16_f32 v{e}, v{e}, v{e}")
            A(f"v_and_b32 v{e}, 0xffff0000, v{e}")
            A(f"v_mul_f32 v{e}, v{e}, v{e+2}")
            A(f"v_cvt_pk_bf16_f32 v{e}, v{e}, v{e}")
            A(f"v_and_b32 v{t+1}, 7, v{vL}"); A(f"v_lshrrev_b32 v{t+2}, 5, v{vL}")
            A(f"v_lshl_add_u32 v{t+1}, v{t+2}, 3, v{t+1}")
            A(f"v_lshlrev_b32 v{t+1}, 1, v{t+1}")
            A(f"ds_write_b16 v{t+1}, v{e} offset:{L_HS}")
            A(f"v_lshlrev_b32 v{t+1}, 3, v{vG}")
            A(f"v_mov_b32 v{t+3}, 0")
            A("s_waitcnt lgkmcnt(0)")
            A(f"ds_read_b64 {vr(e,2)}, v{t+1} offset:{L_HS}")
            A(f"ds_read_b32 v{e+2}, v{t+3} offset:{L_GS+4}")
            A(f"v_lshrrev_b32 v{t}, 2, v{vI}"); A(f"v_and_b32 v{t+1}, 3, v{vI}")
            A(f"v_lshlrev_b32 v{t+1}, 3, v{t+1}")
            A(f"v_lshl_add_u32 v{t+1}, v{t}, 7, v{t+1}")
            A(f"v_lshl_add_u32 v{t+1}, v{vG}, 9, v{t+1}")
            A(f"v_lshlrev_b32 v{t+2}, 2, v{vL}")
            for k in range(1, 4): A(f"v_cmp_eq_u32 {['', 's[52:53]', 's[54:55]', 's[68:69]'][k]}, {k}, v{vG}")
            wf = vDF
            for w in range(8):
                for tau in range(4):
                    A(f"ds_read_b64_tr_b16 {vr(wf+2*tau,2)}, v{t+1} offset:{L_WD + w*2048 + tau*32}")
                A("s_waitcnt lgkmcnt(0)")
                for tau in range(4):
                    A(f"v_mfma_f32_16x16x16_bf16 {vr(vFD+4*tau,4)}, {vr(e,2)}, {vr(wf+2*tau,2)}, 0")
                self.nop(6)
                A(f"v_cndmask_b32 v{t+4}, v{vFD}, v{vFD+4}, s[52:53]")
                self.nop(1)
                A(f"v_cndmask_b32 v{t+4}, v{t+4}, v{vFD+8}, s[54:55]")
                self.nop(1)
                A(f"v_cndmask_b32 v{t+4}, v{t+4}, v{vFD+12}, s[68:69]")
                A(f"v_mul_f32 v{t+4}, v{t+4}, v{e+2}")
                A(f"ds_write_b32 v{t+2}, v{t+4} offset:{L_YF + w*256}")
        self.only(self.svc, fn)

    def step_qred(self):
        A = self.A
        t = vTM
        A(f"v_and_b32 v{t}, 8, v{vL}")
        A(f"v_lshlrev_b32 v{t}, 3, v{t}")
        A(f"v_lshl_add_u32 v{t}, v{vG}, 4, v{t}")
        A("s_waitcnt lgkmcnt(0)")
        A("s_barrier")
        for T in range(2): A(f"ds_read_b128 {vr(vQF+4*T,4)}, v{t} offset:{L_QS+128*T}")
        A("s_waitcnt lgkmcnt(0)")

    def qk_combine(self, G):
        A = self.A
        a = vSP + 4 * G; b = vQF + 8 + 4 * (G & 1)
        for r in range(4): A(f"v_permlane32_swap_b32 v{a+r}, v{b+r}")
        for r in range(4): A(f"v_add_f32_dpp v{a+r}, v{b+r}, v{a+r} row_ror:8 row_mask:0xf bank_mask:0xf")
    def step_qk(self, G):
        A = self.A
        a = vSP + 4 * G; b = vQF + 8 + 4 * (G & 1); k = vK + 16 * G
        A(f"v_mfma_f32_16x16x32_bf16 {vr(a,4)}, {vr(k,4)}, {vr(vQF,4)}, 0")
        A(f"v_mfma_f32_16x16x32_bf16 {vr(b,4)}, {vr(k+8,4)}, {vr(vQF,4)}, 0")
        A(f"v_mfma_f32_16x16x32_bf16 {vr(a,4)}, {vr(k+4,4)}, {vr(vQF+4,4)}, {vr(a,4)}")
        A(f"v_mfma_f32_16x16x32_bf16 {vr(b,4)}, {vr(k+12,4)}, {vr(vQF+4,4)}, {vr(b,4)}")
        if G > 0:
            self.nop(4)
            self.qk_combine(G - 1)

    def step_softmax(self):
        A = self.A
        t = vTM
        m = vAC2 + 2
        A(f"v_max3_f32 v{m}, v{vSP}, v{vSP+1}, v{vSP+2}")
        for k in range(3, 27, 2): A(f"v_max3_f32 v{m}, v{m}, v{vSP+k}, v{vSP+k+1}")
        self.qk_combine(7)
        A(f"v_max3_f32 v{m}, v{m}, v{vSP+27}, v{vSP+28}")
        A(f"v_max3_f32 v{m}, v{m}, v{vSP+29}, v{vSP+30}")
        A(f"v_max_f32 v{m}, v{m}, v{vSP+31}")
        self.swap_reduce("v_max_f32", m, t, 16)
        self.swap_reduce("v_max_f32", m, t, 32)
        A(f"s_lshl_b32 {sT0}, {sW}, 2")
        A(f"v_mov_b32 v{t+4}, {sT0}")
        A(f"v_mov_b32 v{t+5}, 0")
        A("s_mov_b64 exec, 1")
        A(f"ds_write_b32 v{t+4}, v{m} offset:{L_MX}")
        A("s_mov_b64 exec, -1")
        A("s_waitcnt lgkmcnt(0)")
        A("s_barrier")
        A(f"ds_read_b128 {vr(vBF,4)}, v{t+5} offset:{L_MX}")
        A(f"ds_read_b128 {vr(vBF+4,4)}, v{t+5} offset:{L_MX+16}")
        A("s_waitcnt lgkmcnt(0)")
        A(f"v_max3_f32 v{m}, v{vBF}, v{vBF+1}, v{vBF+2}")
        A(f"v_max3_f32 v{m}, v{m}, v{vBF+3}, v{vBF+4}")
        A(f"v_max3_f32 v{m}, v{m}, v{vBF+5}, v{vBF+6}")
        A(f"v_max_f32 v{m}, v{m}, v{vBF+7}")
        A(f"v_mul_f32 v{m}, {sC}, v{m}")
        l = vT0
        for k in range(32):
            A(f"v_fma_f32 v{vSP+k}, v{vSP+k}, {sC}, -v{m}")
        for k in range(32):
            A(f"v_exp_f32 v{vSP+k}, v{vSP+k}")
        A(f"v_add_f32 v{l}, v{vSP}, v{vSP+1}"); A(f"v_add_f32 v{t}, v{vSP+2}, v{vSP+3}")
        for k in range(4, 32, 2):
            A(f"v_add_f32 v{l}, v{l}, v{vSP+k}"); A(f"v_add_f32 v{t}, v{t}, v{vSP+k+1}")
        A(f"v_add_f32 v{l}, v{l}, v{t}")
        self.swap_reduce("v_add_f32", l, t, 16)
        self.swap_reduce("v_add_f32", l, t, 32)
        A("s_mov_b64 exec, 1")
        A(f"ds_write_b32 v{t+4}, v{l} offset:{L_LS}")
        A("s_mov_b64 exec, -1")
        for k in range(32):
            A(f"v_cvt_pk_bf16_f32 v{vSP+k}, v{vSP+k}, v{vSP+k}")
        A("s_waitcnt lgkmcnt(0)")
        A("s_barrier")
        def fn():
            A(f"ds_read_b128 {vr(vBF,4)}, v{t+5} offset:{L_LS}")
            A(f"ds_read_b128 {vr(vBF+4,4)}, v{t+5} offset:{L_LS+16}")
            A(f"s_lshl_b32 {sT0}, {sBH}, 2"); A(f"s_add_u32 {sT0}, {sT0}, {sS}")
            A(f"s_lshl_b32 {sT0}, {sT0}, 3"); A(f"s_add_u32 {sT0}, {sT0}, {WS_S}")
            A("s_waitcnt lgkmcnt(0)")
            for k in range(1, 8): A(f"v_add_f32 v{vBF}, v{vBF}, v{vBF+k}")
            A(f"v_min_u32 v{t+1}, -2, v{vBF}")
            A(f"v_mov_b32 v{t}, v{m}")
            A("s_mov_b64 exec, 1")
            A(f"buffer_store_dwordx2 {vr(t,2)}, v{t+5}, {srd(R_WS)}, {sT0} offen sc1")
            A("s_mov_b64 exec, -1")
        self.only(2, fn)

    def step_pv(self, G):
        A = self.A
        base = vX if G == 0 else vK + 16 * (G - 1)
        def build(k, bset):
            for u in range(4): A(f"v_and_b32 v{vBF+4*bset+u}, v{vSP+k}, v{vM+u}")
        for r in range(4):
            k = 4 * G + r
            if k == 0: build(0, 0)
            if k + 1 < 32: build(k + 1, (k + 1) & 1)
            else: self.nop(2)
            c = "0" if k == 0 else vr(vACC, 4)
            A(f"v_mfma_f32_16x16x32_bf16 {vr(vACC,4)}, {vr(base+4*r,4)}, {vr(vBF+4*(k&1),4)}, {c}")

    WF = [vQF, vK + 16 * 7, vX, vK]
    def step_wof(self):
        A = self.A
        t = vTM
        A(f"v_lshrrev_b32 v{t}, 2, v{vI}"); A(f"v_and_b32 v{t+1}, 3, v{vI}")
        A(f"v_lshlrev_b32 v{t+1}, 3, v{t+1}")
        A(f"v_lshl_add_u32 v{t+1}, v{t}, 7, v{t+1}")
        A(f"v_lshl_add_u32 v{t+2}, v{vG}, 10, v{t+1}")
        A(f"v_add_u32 v{vOQ}, {sWOL}, v{t+2}")
        for tau in range(4):
            for T in range(4):
                for hi in range(2):
                    A(f"ds_read_b64_tr_b16 {vr(self.WF[tau]+4*T+2*hi,2)}, v{vOQ} offset:{T*4096 + hi*512 + tau*32}")
            if tau < 3: A("s_waitcnt lgkmcnt(4)")
        A(f"v_and_b32 v{t}, 7, v{vI}")
        A(f"s_mul_i32 {sT1}, {sW}, 288"); A(f"s_add_u32 {sT1}, {sT1}, {L_OB}")
        A(f"v_lshl_add_u32 v{vOK}, v{vG}, 6, {sT1}")
        A(f"v_lshl_add_u32 v{vOK}, v{t}, 3, v{vOK}")
        A(f"v_mul_u32_u24 v{vOW}, 288, v{t}")
        A(f"v_lshl_add_u32 v{vOW}, v{vG}, 4, v{vOW}")
        A(f"v_lshrrev_b32 v{t}, 2, v{vI}")
        A(f"v_lshl_add_u32 v{t}, v{vG}, 2, v{t}")
        A(f"v_lshlrev_b32 v{vOF}, 11, v{t}")
        A(f"s_lshl_b32 {sTF}, {sW}, 15")
        A(f"s_lshl_b32 {sT1}, {sB}, 18"); A(f"s_add_u32 {sTF}, {sTF}, {sT1}")
        A(f"s_lshl_b32 {sT1}, {sH}, 6"); A(f"s_add_u32 {sTF}, {sTF}, {sT1}")
        A(f"s_lshl_b32 {sT1}, {sS}, 4"); A(f"s_add_u32 {sTF}, {sTF}, {sT1}")
        A(f"v_cmp_gt_u32 s[0:1], 2, v{vG}")
        A(f"v_lshlrev_b32 v{vOD}, 4, v{vL}")
        A(f"s_lshl_b32 {sTQ}, s2, 11")
        A(f"v_and_b32 v{t}, 1, v{vG}"); A(f"v_lshrrev_b32 v{t+1}, 1, v{vG}")
        A(f"v_lshl_add_u32 v{t}, v{t}, 1, v{t+1}")
        A(f"s_lshl_b32 {sT1}, s2, 3")
        A(f"v_lshl_add_u32 v{vT1}, v{t}, 1, {sT1}")
        A("s_waitcnt lgkmcnt(0)")
        A(f"v_mov_b32 v{vOQ}, 0")
        A(f"s_lshl_b32 {sT1}, {sW}, 8")
        A(f"v_lshl_add_u32 v{vAC2}, v{vL}, 2, {sT1}")

    def st_load(self):
        A = self.A
        A(f"s_lshl_b32 {sT0}, {sBH}, 5"); A(f"s_add_u32 {sT0}, {sT0}, {WS_S}")
        A(f"v_mov_b32 v{vT0}, 0")
        for k in range(2):
            A(f"buffer_load_dwordx4 {vr(vXR+4*k,4)}, v{vT0}, {srd(R_WS)}, {sT0} offen offset:{16*k} sc1")
    def step_st0(self):
        self.only(self.svc, self.st_load)
    def step_scale(self):
        A = self.A
        t = vTM
        s = vXR
        def fn():
            ok = self.label("stok"); sp = self.label("stspin")
            A(f"v_mov_b32 v{t+3}, 0")
            A(f"ds_read_b32 v{t+2}, v{t+3} offset:{L_GS}")
            A(f"s_mov_b32 {sCNT}, 0")
            A(f"v_max3_u32 v{t}, v{s+1}, v{s+3}, v{s+5}")
            A(f"v_max_u32 v{t}, v{t}, v{s+7}")
            A(f"v_cmp_eq_u32 vcc, -1, v{t}")
            A(f"s_cbranch_vccz {ok}")
            self.L(sp)
            self.st_load()
            A(f"s_add_u32 {sCNT}, {sCNT}, 1")
            A(f"s_cmp_ge_u32 {sCNT}, {SPIN}")
            A("s_waitcnt vmcnt(0)")
            A(f"s_cbranch_scc1 {ok}")
            A(f"v_max3_u32 v{t}, v{s+1}, v{s+3}, v{s+5}")
            A(f"v_max_u32 v{t}, v{t}, v{s+7}")
            A(f"v_cmp_eq_u32 vcc, -1, v{t}")
            A(f"s_cbranch_vccnz {sp}")
            self.L(ok)
            A(f"v_max3_f32 v{t}, v{s}, v{s+2}, v{s+4}")
            A(f"v_max_f32 v{t}, v{t}, v{s+6}")
            for k in range(4): A(f"v_sub_f32 v{s+2*k}, v{s+2*k}, v{t}")
            A(f"v_sub_f32 v{t+1}, v{vAC2+2}, v{t}")
            for k in range(4): A(f"v_exp_f32 v{s+2*k}, v{s+2*k}")
            A(f"v_exp_f32 v{t+1}, v{t+1}")
            A(f"v_mul_f32 v{t}, v{s}, v{s+1}")
            for k in range(1, 4): A(f"v_fmac_f32 v{t}, v{s+2*k}, v{s+2*k+1}")
            A(f"v_rcp_f32 v{t}, v{t}")
            A("s_waitcnt lgkmcnt(0)")
            A(f"v_mul_f32 v{t+1}, v{t+2}, v{t+1}")
            A(f"v_mul_f32 v{t}, v{t}, v{t+1}")
            A(f"ds_write_b32 v{t+3}, v{t} offset:{L_FS}")
        self.only(self.svc, fn)

    def step_tail(self):
        A = self.A
        t = vTM
        A("s_mov_b32 exec_lo, 0x00ff00ff"); A("s_mov_b32 exec_hi, 0x00ff00ff")
        self.nop(6)
        A(f"v_cvt_pk_bf16_f32 v{t}, v{vACC}, v{vACC+1}")
        A(f"v_cvt_pk_bf16_f32 v{t+1}, v{vACC+2}, v{vACC+3}")
        A(f"ds_write_b64 v{vOK}, {vr(t,2)}")
        A("s_mov_b64 exec, -1")
        A("s_waitcnt lgkmcnt(0)")
        A("s_barrier")
        af = vSP
        for T in range(4): A(f"ds_read_b128 {vr(af+4*T,4)}, v{vOW} offset:{L_OB + 64*T}")
        A(f"ds_read_b32 v{t+4}, v{vOQ} offset:{L_FS}")
        A(f"ds_read_b32 v{vAC2+3}, v{vAC2} offset:{L_YF}")
        for T in range(4):
            A(f"s_waitcnt lgkmcnt({5-T})" if not self.stamps else "s_waitcnt lgkmcnt(0)")
            for tau in range(4):
                c = vr(vDF+4*tau,4) if T else "0"
                A(f"v_mfma_f32_16x16x32_bf16 {vr(vDF+4*tau,4)}, {vr(af+4*T,4)}, {vr(self.WF[tau]+4*T,4)}, {c}")
        A("s_waitcnt lgkmcnt(0)")
        self.nop(4)
        for tau in range(4):
            d = vDF + 4 * tau
            A(f"v_add_f32 v{d}, v{d}, v{d+1}"); A(f"v_add_f32 v{d+2}, v{d+2}, v{d+3}")
            A(f"v_add_f32 v{d}, v{d}, v{d+2}")
        self.nop(1)
        A(f"v_permlane16_swap_b32 v{vDF}, v{vDF+4}")
        A(f"v_permlane16_swap_b32 v{vDF+8}, v{vDF+12}")
        self.nop(1)
        A(f"v_add_f32 v{vDF}, v{vDF}, v{vDF+4}")
        A(f"v_add_f32 v{vDF+8}, v{vDF+8}, v{vDF+12}")
        A(f"v_cndmask_b32 v{t}, v{vDF+8}, v{vDF}, s[0:1]")
        A(f"v_fma_f32 v{t}, v{t}, v{t+4}, v{vAC2+3}")
        A(f"v_min_u32 v{t}, -2, v{t}")
        self.nop(2)
        for k in range(1, 4):
            A(f"v_mov_b32_dpp v{t+k}, v{t} quad_perm:[{k},{k},{k},{k}] row_mask:0xf bank_mask:0xf")
        A("s_mov_b32 exec_lo, 0x11111111"); A("s_mov_b32 exec_hi, 0x11111111")
        A(f"buffer_store_dwordx4 {vr(t,4)}, v{vOF}, {srd(R_WS)}, {sTF} offen{'' if self.two_kernel else ' sc1'}")
        A("s_mov_b64 exec, -1")

    def consumer(self, poll=True):
        A = self.A
        y = vSP
        t = vTM + 4
        sp = self.label("yspin"); ok = self.label("yok")
        A(f"s_mov_b32 {sCNT}, 0")
        self.L(sp)
        fl = " sc1" if poll else ""
        A(f"buffer_load_dwordx4 {vr(y,4)}, v{vOD}, {srd(R_WS)}, {sTQ} offen{fl}")
        A(f"buffer_load_dwordx4 {vr(y+4,4)}, v{vOD}, {srd(R_WS)}, {sTQ} offen offset:1024{fl}")
        if poll:
            A(f"s_add_u32 {sCNT}, {sCNT}, 1")
            A(f"s_cmp_ge_u32 {sCNT}, {SPIN}")
            A("s_waitcnt vmcnt(0)")
            A(f"s_cbranch_scc1 {ok}")
            A(f"v_max3_u32 v{t}, v{y}, v{y+1}, v{y+2}")
            A(f"v_max3_u32 v{t+1}, v{y+3}, v{y+4}, v{y+5}")
            A(f"v_max3_u32 v{t}, v{t}, v{y+6}, v{y+7}")
            A(f"v_max_u32 v{t}, v{t}, v{t+1}")
            A(f"v_cmp_eq_u32 vcc, -1, v{t}")
            A(f"s_cbranch_vccnz {sp}")
            self.L(ok)
        else:
            A("s_waitcnt vmcnt(0)")
        for k in range(4): A(f"v_add_f32 v{y+k}, v{y+k}, v{y+4+k}")
        self.nop(1)
        A(f"v_permlane32_swap_b32 v{y}, v{y+1}"); A(f"v_permlane32_swap_b32 v{y+2}, v{y+3}")
        self.nop(1)
        A(f"v_add_f32 v{y}, v{y}, v{y+1}"); A(f"v_add_f32 v{y+2}, v{y+2}, v{y+3}")
        self.nop(2)
        A(f"v_permlane16_swap_b32 v{y}, v{y+2}")
        self.nop(1)
        A(f"v_add_f32 v{y}, v{y}, v{y+2}")
        for ctl in ("quad_perm:[1,0,3,2]", "quad_perm:[2,3,0,1]", "row_half_mirror", "row_mirror"):
            self.dpp_add(y, ctl)
        A(f"v_cvt_pk_bf16_f32 v{y}, v{y}, v{y}")
        A("s_mov_b32 exec_lo, 0x00010001"); A("s_mov_b32 exec_hi, 0x00010001")
        A(f"global_store_short v{vT1}, v{y}, s[{P_OUT}:{P_OUT+1}]")

    def steps(self, idx):
        S = []
        def add(name, needs, fn): S.append(dict(name=name, needs=needs, fn=fn))
        add("gate0", [], self.step_gate0)
        add("gate", ["@gate0"], self.step_gate)
        add("join", [self.q_at], lambda: None)
        add("qred", [], self.step_qred)
        for G in range(8): add(f"qk{G}", [f"K{G}_3"], lambda G=G: self.step_qk(G))
        add("fl", [], self.step_fl)
        add("softmax", ["wd1"], self.step_softmax)
        lastdma = idx["wo15"]
        placed = False
        for G in range(8):
            if G == 7: add("scale", ["@st0"], self.step_scale)
            if not placed and G >= 2 and idx[f"V{G}_3"] > lastdma:
                add("wof", ["wo15"], self.step_wof); placed = True
            add(f"pv{G}", [f"V{G}_3"], lambda G=G: self.step_pv(G))
            if f"pv{G}" == self.fga_pos: add("fga", ["@fl"], self.step_fga)
            if f"pv{G}" == self.st_pos: add("st0", [], self.step_st0)
            if f"pv{G}" == self.ffn_pos: add("ffn2", ["@fga"], self.step_ffn2)
        assert placed
        add("tail", [], self.step_tail)
        return S

    def schedule(self, W, W2):
        self.st_pos = self.st_after; self.st_after = "st0"
        items = self.items()
        self.st_after = self.st_pos
        idx = {it["name"]: n for n, it in enumerate(items)}
        steps = self.steps(idx)
        issued = 4 + self.npre
        assert all(it['name'][0] == 'K' for it in items[:issued])
        comp = -1; done = set(); pos = -1; after = {}
        lother = self.label("other"); ljoin = self.label("join")
        self.A(f"s_cmp_lg_u32 {sW}, {self.hs}"); self.A(f"s_cbranch_scc1 {lother}")
        mark = len(self.o)
        self.L(lother)
        for st in steps:
            need = max([after[n[1:]] if n[0] == "@" else idx[n] for n in st["needs"]], default=-1)
            pos = max(pos, need)
            def issue(w, la):
                nonlocal issued, comp
                while issued < len(items):
                    it = items[issued]
                    if issued > pos + la - 1: break
                    if it["dep"] and it["dep"] not in done:
                        assert issued > need, (st["name"], it["name"])
                        break
                    if issued - (comp + 1) >= w:
                        self.A(f"s_waitcnt vmcnt({w-1})"); comp = issued - w
                    it["fn"](); issued += 1
            if st['name'] != 'qred': issue(W, W)
            if comp < need:
                self.A(f"s_waitcnt vmcnt({issued-1-need})"); comp = need
            if st["name"] == "join":
                issue(W + self.boost, W + self.boost)
                rest = self.o[mark:]; del self.o[mark:]
                self.bcast()
                n1 = self.hs_pre; n2 = min(issued, n1 + self.hs_mid)
                def pre():
                    for n in range(n1): items[n]["fn"]()
                def mid():
                    for n in range(n1, n2): items[n]["fn"]()
                    return n2 - n1
                self.q_gather(pre, mid)
                if self.curve: self.A(f"s_memrealtime s[{self.cpairs[4]}:{self.cpairs[4]+1}]")
                self.q_reduce()
                for n in range(n2, issued): items[n]["fn"]()
                self.A(f"s_branch {ljoin}")
                self.o += rest
                self.L(ljoin)
                comp = -1; W = W2
            if st["name"] in self.boosts: issue(W + self.boosts[st["name"]], W + self.boosts[st["name"]])
            self.o.append(f"    ; ---- {st['name']}")
            st["fn"](); done.add(st["name"])
            after[st["name"]] = issued
            if st["name"] in self.stamp_after: self.stamp(self.stamp_after[st["name"]])
            if self.curve and st["name"] in self.curve:
                p = self.cpairs[1 + self.curve.index(st["name"])]; self.A(f"s_memrealtime s[{p}:{p+1}]")
        assert issued == len(items)

    def kd(self, name, vg, sg):
        return [f".amdhsa_kernel {name}", f"  .amdhsa_next_free_vgpr {vg}", f"  .amdhsa_next_free_sgpr {sg}",
                f"  .amdhsa_accum_offset {vg}", "  .amdhsa_group_segment_fixed_size 0", "  .amdhsa_kernarg_size 104",
                "  .amdhsa_user_sgpr_count 2", "  .amdhsa_user_sgpr_kernarg_segment_ptr 1",
                "  .amdhsa_system_sgpr_workgroup_id_x 1", ".end_amdhsa_kernel"]

    def build(self):
        A = self.A
        K1 = NAME + "_kernel"; K2 = "gated_mix_reduce_kernel"
        o = self.o
        o.append(HEADER.rstrip("\n"))
        if self.two_kernel:
            o.append(f"; @launch kernel={K1} grid=(256,1,1) block=(512,1,1) lds={LDS_BYTES}")
            o.append(f"; @launch kernel={K2} grid=(256,1,1) block=(64,1,1) lds=0")
        else:
            o.append(f"; @launch grid=(256,1,1) block=(512,1,1) lds={LDS_BYTES}")
        o += ['.amdgcn_target "amdgcn-amd-amdhsa--gfx950"', ".text", f".globl {K1}", ".p2align 8",
              f".type {K1},@function", f"{K1}:"]
        self.phase0()
        if self.W_even is not None:
            A(f"s_and_b32 {sT0}, {sXCC}, 1"); A("s_cbranch_scc1 L_odd")
            self.schedule(self.W_even, self.W2_even)
            A("s_branch L_join")
            self.L("L_odd")
            self.schedule(self.W, self.W2)
            self.L("L_join")
        else:
            self.schedule(self.W, self.W2)
        if self.curve:
            A("s_waitcnt lgkmcnt(0)")
            A(f"s_add_u32 s0, s40, {STAMP_OFF + 65536}"); A("s_addc_u32 s1, s41, 0")
            A(f"s_lshl_b32 s8, s2, 3"); A(f"s_add_u32 s8, s8, {sW}"); A("s_lshl_b32 s8, s8, 6")
            A("v_mov_b32 v112, s8")
            for k in range(16): A(f"v_mov_b32 v{116+k}, s{self.cpairs[k] if k < 15 else 90}")
            A("s_mov_b64 exec, 1")
            for k in range(4): A(f"global_store_dwordx4 v112, v[{116+4*k}:{119+4*k}], s[0:1] offset:{16*k}")
            A("s_mov_b64 exec, -1")
        A(f"s_cmp_lg_u32 {sW}, 0"); A("s_cbranch_scc1 L_end")
        if not self.two_kernel:
            self.consumer()
        if self.fixdur:
            self.L("L_fix")
            A("s_memrealtime s[94:95]")
            A("s_waitcnt lgkmcnt(0)")
            A("s_sub_u32 s94, s94, s92")
            A(f"s_cmp_lt_u32 s94, {self.fixdur}")
            A("s_cbranch_scc1 L_fix")
        elif self.stamps and not self.curve:
            self.stamp(4)
            A("s_mov_b64 exec, 1")
            A("s_waitcnt lgkmcnt(0)")
            A(f"s_add_u32 s40, s40, {STAMP_OFF}"); A("s_addc_u32 s41, s41, 0")
            A("s_lshl_b32 s8, s2, 6"); A("v_mov_b32 v1, s8")
            for k in range(4):
                A(f"v_mov_b32 v{8+2*k}, s{sST+2*k}"); A(f"v_mov_b32 v{9+2*k}, s{sST+2*k+1}")
            A(f"v_mov_b32 v16, {sXCC}"); A("v_mov_b32 v17, 0")
            A(f"v_mov_b32 v18, s{sST+8}"); A(f"v_mov_b32 v19, s{sST+9}")
            A("global_store_dwordx4 v1, v[8:11], s[40:41]")
            A("global_store_dwordx4 v1, v[12:15], s[40:41] offset:16")
            A("global_store_dwordx4 v1, v[16:19], s[40:41] offset:32")
        self.L("L_end"); A("s_endpgm")
        if self.two_kernel:
            o += [f".globl {K2}", ".p2align 8", f".type {K2},@function", f"{K2}:"]
            A("s_cmp_ge_u32 s2, 256"); A("s_cbranch_scc1 L_end2")
            A(f"s_load_dwordx2 s[{P_OUT}:{P_OUT+1}], s[0:1], 80")
            A(f"s_load_dwordx2 s[{P_WS}:{P_WS+1}], s[0:1], 96")
            t = vTM
            A(f"v_bfe_u32 v{vG}, v0, 4, 2")
            A(f"v_lshlrev_b32 v{vOD}, 4, v0")
            A(f"s_lshl_b32 {sTQ}, s2, 11")
            A(f"v_and_b32 v{t}, 1, v{vG}"); A(f"v_lshrrev_b32 v{t+1}, 1, v{vG}")
            A(f"v_lshl_add_u32 v{t}, v{t}, 1, v{t+1}")
            A(f"s_lshl_b32 {sT1}, s2, 3")
            A(f"v_lshl_add_u32 v{vT1}, v{t}, 1, {sT1}")
            A("s_waitcnt lgkmcnt(0)")
            self.mk(R_WS, P_WS, None, WS_BYTES)
            self.consumer(poll=False)
            self.L("L_end2"); A("s_endpgm")
        o += ['.section .rodata,"a"', ".p2align 6"] + self.kd(K1, 256, 102)
        if self.two_kernel:
            o += [".p2align 6"] + self.kd(K2, 112, 102)
        return "\n".join(o) + "\n"

if __name__ == "__main__":
    import argparse, json
    ap = argparse.ArgumentParser()
    ap.add_argument("out"); ap.add_argument("--opt", default="{}")
    a = ap.parse_args()
    open(a.out, "w").write(Gen(**json.loads(a.opt)).build())
```

```python
import sys, struct, math

NAME = "gated_mix__mha_block_cached__geglu_ffn__decode"
HEADER = open("cdna_kernels/" + NAME + ".s.ref").read().split("; Override launch")[0]

def f32(x):
    return "0x%08x" % struct.unpack("<I", struct.pack("<f", x))[0]

L_QS = 0
L_HS = 256
L_GS = 320
L_FS = 336
L_MX = 384
L_LS = 448
L_OB = 512
L_YF = 3072
L_WD = 5120
L_WO = L_WD + 16384
L_END = L_WO + 131072
LDS_BYTES = (L_END + 255) // 256 * 256

WS_Y = 0
WS_S = 0x80000
WS_Q = 0x89000
WS_F = WS_Q + 0x40000
WS_M = WS_F + 176 * 1024
WS_BYTES = WS_M
WS_MB = 0x81000
STAMP_OFF = 128 << 20
SPIN = "0x4000"

sW = "s3"
P_X, P_K, P_V, P_WQ, P_WO, P_WG, P_WU = 16, 18, 20, 22, 24, 28, 30
P_WD, P_GW, P_OUT, P_DBG, P_WS = 32, 34, 36, 38, 40
R_K, R_V, R_WQ, R_WO, R_X, R_GW, R_FT, R_WD, R_WS = 44, 48, 52, 56, 60, 64, 68, 76, 80
sH, sB, sS, sSL, sT0, sT1, sT2 = "s4", "s5", "s6", "s7", "s8", "s9", "s10"
sTK, sTV, sTQ, sTF, sTD = "s11", "s12", "s13", "s14", "s15"
sJ, sFT = "s72", "s73"
sDONE = sJ
sWOL, sWDL = "s84", "s85"
sDUP0, sDUP1 = "s86", "s87"
sC = "s88"; sCNT = "s89"; sXCC = "s90"; sBH = "s91"
sX0, sX1 = "s42", "s43"
sROT = "s74"
sTI = "s75"
sST = 92
def srd(r): return f"s[{r}:{r+3}]"

vL, vI, vG = 1, 2, 3
vOK, vOV, vOQ, vOW, vOF, vOD, vT0, vT1 = 4, 5, 6, 7, 8, 9, 10, 11
vM = 12
vXR = 16
vBF = 24
vACC = 32
vAC2 = 36
vQF = 40
vSP = 56
vDF = 88
vTM = 104
vFL = 111
vK = 112
vX = 240
vFG = vDF + 8
vFD = vK + 16
def vr(a, n): return f"v[{a}:{a+n-1}]"

class Gen:
    def __init__(self, W=5, W2=16, W_even=None, W2_even=None, two_kernel=False, stamps=False,
                 wo_sched=None, st_after="pv3", q_at="K6_3", boost=4, fga_pos="pv1", ffn_pos="pv5", sleep=32, curve=None, k0_late=True,
                 stamp_after=None, fixdur=0, svc=3, gsvc=2, hs=0, pub=1, xmap=None, nx=6, cpf=0, x_skip=(), x_nohs=False, k0mode=0, x_noclear=False, x_noy=False, ylate=False, x_nowo=False, x_noffn=False, x_nowq=False, rot=None, lay=0, cons=0, cthr=24, yflags="sc1", hs_pre=12, hs_mid=10, npre=4, boosts=None):
        self.o = []
        self.__dict__.update(locals())
        self.wo_sched = wo_sched or [0, 0, 2, 2, 1, 2, 1, 2, 1, 2, 1, 2, 2, 0, 0, 0]
        assert sum(self.wo_sched) == 18
        self.cpairs = [92, 94, 96, 98, 100, 16, 18, 20, 22, 24, 26, 28, 30, 32, 34]
        if curve: self.stamps = True
        self.stamp_after = stamp_after if stamp_after is not None else ({} if curve else {"qred": 1, "pv7": 2, "tail": 3})
        self.lab = 0
        self.shS, self.shW, self.shG = {0: (18, 15, 12), 1: (18, 12, 15), 2: (15, 12, 17), 3: (12, 14, 17), 4: (15, 17, 12)}[lay]
        if lay and not rot: self.rot = [['w', 0]]
        self.boosts = boosts if boosts is not None else {'softmax': 4, 'wof': 4}
    def A(self, s): self.o.append("    " + s)
    def L(self, s): self.o.append(s + ":")
    def nop(self, n):
        while n > 0:
            k = min(n, 16); self.A(f"s_nop {k-1}"); n -= k
    def label(self, p):
        self.lab += 1; return f"L_{p}_{self.lab}"
    def stamp(self, k):
        if self.stamps: self.A(f"s_memrealtime s[{sST+2*k}:{sST+2*k+1}]")
    def only(self, w, fn):
        sk = self.label("skip")
        self.A(f"s_cmp_lg_u32 {sW}, {w}"); self.A(f"s_cbranch_scc1 {sk}")
        fn()
        self.L(sk)

    def swap_reduce(self, op, v, tmp, which):
        A = self.A
        A(f"v_mov_b32 v{tmp}, v{v}")
        self.nop(2)
        A(f"v_permlane{which}_swap_b32 v{v}, v{tmp}")
        self.nop(1)
        A(f"{op} v{v}, v{v}, v{tmp}")
    def dpp_add(self, v, ctl):
        self.nop(2)
        self.A(f"v_add_f32_dpp v{v}, v{v}, v{v} {ctl} row_mask:0xf bank_mask:0xf")
    def mk(self, r, p, off, size):
        A = self.A
        if off is None:
            A(f"s_mov_b32 s{r}, s{p}"); A(f"s_mov_b32 s{r+1}, s{p+1}")
        else:
            A(f"s_add_u32 s{r}, s{p}, {off}"); A(f"s_addc_u32 s{r+1}, s{p+1}, 0")
        if size is not None: A(f"s_mov_b32 s{r+2}, {size}")
        A(f"s_mov_b32 s{r+3}, 0x20000")

    def kv_load(self, kind, G, t):
        A = self.A
        st = sTK if kind == "K" else sTV
        if self.rot:
            if t == 0: A(f"s_xor_b32 {st}, {sROT}, {G << self.shG}")
            so = st
        else:
            if t == 0 and G > 0: A(f"s_movk_i32 {st}, {G*4096}")
            so = st if G > 0 else "0"
        if kind == "K":
            A(f"buffer_load_dwordx4 {vr(vK+16*G+4*t,4)}, v{vOK}, {srd(R_K)}, {so} offen offset:{(t>>1)*2048 + (t&1)*128} nt")
        else:
            dst = vX if G == 0 else vK + 16 * (G - 1)
            A(f"buffer_load_dwordx4 {vr(dst+4*t,4)}, v{vOV}, {srd(R_V)}, {so} offen offset:{256*t} nt")

    def bsel(self, src, half, bset):
        A = self.A
        t = vTM + 4 + bset
        A(f"v_perm_b32 v{t}, v{src}, v{src}, {sDUP1 if half else sDUP0}")
        for u in range(4): A(f"v_and_b32 v{vBF+4*bset+u}, v{t}, v{vM+u}")

    def phase0(self):
        A = self.A
        A("s_cmp_ge_u32 s2, 256")
        A("s_cbranch_scc1 L_end")
        A("s_load_dwordx16 s[16:31], s[0:1], 0")
        A("s_load_dwordx8 s[32:39], s[0:1], 64")
        A("s_load_dwordx2 s[40:41], s[0:1], 96")
        self.stamp(0)
        if self.fixdur: A("s_memrealtime s[92:93]")
        A("v_lshrrev_b32 v10, 6, v0")
        A(f"v_and_b32 v{vI}, 15, v0")
        A(f"v_readfirstlane_b32 {sW}, v10")
        A(f"v_bfe_u32 v{vG}, v0, 4, 2")
        A(f"s_and_b32 {sT0}, s2, 7")
        A(f"s_lshr_b32 {sT1}, s2, 3")
        A(f"s_and_b32 {sT2}, {sT1}, 3")
        A(f"s_lshl_b32 {sH}, {sT0}, 2")
        A(f"s_add_u32 {sH}, {sH}, {sT2}")
        A(f"s_lshr_b32 {sJ}, {sT1}, 2")
        A(f"s_and_b32 {sFT}, s2, 31")
        if self.xmap:
            A(f"s_lshl_b32 {sCNT}, {sT0}, 2"); A(f"s_lshr_b32 {sCNT}, {self.xmap}, {sCNT}"); A(f"s_and_b32 {sCNT}, {sCNT}, 15")
            A(f"s_mul_i32 {sTI}, {sT2}, {self.nx}"); A(f"s_add_u32 {sTI}, {sTI}, {sCNT}")
            A(f"s_cmp_eq_u32 {sCNT}, 15"); A(f"s_cselect_b32 {sTI}, 31, {sTI}")
        else:
            A(f"s_mov_b32 {sTI}, {sFT}")
        A(f"s_lshl_b32 {sTK}, {sJ}, 3"); A(f"s_add_u32 {sTK}, {sTK}, {sW}")
        A(f"s_lshl_b32 {sTV}, {sTK}, 4")
        A(f"s_lshl_b32 {sX0}, {sTK}, 16"); A(f"s_lshl_b32 {sTQ}, {sH}, 8"); A(f"s_add_u32 {sX0}, {sX0}, {sTQ}")
        A(f"s_cmp_ge_u32 {sTI}, 11")
        A(f"s_cselect_b32 {sX1}, 11, 0")
        A(f"s_sub_u32 {sX1}, {sTI}, {sX1}")
        A(f"s_lshl_b32 {sX1}, {sX1}, 8")
        A(f"s_mul_i32 {sTK}, {sTK}, {8*2752}")
        A(f"s_add_u32 {sX1}, {sX1}, {sTK}")
        A(f"s_sub_u32 s{R_FT+2}, {512*2752}, {sX1}")
        A(f"s_cmp_lt_u32 {sTI}, {0 if self.x_noffn else 22}")
        A(f"s_cselect_b32 s{R_FT+2}, s{R_FT+2}, 0")
        A(f"s_cselect_b32 {sX1}, {sX1}, 0")
        A(f"s_mov_b32 s{R_FT+3}, 0x20000")
        A(f"s_mov_b32 s{R_X+2}, 2048"); A(f"s_mov_b32 s{R_X+3}, 0x20000")
        A(f"s_mov_b32 s{R_WQ+2}, {0 if self.x_nowq else 7*8192+256}"); A(f"s_mov_b32 s{R_WQ+3}, 0x20000")
        A(f"s_movk_i32 {sTQ}, 8192")
        A(f"v_lshrrev_b32 v{vT0}, 3, v{vI}")
        A(f"v_lshlrev_b32 v{vT0}, 10, v{vT0}")
        A(f"v_lshl_add_u32 v{vT0}, v{vG}, 2, v{vT0}")
        A(f"v_lshlrev_b32 v{vT1}, 4, v{vI}")
        A(f"v_lshl_add_u32 v{vOQ}, v{vG}, 14, v{vT1}")
        A(f"v_mul_u32_u24 v{vOF}, {2*2752}, v{vG}")
        A(f"v_add_u32 v{vOF}, v{vOF}, v{vT1}")
        A(f"s_cmp_ge_u32 {sTI}, 11")
        A("s_waitcnt lgkmcnt(0)")
        A(f"s_cselect_b32 s{R_FT}, s{P_WU}, s{P_WG}"); A(f"s_cselect_b32 s{R_FT+1}, s{P_WU+1}, s{P_WG+1}")
        A(f"s_add_u32 s{R_WQ}, s{P_WQ}, {sX0}"); A(f"s_addc_u32 s{R_WQ+1}, s{P_WQ+1}, 0")
        A(f"buffer_load_dwordx4 {vr(vDF,4)}, v{vOQ}, {srd(R_WQ)}, 0 offen nt")
        A(f"buffer_load_dwordx4 {vr(vDF+4,4)}, v{vOQ}, {srd(R_WQ)}, {sTQ} offen nt")
        A(f"s_add_u32 s{R_FT}, s{R_FT}, {sX1}"); A(f"s_addc_u32 s{R_FT+1}, s{R_FT+1}, 0")
        A(f"buffer_load_dwordx4 {vr(vDF+8,4)}, v{vOF}, {srd(R_FT)}, 0 offen nt")
        A(f"buffer_load_dwordx4 {vr(vDF+12,4)}, v{vOF}, {srd(R_FT)}, 0 offen offset:2752 nt")
        A(f"s_mov_b32 s{R_X}, s{P_X}"); A(f"s_mov_b32 s{R_X+1}, s{P_X+1}")
        A(f"buffer_load_dword v{vXR}, v{vT0}, {srd(R_X)}, {sTV} offen")
        def clear():
            self.mk(R_WS, P_WS, None, WS_BYTES)
            c = vQF
            for k in range(4): A(f"v_mov_b32 v{c+k}, -1")
            A(f"v_and_b32 v{c+4}, 63, v0"); A(f"v_lshlrev_b32 v{c+4}, 4, v{c+4}")
            A(f"s_lshl_b32 {sTD}, {sH}, 3"); A(f"s_add_u32 {sTD}, {sTD}, {sJ}"); A(f"s_lshl_b32 {sTD}, {sTD}, 10")
            A(f"s_add_u32 {sTD}, {sTD}, {WS_Q}")
            (not self.x_noclear) and A(f"buffer_store_dwordx4 {vr(c,4)}, v{c+4}, {srd(R_WS)}, {sTD} offen sc1")
            A(f"s_lshl_b32 {sTD}, {sTI}, 3"); A(f"s_add_u32 {sTD}, {sTD}, {sJ}"); A(f"s_lshl_b32 {sTD}, {sTD}, 10")
            A(f"s_add_u32 {sTD}, {sTD}, {WS_F}")
            (not self.x_noclear) and A(f"buffer_store_dwordx4 {vr(c,4)}, v{c+4}, {srd(R_WS)}, {sTD} offen sc1")
            if not self.two_kernel and not self.x_noy:
                A(f"s_lshl_b32 {sTD}, s2, 11")
                (not self.x_noclear) and A(f"buffer_store_dwordx4 {vr(c,4)}, v{c+4}, {srd(R_WS)}, {sTD} offen sc1")
                (not self.x_noclear) and A(f"buffer_store_dwordx4 {vr(c,4)}, v{c+4}, {srd(R_WS)}, {sTD} offen offset:1024 sc1")
            A(f"s_lshr_b32 {sTD}, {sJ}, 2"); A(f"s_lshl_b32 {sTD}, {sTD}, 5"); A(f"s_add_u32 {sTD}, {sTD}, {sH}")
            A(f"s_lshl_b32 {sTD}, {sTD}, 2"); A(f"s_and_b32 {sTF}, {sJ}, 3"); A(f"s_add_u32 {sTD}, {sTD}, {sTF}")
            A(f"s_lshl_b32 {sTD}, {sTD}, 3"); A(f"s_add_u32 {sTD}, {sTD}, {WS_S}")
            A("s_mov_b64 exec, 1")
            A(f"buffer_store_dwordx2 {vr(c,2)}, v{c+4}, {srd(R_WS)}, {sTD} offen sc1")
            A(f"s_lshl_b32 {sTD}, s2, 7"); A(f"s_add_u32 {sTD}, {sTD}, {WS_MB}")
            A(f"buffer_store_dword v{c}, v{c+4}, {srd(R_WS)}, {sTD} offen sc1")
            A("s_mov_b64 exec, -1")
        self.only(self.hs, clear)
        if self.cpf:
            def pf():
                A("s_getpc_b64 s[26:27]")
                self.L("L_pc")
                A(f"s_sub_u32 s26, s26, L_pc-{NAME}_kernel"); A("s_subb_u32 s27, s27, 0")
                if self.cpf == 1:
                    A(f"s_lshl_b32 {sTD}, {sT1}, 9")
                    A(f"v_and_b32 v{vQF+8}, 63, v0"); A(f"v_lshl_add_u32 v{vQF+8}, v{vQF+8}, 3, {sTD}")
                    A(f"global_load_dwordx2 v[{vQF+10}:{vQF+11}], v{vQF+8}, s[26:27]")
                else:
                    A(f"v_and_b32 v{vQF+8}, 63, v0"); A(f"v_lshlrev_b32 v{vQF+8}, 7, v{vQF+8}")
                    A(f"global_load_dword v{vQF+10}, v{vQF+8}, s[26:27]")
                    A(f"v_add_u32 v{vQF+8}, 8192, v{vQF+8}")
                    A(f"global_load_dword v{vQF+10}, v{vQF+8}, s[26:27]")
            self.only(7, pf)
        A(f"v_and_b32 v{vL}, 63, v0")
        A(f"s_lshr_b32 {sB}, {sJ}, 2")
        A(f"s_and_b32 {sS}, {sJ}, 3")
        A(f"s_lshl_b32 {sBH}, {sB}, 5"); A(f"s_add_u32 {sBH}, {sBH}, {sH}")
        A(f"v_and_b32 v{vOK}, 7, v0")
        A(f"v_lshlrev_b32 v{vOK}, 8, v{vOK}")
        A(f"v_lshl_add_u32 v{vOK}, v{vG}, 4, v{vOK}")
        A(f"v_and_b32 v{vOV}, 8, v0")
        A(f"v_lshl_add_u32 v{vOK}, v{vOV}, 3, v{vOK}")
        A(f"v_lshl_add_u32 v{vOV}, v{vG}, 10, v{vT1}")
        A(f"s_lshl_b32 {sTK}, {sBH}, 20")
        A(f"s_lshl_b32 {sTV}, {sS}, {self.shS}"); A(f"s_add_u32 {sTK}, {sTK}, {sTV}")
        A(f"s_lshl_b32 {sTV}, {sW}, {self.shW}"); A(f"s_add_u32 {sTK}, {sTK}, {sTV}")
        self.mk(R_K, P_K, sTK, (7 << self.shG) + 4096)
        if self.rot:
            regs = {"w": sW, "j": sJ, "h": sH, "x": sT0, "q": sT2, "b": sB, "s": sS}
            A(f"s_mov_b32 {sROT}, 0")
            for nm, mul in self.rot:
                A(f"s_mul_i32 {sTV}, {regs[nm]}, {mul}"); A(f"s_add_u32 {sROT}, {sROT}, {sTV}")
            A(f"s_and_b32 {sROT}, {sROT}, 7"); A(f"s_lshl_b32 {sROT}, {sROT}, {self.shG}")
        if self.k0mode == 1:
            lk = self.label("k0e")
            A(f"s_mov_b32 {sX1}, {sTK}")
            A(f"s_cmp_eq_u32 {sW}, {self.hs}"); A(f"s_cbranch_scc1 {lk}")
            for n in range(4 + self.npre): self.kv_load("K", n // 4, n % 4)
            self.L(lk)
            A(f"s_mov_b32 {sTK}, {sX1}")
        self.mk(R_V, P_V, sTK, (7 << self.shG) + 4096)
        self.mk(R_WS, P_WS, None, WS_BYTES)
        self.mk(R_GW, P_GW, None, 1024)
        A(f"s_and_b32 {sT1}, {sT1}, 15")
        per = -(-86 // self.nx) if self.xmap else 11
        A(f"s_mul_i32 {sSL}, {sCNT if self.xmap else sT0}, {per}")
        A(f"s_add_u32 {sSL}, {sSL}, {sT1}")
        A(f"s_cmp_lt_u32 {sT1}, {per}")
        A(f"s_cselect_b32 {sSL}, {sSL}, 1000")
        A(f"s_cmp_lt_u32 {sSL}, 86")
        A(f"s_cselect_b32 s{R_WD+2}, {0 if self.x_noffn else 15*1024+128}, 0")
        A(f"s_cselect_b32 {sSL}, {sSL}, 0")
        A(f"s_lshl_b32 {sT0}, {sSL}, 14"); A(f"s_lshl_b32 {sT1}, {sW}, 7"); A(f"s_add_u32 {sT0}, {sT0}, {sT1}")
        self.mk(R_WD, P_WD, sT0, None)
        A(f"s_lshl_b32 {sT0}, {sH}, 17"); A(f"s_add_u32 {sT0}, {sT0}, {sT1}")
        self.mk(R_WO, P_WO, sT0, 0 if self.x_nowo else 127 * 1024 + 128)
        A(f"v_lshlrev_b32 v{vT1}, 4, v{vL}")
        t = vTM + 4
        A(f"v_and_b32 v{t}, 7, v{vL}")
        A(f"v_lshlrev_b32 v{t}, 4, v{t}")
        A(f"v_lshrrev_b32 v{t+1}, 3, v{vL}")
        A(f"v_lshl_add_u32 v{vOD}, v{t+1}, 10, v{t}")
        A(f"v_and_b32 v{t+2}, 3, v{t+1}")
        A(f"v_lshlrev_b32 v{t+2}, 3, v{t+2}")
        A(f"v_lshrrev_b32 v{t+1}, 2, v{t+1}")
        A(f"v_add_u32 v{t+1}, v{t+1}, v{t+2}")
        A(f"v_lshl_add_u32 v{vOW}, v{t+1}, 10, v{t}")
        A(f"s_lshl_b32 {sWOL}, {sW}, 14"); A(f"s_add_u32 {sWOL}, {sWOL}, {L_WO}")
        A(f"s_lshl_b32 {sWDL}, {sW}, 11"); A(f"s_add_u32 {sWDL}, {sWDL}, {L_WD}")
        A(f"v_and_b32 v{t}, 1, v{vI}")
        A(f"v_lshlrev_b32 v{t}, 4, v{t}")
        A(f"v_mov_b32 v{t+1}, 0xffff")
        A(f"v_lshlrev_b32 v{t+1}, v{t}, v{t+1}")
        A(f"v_bfe_u32 v{t}, v{vI}, 1, 2")
        for u in range(4):
            A(f"v_cmp_eq_u32 vcc, {u}, v{t}")
            self.nop(2)
            A(f"v_cndmask_b32 v{vM+u}, 0, v{t+1}, vcc")
        A(f"s_mov_b32 {sDUP0}, 0x01000100"); A(f"s_mov_b32 {sDUP1}, 0x03020302")
        A(f"s_mov_b32 {sC}, {f32(math.log2(math.e) / math.sqrt(128.0))}")
        A(f"s_getreg_b32 {sXCC}, hwreg(HW_REG_XCC_ID)")
        A(f"s_add_u32 {sT0}, {sWOL}, {14*1024}")
        A(f"v_lshl_add_u32 v{vT0}, v{vL}, 4, {sT0}")
        lo = self.label("p0o"); lj = self.label("p0j")
        A(f"s_cmp_lg_u32 {sW}, {self.hs if not self.x_nohs else 9}"); A(f"s_cbranch_scc1 {lo}")
        A(f"s_lshl_b32 {sTF}, {sFT}, 3")
        A(f"v_mov_b32 v{vQF+5}, {sTF}"); A(f"v_mov_b32 v{vQF+6}, 1")
        A("s_waitcnt vmcnt(0)")
        A("s_mov_b64 exec, 1")
        A(f"global_atomic_add v{vFL}, v{vQF+5}, v{vQF+6}, s[{P_DBG}:{P_DBG+1}] sc0")
        A("s_mov_b64 exec, -1")
        A(f"s_branch {lj}")
        self.L(lo)
        if self.k0mode == 1:
            if (4 + self.npre) % 4: A(f"s_xor_b32 {sTK}, {sROT}, {((4 + self.npre) // 4) << self.shG}")
            A(f"s_waitcnt vmcnt({4 + self.npre})")
        else:
            for t in range(4):
                A(f"s_waitcnt vmcnt({[3,2,2,3][t]})")
                self.kv_load("K", 0, t)
            for n in range(self.npre): self.kv_load("K", 1 + n // 4, n % 4)
        self.L(lj)
        if self.curve and "p0" in self.curve:
            p = self.cpairs[1 + self.curve.index("p0")]; A(f"s_memrealtime s[{p}:{p+1}]")
        self.bsel(vXR, 0, 0); self.bsel(vXR, 1, 1)
        self.nop(1)
        A(f"v_mfma_f32_16x16x32_bf16 {vr(vACC,4)}, {vr(vDF,4)}, {vr(vBF,4)}, 0")
        A(f"v_mfma_f32_16x16x32_bf16 {vr(vAC2,4)}, {vr(vDF+8,4)}, {vr(vBF,4)}, 0")
        A(f"v_mfma_f32_16x16x32_bf16 {vr(vACC,4)}, {vr(vDF+4,4)}, {vr(vBF+4,4)}, {vr(vACC,4)}")
        A(f"v_mfma_f32_16x16x32_bf16 {vr(vAC2,4)}, {vr(vDF+12,4)}, {vr(vBF+4,4)}, {vr(vAC2,4)}")
        self.nop(8)
        A(f"ds_write_b128 v{vT0}, {vr(vACC,4)}")
        A(f"ds_write_b128 v{vT0}, {vr(vAC2,4)} offset:1024")
        A("s_waitcnt lgkmcnt(0)")
        A("s_barrier")
        if self.curve and "bar" in self.curve:
            p = self.cpairs[1 + self.curve.index("bar")]; A(f"s_memrealtime s[{p}:{p+1}]")
        def publish():
            d = vSP; d2 = vK + 96
            A(f"v_add_u32 v{vT0}, {L_WO + 14*1024}, v{vT1}")
            A(f"v_add_u32 v{vTM}, 0x10000, v{vT0}")
            for w in range(8): A(f"ds_read_b128 {vr(d+4*w,4)}, v{vT0 if w < 4 else vTM} offset:{16384*(w&3)}")
            for w in range(4): A(f"ds_read_b128 {vr(d2+4*w,4)}, v{vT0} offset:{1024+16384*w}")
            A(f"s_lshl_b32 {sT0}, {sH}, 3"); A(f"s_add_u32 {sT0}, {sT0}, {sJ}"); A(f"s_lshl_b32 {sT0}, {sT0}, 10")
            A(f"s_add_u32 {sT0}, {sT0}, {WS_Q}")
            A(f"s_lshl_b32 {sT1}, {sTI}, 3"); A(f"s_add_u32 {sT1}, {sT1}, {sJ}"); A(f"s_lshl_b32 {sT1}, {sT1}, 10")
            A(f"s_add_u32 {sT1}, {sT1}, {WS_F}")
            A("s_waitcnt lgkmcnt(4)")
            for w in range(4, 8): A(f"ds_read_b128 {vr(d2+4*w,4)}, v{vTM} offset:{1024+16384*(w&3)}")
            for w in range(1, 8):
                for r in range(4): A(f"v_add_f32 v{d+r}, v{d+r}, v{d+4*w+r}")
            for r in range(4): A(f"v_min_u32 v{d+r}, -2, v{d+r}")
            A(f"buffer_store_dwordx4 {vr(d,4)}, v{vT1}, {srd(R_WS)}, {sT0} offen sc1")
            A("s_waitcnt lgkmcnt(0)")
            for w in range(1, 8):
                for r in range(4): A(f"v_add_f32 v{d2+r}, v{d2+r}, v{d2+4*w+r}")
            for r in range(4): A(f"v_min_u32 v{d2+r}, -2, v{d2+r}")
            A(f"buffer_store_dwordx4 {vr(d2,4)}, v{vT1}, {srd(R_WS)}, {sT1} offen sc1")
            if self.curve: A(f"s_memrealtime s[{self.cpairs[1]}:{self.cpairs[1]+1}]")
            self.nop(2)
        self.only(self.pub, publish)

    def bcast(self):
        A = self.A
        sk = self.label("nobc")
        A(f"v_lshlrev_b32 v{vQF+4}, 12, v{vL}"); A(f"v_mov_b32 v{vQF+6}, 1")
        A(f"s_lshl_b32 {sT0}, {sFT}, 7"); A(f"s_add_u32 {sT0}, {sT0}, {WS_MB}")
        A("s_waitcnt vmcnt(0)")
        if self.curve: A(f"s_memrealtime s[{self.cpairs[2]}:{self.cpairs[2]+1}]")
        A(f"v_readfirstlane_b32 {sT1}, v{vFL}")
        self.nop(3)
        A(f"s_and_b32 {sFT}, {sT1}, 7"); A(f"s_cmp_lg_u32 {sFT}, 7"); A(f"s_cbranch_scc1 {sk}")
        A("s_mov_b32 exec_lo, 0xff"); A("s_mov_b32 exec_hi, 0")
        A(f"buffer_store_dword v{vQF+6}, v{vQF+4}, {srd(R_WS)}, {sT0} offen sc1")
        A("s_mov_b64 exec, -1")
        self.L(sk)

    def q_gather(self, pre, mid):
        A = self.A
        go = self.label("go"); sp = self.label("mbspin"); gs = self.label("gaspin"); ok = self.label("gaok"); chk = self.label("gachk")
        A(f"s_mov_b32 {sCNT}, 0")
        A(f"s_mov_b32 {sX0}, {sTD}")
        pre()
        self.ga_addr()
        A(f"s_add_u32 {sT1}, {sT0}, 4096")
        A(f"s_cmp_eq_u32 {sFT}, 7"); A(f"s_cbranch_scc1 {go}")
        self.L(sp)
        A("s_mov_b64 exec, 1")
        A(f"buffer_load_dword v{vFL}, v{vT1}, {srd(R_WS)}, {sX0} offen sc1")
        A("s_mov_b64 exec, -1")
        A(f"s_add_u32 {sCNT}, {sCNT}, 1")
        A("s_waitcnt vmcnt(0)")
        A(f"v_readfirstlane_b32 {sTF}, v{vFL}")
        A(f"s_cmp_ge_u32 {sCNT}, {SPIN}"); A(f"s_cbranch_scc1 {go}")
        A(f"s_cmp_lg_u32 {sTF}, 1"); A(f"s_cbranch_scc1 {sp}")
        self.L(go)
        if self.curve: A(f"s_memrealtime s[{self.cpairs[3]}:{self.cpairs[3]+1}]")
        def loads():
            for k in range(4):
                A(f"buffer_load_dwordx4 {vr(vSP+4*k,4)}, v{vTM}, {srd(R_WS)}, {sT0 if k < 2 else sT1} offen offset:{(k&1)*2048} sc1")
        loads()
        n = mid()
        A(f"s_waitcnt vmcnt({n})")
        A(f"s_branch {chk}")
        self.L(gs)
        loads()
        A(f"s_add_u32 {sCNT}, {sCNT}, 1")
        A(f"s_cmp_ge_u32 {sCNT}, {SPIN}")
        A("s_waitcnt vmcnt(0)")
        A(f"s_cbranch_scc1 {ok}")
        self.L(chk)
        t = vTM + 2
        A(f"v_max3_u32 v{t}, v{vSP}, v{vSP+1}, v{vSP+2}")
        for k in range(3, 15, 2): A(f"v_max3_u32 v{t}, v{t}, v{vSP+k}, v{vSP+k+1}")
        A(f"v_max_u32 v{t}, v{t}, v{vSP+15}")
        A(f"v_cmp_eq_u32 vcc, -1, v{t}")
        A(f"s_cbranch_vccnz {gs}")
        self.L(ok)

    def ga_addr(self):
        A = self.A
        t = vTM
        A(f"s_lshl_b32 {sT0}, {sH}, 13"); A(f"s_lshl_b32 {sT1}, {sB}, 7"); A(f"s_add_u32 {sT0}, {sT0}, {sT1}")
        A(f"s_add_u32 {sT0}, {sT0}, {WS_Q}")
        A(f"v_and_b32 v{t}, 7, v{vL}"); A(f"v_lshlrev_b32 v{t}, 4, v{t}")
        A(f"v_bfe_u32 v{t+1}, v{vL}, 3, 2"); A(f"v_lshl_add_u32 v{t}, v{t+1}, 8, v{t}")
        A(f"v_lshrrev_b32 v{t+1}, 5, v{vL}"); A(f"v_lshl_add_u32 v{t}, v{t+1}, 10, v{t}")

    def q_reduce(self):
        A = self.A
        t = vTM
        d = vSP
        for k in range(1, 4):
            for r in range(4): A(f"v_add_f32 v{d+r}, v{d+r}, v{d+4*k+r}")
        A(f"v_and_b32 v{t+1}, 7, v{vL}")
        A(f"v_lshrrev_b32 v{t+2}, 5, v{vL}")
        A(f"v_permlane32_swap_b32 v{d}, v{d+1}"); A(f"v_permlane32_swap_b32 v{d+2}, v{d+3}")
        A(f"v_lshl_add_u32 v{t+1}, v{t+2}, 3, v{t+1}")
        A(f"v_add_f32 v{d}, v{d}, v{d+1}"); A(f"v_add_f32 v{d+2}, v{d+2}, v{d+3}")
        A(f"v_cvt_pk_bf16_f32 v{d}, v{d}, v{d+2}")
        A(f"v_bfe_u32 v{t}, v{vL}, 3, 2")
        A(f"v_lshl_add_u32 v{t}, v{t}, 5, v{t+1}")
        A(f"v_lshlrev_b32 v{t}, 1, v{t}")
        A(f"ds_write_b16 v{t}, v{d} offset:{L_QS}")
        A(f"ds_write_b16_d16_hi v{t}, v{d} offset:{L_QS+32}")

    def items(self):
        A = self.A
        it = []
        def add(name, fn, dep=None): it.append(dict(name=name, fn=fn, dep=dep))
        def grp(kind, G, dep):
            for t in range(4): add(f"{kind}{G}_{t}", lambda t=t: self.kv_load(kind, G, t), dep if t == 0 else None)
        wd = []
        for t in range(2):
            def fn(t=t):
                A(f"s_add_u32 m0, {sWDL}, {t*1024}")
                A(f"s_movk_i32 {sTD}, {t*8192}")
                A(f"buffer_load_dwordx4 v{vOD}, {srd(R_WD)}, {sTD} offen nt lds")
            wd.append((f"wd{t}", fn, None))
        wo = []
        for t in range(16):
            def fn(t=t):
                A(f"s_add_u32 m0, {sWOL}, {t*1024}")
                A(f"s_mov_b32 {sTD}, {(32*(t>>2) + 2*(t&3))*1024}")
                A(f"buffer_load_dwordx4 v{vOW}, {srd(R_WO)}, {sTD} offen nt lds")
            wo.append((f"wo{t}", fn, "qred" if t >= 14 else None))
        dma = wo[:4] + wd + wo[4:]
        def put(slot):
            for _ in range(self.wo_sched[slot]):
                n, fn, dep = dma.pop(0); add(n, fn, dep)
        for G in range(8): grp("K", G, None); put(G)
        for G in range(8): grp("V", G, (self.st_after if G == 7 else f"qk{G-1}") if G else None); put(8 + G)
        return it

    def step_gate0(self):
        A = self.A
        def fn():
            A(f"s_lshl_b32 {sT1}, {sB}, 10")
            A(f"buffer_load_dwordx4 {vr(vXR,4)}, v{vT1}, {srd(R_X)}, {sT1} offen")
            A(f"buffer_load_dwordx4 {vr(vXR+4,4)}, v{vT1}, {srd(R_GW)}, 0 offen")
        self.only(self.gsvc, fn)
    def step_gate(self):
        A = self.A
        def fn():
            x, w = vXR, vXR + 4
            t = vTM
            acc = vT0
            A(f"v_mov_b32 v{acc}, 0")
            for k in range(4):
                A(f"v_lshlrev_b32 v{t}, 16, v{x+k}"); A(f"v_lshlrev_b32 v{t+1}, 16, v{w+k}")
                A(f"v_and_b32 v{t+2}, 0xffff0000, v{x+k}"); A(f"v_and_b32 v{t+3}, 0xffff0000, v{w+k}")
                A(f"v_mul_f32 v{t}, v{t}, v{t+1}"); A(f"v_mul_f32 v{t+2}, v{t+2}, v{t+3}")
                A(f"v_cvt_pk_bf16_f32 v{t}, v{t}, v{t+2}")
                A(f"v_lshlrev_b32 v{t+1}, 16, v{t}"); A(f"v_and_b32 v{t}, 0xffff0000, v{t}")
                A(f"v_add_f32 v{acc}, v{acc}, v{t+1}"); A(f"v_add_f32 v{acc}, v{acc}, v{t}")
            for ctl in ("quad_perm:[1,0,3,2]", "quad_perm:[2,3,0,1]", "row_half_mirror", "row_mirror"):
                self.dpp_add(acc, ctl)
            self.swap_reduce("v_add_f32", acc, t, 16)
            self.swap_reduce("v_add_f32", acc, t, 32)
            A(f"v_cvt_pk_bf16_f32 v{acc}, v{acc}, v{acc}")
            A(f"v_and_b32 v{acc}, 0xffff0000, v{acc}")
            A(f"v_mul_f32 v{acc}, {f32(-math.log2(math.e))}, v{acc}")
            A(f"v_exp_f32 v{acc}, v{acc}")
            self.nop(1)
            A(f"v_add_f32 v{acc}, 1.0, v{acc}")
            A(f"v_rcp_f32 v{acc}, v{acc}")
            self.nop(1)
            A(f"v_cvt_pk_bf16_f32 v{acc}, v{acc}, v{acc}")
            A(f"v_and_b32 v{t}, 0xffff0000, v{acc}")
            A(f"v_sub_f32 v{t+1}, 1.0, v{t}")
            A(f"v_cvt_pk_bf16_f32 v{t+1}, v{t+1}, v{t+1}")
            A(f"v_and_b32 v{t+1}, 0xffff0000, v{t+1}")
            A(f"v_mov_b32 v{t+2}, 0")
            A(f"ds_write_b64 v{t+2}, {vr(t,2)} offset:{L_GS}")
        self.only(self.gsvc, fn)

    def fl_load(self):
        A = self.A
        A(f"v_and_b32 v{vT0}, 31, v{vL}"); A(f"v_lshlrev_b32 v{vT0}, 3, v{vT0}")
        A(f"global_load_dword v{vFL}, v{vT0}, s[{P_DBG}:{P_DBG+1}] sc1")
    def step_fl(self):
        self.only(self.svc, self.fl_load)
    def step_fga(self):
        A = self.A
        def fn():
            ok = self.label("flok"); sp = self.label("flspin")
            A(f"v_cmp_gt_u32 vcc, 8, v{vFL}")
            A(f"s_cbranch_vccz {ok}")
            A(f"s_mov_b32 {sCNT}, 0")
            self.L(sp)
            A(f"s_sleep {self.sleep}")
            self.fl_load()
            A(f"s_add_u32 {sCNT}, {sCNT}, 1")
            A(f"s_cmp_ge_u32 {sCNT}, {SPIN}")
            A("s_waitcnt vmcnt(0)")
            A(f"s_cbranch_scc1 {ok}")
            A(f"v_cmp_gt_u32 vcc, 8, v{vFL}")
            A(f"s_cbranch_vccnz {sp}")
            self.L(ok)
            self.fg_load()
        self.only(self.svc, fn)
    def fg_load(self):
        A = self.A
        A(f"s_lshr_b32 {sT0}, {sSL}, 3"); A(f"s_lshl_b32 {sT0}, {sT0}, 13")
        A(f"s_lshl_b32 {sT1}, {sB}, 7"); A(f"s_add_u32 {sT0}, {sT0}, {sT1}")
        A(f"s_bfe_u32 {sT1}, {sSL}, 0x20001"); A(f"s_lshl_b32 {sT1}, {sT1}, 8"); A(f"s_add_u32 {sT0}, {sT0}, {sT1}")
        A(f"s_and_b32 {sT1}, {sSL}, 1"); A(f"s_lshl_b32 {sT1}, {sT1}, 3"); A(f"s_add_u32 {sT0}, {sT0}, {sT1}")
        A(f"s_add_u32 {sT0}, {sT0}, {WS_F}")
        A(f"v_and_b32 v{vT0}, 7, v{vL}"); A(f"v_lshlrev_b32 v{vT0}, 4, v{vT0}")
        A(f"v_lshrrev_b32 v{vTM}, 3, v{vL}"); A(f"v_lshl_add_u32 v{vT0}, v{vTM}, 10, v{vT0}")
        A(f"buffer_load_dwordx2 {vr(vFG,2)}, v{vT0}, {srd(R_WS)}, {sT0} offen sc1")
        A(f"s_add_u32 {sT0}, {sT0}, {11*8192}")
        A(f"buffer_load_dwordx2 {vr(vFG+2,2)}, v{vT0}, {srd(R_WS)}, {sT0} offen sc1")
    def step_ffn2(self):
        A = self.A
        t = vTM
        def fn():
            e = vFG
            ok = self.label("fgok"); sp = self.label("fgspin")
            A(f"s_mov_b32 {sCNT}, 0")
            self.L(sp)
            A(f"v_max3_u32 v{t}, v{e}, v{e+1}, v{e+2}"); A(f"v_max_u32 v{t}, v{t}, v{e+3}")
            A(f"v_cmp_eq_u32 vcc, -1, v{t}")
            A(f"s_cbranch_vccz {ok}")
            self.fg_load()
            A(f"s_add_u32 {sCNT}, {sCNT}, 1")
            A(f"s_cmp_lt_u32 {sCNT}, {SPIN}")
            A("s_waitcnt vmcnt(0)")
            A(f"s_cbranch_scc1 {sp}")
            self.L(ok)
            A(f"v_permlane32_swap_b32 v{e}, v{e+1}"); A(f"v_permlane32_swap_b32 v{e+2}, v{e+3}")
            self.nop(1)
            A(f"v_add_f32 v{e}, v{e}, v{e+1}"); A(f"v_add_f32 v{e+2}, v{e+2}, v{e+3}")
            self.swap_reduce("v_add_f32", e, e + 1, 16)
            self.swap_reduce("v_add_f32", e + 2, e + 3, 16)
            self.dpp_add(e, "row_ror:8"); self.dpp_add(e + 2, "row_ror:8")
            A(f"v_cvt_pk_bf16_f32 v{e}, v{e}, v{e+2}")
            A(f"v_and_b32 v{e+2}, 0xffff0000, v{e}")
            A(f"v_lshlrev_b32 v{e}, 16, v{e}")
            k0 = math.sqrt(2.0 / math.pi)
            A(f"v_mul_f32 v{e+1}, v{e}, v{e}")
            A(f"v_mov_b32 v{e+3}, {f32(-2.0 * k0 * math.log2(math.e))}")
            A(f"v_mul_f32 v{e+1}, {f32(0.044715)}, v{e+1}")
            A(f"v_add_f32 v{e+1}, 1.0, v{e+1}")
            A(f"v_mul_f32 v{e+1}, v{e+1}, v{e}")
            A(f"v_mul_f32 v{e+1}, v{e+1}, v{e+3}")
            A(f"v_exp_f32 v{e+1}, v{e+1}")
            self.nop(1)
            A(f"v_add_f32 v{e+1}, 1.0, v{e+1}")
            A(f"v_rcp_f32 v{e+1}, v{e+1}")
            self.nop(1)
            A(f"v_mul_f32 v{e}, v{e}, v{e+1}")
            A(f"v_cvt_pk_bf16_f32 v{e}, v{e}, v{e}")
            A(f"v_and_b32 v{e}, 0xffff0000, v{e}")
            A(f"v_mul_f32 v{e}, v{e}, v{e+2}")
            A(f"v_cvt_pk_bf16_f32 v{e}, v{e}, v{e}")
            A(f"v_and_b32 v{t+1}, 7, v{vL}"); A(f"v_lshrrev_b32 v{t+2}, 5, v{vL}")
            A(f"v_lshl_add_u32 v{t+1}, v{t+2}, 3, v{t+1}")
            A(f"v_lshlrev_b32 v{t+1}, 1, v{t+1}")
            A(f"ds_write_b16 v{t+1}, v{e} offset:{L_HS}")
            A(f"v_lshlrev_b32 v{t+1}, 3, v{vG}")
            A(f"v_mov_b32 v{t+3}, 0")
            A("s_waitcnt lgkmcnt(0)")
            A(f"ds_read_b64 {vr(e,2)}, v{t+1} offset:{L_HS}")
            A(f"ds_read_b32 v{e+2}, v{t+3} offset:{L_GS+4}")
            A(f"v_lshrrev_b32 v{t}, 2, v{vI}"); A(f"v_and_b32 v{t+1}, 3, v{vI}")
            A(f"v_lshlrev_b32 v{t+1}, 3, v{t+1}")
            A(f"v_lshl_add_u32 v{t+1}, v{t}, 7, v{t+1}")
            A(f"v_lshl_add_u32 v{t+1}, v{vG}, 9, v{t+1}")
            A(f"v_lshlrev_b32 v{t+2}, 2, v{vL}")
            for k in range(1, 4): A(f"v_cmp_eq_u32 {['', 's[52:53]', 's[54:55]', 's[68:69]'][k]}, {k}, v{vG}")
            wf = vDF
            for w in range(8):
                for tau in range(4):
                    A(f"ds_read_b64_tr_b16 {vr(wf+2*tau,2)}, v{t+1} offset:{L_WD + w*2048 + tau*32}")
                A("s_waitcnt lgkmcnt(0)")
                for tau in range(4):
                    A(f"v_mfma_f32_16x16x16_bf16 {vr(vFD+4*tau,4)}, {vr(e,2)}, {vr(wf+2*tau,2)}, 0")
                self.nop(6)
                A(f"v_cndmask_b32 v{t+4}, v{vFD}, v{vFD+4}, s[52:53]")
                self.nop(1)
                A(f"v_cndmask_b32 v{t+4}, v{t+4}, v{vFD+8}, s[54:55]")
                self.nop(1)
                A(f"v_cndmask_b32 v{t+4}, v{t+4}, v{vFD+12}, s[68:69]")
                A(f"v_mul_f32 v{t+4}, v{t+4}, v{e+2}")
                A(f"ds_write_b32 v{t+2}, v{t+4} offset:{L_YF + w*256}")
        self.only(self.svc, fn)

    def step_qred(self):
        A = self.A
        t = vTM
        A(f"v_and_b32 v{t}, 8, v{vL}")
        A(f"v_lshlrev_b32 v{t}, 3, v{t}")
        A(f"v_lshl_add_u32 v{t}, v{vG}, 4, v{t}")
        A("s_waitcnt lgkmcnt(0)")
        A("s_barrier")
        for T in range(2): A(f"ds_read_b128 {vr(vQF+4*T,4)}, v{t} offset:{L_QS+128*T}")
        A("s_waitcnt lgkmcnt(0)")

    def qk_combine(self, G):
        A = self.A
        a = vSP + 4 * G; b = vQF + 8 + 4 * (G & 1)
        for r in range(4): A(f"v_permlane32_swap_b32 v{a+r}, v{b+r}")
        for r in range(4): A(f"v_add_f32_dpp v{a+r}, v{b+r}, v{a+r} row_ror:8 row_mask:0xf bank_mask:0xf")
    def step_qk(self, G):
        A = self.A
        a = vSP + 4 * G; b = vQF + 8 + 4 * (G & 1); k = vK + 16 * G
        A(f"v_mfma_f32_16x16x32_bf16 {vr(a,4)}, {vr(k,4)}, {vr(vQF,4)}, 0")
        A(f"v_mfma_f32_16x16x32_bf16 {vr(b,4)}, {vr(k+8,4)}, {vr(vQF,4)}, 0")
        A(f"v_mfma_f32_16x16x32_bf16 {vr(a,4)}, {vr(k+4,4)}, {vr(vQF+4,4)}, {vr(a,4)}")
        A(f"v_mfma_f32_16x16x32_bf16 {vr(b,4)}, {vr(k+12,4)}, {vr(vQF+4,4)}, {vr(b,4)}")
        if G > 0:
            self.nop(4)
            self.qk_combine(G - 1)

    def step_softmax(self):
        A = self.A
        t = vTM
        m = vAC2 + 2
        A(f"v_max3_f32 v{m}, v{vSP}, v{vSP+1}, v{vSP+2}")
        for k in range(3, 27, 2): A(f"v_max3_f32 v{m}, v{m}, v{vSP+k}, v{vSP+k+1}")
        self.qk_combine(7)
        A(f"v_max3_f32 v{m}, v{m}, v{vSP+27}, v{vSP+28}")
        A(f"v_max3_f32 v{m}, v{m}, v{vSP+29}, v{vSP+30}")
        A(f"v_max_f32 v{m}, v{m}, v{vSP+31}")
        self.swap_reduce("v_max_f32", m, t, 16)
        self.swap_reduce("v_max_f32", m, t, 32)
        A(f"s_lshl_b32 {sT0}, {sW}, 2")
        A(f"v_mov_b32 v{t+4}, {sT0}")
        A(f"v_mov_b32 v{t+5}, 0")
        A("s_mov_b64 exec, 1")
        A(f"ds_write_b32 v{t+4}, v{m} offset:{L_MX}")
        A("s_mov_b64 exec, -1")
        A("s_waitcnt lgkmcnt(0)")
        A("s_barrier")
        A(f"ds_read_b128 {vr(vBF,4)}, v{t+5} offset:{L_MX}")
        A(f"ds_read_b128 {vr(vBF+4,4)}, v{t+5} offset:{L_MX+16}")
        A("s_waitcnt lgkmcnt(0)")
        A(f"v_max3_f32 v{m}, v{vBF}, v{vBF+1}, v{vBF+2}")
        A(f"v_max3_f32 v{m}, v{m}, v{vBF+3}, v{vBF+4}")
        A(f"v_max3_f32 v{m}, v{m}, v{vBF+5}, v{vBF+6}")
        A(f"v_max_f32 v{m}, v{m}, v{vBF+7}")
        A(f"v_mul_f32 v{m}, {sC}, v{m}")
        l = vT0
        for k in range(32):
            A(f"v_fma_f32 v{vSP+k}, v{vSP+k}, {sC}, -v{m}")
        for k in range(32):
            A(f"v_exp_f32 v{vSP+k}, v{vSP+k}")
        A(f"v_add_f32 v{l}, v{vSP}, v{vSP+1}"); A(f"v_add_f32 v{t}, v{vSP+2}, v{vSP+3}")
        for k in range(4, 32, 2):
            A(f"v_add_f32 v{l}, v{l}, v{vSP+k}"); A(f"v_add_f32 v{t}, v{t}, v{vSP+k+1}")
        A(f"v_add_f32 v{l}, v{l}, v{t}")
        self.swap_reduce("v_add_f32", l, t, 16)
        self.swap_reduce("v_add_f32", l, t, 32)
        A("s_mov_b64 exec, 1")
        A(f"ds_write_b32 v{t+4}, v{l} offset:{L_LS}")
        A("s_mov_b64 exec, -1")
        for k in range(32):
            A(f"v_cvt_pk_bf16_f32 v{vSP+k}, v{vSP+k}, v{vSP+k}")
        A("s_waitcnt lgkmcnt(0)")
        A("s_barrier")
        def fn():
            A(f"ds_read_b128 {vr(vBF,4)}, v{t+5} offset:{L_LS}")
            A(f"ds_read_b128 {vr(vBF+4,4)}, v{t+5} offset:{L_LS+16}")
            A(f"s_lshl_b32 {sT0}, {sBH}, 2"); A(f"s_add_u32 {sT0}, {sT0}, {sS}")
            A(f"s_lshl_b32 {sT0}, {sT0}, 3"); A(f"s_add_u32 {sT0}, {sT0}, {WS_S}")
            A("s_waitcnt lgkmcnt(0)")
            for k in range(1, 8): A(f"v_add_f32 v{vBF}, v{vBF}, v{vBF+k}")
            A(f"v_min_u32 v{t+1}, -2, v{vBF}")
            A(f"v_mov_b32 v{t}, v{m}")
            A("s_mov_b64 exec, 1")
            A(f"buffer_store_dwordx2 {vr(t,2)}, v{t+5}, {srd(R_WS)}, {sT0} offen sc1")
            A("s_mov_b64 exec, -1")
        self.only(2, fn)

    def step_pv(self, G):
        A = self.A
        base = vX if G == 0 else vK + 16 * (G - 1)
        def build(k, bset):
            for u in range(4): A(f"v_and_b32 v{vBF+4*bset+u}, v{vSP+k}, v{vM+u}")
        for r in range(4):
            k = 4 * G + r
            if k == 0: build(0, 0)
            if k + 1 < 32: build(k + 1, (k + 1) & 1)
            else: self.nop(2)
            c = "0" if k == 0 else vr(vACC, 4)
            A(f"v_mfma_f32_16x16x32_bf16 {vr(vACC,4)}, {vr(base+4*r,4)}, {vr(vBF+4*(k&1),4)}, {c}")

    WF = [vQF, vK + 16 * 7, vX, vK]
    def step_wof(self):
        A = self.A
        t = vTM
        A(f"v_lshrrev_b32 v{t}, 2, v{vI}"); A(f"v_and_b32 v{t+1}, 3, v{vI}")
        A(f"v_lshlrev_b32 v{t+1}, 3, v{t+1}")
        A(f"v_lshl_add_u32 v{t+1}, v{t}, 7, v{t+1}")
        A(f"v_lshl_add_u32 v{t+2}, v{vG}, 10, v{t+1}")
        A(f"v_add_u32 v{vOQ}, {sWOL}, v{t+2}")
        for tau in range(4):
            for T in range(4):
                for hi in range(2):
                    A(f"ds_read_b64_tr_b16 {vr(self.WF[tau]+4*T+2*hi,2)}, v{vOQ} offset:{T*4096 + hi*512 + tau*32}")
            if tau < 3: A("s_waitcnt lgkmcnt(4)")
        A(f"v_and_b32 v{t}, 7, v{vI}")
        A(f"s_mul_i32 {sT1}, {sW}, 288"); A(f"s_add_u32 {sT1}, {sT1}, {L_OB}")
        A(f"v_lshl_add_u32 v{vOK}, v{vG}, 6, {sT1}")
        A(f"v_lshl_add_u32 v{vOK}, v{t}, 3, v{vOK}")
        A(f"v_mul_u32_u24 v{vOW}, 288, v{t}")
        A(f"v_lshl_add_u32 v{vOW}, v{vG}, 4, v{vOW}")
        A(f"v_lshrrev_b32 v{t}, 2, v{vI}")
        A(f"v_lshl_add_u32 v{t}, v{vG}, 2, v{t}")
        A(f"v_lshlrev_b32 v{vOF}, 11, v{t}")
        A(f"s_lshl_b32 {sTF}, {sW}, 15")
        A(f"s_lshl_b32 {sT1}, {sB}, 18"); A(f"s_add_u32 {sTF}, {sTF}, {sT1}")
        A(f"s_lshl_b32 {sT1}, {sH}, 6"); A(f"s_add_u32 {sTF}, {sTF}, {sT1}")
        A(f"s_lshl_b32 {sT1}, {sS}, 4"); A(f"s_add_u32 {sTF}, {sTF}, {sT1}")
        A(f"v_cmp_gt_u32 s[0:1], 2, v{vG}")
        A(f"v_lshlrev_b32 v{vOD}, 4, v{vL}")
        A(f"s_lshl_b32 {sTQ}, s2, 11")
        A(f"v_and_b32 v{t}, 1, v{vG}"); A(f"v_lshrrev_b32 v{t+1}, 1, v{vG}")
        A(f"v_lshl_add_u32 v{t}, v{t}, 1, v{t+1}")
        A(f"s_lshl_b32 {sT1}, s2, 3")
        A(f"v_lshl_add_u32 v{vT1}, v{t}, 1, {sT1}")
        A("s_waitcnt lgkmcnt(0)")
        A(f"v_mov_b32 v{vOQ}, 0")
        A(f"s_lshl_b32 {sT1}, {sW}, 8")
        A(f"v_lshl_add_u32 v{vAC2}, v{vL}, 2, {sT1}")

    def st_load(self):
        A = self.A
        A(f"s_lshl_b32 {sT0}, {sBH}, 5"); A(f"s_add_u32 {sT0}, {sT0}, {WS_S}")
        A(f"v_mov_b32 v{vT0}, 0")
        for k in range(2):
            A(f"buffer_load_dwordx4 {vr(vXR+4*k,4)}, v{vT0}, {srd(R_WS)}, {sT0} offen offset:{16*k} sc1")
    def step_st0(self):
        self.only(self.svc, self.st_load)
    def step_scale(self):
        A = self.A
        t = vTM
        s = vXR
        def fn():
            ok = self.label("stok"); sp = self.label("stspin")
            A(f"v_mov_b32 v{t+3}, 0")
            A(f"ds_read_b32 v{t+2}, v{t+3} offset:{L_GS}")
            A(f"s_mov_b32 {sCNT}, 0")
            A(f"v_max3_u32 v{t}, v{s+1}, v{s+3}, v{s+5}")
            A(f"v_max_u32 v{t}, v{t}, v{s+7}")
            A(f"v_cmp_eq_u32 vcc, -1, v{t}")
            A(f"s_cbranch_vccz {ok}")
            self.L(sp)
            self.st_load()
            A(f"s_add_u32 {sCNT}, {sCNT}, 1")
            A(f"s_cmp_ge_u32 {sCNT}, {SPIN}")
            A("s_waitcnt vmcnt(0)")
            A(f"s_cbranch_scc1 {ok}")
            A(f"v_max3_u32 v{t}, v{s+1}, v{s+3}, v{s+5}")
            A(f"v_max_u32 v{t}, v{t}, v{s+7}")
            A(f"v_cmp_eq_u32 vcc, -1, v{t}")
            A(f"s_cbranch_vccnz {sp}")
            self.L(ok)
            A(f"v_max3_f32 v{t}, v{s}, v{s+2}, v{s+4}")
            A(f"v_max_f32 v{t}, v{t}, v{s+6}")
            for k in range(4): A(f"v_sub_f32 v{s+2*k}, v{s+2*k}, v{t}")
            A(f"v_sub_f32 v{t+1}, v{vAC2+2}, v{t}")
            for k in range(4): A(f"v_exp_f32 v{s+2*k}, v{s+2*k}")
            A(f"v_exp_f32 v{t+1}, v{t+1}")
            A(f"v_mul_f32 v{t}, v{s}, v{s+1}")
            for k in range(1, 4): A(f"v_fmac_f32 v{t}, v{s+2*k}, v{s+2*k+1}")
            A(f"v_rcp_f32 v{t}, v{t}")
            A("s_waitcnt lgkmcnt(0)")
            A(f"v_mul_f32 v{t+1}, v{t+2}, v{t+1}")
            A(f"v_mul_f32 v{t}, v{t}, v{t+1}")
            A(f"ds_write_b32 v{t+3}, v{t} offset:{L_FS}")
        self.only(self.svc, fn)

    def step_tail(self):
        A = self.A
        t = vTM
        A("s_mov_b32 exec_lo, 0x00ff00ff"); A("s_mov_b32 exec_hi, 0x00ff00ff")
        self.nop(6)
        A(f"v_cvt_pk_bf16_f32 v{t}, v{vACC}, v{vACC+1}")
        A(f"v_cvt_pk_bf16_f32 v{t+1}, v{vACC+2}, v{vACC+3}")
        A(f"ds_write_b64 v{vOK}, {vr(t,2)}")
        A("s_mov_b64 exec, -1")
        A("s_waitcnt lgkmcnt(0)")
        A("s_barrier")
        af = vSP
        for T in range(4): A(f"ds_read_b128 {vr(af+4*T,4)}, v{vOW} offset:{L_OB + 64*T}")
        A(f"ds_read_b32 v{t+4}, v{vOQ} offset:{L_FS}")
        A(f"ds_read_b32 v{vAC2+3}, v{vAC2} offset:{L_YF}")
        for T in range(4):
            A(f"s_waitcnt lgkmcnt({5-T})" if not self.stamps else "s_waitcnt lgkmcnt(0)")
            for tau in range(4):
                c = vr(vDF+4*tau,4) if T else "0"
                A(f"v_mfma_f32_16x16x32_bf16 {vr(vDF+4*tau,4)}, {vr(af+4*T,4)}, {vr(self.WF[tau]+4*T,4)}, {c}")
        A("s_waitcnt lgkmcnt(0)")
        self.nop(4)
        for tau in range(4):
            d = vDF + 4 * tau
            A(f"v_add_f32 v{d}, v{d}, v{d+1}"); A(f"v_add_f32 v{d+2}, v{d+2}, v{d+3}")
            A(f"v_add_f32 v{d}, v{d}, v{d+2}")
        self.nop(1)
        A(f"v_permlane16_swap_b32 v{vDF}, v{vDF+4}")
        A(f"v_permlane16_swap_b32 v{vDF+8}, v{vDF+12}")
        self.nop(1)
        A(f"v_add_f32 v{vDF}, v{vDF}, v{vDF+4}")
        A(f"v_add_f32 v{vDF+8}, v{vDF+8}, v{vDF+12}")
        A(f"v_cndmask_b32 v{t}, v{vDF+8}, v{vDF}, s[0:1]")
        A(f"v_fma_f32 v{t}, v{t}, v{t+4}, v{vAC2+3}")
        A(f"v_min_u32 v{t}, -2, v{t}")
        self.nop(2)
        for k in range(1, 4):
            A(f"v_mov_b32_dpp v{t+k}, v{t} quad_perm:[{k},{k},{k},{k}] row_mask:0xf bank_mask:0xf")
        A("s_mov_b32 exec_lo, 0x11111111"); A("s_mov_b32 exec_hi, 0x11111111")
        A(f"buffer_store_dwordx4 {vr(t,4)}, v{vOF}, {srd(R_WS)}, {sTF} offen{'' if self.two_kernel else ' sc1'}")
        A("s_mov_b64 exec, -1")

    def consumer(self, poll=True):
        A = self.A
        y = vSP
        t = vTM + 4
        sp = self.label("yspin"); ok = self.label("yok"); fast = self.label("yfast")
        fl = " " + self.yflags if poll else ""
        if not poll or self.cons == 0:
            A(f"s_mov_b32 {sCNT}, 0")
            self.L(sp)
            A(f"buffer_load_dwordx4 {vr(y,4)}, v{vOD}, {srd(R_WS)}, {sTQ} offen{fl}")
            A(f"buffer_load_dwordx4 {vr(y+4,4)}, v{vOD}, {srd(R_WS)}, {sTQ} offen offset:1024{fl}")
            if poll:
                A(f"s_add_u32 {sCNT}, {sCNT}, 1")
                A(f"s_cmp_ge_u32 {sCNT}, {SPIN}")
                A("s_waitcnt vmcnt(0)")
                A(f"s_cbranch_scc1 {ok}")
                A(f"v_max3_u32 v{t}, v{y}, v{y+1}, v{y+2}")
                A(f"v_max3_u32 v{t+1}, v{y+3}, v{y+4}, v{y+5}")
                A(f"v_max3_u32 v{t}, v{t}, v{y+6}, v{y+7}")
                A(f"v_max_u32 v{t}, v{t}, v{t+1}")
                A(f"v_cmp_eq_u32 vcc, -1, v{t}")
                A(f"s_cbranch_vccnz {sp}")
                self.L(ok)
            else:
                A("s_waitcnt vmcnt(0)")
        else:
            mA, mB = "s[52:53]", "s[54:55]"
            D = self.cons
            def masks():
                A(f"v_max3_u32 v{t}, v{y}, v{y+1}, v{y+2}")
                A(f"v_max3_u32 v{t+1}, v{y+4}, v{y+5}, v{y+6}")
                A(f"v_max_u32 v{t}, v{t}, v{y+3}")
                A(f"v_max_u32 v{t+1}, v{t+1}, v{y+7}")
                A(f"v_cmp_eq_u32 {mA}, -1, v{t}")
                A(f"v_cmp_eq_u32 {mB}, -1, v{t+1}")
            def loads():
                la = self.label("ya"); lb = self.label("yb")
                A(f"s_mov_b64 exec, {mA}")
                A(f"s_cbranch_execz {la}")
                A(f"buffer_load_dwordx4 {vr(y,4)}, v{vOD}, {srd(R_WS)}, {sTQ} offen{fl}")
                self.L(la)
                A(f"s_mov_b64 exec, {mB}")
                A(f"s_cbranch_execz {lb}")
                A(f"buffer_load_dwordx4 {vr(y+4,4)}, v{vOD}, {srd(R_WS)}, {sTQ} offen offset:1024{fl}")
                self.L(lb)
                A("s_mov_b64 exec, -1")
            A(f"s_mov_b64 {mA}, -1"); A(f"s_mov_b64 {mB}, -1")
            A(f"s_mov_b32 {sCNT}, 0")
            self.L(sp)
            loads()
            A(f"s_add_u32 {sCNT}, {sCNT}, 1")
            A("s_waitcnt vmcnt(0)")
            masks()
            A(f"s_cmp_ge_u32 {sCNT}, {SPIN}"); A(f"s_cbranch_scc1 {ok}")
            A(f"s_bcnt1_i32_b64 {sT0}, {mA}"); A(f"s_bcnt1_i32_b64 {sT1}, {mB}")
            A(f"s_add_u32 {sT0}, {sT0}, {sT1}")
            A(f"s_cmp_gt_u32 {sT0}, {self.cthr}"); A(f"s_cbranch_scc1 {sp}")
            self.L(fast)
            A(f"s_or_b64 vcc, {mA}, {mB}")
            A(f"s_cbranch_vccz {ok}")
            loads()
            A(f"s_add_u32 {sCNT}, {sCNT}, 1")
            A(f"s_waitcnt vmcnt({D})")
            masks()
            A(f"s_cmp_lt_u32 {sCNT}, {SPIN}"); A(f"s_cbranch_scc1 {fast}")
            self.L(ok)
        for k in range(4): A(f"v_add_f32 v{y+8+k}, v{y+k}, v{y+4+k}")
        y = y + 8
        self.nop(1)
        A(f"v_permlane32_swap_b32 v{y}, v{y+1}"); A(f"v_permlane32_swap_b32 v{y+2}, v{y+3}")
        self.nop(1)
        A(f"v_add_f32 v{y}, v{y}, v{y+1}"); A(f"v_add_f32 v{y+2}, v{y+2}, v{y+3}")
        self.nop(2)
        A(f"v_permlane16_swap_b32 v{y}, v{y+2}")
        self.nop(1)
        A(f"v_add_f32 v{y}, v{y}, v{y+2}")
        for ctl in ("quad_perm:[1,0,3,2]", "quad_perm:[2,3,0,1]", "row_half_mirror", "row_mirror"):
            self.dpp_add(y, ctl)
        A(f"v_cvt_pk_bf16_f32 v{y}, v{y}, v{y}")
        A("s_mov_b32 exec_lo, 0x00010001"); A("s_mov_b32 exec_hi, 0x00010001")
        A(f"global_store_short v{vT1}, v{y}, s[{P_OUT}:{P_OUT+1}]")

    def steps(self, idx):
        S = []
        def add(name, needs, fn): S.append(dict(name=name, needs=needs, fn=fn))
        add("gate0", [], self.step_gate0)
        add("gate", ["@gate0"], self.step_gate)
        if self.curve:
            for G in range(1, 5):
                if f"w{G}" in self.curve: add(f"w{G}", [f"K{G}_3"], lambda: None)
        add("join", [self.q_at], lambda: None)
        add("qred", [], self.step_qred)
        for G in range(8): add(f"qk{G}", [f"K{G}_3"], lambda G=G: self.step_qk(G))
        add("fl", [], self.step_fl)
        add("softmax", ["wd1"], self.step_softmax)
        lastdma = idx["wo15"]
        placed = False
        for G in range(8):
            if G == 7: add("scale", ["@st0"], self.step_scale)
            if not placed and G >= 2 and idx[f"V{G}_3"] > lastdma:
                add("wof", ["wo15"], self.step_wof); placed = True
            add(f"pv{G}", [f"V{G}_3"], lambda G=G: self.step_pv(G))
            if f"pv{G}" == self.fga_pos: add("fga", ["@fl"], self.step_fga)
            if f"pv{G}" == self.st_pos: add("st0", [], self.step_st0)
            if f"pv{G}" == self.ffn_pos: add("ffn2", ["@fga"], self.step_ffn2)
        assert placed
        add("tail", [], self.step_tail)
        return S

    def schedule(self, W, W2):
        self.st_pos = self.st_after; self.st_after = "st0"
        items = self.items()
        self.st_after = self.st_pos
        idx = {it["name"]: n for n, it in enumerate(items)}
        steps = self.steps(idx)
        issued = 4 + self.npre
        assert all(it['name'][0] == 'K' for it in items[:issued])
        comp = -1; done = set(); pos = -1; after = {}
        lother = self.label("other"); ljoin = self.label("join")
        self.A(f"s_cmp_lg_u32 {sW}, {self.hs if not self.x_nohs else 9}"); self.A(f"s_cbranch_scc1 {lother}")
        mark = len(self.o)
        self.L(lother)
        for st in steps:
            need = max([after[n[1:]] if n[0] == "@" else idx[n] for n in st["needs"]], default=-1)
            pos = max(pos, need)
            def issue(w, la):
                nonlocal issued, comp
                while issued < len(items):
                    it = items[issued]
                    if issued > pos + la - 1: break
                    if it["dep"] and it["dep"] not in done:
                        assert issued > need, (st["name"], it["name"])
                        break
                    if issued - (comp + 1) >= w:
                        self.A(f"s_waitcnt vmcnt({w-1})"); comp = issued - w
                    it["fn"](); issued += 1
            if st['name'] != 'qred': issue(W, W)
            if comp < need:
                self.A(f"s_waitcnt vmcnt({issued-1-need})"); comp = need
            if st["name"] == "join":
                issue(W + self.boost, W + self.boost)
                rest = self.o[mark:]; del self.o[mark:]
                self.bcast()
                n1 = self.hs_pre; n2 = min(issued, n1 + self.hs_mid)
                def pre():
                    for n in range(n1): items[n]["fn"]()
                def mid():
                    for n in range(n1, n2): items[n]["fn"]()
                    return n2 - n1
                self.q_gather(pre, mid)
                if self.curve: self.A(f"s_memrealtime s[{self.cpairs[4]}:{self.cpairs[4]+1}]")
                self.q_reduce()
                for n in range(n2, issued): items[n]["fn"]()
                self.A(f"s_branch {ljoin}")
                self.o += rest
                self.L(ljoin)
                comp = -1; W = W2
            if st["name"] in self.boosts: issue(W + self.boosts[st["name"]], W + self.boosts[st["name"]])
            self.o.append(f"    ; ---- {st['name']}")
            if not any(st["name"].startswith(p) for p in self.x_skip): st["fn"]()
            done.add(st["name"])
            after[st["name"]] = issued
            if st["name"] in self.stamp_after: self.stamp(self.stamp_after[st["name"]])
            if self.curve and st["name"] in self.curve:
                p = self.cpairs[1 + self.curve.index(st["name"])]; self.A(f"s_memrealtime s[{p}:{p+1}]")
        assert issued == len(items)

    def kd(self, name, vg, sg):
        return [f".amdhsa_kernel {name}", f"  .amdhsa_next_free_vgpr {vg}", f"  .amdhsa_next_free_sgpr {sg}",
                f"  .amdhsa_accum_offset {vg}", "  .amdhsa_group_segment_fixed_size 0", "  .amdhsa_kernarg_size 104",
                "  .amdhsa_user_sgpr_count 2", "  .amdhsa_user_sgpr_kernarg_segment_ptr 1",
                "  .amdhsa_system_sgpr_workgroup_id_x 1", ".end_amdhsa_kernel"]

    def build(self):
        A = self.A
        K1 = NAME + "_kernel"; K2 = "gated_mix_reduce_kernel"
        o = self.o
        o.append(HEADER.rstrip("\n"))
        if self.two_kernel:
            o.append(f"; @launch kernel={K1} grid=(256,1,1) block=(512,1,1) lds={LDS_BYTES}")
            o.append(f"; @launch kernel={K2} grid=(256,1,1) block=(64,1,1) lds=0")
        else:
            o.append(f"; @launch grid=(256,1,1) block=(512,1,1) lds={LDS_BYTES}")
        o += ['.amdgcn_target "amdgcn-amd-amdhsa--gfx950"', ".text", f".globl {K1}", ".p2align 8",
              f".type {K1},@function", f"{K1}:"]
        self.phase0()
        if self.W_even is not None:
            A(f"s_and_b32 {sT0}, {sXCC}, 1"); A("s_cbranch_scc1 L_odd")
            self.schedule(self.W_even, self.W2_even)
            A("s_branch L_join")
            self.L("L_odd")
            self.schedule(self.W, self.W2)
            self.L("L_join")
        else:
            self.schedule(self.W, self.W2)
        if self.curve:
            A("s_waitcnt lgkmcnt(0)")
            A(f"s_add_u32 s0, s40, {STAMP_OFF + 65536}"); A("s_addc_u32 s1, s41, 0")
            A(f"s_lshl_b32 s8, s2, 3"); A(f"s_add_u32 s8, s8, {sW}"); A("s_lshl_b32 s8, s8, 6")
            A("v_mov_b32 v112, s8")
            for k in range(16): A(f"v_mov_b32 v{116+k}, s{self.cpairs[k] if k < 15 else 90}")
            A("s_mov_b64 exec, 1")
            for k in range(4): A(f"global_store_dwordx4 v112, v[{116+4*k}:{119+4*k}], s[0:1] offset:{16*k}")
            A("s_mov_b64 exec, -1")
        A(f"s_cmp_lg_u32 {sW}, 0"); A("s_cbranch_scc1 L_end")
        if not self.two_kernel:
            self.consumer()
        if self.fixdur:
            self.L("L_fix")
            A("s_memrealtime s[94:95]")
            A("s_waitcnt lgkmcnt(0)")
            A("s_sub_u32 s94, s94, s92")
            A(f"s_cmp_lt_u32 s94, {self.fixdur}")
            A("s_cbranch_scc1 L_fix")
        elif self.stamps and not self.curve:
            self.stamp(4)
            A("s_mov_b64 exec, 1")
            A("s_waitcnt lgkmcnt(0)")
            A(f"s_add_u32 s40, s40, {STAMP_OFF}"); A("s_addc_u32 s41, s41, 0")
            A("s_lshl_b32 s8, s2, 6"); A("v_mov_b32 v1, s8")
            for k in range(4):
                A(f"v_mov_b32 v{8+2*k}, s{sST+2*k}"); A(f"v_mov_b32 v{9+2*k}, s{sST+2*k+1}")
            A(f"v_mov_b32 v16, {sXCC}"); A("v_mov_b32 v17, 0")
            A(f"v_mov_b32 v18, s{sST+8}"); A(f"v_mov_b32 v19, s{sST+9}")
            A("global_store_dwordx4 v1, v[8:11], s[40:41]")
            A("global_store_dwordx4 v1, v[12:15], s[40:41] offset:16")
            A("global_store_dwordx4 v1, v[16:19], s[40:41] offset:32")
        self.L("L_end"); A("s_endpgm")
        if self.cpf: o.append(f".fill (16384 - (. - {K1})) / 4, 4, 0xbf810000")
        if self.two_kernel:
            o += [f".globl {K2}", ".p2align 8", f".type {K2},@function", f"{K2}:"]
            A("s_cmp_ge_u32 s2, 256"); A("s_cbranch_scc1 L_end2")
            A(f"s_load_dwordx2 s[{P_OUT}:{P_OUT+1}], s[0:1], 80")
            A(f"s_load_dwordx2 s[{P_WS}:{P_WS+1}], s[0:1], 96")
            t = vTM
            A(f"v_bfe_u32 v{vG}, v0, 4, 2")
            A(f"v_lshlrev_b32 v{vOD}, 4, v0")
            A(f"s_lshl_b32 {sTQ}, s2, 11")
            A(f"v_and_b32 v{t}, 1, v{vG}"); A(f"v_lshrrev_b32 v{t+1}, 1, v{vG}")
            A(f"v_lshl_add_u32 v{t}, v{t}, 1, v{t+1}")
            A(f"s_lshl_b32 {sT1}, s2, 3")
            A(f"v_lshl_add_u32 v{vT1}, v{t}, 1, {sT1}")
            A("s_waitcnt lgkmcnt(0)")
            self.mk(R_WS, P_WS, None, WS_BYTES)
            self.consumer(poll=False)
            self.L("L_end2"); A("s_endpgm")
        o += ['.section .rodata,"a"', ".p2align 6"] + self.kd(K1, 256, 102)
        if self.two_kernel:
            o += [".p2align 6"] + self.kd(K2, 112, 102)
        return "\n".join(o) + "\n"

if __name__ == "__main__":
    import argparse, json
    ap = argparse.ArgumentParser()
    ap.add_argument("out"); ap.add_argument("--opt", default="{}")
    a = ap.parse_args()
    open(a.out, "w").write(Gen(**json.loads(a.opt)).build())
```

```python
import sys, struct, math

NAME = "gated_mix__mha_block_cached__geglu_ffn__decode"
HEADER = open("cdna_kernels/" + NAME + ".s.ref").read().split("; Override launch")[0]

def f32(x):
    return "0x%08x" % struct.unpack("<I", struct.pack("<f", x))[0]

L_QS = 0
L_HS = 256
L_GS = 320
L_FS = 336
L_MX = 384
L_LS = 448
L_OB = 512
L_YF = 3072
L_WD = 5120
L_WO = L_WD + 16384
L_END = L_WO + 131072
LDS_BYTES = (L_END + 255) // 256 * 256

WS_Y = 0
WS_S = 0x80000
WS_Q = 0x89000
WS_F = WS_Q + 0x40000
WS_M = WS_F + 176 * 1024
WS_BYTES = WS_M
WS_MB = 0x81000
STAMP_OFF = 128 << 20
SPIN = "0x4000"

sW = "s3"
P_X, P_K, P_V, P_WQ, P_WO, P_WG, P_WU = 16, 18, 20, 22, 24, 28, 30
P_WD, P_GW, P_OUT, P_DBG, P_WS = 32, 34, 36, 38, 40
R_K, R_V, R_WQ, R_WO, R_X, R_GW, R_FT, R_WD, R_WS = 44, 48, 52, 56, 60, 64, 68, 76, 80
sH, sB, sS, sSL, sT0, sT1, sT2 = "s4", "s5", "s6", "s7", "s8", "s9", "s10"
sTK, sTV, sTQ, sTF, sTD = "s11", "s12", "s13", "s14", "s15"
sJ, sFT = "s72", "s73"
sDONE = sJ
sWOL, sWDL = "s84", "s85"
sDUP0, sDUP1 = "s86", "s87"
sC = "s88"; sCNT = "s89"; sXCC = "s90"; sBH = "s91"
sX0, sX1 = "s42", "s43"
sROT = "s74"
sTI = "s75"
sST = 92
def srd(r): return f"s[{r}:{r+3}]"

vL, vI, vG = 1, 2, 3
vOK, vOV, vOQ, vOW, vOF, vOD, vT0, vT1 = 4, 5, 6, 7, 8, 9, 10, 11
vM = 12
vXR = 16
vBF = 24
vACC = 32
vAC2 = 36
vQF = 40
vSP = 56
vDF = 88
vTM = 104
vFL = 111
vK = 112
vX = 240
vFG = vDF + 8
vFD = vK + 16
def vr(a, n): return f"v[{a}:{a+n-1}]"

class Gen:
    def __init__(self, W=5, W2=16, W_even=None, W2_even=None, two_kernel=False, stamps=False,
                 wo_sched=None, st_after="pv3", q_at="K6_3", boost=4, fga_pos="pv1", ffn_pos="pv5", sleep=32, curve=None, k0_late=True,
                 stamp_after=None, fixdur=0, svc=3, gsvc=2, hs=0, pub=1, probe=None, xmap=None, nx=6, cpf=0, x_skip=(), x_nohs=False, k0mode=0, x_noclear=False, x_noy=False, ylate=False, x_nowo=False, x_noffn=False, x_nowq=False, rot=None, lay=0, cons=0, cthr=24, yflags="sc1", hs_pre=12, hs_mid=10, npre=4, boosts=None):
        self.o = []
        self.__dict__.update(locals())
        self.wo_sched = wo_sched or [0, 0, 2, 2, 1, 2, 1, 2, 1, 2, 1, 2, 2, 0, 0, 0]
        assert sum(self.wo_sched) == 18
        self.cpairs = [92, 94, 96, 98, 100, 16, 18, 20, 22, 24, 26, 28, 30, 32, 34]
        if curve: self.stamps = True
        self.stamp_after = stamp_after if stamp_after is not None else ({} if curve else {"qred": 1, "pv7": 2, "tail": 3})
        self.lab = 0
        if probe: self.stamps = True; self.fixdur = probe['fix']; self.stamp_after = {probe['step']: 3}
        self.shS, self.shW, self.shG = {0: (18, 15, 12), 1: (18, 12, 15), 2: (15, 12, 17), 3: (12, 14, 17), 4: (15, 17, 12)}[lay]
        if lay and not rot: self.rot = [['w', 0]]
        self.boosts = boosts if boosts is not None else {'softmax': 4, 'wof': 4}
    def A(self, s): self.o.append("    " + s)
    def L(self, s): self.o.append(s + ":")
    def nop(self, n):
        while n > 0:
            k = min(n, 16); self.A(f"s_nop {k-1}"); n -= k
    def label(self, p):
        self.lab += 1; return f"L_{p}_{self.lab}"
    def stamp(self, k):
        if self.stamps: self.A(f"s_memrealtime s[{sST+2*k}:{sST+2*k+1}]")
    def only(self, w, fn):
        sk = self.label("skip")
        self.A(f"s_cmp_lg_u32 {sW}, {w}"); self.A(f"s_cbranch_scc1 {sk}")
        fn()
        self.L(sk)

    def swap_reduce(self, op, v, tmp, which):
        A = self.A
        A(f"v_mov_b32 v{tmp}, v{v}")
        self.nop(2)
        A(f"v_permlane{which}_swap_b32 v{v}, v{tmp}")
        self.nop(1)
        A(f"{op} v{v}, v{v}, v{tmp}")
    def dpp_add(self, v, ctl):
        self.nop(2)
        self.A(f"v_add_f32_dpp v{v}, v{v}, v{v} {ctl} row_mask:0xf bank_mask:0xf")
    def mk(self, r, p, off, size):
        A = self.A
        if off is None:
            A(f"s_mov_b32 s{r}, s{p}"); A(f"s_mov_b32 s{r+1}, s{p+1}")
        else:
            A(f"s_add_u32 s{r}, s{p}, {off}"); A(f"s_addc_u32 s{r+1}, s{p+1}, 0")
        if size is not None: A(f"s_mov_b32 s{r+2}, {size}")
        A(f"s_mov_b32 s{r+3}, 0x20000")

    def kv_load(self, kind, G, t):
        A = self.A
        st = sTK if kind == "K" else sTV
        if self.rot:
            if t == 0: A(f"s_xor_b32 {st}, {sROT}, {G << self.shG}")
            so = st
        else:
            if t == 0 and G > 0: A(f"s_movk_i32 {st}, {G*4096}")
            so = st if G > 0 else "0"
        if kind == "K":
            A(f"buffer_load_dwordx4 {vr(vK+16*G+4*t,4)}, v{vOK}, {srd(R_K)}, {so} offen offset:{(t>>1)*2048 + (t&1)*128} nt")
        else:
            dst = vX if G == 0 else vK + 16 * (G - 1)
            A(f"buffer_load_dwordx4 {vr(dst+4*t,4)}, v{vOV}, {srd(R_V)}, {so} offen offset:{256*t} nt")

    def bsel(self, src, half, bset):
        A = self.A
        t = vTM + 4 + bset
        A(f"v_perm_b32 v{t}, v{src}, v{src}, {sDUP1 if half else sDUP0}")
        for u in range(4): A(f"v_and_b32 v{vBF+4*bset+u}, v{t}, v{vM+u}")

    def phase0(self):
        A = self.A
        A("s_cmp_ge_u32 s2, 256")
        A("s_cbranch_scc1 L_end")
        A("s_load_dwordx16 s[16:31], s[0:1], 0")
        A("s_load_dwordx8 s[32:39], s[0:1], 64")
        A("s_load_dwordx2 s[40:41], s[0:1], 96")
        self.stamp(0)
        if self.fixdur and not self.probe: A("s_memrealtime s[92:93]")
        A("v_lshrrev_b32 v10, 6, v0")
        A(f"v_and_b32 v{vI}, 15, v0")
        A(f"v_readfirstlane_b32 {sW}, v10")
        A(f"v_bfe_u32 v{vG}, v0, 4, 2")
        A(f"s_and_b32 {sT0}, s2, 7")
        A(f"s_lshr_b32 {sT1}, s2, 3")
        A(f"s_and_b32 {sT2}, {sT1}, 3")
        A(f"s_lshl_b32 {sH}, {sT0}, 2")
        A(f"s_add_u32 {sH}, {sH}, {sT2}")
        A(f"s_lshr_b32 {sJ}, {sT1}, 2")
        A(f"s_and_b32 {sFT}, s2, 31")
        if self.xmap:
            A(f"s_lshl_b32 {sCNT}, {sT0}, 2"); A(f"s_lshr_b32 {sCNT}, {self.xmap}, {sCNT}"); A(f"s_and_b32 {sCNT}, {sCNT}, 15")
            A(f"s_mul_i32 {sTI}, {sT2}, {self.nx}"); A(f"s_add_u32 {sTI}, {sTI}, {sCNT}")
            A(f"s_cmp_eq_u32 {sCNT}, 15"); A(f"s_cselect_b32 {sTI}, 31, {sTI}")
        else:
            A(f"s_mov_b32 {sTI}, {sFT}")
        A(f"s_lshl_b32 {sTK}, {sJ}, 3"); A(f"s_add_u32 {sTK}, {sTK}, {sW}")
        A(f"s_lshl_b32 {sTV}, {sTK}, 4")
        A(f"s_lshl_b32 {sX0}, {sTK}, 16"); A(f"s_lshl_b32 {sTQ}, {sH}, 8"); A(f"s_add_u32 {sX0}, {sX0}, {sTQ}")
        A(f"s_cmp_ge_u32 {sTI}, 11")
        A(f"s_cselect_b32 {sX1}, 11, 0")
        A(f"s_sub_u32 {sX1}, {sTI}, {sX1}")
        A(f"s_lshl_b32 {sX1}, {sX1}, 8")
        A(f"s_mul_i32 {sTK}, {sTK}, {8*2752}")
        A(f"s_add_u32 {sX1}, {sX1}, {sTK}")
        A(f"s_sub_u32 s{R_FT+2}, {512*2752}, {sX1}")
        A(f"s_cmp_lt_u32 {sTI}, {0 if self.x_noffn else 22}")
        A(f"s_cselect_b32 s{R_FT+2}, s{R_FT+2}, 0")
        A(f"s_cselect_b32 {sX1}, {sX1}, 0")
        A(f"s_mov_b32 s{R_FT+3}, 0x20000")
        A(f"s_mov_b32 s{R_X+2}, 2048"); A(f"s_mov_b32 s{R_X+3}, 0x20000")
        A(f"s_mov_b32 s{R_WQ+2}, {0 if self.x_nowq else 7*8192+256}"); A(f"s_mov_b32 s{R_WQ+3}, 0x20000")
        A(f"s_movk_i32 {sTQ}, 8192")
        A(f"v_lshrrev_b32 v{vT0}, 3, v{vI}")
        A(f"v_lshlrev_b32 v{vT0}, 10, v{vT0}")
        A(f"v_lshl_add_u32 v{vT0}, v{vG}, 2, v{vT0}")
        A(f"v_lshlrev_b32 v{vT1}, 4, v{vI}")
        A(f"v_lshl_add_u32 v{vOQ}, v{vG}, 14, v{vT1}")
        A(f"v_mul_u32_u24 v{vOF}, {2*2752}, v{vG}")
        A(f"v_add_u32 v{vOF}, v{vOF}, v{vT1}")
        A(f"s_cmp_ge_u32 {sTI}, 11")
        A("s_waitcnt lgkmcnt(0)")
        A(f"s_cselect_b32 s{R_FT}, s{P_WU}, s{P_WG}"); A(f"s_cselect_b32 s{R_FT+1}, s{P_WU+1}, s{P_WG+1}")
        A(f"s_add_u32 s{R_WQ}, s{P_WQ}, {sX0}"); A(f"s_addc_u32 s{R_WQ+1}, s{P_WQ+1}, 0")
        A(f"buffer_load_dwordx4 {vr(vDF,4)}, v{vOQ}, {srd(R_WQ)}, 0 offen nt")
        A(f"buffer_load_dwordx4 {vr(vDF+4,4)}, v{vOQ}, {srd(R_WQ)}, {sTQ} offen nt")
        A(f"s_add_u32 s{R_FT}, s{R_FT}, {sX1}"); A(f"s_addc_u32 s{R_FT+1}, s{R_FT+1}, 0")
        A(f"buffer_load_dwordx4 {vr(vDF+8,4)}, v{vOF}, {srd(R_FT)}, 0 offen nt")
        A(f"buffer_load_dwordx4 {vr(vDF+12,4)}, v{vOF}, {srd(R_FT)}, 0 offen offset:2752 nt")
        A(f"s_mov_b32 s{R_X}, s{P_X}"); A(f"s_mov_b32 s{R_X+1}, s{P_X+1}")
        A(f"buffer_load_dword v{vXR}, v{vT0}, {srd(R_X)}, {sTV} offen")
        def clear():
            self.mk(R_WS, P_WS, None, WS_BYTES)
            c = vQF
            for k in range(4): A(f"v_mov_b32 v{c+k}, -1")
            A(f"v_and_b32 v{c+4}, 63, v0"); A(f"v_lshlrev_b32 v{c+4}, 4, v{c+4}")
            A(f"s_lshl_b32 {sTD}, {sH}, 3"); A(f"s_add_u32 {sTD}, {sTD}, {sJ}"); A(f"s_lshl_b32 {sTD}, {sTD}, 10")
            A(f"s_add_u32 {sTD}, {sTD}, {WS_Q}")
            (not self.x_noclear) and A(f"buffer_store_dwordx4 {vr(c,4)}, v{c+4}, {srd(R_WS)}, {sTD} offen sc1")
            A(f"s_lshl_b32 {sTD}, {sTI}, 3"); A(f"s_add_u32 {sTD}, {sTD}, {sJ}"); A(f"s_lshl_b32 {sTD}, {sTD}, 10")
            A(f"s_add_u32 {sTD}, {sTD}, {WS_F}")
            (not self.x_noclear) and A(f"buffer_store_dwordx4 {vr(c,4)}, v{c+4}, {srd(R_WS)}, {sTD} offen sc1")
            if not self.two_kernel and not self.x_noy:
                A(f"s_lshl_b32 {sTD}, s2, 11")
                (not self.x_noclear) and A(f"buffer_store_dwordx4 {vr(c,4)}, v{c+4}, {srd(R_WS)}, {sTD} offen sc1")
                (not self.x_noclear) and A(f"buffer_store_dwordx4 {vr(c,4)}, v{c+4}, {srd(R_WS)}, {sTD} offen offset:1024 sc1")
            A(f"s_lshr_b32 {sTD}, {sJ}, 2"); A(f"s_lshl_b32 {sTD}, {sTD}, 5"); A(f"s_add_u32 {sTD}, {sTD}, {sH}")
            A(f"s_lshl_b32 {sTD}, {sTD}, 2"); A(f"s_and_b32 {sTF}, {sJ}, 3"); A(f"s_add_u32 {sTD}, {sTD}, {sTF}")
            A(f"s_lshl_b32 {sTD}, {sTD}, 3"); A(f"s_add_u32 {sTD}, {sTD}, {WS_S}")
            A("s_mov_b64 exec, 1")
            A(f"buffer_store_dwordx2 {vr(c,2)}, v{c+4}, {srd(R_WS)}, {sTD} offen sc1")
            A(f"s_lshl_b32 {sTD}, s2, 7"); A(f"s_add_u32 {sTD}, {sTD}, {WS_MB}")
            A(f"buffer_store_dword v{c}, v{c+4}, {srd(R_WS)}, {sTD} offen sc1")
            A("s_mov_b64 exec, -1")
        self.only(self.hs, clear)
        if self.cpf:
            def pf():
                A("s_getpc_b64 s[26:27]")
                self.L("L_pc")
                A(f"s_sub_u32 s26, s26, L_pc-{NAME}_kernel"); A("s_subb_u32 s27, s27, 0")
                if self.cpf == 1:
                    A(f"s_lshl_b32 {sTD}, {sT1}, 9")
                    A(f"v_and_b32 v{vQF+8}, 63, v0"); A(f"v_lshl_add_u32 v{vQF+8}, v{vQF+8}, 3, {sTD}")
                    A(f"global_load_dwordx2 v[{vQF+10}:{vQF+11}], v{vQF+8}, s[26:27]")
                else:
                    A(f"v_and_b32 v{vQF+8}, 63, v0"); A(f"v_lshlrev_b32 v{vQF+8}, 7, v{vQF+8}")
                    A(f"global_load_dword v{vQF+10}, v{vQF+8}, s[26:27]")
                    A(f"v_add_u32 v{vQF+8}, 8192, v{vQF+8}")
                    A(f"global_load_dword v{vQF+10}, v{vQF+8}, s[26:27]")
            self.only(7, pf)
        A(f"v_and_b32 v{vL}, 63, v0")
        A(f"s_lshr_b32 {sB}, {sJ}, 2")
        A(f"s_and_b32 {sS}, {sJ}, 3")
        A(f"s_lshl_b32 {sBH}, {sB}, 5"); A(f"s_add_u32 {sBH}, {sBH}, {sH}")
        A(f"v_and_b32 v{vOK}, 7, v0")
        A(f"v_lshlrev_b32 v{vOK}, 8, v{vOK}")
        A(f"v_lshl_add_u32 v{vOK}, v{vG}, 4, v{vOK}")
        A(f"v_and_b32 v{vOV}, 8, v0")
        A(f"v_lshl_add_u32 v{vOK}, v{vOV}, 3, v{vOK}")
        A(f"v_lshl_add_u32 v{vOV}, v{vG}, 10, v{vT1}")
        A(f"s_lshl_b32 {sTK}, {sBH}, 20")
        A(f"s_lshl_b32 {sTV}, {sS}, {self.shS}"); A(f"s_add_u32 {sTK}, {sTK}, {sTV}")
        A(f"s_lshl_b32 {sTV}, {sW}, {self.shW}"); A(f"s_add_u32 {sTK}, {sTK}, {sTV}")
        self.mk(R_K, P_K, sTK, (7 << self.shG) + 4096)
        if self.rot:
            regs = {"w": sW, "j": sJ, "h": sH, "x": sT0, "q": sT2, "b": sB, "s": sS}
            A(f"s_mov_b32 {sROT}, 0")
            for nm, mul in self.rot:
                A(f"s_mul_i32 {sTV}, {regs[nm]}, {mul}"); A(f"s_add_u32 {sROT}, {sROT}, {sTV}")
            A(f"s_and_b32 {sROT}, {sROT}, 7"); A(f"s_lshl_b32 {sROT}, {sROT}, {self.shG}")
        if self.k0mode == 1:
            lk = self.label("k0e")
            A(f"s_mov_b32 {sX1}, {sTK}")
            A(f"s_cmp_eq_u32 {sW}, {self.hs}"); A(f"s_cbranch_scc1 {lk}")
            for n in range(4 + self.npre): self.kv_load("K", n // 4, n % 4)
            self.L(lk)
            A(f"s_mov_b32 {sTK}, {sX1}")
        self.mk(R_V, P_V, sTK, (7 << self.shG) + 4096)
        self.mk(R_WS, P_WS, None, WS_BYTES)
        self.mk(R_GW, P_GW, None, 1024)
        A(f"s_and_b32 {sT1}, {sT1}, 15")
        per = -(-86 // self.nx) if self.xmap else 11
        A(f"s_mul_i32 {sSL}, {sCNT if self.xmap else sT0}, {per}")
        A(f"s_add_u32 {sSL}, {sSL}, {sT1}")
        A(f"s_cmp_lt_u32 {sT1}, {per}")
        A(f"s_cselect_b32 {sSL}, {sSL}, 1000")
        A(f"s_cmp_lt_u32 {sSL}, 86")
        A(f"s_cselect_b32 s{R_WD+2}, {0 if self.x_noffn else 15*1024+128}, 0")
        A(f"s_cselect_b32 {sSL}, {sSL}, 0")
        A(f"s_lshl_b32 {sT0}, {sSL}, 14"); A(f"s_lshl_b32 {sT1}, {sW}, 7"); A(f"s_add_u32 {sT0}, {sT0}, {sT1}")
        self.mk(R_WD, P_WD, sT0, None)
        A(f"s_lshl_b32 {sT0}, {sH}, 17"); A(f"s_add_u32 {sT0}, {sT0}, {sT1}")
        self.mk(R_WO, P_WO, sT0, 0 if self.x_nowo else 127 * 1024 + 128)
        A(f"v_lshlrev_b32 v{vT1}, 4, v{vL}")
        t = vTM + 4
        A(f"v_and_b32 v{t}, 7, v{vL}")
        A(f"v_lshlrev_b32 v{t}, 4, v{t}")
        A(f"v_lshrrev_b32 v{t+1}, 3, v{vL}")
        A(f"v_lshl_add_u32 v{vOD}, v{t+1}, 10, v{t}")
        A(f"v_and_b32 v{t+2}, 3, v{t+1}")
        A(f"v_lshlrev_b32 v{t+2}, 3, v{t+2}")
        A(f"v_lshrrev_b32 v{t+1}, 2, v{t+1}")
        A(f"v_add_u32 v{t+1}, v{t+1}, v{t+2}")
        A(f"v_lshl_add_u32 v{vOW}, v{t+1}, 10, v{t}")
        A(f"s_lshl_b32 {sWOL}, {sW}, 14"); A(f"s_add_u32 {sWOL}, {sWOL}, {L_WO}")
        A(f"s_lshl_b32 {sWDL}, {sW}, 11"); A(f"s_add_u32 {sWDL}, {sWDL}, {L_WD}")
        A(f"v_and_b32 v{t}, 1, v{vI}")
        A(f"v_lshlrev_b32 v{t}, 4, v{t}")
        A(f"v_mov_b32 v{t+1}, 0xffff")
        A(f"v_lshlrev_b32 v{t+1}, v{t}, v{t+1}")
        A(f"v_bfe_u32 v{t}, v{vI}, 1, 2")
        for u in range(4):
            A(f"v_cmp_eq_u32 vcc, {u}, v{t}")
            self.nop(2)
            A(f"v_cndmask_b32 v{vM+u}, 0, v{t+1}, vcc")
        A(f"s_mov_b32 {sDUP0}, 0x01000100"); A(f"s_mov_b32 {sDUP1}, 0x03020302")
        A(f"s_mov_b32 {sC}, {f32(math.log2(math.e) / math.sqrt(128.0))}")
        A(f"s_getreg_b32 {sXCC}, hwreg(HW_REG_XCC_ID)")
        A(f"s_add_u32 {sT0}, {sWOL}, {14*1024}")
        A(f"v_lshl_add_u32 v{vT0}, v{vL}, 4, {sT0}")
        lo = self.label("p0o"); lj = self.label("p0j")
        A(f"s_cmp_lg_u32 {sW}, {self.hs if not self.x_nohs else 9}"); A(f"s_cbranch_scc1 {lo}")
        A(f"s_lshl_b32 {sTF}, {sFT}, 3")
        A(f"v_mov_b32 v{vQF+5}, {sTF}"); A(f"v_mov_b32 v{vQF+6}, 1")
        A("s_waitcnt vmcnt(0)")
        A("s_mov_b64 exec, 1")
        A(f"global_atomic_add v{vFL}, v{vQF+5}, v{vQF+6}, s[{P_DBG}:{P_DBG+1}] sc0")
        A("s_mov_b64 exec, -1")
        A(f"s_branch {lj}")
        self.L(lo)
        if self.k0mode == 1:
            if (4 + self.npre) % 4: A(f"s_xor_b32 {sTK}, {sROT}, {((4 + self.npre) // 4) << self.shG}")
            A(f"s_waitcnt vmcnt({4 + self.npre})")
        else:
            for t in range(4):
                A(f"s_waitcnt vmcnt({[3,2,2,3][t]})")
                self.kv_load("K", 0, t)
            for n in range(self.npre): self.kv_load("K", 1 + n // 4, n % 4)
        self.L(lj)
        if self.curve and "p0" in self.curve:
            p = self.cpairs[1 + self.curve.index("p0")]; A(f"s_memrealtime s[{p}:{p+1}]")
        self.bsel(vXR, 0, 0); self.bsel(vXR, 1, 1)
        self.nop(1)
        A(f"v_mfma_f32_16x16x32_bf16 {vr(vACC,4)}, {vr(vDF,4)}, {vr(vBF,4)}, 0")
        A(f"v_mfma_f32_16x16x32_bf16 {vr(vAC2,4)}, {vr(vDF+8,4)}, {vr(vBF,4)}, 0")
        A(f"v_mfma_f32_16x16x32_bf16 {vr(vACC,4)}, {vr(vDF+4,4)}, {vr(vBF+4,4)}, {vr(vACC,4)}")
        A(f"v_mfma_f32_16x16x32_bf16 {vr(vAC2,4)}, {vr(vDF+12,4)}, {vr(vBF+4,4)}, {vr(vAC2,4)}")
        self.nop(8)
        A(f"ds_write_b128 v{vT0}, {vr(vACC,4)}")
        A(f"ds_write_b128 v{vT0}, {vr(vAC2,4)} offset:1024")
        A("s_waitcnt lgkmcnt(0)")
        A("s_barrier")
        if self.curve and "bar" in self.curve:
            p = self.cpairs[1 + self.curve.index("bar")]; A(f"s_memrealtime s[{p}:{p+1}]")
        def publish():
            d = vSP; d2 = vK + 96
            A(f"v_add_u32 v{vT0}, {L_WO + 14*1024}, v{vT1}")
            A(f"v_add_u32 v{vTM}, 0x10000, v{vT0}")
            for w in range(8): A(f"ds_read_b128 {vr(d+4*w,4)}, v{vT0 if w < 4 else vTM} offset:{16384*(w&3)}")
            for w in range(4): A(f"ds_read_b128 {vr(d2+4*w,4)}, v{vT0} offset:{1024+16384*w}")
            A(f"s_lshl_b32 {sT0}, {sH}, 3"); A(f"s_add_u32 {sT0}, {sT0}, {sJ}"); A(f"s_lshl_b32 {sT0}, {sT0}, 10")
            A(f"s_add_u32 {sT0}, {sT0}, {WS_Q}")
            A(f"s_lshl_b32 {sT1}, {sTI}, 3"); A(f"s_add_u32 {sT1}, {sT1}, {sJ}"); A(f"s_lshl_b32 {sT1}, {sT1}, 10")
            A(f"s_add_u32 {sT1}, {sT1}, {WS_F}")
            A("s_waitcnt lgkmcnt(4)")
            for w in range(4, 8): A(f"ds_read_b128 {vr(d2+4*w,4)}, v{vTM} offset:{1024+16384*(w&3)}")
            for w in range(1, 8):
                for r in range(4): A(f"v_add_f32 v{d+r}, v{d+r}, v{d+4*w+r}")
            for r in range(4): A(f"v_min_u32 v{d+r}, -2, v{d+r}")
            A(f"buffer_store_dwordx4 {vr(d,4)}, v{vT1}, {srd(R_WS)}, {sT0} offen sc1")
            A("s_waitcnt lgkmcnt(0)")
            for w in range(1, 8):
                for r in range(4): A(f"v_add_f32 v{d2+r}, v{d2+r}, v{d2+4*w+r}")
            for r in range(4): A(f"v_min_u32 v{d2+r}, -2, v{d2+r}")
            A(f"buffer_store_dwordx4 {vr(d2,4)}, v{vT1}, {srd(R_WS)}, {sT1} offen sc1")
            if self.curve: A(f"s_memrealtime s[{self.cpairs[1]}:{self.cpairs[1]+1}]")
            self.nop(2)
        self.only(self.pub, publish)

    def bcast(self):
        A = self.A
        sk = self.label("nobc")
        A(f"v_lshlrev_b32 v{vQF+4}, 12, v{vL}"); A(f"v_mov_b32 v{vQF+6}, 1")
        A(f"s_lshl_b32 {sT0}, {sFT}, 7"); A(f"s_add_u32 {sT0}, {sT0}, {WS_MB}")
        A("s_waitcnt vmcnt(0)")
        if self.curve: A(f"s_memrealtime s[{self.cpairs[2]}:{self.cpairs[2]+1}]")
        A(f"v_readfirstlane_b32 {sT1}, v{vFL}")
        self.nop(3)
        A(f"s_and_b32 {sFT}, {sT1}, 7"); A(f"s_cmp_lg_u32 {sFT}, 7"); A(f"s_cbranch_scc1 {sk}")
        A("s_mov_b32 exec_lo, 0xff"); A("s_mov_b32 exec_hi, 0")
        A(f"buffer_store_dword v{vQF+6}, v{vQF+4}, {srd(R_WS)}, {sT0} offen sc1")
        A("s_mov_b64 exec, -1")
        self.L(sk)

    def q_gather(self, pre, mid):
        A = self.A
        go = self.label("go"); sp = self.label("mbspin"); gs = self.label("gaspin"); ok = self.label("gaok"); chk = self.label("gachk")
        A(f"s_mov_b32 {sCNT}, 0")
        A(f"s_mov_b32 {sX0}, {sTD}")
        pre()
        self.ga_addr()
        A(f"s_add_u32 {sT1}, {sT0}, 4096")
        A(f"s_cmp_eq_u32 {sFT}, 7"); A(f"s_cbranch_scc1 {go}")
        self.L(sp)
        A("s_mov_b64 exec, 1")
        A(f"buffer_load_dword v{vFL}, v{vT1}, {srd(R_WS)}, {sX0} offen sc1")
        A("s_mov_b64 exec, -1")
        A(f"s_add_u32 {sCNT}, {sCNT}, 1")
        A("s_waitcnt vmcnt(0)")
        A(f"v_readfirstlane_b32 {sTF}, v{vFL}")
        A(f"s_cmp_ge_u32 {sCNT}, {SPIN}"); A(f"s_cbranch_scc1 {go}")
        A(f"s_cmp_lg_u32 {sTF}, 1"); A(f"s_cbranch_scc1 {sp}")
        self.L(go)
        if self.curve: A(f"s_memrealtime s[{self.cpairs[3]}:{self.cpairs[3]+1}]")
        def loads():
            for k in range(4):
                A(f"buffer_load_dwordx4 {vr(vSP+4*k,4)}, v{vTM}, {srd(R_WS)}, {sT0 if k < 2 else sT1} offen offset:{(k&1)*2048} sc1")
        loads()
        n = mid()
        A(f"s_waitcnt vmcnt({n})")
        A(f"s_branch {chk}")
        self.L(gs)
        loads()
        A(f"s_add_u32 {sCNT}, {sCNT}, 1")
        A(f"s_cmp_ge_u32 {sCNT}, {SPIN}")
        A("s_waitcnt vmcnt(0)")
        A(f"s_cbranch_scc1 {ok}")
        self.L(chk)
        t = vTM + 2
        A(f"v_max3_u32 v{t}, v{vSP}, v{vSP+1}, v{vSP+2}")
        for k in range(3, 15, 2): A(f"v_max3_u32 v{t}, v{t}, v{vSP+k}, v{vSP+k+1}")
        A(f"v_max_u32 v{t}, v{t}, v{vSP+15}")
        A(f"v_cmp_eq_u32 vcc, -1, v{t}")
        A(f"s_cbranch_vccnz {gs}")
        self.L(ok)

    def ga_addr(self):
        A = self.A
        t = vTM
        A(f"s_lshl_b32 {sT0}, {sH}, 13"); A(f"s_lshl_b32 {sT1}, {sB}, 7"); A(f"s_add_u32 {sT0}, {sT0}, {sT1}")
        A(f"s_add_u32 {sT0}, {sT0}, {WS_Q}")
        A(f"v_and_b32 v{t}, 7, v{vL}"); A(f"v_lshlrev_b32 v{t}, 4, v{t}")
        A(f"v_bfe_u32 v{t+1}, v{vL}, 3, 2"); A(f"v_lshl_add_u32 v{t}, v{t+1}, 8, v{t}")
        A(f"v_lshrrev_b32 v{t+1}, 5, v{vL}"); A(f"v_lshl_add_u32 v{t}, v{t+1}, 10, v{t}")

    def q_reduce(self):
        A = self.A
        t = vTM
        d = vSP
        for k in range(1, 4):
            for r in range(4): A(f"v_add_f32 v{d+r}, v{d+r}, v{d+4*k+r}")
        A(f"v_and_b32 v{t+1}, 7, v{vL}")
        A(f"v_lshrrev_b32 v{t+2}, 5, v{vL}")
        A(f"v_permlane32_swap_b32 v{d}, v{d+1}"); A(f"v_permlane32_swap_b32 v{d+2}, v{d+3}")
        A(f"v_lshl_add_u32 v{t+1}, v{t+2}, 3, v{t+1}")
        A(f"v_add_f32 v{d}, v{d}, v{d+1}"); A(f"v_add_f32 v{d+2}, v{d+2}, v{d+3}")
        A(f"v_cvt_pk_bf16_f32 v{d}, v{d}, v{d+2}")
        A(f"v_bfe_u32 v{t}, v{vL}, 3, 2")
        A(f"v_lshl_add_u32 v{t}, v{t}, 5, v{t+1}")
        A(f"v_lshlrev_b32 v{t}, 1, v{t}")
        A(f"ds_write_b16 v{t}, v{d} offset:{L_QS}")
        A(f"ds_write_b16_d16_hi v{t}, v{d} offset:{L_QS+32}")

    def items(self):
        A = self.A
        it = []
        def add(name, fn, dep=None): it.append(dict(name=name, fn=fn, dep=dep))
        def grp(kind, G, dep):
            for t in range(4): add(f"{kind}{G}_{t}", lambda t=t: self.kv_load(kind, G, t), dep if t == 0 else None)
        wd = []
        for t in range(2):
            def fn(t=t):
                A(f"s_add_u32 m0, {sWDL}, {t*1024}")
                A(f"s_movk_i32 {sTD}, {t*8192}")
                A(f"buffer_load_dwordx4 v{vOD}, {srd(R_WD)}, {sTD} offen nt lds")
            wd.append((f"wd{t}", fn, None))
        wo = []
        for t in range(16):
            def fn(t=t):
                A(f"s_add_u32 m0, {sWOL}, {t*1024}")
                A(f"s_mov_b32 {sTD}, {(32*(t>>2) + 2*(t&3))*1024}")
                A(f"buffer_load_dwordx4 v{vOW}, {srd(R_WO)}, {sTD} offen nt lds")
            wo.append((f"wo{t}", fn, "qred" if t >= 14 else None))
        dma = wo[:4] + wd + wo[4:]
        def put(slot):
            for _ in range(self.wo_sched[slot]):
                n, fn, dep = dma.pop(0); add(n, fn, dep)
        for G in range(8): grp("K", G, None); put(G)
        for G in range(8): grp("V", G, (self.st_after if G == 7 else f"qk{G-1}") if G else None); put(8 + G)
        return it

    def step_gate0(self):
        A = self.A
        def fn():
            A(f"s_lshl_b32 {sT1}, {sB}, 10")
            A(f"buffer_load_dwordx4 {vr(vXR,4)}, v{vT1}, {srd(R_X)}, {sT1} offen")
            A(f"buffer_load_dwordx4 {vr(vXR+4,4)}, v{vT1}, {srd(R_GW)}, 0 offen")
        self.only(self.gsvc, fn)
    def step_gate(self):
        A = self.A
        def fn():
            x, w = vXR, vXR + 4
            t = vTM
            acc = vT0
            A(f"v_mov_b32 v{acc}, 0")
            for k in range(4):
                A(f"v_lshlrev_b32 v{t}, 16, v{x+k}"); A(f"v_lshlrev_b32 v{t+1}, 16, v{w+k}")
                A(f"v_and_b32 v{t+2}, 0xffff0000, v{x+k}"); A(f"v_and_b32 v{t+3}, 0xffff0000, v{w+k}")
                A(f"v_mul_f32 v{t}, v{t}, v{t+1}"); A(f"v_mul_f32 v{t+2}, v{t+2}, v{t+3}")
                A(f"v_cvt_pk_bf16_f32 v{t}, v{t}, v{t+2}")
                A(f"v_lshlrev_b32 v{t+1}, 16, v{t}"); A(f"v_and_b32 v{t}, 0xffff0000, v{t}")
                A(f"v_add_f32 v{acc}, v{acc}, v{t+1}"); A(f"v_add_f32 v{acc}, v{acc}, v{t}")
            for ctl in ("quad_perm:[1,0,3,2]", "quad_perm:[2,3,0,1]", "row_half_mirror", "row_mirror"):
                self.dpp_add(acc, ctl)
            self.swap_reduce("v_add_f32", acc, t, 16)
            self.swap_reduce("v_add_f32", acc, t, 32)
            A(f"v_cvt_pk_bf16_f32 v{acc}, v{acc}, v{acc}")
            A(f"v_and_b32 v{acc}, 0xffff0000, v{acc}")
            A(f"v_mul_f32 v{acc}, {f32(-math.log2(math.e))}, v{acc}")
            A(f"v_exp_f32 v{acc}, v{acc}")
            self.nop(1)
            A(f"v_add_f32 v{acc}, 1.0, v{acc}")
            A(f"v_rcp_f32 v{acc}, v{acc}")
            self.nop(1)
            A(f"v_cvt_pk_bf16_f32 v{acc}, v{acc}, v{acc}")
            A(f"v_and_b32 v{t}, 0xffff0000, v{acc}")
            A(f"v_sub_f32 v{t+1}, 1.0, v{t}")
            A(f"v_cvt_pk_bf16_f32 v{t+1}, v{t+1}, v{t+1}")
            A(f"v_and_b32 v{t+1}, 0xffff0000, v{t+1}")
            A(f"v_mov_b32 v{t+2}, 0")
            A(f"ds_write_b64 v{t+2}, {vr(t,2)} offset:{L_GS}")
        self.only(self.gsvc, fn)

    def fl_load(self):
        A = self.A
        A(f"v_and_b32 v{vT0}, 31, v{vL}"); A(f"v_lshlrev_b32 v{vT0}, 3, v{vT0}")
        A(f"global_load_dword v{vFL}, v{vT0}, s[{P_DBG}:{P_DBG+1}] sc1")
    def step_fl(self):
        self.only(self.svc, self.fl_load)
    def step_fga(self):
        A = self.A
        def fn():
            ok = self.label("flok"); sp = self.label("flspin")
            A(f"v_cmp_gt_u32 vcc, 8, v{vFL}")
            A(f"s_cbranch_vccz {ok}")
            A(f"s_mov_b32 {sCNT}, 0")
            self.L(sp)
            A(f"s_sleep {self.sleep}")
            self.fl_load()
            A(f"s_add_u32 {sCNT}, {sCNT}, 1")
            A(f"s_cmp_ge_u32 {sCNT}, {SPIN}")
            A("s_waitcnt vmcnt(0)")
            A(f"s_cbranch_scc1 {ok}")
            A(f"v_cmp_gt_u32 vcc, 8, v{vFL}")
            A(f"s_cbranch_vccnz {sp}")
            self.L(ok)
            self.fg_load()
        self.only(self.svc, fn)
    def fg_load(self):
        A = self.A
        A(f"s_lshr_b32 {sT0}, {sSL}, 3"); A(f"s_lshl_b32 {sT0}, {sT0}, 13")
        A(f"s_lshl_b32 {sT1}, {sB}, 7"); A(f"s_add_u32 {sT0}, {sT0}, {sT1}")
        A(f"s_bfe_u32 {sT1}, {sSL}, 0x20001"); A(f"s_lshl_b32 {sT1}, {sT1}, 8"); A(f"s_add_u32 {sT0}, {sT0}, {sT1}")
        A(f"s_and_b32 {sT1}, {sSL}, 1"); A(f"s_lshl_b32 {sT1}, {sT1}, 3"); A(f"s_add_u32 {sT0}, {sT0}, {sT1}")
        A(f"s_add_u32 {sT0}, {sT0}, {WS_F}")
        A(f"v_and_b32 v{vT0}, 7, v{vL}"); A(f"v_lshlrev_b32 v{vT0}, 4, v{vT0}")
        A(f"v_lshrrev_b32 v{vTM}, 3, v{vL}"); A(f"v_lshl_add_u32 v{vT0}, v{vTM}, 10, v{vT0}")
        A(f"buffer_load_dwordx2 {vr(vFG,2)}, v{vT0}, {srd(R_WS)}, {sT0} offen sc1")
        A(f"s_add_u32 {sT0}, {sT0}, {11*8192}")
        A(f"buffer_load_dwordx2 {vr(vFG+2,2)}, v{vT0}, {srd(R_WS)}, {sT0} offen sc1")
    def step_ffn2(self):
        A = self.A
        t = vTM
        def fn():
            e = vFG
            ok = self.label("fgok"); sp = self.label("fgspin")
            A(f"s_mov_b32 {sCNT}, 0")
            self.L(sp)
            A(f"v_max3_u32 v{t}, v{e}, v{e+1}, v{e+2}"); A(f"v_max_u32 v{t}, v{t}, v{e+3}")
            A(f"v_cmp_eq_u32 vcc, -1, v{t}")
            A(f"s_cbranch_vccz {ok}")
            self.fg_load()
            A(f"s_add_u32 {sCNT}, {sCNT}, 1")
            A(f"s_cmp_lt_u32 {sCNT}, {SPIN}")
            A("s_waitcnt vmcnt(0)")
            A(f"s_cbranch_scc1 {sp}")
            self.L(ok)
            A(f"v_permlane32_swap_b32 v{e}, v{e+1}"); A(f"v_permlane32_swap_b32 v{e+2}, v{e+3}")
            self.nop(1)
            A(f"v_add_f32 v{e}, v{e}, v{e+1}"); A(f"v_add_f32 v{e+2}, v{e+2}, v{e+3}")
            self.swap_reduce("v_add_f32", e, e + 1, 16)
            self.swap_reduce("v_add_f32", e + 2, e + 3, 16)
            self.dpp_add(e, "row_ror:8"); self.dpp_add(e + 2, "row_ror:8")
            A(f"v_cvt_pk_bf16_f32 v{e}, v{e}, v{e+2}")
            A(f"v_and_b32 v{e+2}, 0xffff0000, v{e}")
            A(f"v_lshlrev_b32 v{e}, 16, v{e}")
            k0 = math.sqrt(2.0 / math.pi)
            A(f"v_mul_f32 v{e+1}, v{e}, v{e}")
            A(f"v_mov_b32 v{e+3}, {f32(-2.0 * k0 * math.log2(math.e))}")
            A(f"v_mul_f32 v{e+1}, {f32(0.044715)}, v{e+1}")
            A(f"v_add_f32 v{e+1}, 1.0, v{e+1}")
            A(f"v_mul_f32 v{e+1}, v{e+1}, v{e}")
            A(f"v_mul_f32 v{e+1}, v{e+1}, v{e+3}")
            A(f"v_exp_f32 v{e+1}, v{e+1}")
            self.nop(1)
            A(f"v_add_f32 v{e+1}, 1.0, v{e+1}")
            A(f"v_rcp_f32 v{e+1}, v{e+1}")
            self.nop(1)
            A(f"v_mul_f32 v{e}, v{e}, v{e+1}")
            A(f"v_cvt_pk_bf16_f32 v{e}, v{e}, v{e}")
            A(f"v_and_b32 v{e}, 0xffff0000, v{e}")
            A(f"v_mul_f32 v{e}, v{e}, v{e+2}")
            A(f"v_cvt_pk_bf16_f32 v{e}, v{e}, v{e}")
            A(f"v_and_b32 v{t+1}, 7, v{vL}"); A(f"v_lshrrev_b32 v{t+2}, 5, v{vL}")
            A(f"v_lshl_add_u32 v{t+1}, v{t+2}, 3, v{t+1}")
            A(f"v_lshlrev_b32 v{t+1}, 1, v{t+1}")
            A(f"ds_write_b16 v{t+1}, v{e} offset:{L_HS}")
            A(f"v_lshlrev_b32 v{t+1}, 3, v{vG}")
            A(f"v_mov_b32 v{t+3}, 0")
            A("s_waitcnt lgkmcnt(0)")
            A(f"ds_read_b64 {vr(e,2)}, v{t+1} offset:{L_HS}")
            A(f"ds_read_b32 v{e+2}, v{t+3} offset:{L_GS+4}")
            A(f"v_lshrrev_b32 v{t}, 2, v{vI}"); A(f"v_and_b32 v{t+1}, 3, v{vI}")
            A(f"v_lshlrev_b32 v{t+1}, 3, v{t+1}")
            A(f"v_lshl_add_u32 v{t+1}, v{t}, 7, v{t+1}")
            A(f"v_lshl_add_u32 v{t+1}, v{vG}, 9, v{t+1}")
            A(f"v_lshlrev_b32 v{t+2}, 2, v{vL}")
            for k in range(1, 4): A(f"v_cmp_eq_u32 {['', 's[52:53]', 's[54:55]', 's[68:69]'][k]}, {k}, v{vG}")
            wf = vDF
            for w in range(8):
                for tau in range(4):
                    A(f"ds_read_b64_tr_b16 {vr(wf+2*tau,2)}, v{t+1} offset:{L_WD + w*2048 + tau*32}")
                A("s_waitcnt lgkmcnt(0)")
                for tau in range(4):
                    A(f"v_mfma_f32_16x16x16_bf16 {vr(vFD+4*tau,4)}, {vr(e,2)}, {vr(wf+2*tau,2)}, 0")
                self.nop(6)
                A(f"v_cndmask_b32 v{t+4}, v{vFD}, v{vFD+4}, s[52:53]")
                self.nop(1)
                A(f"v_cndmask_b32 v{t+4}, v{t+4}, v{vFD+8}, s[54:55]")
                self.nop(1)
                A(f"v_cndmask_b32 v{t+4}, v{t+4}, v{vFD+12}, s[68:69]")
                A(f"v_mul_f32 v{t+4}, v{t+4}, v{e+2}")
                A(f"ds_write_b32 v{t+2}, v{t+4} offset:{L_YF + w*256}")
        self.only(self.svc, fn)

    def step_qred(self):
        A = self.A
        t = vTM
        A(f"v_and_b32 v{t}, 8, v{vL}")
        A(f"v_lshlrev_b32 v{t}, 3, v{t}")
        A(f"v_lshl_add_u32 v{t}, v{vG}, 4, v{t}")
        A("s_waitcnt lgkmcnt(0)")
        A("s_barrier")
        for T in range(2): A(f"ds_read_b128 {vr(vQF+4*T,4)}, v{t} offset:{L_QS+128*T}")
        A("s_waitcnt lgkmcnt(0)")

    def qk_combine(self, G):
        A = self.A
        a = vSP + 4 * G; b = vQF + 8 + 4 * (G & 1)
        for r in range(4): A(f"v_permlane32_swap_b32 v{a+r}, v{b+r}")
        for r in range(4): A(f"v_add_f32_dpp v{a+r}, v{b+r}, v{a+r} row_ror:8 row_mask:0xf bank_mask:0xf")
    def step_qk(self, G):
        A = self.A
        a = vSP + 4 * G; b = vQF + 8 + 4 * (G & 1); k = vK + 16 * G
        A(f"v_mfma_f32_16x16x32_bf16 {vr(a,4)}, {vr(k,4)}, {vr(vQF,4)}, 0")
        A(f"v_mfma_f32_16x16x32_bf16 {vr(b,4)}, {vr(k+8,4)}, {vr(vQF,4)}, 0")
        A(f"v_mfma_f32_16x16x32_bf16 {vr(a,4)}, {vr(k+4,4)}, {vr(vQF+4,4)}, {vr(a,4)}")
        A(f"v_mfma_f32_16x16x32_bf16 {vr(b,4)}, {vr(k+12,4)}, {vr(vQF+4,4)}, {vr(b,4)}")
        if G > 0:
            self.nop(4)
            self.qk_combine(G - 1)

    def step_softmax(self):
        A = self.A
        t = vTM
        m = vAC2 + 2
        A(f"v_max3_f32 v{m}, v{vSP}, v{vSP+1}, v{vSP+2}")
        for k in range(3, 27, 2): A(f"v_max3_f32 v{m}, v{m}, v{vSP+k}, v{vSP+k+1}")
        self.qk_combine(7)
        A(f"v_max3_f32 v{m}, v{m}, v{vSP+27}, v{vSP+28}")
        A(f"v_max3_f32 v{m}, v{m}, v{vSP+29}, v{vSP+30}")
        A(f"v_max_f32 v{m}, v{m}, v{vSP+31}")
        self.swap_reduce("v_max_f32", m, t, 16)
        self.swap_reduce("v_max_f32", m, t, 32)
        A(f"s_lshl_b32 {sT0}, {sW}, 2")
        A(f"v_mov_b32 v{t+4}, {sT0}")
        A(f"v_mov_b32 v{t+5}, 0")
        A("s_mov_b64 exec, 1")
        A(f"ds_write_b32 v{t+4}, v{m} offset:{L_MX}")
        A("s_mov_b64 exec, -1")
        A("s_waitcnt lgkmcnt(0)")
        A("s_barrier")
        A(f"ds_read_b128 {vr(vBF,4)}, v{t+5} offset:{L_MX}")
        A(f"ds_read_b128 {vr(vBF+4,4)}, v{t+5} offset:{L_MX+16}")
        A("s_waitcnt lgkmcnt(0)")
        A(f"v_max3_f32 v{m}, v{vBF}, v{vBF+1}, v{vBF+2}")
        A(f"v_max3_f32 v{m}, v{m}, v{vBF+3}, v{vBF+4}")
        A(f"v_max3_f32 v{m}, v{m}, v{vBF+5}, v{vBF+6}")
        A(f"v_max_f32 v{m}, v{m}, v{vBF+7}")
        A(f"v_mul_f32 v{m}, {sC}, v{m}")
        l = vT0
        for k in range(32):
            A(f"v_fma_f32 v{vSP+k}, v{vSP+k}, {sC}, -v{m}")
        for k in range(32):
            A(f"v_exp_f32 v{vSP+k}, v{vSP+k}")
        A(f"v_add_f32 v{l}, v{vSP}, v{vSP+1}"); A(f"v_add_f32 v{t}, v{vSP+2}, v{vSP+3}")
        for k in range(4, 32, 2):
            A(f"v_add_f32 v{l}, v{l}, v{vSP+k}"); A(f"v_add_f32 v{t}, v{t}, v{vSP+k+1}")
        A(f"v_add_f32 v{l}, v{l}, v{t}")
        self.swap_reduce("v_add_f32", l, t, 16)
        self.swap_reduce("v_add_f32", l, t, 32)
        A("s_mov_b64 exec, 1")
        A(f"ds_write_b32 v{t+4}, v{l} offset:{L_LS}")
        A("s_mov_b64 exec, -1")
        for k in range(32):
            A(f"v_cvt_pk_bf16_f32 v{vSP+k}, v{vSP+k}, v{vSP+k}")
        A("s_waitcnt lgkmcnt(0)")
        A("s_barrier")
        def fn():
            A(f"ds_read_b128 {vr(vBF,4)}, v{t+5} offset:{L_LS}")
            A(f"ds_read_b128 {vr(vBF+4,4)}, v{t+5} offset:{L_LS+16}")
            A(f"s_lshl_b32 {sT0}, {sBH}, 2"); A(f"s_add_u32 {sT0}, {sT0}, {sS}")
            A(f"s_lshl_b32 {sT0}, {sT0}, 3"); A(f"s_add_u32 {sT0}, {sT0}, {WS_S}")
            A("s_waitcnt lgkmcnt(0)")
            for k in range(1, 8): A(f"v_add_f32 v{vBF}, v{vBF}, v{vBF+k}")
            A(f"v_min_u32 v{t+1}, -2, v{vBF}")
            A(f"v_mov_b32 v{t}, v{m}")
            A("s_mov_b64 exec, 1")
            A(f"buffer_store_dwordx2 {vr(t,2)}, v{t+5}, {srd(R_WS)}, {sT0} offen sc1")
            A("s_mov_b64 exec, -1")
        self.only(2, fn)

    def step_pv(self, G):
        A = self.A
        base = vX if G == 0 else vK + 16 * (G - 1)
        def build(k, bset):
            for u in range(4): A(f"v_and_b32 v{vBF+4*bset+u}, v{vSP+k}, v{vM+u}")
        for r in range(4):
            k = 4 * G + r
            if k == 0: build(0, 0)
            if k + 1 < 32: build(k + 1, (k + 1) & 1)
            else: self.nop(2)
            c = "0" if k == 0 else vr(vACC, 4)
            A(f"v_mfma_f32_16x16x32_bf16 {vr(vACC,4)}, {vr(base+4*r,4)}, {vr(vBF+4*(k&1),4)}, {c}")

    WF = [vQF, vK + 16 * 7, vX, vK]
    def step_wof(self):
        A = self.A
        t = vTM
        A(f"v_lshrrev_b32 v{t}, 2, v{vI}"); A(f"v_and_b32 v{t+1}, 3, v{vI}")
        A(f"v_lshlrev_b32 v{t+1}, 3, v{t+1}")
        A(f"v_lshl_add_u32 v{t+1}, v{t}, 7, v{t+1}")
        A(f"v_lshl_add_u32 v{t+2}, v{vG}, 10, v{t+1}")
        A(f"v_add_u32 v{vOQ}, {sWOL}, v{t+2}")
        for tau in range(4):
            for T in range(4):
                for hi in range(2):
                    A(f"ds_read_b64_tr_b16 {vr(self.WF[tau]+4*T+2*hi,2)}, v{vOQ} offset:{T*4096 + hi*512 + tau*32}")
            if tau < 3: A("s_waitcnt lgkmcnt(4)")
        A(f"v_and_b32 v{t}, 7, v{vI}")
        A(f"s_mul_i32 {sT1}, {sW}, 288"); A(f"s_add_u32 {sT1}, {sT1}, {L_OB}")
        A(f"v_lshl_add_u32 v{vOK}, v{vG}, 6, {sT1}")
        A(f"v_lshl_add_u32 v{vOK}, v{t}, 3, v{vOK}")
        A(f"v_mul_u32_u24 v{vOW}, 288, v{t}")
        A(f"v_lshl_add_u32 v{vOW}, v{vG}, 4, v{vOW}")
        A(f"v_lshrrev_b32 v{t}, 2, v{vI}")
        A(f"v_lshl_add_u32 v{t}, v{vG}, 2, v{t}")
        A(f"v_lshlrev_b32 v{vOF}, 11, v{t}")
        A(f"s_lshl_b32 {sTF}, {sW}, 15")
        A(f"s_lshl_b32 {sT1}, {sB}, 18"); A(f"s_add_u32 {sTF}, {sTF}, {sT1}")
        A(f"s_lshl_b32 {sT1}, {sH}, 6"); A(f"s_add_u32 {sTF}, {sTF}, {sT1}")
        A(f"s_lshl_b32 {sT1}, {sS}, 4"); A(f"s_add_u32 {sTF}, {sTF}, {sT1}")
        A(f"v_cmp_gt_u32 s[0:1], 2, v{vG}")
        A(f"v_lshlrev_b32 v{vOD}, 4, v{vL}")
        A(f"s_lshl_b32 {sTQ}, s2, 11")
        A(f"v_and_b32 v{t}, 1, v{vG}"); A(f"v_lshrrev_b32 v{t+1}, 1, v{vG}")
        A(f"v_lshl_add_u32 v{t}, v{t}, 1, v{t+1}")
        A(f"s_lshl_b32 {sT1}, s2, 3")
        A(f"v_lshl_add_u32 v{vT1}, v{t}, 1, {sT1}")
        A("s_waitcnt lgkmcnt(0)")
        A(f"v_mov_b32 v{vOQ}, 0")
        A(f"s_lshl_b32 {sT1}, {sW}, 8")
        A(f"v_lshl_add_u32 v{vAC2}, v{vL}, 2, {sT1}")

    def st_load(self):
        A = self.A
        A(f"s_lshl_b32 {sT0}, {sBH}, 5"); A(f"s_add_u32 {sT0}, {sT0}, {WS_S}")
        A(f"v_mov_b32 v{vT0}, 0")
        for k in range(2):
            A(f"buffer_load_dwordx4 {vr(vXR+4*k,4)}, v{vT0}, {srd(R_WS)}, {sT0} offen offset:{16*k} sc1")
    def step_st0(self):
        self.only(self.svc, self.st_load)
    def step_scale(self):
        A = self.A
        t = vTM
        s = vXR
        def fn():
            ok = self.label("stok"); sp = self.label("stspin")
            A(f"v_mov_b32 v{t+3}, 0")
            A(f"ds_read_b32 v{t+2}, v{t+3} offset:{L_GS}")
            A(f"s_mov_b32 {sCNT}, 0")
            A(f"v_max3_u32 v{t}, v{s+1}, v{s+3}, v{s+5}")
            A(f"v_max_u32 v{t}, v{t}, v{s+7}")
            A(f"v_cmp_eq_u32 vcc, -1, v{t}")
            A(f"s_cbranch_vccz {ok}")
            self.L(sp)
            self.st_load()
            A(f"s_add_u32 {sCNT}, {sCNT}, 1")
            A(f"s_cmp_ge_u32 {sCNT}, {SPIN}")
            A("s_waitcnt vmcnt(0)")
            A(f"s_cbranch_scc1 {ok}")
            A(f"v_max3_u32 v{t}, v{s+1}, v{s+3}, v{s+5}")
            A(f"v_max_u32 v{t}, v{t}, v{s+7}")
            A(f"v_cmp_eq_u32 vcc, -1, v{t}")
            A(f"s_cbranch_vccnz {sp}")
            self.L(ok)
            A(f"v_max3_f32 v{t}, v{s}, v{s+2}, v{s+4}")
            A(f"v_max_f32 v{t}, v{t}, v{s+6}")
            for k in range(4): A(f"v_sub_f32 v{s+2*k}, v{s+2*k}, v{t}")
            A(f"v_sub_f32 v{t+1}, v{vAC2+2}, v{t}")
            for k in range(4): A(f"v_exp_f32 v{s+2*k}, v{s+2*k}")
            A(f"v_exp_f32 v{t+1}, v{t+1}")
            A(f"v_mul_f32 v{t}, v{s}, v{s+1}")
            for k in range(1, 4): A(f"v_fmac_f32 v{t}, v{s+2*k}, v{s+2*k+1}")
            A(f"v_rcp_f32 v{t}, v{t}")
            A("s_waitcnt lgkmcnt(0)")
            A(f"v_mul_f32 v{t+1}, v{t+2}, v{t+1}")
            A(f"v_mul_f32 v{t}, v{t}, v{t+1}")
            A(f"ds_write_b32 v{t+3}, v{t} offset:{L_FS}")
        self.only(self.svc, fn)

    def step_tail(self):
        A = self.A
        t = vTM
        A("s_mov_b32 exec_lo, 0x00ff00ff"); A("s_mov_b32 exec_hi, 0x00ff00ff")
        self.nop(6)
        A(f"v_cvt_pk_bf16_f32 v{t}, v{vACC}, v{vACC+1}")
        A(f"v_cvt_pk_bf16_f32 v{t+1}, v{vACC+2}, v{vACC+3}")
        A(f"ds_write_b64 v{vOK}, {vr(t,2)}")
        A("s_mov_b64 exec, -1")
        A("s_waitcnt lgkmcnt(0)")
        A("s_barrier")
        af = vSP
        for T in range(4): A(f"ds_read_b128 {vr(af+4*T,4)}, v{vOW} offset:{L_OB + 64*T}")
        A(f"ds_read_b32 v{t+4}, v{vOQ} offset:{L_FS}")
        A(f"ds_read_b32 v{vAC2+3}, v{vAC2} offset:{L_YF}")
        for T in range(4):
            A(f"s_waitcnt lgkmcnt({5-T})" if not self.stamps else "s_waitcnt lgkmcnt(0)")
            for tau in range(4):
                c = vr(vDF+4*tau,4) if T else "0"
                A(f"v_mfma_f32_16x16x32_bf16 {vr(vDF+4*tau,4)}, {vr(af+4*T,4)}, {vr(self.WF[tau]+4*T,4)}, {c}")
        A("s_waitcnt lgkmcnt(0)")
        self.nop(4)
        for tau in range(4):
            d = vDF + 4 * tau
            A(f"v_add_f32 v{d}, v{d}, v{d+1}"); A(f"v_add_f32 v{d+2}, v{d+2}, v{d+3}")
            A(f"v_add_f32 v{d}, v{d}, v{d+2}")
        self.nop(1)
        A(f"v_permlane16_swap_b32 v{vDF}, v{vDF+4}")
        A(f"v_permlane16_swap_b32 v{vDF+8}, v{vDF+12}")
        self.nop(1)
        A(f"v_add_f32 v{vDF}, v{vDF}, v{vDF+4}")
        A(f"v_add_f32 v{vDF+8}, v{vDF+8}, v{vDF+12}")
        A(f"v_cndmask_b32 v{t}, v{vDF+8}, v{vDF}, s[0:1]")
        A(f"v_fma_f32 v{t}, v{t}, v{t+4}, v{vAC2+3}")
        A(f"v_min_u32 v{t}, -2, v{t}")
        self.nop(2)
        for k in range(1, 4):
            A(f"v_mov_b32_dpp v{t+k}, v{t} quad_perm:[{k},{k},{k},{k}] row_mask:0xf bank_mask:0xf")
        A("s_mov_b32 exec_lo, 0x11111111"); A("s_mov_b32 exec_hi, 0x11111111")
        A(f"buffer_store_dwordx4 {vr(t,4)}, v{vOF}, {srd(R_WS)}, {sTF} offen{'' if self.two_kernel else ' sc1'}")
        A("s_mov_b64 exec, -1")

    def consumer(self, poll=True):
        A = self.A
        y = vSP
        t = vTM + 4
        sp = self.label("yspin"); ok = self.label("yok"); fast = self.label("yfast")
        fl = " " + self.yflags if poll else ""
        if not poll or self.cons == 0:
            A(f"s_mov_b32 {sCNT}, 0")
            self.L(sp)
            A(f"buffer_load_dwordx4 {vr(y,4)}, v{vOD}, {srd(R_WS)}, {sTQ} offen{fl}")
            A(f"buffer_load_dwordx4 {vr(y+4,4)}, v{vOD}, {srd(R_WS)}, {sTQ} offen offset:1024{fl}")
            if poll:
                A(f"s_add_u32 {sCNT}, {sCNT}, 1")
                A(f"s_cmp_ge_u32 {sCNT}, {SPIN}")
                A("s_waitcnt vmcnt(0)")
                A(f"s_cbranch_scc1 {ok}")
                A(f"v_max3_u32 v{t}, v{y}, v{y+1}, v{y+2}")
                A(f"v_max3_u32 v{t+1}, v{y+3}, v{y+4}, v{y+5}")
                A(f"v_max3_u32 v{t}, v{t}, v{y+6}, v{y+7}")
                A(f"v_max_u32 v{t}, v{t}, v{t+1}")
                A(f"v_cmp_eq_u32 vcc, -1, v{t}")
                A(f"s_cbranch_vccnz {sp}")
                self.L(ok)
            else:
                A("s_waitcnt vmcnt(0)")
        else:
            mA, mB = "s[52:53]", "s[54:55]"
            D = self.cons
            def masks():
                A(f"v_max3_u32 v{t}, v{y}, v{y+1}, v{y+2}")
                A(f"v_max3_u32 v{t+1}, v{y+4}, v{y+5}, v{y+6}")
                A(f"v_max_u32 v{t}, v{t}, v{y+3}")
                A(f"v_max_u32 v{t+1}, v{t+1}, v{y+7}")
                A(f"v_cmp_eq_u32 {mA}, -1, v{t}")
                A(f"v_cmp_eq_u32 {mB}, -1, v{t+1}")
            def loads():
                la = self.label("ya"); lb = self.label("yb")
                A(f"s_mov_b64 exec, {mA}")
                A(f"s_cbranch_execz {la}")
                A(f"buffer_load_dwordx4 {vr(y,4)}, v{vOD}, {srd(R_WS)}, {sTQ} offen{fl}")
                self.L(la)
                A(f"s_mov_b64 exec, {mB}")
                A(f"s_cbranch_execz {lb}")
                A(f"buffer_load_dwordx4 {vr(y+4,4)}, v{vOD}, {srd(R_WS)}, {sTQ} offen offset:1024{fl}")
                self.L(lb)
                A("s_mov_b64 exec, -1")
            A(f"s_mov_b64 {mA}, -1"); A(f"s_mov_b64 {mB}, -1")
            A(f"s_mov_b32 {sCNT}, 0")
            self.L(sp)
            loads()
            A(f"s_add_u32 {sCNT}, {sCNT}, 1")
            A("s_waitcnt vmcnt(0)")
            masks()
            A(f"s_cmp_ge_u32 {sCNT}, {SPIN}"); A(f"s_cbranch_scc1 {ok}")
            A(f"s_bcnt1_i32_b64 {sT0}, {mA}"); A(f"s_bcnt1_i32_b64 {sT1}, {mB}")
            A(f"s_add_u32 {sT0}, {sT0}, {sT1}")
            A(f"s_cmp_gt_u32 {sT0}, {self.cthr}"); A(f"s_cbranch_scc1 {sp}")
            self.L(fast)
            A(f"s_or_b64 vcc, {mA}, {mB}")
            A(f"s_cbranch_vccz {ok}")
            loads()
            A(f"s_add_u32 {sCNT}, {sCNT}, 1")
            A(f"s_waitcnt vmcnt({D})")
            masks()
            A(f"s_cmp_lt_u32 {sCNT}, {SPIN}"); A(f"s_cbranch_scc1 {fast}")
            self.L(ok)
        for k in range(4): A(f"v_add_f32 v{y+8+k}, v{y+k}, v{y+4+k}")
        y = y + 8
        self.nop(1)
        A(f"v_permlane32_swap_b32 v{y}, v{y+1}"); A(f"v_permlane32_swap_b32 v{y+2}, v{y+3}")
        self.nop(1)
        A(f"v_add_f32 v{y}, v{y}, v{y+1}"); A(f"v_add_f32 v{y+2}, v{y+2}, v{y+3}")
        self.nop(2)
        A(f"v_permlane16_swap_b32 v{y}, v{y+2}")
        self.nop(1)
        A(f"v_add_f32 v{y}, v{y}, v{y+2}")
        for ctl in ("quad_perm:[1,0,3,2]", "quad_perm:[2,3,0,1]", "row_half_mirror", "row_mirror"):
            self.dpp_add(y, ctl)
        A(f"v_cvt_pk_bf16_f32 v{y}, v{y}, v{y}")
        A("s_mov_b32 exec_lo, 0x00010001"); A("s_mov_b32 exec_hi, 0x00010001")
        A(f"global_store_short v{vT1}, v{y}, s[{P_OUT}:{P_OUT+1}]")

    def steps(self, idx):
        S = []
        def add(name, needs, fn): S.append(dict(name=name, needs=needs, fn=fn))
        add("gate0", [], self.step_gate0)
        add("gate", ["@gate0"], self.step_gate)
        if self.curve:
            for G in range(1, 5):
                if f"w{G}" in self.curve: add(f"w{G}", [f"K{G}_3"], lambda: None)
        add("join", [self.q_at], lambda: None)
        add("qred", [], self.step_qred)
        for G in range(8): add(f"qk{G}", [f"K{G}_3"], lambda G=G: self.step_qk(G))
        add("fl", [], self.step_fl)
        add("softmax", ["wd1"], self.step_softmax)
        lastdma = idx["wo15"]
        placed = False
        for G in range(8):
            if G == 7: add("scale", ["@st0"], self.step_scale)
            if not placed and G >= 2 and idx[f"V{G}_3"] > lastdma:
                add("wof", ["wo15"], self.step_wof); placed = True
            add(f"pv{G}", [f"V{G}_3"], lambda G=G: self.step_pv(G))
            if f"pv{G}" == self.fga_pos: add("fga", ["@fl"], self.step_fga)
            if f"pv{G}" == self.st_pos: add("st0", [], self.step_st0)
            if f"pv{G}" == self.ffn_pos: add("ffn2", ["@fga"], self.step_ffn2)
        assert placed
        add("tail", [], self.step_tail)
        return S

    def schedule(self, W, W2):
        self.st_pos = self.st_after; self.st_after = "st0"
        items = self.items()
        self.st_after = self.st_pos
        idx = {it["name"]: n for n, it in enumerate(items)}
        steps = self.steps(idx)
        issued = 4 + self.npre
        assert all(it['name'][0] == 'K' for it in items[:issued])
        comp = -1; done = set(); pos = -1; after = {}
        lother = self.label("other"); ljoin = self.label("join")
        self.A(f"s_cmp_lg_u32 {sW}, {self.hs if not self.x_nohs else 9}"); self.A(f"s_cbranch_scc1 {lother}")
        mark = len(self.o)
        self.L(lother)
        for st in steps:
            need = max([after[n[1:]] if n[0] == "@" else idx[n] for n in st["needs"]], default=-1)
            pos = max(pos, need)
            def issue(w, la):
                nonlocal issued, comp
                while issued < len(items):
                    it = items[issued]
                    if issued > pos + la - 1: break
                    if it["dep"] and it["dep"] not in done:
                        assert issued > need, (st["name"], it["name"])
                        break
                    if issued - (comp + 1) >= w:
                        self.A(f"s_waitcnt vmcnt({w-1})"); comp = issued - w
                    it["fn"](); issued += 1
            if st['name'] != 'qred': issue(W, W)
            if comp < need:
                self.A(f"s_waitcnt vmcnt({issued-1-need})"); comp = need
            if st["name"] == "join":
                issue(W + self.boost, W + self.boost)
                rest = self.o[mark:]; del self.o[mark:]
                self.bcast()
                n1 = self.hs_pre; n2 = min(issued, n1 + self.hs_mid)
                def pre():
                    for n in range(n1): items[n]["fn"]()
                def mid():
                    for n in range(n1, n2): items[n]["fn"]()
                    return n2 - n1
                self.q_gather(pre, mid)
                if self.curve: self.A(f"s_memrealtime s[{self.cpairs[4]}:{self.cpairs[4]+1}]")
                self.q_reduce()
                for n in range(n2, issued): items[n]["fn"]()
                self.A(f"s_branch {ljoin}")
                self.o += rest
                self.L(ljoin)
                comp = -1; W = W2
            if st["name"] in self.boosts: issue(W + self.boosts[st["name"]], W + self.boosts[st["name"]])
            self.o.append(f"    ; ---- {st['name']}")
            if not any(st["name"].startswith(p) for p in self.x_skip): st["fn"]()
            done.add(st["name"])
            after[st["name"]] = issued
            if st["name"] in self.stamp_after: self.stamp(self.stamp_after[st["name"]])
            if self.curve and st["name"] in self.curve:
                p = self.cpairs[1 + self.curve.index(st["name"])]; self.A(f"s_memrealtime s[{p}:{p+1}]")
        assert issued == len(items)

    def kd(self, name, vg, sg):
        return [f".amdhsa_kernel {name}", f"  .amdhsa_next_free_vgpr {vg}", f"  .amdhsa_next_free_sgpr {sg}",
                f"  .amdhsa_accum_offset {vg}", "  .amdhsa_group_segment_fixed_size 0", "  .amdhsa_kernarg_size 104",
                "  .amdhsa_user_sgpr_count 2", "  .amdhsa_user_sgpr_kernarg_segment_ptr 1",
                "  .amdhsa_system_sgpr_workgroup_id_x 1", ".end_amdhsa_kernel"]

    def build(self):
        A = self.A
        K1 = NAME + "_kernel"; K2 = "gated_mix_reduce_kernel"
        o = self.o
        o.append(HEADER.rstrip("\n"))
        if self.two_kernel:
            o.append(f"; @launch kernel={K1} grid=(256,1,1) block=(512,1,1) lds={LDS_BYTES}")
            o.append(f"; @launch kernel={K2} grid=(256,1,1) block=(64,1,1) lds=0")
        else:
            o.append(f"; @launch grid=(256,1,1) block=(512,1,1) lds={LDS_BYTES}")
        o += ['.amdgcn_target "amdgcn-amd-amdhsa--gfx950"', ".text", f".globl {K1}", ".p2align 8",
              f".type {K1},@function", f"{K1}:"]
        self.phase0()
        if self.W_even is not None:
            A(f"s_and_b32 {sT0}, {sXCC}, 1"); A("s_cbranch_scc1 L_odd")
            self.schedule(self.W_even, self.W2_even)
            A("s_branch L_join")
            self.L("L_odd")
            self.schedule(self.W, self.W2)
            self.L("L_join")
        else:
            self.schedule(self.W, self.W2)
        if self.curve:
            A("s_waitcnt lgkmcnt(0)")
            A(f"s_add_u32 s0, s40, {STAMP_OFF + 65536}"); A("s_addc_u32 s1, s41, 0")
            A(f"s_lshl_b32 s8, s2, 3"); A(f"s_add_u32 s8, s8, {sW}"); A("s_lshl_b32 s8, s8, 6")
            A("v_mov_b32 v112, s8")
            for k in range(16): A(f"v_mov_b32 v{116+k}, s{self.cpairs[k] if k < 15 else 90}")
            A("s_mov_b64 exec, 1")
            for k in range(4): A(f"global_store_dwordx4 v112, v[{116+4*k}:{119+4*k}], s[0:1] offset:{16*k}")
            A("s_mov_b64 exec, -1")
        A(f"s_cmp_lg_u32 {sW}, 0"); A("s_cbranch_scc1 L_end")
        if not self.two_kernel:
            self.consumer()
        if self.fixdur:
            A(f"s_mov_b32 s96, {self.fixdur}")
            if self.probe:
                if self.probe.get("wg") is not None:
                    A(f"s_cmp_lg_u32 s2, {self.probe['wg']}"); A("s_cbranch_scc1 L_end")
                A("s_waitcnt lgkmcnt(0)")
                A("s_sub_u32 s97, s98, s92"); A(f"s_mul_i32 s97, s97, {self.probe['m']}"); A("s_add_u32 s96, s96, s97")
            self.L("L_fix")
            A("s_memrealtime s[94:95]")
            A("s_waitcnt lgkmcnt(0)")
            A("s_sub_u32 s94, s94, s92")
            A(f"s_cmp_lt_u32 s94, s96")
            A("s_cbranch_scc1 L_fix")
        elif self.stamps and not self.curve:
            self.stamp(4)
            A("s_mov_b64 exec, 1")
            A("s_waitcnt lgkmcnt(0)")
            A(f"s_add_u32 s40, s40, {STAMP_OFF}"); A("s_addc_u32 s41, s41, 0")
            A("s_lshl_b32 s8, s2, 6"); A("v_mov_b32 v1, s8")
            for k in range(4):
                A(f"v_mov_b32 v{8+2*k}, s{sST+2*k}"); A(f"v_mov_b32 v{9+2*k}, s{sST+2*k+1}")
            A(f"v_mov_b32 v16, {sXCC}"); A("v_mov_b32 v17, 0")
            A(f"v_mov_b32 v18, s{sST+8}"); A(f"v_mov_b32 v19, s{sST+9}")
            A("global_store_dwordx4 v1, v[8:11], s[40:41]")
            A("global_store_dwordx4 v1, v[12:15], s[40:41] offset:16")
            A("global_store_dwordx4 v1, v[16:19], s[40:41] offset:32")
        self.L("L_end"); A("s_endpgm")
        if self.cpf: o.append(f".fill (16384 - (. - {K1})) / 4, 4, 0xbf810000")
        if self.two_kernel:
            o += [f".globl {K2}", ".p2align 8", f".type {K2},@function", f"{K2}:"]
            A("s_cmp_ge_u32 s2, 256"); A("s_cbranch_scc1 L_end2")
            A(f"s_load_dwordx2 s[{P_OUT}:{P_OUT+1}], s[0:1], 80")
            A(f"s_load_dwordx2 s[{P_WS}:{P_WS+1}], s[0:1], 96")
            t = vTM
            A(f"v_bfe_u32 v{vG}, v0, 4, 2")
            A(f"v_lshlrev_b32 v{vOD}, 4, v0")
            A(f"s_lshl_b32 {sTQ}, s2, 11")
            A(f"v_and_b32 v{t}, 1, v{vG}"); A(f"v_lshrrev_b32 v{t+1}, 1, v{vG}")
            A(f"v_lshl_add_u32 v{t}, v{t}, 1, v{t+1}")
            A(f"s_lshl_b32 {sT1}, s2, 3")
            A(f"v_lshl_add_u32 v{vT1}, v{t}, 1, {sT1}")
            A("s_waitcnt lgkmcnt(0)")
            self.mk(R_WS, P_WS, None, WS_BYTES)
            self.consumer(poll=False)
            self.L("L_end2"); A("s_endpgm")
        o += ['.section .rodata,"a"', ".p2align 6"] + self.kd(K1, 256, 102)
        if self.two_kernel:
            o += [".p2align 6"] + self.kd(K2, 112, 102)
        return "\n".join(o) + "\n"

if __name__ == "__main__":
    import argparse, json
    ap = argparse.ArgumentParser()
    ap.add_argument("out"); ap.add_argument("--opt", default="{}")
    a = ap.parse_args()
    open(a.out, "w").write(Gen(**json.loads(a.opt)).build())
```

```python
import sys, struct, math

NAME = "gated_mix__mha_block_cached__geglu_ffn__decode"
HEADER = open("cdna_kernels/" + NAME + ".s.ref").read().split("; Override launch")[0]

def f32(x):
    return "0x%08x" % struct.unpack("<I", struct.pack("<f", x))[0]

L_QS = 0
L_HS = 256
L_GS = 320
L_FS = 336
L_RK = 340
L_MX = 384
L_LS = 448
L_OB = 512
L_YF = 3072
L_WD = 5120
L_WO = L_WD + 16384
L_END = L_WO + 131072
LDS_BYTES = (L_END + 255) // 256 * 256

WS_Y = 0
WS_S = 0x80000
WS_Q = 0x89000
WS_F = WS_Q + 0x40000
WS_M = WS_F + 176 * 1024
WS_BYTES = WS_M
WS_MB = 0x81000
STAMP_OFF = 128 << 20
SPIN = "0x4000"

sW = "s3"
P_X, P_K, P_V, P_WQ, P_WO, P_WG, P_WU = 16, 18, 20, 22, 24, 28, 30
P_WD, P_GW, P_OUT, P_DBG, P_WS = 32, 34, 36, 38, 40
R_K, R_V, R_WQ, R_WO, R_X, R_GW, R_FT, R_WD, R_WS = 44, 48, 52, 56, 60, 64, 68, 76, 80
sH, sB, sS, sSL, sT0, sT1, sT2 = "s4", "s5", "s6", "s7", "s8", "s9", "s10"
sTK, sTV, sTQ, sTF, sTD = "s11", "s12", "s13", "s14", "s15"
sJ, sFT = "s72", "s73"
sDONE = sJ
sWOL, sWDL = "s84", "s85"
sDUP0, sDUP1 = "s86", "s87"
sC = "s88"; sCNT = "s89"; sXCC = "s90"; sBH = "s91"
sX0, sX1 = "s42", "s43"
sROT = "s74"
sTI = "s75"
sST = 92
def srd(r): return f"s[{r}:{r+3}]"

vL, vI, vG = 1, 2, 3
vOK, vOV, vOQ, vOW, vOF, vOD, vT0, vT1 = 4, 5, 6, 7, 8, 9, 10, 11
vM = 12
vXR = 16
vBF = 24
vACC = 32
vAC2 = 36
vQF = 40
vSP = 56
vDF = 88
vTM = 104
vFL = 111
vK = 112
vX = 240
vFG = vDF + 8
vFD = vK + 16
def vr(a, n): return f"v[{a}:{a+n-1}]"

class Gen:
    def __init__(self, W=5, W2=16, W_even=None, W2_even=None, two_kernel=False, stamps=False,
                 wo_sched=None, st_after="pv3", q_at="K6_3", boost=4, fga_pos="pv1", ffn_pos="pv5", sleep=32, curve=None, k0_late=True,
                 stamp_after=None, fixdur=0, svc=3, gsvc=2, hs=0, pub=1, probe=None, xmap=None, nx=6, cpf=0, x_skip=(), x_nohs=False, k0mode=0, x_noclear=False, x_noy=False, ylate=False, x_nowo=False, x_noffn=False, x_nowq=False, rot=None, lay=0, ybig=True, adapt=None, vx=0, tlbpf=0, cons=0, cthr=24, csleep=0, oflags="", yflags="sc1", hs_pre=12, hs_mid=10, npre=4, boosts=None):
        self.o = []
        self.__dict__.update(locals())
        self.wo_sched = wo_sched or [0, 0, 2, 2, 1, 2, 1, 2, 1, 2, 1, 2, 2, 0, 0, 0]
        assert sum(self.wo_sched) == 18
        self.cpairs = [92, 94, 96, 98, 100, 16, 18, 20, 22, 24, 26, 28, 30, 32, 34]
        if curve: self.stamps = True
        self.stamp_after = stamp_after if stamp_after is not None else ({} if curve else {"qred": 1, "pv7": 2, "tail": 3})
        self.lab = 0
        if probe: self.stamps = True; self.fixdur = probe['fix']; self.stamp_after = {probe['step']: 3}
        self.shS, self.shW, self.shG = {0: (18, 15, 12), 1: (18, 12, 15), 2: (15, 12, 17), 3: (12, 14, 17), 4: (15, 17, 12)}[lay]
        if lay and not rot: self.rot = [['w', 0]]
        self.boosts = boosts if boosts is not None else {'softmax': 4, 'wof': 4}
    def A(self, s): self.o.append("    " + s)
    def L(self, s): self.o.append(s + ":")
    def nop(self, n):
        while n > 0:
            k = min(n, 16); self.A(f"s_nop {k-1}"); n -= k
    def label(self, p):
        self.lab += 1; return f"L_{p}_{self.lab}"
    def stamp(self, k):
        if self.stamps: self.A(f"s_memrealtime s[{sST+2*k}:{sST+2*k+1}]")
    def only(self, w, fn):
        sk = self.label("skip")
        self.A(f"s_cmp_lg_u32 {sW}, {w}"); self.A(f"s_cbranch_scc1 {sk}")
        fn()
        self.L(sk)

    def swap_reduce(self, op, v, tmp, which):
        A = self.A
        A(f"v_mov_b32 v{tmp}, v{v}")
        self.nop(2)
        A(f"v_permlane{which}_swap_b32 v{v}, v{tmp}")
        self.nop(1)
        A(f"{op} v{v}, v{v}, v{tmp}")
    def dpp_add(self, v, ctl):
        self.nop(2)
        self.A(f"v_add_f32_dpp v{v}, v{v}, v{v} {ctl} row_mask:0xf bank_mask:0xf")
    def mk(self, r, p, off, size):
        A = self.A
        if off is None:
            A(f"s_mov_b32 s{r}, s{p}"); A(f"s_mov_b32 s{r+1}, s{p+1}")
        else:
            A(f"s_add_u32 s{r}, s{p}, {off}"); A(f"s_addc_u32 s{r+1}, s{p+1}, 0")
        if size is not None: A(f"s_mov_b32 s{r+2}, {size}")
        A(f"s_mov_b32 s{r+3}, 0x20000")

    def kv_load(self, kind, G, t):
        A = self.A
        st = sTK if kind == "K" else sTV
        if self.rot:
            if t == 0: A(f"s_xor_b32 {st}, {sROT}, {(G ^ (self.vx if kind == 'V' else 0)) << self.shG}")
            so = st
        else:
            if t == 0 and G > 0: A(f"s_movk_i32 {st}, {G*4096}")
            so = st if G > 0 else "0"
        if kind == "K":
            A(f"buffer_load_dwordx4 {vr(vK+16*G+4*t,4)}, v{vOK}, {srd(R_K)}, {so} offen offset:{(t>>1)*2048 + (t&1)*128} nt")
        else:
            dst = vX if G == 0 else vK + 16 * (G - 1)
            A(f"buffer_load_dwordx4 {vr(dst+4*t,4)}, v{vOV}, {srd(R_V)}, {so} offen offset:{256*t} nt")

    def bsel(self, src, half, bset):
        A = self.A
        t = vTM + 4 + bset
        A(f"v_perm_b32 v{t}, v{src}, v{src}, {sDUP1 if half else sDUP0}")
        for u in range(4): A(f"v_and_b32 v{vBF+4*bset+u}, v{t}, v{vM+u}")

    def phase0(self):
        A = self.A
        A("s_cmp_ge_u32 s2, 256")
        A("s_cbranch_scc1 L_end")
        A("s_load_dwordx16 s[16:31], s[0:1], 0")
        A("s_load_dwordx8 s[32:39], s[0:1], 64")
        A("s_load_dwordx2 s[40:41], s[0:1], 96")
        self.stamp(0)
        if self.fixdur and not self.probe: A("s_memrealtime s[92:93]")
        A("v_lshrrev_b32 v10, 6, v0")
        A(f"v_and_b32 v{vI}, 15, v0")
        A(f"v_readfirstlane_b32 {sW}, v10")
        A(f"v_bfe_u32 v{vG}, v0, 4, 2")
        A(f"s_and_b32 {sT0}, s2, 7")
        A(f"s_lshr_b32 {sT1}, s2, 3")
        A(f"s_and_b32 {sT2}, {sT1}, 3")
        A(f"s_lshl_b32 {sH}, {sT0}, 2")
        A(f"s_add_u32 {sH}, {sH}, {sT2}")
        A(f"s_lshr_b32 {sJ}, {sT1}, 2")
        A(f"s_and_b32 {sFT}, s2, 31")
        if self.xmap:
            A(f"s_lshl_b32 {sCNT}, {sT0}, 2"); A(f"s_lshr_b32 {sCNT}, {self.xmap}, {sCNT}"); A(f"s_and_b32 {sCNT}, {sCNT}, 15")
            A(f"s_mul_i32 {sTI}, {sT2}, {self.nx}"); A(f"s_add_u32 {sTI}, {sTI}, {sCNT}")
            A(f"s_cmp_eq_u32 {sCNT}, 15"); A(f"s_cselect_b32 {sTI}, 31, {sTI}")
        else:
            A(f"s_mov_b32 {sTI}, {sFT}")
        A(f"s_lshl_b32 {sTK}, {sJ}, 3"); A(f"s_add_u32 {sTK}, {sTK}, {sW}")
        A(f"s_lshl_b32 {sTV}, {sTK}, 4")
        A(f"s_lshl_b32 {sX0}, {sTK}, 16"); A(f"s_lshl_b32 {sTQ}, {sH}, 8"); A(f"s_add_u32 {sX0}, {sX0}, {sTQ}")
        A(f"s_cmp_ge_u32 {sTI}, 11")
        A(f"s_cselect_b32 {sX1}, 11, 0")
        A(f"s_sub_u32 {sX1}, {sTI}, {sX1}")
        A(f"s_lshl_b32 {sX1}, {sX1}, 8")
        A(f"s_mul_i32 {sTK}, {sTK}, {8*2752}")
        A(f"s_add_u32 {sX1}, {sX1}, {sTK}")
        A(f"s_sub_u32 s{R_FT+2}, {512*2752}, {sX1}")
        A(f"s_cmp_lt_u32 {sTI}, {0 if self.x_noffn else 22}")
        A(f"s_cselect_b32 s{R_FT+2}, s{R_FT+2}, 0")
        A(f"s_cselect_b32 {sX1}, {sX1}, 0")
        A(f"s_mov_b32 s{R_FT+3}, 0x20000")
        A(f"s_mov_b32 s{R_X+2}, 2048"); A(f"s_mov_b32 s{R_X+3}, 0x20000")
        A(f"s_mov_b32 s{R_WQ+2}, {0 if self.x_nowq else 7*8192+256}"); A(f"s_mov_b32 s{R_WQ+3}, 0x20000")
        A(f"s_movk_i32 {sTQ}, 8192")
        A(f"v_lshrrev_b32 v{vT0}, 3, v{vI}")
        A(f"v_lshlrev_b32 v{vT0}, 10, v{vT0}")
        A(f"v_lshl_add_u32 v{vT0}, v{vG}, 2, v{vT0}")
        A(f"v_lshlrev_b32 v{vT1}, 4, v{vI}")
        A(f"v_lshl_add_u32 v{vOQ}, v{vG}, 14, v{vT1}")
        A(f"v_mul_u32_u24 v{vOF}, {2*2752}, v{vG}")
        A(f"v_add_u32 v{vOF}, v{vOF}, v{vT1}")
        A(f"s_cmp_ge_u32 {sTI}, 11")
        A("s_waitcnt lgkmcnt(0)")
        A(f"s_cselect_b32 s{R_FT}, s{P_WU}, s{P_WG}"); A(f"s_cselect_b32 s{R_FT+1}, s{P_WU+1}, s{P_WG+1}")
        A(f"s_add_u32 s{R_WQ}, s{P_WQ}, {sX0}"); A(f"s_addc_u32 s{R_WQ+1}, s{P_WQ+1}, 0")
        A(f"buffer_load_dwordx4 {vr(vDF,4)}, v{vOQ}, {srd(R_WQ)}, 0 offen nt")
        A(f"buffer_load_dwordx4 {vr(vDF+4,4)}, v{vOQ}, {srd(R_WQ)}, {sTQ} offen nt")
        A(f"s_add_u32 s{R_FT}, s{R_FT}, {sX1}"); A(f"s_addc_u32 s{R_FT+1}, s{R_FT+1}, 0")
        A(f"buffer_load_dwordx4 {vr(vDF+8,4)}, v{vOF}, {srd(R_FT)}, 0 offen nt")
        A(f"buffer_load_dwordx4 {vr(vDF+12,4)}, v{vOF}, {srd(R_FT)}, 0 offen offset:2752 nt")
        A(f"s_mov_b32 s{R_X}, s{P_X}"); A(f"s_mov_b32 s{R_X+1}, s{P_X+1}")
        A(f"buffer_load_dword v{vXR}, v{vT0}, {srd(R_X)}, {sTV} offen")
        def clear():
            self.mk(R_WS, P_WS, None, WS_BYTES)
            c = vQF
            for k in range(4): A(f"v_mov_b32 v{c+k}, -1")
            A(f"v_and_b32 v{c+4}, 63, v0"); A(f"v_lshlrev_b32 v{c+4}, 4, v{c+4}")
            A(f"s_lshl_b32 {sTD}, {sH}, 3"); A(f"s_add_u32 {sTD}, {sTD}, {sJ}"); A(f"s_lshl_b32 {sTD}, {sTD}, 10")
            A(f"s_add_u32 {sTD}, {sTD}, {WS_Q}")
            (not self.x_noclear) and A(f"buffer_store_dwordx4 {vr(c,4)}, v{c+4}, {srd(R_WS)}, {sTD} offen sc1")
            A(f"s_lshl_b32 {sTD}, {sTI}, 3"); A(f"s_add_u32 {sTD}, {sTD}, {sJ}"); A(f"s_lshl_b32 {sTD}, {sTD}, 10")
            A(f"s_add_u32 {sTD}, {sTD}, {WS_F}")
            (not self.x_noclear) and A(f"buffer_store_dwordx4 {vr(c,4)}, v{c+4}, {srd(R_WS)}, {sTD} offen sc1")
            if not self.two_kernel and not self.x_noy:
                A(f"s_lshl_b32 {sTD}, s2, 11")
                (not self.x_noclear) and A(f"buffer_store_dwordx4 {vr(c,4)}, v{c+4}, {srd(R_WS)}, {sTD} offen sc1")
                (not self.x_noclear) and A(f"buffer_store_dwordx4 {vr(c,4)}, v{c+4}, {srd(R_WS)}, {sTD} offen offset:1024 sc1")
            A(f"s_lshr_b32 {sTD}, {sJ}, 2"); A(f"s_lshl_b32 {sTD}, {sTD}, 5"); A(f"s_add_u32 {sTD}, {sTD}, {sH}")
            A(f"s_lshl_b32 {sTD}, {sTD}, 2"); A(f"s_and_b32 {sTF}, {sJ}, 3"); A(f"s_add_u32 {sTD}, {sTD}, {sTF}")
            A(f"s_lshl_b32 {sTD}, {sTD}, 3"); A(f"s_add_u32 {sTD}, {sTD}, {WS_S}")
            A("s_mov_b64 exec, 1")
            A(f"buffer_store_dwordx2 {vr(c,2)}, v{c+4}, {srd(R_WS)}, {sTD} offen sc1")
            A(f"s_lshl_b32 {sTD}, s2, 7"); A(f"s_add_u32 {sTD}, {sTD}, {WS_MB}")
            A(f"buffer_store_dwordx2 {vr(c,2)}, v{c+4}, {srd(R_WS)}, {sTD} offen sc1")
            A("s_mov_b64 exec, -1")
        self.only(self.hs, clear)
        if self.cpf:
            def pf():
                A("s_getpc_b64 s[26:27]")
                self.L("L_pc")
                A(f"s_sub_u32 s26, s26, L_pc-{NAME}_kernel"); A("s_subb_u32 s27, s27, 0")
                if self.cpf == 1:
                    A(f"s_lshl_b32 {sTD}, {sT1}, 9")
                    A(f"v_and_b32 v{vQF+8}, 63, v0"); A(f"v_lshl_add_u32 v{vQF+8}, v{vQF+8}, 3, {sTD}")
                    A(f"global_load_dwordx2 v[{vQF+10}:{vQF+11}], v{vQF+8}, s[26:27]")
                else:
                    A(f"v_and_b32 v{vQF+8}, 63, v0"); A(f"v_lshlrev_b32 v{vQF+8}, 7, v{vQF+8}")
                    A(f"global_load_dword v{vQF+10}, v{vQF+8}, s[26:27]")
                    A(f"v_add_u32 v{vQF+8}, 8192, v{vQF+8}")
                    A(f"global_load_dword v{vQF+10}, v{vQF+8}, s[26:27]")
            self.only(7, pf)
        A(f"v_and_b32 v{vL}, 63, v0")
        A(f"s_lshr_b32 {sB}, {sJ}, 2")
        A(f"s_and_b32 {sS}, {sJ}, 3")
        A(f"s_lshl_b32 {sBH}, {sB}, 5"); A(f"s_add_u32 {sBH}, {sBH}, {sH}")
        A(f"v_and_b32 v{vOK}, 7, v0")
        A(f"v_lshlrev_b32 v{vOK}, 8, v{vOK}")
        A(f"v_lshl_add_u32 v{vOK}, v{vG}, 4, v{vOK}")
        A(f"v_and_b32 v{vOV}, 8, v0")
        A(f"v_lshl_add_u32 v{vOK}, v{vOV}, 3, v{vOK}")
        A(f"v_lshl_add_u32 v{vOV}, v{vG}, 10, v{vT1}")
        A(f"s_lshl_b32 {sTK}, {sBH}, 20")
        A(f"s_lshl_b32 {sTV}, {sS}, {self.shS}"); A(f"s_add_u32 {sTK}, {sTK}, {sTV}")
        A(f"s_lshl_b32 {sTV}, {sW}, {self.shW}"); A(f"s_add_u32 {sTK}, {sTK}, {sTV}")
        self.mk(R_K, P_K, sTK, (7 << self.shG) + 4096)
        if self.rot:
            regs = {"w": sW, "j": sJ, "h": sH, "x": sT0, "q": sT2, "b": sB, "s": sS}
            A(f"s_mov_b32 {sROT}, 0")
            for nm, mul in self.rot:
                A(f"s_mul_i32 {sTV}, {regs[nm]}, {mul}"); A(f"s_add_u32 {sROT}, {sROT}, {sTV}")
            A(f"s_and_b32 {sROT}, {sROT}, 7"); A(f"s_lshl_b32 {sROT}, {sROT}, {self.shG}")
        if self.k0mode == 1:
            lk = self.label("k0e")
            A(f"s_mov_b32 {sX1}, {sTK}")
            A(f"s_cmp_eq_u32 {sW}, {self.hs}"); A(f"s_cbranch_scc1 {lk}")
            for n in range(4 + self.npre): self.kv_load("K", n // 4, n % 4)
            self.L(lk)
            A(f"s_mov_b32 {sTK}, {sX1}")
        self.mk(R_V, P_V, sTK, (7 << self.shG) + 4096)
        self.mk(R_WS, P_WS, None, WS_BYTES)
        self.mk(R_GW, P_GW, None, 1024)
        A(f"s_and_b32 {sT1}, {sT1}, 15")
        per = -(-86 // self.nx) if self.xmap else 11
        A(f"s_mul_i32 {sSL}, {sCNT if self.xmap else sT0}, {per}")
        A(f"s_add_u32 {sSL}, {sSL}, {sT1}")
        A(f"s_cmp_lt_u32 {sT1}, {per}")
        A(f"s_cselect_b32 {sSL}, {sSL}, 1000")
        A(f"s_cmp_lt_u32 {sSL}, 86")
        A(f"s_cselect_b32 s{R_WD+2}, {0 if self.x_noffn else 15*1024+128}, 0")
        A(f"s_cselect_b32 {sSL}, {sSL}, 0")
        A(f"s_lshl_b32 {sT0}, {sSL}, 14"); A(f"s_lshl_b32 {sT1}, {sW}, 7"); A(f"s_add_u32 {sT0}, {sT0}, {sT1}")
        self.mk(R_WD, P_WD, sT0, None)
        A(f"s_lshl_b32 {sT0}, {sH}, 17"); A(f"s_add_u32 {sT0}, {sT0}, {sT1}")
        self.mk(R_WO, P_WO, sT0, 0 if self.x_nowo else 127 * 1024 + 128)
        A(f"v_lshlrev_b32 v{vT1}, 4, v{vL}")
        if self.tlbpf:
            def pf():
                A(f"v_mov_b32 v{vQF+8}, 0")
                A("s_mov_b64 exec, 1")
                A(f"buffer_load_dword v{vQF+9}, v{vQF+8}, {srd(R_V)}, 0 offen nt")
                A(f"buffer_load_dword v{vQF+9}, v{vQF+8}, {srd(R_WO)}, 0 offen nt")
                A(f"buffer_load_dword v{vQF+9}, v{vQF+8}, {srd(R_WD)}, 0 offen nt")
                if self.tlbpf > 1:
                    A(f"buffer_load_dword v{vQF+9}, v{vQF+8}, {srd(R_K)}, 0 offen nt")
                    A(f"global_load_dword v{vQF+9}, v{vQF+8}, s[{P_OUT}:{P_OUT+1}]")
                A("s_mov_b64 exec, -1")
            self.only(6, pf)
        t = vTM + 4
        A(f"v_and_b32 v{t}, 7, v{vL}")
        A(f"v_lshlrev_b32 v{t}, 4, v{t}")
        A(f"v_lshrrev_b32 v{t+1}, 3, v{vL}")
        A(f"v_lshl_add_u32 v{vOD}, v{t+1}, 10, v{t}")
        A(f"v_and_b32 v{t+2}, 3, v{t+1}")
        A(f"v_lshlrev_b32 v{t+2}, 3, v{t+2}")
        A(f"v_lshrrev_b32 v{t+1}, 2, v{t+1}")
        A(f"v_add_u32 v{t+1}, v{t+1}, v{t+2}")
        A(f"v_lshl_add_u32 v{vOW}, v{t+1}, 10, v{t}")
        A(f"s_lshl_b32 {sWOL}, {sW}, 14"); A(f"s_add_u32 {sWOL}, {sWOL}, {L_WO}")
        A(f"s_lshl_b32 {sWDL}, {sW}, 11"); A(f"s_add_u32 {sWDL}, {sWDL}, {L_WD}")
        A(f"v_and_b32 v{t}, 1, v{vI}")
        A(f"v_lshlrev_b32 v{t}, 4, v{t}")
        A(f"v_mov_b32 v{t+1}, 0xffff")
        A(f"v_lshlrev_b32 v{t+1}, v{t}, v{t+1}")
        A(f"v_bfe_u32 v{t}, v{vI}, 1, 2")
        for u in range(4):
            A(f"v_cmp_eq_u32 vcc, {u}, v{t}")
            self.nop(2)
            A(f"v_cndmask_b32 v{vM+u}, 0, v{t+1}, vcc")
        A(f"s_mov_b32 {sDUP0}, 0x01000100"); A(f"s_mov_b32 {sDUP1}, 0x03020302")
        A(f"s_mov_b32 {sC}, {f32(math.log2(math.e) / math.sqrt(128.0))}")
        A(f"s_getreg_b32 {sXCC}, hwreg(HW_REG_XCC_ID)")
        A(f"s_add_u32 {sT0}, {sWOL}, {14*1024}")
        A(f"v_lshl_add_u32 v{vT0}, v{vL}, 4, {sT0}")
        lo = self.label("p0o"); lj = self.label("p0j")
        A(f"s_cmp_lg_u32 {sW}, {self.hs if not self.x_nohs else 9}"); A(f"s_cbranch_scc1 {lo}")
        A(f"s_lshl_b32 {sTF}, {sFT}, 3")
        A(f"v_mov_b32 v{vQF+5}, {sTF}"); A(f"v_mov_b32 v{vQF+6}, 1")
        A("s_waitcnt vmcnt(0)")
        A("s_mov_b64 exec, 1")
        A(f"global_atomic_add v{vFL}, v{vQF+5}, v{vQF+6}, s[{P_DBG}:{P_DBG+1}] sc0")
        A("s_mov_b64 exec, -1")
        A(f"s_branch {lj}")
        self.L(lo)
        if self.k0mode == 1:
            if (4 + self.npre) % 4: A(f"s_xor_b32 {sTK}, {sROT}, {((4 + self.npre) // 4) << self.shG}")
            A(f"s_waitcnt vmcnt({4 + self.npre})")
        else:
            for t in range(4):
                A(f"s_waitcnt vmcnt({[3,2,2,3][t]})")
                self.kv_load("K", 0, t)
            for n in range(self.npre): self.kv_load("K", 1 + n // 4, n % 4)
        self.L(lj)
        if self.curve and "p0" in self.curve:
            p = self.cpairs[1 + self.curve.index("p0")]; A(f"s_memrealtime s[{p}:{p+1}]")
        self.bsel(vXR, 0, 0); self.bsel(vXR, 1, 1)
        self.nop(1)
        A(f"v_mfma_f32_16x16x32_bf16 {vr(vACC,4)}, {vr(vDF,4)}, {vr(vBF,4)}, 0")
        A(f"v_mfma_f32_16x16x32_bf16 {vr(vAC2,4)}, {vr(vDF+8,4)}, {vr(vBF,4)}, 0")
        A(f"v_mfma_f32_16x16x32_bf16 {vr(vACC,4)}, {vr(vDF+4,4)}, {vr(vBF+4,4)}, {vr(vACC,4)}")
        A(f"v_mfma_f32_16x16x32_bf16 {vr(vAC2,4)}, {vr(vDF+12,4)}, {vr(vBF+4,4)}, {vr(vAC2,4)}")
        self.nop(8)
        A(f"ds_write_b128 v{vT0}, {vr(vACC,4)}")
        A(f"ds_write_b128 v{vT0}, {vr(vAC2,4)} offset:1024")
        A("s_waitcnt lgkmcnt(0)")
        A("s_barrier")
        if self.curve and "bar" in self.curve:
            p = self.cpairs[1 + self.curve.index("bar")]; A(f"s_memrealtime s[{p}:{p+1}]")
        def publish():
            d = vSP; d2 = vK + 96
            A(f"v_add_u32 v{vT0}, {L_WO + 14*1024}, v{vT1}")
            A(f"v_add_u32 v{vTM}, 0x10000, v{vT0}")
            for w in range(8): A(f"ds_read_b128 {vr(d+4*w,4)}, v{vT0 if w < 4 else vTM} offset:{16384*(w&3)}")
            for w in range(4): A(f"ds_read_b128 {vr(d2+4*w,4)}, v{vT0} offset:{1024+16384*w}")
            A(f"s_lshl_b32 {sT0}, {sH}, 3"); A(f"s_add_u32 {sT0}, {sT0}, {sJ}"); A(f"s_lshl_b32 {sT0}, {sT0}, 10")
            A(f"s_add_u32 {sT0}, {sT0}, {WS_Q}")
            A(f"s_lshl_b32 {sT1}, {sTI}, 3"); A(f"s_add_u32 {sT1}, {sT1}, {sJ}"); A(f"s_lshl_b32 {sT1}, {sT1}, 10")
            A(f"s_add_u32 {sT1}, {sT1}, {WS_F}")
            A("s_waitcnt lgkmcnt(4)")
            for w in range(4, 8): A(f"ds_read_b128 {vr(d2+4*w,4)}, v{vTM} offset:{1024+16384*(w&3)}")
            for w in range(1, 8):
                for r in range(4): A(f"v_add_f32 v{d+r}, v{d+r}, v{d+4*w+r}")
            for r in range(4): A(f"v_min_u32 v{d+r}, -2, v{d+r}")
            A(f"buffer_store_dwordx4 {vr(d,4)}, v{vT1}, {srd(R_WS)}, {sT0} offen sc1")
            A("s_waitcnt lgkmcnt(0)")
            for w in range(1, 8):
                for r in range(4): A(f"v_add_f32 v{d2+r}, v{d2+r}, v{d2+4*w+r}")
            for r in range(4): A(f"v_min_u32 v{d2+r}, -2, v{d2+r}")
            A(f"buffer_store_dwordx4 {vr(d2,4)}, v{vT1}, {srd(R_WS)}, {sT1} offen sc1")
            if self.curve: A(f"s_memrealtime s[{self.cpairs[1]}:{self.cpairs[1]+1}]")
            self.nop(2)
        self.only(self.pub, publish)

    def bcast(self):
        A = self.A
        sk = self.label("nobc")
        A(f"v_lshlrev_b32 v{vQF+4}, 12, v{vL}"); A(f"v_mov_b32 v{vQF+6}, 1")
        A(f"s_lshl_b32 {sT0}, {sFT}, 7"); A(f"s_add_u32 {sT0}, {sT0}, {WS_MB}")
        A("s_waitcnt vmcnt(0)")
        if self.curve: A(f"s_memrealtime s[{self.cpairs[2]}:{self.cpairs[2]+1}]")
        A(f"v_readfirstlane_b32 {sT1}, v{vFL}")
        self.nop(3)
        A(f"s_and_b32 {sFT}, {sT1}, 7"); A(f"s_cmp_lg_u32 {sFT}, 7"); A(f"s_cbranch_scc1 {sk}")
        A("s_mov_b32 exec_lo, 0xff"); A("s_mov_b32 exec_hi, 0")
        A(f"buffer_store_dword v{vQF+6}, v{vQF+4}, {srd(R_WS)}, {sT0} offen sc1")
        A("s_mov_b64 exec, -1")
        self.L(sk)

    def q_gather(self, pre, mid):
        A = self.A
        go = self.label("go"); sp = self.label("mbspin"); gs = self.label("gaspin"); ok = self.label("gaok"); chk = self.label("gachk")
        A(f"s_mov_b32 {sCNT}, 0")
        A(f"s_mov_b32 {sX0}, {sTD}")
        pre()
        self.ga_addr()
        A(f"s_add_u32 {sT1}, {sT0}, 4096")
        A(f"s_cmp_eq_u32 {sFT}, 7"); A(f"s_cbranch_scc1 {go}")
        self.L(sp)
        A("s_mov_b64 exec, 1")
        A(f"buffer_load_dword v{vFL}, v{vT1}, {srd(R_WS)}, {sX0} offen sc1")
        A("s_mov_b64 exec, -1")
        A(f"s_add_u32 {sCNT}, {sCNT}, 1")
        A("s_waitcnt vmcnt(0)")
        A(f"v_readfirstlane_b32 {sTF}, v{vFL}")
        A(f"s_cmp_ge_u32 {sCNT}, {SPIN}"); A(f"s_cbranch_scc1 {go}")
        A(f"s_cmp_lg_u32 {sTF}, 1"); A(f"s_cbranch_scc1 {sp}")
        self.L(go)
        if self.curve: A(f"s_memrealtime s[{self.cpairs[3]}:{self.cpairs[3]+1}]")
        def loads():
            for k in range(4):
                A(f"buffer_load_dwordx4 {vr(vSP+4*k,4)}, v{vTM}, {srd(R_WS)}, {sT0 if k < 2 else sT1} offen offset:{(k&1)*2048} sc1")
        loads()
        n = mid()
        A(f"s_waitcnt vmcnt({n})")
        A(f"s_branch {chk}")
        self.L(gs)
        loads()
        A(f"s_add_u32 {sCNT}, {sCNT}, 1")
        A(f"s_cmp_ge_u32 {sCNT}, {SPIN}")
        A("s_waitcnt vmcnt(0)")
        A(f"s_cbranch_scc1 {ok}")
        self.L(chk)
        t = vTM + 2
        A(f"v_max3_u32 v{t}, v{vSP}, v{vSP+1}, v{vSP+2}")
        for k in range(3, 15, 2): A(f"v_max3_u32 v{t}, v{t}, v{vSP+k}, v{vSP+k+1}")
        A(f"v_max_u32 v{t}, v{t}, v{vSP+15}")
        A(f"v_cmp_eq_u32 vcc, -1, v{t}")
        A(f"s_cbranch_vccnz {gs}")
        self.L(ok)

    def ga_addr(self):
        A = self.A
        t = vTM
        A(f"s_lshl_b32 {sT0}, {sH}, 13"); A(f"s_lshl_b32 {sT1}, {sB}, 7"); A(f"s_add_u32 {sT0}, {sT0}, {sT1}")
        A(f"s_add_u32 {sT0}, {sT0}, {WS_Q}")
        A(f"v_and_b32 v{t}, 7, v{vL}"); A(f"v_lshlrev_b32 v{t}, 4, v{t}")
        A(f"v_bfe_u32 v{t+1}, v{vL}, 3, 2"); A(f"v_lshl_add_u32 v{t}, v{t+1}, 8, v{t}")
        A(f"v_lshrrev_b32 v{t+1}, 5, v{vL}"); A(f"v_lshl_add_u32 v{t}, v{t+1}, 10, v{t}")

    def q_reduce(self):
        A = self.A
        t = vTM
        d = vSP
        for k in range(1, 4):
            for r in range(4): A(f"v_add_f32 v{d+r}, v{d+r}, v{d+4*k+r}")
        A(f"v_and_b32 v{t+1}, 7, v{vL}")
        A(f"v_lshrrev_b32 v{t+2}, 5, v{vL}")
        A(f"v_permlane32_swap_b32 v{d}, v{d+1}"); A(f"v_permlane32_swap_b32 v{d+2}, v{d+3}")
        A(f"v_lshl_add_u32 v{t+1}, v{t+2}, 3, v{t+1}")
        A(f"v_add_f32 v{d}, v{d}, v{d+1}"); A(f"v_add_f32 v{d+2}, v{d+2}, v{d+3}")
        A(f"v_cvt_pk_bf16_f32 v{d}, v{d}, v{d+2}")
        A(f"v_bfe_u32 v{t}, v{vL}, 3, 2")
        A(f"v_lshl_add_u32 v{t}, v{t}, 5, v{t+1}")
        A(f"v_lshlrev_b32 v{t}, 1, v{t}")
        A(f"ds_write_b16 v{t}, v{d} offset:{L_QS}")
        A(f"ds_write_b16_d16_hi v{t}, v{d} offset:{L_QS+32}")

    def items(self):
        A = self.A
        it = []
        def add(name, fn, dep=None): it.append(dict(name=name, fn=fn, dep=dep))
        def grp(kind, G, dep):
            for t in range(4): add(f"{kind}{G}_{t}", lambda t=t: self.kv_load(kind, G, t), dep if t == 0 else None)
        wd = []
        for t in range(2):
            def fn(t=t):
                A(f"s_add_u32 m0, {sWDL}, {t*1024}")
                A(f"s_movk_i32 {sTD}, {t*8192}")
                A(f"buffer_load_dwordx4 v{vOD}, {srd(R_WD)}, {sTD} offen nt lds")
            wd.append((f"wd{t}", fn, None))
        wo = []
        for t in range(16):
            def fn(t=t):
                A(f"s_add_u32 m0, {sWOL}, {t*1024}")
                A(f"s_mov_b32 {sTD}, {(32*(t>>2) + 2*(t&3))*1024}")
                A(f"buffer_load_dwordx4 v{vOW}, {srd(R_WO)}, {sTD} offen nt lds")
            wo.append((f"wo{t}", fn, "qred" if t >= 14 else None))
        dma = wo[:4] + wd + wo[4:]
        def put(slot):
            for _ in range(self.wo_sched[slot]):
                n, fn, dep = dma.pop(0); add(n, fn, dep)
        for G in range(8): grp("K", G, None); put(G)
        for G in range(8): grp("V", G, (self.st_after if G == 7 else f"qk{G-1}") if G else None); put(8 + G)
        return it

    def step_gate0(self):
        A = self.A
        def fn():
            A(f"s_lshl_b32 {sT1}, {sB}, 10")
            A(f"buffer_load_dwordx4 {vr(vXR,4)}, v{vT1}, {srd(R_X)}, {sT1} offen")
            A(f"buffer_load_dwordx4 {vr(vXR+4,4)}, v{vT1}, {srd(R_GW)}, 0 offen")
        self.only(self.gsvc, fn)
    def step_gate(self):
        A = self.A
        def fn():
            x, w = vXR, vXR + 4
            t = vTM
            acc = vT0
            A(f"v_mov_b32 v{acc}, 0")
            for k in range(4):
                A(f"v_lshlrev_b32 v{t}, 16, v{x+k}"); A(f"v_lshlrev_b32 v{t+1}, 16, v{w+k}")
                A(f"v_and_b32 v{t+2}, 0xffff0000, v{x+k}"); A(f"v_and_b32 v{t+3}, 0xffff0000, v{w+k}")
                A(f"v_mul_f32 v{t}, v{t}, v{t+1}"); A(f"v_mul_f32 v{t+2}, v{t+2}, v{t+3}")
                A(f"v_cvt_pk_bf16_f32 v{t}, v{t}, v{t+2}")
                A(f"v_lshlrev_b32 v{t+1}, 16, v{t}"); A(f"v_and_b32 v{t}, 0xffff0000, v{t}")
                A(f"v_add_f32 v{acc}, v{acc}, v{t+1}"); A(f"v_add_f32 v{acc}, v{acc}, v{t}")
            for ctl in ("quad_perm:[1,0,3,2]", "quad_perm:[2,3,0,1]", "row_half_mirror", "row_mirror"):
                self.dpp_add(acc, ctl)
            self.swap_reduce("v_add_f32", acc, t, 16)
            self.swap_reduce("v_add_f32", acc, t, 32)
            A(f"v_cvt_pk_bf16_f32 v{acc}, v{acc}, v{acc}")
            A(f"v_and_b32 v{acc}, 0xffff0000, v{acc}")
            A(f"v_mul_f32 v{acc}, {f32(-math.log2(math.e))}, v{acc}")
            A(f"v_exp_f32 v{acc}, v{acc}")
            self.nop(1)
            A(f"v_add_f32 v{acc}, 1.0, v{acc}")
            A(f"v_rcp_f32 v{acc}, v{acc}")
            self.nop(1)
            A(f"v_cvt_pk_bf16_f32 v{acc}, v{acc}, v{acc}")
            A(f"v_and_b32 v{t}, 0xffff0000, v{acc}")
            A(f"v_sub_f32 v{t+1}, 1.0, v{t}")
            A(f"v_cvt_pk_bf16_f32 v{t+1}, v{t+1}, v{t+1}")
            A(f"v_and_b32 v{t+1}, 0xffff0000, v{t+1}")
            A(f"v_mov_b32 v{t+2}, 0")
            A(f"ds_write_b64 v{t+2}, {vr(t,2)} offset:{L_GS}")
        self.only(self.gsvc, fn)

    def fl_load(self):
        A = self.A
        A(f"v_and_b32 v{vT0}, 31, v{vL}"); A(f"v_lshlrev_b32 v{vT0}, 3, v{vT0}")
        A(f"global_load_dword v{vFL}, v{vT0}, s[{P_DBG}:{P_DBG+1}] sc1")
    def step_fl(self):
        A = self.A
        def fn():
            self.fl_load()
            if self.adapt:
                t = vTM
                A(f"v_mov_b32 v{t}, 0"); A(f"v_mov_b32 v{t+1}, 2")
                A(f"s_lshl_b32 {sT0}, s2, 7"); A(f"s_add_u32 {sT0}, {sT0}, {WS_MB + 4}")
                A("s_mov_b64 exec, 1")
                A(f"buffer_store_dword v{t+1}, v{t}, {srd(R_WS)}, {sT0} offen sc1")
                A("s_mov_b64 exec, -1")
                A(f"s_lshr_b32 {sT0}, s2, 3"); A(f"s_and_b32 {sT0}, {sT0}, 3"); A(f"s_lshl_b32 {sT0}, {sT0}, 10")
                A(f"s_add_u32 {sT0}, {sT0}, {WS_MB + 4}")
                A(f"v_and_b32 v{t}, 7, v{vL}"); A(f"v_lshlrev_b32 v{t}, 7, v{t}")
                A(f"v_lshrrev_b32 v{t+1}, 3, v{vL}"); A(f"v_lshl_add_u32 v{t}, v{t+1}, 12, v{t}")
                A(f"buffer_load_dword v{vFG}, v{t}, {srd(R_WS)}, {sT0} offen sc1")
        self.only(self.svc, fn)
    def step_rank(self):
        A = self.A
        def fn():
            t = vTM
            A(f"v_cmp_eq_u32 s[52:53], 2, v{vFG}")
            A(f"v_cmp_gt_u32 vcc, 8, v{vFL}")
            A(f"s_bcnt1_i32_b64 {sT0}, s[52:53]")
            A(f"s_cmp_lg_u64 vcc, 0")
            A(f"s_cselect_b32 {sT0}, 64, {sT0}")
            A(f"v_mov_b32 v{t}, 0"); A(f"v_mov_b32 v{t+1}, {sT0}")
            A(f"ds_write_b32 v{t}, v{t+1} offset:{L_RK}")
        self.only(self.svc, fn)
    def step_fga(self):
        A = self.A
        def fn():
            ok = self.label("flok"); sp = self.label("flspin")
            A(f"v_cmp_gt_u32 vcc, 8, v{vFL}")
            A(f"s_cbranch_vccz {ok}")
            A(f"s_mov_b32 {sCNT}, 0")
            self.L(sp)
            A(f"s_sleep {self.sleep}")
            self.fl_load()
            A(f"s_add_u32 {sCNT}, {sCNT}, 1")
            A(f"s_cmp_ge_u32 {sCNT}, {SPIN}")
            A("s_waitcnt vmcnt(0)")
            A(f"s_cbranch_scc1 {ok}")
            A(f"v_cmp_gt_u32 vcc, 8, v{vFL}")
            A(f"s_cbranch_vccnz {sp}")
            self.L(ok)
            self.fg_load()
        self.only(self.svc, fn)
    def fg_load(self):
        A = self.A
        A(f"s_lshr_b32 {sT0}, {sSL}, 3"); A(f"s_lshl_b32 {sT0}, {sT0}, 13")
        A(f"s_lshl_b32 {sT1}, {sB}, 7"); A(f"s_add_u32 {sT0}, {sT0}, {sT1}")
        A(f"s_bfe_u32 {sT1}, {sSL}, 0x20001"); A(f"s_lshl_b32 {sT1}, {sT1}, 8"); A(f"s_add_u32 {sT0}, {sT0}, {sT1}")
        A(f"s_and_b32 {sT1}, {sSL}, 1"); A(f"s_lshl_b32 {sT1}, {sT1}, 3"); A(f"s_add_u32 {sT0}, {sT0}, {sT1}")
        A(f"s_add_u32 {sT0}, {sT0}, {WS_F}")
        A(f"v_and_b32 v{vT0}, 7, v{vL}"); A(f"v_lshlrev_b32 v{vT0}, 4, v{vT0}")
        A(f"v_lshrrev_b32 v{vTM}, 3, v{vL}"); A(f"v_lshl_add_u32 v{vT0}, v{vTM}, 10, v{vT0}")
        A(f"buffer_load_dwordx2 {vr(vFG,2)}, v{vT0}, {srd(R_WS)}, {sT0} offen sc1")
        A(f"s_add_u32 {sT0}, {sT0}, {11*8192}")
        A(f"buffer_load_dwordx2 {vr(vFG+2,2)}, v{vT0}, {srd(R_WS)}, {sT0} offen sc1")
    def step_ffn2(self):
        A = self.A
        t = vTM
        def fn():
            e = vFG
            ok = self.label("fgok"); sp = self.label("fgspin")
            A(f"s_mov_b32 {sCNT}, 0")
            self.L(sp)
            A(f"v_max3_u32 v{t}, v{e}, v{e+1}, v{e+2}"); A(f"v_max_u32 v{t}, v{t}, v{e+3}")
            A(f"v_cmp_eq_u32 vcc, -1, v{t}")
            A(f"s_cbranch_vccz {ok}")
            self.fg_load()
            A(f"s_add_u32 {sCNT}, {sCNT}, 1")
            A(f"s_cmp_lt_u32 {sCNT}, {SPIN}")
            A("s_waitcnt vmcnt(0)")
            A(f"s_cbranch_scc1 {sp}")
            self.L(ok)
            A(f"v_permlane32_swap_b32 v{e}, v{e+1}"); A(f"v_permlane32_swap_b32 v{e+2}, v{e+3}")
            self.nop(1)
            A(f"v_add_f32 v{e}, v{e}, v{e+1}"); A(f"v_add_f32 v{e+2}, v{e+2}, v{e+3}")
            self.swap_reduce("v_add_f32", e, e + 1, 16)
            self.swap_reduce("v_add_f32", e + 2, e + 3, 16)
            self.dpp_add(e, "row_ror:8"); self.dpp_add(e + 2, "row_ror:8")
            A(f"v_cvt_pk_bf16_f32 v{e}, v{e}, v{e+2}")
            A(f"v_and_b32 v{e+2}, 0xffff0000, v{e}")
            A(f"v_lshlrev_b32 v{e}, 16, v{e}")
            k0 = math.sqrt(2.0 / math.pi)
            A(f"v_mul_f32 v{e+1}, v{e}, v{e}")
            A(f"v_mov_b32 v{e+3}, {f32(-2.0 * k0 * math.log2(math.e))}")
            A(f"v_mul_f32 v{e+1}, {f32(0.044715)}, v{e+1}")
            A(f"v_add_f32 v{e+1}, 1.0, v{e+1}")
            A(f"v_mul_f32 v{e+1}, v{e+1}, v{e}")
            A(f"v_mul_f32 v{e+1}, v{e+1}, v{e+3}")
            A(f"v_exp_f32 v{e+1}, v{e+1}")
            self.nop(1)
            A(f"v_add_f32 v{e+1}, 1.0, v{e+1}")
            A(f"v_rcp_f32 v{e+1}, v{e+1}")
            self.nop(1)
            A(f"v_mul_f32 v{e}, v{e}, v{e+1}")
            A(f"v_cvt_pk_bf16_f32 v{e}, v{e}, v{e}")
            A(f"v_and_b32 v{e}, 0xffff0000, v{e}")
            A(f"v_mul_f32 v{e}, v{e}, v{e+2}")
            A(f"v_cvt_pk_bf16_f32 v{e}, v{e}, v{e}")
            A(f"v_and_b32 v{t+1}, 7, v{vL}"); A(f"v_lshrrev_b32 v{t+2}, 5, v{vL}")
            A(f"v_lshl_add_u32 v{t+1}, v{t+2}, 3, v{t+1}")
            A(f"v_lshlrev_b32 v{t+1}, 1, v{t+1}")
            A(f"ds_write_b16 v{t+1}, v{e} offset:{L_HS}")
            A(f"v_lshlrev_b32 v{t+1}, 3, v{vG}")
            A(f"v_mov_b32 v{t+3}, 0")
            A("s_waitcnt lgkmcnt(0)")
            A(f"ds_read_b64 {vr(e,2)}, v{t+1} offset:{L_HS}")
            A(f"ds_read_b32 v{e+2}, v{t+3} offset:{L_GS+4}")
            A(f"v_lshrrev_b32 v{t}, 2, v{vI}"); A(f"v_and_b32 v{t+1}, 3, v{vI}")
            A(f"v_lshlrev_b32 v{t+1}, 3, v{t+1}")
            A(f"v_lshl_add_u32 v{t+1}, v{t}, 7, v{t+1}")
            A(f"v_lshl_add_u32 v{t+1}, v{vG}, 9, v{t+1}")
            A(f"v_lshlrev_b32 v{t+2}, 2, v{vL}")
            for k in range(1, 4): A(f"v_cmp_eq_u32 {['', 's[52:53]', 's[54:55]', 's[68:69]'][k]}, {k}, v{vG}")
            wf = vDF
            for w in range(8):
                for tau in range(4):
                    A(f"ds_read_b64_tr_b16 {vr(wf+2*tau,2)}, v{t+1} offset:{L_WD + w*2048 + tau*32}")
                A("s_waitcnt lgkmcnt(0)")
                for tau in range(4):
                    A(f"v_mfma_f32_16x16x16_bf16 {vr(vFD+4*tau,4)}, {vr(e,2)}, {vr(wf+2*tau,2)}, 0")
                self.nop(6)
                A(f"v_cndmask_b32 v{t+4}, v{vFD}, v{vFD+4}, s[52:53]")
                self.nop(1)
                A(f"v_cndmask_b32 v{t+4}, v{t+4}, v{vFD+8}, s[54:55]")
                self.nop(1)
                A(f"v_cndmask_b32 v{t+4}, v{t+4}, v{vFD+12}, s[68:69]")
                A(f"v_mul_f32 v{t+4}, v{t+4}, v{e+2}")
                A(f"ds_write_b32 v{t+2}, v{t+4} offset:{L_YF + w*256}")
        self.only(self.svc, fn)

    def step_qred(self):
        A = self.A
        t = vTM
        A(f"v_and_b32 v{t}, 8, v{vL}")
        A(f"v_lshlrev_b32 v{t}, 3, v{t}")
        A(f"v_lshl_add_u32 v{t}, v{vG}, 4, v{t}")
        A("s_waitcnt lgkmcnt(0)")
        A("s_barrier")
        for T in range(2): A(f"ds_read_b128 {vr(vQF+4*T,4)}, v{t} offset:{L_QS+128*T}")
        A("s_waitcnt lgkmcnt(0)")

    def qk_combine(self, G):
        A = self.A
        a = vSP + 4 * G; b = vQF + 8 + 4 * (G & 1)
        for r in range(4): A(f"v_permlane32_swap_b32 v{a+r}, v{b+r}")
        for r in range(4): A(f"v_add_f32_dpp v{a+r}, v{b+r}, v{a+r} row_ror:8 row_mask:0xf bank_mask:0xf")
    def step_qk(self, G):
        A = self.A
        a = vSP + 4 * G; b = vQF + 8 + 4 * (G & 1); k = vK + 16 * G
        A(f"v_mfma_f32_16x16x32_bf16 {vr(a,4)}, {vr(k,4)}, {vr(vQF,4)}, 0")
        A(f"v_mfma_f32_16x16x32_bf16 {vr(b,4)}, {vr(k+8,4)}, {vr(vQF,4)}, 0")
        A(f"v_mfma_f32_16x16x32_bf16 {vr(a,4)}, {vr(k+4,4)}, {vr(vQF+4,4)}, {vr(a,4)}")
        A(f"v_mfma_f32_16x16x32_bf16 {vr(b,4)}, {vr(k+12,4)}, {vr(vQF+4,4)}, {vr(b,4)}")
        if G > 0:
            self.nop(4)
            self.qk_combine(G - 1)

    def step_softmax(self):
        A = self.A
        t = vTM
        m = vAC2 + 2
        A(f"v_max3_f32 v{m}, v{vSP}, v{vSP+1}, v{vSP+2}")
        for k in range(3, 27, 2): A(f"v_max3_f32 v{m}, v{m}, v{vSP+k}, v{vSP+k+1}")
        self.qk_combine(7)
        A(f"v_max3_f32 v{m}, v{m}, v{vSP+27}, v{vSP+28}")
        A(f"v_max3_f32 v{m}, v{m}, v{vSP+29}, v{vSP+30}")
        A(f"v_max_f32 v{m}, v{m}, v{vSP+31}")
        self.swap_reduce("v_max_f32", m, t, 16)
        self.swap_reduce("v_max_f32", m, t, 32)
        A(f"s_lshl_b32 {sT0}, {sW}, 2")
        A(f"v_mov_b32 v{t+4}, {sT0}")
        A(f"v_mov_b32 v{t+5}, 0")
        A("s_mov_b64 exec, 1")
        A(f"ds_write_b32 v{t+4}, v{m} offset:{L_MX}")
        A("s_mov_b64 exec, -1")
        A("s_waitcnt lgkmcnt(0)")
        A("s_barrier")
        A(f"ds_read_b128 {vr(vBF,4)}, v{t+5} offset:{L_MX}")
        A(f"ds_read_b128 {vr(vBF+4,4)}, v{t+5} offset:{L_MX+16}")
        if self.adapt: A(f"ds_read_b32 v{t+6}, v{t+5} offset:{L_RK}")
        A("s_waitcnt lgkmcnt(0)")
        if self.adapt: A(f"v_readfirstlane_b32 {sDUP0}, v{t+6}")
        A(f"v_max3_f32 v{m}, v{vBF}, v{vBF+1}, v{vBF+2}")
        A(f"v_max3_f32 v{m}, v{m}, v{vBF+3}, v{vBF+4}")
        A(f"v_max3_f32 v{m}, v{m}, v{vBF+5}, v{vBF+6}")
        A(f"v_max_f32 v{m}, v{m}, v{vBF+7}")
        A(f"v_mul_f32 v{m}, {sC}, v{m}")
        l = vT0
        for k in range(32):
            A(f"v_fma_f32 v{vSP+k}, v{vSP+k}, {sC}, -v{m}")
        for k in range(32):
            A(f"v_exp_f32 v{vSP+k}, v{vSP+k}")
        A(f"v_add_f32 v{l}, v{vSP}, v{vSP+1}"); A(f"v_add_f32 v{t}, v{vSP+2}, v{vSP+3}")
        for k in range(4, 32, 2):
            A(f"v_add_f32 v{l}, v{l}, v{vSP+k}"); A(f"v_add_f32 v{t}, v{t}, v{vSP+k+1}")
        A(f"v_add_f32 v{l}, v{l}, v{t}")
        self.swap_reduce("v_add_f32", l, t, 16)
        self.swap_reduce("v_add_f32", l, t, 32)
        A("s_mov_b64 exec, 1")
        A(f"ds_write_b32 v{t+4}, v{l} offset:{L_LS}")
        A("s_mov_b64 exec, -1")
        for k in range(32):
            A(f"v_cvt_pk_bf16_f32 v{vSP+k}, v{vSP+k}, v{vSP+k}")
        A("s_waitcnt lgkmcnt(0)")
        A("s_barrier")
        def fn():
            A(f"ds_read_b128 {vr(vBF,4)}, v{t+5} offset:{L_LS}")
            A(f"ds_read_b128 {vr(vBF+4,4)}, v{t+5} offset:{L_LS+16}")
            A(f"s_lshl_b32 {sT0}, {sBH}, 2"); A(f"s_add_u32 {sT0}, {sT0}, {sS}")
            A(f"s_lshl_b32 {sT0}, {sT0}, 3"); A(f"s_add_u32 {sT0}, {sT0}, {WS_S}")
            A("s_waitcnt lgkmcnt(0)")
            for k in range(1, 8): A(f"v_add_f32 v{vBF}, v{vBF}, v{vBF+k}")
            A(f"v_min_u32 v{t+1}, -2, v{vBF}")
            A(f"v_mov_b32 v{t}, v{m}")
            A("s_mov_b64 exec, 1")
            A(f"buffer_store_dwordx2 {vr(t,2)}, v{t+5}, {srd(R_WS)}, {sT0} offen sc1")
            A("s_mov_b64 exec, -1")
        self.only(2, fn)

    def step_pv(self, G):
        A = self.A
        base = vX if G == 0 else vK + 16 * (G - 1)
        def build(k, bset):
            for u in range(4): A(f"v_and_b32 v{vBF+4*bset+u}, v{vSP+(k ^ (self.vx << 2))}, v{vM+u}")
        for r in range(4):
            k = 4 * G + r
            if k == 0: build(0, 0)
            if k + 1 < 32: build(k + 1, (k + 1) & 1)
            else: self.nop(2)
            c = "0" if k == 0 else vr(vACC, 4)
            A(f"v_mfma_f32_16x16x32_bf16 {vr(vACC,4)}, {vr(base+4*r,4)}, {vr(vBF+4*(k&1),4)}, {c}")

    WF = [vQF, vK + 16 * 7, vX, vK]
    def step_wof(self):
        A = self.A
        t = vTM
        A(f"v_lshrrev_b32 v{t}, 2, v{vI}"); A(f"v_and_b32 v{t+1}, 3, v{vI}")
        A(f"v_lshlrev_b32 v{t+1}, 3, v{t+1}")
        A(f"v_lshl_add_u32 v{t+1}, v{t}, 7, v{t+1}")
        A(f"v_lshl_add_u32 v{t+2}, v{vG}, 10, v{t+1}")
        A(f"v_add_u32 v{vOQ}, {sWOL}, v{t+2}")
        for tau in range(4):
            for T in range(4):
                for hi in range(2):
                    A(f"ds_read_b64_tr_b16 {vr(self.WF[tau]+4*T+2*hi,2)}, v{vOQ} offset:{T*4096 + hi*512 + tau*32}")
            if tau < 3: A("s_waitcnt lgkmcnt(4)")
        A(f"v_and_b32 v{t}, 7, v{vI}")
        A(f"s_mul_i32 {sT1}, {sW}, 288"); A(f"s_add_u32 {sT1}, {sT1}, {L_OB}")
        A(f"v_lshl_add_u32 v{vOK}, v{vG}, 6, {sT1}")
        A(f"v_lshl_add_u32 v{vOK}, v{t}, 3, v{vOK}")
        A(f"v_mul_u32_u24 v{vOW}, 288, v{t}")
        A(f"v_lshl_add_u32 v{vOW}, v{vG}, 4, v{vOW}")
        if not self.ybig:
            A(f"v_lshrrev_b32 v{t}, 2, v{vI}")
            A(f"v_lshl_add_u32 v{t}, v{vG}, 2, v{t}")
            A(f"v_lshlrev_b32 v{vOF}, 11, v{t}")
            A(f"s_lshl_b32 {sTF}, {sW}, 15")
            A(f"s_lshl_b32 {sT1}, {sB}, 18"); A(f"s_add_u32 {sTF}, {sTF}, {sT1}")
            A(f"s_lshl_b32 {sT1}, {sH}, 6"); A(f"s_add_u32 {sTF}, {sTF}, {sT1}")
            A(f"s_lshl_b32 {sT1}, {sS}, 4"); A(f"s_add_u32 {sTF}, {sTF}, {sT1}")
            A(f"v_cmp_gt_u32 s[0:1], 2, v{vG}")
            A(f"v_lshlrev_b32 v{vOD}, 4, v{vL}")
            A(f"s_lshl_b32 {sTQ}, s2, 11")
            A(f"v_and_b32 v{t}, 1, v{vG}"); A(f"v_lshrrev_b32 v{t+1}, 1, v{vG}")
            A(f"v_lshl_add_u32 v{t}, v{t}, 1, v{t+1}")
            A(f"s_lshl_b32 {sT1}, s2, 3")
            A(f"v_lshl_add_u32 v{vT1}, v{t}, 1, {sT1}")
        else:
            A(f"v_lshrrev_b32 v{t}, 1, v{vG}"); A(f"v_lshlrev_b32 v{vOF}, 14, v{t}")
            A(f"v_and_b32 v{t}, 31, v{vL}"); A(f"v_lshl_add_u32 v{vOF}, v{t}, 2, v{vOF}")
            A(f"s_lshl_b32 {sTF}, {sW}, 15")
            A(f"s_lshl_b32 {sT1}, {sB}, 18"); A(f"s_add_u32 {sTF}, {sTF}, {sT1}")
            A(f"s_lshl_b32 {sT1}, {sH}, 9"); A(f"s_add_u32 {sTF}, {sTF}, {sT1}")
            A(f"s_lshl_b32 {sT1}, {sS}, 7"); A(f"s_add_u32 {sTF}, {sTF}, {sT1}")
            A(f"v_cmp_gt_u32 s[0:1], 2, v{vG}")
            A(f"v_lshlrev_b32 v{vOD}, 4, v{vL}")
            A(f"s_lshr_b32 {sX1}, s2, 3")
            A(f"s_lshl_b32 {sTQ}, {sX1}, 14"); A(f"s_lshl_b32 {sT1}, {sW}, 11"); A(f"s_add_u32 {sTQ}, {sTQ}, {sT1}")
            A(f"s_lshl_b32 {sT1}, {sX1}, 6")
            A(f"v_lshl_add_u32 v{vT1}, v{vL}, 1, {sT1}")
        A("s_waitcnt lgkmcnt(0)")
        A(f"v_mov_b32 v{vOQ}, 0")
        A(f"s_lshl_b32 {sT1}, {sW}, 8")
        A(f"v_lshl_add_u32 v{vAC2}, v{vL}, 2, {sT1}")

    def st_load(self):
        A = self.A
        A(f"s_lshl_b32 {sT0}, {sBH}, 5"); A(f"s_add_u32 {sT0}, {sT0}, {WS_S}")
        A(f"v_mov_b32 v{vT0}, 0")
        for k in range(2):
            A(f"buffer_load_dwordx4 {vr(vXR+4*k,4)}, v{vT0}, {srd(R_WS)}, {sT0} offen offset:{16*k} sc1")
    def step_st0(self):
        self.only(self.svc, self.st_load)
    def step_scale(self):
        A = self.A
        t = vTM
        s = vXR
        def fn():
            ok = self.label("stok"); sp = self.label("stspin")
            A(f"v_mov_b32 v{t+3}, 0")
            A(f"ds_read_b32 v{t+2}, v{t+3} offset:{L_GS}")
            A(f"s_mov_b32 {sCNT}, 0")
            A(f"v_max3_u32 v{t}, v{s+1}, v{s+3}, v{s+5}")
            A(f"v_max_u32 v{t}, v{t}, v{s+7}")
            A(f"v_cmp_eq_u32 vcc, -1, v{t}")
            A(f"s_cbranch_vccz {ok}")
            self.L(sp)
            self.st_load()
            A(f"s_add_u32 {sCNT}, {sCNT}, 1")
            A(f"s_cmp_ge_u32 {sCNT}, {SPIN}")
            A("s_waitcnt vmcnt(0)")
            A(f"s_cbranch_scc1 {ok}")
            A(f"v_max3_u32 v{t}, v{s+1}, v{s+3}, v{s+5}")
            A(f"v_max_u32 v{t}, v{t}, v{s+7}")
            A(f"v_cmp_eq_u32 vcc, -1, v{t}")
            A(f"s_cbranch_vccnz {sp}")
            self.L(ok)
            A(f"v_max3_f32 v{t}, v{s}, v{s+2}, v{s+4}")
            A(f"v_max_f32 v{t}, v{t}, v{s+6}")
            for k in range(4): A(f"v_sub_f32 v{s+2*k}, v{s+2*k}, v{t}")
            A(f"v_sub_f32 v{t+1}, v{vAC2+2}, v{t}")
            for k in range(4): A(f"v_exp_f32 v{s+2*k}, v{s+2*k}")
            A(f"v_exp_f32 v{t+1}, v{t+1}")
            A(f"v_mul_f32 v{t}, v{s}, v{s+1}")
            for k in range(1, 4): A(f"v_fmac_f32 v{t}, v{s+2*k}, v{s+2*k+1}")
            A(f"v_rcp_f32 v{t}, v{t}")
            A("s_waitcnt lgkmcnt(0)")
            A(f"v_mul_f32 v{t+1}, v{t+2}, v{t+1}")
            A(f"v_mul_f32 v{t}, v{t}, v{t+1}")
            A(f"ds_write_b32 v{t+3}, v{t} offset:{L_FS}")
        self.only(self.svc, fn)

    def step_tail(self):
        A = self.A
        t = vTM
        A("s_mov_b32 exec_lo, 0x00ff00ff"); A("s_mov_b32 exec_hi, 0x00ff00ff")
        self.nop(6)
        A(f"v_cvt_pk_bf16_f32 v{t}, v{vACC}, v{vACC+1}")
        A(f"v_cvt_pk_bf16_f32 v{t+1}, v{vACC+2}, v{vACC+3}")
        A(f"ds_write_b64 v{vOK}, {vr(t,2)}")
        A("s_mov_b64 exec, -1")
        A("s_waitcnt lgkmcnt(0)")
        A("s_barrier")
        af = vSP
        for T in range(4): A(f"ds_read_b128 {vr(af+4*T,4)}, v{vOW} offset:{L_OB + 64*T}")
        A(f"ds_read_b32 v{t+4}, v{vOQ} offset:{L_FS}")
        A(f"ds_read_b32 v{vAC2+3}, v{vAC2} offset:{L_YF}")
        for T in range(4):
            A(f"s_waitcnt lgkmcnt({5-T})" if not self.stamps else "s_waitcnt lgkmcnt(0)")
            for tau in range(4):
                c = vr(vDF+4*tau,4) if T else "0"
                A(f"v_mfma_f32_16x16x32_bf16 {vr(vDF+4*tau,4)}, {vr(af+4*T,4)}, {vr(self.WF[tau]+4*T,4)}, {c}")
        A("s_waitcnt lgkmcnt(0)")
        self.nop(4)
        for tau in range(4):
            d = vDF + 4 * tau
            A(f"v_add_f32 v{d}, v{d}, v{d+1}"); A(f"v_add_f32 v{d+2}, v{d+2}, v{d+3}")
            A(f"v_add_f32 v{d}, v{d}, v{d+2}")
        self.nop(1)
        A(f"v_permlane16_swap_b32 v{vDF}, v{vDF+4}")
        A(f"v_permlane16_swap_b32 v{vDF+8}, v{vDF+12}")
        self.nop(1)
        A(f"v_add_f32 v{vDF}, v{vDF}, v{vDF+4}")
        A(f"v_add_f32 v{vDF+8}, v{vDF+8}, v{vDF+12}")
        A(f"v_cndmask_b32 v{t}, v{vDF+8}, v{vDF}, s[0:1]")
        A(f"v_fma_f32 v{t}, v{t}, v{t+4}, v{vAC2+3}")
        A(f"v_min_u32 v{t}, -2, v{t}")
        self.nop(2)
        for k in range(1, 4):
            A(f"v_mov_b32_dpp v{t+k}, v{t} quad_perm:[{k},{k},{k},{k}] row_mask:0xf bank_mask:0xf")
        A("s_mov_b32 exec_lo, 0x11111111"); A("s_mov_b32 exec_hi, 0x11111111")
        A(f"buffer_store_dwordx4 {vr(t,4)}, v{vOF}, {srd(R_WS)}, {sTF} offen{'' if self.two_kernel else ' sc1'}")
        A("s_mov_b64 exec, -1")

    def consumer(self, poll=True):
        A = self.A
        y = vSP
        t = vTM + 4
        sp = self.label("yspin"); ok = self.label("yok"); fast = self.label("yfast")
        fl = " " + self.yflags if poll else ""
        if not poll or self.cons == 0:
            A(f"s_mov_b32 {sCNT}, 0")
            self.L(sp)
            A(f"buffer_load_dwordx4 {vr(y,4)}, v{vOD}, {srd(R_WS)}, {sTQ} offen{fl}")
            A(f"buffer_load_dwordx4 {vr(y+4,4)}, v{vOD}, {srd(R_WS)}, {sTQ} offen offset:1024{fl}")
            if poll:
                A(f"s_add_u32 {sCNT}, {sCNT}, 1")
                A(f"s_cmp_ge_u32 {sCNT}, {SPIN}")
                A("s_waitcnt vmcnt(0)")
                A(f"s_cbranch_scc1 {ok}")
                A(f"v_max3_u32 v{t}, v{y}, v{y+1}, v{y+2}")
                A(f"v_max3_u32 v{t+1}, v{y+3}, v{y+4}, v{y+5}")
                A(f"v_max3_u32 v{t}, v{t}, v{y+6}, v{y+7}")
                A(f"v_max_u32 v{t}, v{t}, v{t+1}")
                A(f"v_cmp_eq_u32 vcc, -1, v{t}")
                A(f"s_cbranch_vccnz {sp}")
                self.L(ok)
            else:
                A("s_waitcnt vmcnt(0)")
        else:
            mA, mB = "s[52:53]", "s[54:55]"
            D = self.cons
            def masks():
                A(f"v_max3_u32 v{t}, v{y}, v{y+1}, v{y+2}")
                A(f"v_max3_u32 v{t+1}, v{y+4}, v{y+5}, v{y+6}")
                A(f"v_max_u32 v{t}, v{t}, v{y+3}")
                A(f"v_max_u32 v{t+1}, v{t+1}, v{y+7}")
                A(f"v_cmp_eq_u32 {mA}, -1, v{t}")
                A(f"v_cmp_eq_u32 {mB}, -1, v{t+1}")
            def loads():
                la = self.label("ya"); lb = self.label("yb")
                A(f"s_mov_b64 exec, {mA}")
                A(f"s_cbranch_execz {la}")
                A(f"buffer_load_dwordx4 {vr(y,4)}, v{vOD}, {srd(R_WS)}, {sTQ} offen{fl}")
                self.L(la)
                A(f"s_mov_b64 exec, {mB}")
                A(f"s_cbranch_execz {lb}")
                A(f"buffer_load_dwordx4 {vr(y+4,4)}, v{vOD}, {srd(R_WS)}, {sTQ} offen offset:1024{fl}")
                self.L(lb)
                A("s_mov_b64 exec, -1")
            A(f"s_mov_b64 {mA}, -1"); A(f"s_mov_b64 {mB}, -1")
            A(f"s_mov_b32 {sCNT}, 0")
            self.L(sp)
            loads()
            A(f"s_add_u32 {sCNT}, {sCNT}, 1")
            A("s_waitcnt vmcnt(0)")
            masks()
            A(f"s_cmp_ge_u32 {sCNT}, {SPIN}"); A(f"s_cbranch_scc1 {ok}")
            A(f"s_bcnt1_i32_b64 {sT0}, {mA}"); A(f"s_bcnt1_i32_b64 {sT1}, {mB}")
            A(f"s_add_u32 {sT0}, {sT0}, {sT1}")
            if self.csleep:
                A(f"s_cmp_le_u32 {sT0}, {self.cthr}"); A(f"s_cbranch_scc1 {fast}")
                A(f"s_sleep {self.csleep}")
                A(f"s_branch {sp}")
            else:
                A(f"s_cmp_gt_u32 {sT0}, {self.cthr}"); A(f"s_cbranch_scc1 {sp}")
            self.L(fast)
            A(f"s_or_b64 vcc, {mA}, {mB}")
            A(f"s_cbranch_vccz {ok}")
            loads()
            A(f"s_add_u32 {sCNT}, {sCNT}, 1")
            A(f"s_waitcnt vmcnt({D})")
            masks()
            A(f"s_cmp_lt_u32 {sCNT}, {SPIN}"); A(f"s_cbranch_scc1 {fast}")
            self.L(ok)
        for k in range(4): A(f"v_add_f32 v{y+8+k}, v{y+k}, v{y+4+k}")
        y = y + 8
        self.nop(1)
        A(f"v_permlane32_swap_b32 v{y}, v{y+1}"); A(f"v_permlane32_swap_b32 v{y+2}, v{y+3}")
        self.nop(1)
        A(f"v_add_f32 v{y}, v{y}, v{y+1}"); A(f"v_add_f32 v{y+2}, v{y+2}, v{y+3}")
        self.nop(2)
        A(f"v_permlane16_swap_b32 v{y}, v{y+2}")
        self.nop(1)
        A(f"v_add_f32 v{y}, v{y}, v{y+2}")
        if self.ybig and poll:
            self.dpp_add(y, "row_ror:8")
            A(f"ds_write_b32 v{vOK}, v{y}")
            A("s_waitcnt lgkmcnt(0)")
            A("s_barrier")
            A(f"s_cmp_lg_u32 {sW}, 0"); A("s_cbranch_scc1 L_end")
            for w in range(8): A(f"ds_read_b32 v{y+w}, v{vOW} offset:{L_YF + 128*w}")
            A("s_waitcnt lgkmcnt(4)")
            A(f"v_add_f32 v{y}, v{y}, v{y+1}"); A(f"v_add_f32 v{y+2}, v{y+2}, v{y+3}")
            A("s_waitcnt lgkmcnt(0)")
            A(f"v_add_f32 v{y+4}, v{y+4}, v{y+5}"); A(f"v_add_f32 v{y+6}, v{y+6}, v{y+7}")
            A(f"v_add_f32 v{y}, v{y}, v{y+2}"); A(f"v_add_f32 v{y+4}, v{y+4}, v{y+6}")
            A(f"v_add_f32 v{y}, v{y}, v{y+4}")
            A(f"v_cvt_pk_bf16_f32 v{y}, v{y}, v{y}")
            A("s_mov_b32 exec_hi, 0")
        else:
            for ctl in ("quad_perm:[1,0,3,2]", "quad_perm:[2,3,0,1]", "row_half_mirror", "row_mirror"):
                self.dpp_add(y, ctl)
            A(f"v_cvt_pk_bf16_f32 v{y}, v{y}, v{y}")
            A("s_mov_b32 exec_lo, 0x00010001"); A("s_mov_b32 exec_hi, 0x00010001")
        A(f"global_store_short v{vT1}, v{y}, s[{P_OUT}:{P_OUT+1}]{self.oflags}")

    def steps(self, idx):
        S = []
        def add(name, needs, fn): S.append(dict(name=name, needs=needs, fn=fn))
        add("gate0", [], self.step_gate0)
        add("gate", ["@gate0"], self.step_gate)
        if self.curve:
            for G in range(1, 5):
                if f"w{G}" in self.curve: add(f"w{G}", [f"K{G}_3"], lambda: None)
        add("join", [self.q_at], lambda: None)
        add("qred", [], self.step_qred)
        if self.adapt: add("fl", [], self.step_fl)
        for G in range(8): add(f"qk{G}", [f"K{G}_3"], lambda G=G: self.step_qk(G))
        if self.adapt: add("rank", ["@fl"], self.step_rank)
        else: add("fl", [], self.step_fl)
        add("softmax", ["wd1"], self.step_softmax)
        lastdma = idx["wo15"]
        placed = False
        for G in range(8):
            if G == 7: add("scale", ["@st0"], self.step_scale)
            if not placed and G >= 2 and idx[f"V{G}_3"] > lastdma:
                add("wof", ["wo15"], self.step_wof); placed = True
            add(f"pv{G}", [f"V{G}_3"], lambda G=G: self.step_pv(G))
            if f"pv{G}" == self.fga_pos: add("fga", ["@fl"], self.step_fga)
            if f"pv{G}" == self.st_pos: add("st0", [], self.step_st0)
            if f"pv{G}" == self.ffn_pos: add("ffn2", ["@fga"], self.step_ffn2)
        assert placed
        add("tail", [], self.step_tail)
        return S

    def schedule(self, W, W2):
        self.st_pos = self.st_after; self.st_after = "st0"
        items = self.items()
        self.st_after = self.st_pos
        idx = {it["name"]: n for n, it in enumerate(items)}
        steps = self.steps(idx)
        issued = 4 + self.npre
        assert all(it['name'][0] == 'K' for it in items[:issued])
        comp = -1; done = set(); pos = -1; after = {}
        lother = self.label("other"); ljoin = self.label("join")
        self.A(f"s_cmp_lg_u32 {sW}, {self.hs if not self.x_nohs else 9}"); self.A(f"s_cbranch_scc1 {lother}")
        mark = len(self.o)
        self.L(lother)
        def run(steps):
            nonlocal issued, comp, pos, W
            for st in steps:
                need = max([after[n[1:]] if n[0] == "@" else idx[n] for n in st["needs"]], default=-1)
                pos = max(pos, need)
                def issue(w, la):
                    nonlocal issued, comp
                    while issued < len(items):
                        it = items[issued]
                        if issued > pos + la - 1: break
                        if it["dep"] and it["dep"] not in done:
                            assert issued > need, (st["name"], it["name"])
                            break
                        if issued - (comp + 1) >= w:
                            self.A(f"s_waitcnt vmcnt({w-1})"); comp = issued - w
                        it["fn"](); issued += 1
                if st['name'] != 'qred': issue(W, W)
                if comp < need:
                    self.A(f"s_waitcnt vmcnt({issued-1-need})"); comp = need
                if st["name"] == "join":
                    issue(W + self.boost, W + self.boost)
                    rest = self.o[mark:]; del self.o[mark:]
                    self.bcast()
                    n1 = self.hs_pre; n2 = min(issued, n1 + self.hs_mid)
                    def pre():
                        for n in range(n1): items[n]["fn"]()
                    def mid():
                        for n in range(n1, n2): items[n]["fn"]()
                        return n2 - n1
                    self.q_gather(pre, mid)
                    if self.curve: self.A(f"s_memrealtime s[{self.cpairs[4]}:{self.cpairs[4]+1}]")
                    self.q_reduce()
                    for n in range(n2, issued): items[n]["fn"]()
                    self.A(f"s_branch {ljoin}")
                    self.o += rest
                    self.L(ljoin)
                    comp = -1; W = W2
                if st["name"] in self.boosts: issue(W + self.boosts[st["name"]], W + self.boosts[st["name"]])
                self.o.append(f"    ; ---- {st['name']}")
                if not any(st["name"].startswith(p) for p in self.x_skip): st["fn"]()
                done.add(st["name"])
                after[st["name"]] = issued
                if st["name"] in self.stamp_after: self.stamp(self.stamp_after[st["name"]])
                if self.curve and st["name"] in self.curve:
                    p = self.cpairs[1 + self.curve.index(st["name"])]; self.A(f"s_memrealtime s[{p}:{p+1}]")
        names = [s["name"] for s in steps]
        k1 = names.index("softmax") + 1; k2 = names.index("tail")
        if not self.adapt:
            run(steps)
        else:
            run(steps[:k1])
            save = (issued, comp, pos, set(done), dict(after))
            lend = self.label("vend")
            for n, (thr, w) in enumerate(self.adapt):
                nxt = self.label("vnext")
                last = n == len(self.adapt) - 1
                if not last:
                    self.A(f"s_cmp_ge_u32 {sDUP0}, {thr}"); self.A(f"s_cbranch_scc1 {nxt}")
                issued, comp, pos = save[:3]; done.clear(); done.update(save[3]); after.clear(); after.update(save[4])
                W = w
                run(steps[k1:k2])
                if not last:
                    self.A(f"s_branch {lend}"); self.L(nxt)
            self.L(lend)
            run(steps[k2:])
        assert issued == len(items)

    def kd(self, name, vg, sg):
        return [f".amdhsa_kernel {name}", f"  .amdhsa_next_free_vgpr {vg}", f"  .amdhsa_next_free_sgpr {sg}",
                f"  .amdhsa_accum_offset {vg}", "  .amdhsa_group_segment_fixed_size 0", "  .amdhsa_kernarg_size 104",
                "  .amdhsa_user_sgpr_count 2", "  .amdhsa_user_sgpr_kernarg_segment_ptr 1",
                "  .amdhsa_system_sgpr_workgroup_id_x 1", ".end_amdhsa_kernel"]

    def build(self):
        A = self.A
        K1 = NAME + "_kernel"; K2 = "gated_mix_reduce_kernel"
        o = self.o
        o.append(HEADER.rstrip("\n"))
        if self.two_kernel:
            o.append(f"; @launch kernel={K1} grid=(256,1,1) block=(512,1,1) lds={LDS_BYTES}")
            o.append(f"; @launch kernel={K2} grid=(256,1,1) block=(64,1,1) lds=0")
        else:
            o.append(f"; @launch grid=(256,1,1) block=(512,1,1) lds={LDS_BYTES}")
        o += ['.amdgcn_target "amdgcn-amd-amdhsa--gfx950"', ".text", f".globl {K1}", ".p2align 8",
              f".type {K1},@function", f"{K1}:"]
        self.phase0()
        if self.W_even is not None:
            A(f"s_and_b32 {sT0}, {sXCC}, 1"); A("s_cbranch_scc1 L_odd")
            self.schedule(self.W_even, self.W2_even)
            A("s_branch L_join")
            self.L("L_odd")
            self.schedule(self.W, self.W2)
            self.L("L_join")
        else:
            self.schedule(self.W, self.W2)
        if self.curve:
            A("s_waitcnt lgkmcnt(0)")
            A(f"s_add_u32 s0, s40, {STAMP_OFF + 65536}"); A("s_addc_u32 s1, s41, 0")
            A(f"s_lshl_b32 s8, s2, 3"); A(f"s_add_u32 s8, s8, {sW}"); A("s_lshl_b32 s8, s8, 6")
            A("v_mov_b32 v112, s8")
            for k in range(16): A(f"v_mov_b32 v{116+k}, s{self.cpairs[k] if k < 15 else 90}")
            A("s_mov_b64 exec, 1")
            for k in range(4): A(f"global_store_dwordx4 v112, v[{116+4*k}:{119+4*k}], s[0:1] offset:{16*k}")
            A("s_mov_b64 exec, -1")
        if self.ybig:
            lc = "L_stamp" if self.stamps else "L_end"
            A(f"s_xor_b32 {sT0}, {sX1}, s2"); A(f"s_and_b32 {sT0}, {sT0}, 7"); A(f"s_cbranch_scc1 {lc}")
            t = vTM
            A(f"v_and_b32 v{t}, 1, v{vG}"); A(f"v_lshrrev_b32 v{t+1}, 1, v{vG}")
            A(f"v_lshl_add_u32 v{t}, v{t}, 1, v{t+1}")
            A(f"v_and_b32 v{t+1}, 7, v{vL}"); A(f"v_lshl_add_u32 v{t}, v{t+1}, 2, v{t}")
            A(f"s_lshl_b32 {sT1}, {sW}, 7"); A(f"s_add_u32 {sT1}, {sT1}, {L_YF}")
            A(f"v_lshl_add_u32 v{vOK}, v{t}, 2, {sT1}")
            A(f"v_and_b32 v{t}, 31, v{vL}"); A(f"v_lshlrev_b32 v{vOW}, 2, v{t}")
            A("s_barrier")
            self.consumer()
            if self.stamps:
                self.L("L_stamp")
                A(f"s_cmp_lg_u32 {sW}, 0"); A("s_cbranch_scc1 L_end")
        else:
            A(f"s_cmp_lg_u32 {sW}, 0"); A("s_cbranch_scc1 L_end")
        if not self.two_kernel and not self.ybig:
            self.consumer()
        if self.fixdur:
            A(f"s_mov_b32 s96, {self.fixdur}")
            if self.probe:
                if self.probe.get("wg") is not None:
                    A(f"s_cmp_lg_u32 s2, {self.probe['wg']}"); A("s_cbranch_scc1 L_end")
                A("s_waitcnt lgkmcnt(0)")
                A("s_sub_u32 s97, s98, s92"); A(f"s_mul_i32 s97, s97, {self.probe['m']}"); A("s_add_u32 s96, s96, s97")
            self.L("L_fix")
            A("s_memrealtime s[94:95]")
            A("s_waitcnt lgkmcnt(0)")
            A("s_sub_u32 s94, s94, s92")
            A(f"s_cmp_lt_u32 s94, s96")
            A("s_cbranch_scc1 L_fix")
        elif self.stamps and not self.curve:
            self.stamp(4)
            A("s_mov_b64 exec, 1")
            A("s_waitcnt lgkmcnt(0)")
            A(f"s_add_u32 s40, s40, {STAMP_OFF}"); A("s_addc_u32 s41, s41, 0")
            A("s_lshl_b32 s8, s2, 6"); A("v_mov_b32 v1, s8")
            for k in range(4):
                A(f"v_mov_b32 v{8+2*k}, s{sST+2*k}"); A(f"v_mov_b32 v{9+2*k}, s{sST+2*k+1}")
            A(f"v_mov_b32 v16, {sXCC}"); A("v_mov_b32 v17, 0")
            A(f"v_mov_b32 v18, s{sST+8}"); A(f"v_mov_b32 v19, s{sST+9}")
            A("global_store_dwordx4 v1, v[8:11], s[40:41]")
            A("global_store_dwordx4 v1, v[12:15], s[40:41] offset:16")
            A("global_store_dwordx4 v1, v[16:19], s[40:41] offset:32")
        self.L("L_end"); A("s_endpgm")
        if self.cpf: o.append(f".fill (16384 - (. - {K1})) / 4, 4, 0xbf810000")
        if self.two_kernel:
            o += [f".globl {K2}", ".p2align 8", f".type {K2},@function", f"{K2}:"]
            A("s_cmp_ge_u32 s2, 256"); A("s_cbranch_scc1 L_end2")
            A(f"s_load_dwordx2 s[{P_OUT}:{P_OUT+1}], s[0:1], 80")
            A(f"s_load_dwordx2 s[{P_WS}:{P_WS+1}], s[0:1], 96")
            t = vTM
            A(f"v_bfe_u32 v{vG}, v0, 4, 2")
            A(f"v_lshlrev_b32 v{vOD}, 4, v0")
            A(f"s_lshl_b32 {sTQ}, s2, 11")
            A(f"v_and_b32 v{t}, 1, v{vG}"); A(f"v_lshrrev_b32 v{t+1}, 1, v{vG}")
            A(f"v_lshl_add_u32 v{t}, v{t}, 1, v{t+1}")
            A(f"s_lshl_b32 {sT1}, s2, 3")
            A(f"v_lshl_add_u32 v{vT1}, v{t}, 1, {sT1}")
            A("s_waitcnt lgkmcnt(0)")
            self.mk(R_WS, P_WS, None, WS_BYTES)
            self.consumer(poll=False)
            self.L("L_end2"); A("s_endpgm")
        o += ['.section .rodata,"a"', ".p2align 6"] + self.kd(K1, 256, 102)
        if self.two_kernel:
            o += [".p2align 6"] + self.kd(K2, 112, 102)
        return "\n".join(o) + "\n"

if __name__ == "__main__":
    import argparse, json
    ap = argparse.ArgumentParser()
    ap.add_argument("out"); ap.add_argument("--opt", default="{}")
    a = ap.parse_args()
    open(a.out, "w").write(Gen(**json.loads(a.opt)).build())
```

```python
import sys, struct, math

NAME = "gated_mix__mha_block_cached__geglu_ffn__decode"
HEADER = open("cdna_kernels/" + NAME + ".s.ref").read().split("; Override launch")[0]

def f32(x):
    return "0x%08x" % struct.unpack("<I", struct.pack("<f", x))[0]

L_QS = 0
L_HS = 256
L_GS = 320
L_FS = 336
L_RK = 340
L_MX = 384
L_LS = 448
L_OB = 512
L_YF = 3072
L_WD = 5120
L_WO = L_WD + 16384
L_END = L_WO + 131072
LDS_BYTES = (L_END + 255) // 256 * 256

WS_Y = 0
WS_S = 0x80000
WS_Q = 0x89000
WS_F = WS_Q + 0x40000
WS_M = WS_F + 176 * 1024
WS_BYTES = WS_M
WS_MB = 0x81000
STAMP_OFF = 128 << 20
SPIN = "0x4000"

sW = "s3"
P_X, P_K, P_V, P_WQ, P_WO, P_WG, P_WU = 16, 18, 20, 22, 24, 28, 30
P_WD, P_GW, P_OUT, P_DBG, P_WS = 32, 34, 36, 38, 40
R_K, R_V, R_WQ, R_WO, R_X, R_GW, R_FT, R_WD, R_WS = 44, 48, 52, 56, 60, 64, 68, 76, 80
sH, sB, sS, sSL, sT0, sT1, sT2 = "s4", "s5", "s6", "s7", "s8", "s9", "s10"
sTK, sTV, sTQ, sTF, sTD = "s11", "s12", "s13", "s14", "s15"
sJ, sFT = "s72", "s73"
sDONE = sJ
sWOL, sWDL = "s84", "s85"
sDUP0, sDUP1 = "s86", "s87"
sC = "s88"; sCNT = "s89"; sXCC = "s90"; sBH = "s91"
sX0, sX1 = "s42", "s43"
sROT = "s74"
sTI = "s75"
sST = 92
def srd(r): return f"s[{r}:{r+3}]"

vL, vI, vG = 1, 2, 3
vOK, vOV, vOQ, vOW, vOF, vOD, vT0, vT1 = 4, 5, 6, 7, 8, 9, 10, 11
vM = 12
vXR = 16
vBF = 24
vACC = 32
vAC2 = 36
vQF = 40
vSP = 56
vDF = 88
vTM = 104
vFL = 111
vK = 112
vX = 240
vFG = vDF + 8
vFD = vK + 16
def vr(a, n): return f"v[{a}:{a+n-1}]"

class Gen:
    def __init__(self, W=5, W2=16, W_even=None, W2_even=None, two_kernel=False, stamps=False,
                 wo_sched=None, st_after="pv3", q_at="K6_3", boost=4, fga_pos="pv1", ffn_pos="pv5", sleep=32, curve=None, k0_late=True,
                 stamp_after=None, fixdur=0, svc=3, gsvc=2, hs=0, pub=1, probe=None, xmap=None, nx=6, cpf=0, x_skip=(), x_nohs=False, k0mode=0, x_noclear=False, x_noy=False, ylate=False, x_nowo=False, x_noffn=False, x_nowq=False, rot=None, lay=0, ybig=True, adapt=None, vx=0, dry=0, tlbpf=0, cons=0, cthr=24, csleep=0, oflags="", yflags="sc1", hs_pre=12, hs_mid=10, npre=4, boosts=None):
        self.o = []
        self.__dict__.update(locals())
        self.wo_sched = wo_sched or [0, 0, 2, 2, 1, 2, 1, 2, 1, 2, 1, 2, 2, 0, 0, 0]
        assert sum(self.wo_sched) == 18
        self.cpairs = [92, 94, 96, 98, 100, 16, 18, 20, 22, 24, 26, 28, 30, 32, 34]
        if curve: self.stamps = True
        self.stamp_after = stamp_after if stamp_after is not None else ({} if curve else {"qred": 1, "pv7": 2, "tail": 3})
        self.lab = 0
        if probe: self.stamps = True; self.fixdur = probe['fix']; self.stamp_after = {probe['step']: 3}
        self.shS, self.shW, self.shG = {0: (18, 15, 12), 1: (18, 12, 15), 2: (15, 12, 17), 3: (12, 14, 17), 4: (15, 17, 12)}[lay]
        if lay and not rot: self.rot = [['w', 0]]
        self.boosts = boosts if boosts is not None else {'softmax': 4, 'wof': 4}
    def A(self, s): self.o.append("    " + s)
    def L(self, s): self.o.append(s + ":")
    def nop(self, n):
        while n > 0:
            k = min(n, 16); self.A(f"s_nop {k-1}"); n -= k
    def label(self, p):
        self.lab += 1; return f"L_{p}_{self.lab}"
    def stamp(self, k):
        if self.stamps: self.A(f"s_memrealtime s[{sST+2*k}:{sST+2*k+1}]")
    def only(self, w, fn):
        sk = self.label("skip")
        self.A(f"s_cmp_lg_u32 {sW}, {w}"); self.A(f"s_cbranch_scc1 {sk}")
        fn()
        self.L(sk)

    def swap_reduce(self, op, v, tmp, which):
        A = self.A
        A(f"v_mov_b32 v{tmp}, v{v}")
        self.nop(2)
        A(f"v_permlane{which}_swap_b32 v{v}, v{tmp}")
        self.nop(1)
        A(f"{op} v{v}, v{v}, v{tmp}")
    def dpp_add(self, v, ctl):
        self.nop(2)
        self.A(f"v_add_f32_dpp v{v}, v{v}, v{v} {ctl} row_mask:0xf bank_mask:0xf")
    def mk(self, r, p, off, size):
        A = self.A
        if off is None:
            A(f"s_mov_b32 s{r}, s{p}"); A(f"s_mov_b32 s{r+1}, s{p+1}")
        else:
            A(f"s_add_u32 s{r}, s{p}, {off}"); A(f"s_addc_u32 s{r+1}, s{p+1}, 0")
        if size is not None: A(f"s_mov_b32 s{r+2}, {size}")
        A(f"s_mov_b32 s{r+3}, 0x20000")

    def kv_load(self, kind, G, t):
        A = self.A
        st = sTK if kind == "K" else sTV
        if self.rot:
            if t == 0: A(f"s_xor_b32 {st}, {sROT}, {(G ^ (self.vx if kind == 'V' else 0)) << self.shG}")
            so = st
        else:
            if t == 0 and G > 0: A(f"s_movk_i32 {st}, {G*4096}")
            so = st if G > 0 else "0"
        if kind == "K":
            A(f"buffer_load_dwordx4 {vr(vK+16*G+4*t,4)}, v{vOK}, {srd(R_K)}, {so} offen offset:{(t>>1)*2048 + (t&1)*128} nt")
        else:
            dst = vX if G == 0 else vK + 16 * (G - 1)
            A(f"buffer_load_dwordx4 {vr(dst+4*t,4)}, v{vOV}, {srd(R_V)}, {so} offen offset:{256*t} nt")

    def bsel(self, src, half, bset):
        A = self.A
        t = vTM + 4 + bset
        A(f"v_perm_b32 v{t}, v{src}, v{src}, {sDUP1 if half else sDUP0}")
        for u in range(4): A(f"v_and_b32 v{vBF+4*bset+u}, v{t}, v{vM+u}")

    def phase0(self):
        A = self.A
        A("s_cmp_ge_u32 s2, 256")
        A("s_cbranch_scc1 L_end")
        A("s_load_dwordx16 s[16:31], s[0:1], 0")
        A("s_load_dwordx8 s[32:39], s[0:1], 64")
        A("s_load_dwordx2 s[40:41], s[0:1], 96")
        self.stamp(0)
        if self.fixdur and not self.probe: A("s_memrealtime s[92:93]")
        A("v_lshrrev_b32 v10, 6, v0")
        A(f"v_and_b32 v{vI}, 15, v0")
        A(f"v_readfirstlane_b32 {sW}, v10")
        A(f"v_bfe_u32 v{vG}, v0, 4, 2")
        A(f"s_and_b32 {sT0}, s2, 7")
        A(f"s_lshr_b32 {sT1}, s2, 3")
        A(f"s_and_b32 {sT2}, {sT1}, 3")
        A(f"s_lshl_b32 {sH}, {sT0}, 2")
        A(f"s_add_u32 {sH}, {sH}, {sT2}")
        A(f"s_lshr_b32 {sJ}, {sT1}, 2")
        A(f"s_and_b32 {sFT}, s2, 31")
        if self.xmap:
            A(f"s_lshl_b32 {sCNT}, {sT0}, 2"); A(f"s_lshr_b32 {sCNT}, {self.xmap}, {sCNT}"); A(f"s_and_b32 {sCNT}, {sCNT}, 15")
            A(f"s_mul_i32 {sTI}, {sT2}, {self.nx}"); A(f"s_add_u32 {sTI}, {sTI}, {sCNT}")
            A(f"s_cmp_eq_u32 {sCNT}, 15"); A(f"s_cselect_b32 {sTI}, 31, {sTI}")
        else:
            A(f"s_mov_b32 {sTI}, {sFT}")
        A(f"s_lshl_b32 {sTK}, {sJ}, 3"); A(f"s_add_u32 {sTK}, {sTK}, {sW}")
        A(f"s_lshl_b32 {sTV}, {sTK}, 4")
        A(f"s_lshl_b32 {sX0}, {sTK}, 16"); A(f"s_lshl_b32 {sTQ}, {sH}, 8"); A(f"s_add_u32 {sX0}, {sX0}, {sTQ}")
        A(f"s_cmp_ge_u32 {sTI}, 11")
        A(f"s_cselect_b32 {sX1}, 11, 0")
        A(f"s_sub_u32 {sX1}, {sTI}, {sX1}")
        A(f"s_lshl_b32 {sX1}, {sX1}, 8")
        A(f"s_mul_i32 {sTK}, {sTK}, {8*2752}")
        A(f"s_add_u32 {sX1}, {sX1}, {sTK}")
        A(f"s_sub_u32 s{R_FT+2}, {512*2752}, {sX1}")
        A(f"s_cmp_lt_u32 {sTI}, {0 if self.x_noffn else 22}")
        A(f"s_cselect_b32 s{R_FT+2}, s{R_FT+2}, 0")
        A(f"s_cselect_b32 {sX1}, {sX1}, 0")
        A(f"s_mov_b32 s{R_FT+3}, 0x20000")
        A(f"s_mov_b32 s{R_X+2}, 2048"); A(f"s_mov_b32 s{R_X+3}, 0x20000")
        A(f"s_mov_b32 s{R_WQ+2}, {0 if self.x_nowq else 7*8192+256}"); A(f"s_mov_b32 s{R_WQ+3}, 0x20000")
        A(f"s_movk_i32 {sTQ}, 8192")
        A(f"v_lshrrev_b32 v{vT0}, 3, v{vI}")
        A(f"v_lshlrev_b32 v{vT0}, 10, v{vT0}")
        A(f"v_lshl_add_u32 v{vT0}, v{vG}, 2, v{vT0}")
        A(f"v_lshlrev_b32 v{vT1}, 4, v{vI}")
        A(f"v_lshl_add_u32 v{vOQ}, v{vG}, 14, v{vT1}")
        A(f"v_mul_u32_u24 v{vOF}, {2*2752}, v{vG}")
        A(f"v_add_u32 v{vOF}, v{vOF}, v{vT1}")
        A(f"s_cmp_ge_u32 {sTI}, 11")
        A("s_waitcnt lgkmcnt(0)")
        A(f"s_cselect_b32 s{R_FT}, s{P_WU}, s{P_WG}"); A(f"s_cselect_b32 s{R_FT+1}, s{P_WU+1}, s{P_WG+1}")
        A(f"s_add_u32 s{R_WQ}, s{P_WQ}, {sX0}"); A(f"s_addc_u32 s{R_WQ+1}, s{P_WQ+1}, 0")
        A(f"buffer_load_dwordx4 {vr(vDF,4)}, v{vOQ}, {srd(R_WQ)}, 0 offen nt")
        A(f"buffer_load_dwordx4 {vr(vDF+4,4)}, v{vOQ}, {srd(R_WQ)}, {sTQ} offen nt")
        A(f"s_add_u32 s{R_FT}, s{R_FT}, {sX1}"); A(f"s_addc_u32 s{R_FT+1}, s{R_FT+1}, 0")
        A(f"buffer_load_dwordx4 {vr(vDF+8,4)}, v{vOF}, {srd(R_FT)}, 0 offen nt")
        A(f"buffer_load_dwordx4 {vr(vDF+12,4)}, v{vOF}, {srd(R_FT)}, 0 offen offset:2752 nt")
        A(f"s_mov_b32 s{R_X}, s{P_X}"); A(f"s_mov_b32 s{R_X+1}, s{P_X+1}")
        A(f"buffer_load_dword v{vXR}, v{vT0}, {srd(R_X)}, {sTV} offen")
        def clear():
            self.mk(R_WS, P_WS, None, WS_BYTES)
            c = vQF
            for k in range(4): A(f"v_mov_b32 v{c+k}, -1")
            A(f"v_and_b32 v{c+4}, 63, v0"); A(f"v_lshlrev_b32 v{c+4}, 4, v{c+4}")
            A(f"s_lshl_b32 {sTD}, {sH}, 3"); A(f"s_add_u32 {sTD}, {sTD}, {sJ}"); A(f"s_lshl_b32 {sTD}, {sTD}, 10")
            A(f"s_add_u32 {sTD}, {sTD}, {WS_Q}")
            (not self.x_noclear) and A(f"buffer_store_dwordx4 {vr(c,4)}, v{c+4}, {srd(R_WS)}, {sTD} offen sc1")
            A(f"s_lshl_b32 {sTD}, {sTI}, 3"); A(f"s_add_u32 {sTD}, {sTD}, {sJ}"); A(f"s_lshl_b32 {sTD}, {sTD}, 10")
            A(f"s_add_u32 {sTD}, {sTD}, {WS_F}")
            (not self.x_noclear) and A(f"buffer_store_dwordx4 {vr(c,4)}, v{c+4}, {srd(R_WS)}, {sTD} offen sc1")
            if not self.two_kernel and not self.x_noy:
                A(f"s_lshl_b32 {sTD}, s2, 11")
                (not self.x_noclear) and A(f"buffer_store_dwordx4 {vr(c,4)}, v{c+4}, {srd(R_WS)}, {sTD} offen sc1")
                (not self.x_noclear) and A(f"buffer_store_dwordx4 {vr(c,4)}, v{c+4}, {srd(R_WS)}, {sTD} offen offset:1024 sc1")
            A(f"s_lshr_b32 {sTD}, {sJ}, 2"); A(f"s_lshl_b32 {sTD}, {sTD}, 5"); A(f"s_add_u32 {sTD}, {sTD}, {sH}")
            A(f"s_lshl_b32 {sTD}, {sTD}, 2"); A(f"s_and_b32 {sTF}, {sJ}, 3"); A(f"s_add_u32 {sTD}, {sTD}, {sTF}")
            A(f"s_lshl_b32 {sTD}, {sTD}, 3"); A(f"s_add_u32 {sTD}, {sTD}, {WS_S}")
            A("s_mov_b64 exec, 1")
            A(f"buffer_store_dwordx2 {vr(c,2)}, v{c+4}, {srd(R_WS)}, {sTD} offen sc1")
            A(f"s_lshl_b32 {sTD}, s2, 7"); A(f"s_add_u32 {sTD}, {sTD}, {WS_MB}")
            A(f"buffer_store_dwordx2 {vr(c,2)}, v{c+4}, {srd(R_WS)}, {sTD} offen sc1")
            A("s_mov_b64 exec, -1")
        self.only(self.hs, clear)
        if self.cpf:
            def pf():
                A("s_getpc_b64 s[26:27]")
                self.L("L_pc")
                A(f"s_sub_u32 s26, s26, L_pc-{NAME}_kernel"); A("s_subb_u32 s27, s27, 0")
                if self.cpf == 1:
                    A(f"s_lshl_b32 {sTD}, {sT1}, 9")
                    A(f"v_and_b32 v{vQF+8}, 63, v0"); A(f"v_lshl_add_u32 v{vQF+8}, v{vQF+8}, 3, {sTD}")
                    A(f"global_load_dwordx2 v[{vQF+10}:{vQF+11}], v{vQF+8}, s[26:27]")
                else:
                    A(f"v_and_b32 v{vQF+8}, 63, v0"); A(f"v_lshlrev_b32 v{vQF+8}, 7, v{vQF+8}")
                    A(f"global_load_dword v{vQF+10}, v{vQF+8}, s[26:27]")
                    A(f"v_add_u32 v{vQF+8}, 8192, v{vQF+8}")
                    A(f"global_load_dword v{vQF+10}, v{vQF+8}, s[26:27]")
            self.only(7, pf)
        A(f"v_and_b32 v{vL}, 63, v0")
        A(f"s_lshr_b32 {sB}, {sJ}, 2")
        A(f"s_and_b32 {sS}, {sJ}, 3")
        A(f"s_lshl_b32 {sBH}, {sB}, 5"); A(f"s_add_u32 {sBH}, {sBH}, {sH}")
        A(f"v_and_b32 v{vOK}, 7, v0")
        A(f"v_lshlrev_b32 v{vOK}, 8, v{vOK}")
        A(f"v_lshl_add_u32 v{vOK}, v{vG}, 4, v{vOK}")
        A(f"v_and_b32 v{vOV}, 8, v0")
        A(f"v_lshl_add_u32 v{vOK}, v{vOV}, 3, v{vOK}")
        A(f"v_lshl_add_u32 v{vOV}, v{vG}, 10, v{vT1}")
        A(f"s_lshl_b32 {sTK}, {sBH}, 20")
        A(f"s_lshl_b32 {sTV}, {sS}, {self.shS}"); A(f"s_add_u32 {sTK}, {sTK}, {sTV}")
        A(f"s_lshl_b32 {sTV}, {sW}, {self.shW}"); A(f"s_add_u32 {sTK}, {sTK}, {sTV}")
        self.mk(R_K, P_K, sTK, (7 << self.shG) + 4096)
        if self.rot:
            regs = {"w": sW, "j": sJ, "h": sH, "x": sT0, "q": sT2, "b": sB, "s": sS}
            A(f"s_mov_b32 {sROT}, 0")
            for nm, mul in self.rot:
                A(f"s_mul_i32 {sTV}, {regs[nm]}, {mul}"); A(f"s_add_u32 {sROT}, {sROT}, {sTV}")
            A(f"s_and_b32 {sROT}, {sROT}, 7"); A(f"s_lshl_b32 {sROT}, {sROT}, {self.shG}")
        if self.k0mode == 1:
            lk = self.label("k0e")
            A(f"s_mov_b32 {sX1}, {sTK}")
            A(f"s_cmp_eq_u32 {sW}, {self.hs}"); A(f"s_cbranch_scc1 {lk}")
            for n in range(4 + self.npre): self.kv_load("K", n // 4, n % 4)
            self.L(lk)
            A(f"s_mov_b32 {sTK}, {sX1}")
        self.mk(R_V, P_V, sTK, (7 << self.shG) + 4096)
        self.mk(R_WS, P_WS, None, WS_BYTES)
        self.mk(R_GW, P_GW, None, 1024)
        A(f"s_and_b32 {sT1}, {sT1}, 15")
        per = -(-86 // self.nx) if self.xmap else 11
        A(f"s_mul_i32 {sSL}, {sCNT if self.xmap else sT0}, {per}")
        A(f"s_add_u32 {sSL}, {sSL}, {sT1}")
        A(f"s_cmp_lt_u32 {sT1}, {per}")
        A(f"s_cselect_b32 {sSL}, {sSL}, 1000")
        A(f"s_cmp_lt_u32 {sSL}, 86")
        A(f"s_cselect_b32 s{R_WD+2}, {0 if self.x_noffn else 15*1024+128}, 0")
        A(f"s_cselect_b32 {sSL}, {sSL}, 0")
        A(f"s_lshl_b32 {sT0}, {sSL}, 14"); A(f"s_lshl_b32 {sT1}, {sW}, 7"); A(f"s_add_u32 {sT0}, {sT0}, {sT1}")
        self.mk(R_WD, P_WD, sT0, None)
        A(f"s_lshl_b32 {sT0}, {sH}, 17"); A(f"s_add_u32 {sT0}, {sT0}, {sT1}")
        self.mk(R_WO, P_WO, sT0, 0 if self.x_nowo else 127 * 1024 + 128)
        A(f"v_lshlrev_b32 v{vT1}, 4, v{vL}")
        if self.tlbpf:
            def pf():
                A(f"v_mov_b32 v{vQF+8}, 0")
                A("s_mov_b64 exec, 1")
                A(f"buffer_load_dword v{vQF+9}, v{vQF+8}, {srd(R_V)}, 0 offen nt")
                A(f"buffer_load_dword v{vQF+9}, v{vQF+8}, {srd(R_WO)}, 0 offen nt")
                A(f"buffer_load_dword v{vQF+9}, v{vQF+8}, {srd(R_WD)}, 0 offen nt")
                if self.tlbpf > 1:
                    A(f"buffer_load_dword v{vQF+9}, v{vQF+8}, {srd(R_K)}, 0 offen nt")
                    A(f"global_load_dword v{vQF+9}, v{vQF+8}, s[{P_OUT}:{P_OUT+1}]")
                A("s_mov_b64 exec, -1")
            self.only(6, pf)
        t = vTM + 4
        A(f"v_and_b32 v{t}, 7, v{vL}")
        A(f"v_lshlrev_b32 v{t}, 4, v{t}")
        A(f"v_lshrrev_b32 v{t+1}, 3, v{vL}")
        A(f"v_lshl_add_u32 v{vOD}, v{t+1}, 10, v{t}")
        A(f"v_and_b32 v{t+2}, 3, v{t+1}")
        A(f"v_lshlrev_b32 v{t+2}, 3, v{t+2}")
        A(f"v_lshrrev_b32 v{t+1}, 2, v{t+1}")
        A(f"v_add_u32 v{t+1}, v{t+1}, v{t+2}")
        A(f"v_lshl_add_u32 v{vOW}, v{t+1}, 10, v{t}")
        A(f"s_lshl_b32 {sWOL}, {sW}, 14"); A(f"s_add_u32 {sWOL}, {sWOL}, {L_WO}")
        A(f"s_lshl_b32 {sWDL}, {sW}, 11"); A(f"s_add_u32 {sWDL}, {sWDL}, {L_WD}")
        A(f"v_and_b32 v{t}, 1, v{vI}")
        A(f"v_lshlrev_b32 v{t}, 4, v{t}")
        A(f"v_mov_b32 v{t+1}, 0xffff")
        A(f"v_lshlrev_b32 v{t+1}, v{t}, v{t+1}")
        A(f"v_bfe_u32 v{t}, v{vI}, 1, 2")
        for u in range(4):
            A(f"v_cmp_eq_u32 vcc, {u}, v{t}")
            self.nop(2)
            A(f"v_cndmask_b32 v{vM+u}, 0, v{t+1}, vcc")
        A(f"s_mov_b32 {sDUP0}, 0x01000100"); A(f"s_mov_b32 {sDUP1}, 0x03020302")
        A(f"s_mov_b32 {sC}, {f32(math.log2(math.e) / math.sqrt(128.0))}")
        A(f"s_getreg_b32 {sXCC}, hwreg(HW_REG_XCC_ID)")
        A(f"s_add_u32 {sT0}, {sWOL}, {14*1024}")
        A(f"v_lshl_add_u32 v{vT0}, v{vL}, 4, {sT0}")
        lo = self.label("p0o"); lj = self.label("p0j")
        A(f"s_cmp_lg_u32 {sW}, {self.hs if not self.x_nohs else 9}"); A(f"s_cbranch_scc1 {lo}")
        A(f"s_lshl_b32 {sTF}, {sFT}, 3")
        A(f"v_mov_b32 v{vQF+5}, {sTF}"); A(f"v_mov_b32 v{vQF+6}, 1")
        A("s_waitcnt vmcnt(0)")
        A("s_mov_b64 exec, 1")
        A(f"global_atomic_add v{vFL}, v{vQF+5}, v{vQF+6}, s[{P_DBG}:{P_DBG+1}] sc0")
        A("s_mov_b64 exec, -1")
        A(f"s_branch {lj}")
        self.L(lo)
        if self.k0mode == 1:
            if (4 + self.npre) % 4: A(f"s_xor_b32 {sTK}, {sROT}, {((4 + self.npre) // 4) << self.shG}")
            A(f"s_waitcnt vmcnt({4 + self.npre})")
        else:
            for t in range(4):
                A(f"s_waitcnt vmcnt({[3,2,2,3][t]})")
                self.kv_load("K", 0, t)
            for n in range(self.npre): self.kv_load("K", 1 + n // 4, n % 4)
        self.L(lj)
        if self.curve and "p0" in self.curve:
            p = self.cpairs[1 + self.curve.index("p0")]; A(f"s_memrealtime s[{p}:{p+1}]")
        self.bsel(vXR, 0, 0); self.bsel(vXR, 1, 1)
        self.nop(1)
        A(f"v_mfma_f32_16x16x32_bf16 {vr(vACC,4)}, {vr(vDF,4)}, {vr(vBF,4)}, 0")
        A(f"v_mfma_f32_16x16x32_bf16 {vr(vAC2,4)}, {vr(vDF+8,4)}, {vr(vBF,4)}, 0")
        A(f"v_mfma_f32_16x16x32_bf16 {vr(vACC,4)}, {vr(vDF+4,4)}, {vr(vBF+4,4)}, {vr(vACC,4)}")
        A(f"v_mfma_f32_16x16x32_bf16 {vr(vAC2,4)}, {vr(vDF+12,4)}, {vr(vBF+4,4)}, {vr(vAC2,4)}")
        self.nop(8)
        A(f"ds_write_b128 v{vT0}, {vr(vACC,4)}")
        A(f"ds_write_b128 v{vT0}, {vr(vAC2,4)} offset:1024")
        A("s_waitcnt lgkmcnt(0)")
        A("s_barrier")
        if self.curve and "bar" in self.curve:
            p = self.cpairs[1 + self.curve.index("bar")]; A(f"s_memrealtime s[{p}:{p+1}]")
        def publish():
            d = vSP; d2 = vK + 96
            A(f"v_add_u32 v{vT0}, {L_WO + 14*1024}, v{vT1}")
            A(f"v_add_u32 v{vTM}, 0x10000, v{vT0}")
            for w in range(8): A(f"ds_read_b128 {vr(d+4*w,4)}, v{vT0 if w < 4 else vTM} offset:{16384*(w&3)}")
            for w in range(4): A(f"ds_read_b128 {vr(d2+4*w,4)}, v{vT0} offset:{1024+16384*w}")
            A(f"s_lshl_b32 {sT0}, {sH}, 3"); A(f"s_add_u32 {sT0}, {sT0}, {sJ}"); A(f"s_lshl_b32 {sT0}, {sT0}, 10")
            A(f"s_add_u32 {sT0}, {sT0}, {WS_Q}")
            A(f"s_lshl_b32 {sT1}, {sTI}, 3"); A(f"s_add_u32 {sT1}, {sT1}, {sJ}"); A(f"s_lshl_b32 {sT1}, {sT1}, 10")
            A(f"s_add_u32 {sT1}, {sT1}, {WS_F}")
            A("s_waitcnt lgkmcnt(4)")
            for w in range(4, 8): A(f"ds_read_b128 {vr(d2+4*w,4)}, v{vTM} offset:{1024+16384*(w&3)}")
            for w in range(1, 8):
                for r in range(4): A(f"v_add_f32 v{d+r}, v{d+r}, v{d+4*w+r}")
            for r in range(4): A(f"v_min_u32 v{d+r}, -2, v{d+r}")
            A(f"buffer_store_dwordx4 {vr(d,4)}, v{vT1}, {srd(R_WS)}, {sT0} offen sc1")
            A("s_waitcnt lgkmcnt(0)")
            for w in range(1, 8):
                for r in range(4): A(f"v_add_f32 v{d2+r}, v{d2+r}, v{d2+4*w+r}")
            for r in range(4): A(f"v_min_u32 v{d2+r}, -2, v{d2+r}")
            A(f"buffer_store_dwordx4 {vr(d2,4)}, v{vT1}, {srd(R_WS)}, {sT1} offen sc1")
            if self.curve: A(f"s_memrealtime s[{self.cpairs[1]}:{self.cpairs[1]+1}]")
            self.nop(2)
        self.only(self.pub, publish)

    def bcast(self):
        A = self.A
        sk = self.label("nobc")
        A(f"v_lshlrev_b32 v{vQF+4}, 12, v{vL}"); A(f"v_mov_b32 v{vQF+6}, 1")
        A(f"s_lshl_b32 {sT0}, {sFT}, 7"); A(f"s_add_u32 {sT0}, {sT0}, {WS_MB}")
        A("s_waitcnt vmcnt(0)")
        if self.curve: A(f"s_memrealtime s[{self.cpairs[2]}:{self.cpairs[2]+1}]")
        A(f"v_readfirstlane_b32 {sT1}, v{vFL}")
        self.nop(3)
        A(f"s_and_b32 {sFT}, {sT1}, 7"); A(f"s_cmp_lg_u32 {sFT}, 7"); A(f"s_cbranch_scc1 {sk}")
        A("s_mov_b32 exec_lo, 0xff"); A("s_mov_b32 exec_hi, 0")
        A(f"buffer_store_dword v{vQF+6}, v{vQF+4}, {srd(R_WS)}, {sT0} offen sc1")
        A("s_mov_b64 exec, -1")
        self.L(sk)

    def q_gather(self, pre, mid):
        A = self.A
        go = self.label("go"); sp = self.label("mbspin"); gs = self.label("gaspin"); ok = self.label("gaok"); chk = self.label("gachk")
        A(f"s_mov_b32 {sCNT}, 0")
        A(f"s_mov_b32 {sX0}, {sTD}")
        pre()
        self.ga_addr()
        A(f"s_add_u32 {sT1}, {sT0}, 4096")
        A(f"s_cmp_eq_u32 {sFT}, 7"); A(f"s_cbranch_scc1 {go}")
        self.L(sp)
        A("s_mov_b64 exec, 1")
        A(f"buffer_load_dword v{vFL}, v{vT1}, {srd(R_WS)}, {sX0} offen sc1")
        A("s_mov_b64 exec, -1")
        A(f"s_add_u32 {sCNT}, {sCNT}, 1")
        A("s_waitcnt vmcnt(0)")
        A(f"v_readfirstlane_b32 {sTF}, v{vFL}")
        A(f"s_cmp_ge_u32 {sCNT}, {SPIN}"); A(f"s_cbranch_scc1 {go}")
        A(f"s_cmp_lg_u32 {sTF}, 1"); A(f"s_cbranch_scc1 {sp}")
        self.L(go)
        if self.curve: A(f"s_memrealtime s[{self.cpairs[3]}:{self.cpairs[3]+1}]")
        def loads():
            for k in range(4):
                A(f"buffer_load_dwordx4 {vr(vSP+4*k,4)}, v{vTM}, {srd(R_WS)}, {sT0 if k < 2 else sT1} offen offset:{(k&1)*2048} sc1")
        loads()
        n = mid()
        A(f"s_waitcnt vmcnt({n})")
        A(f"s_branch {chk}")
        self.L(gs)
        loads()
        A(f"s_add_u32 {sCNT}, {sCNT}, 1")
        A(f"s_cmp_ge_u32 {sCNT}, {SPIN}")
        A("s_waitcnt vmcnt(0)")
        A(f"s_cbranch_scc1 {ok}")
        self.L(chk)
        t = vTM + 2
        A(f"v_max3_u32 v{t}, v{vSP}, v{vSP+1}, v{vSP+2}")
        for k in range(3, 15, 2): A(f"v_max3_u32 v{t}, v{t}, v{vSP+k}, v{vSP+k+1}")
        A(f"v_max_u32 v{t}, v{t}, v{vSP+15}")
        A(f"v_cmp_eq_u32 vcc, -1, v{t}")
        A(f"s_cbranch_vccnz {gs}")
        self.L(ok)

    def ga_addr(self):
        A = self.A
        t = vTM
        A(f"s_lshl_b32 {sT0}, {sH}, 13"); A(f"s_lshl_b32 {sT1}, {sB}, 7"); A(f"s_add_u32 {sT0}, {sT0}, {sT1}")
        A(f"s_add_u32 {sT0}, {sT0}, {WS_Q}")
        A(f"v_and_b32 v{t}, 7, v{vL}"); A(f"v_lshlrev_b32 v{t}, 4, v{t}")
        A(f"v_bfe_u32 v{t+1}, v{vL}, 3, 2"); A(f"v_lshl_add_u32 v{t}, v{t+1}, 8, v{t}")
        A(f"v_lshrrev_b32 v{t+1}, 5, v{vL}"); A(f"v_lshl_add_u32 v{t}, v{t+1}, 10, v{t}")

    def q_reduce(self):
        A = self.A
        t = vTM
        d = vSP
        for k in range(1, 4):
            for r in range(4): A(f"v_add_f32 v{d+r}, v{d+r}, v{d+4*k+r}")
        A(f"v_and_b32 v{t+1}, 7, v{vL}")
        A(f"v_lshrrev_b32 v{t+2}, 5, v{vL}")
        A(f"v_permlane32_swap_b32 v{d}, v{d+1}"); A(f"v_permlane32_swap_b32 v{d+2}, v{d+3}")
        A(f"v_lshl_add_u32 v{t+1}, v{t+2}, 3, v{t+1}")
        A(f"v_add_f32 v{d}, v{d}, v{d+1}"); A(f"v_add_f32 v{d+2}, v{d+2}, v{d+3}")
        A(f"v_cvt_pk_bf16_f32 v{d}, v{d}, v{d+2}")
        A(f"v_bfe_u32 v{t}, v{vL}, 3, 2")
        A(f"v_lshl_add_u32 v{t}, v{t}, 5, v{t+1}")
        A(f"v_lshlrev_b32 v{t}, 1, v{t}")
        A(f"ds_write_b16 v{t}, v{d} offset:{L_QS}")
        A(f"ds_write_b16_d16_hi v{t}, v{d} offset:{L_QS+32}")

    def items(self):
        A = self.A
        it = []
        def add(name, fn, dep=None): it.append(dict(name=name, fn=fn, dep=dep))
        def grp(kind, G, dep):
            for t in range(4): add(f"{kind}{G}_{t}", lambda t=t: self.kv_load(kind, G, t), dep if t == 0 else None)
        wd = []
        for t in range(2):
            def fn(t=t):
                A(f"s_add_u32 m0, {sWDL}, {t*1024}")
                A(f"s_movk_i32 {sTD}, {t*8192}")
                A(f"buffer_load_dwordx4 v{vOD}, {srd(R_WD)}, {sTD} offen nt lds")
            wd.append((f"wd{t}", fn, None))
        wo = []
        for t in range(16):
            def fn(t=t):
                A(f"s_add_u32 m0, {sWOL}, {t*1024}")
                A(f"s_mov_b32 {sTD}, {(32*(t>>2) + 2*(t&3))*1024}")
                A(f"buffer_load_dwordx4 v{vOW}, {srd(R_WO)}, {sTD} offen nt lds")
            wo.append((f"wo{t}", fn, "qred" if t >= 14 else None))
        dma = wo[:4] + wd + wo[4:]
        def put(slot):
            for _ in range(self.wo_sched[slot]):
                n, fn, dep = dma.pop(0); add(n, fn, dep)
        for G in range(8): grp("K", G, None); put(G)
        for G in range(8): grp("V", G, (self.st_after if G == 7 else f"qk{G-1}") if G else None); put(8 + G)
        return it

    def step_gate0(self):
        A = self.A
        def fn():
            A(f"s_lshl_b32 {sT1}, {sB}, 10")
            A(f"buffer_load_dwordx4 {vr(vXR,4)}, v{vT1}, {srd(R_X)}, {sT1} offen")
            A(f"buffer_load_dwordx4 {vr(vXR+4,4)}, v{vT1}, {srd(R_GW)}, 0 offen")
        self.only(self.gsvc, fn)
    def step_gate(self):
        A = self.A
        def fn():
            x, w = vXR, vXR + 4
            t = vTM
            acc = vT0
            A(f"v_mov_b32 v{acc}, 0")
            for k in range(4):
                A(f"v_lshlrev_b32 v{t}, 16, v{x+k}"); A(f"v_lshlrev_b32 v{t+1}, 16, v{w+k}")
                A(f"v_and_b32 v{t+2}, 0xffff0000, v{x+k}"); A(f"v_and_b32 v{t+3}, 0xffff0000, v{w+k}")
                A(f"v_mul_f32 v{t}, v{t}, v{t+1}"); A(f"v_mul_f32 v{t+2}, v{t+2}, v{t+3}")
                A(f"v_cvt_pk_bf16_f32 v{t}, v{t}, v{t+2}")
                A(f"v_lshlrev_b32 v{t+1}, 16, v{t}"); A(f"v_and_b32 v{t}, 0xffff0000, v{t}")
                A(f"v_add_f32 v{acc}, v{acc}, v{t+1}"); A(f"v_add_f32 v{acc}, v{acc}, v{t}")
            for ctl in ("quad_perm:[1,0,3,2]", "quad_perm:[2,3,0,1]", "row_half_mirror", "row_mirror"):
                self.dpp_add(acc, ctl)
            self.swap_reduce("v_add_f32", acc, t, 16)
            self.swap_reduce("v_add_f32", acc, t, 32)
            A(f"v_cvt_pk_bf16_f32 v{acc}, v{acc}, v{acc}")
            A(f"v_and_b32 v{acc}, 0xffff0000, v{acc}")
            A(f"v_mul_f32 v{acc}, {f32(-math.log2(math.e))}, v{acc}")
            A(f"v_exp_f32 v{acc}, v{acc}")
            self.nop(1)
            A(f"v_add_f32 v{acc}, 1.0, v{acc}")
            A(f"v_rcp_f32 v{acc}, v{acc}")
            self.nop(1)
            A(f"v_cvt_pk_bf16_f32 v{acc}, v{acc}, v{acc}")
            A(f"v_and_b32 v{t}, 0xffff0000, v{acc}")
            A(f"v_sub_f32 v{t+1}, 1.0, v{t}")
            A(f"v_cvt_pk_bf16_f32 v{t+1}, v{t+1}, v{t+1}")
            A(f"v_and_b32 v{t+1}, 0xffff0000, v{t+1}")
            A(f"v_mov_b32 v{t+2}, 0")
            A(f"ds_write_b64 v{t+2}, {vr(t,2)} offset:{L_GS}")
        self.only(self.gsvc, fn)

    def fl_load(self):
        A = self.A
        A(f"v_and_b32 v{vT0}, 31, v{vL}"); A(f"v_lshlrev_b32 v{vT0}, 3, v{vT0}")
        A(f"global_load_dword v{vFL}, v{vT0}, s[{P_DBG}:{P_DBG+1}] sc1")
    def step_fl(self):
        A = self.A
        def fn():
            self.fl_load()
            if self.adapt:
                t = vTM
                A(f"v_mov_b32 v{t}, 0"); A(f"v_mov_b32 v{t+1}, 2")
                A(f"s_lshl_b32 {sT0}, s2, 7"); A(f"s_add_u32 {sT0}, {sT0}, {WS_MB + 4}")
                A("s_mov_b64 exec, 1")
                A(f"buffer_store_dword v{t+1}, v{t}, {srd(R_WS)}, {sT0} offen sc1")
                A("s_mov_b64 exec, -1")
                A(f"s_lshr_b32 {sT0}, s2, 3"); A(f"s_and_b32 {sT0}, {sT0}, 3"); A(f"s_lshl_b32 {sT0}, {sT0}, 10")
                A(f"s_add_u32 {sT0}, {sT0}, {WS_MB + 4}")
                A(f"v_and_b32 v{t}, 7, v{vL}"); A(f"v_lshlrev_b32 v{t}, 7, v{t}")
                A(f"v_lshrrev_b32 v{t+1}, 3, v{vL}"); A(f"v_lshl_add_u32 v{t}, v{t+1}, 12, v{t}")
                A(f"buffer_load_dword v{vFG}, v{t}, {srd(R_WS)}, {sT0} offen sc1")
        self.only(self.svc, fn)
    def step_rank(self):
        A = self.A
        def fn():
            t = vTM
            A(f"v_cmp_eq_u32 s[52:53], 2, v{vFG}")
            A(f"v_cmp_gt_u32 vcc, 8, v{vFL}")
            A(f"s_bcnt1_i32_b64 {sT0}, s[52:53]")
            A(f"s_cmp_lg_u64 vcc, 0")
            A(f"s_cselect_b32 {sT0}, 64, {sT0}")
            A(f"v_mov_b32 v{t}, 0"); A(f"v_mov_b32 v{t+1}, {sT0}")
            A(f"ds_write_b32 v{t}, v{t+1} offset:{L_RK}")
        self.only(self.svc, fn)
    def step_fga(self):
        A = self.A
        def fn():
            ok = self.label("flok"); sp = self.label("flspin")
            A(f"v_cmp_gt_u32 vcc, 8, v{vFL}")
            A(f"s_cbranch_vccz {ok}")
            A(f"s_mov_b32 {sCNT}, 0")
            self.L(sp)
            A(f"s_sleep {self.sleep}")
            self.fl_load()
            A(f"s_add_u32 {sCNT}, {sCNT}, 1")
            A(f"s_cmp_ge_u32 {sCNT}, {SPIN}")
            A("s_waitcnt vmcnt(0)")
            A(f"s_cbranch_scc1 {ok}")
            A(f"v_cmp_gt_u32 vcc, 8, v{vFL}")
            A(f"s_cbranch_vccnz {sp}")
            self.L(ok)
            self.fg_load()
        self.only(self.svc, fn)
    def fg_load(self):
        A = self.A
        A(f"s_lshr_b32 {sT0}, {sSL}, 3"); A(f"s_lshl_b32 {sT0}, {sT0}, 13")
        A(f"s_lshl_b32 {sT1}, {sB}, 7"); A(f"s_add_u32 {sT0}, {sT0}, {sT1}")
        A(f"s_bfe_u32 {sT1}, {sSL}, 0x20001"); A(f"s_lshl_b32 {sT1}, {sT1}, 8"); A(f"s_add_u32 {sT0}, {sT0}, {sT1}")
        A(f"s_and_b32 {sT1}, {sSL}, 1"); A(f"s_lshl_b32 {sT1}, {sT1}, 3"); A(f"s_add_u32 {sT0}, {sT0}, {sT1}")
        A(f"s_add_u32 {sT0}, {sT0}, {WS_F}")
        A(f"v_and_b32 v{vT0}, 7, v{vL}"); A(f"v_lshlrev_b32 v{vT0}, 4, v{vT0}")
        A(f"v_lshrrev_b32 v{vTM}, 3, v{vL}"); A(f"v_lshl_add_u32 v{vT0}, v{vTM}, 10, v{vT0}")
        A(f"buffer_load_dwordx2 {vr(vFG,2)}, v{vT0}, {srd(R_WS)}, {sT0} offen sc1")
        A(f"s_add_u32 {sT0}, {sT0}, {11*8192}")
        A(f"buffer_load_dwordx2 {vr(vFG+2,2)}, v{vT0}, {srd(R_WS)}, {sT0} offen sc1")
    def step_ffn2(self):
        A = self.A
        t = vTM
        def fn():
            e = vFG
            ok = self.label("fgok"); sp = self.label("fgspin")
            A(f"s_mov_b32 {sCNT}, 0")
            self.L(sp)
            A(f"v_max3_u32 v{t}, v{e}, v{e+1}, v{e+2}"); A(f"v_max_u32 v{t}, v{t}, v{e+3}")
            A(f"v_cmp_eq_u32 vcc, -1, v{t}")
            A(f"s_cbranch_vccz {ok}")
            self.fg_load()
            A(f"s_add_u32 {sCNT}, {sCNT}, 1")
            A(f"s_cmp_lt_u32 {sCNT}, {SPIN}")
            A("s_waitcnt vmcnt(0)")
            A(f"s_cbranch_scc1 {sp}")
            self.L(ok)
            A(f"v_permlane32_swap_b32 v{e}, v{e+1}"); A(f"v_permlane32_swap_b32 v{e+2}, v{e+3}")
            self.nop(1)
            A(f"v_add_f32 v{e}, v{e}, v{e+1}"); A(f"v_add_f32 v{e+2}, v{e+2}, v{e+3}")
            self.swap_reduce("v_add_f32", e, e + 1, 16)
            self.swap_reduce("v_add_f32", e + 2, e + 3, 16)
            self.dpp_add(e, "row_ror:8"); self.dpp_add(e + 2, "row_ror:8")
            A(f"v_cvt_pk_bf16_f32 v{e}, v{e}, v{e+2}")
            A(f"v_and_b32 v{e+2}, 0xffff0000, v{e}")
            A(f"v_lshlrev_b32 v{e}, 16, v{e}")
            k0 = math.sqrt(2.0 / math.pi)
            A(f"v_mul_f32 v{e+1}, v{e}, v{e}")
            A(f"v_mov_b32 v{e+3}, {f32(-2.0 * k0 * math.log2(math.e))}")
            A(f"v_mul_f32 v{e+1}, {f32(0.044715)}, v{e+1}")
            A(f"v_add_f32 v{e+1}, 1.0, v{e+1}")
            A(f"v_mul_f32 v{e+1}, v{e+1}, v{e}")
            A(f"v_mul_f32 v{e+1}, v{e+1}, v{e+3}")
            A(f"v_exp_f32 v{e+1}, v{e+1}")
            self.nop(1)
            A(f"v_add_f32 v{e+1}, 1.0, v{e+1}")
            A(f"v_rcp_f32 v{e+1}, v{e+1}")
            self.nop(1)
            A(f"v_mul_f32 v{e}, v{e}, v{e+1}")
            A(f"v_cvt_pk_bf16_f32 v{e}, v{e}, v{e}")
            A(f"v_and_b32 v{e}, 0xffff0000, v{e}")
            A(f"v_mul_f32 v{e}, v{e}, v{e+2}")
            A(f"v_cvt_pk_bf16_f32 v{e}, v{e}, v{e}")
            A(f"v_and_b32 v{t+1}, 7, v{vL}"); A(f"v_lshrrev_b32 v{t+2}, 5, v{vL}")
            A(f"v_lshl_add_u32 v{t+1}, v{t+2}, 3, v{t+1}")
            A(f"v_lshlrev_b32 v{t+1}, 1, v{t+1}")
            A(f"ds_write_b16 v{t+1}, v{e} offset:{L_HS}")
            A(f"v_lshlrev_b32 v{t+1}, 3, v{vG}")
            A(f"v_mov_b32 v{t+3}, 0")
            A("s_waitcnt lgkmcnt(0)")
            A(f"ds_read_b64 {vr(e,2)}, v{t+1} offset:{L_HS}")
            A(f"ds_read_b32 v{e+2}, v{t+3} offset:{L_GS+4}")
            A(f"v_lshrrev_b32 v{t}, 2, v{vI}"); A(f"v_and_b32 v{t+1}, 3, v{vI}")
            A(f"v_lshlrev_b32 v{t+1}, 3, v{t+1}")
            A(f"v_lshl_add_u32 v{t+1}, v{t}, 7, v{t+1}")
            A(f"v_lshl_add_u32 v{t+1}, v{vG}, 9, v{t+1}")
            A(f"v_lshlrev_b32 v{t+2}, 2, v{vL}")
            for k in range(1, 4): A(f"v_cmp_eq_u32 {['', 's[52:53]', 's[54:55]', 's[68:69]'][k]}, {k}, v{vG}")
            wf = vDF
            for w in range(8):
                for tau in range(4):
                    A(f"ds_read_b64_tr_b16 {vr(wf+2*tau,2)}, v{t+1} offset:{L_WD + w*2048 + tau*32}")
                A("s_waitcnt lgkmcnt(0)")
                for tau in range(4):
                    A(f"v_mfma_f32_16x16x16_bf16 {vr(vFD+4*tau,4)}, {vr(e,2)}, {vr(wf+2*tau,2)}, 0")
                self.nop(6)
                A(f"v_cndmask_b32 v{t+4}, v{vFD}, v{vFD+4}, s[52:53]")
                self.nop(1)
                A(f"v_cndmask_b32 v{t+4}, v{t+4}, v{vFD+8}, s[54:55]")
                self.nop(1)
                A(f"v_cndmask_b32 v{t+4}, v{t+4}, v{vFD+12}, s[68:69]")
                A(f"v_mul_f32 v{t+4}, v{t+4}, v{e+2}")
                A(f"ds_write_b32 v{t+2}, v{t+4} offset:{L_YF + w*256}")
        self.only(self.svc, fn)

    def step_qred(self):
        A = self.A
        t = vTM
        A(f"v_and_b32 v{t}, 8, v{vL}")
        A(f"v_lshlrev_b32 v{t}, 3, v{t}")
        A(f"v_lshl_add_u32 v{t}, v{vG}, 4, v{t}")
        A("s_waitcnt lgkmcnt(0)")
        A("s_barrier")
        for T in range(2): A(f"ds_read_b128 {vr(vQF+4*T,4)}, v{t} offset:{L_QS+128*T}")
        A("s_waitcnt lgkmcnt(0)")

    def qk_combine(self, G):
        A = self.A
        a = vSP + 4 * G; b = vQF + 8 + 4 * (G & 1)
        for r in range(4): A(f"v_permlane32_swap_b32 v{a+r}, v{b+r}")
        for r in range(4): A(f"v_add_f32_dpp v{a+r}, v{b+r}, v{a+r} row_ror:8 row_mask:0xf bank_mask:0xf")
    def step_qk(self, G):
        A = self.A
        a = vSP + 4 * G; b = vQF + 8 + 4 * (G & 1); k = vK + 16 * G
        A(f"v_mfma_f32_16x16x32_bf16 {vr(a,4)}, {vr(k,4)}, {vr(vQF,4)}, 0")
        A(f"v_mfma_f32_16x16x32_bf16 {vr(b,4)}, {vr(k+8,4)}, {vr(vQF,4)}, 0")
        A(f"v_mfma_f32_16x16x32_bf16 {vr(a,4)}, {vr(k+4,4)}, {vr(vQF+4,4)}, {vr(a,4)}")
        A(f"v_mfma_f32_16x16x32_bf16 {vr(b,4)}, {vr(k+12,4)}, {vr(vQF+4,4)}, {vr(b,4)}")
        if G > 0:
            self.nop(4)
            self.qk_combine(G - 1)

    def step_softmax(self):
        A = self.A
        t = vTM
        m = vAC2 + 2
        A(f"v_max3_f32 v{m}, v{vSP}, v{vSP+1}, v{vSP+2}")
        for k in range(3, 27, 2): A(f"v_max3_f32 v{m}, v{m}, v{vSP+k}, v{vSP+k+1}")
        self.qk_combine(7)
        A(f"v_max3_f32 v{m}, v{m}, v{vSP+27}, v{vSP+28}")
        A(f"v_max3_f32 v{m}, v{m}, v{vSP+29}, v{vSP+30}")
        A(f"v_max_f32 v{m}, v{m}, v{vSP+31}")
        self.swap_reduce("v_max_f32", m, t, 16)
        self.swap_reduce("v_max_f32", m, t, 32)
        A(f"s_lshl_b32 {sT0}, {sW}, 2")
        A(f"v_mov_b32 v{t+4}, {sT0}")
        A(f"v_mov_b32 v{t+5}, 0")
        A("s_mov_b64 exec, 1")
        A(f"ds_write_b32 v{t+4}, v{m} offset:{L_MX}")
        A("s_mov_b64 exec, -1")
        A("s_waitcnt lgkmcnt(0)")
        A("s_barrier")
        A(f"ds_read_b128 {vr(vBF,4)}, v{t+5} offset:{L_MX}")
        A(f"ds_read_b128 {vr(vBF+4,4)}, v{t+5} offset:{L_MX+16}")
        if self.adapt: A(f"ds_read_b32 v{t+6}, v{t+5} offset:{L_RK}")
        A("s_waitcnt lgkmcnt(0)")
        if self.adapt: A(f"v_readfirstlane_b32 {sDUP0}, v{t+6}")
        A(f"v_max3_f32 v{m}, v{vBF}, v{vBF+1}, v{vBF+2}")
        A(f"v_max3_f32 v{m}, v{m}, v{vBF+3}, v{vBF+4}")
        A(f"v_max3_f32 v{m}, v{m}, v{vBF+5}, v{vBF+6}")
        A(f"v_max_f32 v{m}, v{m}, v{vBF+7}")
        A(f"v_mul_f32 v{m}, {sC}, v{m}")
        l = vT0
        for k in range(32):
            A(f"v_fma_f32 v{vSP+k}, v{vSP+k}, {sC}, -v{m}")
        for k in range(32):
            A(f"v_exp_f32 v{vSP+k}, v{vSP+k}")
        A(f"v_add_f32 v{l}, v{vSP}, v{vSP+1}"); A(f"v_add_f32 v{t}, v{vSP+2}, v{vSP+3}")
        for k in range(4, 32, 2):
            A(f"v_add_f32 v{l}, v{l}, v{vSP+k}"); A(f"v_add_f32 v{t}, v{t}, v{vSP+k+1}")
        A(f"v_add_f32 v{l}, v{l}, v{t}")
        self.swap_reduce("v_add_f32", l, t, 16)
        self.swap_reduce("v_add_f32", l, t, 32)
        A("s_mov_b64 exec, 1")
        A(f"ds_write_b32 v{t+4}, v{l} offset:{L_LS}")
        A("s_mov_b64 exec, -1")
        for k in range(32):
            A(f"v_cvt_pk_bf16_f32 v{vSP+k}, v{vSP+k}, v{vSP+k}")
        A("s_waitcnt lgkmcnt(0)")
        A("s_barrier")
        def fn():
            A(f"ds_read_b128 {vr(vBF,4)}, v{t+5} offset:{L_LS}")
            A(f"ds_read_b128 {vr(vBF+4,4)}, v{t+5} offset:{L_LS+16}")
            A(f"s_lshl_b32 {sT0}, {sBH}, 2"); A(f"s_add_u32 {sT0}, {sT0}, {sS}")
            A(f"s_lshl_b32 {sT0}, {sT0}, 3"); A(f"s_add_u32 {sT0}, {sT0}, {WS_S}")
            A("s_waitcnt lgkmcnt(0)")
            for k in range(1, 8): A(f"v_add_f32 v{vBF}, v{vBF}, v{vBF+k}")
            A(f"v_min_u32 v{t+1}, -2, v{vBF}")
            A(f"v_mov_b32 v{t}, v{m}")
            A("s_mov_b64 exec, 1")
            A(f"buffer_store_dwordx2 {vr(t,2)}, v{t+5}, {srd(R_WS)}, {sT0} offen sc1")
            A("s_mov_b64 exec, -1")
        self.only(2, fn)

    def step_pv(self, G):
        A = self.A
        base = vX if G == 0 else vK + 16 * (G - 1)
        def build(k, bset):
            for u in range(4): A(f"v_and_b32 v{vBF+4*bset+u}, v{vSP+(k ^ (self.vx << 2))}, v{vM+u}")
        for r in range(4):
            k = 4 * G + r
            if k == 0: build(0, 0)
            if k + 1 < 32: build(k + 1, (k + 1) & 1)
            else: self.nop(2)
            c = "0" if k == 0 else vr(vACC, 4)
            A(f"v_mfma_f32_16x16x32_bf16 {vr(vACC,4)}, {vr(base+4*r,4)}, {vr(vBF+4*(k&1),4)}, {c}")

    WF = [vQF, vK + 16 * 7, vX, vK]
    def step_wof(self):
        A = self.A
        t = vTM
        A(f"v_lshrrev_b32 v{t}, 2, v{vI}"); A(f"v_and_b32 v{t+1}, 3, v{vI}")
        A(f"v_lshlrev_b32 v{t+1}, 3, v{t+1}")
        A(f"v_lshl_add_u32 v{t+1}, v{t}, 7, v{t+1}")
        A(f"v_lshl_add_u32 v{t+2}, v{vG}, 10, v{t+1}")
        A(f"v_add_u32 v{vOQ}, {sWOL}, v{t+2}")
        for tau in range(4):
            for T in range(4):
                for hi in range(2):
                    A(f"ds_read_b64_tr_b16 {vr(self.WF[tau]+4*T+2*hi,2)}, v{vOQ} offset:{T*4096 + hi*512 + tau*32}")
            if tau < 3: A("s_waitcnt lgkmcnt(4)")
        A(f"v_and_b32 v{t}, 7, v{vI}")
        A(f"s_mul_i32 {sT1}, {sW}, 288"); A(f"s_add_u32 {sT1}, {sT1}, {L_OB}")
        A(f"v_lshl_add_u32 v{vOK}, v{vG}, 6, {sT1}")
        A(f"v_lshl_add_u32 v{vOK}, v{t}, 3, v{vOK}")
        A(f"v_mul_u32_u24 v{vOW}, 288, v{t}")
        A(f"v_lshl_add_u32 v{vOW}, v{vG}, 4, v{vOW}")
        if not self.ybig:
            A(f"v_lshrrev_b32 v{t}, 2, v{vI}")
            A(f"v_lshl_add_u32 v{t}, v{vG}, 2, v{t}")
            A(f"v_lshlrev_b32 v{vOF}, 11, v{t}")
            A(f"s_lshl_b32 {sTF}, {sW}, 15")
            A(f"s_lshl_b32 {sT1}, {sB}, 18"); A(f"s_add_u32 {sTF}, {sTF}, {sT1}")
            A(f"s_lshl_b32 {sT1}, {sH}, 6"); A(f"s_add_u32 {sTF}, {sTF}, {sT1}")
            A(f"s_lshl_b32 {sT1}, {sS}, 4"); A(f"s_add_u32 {sTF}, {sTF}, {sT1}")
            A(f"v_cmp_gt_u32 s[0:1], 2, v{vG}")
            A(f"v_lshlrev_b32 v{vOD}, 4, v{vL}")
            A(f"s_lshl_b32 {sTQ}, s2, 11")
            A(f"v_and_b32 v{t}, 1, v{vG}"); A(f"v_lshrrev_b32 v{t+1}, 1, v{vG}")
            A(f"v_lshl_add_u32 v{t}, v{t}, 1, v{t+1}")
            A(f"s_lshl_b32 {sT1}, s2, 3")
            A(f"v_lshl_add_u32 v{vT1}, v{t}, 1, {sT1}")
        else:
            A(f"v_lshrrev_b32 v{t}, 1, v{vG}"); A(f"v_lshlrev_b32 v{vOF}, 14, v{t}")
            A(f"v_and_b32 v{t}, 31, v{vL}"); A(f"v_lshl_add_u32 v{vOF}, v{t}, 2, v{vOF}")
            A(f"s_lshl_b32 {sTF}, {sW}, 15")
            A(f"s_lshl_b32 {sT1}, {sB}, 18"); A(f"s_add_u32 {sTF}, {sTF}, {sT1}")
            A(f"s_lshl_b32 {sT1}, {sH}, 9"); A(f"s_add_u32 {sTF}, {sTF}, {sT1}")
            A(f"s_lshl_b32 {sT1}, {sS}, 7"); A(f"s_add_u32 {sTF}, {sTF}, {sT1}")
            A(f"v_cmp_gt_u32 s[0:1], 2, v{vG}")
            A(f"v_lshlrev_b32 v{vOD}, 4, v{vL}")
            A(f"s_lshr_b32 {sX1}, s2, 3")
            A(f"s_lshl_b32 {sTQ}, {sX1}, 14"); A(f"s_lshl_b32 {sT1}, {sW}, 11"); A(f"s_add_u32 {sTQ}, {sTQ}, {sT1}")
            A(f"s_lshl_b32 {sT1}, {sX1}, 6")
            A(f"v_lshl_add_u32 v{vT1}, v{vL}, 1, {sT1}")
        A("s_waitcnt lgkmcnt(0)")
        A(f"v_mov_b32 v{vOQ}, 0")
        A(f"s_lshl_b32 {sT1}, {sW}, 8")
        A(f"v_lshl_add_u32 v{vAC2}, v{vL}, 2, {sT1}")

    def st_load(self):
        A = self.A
        A(f"s_lshl_b32 {sT0}, {sBH}, 5"); A(f"s_add_u32 {sT0}, {sT0}, {WS_S}")
        A(f"v_mov_b32 v{vT0}, 0")
        for k in range(2):
            A(f"buffer_load_dwordx4 {vr(vXR+4*k,4)}, v{vT0}, {srd(R_WS)}, {sT0} offen offset:{16*k} sc1")
    def step_st0(self):
        self.only(self.svc, self.st_load)
    def step_scale(self):
        A = self.A
        t = vTM
        s = vXR
        def fn():
            ok = self.label("stok"); sp = self.label("stspin")
            A(f"v_mov_b32 v{t+3}, 0")
            A(f"ds_read_b32 v{t+2}, v{t+3} offset:{L_GS}")
            A(f"s_mov_b32 {sCNT}, 0")
            A(f"v_max3_u32 v{t}, v{s+1}, v{s+3}, v{s+5}")
            A(f"v_max_u32 v{t}, v{t}, v{s+7}")
            A(f"v_cmp_eq_u32 vcc, -1, v{t}")
            A(f"s_cbranch_vccz {ok}")
            self.L(sp)
            self.st_load()
            A(f"s_add_u32 {sCNT}, {sCNT}, 1")
            A(f"s_cmp_ge_u32 {sCNT}, {SPIN}")
            A("s_waitcnt vmcnt(0)")
            A(f"s_cbranch_scc1 {ok}")
            A(f"v_max3_u32 v{t}, v{s+1}, v{s+3}, v{s+5}")
            A(f"v_max_u32 v{t}, v{t}, v{s+7}")
            A(f"v_cmp_eq_u32 vcc, -1, v{t}")
            A(f"s_cbranch_vccnz {sp}")
            self.L(ok)
            A(f"v_max3_f32 v{t}, v{s}, v{s+2}, v{s+4}")
            A(f"v_max_f32 v{t}, v{t}, v{s+6}")
            for k in range(4): A(f"v_sub_f32 v{s+2*k}, v{s+2*k}, v{t}")
            A(f"v_sub_f32 v{t+1}, v{vAC2+2}, v{t}")
            for k in range(4): A(f"v_exp_f32 v{s+2*k}, v{s+2*k}")
            A(f"v_exp_f32 v{t+1}, v{t+1}")
            A(f"v_mul_f32 v{t}, v{s}, v{s+1}")
            for k in range(1, 4): A(f"v_fmac_f32 v{t}, v{s+2*k}, v{s+2*k+1}")
            A(f"v_rcp_f32 v{t}, v{t}")
            A("s_waitcnt lgkmcnt(0)")
            A(f"v_mul_f32 v{t+1}, v{t+2}, v{t+1}")
            A(f"v_mul_f32 v{t}, v{t}, v{t+1}")
            A(f"ds_write_b32 v{t+3}, v{t} offset:{L_FS}")
        self.only(self.svc, fn)

    def step_tail(self):
        A = self.A
        t = vTM
        A("s_mov_b32 exec_lo, 0x00ff00ff"); A("s_mov_b32 exec_hi, 0x00ff00ff")
        self.nop(6)
        A(f"v_cvt_pk_bf16_f32 v{t}, v{vACC}, v{vACC+1}")
        A(f"v_cvt_pk_bf16_f32 v{t+1}, v{vACC+2}, v{vACC+3}")
        A(f"ds_write_b64 v{vOK}, {vr(t,2)}")
        A("s_mov_b64 exec, -1")
        if self.dry:
            A(f"s_cmp_lt_u32 {sW}, 4"); A(f"s_cselect_b32 {sDUP1}, 1, 0"); A("s_cbranch_scc1 L_post")
            self.L("L_bar")
        A("s_waitcnt lgkmcnt(0)")
        A("s_barrier")
        if self.dry: self.L("L_post")
        af = vSP
        for T in range(4): A(f"ds_read_b128 {vr(af+4*T,4)}, v{vOW} offset:{L_OB + 64*T}")
        A(f"ds_read_b32 v{t+4}, v{vOQ} offset:{L_FS}")
        A(f"ds_read_b32 v{vAC2+3}, v{vAC2} offset:{L_YF}")
        for T in range(4):
            A(f"s_waitcnt lgkmcnt({5-T})" if not self.stamps else "s_waitcnt lgkmcnt(0)")
            for tau in range(4):
                c = vr(vDF+4*tau,4) if T else "0"
                A(f"v_mfma_f32_16x16x32_bf16 {vr(vDF+4*tau,4)}, {vr(af+4*T,4)}, {vr(self.WF[tau]+4*T,4)}, {c}")
        A("s_waitcnt lgkmcnt(0)")
        self.nop(4)
        for tau in range(4):
            d = vDF + 4 * tau
            A(f"v_add_f32 v{d}, v{d}, v{d+1}"); A(f"v_add_f32 v{d+2}, v{d+2}, v{d+3}")
            A(f"v_add_f32 v{d}, v{d}, v{d+2}")
        self.nop(1)
        A(f"v_permlane16_swap_b32 v{vDF}, v{vDF+4}")
        A(f"v_permlane16_swap_b32 v{vDF+8}, v{vDF+12}")
        self.nop(1)
        A(f"v_add_f32 v{vDF}, v{vDF}, v{vDF+4}")
        A(f"v_add_f32 v{vDF+8}, v{vDF+8}, v{vDF+12}")
        A(f"v_cndmask_b32 v{t}, v{vDF+8}, v{vDF}, s[0:1]")
        A(f"v_fma_f32 v{t}, v{t}, v{t+4}, v{vAC2+3}")
        A(f"v_min_u32 v{t}, -2, v{t}")
        self.nop(2)
        for k in range(1, 4):
            A(f"v_mov_b32_dpp v{t+k}, v{t} quad_perm:[{k},{k},{k},{k}] row_mask:0xf bank_mask:0xf")
        if self.dry:
            A(f"s_cmp_eq_u32 {sDUP1}, 1"); A(f"s_mov_b32 {sDUP1}, 0"); A("s_cbranch_scc1 L_bar")
        A("s_mov_b32 exec_lo, 0x11111111"); A("s_mov_b32 exec_hi, 0x11111111")
        A(f"buffer_store_dwordx4 {vr(t,4)}, v{vOF}, {srd(R_WS)}, {sTF} offen{'' if self.two_kernel else ' sc1'}")
        A("s_mov_b64 exec, -1")

    def consumer(self, poll=True):
        A = self.A
        y = vSP
        t = vTM + 4
        sp = self.label("yspin"); ok = self.label("yok"); fast = self.label("yfast")
        fl = " " + self.yflags if poll else ""
        if not poll or self.cons == 0:
            A(f"s_mov_b32 {sCNT}, 0")
            self.L(sp)
            A(f"buffer_load_dwordx4 {vr(y,4)}, v{vOD}, {srd(R_WS)}, {sTQ} offen{fl}")
            A(f"buffer_load_dwordx4 {vr(y+4,4)}, v{vOD}, {srd(R_WS)}, {sTQ} offen offset:1024{fl}")
            if poll:
                A(f"s_add_u32 {sCNT}, {sCNT}, 1")
                A(f"s_cmp_ge_u32 {sCNT}, {SPIN}")
                A("s_waitcnt vmcnt(0)")
                A(f"s_cbranch_scc1 {ok}")
                A(f"v_max3_u32 v{t}, v{y}, v{y+1}, v{y+2}")
                A(f"v_max3_u32 v{t+1}, v{y+3}, v{y+4}, v{y+5}")
                A(f"v_max3_u32 v{t}, v{t}, v{y+6}, v{y+7}")
                A(f"v_max_u32 v{t}, v{t}, v{t+1}")
                A(f"v_cmp_eq_u32 vcc, -1, v{t}")
                A(f"s_cbranch_vccnz {sp}")
                self.L(ok)
            else:
                A("s_waitcnt vmcnt(0)")
        else:
            mA, mB = "s[52:53]", "s[54:55]"
            D = self.cons
            def masks():
                A(f"v_max3_u32 v{t}, v{y}, v{y+1}, v{y+2}")
                A(f"v_max3_u32 v{t+1}, v{y+4}, v{y+5}, v{y+6}")
                A(f"v_max_u32 v{t}, v{t}, v{y+3}")
                A(f"v_max_u32 v{t+1}, v{t+1}, v{y+7}")
                A(f"v_cmp_eq_u32 {mA}, -1, v{t}")
                A(f"v_cmp_eq_u32 {mB}, -1, v{t+1}")
            def loads():
                la = self.label("ya"); lb = self.label("yb")
                A(f"s_mov_b64 exec, {mA}")
                A(f"s_cbranch_execz {la}")
                A(f"buffer_load_dwordx4 {vr(y,4)}, v{vOD}, {srd(R_WS)}, {sTQ} offen{fl}")
                self.L(la)
                A(f"s_mov_b64 exec, {mB}")
                A(f"s_cbranch_execz {lb}")
                A(f"buffer_load_dwordx4 {vr(y+4,4)}, v{vOD}, {srd(R_WS)}, {sTQ} offen offset:1024{fl}")
                self.L(lb)
                A("s_mov_b64 exec, -1")
            A(f"s_mov_b64 {mA}, -1"); A(f"s_mov_b64 {mB}, -1")
            A(f"s_mov_b32 {sCNT}, 0")
            self.L(sp)
            loads()
            A(f"s_add_u32 {sCNT}, {sCNT}, 1")
            A("s_waitcnt vmcnt(0)")
            masks()
            A(f"s_cmp_ge_u32 {sCNT}, {SPIN}"); A(f"s_cbranch_scc1 {ok}")
            A(f"s_bcnt1_i32_b64 {sT0}, {mA}"); A(f"s_bcnt1_i32_b64 {sT1}, {mB}")
            A(f"s_add_u32 {sT0}, {sT0}, {sT1}")
            if self.csleep:
                A(f"s_cmp_le_u32 {sT0}, {self.cthr}"); A(f"s_cbranch_scc1 {fast}")
                A(f"s_sleep {self.csleep}")
                A(f"s_branch {sp}")
            else:
                A(f"s_cmp_gt_u32 {sT0}, {self.cthr}"); A(f"s_cbranch_scc1 {sp}")
            self.L(fast)
            A(f"s_or_b64 vcc, {mA}, {mB}")
            A(f"s_cbranch_vccz {ok}")
            loads()
            A(f"s_add_u32 {sCNT}, {sCNT}, 1")
            A(f"s_waitcnt vmcnt({D})")
            masks()
            A(f"s_cmp_lt_u32 {sCNT}, {SPIN}"); A(f"s_cbranch_scc1 {fast}")
            self.L(ok)
        for k in range(4): A(f"v_add_f32 v{y+8+k}, v{y+k}, v{y+4+k}")
        y = y + 8
        self.nop(1)
        A(f"v_permlane32_swap_b32 v{y}, v{y+1}"); A(f"v_permlane32_swap_b32 v{y+2}, v{y+3}")
        self.nop(1)
        A(f"v_add_f32 v{y}, v{y}, v{y+1}"); A(f"v_add_f32 v{y+2}, v{y+2}, v{y+3}")
        self.nop(2)
        A(f"v_permlane16_swap_b32 v{y}, v{y+2}")
        self.nop(1)
        A(f"v_add_f32 v{y}, v{y}, v{y+2}")
        if self.ybig and poll:
            self.dpp_add(y, "row_ror:8")
            A(f"ds_write_b32 v{vOK}, v{y}")
            A("s_waitcnt lgkmcnt(0)")
            A("s_barrier")
            A(f"s_cmp_lg_u32 {sW}, 0"); A("s_cbranch_scc1 L_end")
            for w in range(8): A(f"ds_read_b32 v{y+w}, v{vOW} offset:{L_YF + 128*w}")
            A("s_waitcnt lgkmcnt(4)")
            A(f"v_add_f32 v{y}, v{y}, v{y+1}"); A(f"v_add_f32 v{y+2}, v{y+2}, v{y+3}")
            A("s_waitcnt lgkmcnt(0)")
            A(f"v_add_f32 v{y+4}, v{y+4}, v{y+5}"); A(f"v_add_f32 v{y+6}, v{y+6}, v{y+7}")
            A(f"v_add_f32 v{y}, v{y}, v{y+2}"); A(f"v_add_f32 v{y+4}, v{y+4}, v{y+6}")
            A(f"v_add_f32 v{y}, v{y}, v{y+4}")
            A(f"v_cvt_pk_bf16_f32 v{y}, v{y}, v{y}")
            A("s_mov_b32 exec_hi, 0")
        else:
            for ctl in ("quad_perm:[1,0,3,2]", "quad_perm:[2,3,0,1]", "row_half_mirror", "row_mirror"):
                self.dpp_add(y, ctl)
            A(f"v_cvt_pk_bf16_f32 v{y}, v{y}, v{y}")
            A("s_mov_b32 exec_lo, 0x00010001"); A("s_mov_b32 exec_hi, 0x00010001")
        A(f"global_store_short v{vT1}, v{y}, s[{P_OUT}:{P_OUT+1}]{self.oflags}")

    def steps(self, idx):
        S = []
        def add(name, needs, fn): S.append(dict(name=name, needs=needs, fn=fn))
        add("gate0", [], self.step_gate0)
        add("gate", ["@gate0"], self.step_gate)
        if self.curve:
            for G in range(1, 5):
                if f"w{G}" in self.curve: add(f"w{G}", [f"K{G}_3"], lambda: None)
        add("join", [self.q_at], lambda: None)
        add("qred", [], self.step_qred)
        if self.adapt: add("fl", [], self.step_fl)
        for G in range(8): add(f"qk{G}", [f"K{G}_3"], lambda G=G: self.step_qk(G))
        if self.adapt: add("rank", ["@fl"], self.step_rank)
        else: add("fl", [], self.step_fl)
        add("softmax", ["wd1"], self.step_softmax)
        lastdma = idx["wo15"]
        placed = False
        for G in range(8):
            if G == 7: add("scale", ["@st0"], self.step_scale)
            if not placed and G >= 2 and idx[f"V{G}_3"] > lastdma:
                add("wof", ["wo15"], self.step_wof); placed = True
            add(f"pv{G}", [f"V{G}_3"], lambda G=G: self.step_pv(G))
            if f"pv{G}" == self.fga_pos: add("fga", ["@fl"], self.step_fga)
            if f"pv{G}" == self.st_pos: add("st0", [], self.step_st0)
            if f"pv{G}" == self.ffn_pos: add("ffn2", ["@fga"], self.step_ffn2)
        assert placed
        add("tail", [], self.step_tail)
        return S

    def schedule(self, W, W2):
        self.st_pos = self.st_after; self.st_after = "st0"
        items = self.items()
        self.st_after = self.st_pos
        idx = {it["name"]: n for n, it in enumerate(items)}
        steps = self.steps(idx)
        issued = 4 + self.npre
        assert all(it['name'][0] == 'K' for it in items[:issued])
        comp = -1; done = set(); pos = -1; after = {}
        lother = self.label("other"); ljoin = self.label("join")
        self.A(f"s_cmp_lg_u32 {sW}, {self.hs if not self.x_nohs else 9}"); self.A(f"s_cbranch_scc1 {lother}")
        mark = len(self.o)
        self.L(lother)
        def run(steps):
            nonlocal issued, comp, pos, W
            for st in steps:
                need = max([after[n[1:]] if n[0] == "@" else idx[n] for n in st["needs"]], default=-1)
                pos = max(pos, need)
                def issue(w, la):
                    nonlocal issued, comp
                    while issued < len(items):
                        it = items[issued]
                        if issued > pos + la - 1: break
                        if it["dep"] and it["dep"] not in done:
                            assert issued > need, (st["name"], it["name"])
                            break
                        if issued - (comp + 1) >= w:
                            self.A(f"s_waitcnt vmcnt({w-1})"); comp = issued - w
                        it["fn"](); issued += 1
                if st['name'] != 'qred': issue(W, W)
                if comp < need:
                    self.A(f"s_waitcnt vmcnt({issued-1-need})"); comp = need
                if st["name"] == "join":
                    issue(W + self.boost, W + self.boost)
                    rest = self.o[mark:]; del self.o[mark:]
                    self.bcast()
                    n1 = self.hs_pre; n2 = min(issued, n1 + self.hs_mid)
                    def pre():
                        for n in range(n1): items[n]["fn"]()
                    def mid():
                        for n in range(n1, n2): items[n]["fn"]()
                        return n2 - n1
                    self.q_gather(pre, mid)
                    if self.curve: self.A(f"s_memrealtime s[{self.cpairs[4]}:{self.cpairs[4]+1}]")
                    self.q_reduce()
                    for n in range(n2, issued): items[n]["fn"]()
                    self.A(f"s_branch {ljoin}")
                    self.o += rest
                    self.L(ljoin)
                    comp = -1; W = W2
                if st["name"] in self.boosts: issue(W + self.boosts[st["name"]], W + self.boosts[st["name"]])
                self.o.append(f"    ; ---- {st['name']}")
                if not any(st["name"].startswith(p) for p in self.x_skip): st["fn"]()
                done.add(st["name"])
                after[st["name"]] = issued
                if st["name"] in self.stamp_after: self.stamp(self.stamp_after[st["name"]])
                if self.curve and st["name"] in self.curve:
                    p = self.cpairs[1 + self.curve.index(st["name"])]; self.A(f"s_memrealtime s[{p}:{p+1}]")
        names = [s["name"] for s in steps]
        k1 = names.index("softmax") + 1; k2 = names.index("tail")
        if not self.adapt:
            run(steps)
        else:
            run(steps[:k1])
            save = (issued, comp, pos, set(done), dict(after))
            lend = self.label("vend")
            for n, (thr, w) in enumerate(self.adapt):
                nxt = self.label("vnext")
                last = n == len(self.adapt) - 1
                if not last:
                    self.A(f"s_cmp_ge_u32 {sDUP0}, {thr}"); self.A(f"s_cbranch_scc1 {nxt}")
                issued, comp, pos = save[:3]; done.clear(); done.update(save[3]); after.clear(); after.update(save[4])
                W = w
                run(steps[k1:k2])
                if not last:
                    self.A(f"s_branch {lend}"); self.L(nxt)
            self.L(lend)
            run(steps[k2:])
        assert issued == len(items)

    def kd(self, name, vg, sg):
        return [f".amdhsa_kernel {name}", f"  .amdhsa_next_free_vgpr {vg}", f"  .amdhsa_next_free_sgpr {sg}",
                f"  .amdhsa_accum_offset {vg}", "  .amdhsa_group_segment_fixed_size 0", "  .amdhsa_kernarg_size 104",
                "  .amdhsa_user_sgpr_count 2", "  .amdhsa_user_sgpr_kernarg_segment_ptr 1",
                "  .amdhsa_system_sgpr_workgroup_id_x 1", ".end_amdhsa_kernel"]

    def build(self):
        A = self.A
        K1 = NAME + "_kernel"; K2 = "gated_mix_reduce_kernel"
        o = self.o
        o.append(HEADER.rstrip("\n"))
        if self.two_kernel:
            o.append(f"; @launch kernel={K1} grid=(256,1,1) block=(512,1,1) lds={LDS_BYTES}")
            o.append(f"; @launch kernel={K2} grid=(256,1,1) block=(64,1,1) lds=0")
        else:
            o.append(f"; @launch grid=(256,1,1) block=(512,1,1) lds={LDS_BYTES}")
        o += ['.amdgcn_target "amdgcn-amd-amdhsa--gfx950"', ".text", f".globl {K1}", ".p2align 8",
              f".type {K1},@function", f"{K1}:"]
        self.phase0()
        if self.W_even is not None:
            A(f"s_and_b32 {sT0}, {sXCC}, 1"); A("s_cbranch_scc1 L_odd")
            self.schedule(self.W_even, self.W2_even)
            A("s_branch L_join")
            self.L("L_odd")
            self.schedule(self.W, self.W2)
            self.L("L_join")
        else:
            self.schedule(self.W, self.W2)
        if self.curve:
            A("s_waitcnt lgkmcnt(0)")
            A(f"s_add_u32 s0, s40, {STAMP_OFF + 65536}"); A("s_addc_u32 s1, s41, 0")
            A(f"s_lshl_b32 s8, s2, 3"); A(f"s_add_u32 s8, s8, {sW}"); A("s_lshl_b32 s8, s8, 6")
            A("v_mov_b32 v112, s8")
            for k in range(16): A(f"v_mov_b32 v{116+k}, s{self.cpairs[k] if k < 15 else 90}")
            A("s_mov_b64 exec, 1")
            for k in range(4): A(f"global_store_dwordx4 v112, v[{116+4*k}:{119+4*k}], s[0:1] offset:{16*k}")
            A("s_mov_b64 exec, -1")
        if self.ybig:
            lc = "L_stamp" if self.stamps else "L_end"
            A(f"s_xor_b32 {sT0}, {sX1}, s2"); A(f"s_and_b32 {sT0}, {sT0}, 7"); A(f"s_cbranch_scc1 {lc}")
            t = vTM
            A(f"v_and_b32 v{t}, 1, v{vG}"); A(f"v_lshrrev_b32 v{t+1}, 1, v{vG}")
            A(f"v_lshl_add_u32 v{t}, v{t}, 1, v{t+1}")
            A(f"v_and_b32 v{t+1}, 7, v{vL}"); A(f"v_lshl_add_u32 v{t}, v{t+1}, 2, v{t}")
            A(f"s_lshl_b32 {sT1}, {sW}, 7"); A(f"s_add_u32 {sT1}, {sT1}, {L_YF}")
            A(f"v_lshl_add_u32 v{vOK}, v{t}, 2, {sT1}")
            A(f"v_and_b32 v{t}, 31, v{vL}"); A(f"v_lshlrev_b32 v{vOW}, 2, v{t}")
            A("s_barrier")
            self.consumer()
            if self.stamps:
                self.L("L_stamp")
                A(f"s_cmp_lg_u32 {sW}, 0"); A("s_cbranch_scc1 L_end")
        else:
            A(f"s_cmp_lg_u32 {sW}, 0"); A("s_cbranch_scc1 L_end")
        if not self.two_kernel and not self.ybig:
            self.consumer()
        if self.fixdur:
            A(f"s_mov_b32 s96, {self.fixdur}")
            if self.probe:
                if self.probe.get("wg") is not None:
                    A(f"s_cmp_lg_u32 s2, {self.probe['wg']}"); A("s_cbranch_scc1 L_end")
                A("s_waitcnt lgkmcnt(0)")
                A("s_sub_u32 s97, s98, s92"); A(f"s_mul_i32 s97, s97, {self.probe['m']}"); A("s_add_u32 s96, s96, s97")
            self.L("L_fix")
            A("s_memrealtime s[94:95]")
            A("s_waitcnt lgkmcnt(0)")
            A("s_sub_u32 s94, s94, s92")
            A(f"s_cmp_lt_u32 s94, s96")
            A("s_cbranch_scc1 L_fix")
        elif self.stamps and not self.curve:
            self.stamp(4)
            A("s_mov_b64 exec, 1")
            A("s_waitcnt lgkmcnt(0)")
            A(f"s_add_u32 s40, s40, {STAMP_OFF}"); A("s_addc_u32 s41, s41, 0")
            A("s_lshl_b32 s8, s2, 6"); A("v_mov_b32 v1, s8")
            for k in range(4):
                A(f"v_mov_b32 v{8+2*k}, s{sST+2*k}"); A(f"v_mov_b32 v{9+2*k}, s{sST+2*k+1}")
            A(f"v_mov_b32 v16, {sXCC}"); A("v_mov_b32 v17, 0")
            A(f"v_mov_b32 v18, s{sST+8}"); A(f"v_mov_b32 v19, s{sST+9}")
            A("global_store_dwordx4 v1, v[8:11], s[40:41]")
            A("global_store_dwordx4 v1, v[12:15], s[40:41] offset:16")
            A("global_store_dwordx4 v1, v[16:19], s[40:41] offset:32")
        self.L("L_end"); A("s_endpgm")
        if self.cpf: o.append(f".fill (16384 - (. - {K1})) / 4, 4, 0xbf810000")
        if self.two_kernel:
            o += [f".globl {K2}", ".p2align 8", f".type {K2},@function", f"{K2}:"]
            A("s_cmp_ge_u32 s2, 256"); A("s_cbranch_scc1 L_end2")
            A(f"s_load_dwordx2 s[{P_OUT}:{P_OUT+1}], s[0:1], 80")
            A(f"s_load_dwordx2 s[{P_WS}:{P_WS+1}], s[0:1], 96")
            t = vTM
            A(f"v_bfe_u32 v{vG}, v0, 4, 2")
            A(f"v_lshlrev_b32 v{vOD}, 4, v0")
            A(f"s_lshl_b32 {sTQ}, s2, 11")
            A(f"v_and_b32 v{t}, 1, v{vG}"); A(f"v_lshrrev_b32 v{t+1}, 1, v{vG}")
            A(f"v_lshl_add_u32 v{t}, v{t}, 1, v{t+1}")
            A(f"s_lshl_b32 {sT1}, s2, 3")
            A(f"v_lshl_add_u32 v{vT1}, v{t}, 1, {sT1}")
            A("s_waitcnt lgkmcnt(0)")
            self.mk(R_WS, P_WS, None, WS_BYTES)
            self.consumer(poll=False)
            self.L("L_end2"); A("s_endpgm")
        o += ['.section .rodata,"a"', ".p2align 6"] + self.kd(K1, 256, 102)
        if self.two_kernel:
            o += [".p2align 6"] + self.kd(K2, 112, 102)
        return "\n".join(o) + "\n"

if __name__ == "__main__":
    import argparse, json
    ap = argparse.ArgumentParser()
    ap.add_argument("out"); ap.add_argument("--opt", default="{}")
    a = ap.parse_args()
    open(a.out, "w").write(Gen(**json.loads(a.opt)).build())
```

```python
import sys, struct, math

NAME = "gated_mix__mha_block_cached__geglu_ffn__decode"
HEADER = open("cdna_kernels/" + NAME + ".s.ref").read().split("; Override launch")[0]

def f32(x):
    return "0x%08x" % struct.unpack("<I", struct.pack("<f", x))[0]

L_QS = 0
L_HS = 256
L_GS = 320
L_FS = 336
L_RK = 340
L_MX = 384
L_LS = 448
L_OB = 512
L_YF = 3072
L_WD = 5120
L_WO = L_WD + 16384
L_END = L_WO + 131072
LDS_BYTES = (L_END + 255) // 256 * 256

WS_Y = 0
WS_S = 0x80000
WS_Q = 0x89000
WS_F = WS_Q + 0x40000
WS_M = WS_F + 176 * 1024
WS_BYTES = WS_M
WS_MB = 0x81000
STAMP_OFF = 128 << 20
SPIN = "0x4000"

sW = "s3"
P_X, P_K, P_V, P_WQ, P_WO, P_WG, P_WU = 16, 18, 20, 22, 24, 28, 30
P_WD, P_GW, P_OUT, P_DBG, P_WS = 32, 34, 36, 38, 40
R_K, R_V, R_WQ, R_WO, R_X, R_GW, R_FT, R_WD, R_WS = 44, 48, 52, 56, 60, 64, 68, 76, 80
sH, sB, sS, sSL, sT0, sT1, sT2 = "s4", "s5", "s6", "s7", "s8", "s9", "s10"
sTK, sTV, sTQ, sTF, sTD = "s11", "s12", "s13", "s14", "s15"
sJ, sFT = "s72", "s73"
sDONE = sJ
sWOL, sWDL = "s84", "s85"
sDUP0, sDUP1 = "s86", "s87"
sC = "s88"; sCNT = "s89"; sXCC = "s90"; sBH = "s91"
sX0, sX1 = "s42", "s43"
sROT = "s74"
sTI = "s75"
sST = 92
def srd(r): return f"s[{r}:{r+3}]"

vL, vI, vG = 1, 2, 3
vOK, vOV, vOQ, vOW, vOF, vOD, vT0, vT1 = 4, 5, 6, 7, 8, 9, 10, 11
vM = 12
vXR = 16
vBF = 24
vACC = 32
vAC2 = 36
vQF = 40
vSP = 56
vDF = 88
vTM = 104
vFL = 111
vK = 112
vX = 240
vFG = vDF + 8
vFD = vK + 16
def vr(a, n): return f"v[{a}:{a+n-1}]"

class Gen:
    def __init__(self, W=5, W2=16, W_even=None, W2_even=None, two_kernel=False, stamps=False,
                 wo_sched=None, st_after="pv3", q_at="K6_3", boost=4, fga_pos="pv1", ffn_pos="pv5", sleep=32, curve=None, k0_late=True,
                 stamp_after=None, fixdur=0, svc=3, gsvc=2, hs=0, pub=1, probe=None, xmap=None, nx=6, cpf=0, x_skip=(), x_nohs=False, k0mode=0, x_noclear=False, x_noy=False, ylate=False, x_nowo=False, x_noffn=False, x_nowq=False, rot=None, lay=0, ybig=True, adapt=None, vx=0, wo_fl=" nt", wd_fl=" nt", wq_fl=" nt", ft_fl=" nt", smb=True, dry=0, tlbpf=0, cons=0, cthr=24, csleep=0, oflags="", yflags="sc1", hs_pre=12, hs_mid=10, npre=4, boosts=None):
        self.o = []
        self.__dict__.update(locals())
        self.wo_sched = wo_sched or [0, 0, 2, 2, 1, 2, 1, 2, 1, 2, 1, 2, 2, 0, 0, 0]
        assert sum(self.wo_sched) == 18
        self.cpairs = [92, 94, 96, 98, 100, 16, 18, 20, 22, 24, 26, 28, 30, 32, 34]
        if curve: self.stamps = True
        self.stamp_after = stamp_after if stamp_after is not None else ({} if curve else {"qred": 1, "pv7": 2, "tail": 3})
        self.lab = 0
        if probe: self.stamps = True; self.fixdur = probe['fix']; self.stamp_after = {probe['step']: 3}
        self.shS, self.shW, self.shG = {0: (18, 15, 12), 1: (18, 12, 15), 2: (15, 12, 17), 3: (12, 14, 17), 4: (15, 17, 12)}[lay]
        if lay and not rot: self.rot = [['w', 0]]
        self.boosts = boosts if boosts is not None else {'softmax': 4, 'wof': 4}
    def A(self, s): self.o.append("    " + s)
    def L(self, s): self.o.append(s + ":")
    def nop(self, n):
        while n > 0:
            k = min(n, 16); self.A(f"s_nop {k-1}"); n -= k
    def label(self, p):
        self.lab += 1; return f"L_{p}_{self.lab}"
    def stamp(self, k):
        if self.stamps: self.A(f"s_memrealtime s[{sST+2*k}:{sST+2*k+1}]")
    def only(self, w, fn):
        sk = self.label("skip")
        self.A(f"s_cmp_lg_u32 {sW}, {w}"); self.A(f"s_cbranch_scc1 {sk}")
        fn()
        self.L(sk)

    def swap_reduce(self, op, v, tmp, which):
        A = self.A
        A(f"v_mov_b32 v{tmp}, v{v}")
        self.nop(2)
        A(f"v_permlane{which}_swap_b32 v{v}, v{tmp}")
        self.nop(1)
        A(f"{op} v{v}, v{v}, v{tmp}")
    def dpp_add(self, v, ctl):
        self.nop(2)
        self.A(f"v_add_f32_dpp v{v}, v{v}, v{v} {ctl} row_mask:0xf bank_mask:0xf")
    def mk(self, r, p, off, size):
        A = self.A
        if off is None:
            A(f"s_mov_b32 s{r}, s{p}"); A(f"s_mov_b32 s{r+1}, s{p+1}")
        else:
            A(f"s_add_u32 s{r}, s{p}, {off}"); A(f"s_addc_u32 s{r+1}, s{p+1}, 0")
        if size is not None: A(f"s_mov_b32 s{r+2}, {size}")
        A(f"s_mov_b32 s{r+3}, 0x20000")

    def kv_load(self, kind, G, t):
        A = self.A
        st = sTK if kind == "K" else sTV
        if self.rot:
            if t == 0: A(f"s_xor_b32 {st}, {sROT}, {(G ^ (self.vx if kind == 'V' else 0)) << self.shG}")
            so = st
        else:
            if t == 0 and G > 0: A(f"s_movk_i32 {st}, {G*4096}")
            so = st if G > 0 else "0"
        if kind == "K":
            A(f"buffer_load_dwordx4 {vr(vK+16*G+4*t,4)}, v{vOK}, {srd(R_K)}, {so} offen offset:{(t>>1)*2048 + (t&1)*128} nt")
        else:
            dst = vX if G == 0 else vK + 16 * (G - 1)
            A(f"buffer_load_dwordx4 {vr(dst+4*t,4)}, v{vOV}, {srd(R_V)}, {so} offen offset:{256*t} nt")

    def bsel(self, src, half, bset):
        A = self.A
        t = vTM + 4 + bset
        A(f"v_perm_b32 v{t}, v{src}, v{src}, {sDUP1 if half else sDUP0}")
        for u in range(4): A(f"v_and_b32 v{vBF+4*bset+u}, v{t}, v{vM+u}")

    def phase0(self):
        A = self.A
        A("s_cmp_ge_u32 s2, 256")
        A("s_cbranch_scc1 L_end")
        A("s_load_dwordx16 s[16:31], s[0:1], 0")
        A("s_load_dwordx8 s[32:39], s[0:1], 64")
        A("s_load_dwordx2 s[40:41], s[0:1], 96")
        self.stamp(0)
        if self.fixdur and not self.probe: A("s_memrealtime s[92:93]")
        A("v_lshrrev_b32 v10, 6, v0")
        A(f"v_and_b32 v{vI}, 15, v0")
        A(f"v_readfirstlane_b32 {sW}, v10")
        A(f"v_bfe_u32 v{vG}, v0, 4, 2")
        A(f"s_and_b32 {sT0}, s2, 7")
        A(f"s_lshr_b32 {sT1}, s2, 3")
        A(f"s_and_b32 {sT2}, {sT1}, 3")
        A(f"s_lshl_b32 {sH}, {sT0}, 2")
        A(f"s_add_u32 {sH}, {sH}, {sT2}")
        A(f"s_lshr_b32 {sJ}, {sT1}, 2")
        A(f"s_and_b32 {sFT}, s2, 31")
        if self.xmap:
            A(f"s_lshl_b32 {sCNT}, {sT0}, 2"); A(f"s_lshr_b32 {sCNT}, {self.xmap}, {sCNT}"); A(f"s_and_b32 {sCNT}, {sCNT}, 15")
            A(f"s_mul_i32 {sTI}, {sT2}, {self.nx}"); A(f"s_add_u32 {sTI}, {sTI}, {sCNT}")
            A(f"s_cmp_eq_u32 {sCNT}, 15"); A(f"s_cselect_b32 {sTI}, 31, {sTI}")
        else:
            A(f"s_mov_b32 {sTI}, {sFT}")
        A(f"s_lshl_b32 {sTK}, {sJ}, 3"); A(f"s_add_u32 {sTK}, {sTK}, {sW}")
        A(f"s_lshl_b32 {sTV}, {sTK}, 4")
        A(f"s_lshl_b32 {sX0}, {sTK}, 16"); A(f"s_lshl_b32 {sTQ}, {sH}, 8"); A(f"s_add_u32 {sX0}, {sX0}, {sTQ}")
        A(f"s_cmp_ge_u32 {sTI}, 11")
        A(f"s_cselect_b32 {sX1}, 11, 0")
        A(f"s_sub_u32 {sX1}, {sTI}, {sX1}")
        A(f"s_lshl_b32 {sX1}, {sX1}, 8")
        A(f"s_mul_i32 {sTK}, {sTK}, {8*2752}")
        A(f"s_add_u32 {sX1}, {sX1}, {sTK}")
        A(f"s_sub_u32 s{R_FT+2}, {512*2752}, {sX1}")
        A(f"s_cmp_lt_u32 {sTI}, {0 if self.x_noffn else 22}")
        A(f"s_cselect_b32 s{R_FT+2}, s{R_FT+2}, 0")
        A(f"s_cselect_b32 {sX1}, {sX1}, 0")
        A(f"s_mov_b32 s{R_FT+3}, 0x20000")
        A(f"s_mov_b32 s{R_X+2}, 2048"); A(f"s_mov_b32 s{R_X+3}, 0x20000")
        A(f"s_mov_b32 s{R_WQ+2}, {0 if self.x_nowq else 7*8192+256}"); A(f"s_mov_b32 s{R_WQ+3}, 0x20000")
        A(f"s_movk_i32 {sTQ}, 8192")
        A(f"v_lshrrev_b32 v{vT0}, 3, v{vI}")
        A(f"v_lshlrev_b32 v{vT0}, 10, v{vT0}")
        A(f"v_lshl_add_u32 v{vT0}, v{vG}, 2, v{vT0}")
        A(f"v_lshlrev_b32 v{vT1}, 4, v{vI}")
        A(f"v_lshl_add_u32 v{vOQ}, v{vG}, 14, v{vT1}")
        A(f"v_mul_u32_u24 v{vOF}, {2*2752}, v{vG}")
        A(f"v_add_u32 v{vOF}, v{vOF}, v{vT1}")
        A(f"s_cmp_ge_u32 {sTI}, 11")
        A("s_waitcnt lgkmcnt(0)")
        A(f"s_cselect_b32 s{R_FT}, s{P_WU}, s{P_WG}"); A(f"s_cselect_b32 s{R_FT+1}, s{P_WU+1}, s{P_WG+1}")
        A(f"s_add_u32 s{R_WQ}, s{P_WQ}, {sX0}"); A(f"s_addc_u32 s{R_WQ+1}, s{P_WQ+1}, 0")
        A(f"buffer_load_dwordx4 {vr(vDF,4)}, v{vOQ}, {srd(R_WQ)}, 0 offen{self.wq_fl}")
        A(f"buffer_load_dwordx4 {vr(vDF+4,4)}, v{vOQ}, {srd(R_WQ)}, {sTQ} offen{self.wq_fl}")
        A(f"s_add_u32 s{R_FT}, s{R_FT}, {sX1}"); A(f"s_addc_u32 s{R_FT+1}, s{R_FT+1}, 0")
        A(f"buffer_load_dwordx4 {vr(vDF+8,4)}, v{vOF}, {srd(R_FT)}, 0 offen{self.ft_fl}")
        A(f"buffer_load_dwordx4 {vr(vDF+12,4)}, v{vOF}, {srd(R_FT)}, 0 offen offset:2752{self.ft_fl}")
        A(f"s_mov_b32 s{R_X}, s{P_X}"); A(f"s_mov_b32 s{R_X+1}, s{P_X+1}")
        A(f"buffer_load_dword v{vXR}, v{vT0}, {srd(R_X)}, {sTV} offen")
        def clear():
            self.mk(R_WS, P_WS, None, WS_BYTES)
            c = vQF
            for k in range(4): A(f"v_mov_b32 v{c+k}, -1")
            A(f"v_and_b32 v{c+4}, 63, v0"); A(f"v_lshlrev_b32 v{c+4}, 4, v{c+4}")
            A(f"s_lshl_b32 {sTD}, {sH}, 3"); A(f"s_add_u32 {sTD}, {sTD}, {sJ}"); A(f"s_lshl_b32 {sTD}, {sTD}, 10")
            A(f"s_add_u32 {sTD}, {sTD}, {WS_Q}")
            (not self.x_noclear) and A(f"buffer_store_dwordx4 {vr(c,4)}, v{c+4}, {srd(R_WS)}, {sTD} offen sc1")
            A(f"s_lshl_b32 {sTD}, {sTI}, 3"); A(f"s_add_u32 {sTD}, {sTD}, {sJ}"); A(f"s_lshl_b32 {sTD}, {sTD}, 10")
            A(f"s_add_u32 {sTD}, {sTD}, {WS_F}")
            (not self.x_noclear) and A(f"buffer_store_dwordx4 {vr(c,4)}, v{c+4}, {srd(R_WS)}, {sTD} offen sc1")
            if not self.two_kernel and not self.x_noy:
                A(f"s_lshl_b32 {sTD}, s2, 11")
                (not self.x_noclear) and A(f"buffer_store_dwordx4 {vr(c,4)}, v{c+4}, {srd(R_WS)}, {sTD} offen sc1")
                (not self.x_noclear) and A(f"buffer_store_dwordx4 {vr(c,4)}, v{c+4}, {srd(R_WS)}, {sTD} offen offset:1024 sc1")
            if self.smb:
                A("s_mov_b64 exec, 0xff") if False else (A("s_mov_b32 exec_lo, 0xff"), A("s_mov_b32 exec_hi, 0"))
                A(f"s_lshl_b32 {sTD}, s2, 7"); A(f"s_add_u32 {sTD}, {sTD}, {WS_MB}")
                A(f"buffer_store_dwordx4 {vr(c,4)}, v{c+4}, {srd(R_WS)}, {sTD} offen sc1")
            else:
                A(f"s_lshr_b32 {sTD}, {sJ}, 2"); A(f"s_lshl_b32 {sTD}, {sTD}, 5"); A(f"s_add_u32 {sTD}, {sTD}, {sH}")
                A(f"s_lshl_b32 {sTD}, {sTD}, 2"); A(f"s_and_b32 {sTF}, {sJ}, 3"); A(f"s_add_u32 {sTD}, {sTD}, {sTF}")
                A(f"s_lshl_b32 {sTD}, {sTD}, 3"); A(f"s_add_u32 {sTD}, {sTD}, {WS_S}")
                A("s_mov_b64 exec, 1")
                A(f"buffer_store_dwordx2 {vr(c,2)}, v{c+4}, {srd(R_WS)}, {sTD} offen sc1")
                A(f"s_lshl_b32 {sTD}, s2, 7"); A(f"s_add_u32 {sTD}, {sTD}, {WS_MB}")
                A(f"buffer_store_dwordx2 {vr(c,2)}, v{c+4}, {srd(R_WS)}, {sTD} offen sc1")
            A("s_mov_b64 exec, -1")
        self.only(self.hs, clear)
        if self.cpf:
            def pf():
                A("s_getpc_b64 s[26:27]")
                self.L("L_pc")
                A(f"s_sub_u32 s26, s26, L_pc-{NAME}_kernel"); A("s_subb_u32 s27, s27, 0")
                if self.cpf == 1:
                    A(f"s_lshl_b32 {sTD}, {sT1}, 9")
                    A(f"v_and_b32 v{vQF+8}, 63, v0"); A(f"v_lshl_add_u32 v{vQF+8}, v{vQF+8}, 3, {sTD}")
                    A(f"global_load_dwordx2 v[{vQF+10}:{vQF+11}], v{vQF+8}, s[26:27]")
                else:
                    A(f"v_and_b32 v{vQF+8}, 63, v0"); A(f"v_lshlrev_b32 v{vQF+8}, 7, v{vQF+8}")
                    A(f"global_load_dword v{vQF+10}, v{vQF+8}, s[26:27]")
                    A(f"v_add_u32 v{vQF+8}, 8192, v{vQF+8}")
                    A(f"global_load_dword v{vQF+10}, v{vQF+8}, s[26:27]")
            self.only(7, pf)
        A(f"v_and_b32 v{vL}, 63, v0")
        A(f"s_lshr_b32 {sB}, {sJ}, 2")
        A(f"s_and_b32 {sS}, {sJ}, 3")
        A(f"s_lshl_b32 {sBH}, {sB}, 5"); A(f"s_add_u32 {sBH}, {sBH}, {sH}")
        A(f"v_and_b32 v{vOK}, 7, v0")
        A(f"v_lshlrev_b32 v{vOK}, 8, v{vOK}")
        A(f"v_lshl_add_u32 v{vOK}, v{vG}, 4, v{vOK}")
        A(f"v_and_b32 v{vOV}, 8, v0")
        A(f"v_lshl_add_u32 v{vOK}, v{vOV}, 3, v{vOK}")
        A(f"v_lshl_add_u32 v{vOV}, v{vG}, 10, v{vT1}")
        A(f"s_lshl_b32 {sTK}, {sBH}, 20")
        A(f"s_lshl_b32 {sTV}, {sS}, {self.shS}"); A(f"s_add_u32 {sTK}, {sTK}, {sTV}")
        A(f"s_lshl_b32 {sTV}, {sW}, {self.shW}"); A(f"s_add_u32 {sTK}, {sTK}, {sTV}")
        self.mk(R_K, P_K, sTK, (7 << self.shG) + 4096)
        if self.rot:
            regs = {"w": sW, "j": sJ, "h": sH, "x": sT0, "q": sT2, "b": sB, "s": sS}
            A(f"s_mov_b32 {sROT}, 0")
            for nm, mul in self.rot:
                A(f"s_mul_i32 {sTV}, {regs[nm]}, {mul}"); A(f"s_add_u32 {sROT}, {sROT}, {sTV}")
            A(f"s_and_b32 {sROT}, {sROT}, 7"); A(f"s_lshl_b32 {sROT}, {sROT}, {self.shG}")
        if self.k0mode == 1:
            lk = self.label("k0e")
            A(f"s_mov_b32 {sX1}, {sTK}")
            A(f"s_cmp_eq_u32 {sW}, {self.hs}"); A(f"s_cbranch_scc1 {lk}")
            for n in range(4 + self.npre): self.kv_load("K", n // 4, n % 4)
            self.L(lk)
            A(f"s_mov_b32 {sTK}, {sX1}")
        self.mk(R_V, P_V, sTK, (7 << self.shG) + 4096)
        self.mk(R_WS, P_WS, None, WS_BYTES)
        self.mk(R_GW, P_GW, None, 1024)
        A(f"s_and_b32 {sT1}, {sT1}, 15")
        per = -(-86 // self.nx) if self.xmap else 11
        A(f"s_mul_i32 {sSL}, {sCNT if self.xmap else sT0}, {per}")
        A(f"s_add_u32 {sSL}, {sSL}, {sT1}")
        A(f"s_cmp_lt_u32 {sT1}, {per}")
        A(f"s_cselect_b32 {sSL}, {sSL}, 1000")
        A(f"s_cmp_lt_u32 {sSL}, 86")
        A(f"s_cselect_b32 s{R_WD+2}, {0 if self.x_noffn else 15*1024+128}, 0")
        A(f"s_cselect_b32 {sSL}, {sSL}, 0")
        A(f"s_lshl_b32 {sT0}, {sSL}, 14"); A(f"s_lshl_b32 {sT1}, {sW}, 7"); A(f"s_add_u32 {sT0}, {sT0}, {sT1}")
        self.mk(R_WD, P_WD, sT0, None)
        A(f"s_lshl_b32 {sT0}, {sH}, 17"); A(f"s_add_u32 {sT0}, {sT0}, {sT1}")
        self.mk(R_WO, P_WO, sT0, 0 if self.x_nowo else 127 * 1024 + 128)
        A(f"v_lshlrev_b32 v{vT1}, 4, v{vL}")
        if self.tlbpf:
            def pf():
                A(f"v_mov_b32 v{vQF+8}, 0")
                A("s_mov_b64 exec, 1")
                A(f"buffer_load_dword v{vQF+9}, v{vQF+8}, {srd(R_V)}, 0 offen nt")
                A(f"buffer_load_dword v{vQF+9}, v{vQF+8}, {srd(R_WO)}, 0 offen nt")
                A(f"buffer_load_dword v{vQF+9}, v{vQF+8}, {srd(R_WD)}, 0 offen nt")
                if self.tlbpf > 1:
                    A(f"buffer_load_dword v{vQF+9}, v{vQF+8}, {srd(R_K)}, 0 offen nt")
                    A(f"global_load_dword v{vQF+9}, v{vQF+8}, s[{P_OUT}:{P_OUT+1}]")
                A("s_mov_b64 exec, -1")
            self.only(6, pf)
        t = vTM + 4
        A(f"v_and_b32 v{t}, 7, v{vL}")
        A(f"v_lshlrev_b32 v{t}, 4, v{t}")
        A(f"v_lshrrev_b32 v{t+1}, 3, v{vL}")
        A(f"v_lshl_add_u32 v{vOD}, v{t+1}, 10, v{t}")
        A(f"v_and_b32 v{t+2}, 3, v{t+1}")
        A(f"v_lshlrev_b32 v{t+2}, 3, v{t+2}")
        A(f"v_lshrrev_b32 v{t+1}, 2, v{t+1}")
        A(f"v_add_u32 v{t+1}, v{t+1}, v{t+2}")
        A(f"v_lshl_add_u32 v{vOW}, v{t+1}, 10, v{t}")
        A(f"s_lshl_b32 {sWOL}, {sW}, 14"); A(f"s_add_u32 {sWOL}, {sWOL}, {L_WO}")
        A(f"s_lshl_b32 {sWDL}, {sW}, 11"); A(f"s_add_u32 {sWDL}, {sWDL}, {L_WD}")
        A(f"v_and_b32 v{t}, 1, v{vI}")
        A(f"v_lshlrev_b32 v{t}, 4, v{t}")
        A(f"v_mov_b32 v{t+1}, 0xffff")
        A(f"v_lshlrev_b32 v{t+1}, v{t}, v{t+1}")
        A(f"v_bfe_u32 v{t}, v{vI}, 1, 2")
        for u in range(4):
            A(f"v_cmp_eq_u32 vcc, {u}, v{t}")
            self.nop(2)
            A(f"v_cndmask_b32 v{vM+u}, 0, v{t+1}, vcc")
        A(f"s_mov_b32 {sDUP0}, 0x01000100"); A(f"s_mov_b32 {sDUP1}, 0x03020302")
        A(f"s_mov_b32 {sC}, {f32(math.log2(math.e) / math.sqrt(128.0))}")
        A(f"s_getreg_b32 {sXCC}, hwreg(HW_REG_XCC_ID)")
        A(f"s_add_u32 {sT0}, {sWOL}, {14*1024}")
        A(f"v_lshl_add_u32 v{vT0}, v{vL}, 4, {sT0}")
        lo = self.label("p0o"); lj = self.label("p0j")
        A(f"s_cmp_lg_u32 {sW}, {self.hs if not self.x_nohs else 9}"); A(f"s_cbranch_scc1 {lo}")
        A(f"s_lshl_b32 {sTF}, {sFT}, 3")
        A(f"v_mov_b32 v{vQF+5}, {sTF}"); A(f"v_mov_b32 v{vQF+6}, 1")
        A("s_waitcnt vmcnt(0)")
        A("s_mov_b64 exec, 1")
        A(f"global_atomic_add v{vFL}, v{vQF+5}, v{vQF+6}, s[{P_DBG}:{P_DBG+1}] sc0")
        A("s_mov_b64 exec, -1")
        A(f"s_branch {lj}")
        self.L(lo)
        if self.k0mode == 1:
            if (4 + self.npre) % 4: A(f"s_xor_b32 {sTK}, {sROT}, {((4 + self.npre) // 4) << self.shG}")
            A(f"s_waitcnt vmcnt({4 + self.npre})")
        else:
            for t in range(4):
                A(f"s_waitcnt vmcnt({[3,2,2,3][t]})")
                self.kv_load("K", 0, t)
            for n in range(self.npre): self.kv_load("K", 1 + n // 4, n % 4)
        self.L(lj)
        if self.curve and "p0" in self.curve:
            p = self.cpairs[1 + self.curve.index("p0")]; A(f"s_memrealtime s[{p}:{p+1}]")
        self.bsel(vXR, 0, 0); self.bsel(vXR, 1, 1)
        self.nop(1)
        A(f"v_mfma_f32_16x16x32_bf16 {vr(vACC,4)}, {vr(vDF,4)}, {vr(vBF,4)}, 0")
        A(f"v_mfma_f32_16x16x32_bf16 {vr(vAC2,4)}, {vr(vDF+8,4)}, {vr(vBF,4)}, 0")
        A(f"v_mfma_f32_16x16x32_bf16 {vr(vACC,4)}, {vr(vDF+4,4)}, {vr(vBF+4,4)}, {vr(vACC,4)}")
        A(f"v_mfma_f32_16x16x32_bf16 {vr(vAC2,4)}, {vr(vDF+12,4)}, {vr(vBF+4,4)}, {vr(vAC2,4)}")
        self.nop(8)
        A(f"ds_write_b128 v{vT0}, {vr(vACC,4)}")
        A(f"ds_write_b128 v{vT0}, {vr(vAC2,4)} offset:1024")
        A("s_waitcnt lgkmcnt(0)")
        A("s_barrier")
        if self.curve and "bar" in self.curve:
            p = self.cpairs[1 + self.curve.index("bar")]; A(f"s_memrealtime s[{p}:{p+1}]")
        def publish():
            d = vSP; d2 = vK + 96
            A(f"v_add_u32 v{vT0}, {L_WO + 14*1024}, v{vT1}")
            A(f"v_add_u32 v{vTM}, 0x10000, v{vT0}")
            for w in range(8): A(f"ds_read_b128 {vr(d+4*w,4)}, v{vT0 if w < 4 else vTM} offset:{16384*(w&3)}")
            for w in range(4): A(f"ds_read_b128 {vr(d2+4*w,4)}, v{vT0} offset:{1024+16384*w}")
            A(f"s_lshl_b32 {sT0}, {sH}, 3"); A(f"s_add_u32 {sT0}, {sT0}, {sJ}"); A(f"s_lshl_b32 {sT0}, {sT0}, 10")
            A(f"s_add_u32 {sT0}, {sT0}, {WS_Q}")
            A(f"s_lshl_b32 {sT1}, {sTI}, 3"); A(f"s_add_u32 {sT1}, {sT1}, {sJ}"); A(f"s_lshl_b32 {sT1}, {sT1}, 10")
            A(f"s_add_u32 {sT1}, {sT1}, {WS_F}")
            A("s_waitcnt lgkmcnt(4)")
            for w in range(4, 8): A(f"ds_read_b128 {vr(d2+4*w,4)}, v{vTM} offset:{1024+16384*(w&3)}")
            for w in range(1, 8):
                for r in range(4): A(f"v_add_f32 v{d+r}, v{d+r}, v{d+4*w+r}")
            for r in range(4): A(f"v_min_u32 v{d+r}, -2, v{d+r}")
            A(f"buffer_store_dwordx4 {vr(d,4)}, v{vT1}, {srd(R_WS)}, {sT0} offen sc1")
            A("s_waitcnt lgkmcnt(0)")
            for w in range(1, 8):
                for r in range(4): A(f"v_add_f32 v{d2+r}, v{d2+r}, v{d2+4*w+r}")
            for r in range(4): A(f"v_min_u32 v{d2+r}, -2, v{d2+r}")
            A(f"buffer_store_dwordx4 {vr(d2,4)}, v{vT1}, {srd(R_WS)}, {sT1} offen sc1")
            if self.curve: A(f"s_memrealtime s[{self.cpairs[1]}:{self.cpairs[1]+1}]")
            self.nop(2)
        self.only(self.pub, publish)

    def bcast(self):
        A = self.A
        sk = self.label("nobc")
        A(f"v_lshlrev_b32 v{vQF+4}, 12, v{vL}"); A(f"v_mov_b32 v{vQF+6}, 1")
        A(f"s_lshl_b32 {sT0}, {sFT}, 7"); A(f"s_add_u32 {sT0}, {sT0}, {WS_MB}")
        A("s_waitcnt vmcnt(0)")
        if self.curve: A(f"s_memrealtime s[{self.cpairs[2]}:{self.cpairs[2]+1}]")
        A(f"v_readfirstlane_b32 {sT1}, v{vFL}")
        self.nop(3)
        A(f"s_and_b32 {sFT}, {sT1}, 7"); A(f"s_cmp_lg_u32 {sFT}, 7"); A(f"s_cbranch_scc1 {sk}")
        A("s_mov_b32 exec_lo, 0xff"); A("s_mov_b32 exec_hi, 0")
        A(f"buffer_store_dword v{vQF+6}, v{vQF+4}, {srd(R_WS)}, {sT0} offen sc1")
        A("s_mov_b64 exec, -1")
        self.L(sk)

    def q_gather(self, pre, mid):
        A = self.A
        go = self.label("go"); sp = self.label("mbspin"); gs = self.label("gaspin"); ok = self.label("gaok"); chk = self.label("gachk")
        A(f"s_mov_b32 {sCNT}, 0")
        A(f"s_mov_b32 {sX0}, {sTD}")
        pre()
        self.ga_addr()
        A(f"s_add_u32 {sT1}, {sT0}, 4096")
        A(f"s_cmp_eq_u32 {sFT}, 7"); A(f"s_cbranch_scc1 {go}")
        self.L(sp)
        A("s_mov_b64 exec, 1")
        A(f"buffer_load_dword v{vFL}, v{vT1}, {srd(R_WS)}, {sX0} offen sc1")
        A("s_mov_b64 exec, -1")
        A(f"s_add_u32 {sCNT}, {sCNT}, 1")
        A("s_waitcnt vmcnt(0)")
        A(f"v_readfirstlane_b32 {sTF}, v{vFL}")
        A(f"s_cmp_ge_u32 {sCNT}, {SPIN}"); A(f"s_cbranch_scc1 {go}")
        A(f"s_cmp_lg_u32 {sTF}, 1"); A(f"s_cbranch_scc1 {sp}")
        self.L(go)
        if self.curve: A(f"s_memrealtime s[{self.cpairs[3]}:{self.cpairs[3]+1}]")
        def loads():
            for k in range(4):
                A(f"buffer_load_dwordx4 {vr(vSP+4*k,4)}, v{vTM}, {srd(R_WS)}, {sT0 if k < 2 else sT1} offen offset:{(k&1)*2048} sc1")
        loads()
        n = mid()
        A(f"s_waitcnt vmcnt({n})")
        A(f"s_branch {chk}")
        self.L(gs)
        loads()
        A(f"s_add_u32 {sCNT}, {sCNT}, 1")
        A(f"s_cmp_ge_u32 {sCNT}, {SPIN}")
        A("s_waitcnt vmcnt(0)")
        A(f"s_cbranch_scc1 {ok}")
        self.L(chk)
        t = vTM + 2
        A(f"v_max3_u32 v{t}, v{vSP}, v{vSP+1}, v{vSP+2}")
        for k in range(3, 15, 2): A(f"v_max3_u32 v{t}, v{t}, v{vSP+k}, v{vSP+k+1}")
        A(f"v_max_u32 v{t}, v{t}, v{vSP+15}")
        A(f"v_cmp_eq_u32 vcc, -1, v{t}")
        A(f"s_cbranch_vccnz {gs}")
        self.L(ok)

    def ga_addr(self):
        A = self.A
        t = vTM
        A(f"s_lshl_b32 {sT0}, {sH}, 13"); A(f"s_lshl_b32 {sT1}, {sB}, 7"); A(f"s_add_u32 {sT0}, {sT0}, {sT1}")
        A(f"s_add_u32 {sT0}, {sT0}, {WS_Q}")
        A(f"v_and_b32 v{t}, 7, v{vL}"); A(f"v_lshlrev_b32 v{t}, 4, v{t}")
        A(f"v_bfe_u32 v{t+1}, v{vL}, 3, 2"); A(f"v_lshl_add_u32 v{t}, v{t+1}, 8, v{t}")
        A(f"v_lshrrev_b32 v{t+1}, 5, v{vL}"); A(f"v_lshl_add_u32 v{t}, v{t+1}, 10, v{t}")

    def q_reduce(self):
        A = self.A
        t = vTM
        d = vSP
        for k in range(1, 4):
            for r in range(4): A(f"v_add_f32 v{d+r}, v{d+r}, v{d+4*k+r}")
        A(f"v_and_b32 v{t+1}, 7, v{vL}")
        A(f"v_lshrrev_b32 v{t+2}, 5, v{vL}")
        A(f"v_permlane32_swap_b32 v{d}, v{d+1}"); A(f"v_permlane32_swap_b32 v{d+2}, v{d+3}")
        A(f"v_lshl_add_u32 v{t+1}, v{t+2}, 3, v{t+1}")
        A(f"v_add_f32 v{d}, v{d}, v{d+1}"); A(f"v_add_f32 v{d+2}, v{d+2}, v{d+3}")
        A(f"v_cvt_pk_bf16_f32 v{d}, v{d}, v{d+2}")
        A(f"v_bfe_u32 v{t}, v{vL}, 3, 2")
        A(f"v_lshl_add_u32 v{t}, v{t}, 5, v{t+1}")
        A(f"v_lshlrev_b32 v{t}, 1, v{t}")
        A(f"ds_write_b16 v{t}, v{d} offset:{L_QS}")
        A(f"ds_write_b16_d16_hi v{t}, v{d} offset:{L_QS+32}")

    def items(self):
        A = self.A
        it = []
        def add(name, fn, dep=None): it.append(dict(name=name, fn=fn, dep=dep))
        def grp(kind, G, dep):
            for t in range(4): add(f"{kind}{G}_{t}", lambda t=t: self.kv_load(kind, G, t), dep if t == 0 else None)
        wd = []
        for t in range(2):
            def fn(t=t):
                A(f"s_add_u32 m0, {sWDL}, {t*1024}")
                A(f"s_movk_i32 {sTD}, {t*8192}")
                A(f"buffer_load_dwordx4 v{vOD}, {srd(R_WD)}, {sTD} offen{self.wd_fl} lds")
            wd.append((f"wd{t}", fn, None))
        wo = []
        for t in range(16):
            def fn(t=t):
                A(f"s_add_u32 m0, {sWOL}, {t*1024}")
                A(f"s_mov_b32 {sTD}, {(32*(t>>2) + 2*(t&3))*1024}")
                A(f"buffer_load_dwordx4 v{vOW}, {srd(R_WO)}, {sTD} offen{self.wo_fl} lds")
            wo.append((f"wo{t}", fn, "qred" if t >= 14 else None))
        dma = wo[:4] + wd + wo[4:]
        def put(slot):
            for _ in range(self.wo_sched[slot]):
                n, fn, dep = dma.pop(0); add(n, fn, dep)
        for G in range(8): grp("K", G, None); put(G)
        for G in range(8): grp("V", G, (self.st_after if G == 7 else f"qk{G-1}") if G else None); put(8 + G)
        return it

    def step_gate0(self):
        A = self.A
        def fn():
            A(f"s_lshl_b32 {sT1}, {sB}, 10")
            A(f"buffer_load_dwordx4 {vr(vXR,4)}, v{vT1}, {srd(R_X)}, {sT1} offen")
            A(f"buffer_load_dwordx4 {vr(vXR+4,4)}, v{vT1}, {srd(R_GW)}, 0 offen")
        self.only(self.gsvc, fn)
    def step_gate(self):
        A = self.A
        def fn():
            x, w = vXR, vXR + 4
            t = vTM
            acc = vT0
            A(f"v_mov_b32 v{acc}, 0")
            for k in range(4):
                A(f"v_lshlrev_b32 v{t}, 16, v{x+k}"); A(f"v_lshlrev_b32 v{t+1}, 16, v{w+k}")
                A(f"v_and_b32 v{t+2}, 0xffff0000, v{x+k}"); A(f"v_and_b32 v{t+3}, 0xffff0000, v{w+k}")
                A(f"v_mul_f32 v{t}, v{t}, v{t+1}"); A(f"v_mul_f32 v{t+2}, v{t+2}, v{t+3}")
                A(f"v_cvt_pk_bf16_f32 v{t}, v{t}, v{t+2}")
                A(f"v_lshlrev_b32 v{t+1}, 16, v{t}"); A(f"v_and_b32 v{t}, 0xffff0000, v{t}")
                A(f"v_add_f32 v{acc}, v{acc}, v{t+1}"); A(f"v_add_f32 v{acc}, v{acc}, v{t}")
            for ctl in ("quad_perm:[1,0,3,2]", "quad_perm:[2,3,0,1]", "row_half_mirror", "row_mirror"):
                self.dpp_add(acc, ctl)
            self.swap_reduce("v_add_f32", acc, t, 16)
            self.swap_reduce("v_add_f32", acc, t, 32)
            A(f"v_cvt_pk_bf16_f32 v{acc}, v{acc}, v{acc}")
            A(f"v_and_b32 v{acc}, 0xffff0000, v{acc}")
            A(f"v_mul_f32 v{acc}, {f32(-math.log2(math.e))}, v{acc}")
            A(f"v_exp_f32 v{acc}, v{acc}")
            self.nop(1)
            A(f"v_add_f32 v{acc}, 1.0, v{acc}")
            A(f"v_rcp_f32 v{acc}, v{acc}")
            self.nop(1)
            A(f"v_cvt_pk_bf16_f32 v{acc}, v{acc}, v{acc}")
            A(f"v_and_b32 v{t}, 0xffff0000, v{acc}")
            A(f"v_sub_f32 v{t+1}, 1.0, v{t}")
            A(f"v_cvt_pk_bf16_f32 v{t+1}, v{t+1}, v{t+1}")
            A(f"v_and_b32 v{t+1}, 0xffff0000, v{t+1}")
            A(f"v_mov_b32 v{t+2}, 0")
            A(f"ds_write_b64 v{t+2}, {vr(t,2)} offset:{L_GS}")
        self.only(self.gsvc, fn)

    def fl_load(self):
        A = self.A
        A(f"v_and_b32 v{vT0}, 31, v{vL}"); A(f"v_lshlrev_b32 v{vT0}, 3, v{vT0}")
        A(f"global_load_dword v{vFL}, v{vT0}, s[{P_DBG}:{P_DBG+1}] sc1")
    def step_fl(self):
        A = self.A
        def fn():
            self.fl_load()
            if self.adapt:
                t = vTM
                A(f"v_mov_b32 v{t}, 0"); A(f"v_mov_b32 v{t+1}, 2")
                A(f"s_lshl_b32 {sT0}, s2, 7"); A(f"s_add_u32 {sT0}, {sT0}, {WS_MB + 4}")
                A("s_mov_b64 exec, 1")
                A(f"buffer_store_dword v{t+1}, v{t}, {srd(R_WS)}, {sT0} offen sc1")
                A("s_mov_b64 exec, -1")
                A(f"s_lshr_b32 {sT0}, s2, 3"); A(f"s_and_b32 {sT0}, {sT0}, 3"); A(f"s_lshl_b32 {sT0}, {sT0}, 10")
                A(f"s_add_u32 {sT0}, {sT0}, {WS_MB + 4}")
                A(f"v_and_b32 v{t}, 7, v{vL}"); A(f"v_lshlrev_b32 v{t}, 7, v{t}")
                A(f"v_lshrrev_b32 v{t+1}, 3, v{vL}"); A(f"v_lshl_add_u32 v{t}, v{t+1}, 12, v{t}")
                A(f"buffer_load_dword v{vFG}, v{t}, {srd(R_WS)}, {sT0} offen sc1")
        self.only(self.svc, fn)
    def step_rank(self):
        A = self.A
        def fn():
            t = vTM
            A(f"v_cmp_eq_u32 s[52:53], 2, v{vFG}")
            A(f"v_cmp_gt_u32 vcc, 8, v{vFL}")
            A(f"s_bcnt1_i32_b64 {sT0}, s[52:53]")
            A(f"s_cmp_lg_u64 vcc, 0")
            A(f"s_cselect_b32 {sT0}, 64, {sT0}")
            A(f"v_mov_b32 v{t}, 0"); A(f"v_mov_b32 v{t+1}, {sT0}")
            A(f"ds_write_b32 v{t}, v{t+1} offset:{L_RK}")
        self.only(self.svc, fn)
    def step_fga(self):
        A = self.A
        def fn():
            ok = self.label("flok"); sp = self.label("flspin")
            A(f"v_cmp_gt_u32 vcc, 8, v{vFL}")
            A(f"s_cbranch_vccz {ok}")
            A(f"s_mov_b32 {sCNT}, 0")
            self.L(sp)
            A(f"s_sleep {self.sleep}")
            self.fl_load()
            A(f"s_add_u32 {sCNT}, {sCNT}, 1")
            A(f"s_cmp_ge_u32 {sCNT}, {SPIN}")
            A("s_waitcnt vmcnt(0)")
            A(f"s_cbranch_scc1 {ok}")
            A(f"v_cmp_gt_u32 vcc, 8, v{vFL}")
            A(f"s_cbranch_vccnz {sp}")
            self.L(ok)
            self.fg_load()
        self.only(self.svc, fn)
    def fg_load(self):
        A = self.A
        A(f"s_lshr_b32 {sT0}, {sSL}, 3"); A(f"s_lshl_b32 {sT0}, {sT0}, 13")
        A(f"s_lshl_b32 {sT1}, {sB}, 7"); A(f"s_add_u32 {sT0}, {sT0}, {sT1}")
        A(f"s_bfe_u32 {sT1}, {sSL}, 0x20001"); A(f"s_lshl_b32 {sT1}, {sT1}, 8"); A(f"s_add_u32 {sT0}, {sT0}, {sT1}")
        A(f"s_and_b32 {sT1}, {sSL}, 1"); A(f"s_lshl_b32 {sT1}, {sT1}, 3"); A(f"s_add_u32 {sT0}, {sT0}, {sT1}")
        A(f"s_add_u32 {sT0}, {sT0}, {WS_F}")
        A(f"v_and_b32 v{vT0}, 7, v{vL}"); A(f"v_lshlrev_b32 v{vT0}, 4, v{vT0}")
        A(f"v_lshrrev_b32 v{vTM}, 3, v{vL}"); A(f"v_lshl_add_u32 v{vT0}, v{vTM}, 10, v{vT0}")
        A(f"buffer_load_dwordx2 {vr(vFG,2)}, v{vT0}, {srd(R_WS)}, {sT0} offen sc1")
        A(f"s_add_u32 {sT0}, {sT0}, {11*8192}")
        A(f"buffer_load_dwordx2 {vr(vFG+2,2)}, v{vT0}, {srd(R_WS)}, {sT0} offen sc1")
    def step_ffn2(self):
        A = self.A
        t = vTM
        def fn():
            e = vFG
            ok = self.label("fgok"); sp = self.label("fgspin")
            A(f"s_mov_b32 {sCNT}, 0")
            self.L(sp)
            A(f"v_max3_u32 v{t}, v{e}, v{e+1}, v{e+2}"); A(f"v_max_u32 v{t}, v{t}, v{e+3}")
            A(f"v_cmp_eq_u32 vcc, -1, v{t}")
            A(f"s_cbranch_vccz {ok}")
            self.fg_load()
            A(f"s_add_u32 {sCNT}, {sCNT}, 1")
            A(f"s_cmp_lt_u32 {sCNT}, {SPIN}")
            A("s_waitcnt vmcnt(0)")
            A(f"s_cbranch_scc1 {sp}")
            self.L(ok)
            A(f"v_permlane32_swap_b32 v{e}, v{e+1}"); A(f"v_permlane32_swap_b32 v{e+2}, v{e+3}")
            self.nop(1)
            A(f"v_add_f32 v{e}, v{e}, v{e+1}"); A(f"v_add_f32 v{e+2}, v{e+2}, v{e+3}")
            self.swap_reduce("v_add_f32", e, e + 1, 16)
            self.swap_reduce("v_add_f32", e + 2, e + 3, 16)
            self.dpp_add(e, "row_ror:8"); self.dpp_add(e + 2, "row_ror:8")
            A(f"v_cvt_pk_bf16_f32 v{e}, v{e}, v{e+2}")
            A(f"v_and_b32 v{e+2}, 0xffff0000, v{e}")
            A(f"v_lshlrev_b32 v{e}, 16, v{e}")
            k0 = math.sqrt(2.0 / math.pi)
            A(f"v_mul_f32 v{e+1}, v{e}, v{e}")
            A(f"v_mov_b32 v{e+3}, {f32(-2.0 * k0 * math.log2(math.e))}")
            A(f"v_mul_f32 v{e+1}, {f32(0.044715)}, v{e+1}")
            A(f"v_add_f32 v{e+1}, 1.0, v{e+1}")
            A(f"v_mul_f32 v{e+1}, v{e+1}, v{e}")
            A(f"v_mul_f32 v{e+1}, v{e+1}, v{e+3}")
            A(f"v_exp_f32 v{e+1}, v{e+1}")
            self.nop(1)
            A(f"v_add_f32 v{e+1}, 1.0, v{e+1}")
            A(f"v_rcp_f32 v{e+1}, v{e+1}")
            self.nop(1)
            A(f"v_mul_f32 v{e}, v{e}, v{e+1}")
            A(f"v_cvt_pk_bf16_f32 v{e}, v{e}, v{e}")
            A(f"v_and_b32 v{e}, 0xffff0000, v{e}")
            A(f"v_mul_f32 v{e}, v{e}, v{e+2}")
            A(f"v_cvt_pk_bf16_f32 v{e}, v{e}, v{e}")
            A(f"v_and_b32 v{t+1}, 7, v{vL}"); A(f"v_lshrrev_b32 v{t+2}, 5, v{vL}")
            A(f"v_lshl_add_u32 v{t+1}, v{t+2}, 3, v{t+1}")
            A(f"v_lshlrev_b32 v{t+1}, 1, v{t+1}")
            A(f"ds_write_b16 v{t+1}, v{e} offset:{L_HS}")
            A(f"v_lshlrev_b32 v{t+1}, 3, v{vG}")
            A(f"v_mov_b32 v{t+3}, 0")
            A("s_waitcnt lgkmcnt(0)")
            A(f"ds_read_b64 {vr(e,2)}, v{t+1} offset:{L_HS}")
            A(f"ds_read_b32 v{e+2}, v{t+3} offset:{L_GS+4}")
            A(f"v_lshrrev_b32 v{t}, 2, v{vI}"); A(f"v_and_b32 v{t+1}, 3, v{vI}")
            A(f"v_lshlrev_b32 v{t+1}, 3, v{t+1}")
            A(f"v_lshl_add_u32 v{t+1}, v{t}, 7, v{t+1}")
            A(f"v_lshl_add_u32 v{t+1}, v{vG}, 9, v{t+1}")
            A(f"v_lshlrev_b32 v{t+2}, 2, v{vL}")
            for k in range(1, 4): A(f"v_cmp_eq_u32 {['', 's[52:53]', 's[54:55]', 's[68:69]'][k]}, {k}, v{vG}")
            wf = vDF
            for w in range(8):
                for tau in range(4):
                    A(f"ds_read_b64_tr_b16 {vr(wf+2*tau,2)}, v{t+1} offset:{L_WD + w*2048 + tau*32}")
                A("s_waitcnt lgkmcnt(0)")
                for tau in range(4):
                    A(f"v_mfma_f32_16x16x16_bf16 {vr(vFD+4*tau,4)}, {vr(e,2)}, {vr(wf+2*tau,2)}, 0")
                self.nop(6)
                A(f"v_cndmask_b32 v{t+4}, v{vFD}, v{vFD+4}, s[52:53]")
                self.nop(1)
                A(f"v_cndmask_b32 v{t+4}, v{t+4}, v{vFD+8}, s[54:55]")
                self.nop(1)
                A(f"v_cndmask_b32 v{t+4}, v{t+4}, v{vFD+12}, s[68:69]")
                A(f"v_mul_f32 v{t+4}, v{t+4}, v{e+2}")
                A(f"ds_write_b32 v{t+2}, v{t+4} offset:{L_YF + w*256}")
        self.only(self.svc, fn)

    def step_qred(self):
        A = self.A
        t = vTM
        A(f"v_and_b32 v{t}, 8, v{vL}")
        A(f"v_lshlrev_b32 v{t}, 3, v{t}")
        A(f"v_lshl_add_u32 v{t}, v{vG}, 4, v{t}")
        A("s_waitcnt lgkmcnt(0)")
        A("s_barrier")
        for T in range(2): A(f"ds_read_b128 {vr(vQF+4*T,4)}, v{t} offset:{L_QS+128*T}")
        A("s_waitcnt lgkmcnt(0)")

    def qk_combine(self, G):
        A = self.A
        a = vSP + 4 * G; b = vQF + 8 + 4 * (G & 1)
        for r in range(4): A(f"v_permlane32_swap_b32 v{a+r}, v{b+r}")
        for r in range(4): A(f"v_add_f32_dpp v{a+r}, v{b+r}, v{a+r} row_ror:8 row_mask:0xf bank_mask:0xf")
    def step_qk(self, G):
        A = self.A
        a = vSP + 4 * G; b = vQF + 8 + 4 * (G & 1); k = vK + 16 * G
        A(f"v_mfma_f32_16x16x32_bf16 {vr(a,4)}, {vr(k,4)}, {vr(vQF,4)}, 0")
        A(f"v_mfma_f32_16x16x32_bf16 {vr(b,4)}, {vr(k+8,4)}, {vr(vQF,4)}, 0")
        A(f"v_mfma_f32_16x16x32_bf16 {vr(a,4)}, {vr(k+4,4)}, {vr(vQF+4,4)}, {vr(a,4)}")
        A(f"v_mfma_f32_16x16x32_bf16 {vr(b,4)}, {vr(k+12,4)}, {vr(vQF+4,4)}, {vr(b,4)}")
        if G > 0:
            self.nop(4)
            self.qk_combine(G - 1)

    def step_softmax(self):
        A = self.A
        t = vTM
        m = vAC2 + 2
        A(f"v_max3_f32 v{m}, v{vSP}, v{vSP+1}, v{vSP+2}")
        for k in range(3, 27, 2): A(f"v_max3_f32 v{m}, v{m}, v{vSP+k}, v{vSP+k+1}")
        self.qk_combine(7)
        A(f"v_max3_f32 v{m}, v{m}, v{vSP+27}, v{vSP+28}")
        A(f"v_max3_f32 v{m}, v{m}, v{vSP+29}, v{vSP+30}")
        A(f"v_max_f32 v{m}, v{m}, v{vSP+31}")
        self.swap_reduce("v_max_f32", m, t, 16)
        self.swap_reduce("v_max_f32", m, t, 32)
        A(f"s_lshl_b32 {sT0}, {sW}, 2")
        A(f"v_mov_b32 v{t+4}, {sT0}")
        A(f"v_mov_b32 v{t+5}, 0")
        A("s_mov_b64 exec, 1")
        A(f"ds_write_b32 v{t+4}, v{m} offset:{L_MX}")
        A("s_mov_b64 exec, -1")
        A("s_waitcnt lgkmcnt(0)")
        A("s_barrier")
        A(f"ds_read_b128 {vr(vBF,4)}, v{t+5} offset:{L_MX}")
        A(f"ds_read_b128 {vr(vBF+4,4)}, v{t+5} offset:{L_MX+16}")
        if self.adapt: A(f"ds_read_b32 v{t+6}, v{t+5} offset:{L_RK}")
        A("s_waitcnt lgkmcnt(0)")
        if self.adapt: A(f"v_readfirstlane_b32 {sDUP0}, v{t+6}")
        A(f"v_max3_f32 v{m}, v{vBF}, v{vBF+1}, v{vBF+2}")
        A(f"v_max3_f32 v{m}, v{m}, v{vBF+3}, v{vBF+4}")
        A(f"v_max3_f32 v{m}, v{m}, v{vBF+5}, v{vBF+6}")
        A(f"v_max_f32 v{m}, v{m}, v{vBF+7}")
        A(f"v_mul_f32 v{m}, {sC}, v{m}")
        l = vT0
        for k in range(32):
            A(f"v_fma_f32 v{vSP+k}, v{vSP+k}, {sC}, -v{m}")
        for k in range(32):
            A(f"v_exp_f32 v{vSP+k}, v{vSP+k}")
        A(f"v_add_f32 v{l}, v{vSP}, v{vSP+1}"); A(f"v_add_f32 v{t}, v{vSP+2}, v{vSP+3}")
        for k in range(4, 32, 2):
            A(f"v_add_f32 v{l}, v{l}, v{vSP+k}"); A(f"v_add_f32 v{t}, v{t}, v{vSP+k+1}")
        A(f"v_add_f32 v{l}, v{l}, v{t}")
        self.swap_reduce("v_add_f32", l, t, 16)
        self.swap_reduce("v_add_f32", l, t, 32)
        A("s_mov_b64 exec, 1")
        A(f"ds_write_b32 v{t+4}, v{l} offset:{L_LS}")
        A("s_mov_b64 exec, -1")
        for k in range(32):
            A(f"v_cvt_pk_bf16_f32 v{vSP+k}, v{vSP+k}, v{vSP+k}")
        A("s_waitcnt lgkmcnt(0)")
        A("s_barrier")
        def fn():
            A(f"ds_read_b128 {vr(vBF,4)}, v{t+5} offset:{L_LS}")
            A(f"ds_read_b128 {vr(vBF+4,4)}, v{t+5} offset:{L_LS+16}")
            if self.smb:
                A(f"s_lshl_b32 {sT0}, s2, 7"); A(f"s_add_u32 {sT0}, {sT0}, {WS_MB + 8}")
            else:
                A(f"s_lshl_b32 {sT0}, {sBH}, 2"); A(f"s_add_u32 {sT0}, {sT0}, {sS}")
                A(f"s_lshl_b32 {sT0}, {sT0}, 3"); A(f"s_add_u32 {sT0}, {sT0}, {WS_S}")
            A("s_waitcnt lgkmcnt(0)")
            for k in range(1, 8): A(f"v_add_f32 v{vBF}, v{vBF}, v{vBF+k}")
            A(f"v_min_u32 v{t+1}, -2, v{vBF}")
            A(f"v_mov_b32 v{t}, v{m}")
            A("s_mov_b64 exec, 1")
            A(f"buffer_store_dwordx2 {vr(t,2)}, v{t+5}, {srd(R_WS)}, {sT0} offen sc1")
            A("s_mov_b64 exec, -1")
        self.only(2, fn)

    def step_pv(self, G):
        A = self.A
        base = vX if G == 0 else vK + 16 * (G - 1)
        def build(k, bset):
            for u in range(4): A(f"v_and_b32 v{vBF+4*bset+u}, v{vSP+(k ^ (self.vx << 2))}, v{vM+u}")
        for r in range(4):
            k = 4 * G + r
            if k == 0: build(0, 0)
            if k + 1 < 32: build(k + 1, (k + 1) & 1)
            else: self.nop(2)
            c = "0" if k == 0 else vr(vACC, 4)
            A(f"v_mfma_f32_16x16x32_bf16 {vr(vACC,4)}, {vr(base+4*r,4)}, {vr(vBF+4*(k&1),4)}, {c}")

    WF = [vQF, vK + 16 * 7, vX, vK]
    def step_wof(self):
        A = self.A
        t = vTM
        A(f"v_lshrrev_b32 v{t}, 2, v{vI}"); A(f"v_and_b32 v{t+1}, 3, v{vI}")
        A(f"v_lshlrev_b32 v{t+1}, 3, v{t+1}")
        A(f"v_lshl_add_u32 v{t+1}, v{t}, 7, v{t+1}")
        A(f"v_lshl_add_u32 v{t+2}, v{vG}, 10, v{t+1}")
        A(f"v_add_u32 v{vOQ}, {sWOL}, v{t+2}")
        for tau in range(4):
            for T in range(4):
                for hi in range(2):
                    A(f"ds_read_b64_tr_b16 {vr(self.WF[tau]+4*T+2*hi,2)}, v{vOQ} offset:{T*4096 + hi*512 + tau*32}")
            if tau < 3: A("s_waitcnt lgkmcnt(4)")
        A(f"v_and_b32 v{t}, 7, v{vI}")
        A(f"s_mul_i32 {sT1}, {sW}, 288"); A(f"s_add_u32 {sT1}, {sT1}, {L_OB}")
        A(f"v_lshl_add_u32 v{vOK}, v{vG}, 6, {sT1}")
        A(f"v_lshl_add_u32 v{vOK}, v{t}, 3, v{vOK}")
        A(f"v_mul_u32_u24 v{vOW}, 288, v{t}")
        A(f"v_lshl_add_u32 v{vOW}, v{vG}, 4, v{vOW}")
        if not self.ybig:
            A(f"v_lshrrev_b32 v{t}, 2, v{vI}")
            A(f"v_lshl_add_u32 v{t}, v{vG}, 2, v{t}")
            A(f"v_lshlrev_b32 v{vOF}, 11, v{t}")
            A(f"s_lshl_b32 {sTF}, {sW}, 15")
            A(f"s_lshl_b32 {sT1}, {sB}, 18"); A(f"s_add_u32 {sTF}, {sTF}, {sT1}")
            A(f"s_lshl_b32 {sT1}, {sH}, 6"); A(f"s_add_u32 {sTF}, {sTF}, {sT1}")
            A(f"s_lshl_b32 {sT1}, {sS}, 4"); A(f"s_add_u32 {sTF}, {sTF}, {sT1}")
            A(f"v_cmp_gt_u32 s[0:1], 2, v{vG}")
            A(f"v_lshlrev_b32 v{vOD}, 4, v{vL}")
            A(f"s_lshl_b32 {sTQ}, s2, 11")
            A(f"v_and_b32 v{t}, 1, v{vG}"); A(f"v_lshrrev_b32 v{t+1}, 1, v{vG}")
            A(f"v_lshl_add_u32 v{t}, v{t}, 1, v{t+1}")
            A(f"s_lshl_b32 {sT1}, s2, 3")
            A(f"v_lshl_add_u32 v{vT1}, v{t}, 1, {sT1}")
        else:
            A(f"v_lshrrev_b32 v{t}, 1, v{vG}"); A(f"v_lshlrev_b32 v{vOF}, 14, v{t}")
            A(f"v_and_b32 v{t}, 31, v{vL}"); A(f"v_lshl_add_u32 v{vOF}, v{t}, 2, v{vOF}")
            A(f"s_lshl_b32 {sTF}, {sW}, 15")
            A(f"s_lshl_b32 {sT1}, {sB}, 18"); A(f"s_add_u32 {sTF}, {sTF}, {sT1}")
            A(f"s_lshl_b32 {sT1}, {sH}, 9"); A(f"s_add_u32 {sTF}, {sTF}, {sT1}")
            A(f"s_lshl_b32 {sT1}, {sS}, 7"); A(f"s_add_u32 {sTF}, {sTF}, {sT1}")
            A(f"v_cmp_gt_u32 s[0:1], 2, v{vG}")
            A(f"v_lshlrev_b32 v{vOD}, 4, v{vL}")
            A(f"s_lshr_b32 {sX1}, s2, 3")
            A(f"s_lshl_b32 {sTQ}, {sX1}, 14"); A(f"s_lshl_b32 {sT1}, {sW}, 11"); A(f"s_add_u32 {sTQ}, {sTQ}, {sT1}")
            A(f"s_lshl_b32 {sT1}, {sX1}, 6")
            A(f"v_lshl_add_u32 v{vT1}, v{vL}, 1, {sT1}")
        A("s_waitcnt lgkmcnt(0)")
        A(f"v_mov_b32 v{vOQ}, 0")
        A(f"s_lshl_b32 {sT1}, {sW}, 8")
        A(f"v_lshl_add_u32 v{vAC2}, v{vL}, 2, {sT1}")

    def st_load(self):
        A = self.A
        if self.smb:
            A(f"s_lshl_b32 {sT0}, {sB}, 7"); A(f"s_add_u32 {sT0}, {sT0}, {sFT}"); A(f"s_lshl_b32 {sT0}, {sT0}, 7")
            A(f"s_add_u32 {sT0}, {sT0}, {WS_MB + 8}")
            A(f"v_mov_b32 v{vT0}, 0")
            for k in range(4):
                if k: A(f"s_add_u32 {sT0}, {sT0}, 4096")
                A(f"buffer_load_dwordx2 {vr(vXR+2*k,2)}, v{vT0}, {srd(R_WS)}, {sT0} offen sc1")
            return
        A(f"s_lshl_b32 {sT0}, {sBH}, 5"); A(f"s_add_u32 {sT0}, {sT0}, {WS_S}")
        A(f"v_mov_b32 v{vT0}, 0")
        for k in range(2):
            A(f"buffer_load_dwordx4 {vr(vXR+4*k,4)}, v{vT0}, {srd(R_WS)}, {sT0} offen offset:{16*k} sc1")
    def step_st0(self):
        self.only(self.svc, self.st_load)
    def step_scale(self):
        A = self.A
        t = vTM
        s = vXR
        def fn():
            ok = self.label("stok"); sp = self.label("stspin")
            A(f"v_mov_b32 v{t+3}, 0")
            A(f"ds_read_b32 v{t+2}, v{t+3} offset:{L_GS}")
            A(f"s_mov_b32 {sCNT}, 0")
            A(f"v_max3_u32 v{t}, v{s+1}, v{s+3}, v{s+5}")
            A(f"v_max_u32 v{t}, v{t}, v{s+7}")
            A(f"v_cmp_eq_u32 vcc, -1, v{t}")
            A(f"s_cbranch_vccz {ok}")
            self.L(sp)
            self.st_load()
            A(f"s_add_u32 {sCNT}, {sCNT}, 1")
            A(f"s_cmp_ge_u32 {sCNT}, {SPIN}")
            A("s_waitcnt vmcnt(0)")
            A(f"s_cbranch_scc1 {ok}")
            A(f"v_max3_u32 v{t}, v{s+1}, v{s+3}, v{s+5}")
            A(f"v_max_u32 v{t}, v{t}, v{s+7}")
            A(f"v_cmp_eq_u32 vcc, -1, v{t}")
            A(f"s_cbranch_vccnz {sp}")
            self.L(ok)
            A(f"v_max3_f32 v{t}, v{s}, v{s+2}, v{s+4}")
            A(f"v_max_f32 v{t}, v{t}, v{s+6}")
            for k in range(4): A(f"v_sub_f32 v{s+2*k}, v{s+2*k}, v{t}")
            A(f"v_sub_f32 v{t+1}, v{vAC2+2}, v{t}")
            for k in range(4): A(f"v_exp_f32 v{s+2*k}, v{s+2*k}")
            A(f"v_exp_f32 v{t+1}, v{t+1}")
            A(f"v_mul_f32 v{t}, v{s}, v{s+1}")
            for k in range(1, 4): A(f"v_fmac_f32 v{t}, v{s+2*k}, v{s+2*k+1}")
            A(f"v_rcp_f32 v{t}, v{t}")
            A("s_waitcnt lgkmcnt(0)")
            A(f"v_mul_f32 v{t+1}, v{t+2}, v{t+1}")
            A(f"v_mul_f32 v{t}, v{t}, v{t+1}")
            A(f"ds_write_b32 v{t+3}, v{t} offset:{L_FS}")
        self.only(self.svc, fn)

    def step_tail(self):
        A = self.A
        t = vTM
        A("s_mov_b32 exec_lo, 0x00ff00ff"); A("s_mov_b32 exec_hi, 0x00ff00ff")
        self.nop(6)
        A(f"v_cvt_pk_bf16_f32 v{t}, v{vACC}, v{vACC+1}")
        A(f"v_cvt_pk_bf16_f32 v{t+1}, v{vACC+2}, v{vACC+3}")
        A(f"ds_write_b64 v{vOK}, {vr(t,2)}")
        A("s_mov_b64 exec, -1")
        if self.dry:
            A(f"s_cmp_lt_u32 {sW}, 4"); A(f"s_cselect_b32 {sDUP1}, 1, 0"); A("s_cbranch_scc1 L_post")
            self.L("L_bar")
        A("s_waitcnt lgkmcnt(0)")
        A("s_barrier")
        if self.dry: self.L("L_post")
        af = vSP
        for T in range(4): A(f"ds_read_b128 {vr(af+4*T,4)}, v{vOW} offset:{L_OB + 64*T}")
        A(f"ds_read_b32 v{t+4}, v{vOQ} offset:{L_FS}")
        A(f"ds_read_b32 v{vAC2+3}, v{vAC2} offset:{L_YF}")
        for T in range(4):
            A(f"s_waitcnt lgkmcnt({5-T})" if not self.stamps else "s_waitcnt lgkmcnt(0)")
            for tau in range(4):
                c = vr(vDF+4*tau,4) if T else "0"
                A(f"v_mfma_f32_16x16x32_bf16 {vr(vDF+4*tau,4)}, {vr(af+4*T,4)}, {vr(self.WF[tau]+4*T,4)}, {c}")
        A("s_waitcnt lgkmcnt(0)")
        self.nop(4)
        for tau in range(4):
            d = vDF + 4 * tau
            A(f"v_add_f32 v{d}, v{d}, v{d+1}"); A(f"v_add_f32 v{d+2}, v{d+2}, v{d+3}")
            A(f"v_add_f32 v{d}, v{d}, v{d+2}")
        self.nop(1)
        A(f"v_permlane16_swap_b32 v{vDF}, v{vDF+4}")
        A(f"v_permlane16_swap_b32 v{vDF+8}, v{vDF+12}")
        self.nop(1)
        A(f"v_add_f32 v{vDF}, v{vDF}, v{vDF+4}")
        A(f"v_add_f32 v{vDF+8}, v{vDF+8}, v{vDF+12}")
        A(f"v_cndmask_b32 v{t}, v{vDF+8}, v{vDF}, s[0:1]")
        A(f"v_fma_f32 v{t}, v{t}, v{t+4}, v{vAC2+3}")
        A(f"v_min_u32 v{t}, -2, v{t}")
        self.nop(2)
        for k in range(1, 4):
            A(f"v_mov_b32_dpp v{t+k}, v{t} quad_perm:[{k},{k},{k},{k}] row_mask:0xf bank_mask:0xf")
        if self.dry:
            A(f"s_cmp_eq_u32 {sDUP1}, 1"); A(f"s_mov_b32 {sDUP1}, 0"); A("s_cbranch_scc1 L_bar")
        A("s_mov_b32 exec_lo, 0x11111111"); A("s_mov_b32 exec_hi, 0x11111111")
        A(f"buffer_store_dwordx4 {vr(t,4)}, v{vOF}, {srd(R_WS)}, {sTF} offen{'' if self.two_kernel else ' sc1'}")
        A("s_mov_b64 exec, -1")

    def consumer(self, poll=True):
        A = self.A
        y = vSP
        t = vTM + 4
        sp = self.label("yspin"); ok = self.label("yok"); fast = self.label("yfast")
        fl = " " + self.yflags if poll else ""
        if not poll or self.cons == 0:
            A(f"s_mov_b32 {sCNT}, 0")
            self.L(sp)
            A(f"buffer_load_dwordx4 {vr(y,4)}, v{vOD}, {srd(R_WS)}, {sTQ} offen{fl}")
            A(f"buffer_load_dwordx4 {vr(y+4,4)}, v{vOD}, {srd(R_WS)}, {sTQ} offen offset:1024{fl}")
            if poll:
                A(f"s_add_u32 {sCNT}, {sCNT}, 1")
                A(f"s_cmp_ge_u32 {sCNT}, {SPIN}")
                A("s_waitcnt vmcnt(0)")
                A(f"s_cbranch_scc1 {ok}")
                A(f"v_max3_u32 v{t}, v{y}, v{y+1}, v{y+2}")
                A(f"v_max3_u32 v{t+1}, v{y+3}, v{y+4}, v{y+5}")
                A(f"v_max3_u32 v{t}, v{t}, v{y+6}, v{y+7}")
                A(f"v_max_u32 v{t}, v{t}, v{t+1}")
                A(f"v_cmp_eq_u32 vcc, -1, v{t}")
                A(f"s_cbranch_vccnz {sp}")
                self.L(ok)
            else:
                A("s_waitcnt vmcnt(0)")
        else:
            mA, mB = "s[52:53]", "s[54:55]"
            D = self.cons
            def masks():
                A(f"v_max3_u32 v{t}, v{y}, v{y+1}, v{y+2}")
                A(f"v_max3_u32 v{t+1}, v{y+4}, v{y+5}, v{y+6}")
                A(f"v_max_u32 v{t}, v{t}, v{y+3}")
                A(f"v_max_u32 v{t+1}, v{t+1}, v{y+7}")
                A(f"v_cmp_eq_u32 {mA}, -1, v{t}")
                A(f"v_cmp_eq_u32 {mB}, -1, v{t+1}")
            def loads():
                la = self.label("ya"); lb = self.label("yb")
                A(f"s_mov_b64 exec, {mA}")
                A(f"s_cbranch_execz {la}")
                A(f"buffer_load_dwordx4 {vr(y,4)}, v{vOD}, {srd(R_WS)}, {sTQ} offen{fl}")
                self.L(la)
                A(f"s_mov_b64 exec, {mB}")
                A(f"s_cbranch_execz {lb}")
                A(f"buffer_load_dwordx4 {vr(y+4,4)}, v{vOD}, {srd(R_WS)}, {sTQ} offen offset:1024{fl}")
                self.L(lb)
                A("s_mov_b64 exec, -1")
            A(f"s_mov_b64 {mA}, -1"); A(f"s_mov_b64 {mB}, -1")
            A(f"s_mov_b32 {sCNT}, 0")
            self.L(sp)
            loads()
            A(f"s_add_u32 {sCNT}, {sCNT}, 1")
            A("s_waitcnt vmcnt(0)")
            masks()
            A(f"s_cmp_ge_u32 {sCNT}, {SPIN}"); A(f"s_cbranch_scc1 {ok}")
            A(f"s_bcnt1_i32_b64 {sT0}, {mA}"); A(f"s_bcnt1_i32_b64 {sT1}, {mB}")
            A(f"s_add_u32 {sT0}, {sT0}, {sT1}")
            if self.csleep:
                A(f"s_cmp_le_u32 {sT0}, {self.cthr}"); A(f"s_cbranch_scc1 {fast}")
                A(f"s_sleep {self.csleep}")
                A(f"s_branch {sp}")
            else:
                A(f"s_cmp_gt_u32 {sT0}, {self.cthr}"); A(f"s_cbranch_scc1 {sp}")
            self.L(fast)
            A(f"s_or_b64 vcc, {mA}, {mB}")
            A(f"s_cbranch_vccz {ok}")
            loads()
            A(f"s_add_u32 {sCNT}, {sCNT}, 1")
            A(f"s_waitcnt vmcnt({D})")
            masks()
            A(f"s_cmp_lt_u32 {sCNT}, {SPIN}"); A(f"s_cbranch_scc1 {fast}")
            self.L(ok)
        for k in range(4): A(f"v_add_f32 v{y+8+k}, v{y+k}, v{y+4+k}")
        y = y + 8
        self.nop(1)
        A(f"v_permlane32_swap_b32 v{y}, v{y+1}"); A(f"v_permlane32_swap_b32 v{y+2}, v{y+3}")
        self.nop(1)
        A(f"v_add_f32 v{y}, v{y}, v{y+1}"); A(f"v_add_f32 v{y+2}, v{y+2}, v{y+3}")
        self.nop(2)
        A(f"v_permlane16_swap_b32 v{y}, v{y+2}")
        self.nop(1)
        A(f"v_add_f32 v{y}, v{y}, v{y+2}")
        if self.ybig and poll:
            self.dpp_add(y, "row_ror:8")
            A(f"ds_write_b32 v{vOK}, v{y}")
            A("s_waitcnt lgkmcnt(0)")
            A("s_barrier")
            A(f"s_cmp_lg_u32 {sW}, 0"); A("s_cbranch_scc1 L_end")
            for w in range(8): A(f"ds_read_b32 v{y+w}, v{vOW} offset:{L_YF + 128*w}")
            A("s_waitcnt lgkmcnt(4)")
            A(f"v_add_f32 v{y}, v{y}, v{y+1}"); A(f"v_add_f32 v{y+2}, v{y+2}, v{y+3}")
            A("s_waitcnt lgkmcnt(0)")
            A(f"v_add_f32 v{y+4}, v{y+4}, v{y+5}"); A(f"v_add_f32 v{y+6}, v{y+6}, v{y+7}")
            A(f"v_add_f32 v{y}, v{y}, v{y+2}"); A(f"v_add_f32 v{y+4}, v{y+4}, v{y+6}")
            A(f"v_add_f32 v{y}, v{y}, v{y+4}")
            A(f"v_cvt_pk_bf16_f32 v{y}, v{y}, v{y}")
            A("s_mov_b32 exec_hi, 0")
        else:
            for ctl in ("quad_perm:[1,0,3,2]", "quad_perm:[2,3,0,1]", "row_half_mirror", "row_mirror"):
                self.dpp_add(y, ctl)
            A(f"v_cvt_pk_bf16_f32 v{y}, v{y}, v{y}")
            A("s_mov_b32 exec_lo, 0x00010001"); A("s_mov_b32 exec_hi, 0x00010001")
        A(f"global_store_short v{vT1}, v{y}, s[{P_OUT}:{P_OUT+1}]{self.oflags}")

    def steps(self, idx):
        S = []
        def add(name, needs, fn): S.append(dict(name=name, needs=needs, fn=fn))
        add("gate0", [], self.step_gate0)
        add("gate", ["@gate0"], self.step_gate)
        if self.curve:
            for G in range(1, 5):
                if f"w{G}" in self.curve: add(f"w{G}", [f"K{G}_3"], lambda: None)
        add("join", [self.q_at], lambda: None)
        add("qred", [], self.step_qred)
        if self.adapt: add("fl", [], self.step_fl)
        for G in range(8): add(f"qk{G}", [f"K{G}_3"], lambda G=G: self.step_qk(G))
        if self.adapt: add("rank", ["@fl"], self.step_rank)
        else: add("fl", [], self.step_fl)
        add("softmax", ["wd1"], self.step_softmax)
        lastdma = idx["wo15"]
        placed = False
        for G in range(8):
            if G == 7: add("scale", ["@st0"], self.step_scale)
            if not placed and G >= 2 and idx[f"V{G}_3"] > lastdma:
                add("wof", ["wo15"], self.step_wof); placed = True
            add(f"pv{G}", [f"V{G}_3"], lambda G=G: self.step_pv(G))
            if f"pv{G}" == self.fga_pos: add("fga", ["@fl"], self.step_fga)
            if f"pv{G}" == self.st_pos: add("st0", [], self.step_st0)
            if f"pv{G}" == self.ffn_pos: add("ffn2", ["@fga"], self.step_ffn2)
        assert placed
        add("tail", [], self.step_tail)
        return S

    def schedule(self, W, W2):
        self.st_pos = self.st_after; self.st_after = "st0"
        items = self.items()
        self.st_after = self.st_pos
        idx = {it["name"]: n for n, it in enumerate(items)}
        steps = self.steps(idx)
        issued = 4 + self.npre
        assert all(it['name'][0] == 'K' for it in items[:issued])
        comp = -1; done = set(); pos = -1; after = {}
        lother = self.label("other"); ljoin = self.label("join")
        self.A(f"s_cmp_lg_u32 {sW}, {self.hs if not self.x_nohs else 9}"); self.A(f"s_cbranch_scc1 {lother}")
        mark = len(self.o)
        self.L(lother)
        def run(steps):
            nonlocal issued, comp, pos, W
            for st in steps:
                need = max([after[n[1:]] if n[0] == "@" else idx[n] for n in st["needs"]], default=-1)
                pos = max(pos, need)
                def issue(w, la):
                    nonlocal issued, comp
                    while issued < len(items):
                        it = items[issued]
                        if issued > pos + la - 1: break
                        if it["dep"] and it["dep"] not in done:
                            assert issued > need, (st["name"], it["name"])
                            break
                        if issued - (comp + 1) >= w:
                            self.A(f"s_waitcnt vmcnt({w-1})"); comp = issued - w
                        it["fn"](); issued += 1
                if st['name'] != 'qred': issue(W, W)
                if comp < need:
                    self.A(f"s_waitcnt vmcnt({issued-1-need})"); comp = need
                if st["name"] == "join":
                    issue(W + self.boost, W + self.boost)
                    rest = self.o[mark:]; del self.o[mark:]
                    self.bcast()
                    n1 = self.hs_pre; n2 = min(issued, n1 + self.hs_mid)
                    def pre():
                        for n in range(n1): items[n]["fn"]()
                    def mid():
                        for n in range(n1, n2): items[n]["fn"]()
                        return n2 - n1
                    self.q_gather(pre, mid)
                    if self.curve: self.A(f"s_memrealtime s[{self.cpairs[4]}:{self.cpairs[4]+1}]")
                    self.q_reduce()
                    for n in range(n2, issued): items[n]["fn"]()
                    self.A(f"s_branch {ljoin}")
                    self.o += rest
                    self.L(ljoin)
                    comp = -1; W = W2
                if st["name"] in self.boosts: issue(W + self.boosts[st["name"]], W + self.boosts[st["name"]])
                self.o.append(f"    ; ---- {st['name']}")
                if not any(st["name"].startswith(p) for p in self.x_skip): st["fn"]()
                done.add(st["name"])
                after[st["name"]] = issued
                if st["name"] in self.stamp_after: self.stamp(self.stamp_after[st["name"]])
                if self.curve and st["name"] in self.curve:
                    p = self.cpairs[1 + self.curve.index(st["name"])]; self.A(f"s_memrealtime s[{p}:{p+1}]")
        names = [s["name"] for s in steps]
        k1 = names.index("softmax") + 1; k2 = names.index("tail")
        if not self.adapt:
            run(steps)
        else:
            run(steps[:k1])
            save = (issued, comp, pos, set(done), dict(after))
            lend = self.label("vend")
            for n, (thr, w) in enumerate(self.adapt):
                nxt = self.label("vnext")
                last = n == len(self.adapt) - 1
                if not last:
                    self.A(f"s_cmp_ge_u32 {sDUP0}, {thr}"); self.A(f"s_cbranch_scc1 {nxt}")
                issued, comp, pos = save[:3]; done.clear(); done.update(save[3]); after.clear(); after.update(save[4])
                W = w
                run(steps[k1:k2])
                if not last:
                    self.A(f"s_branch {lend}"); self.L(nxt)
            self.L(lend)
            run(steps[k2:])
        assert issued == len(items)

    def kd(self, name, vg, sg):
        return [f".amdhsa_kernel {name}", f"  .amdhsa_next_free_vgpr {vg}", f"  .amdhsa_next_free_sgpr {sg}",
                f"  .amdhsa_accum_offset {vg}", "  .amdhsa_group_segment_fixed_size 0", "  .amdhsa_kernarg_size 104",
                "  .amdhsa_user_sgpr_count 2", "  .amdhsa_user_sgpr_kernarg_segment_ptr 1",
                "  .amdhsa_system_sgpr_workgroup_id_x 1", ".end_amdhsa_kernel"]

    def build(self):
        A = self.A
        K1 = NAME + "_kernel"; K2 = "gated_mix_reduce_kernel"
        o = self.o
        o.append(HEADER.rstrip("\n"))
        if self.two_kernel:
            o.append(f"; @launch kernel={K1} grid=(256,1,1) block=(512,1,1) lds={LDS_BYTES}")
            o.append(f"; @launch kernel={K2} grid=(256,1,1) block=(64,1,1) lds=0")
        else:
            o.append(f"; @launch grid=(256,1,1) block=(512,1,1) lds={LDS_BYTES}")
        o += ['.amdgcn_target "amdgcn-amd-amdhsa--gfx950"', ".text", f".globl {K1}", ".p2align 8",
              f".type {K1},@function", f"{K1}:"]
        self.phase0()
        if self.W_even is not None:
            A(f"s_and_b32 {sT0}, {sXCC}, 1"); A("s_cbranch_scc1 L_odd")
            self.schedule(self.W_even, self.W2_even)
            A("s_branch L_join")
            self.L("L_odd")
            self.schedule(self.W, self.W2)
            self.L("L_join")
        else:
            self.schedule(self.W, self.W2)
        if self.curve:
            A("s_waitcnt lgkmcnt(0)")
            A(f"s_add_u32 s0, s40, {STAMP_OFF + 65536}"); A("s_addc_u32 s1, s41, 0")
            A(f"s_lshl_b32 s8, s2, 3"); A(f"s_add_u32 s8, s8, {sW}"); A("s_lshl_b32 s8, s8, 6")
            A("v_mov_b32 v112, s8")
            for k in range(16): A(f"v_mov_b32 v{116+k}, s{self.cpairs[k] if k < 15 else 90}")
            A("s_mov_b64 exec, 1")
            for k in range(4): A(f"global_store_dwordx4 v112, v[{116+4*k}:{119+4*k}], s[0:1] offset:{16*k}")
            A("s_mov_b64 exec, -1")
        if self.ybig:
            lc = "L_stamp" if self.stamps else "L_end"
            A(f"s_xor_b32 {sT0}, {sX1}, s2"); A(f"s_and_b32 {sT0}, {sT0}, 7"); A(f"s_cbranch_scc1 {lc}")
            t = vTM
            A(f"v_and_b32 v{t}, 1, v{vG}"); A(f"v_lshrrev_b32 v{t+1}, 1, v{vG}")
            A(f"v_lshl_add_u32 v{t}, v{t}, 1, v{t+1}")
            A(f"v_and_b32 v{t+1}, 7, v{vL}"); A(f"v_lshl_add_u32 v{t}, v{t+1}, 2, v{t}")
            A(f"s_lshl_b32 {sT1}, {sW}, 7"); A(f"s_add_u32 {sT1}, {sT1}, {L_YF}")
            A(f"v_lshl_add_u32 v{vOK}, v{t}, 2, {sT1}")
            A(f"v_and_b32 v{t}, 31, v{vL}"); A(f"v_lshlrev_b32 v{vOW}, 2, v{t}")
            A("s_barrier")
            self.consumer()
            if self.stamps:
                self.L("L_stamp")
                A(f"s_cmp_lg_u32 {sW}, 0"); A("s_cbranch_scc1 L_end")
        else:
            A(f"s_cmp_lg_u32 {sW}, 0"); A("s_cbranch_scc1 L_end")
        if not self.two_kernel and not self.ybig:
            self.consumer()
        if self.fixdur:
            A(f"s_mov_b32 s96, {self.fixdur}")
            if self.probe:
                if self.probe.get("wg") is not None:
                    A(f"s_cmp_lg_u32 s2, {self.probe['wg']}"); A("s_cbranch_scc1 L_end")
                A("s_waitcnt lgkmcnt(0)")
                A("s_sub_u32 s97, s98, s92"); A(f"s_mul_i32 s97, s97, {self.probe['m']}"); A("s_add_u32 s96, s96, s97")
            self.L("L_fix")
            A("s_memrealtime s[94:95]")
            A("s_waitcnt lgkmcnt(0)")
            A("s_sub_u32 s94, s94, s92")
            A(f"s_cmp_lt_u32 s94, s96")
            A("s_cbranch_scc1 L_fix")
        elif self.stamps and not self.curve:
            self.stamp(4)
            A("s_mov_b64 exec, 1")
            A("s_waitcnt lgkmcnt(0)")
            A(f"s_add_u32 s40, s40, {STAMP_OFF}"); A("s_addc_u32 s41, s41, 0")
            A("s_lshl_b32 s8, s2, 6"); A("v_mov_b32 v1, s8")
            for k in range(4):
                A(f"v_mov_b32 v{8+2*k}, s{sST+2*k}"); A(f"v_mov_b32 v{9+2*k}, s{sST+2*k+1}")
            A(f"v_mov_b32 v16, {sXCC}"); A("v_mov_b32 v17, 0")
            A(f"v_mov_b32 v18, s{sST+8}"); A(f"v_mov_b32 v19, s{sST+9}")
            A("global_store_dwordx4 v1, v[8:11], s[40:41]")
            A("global_store_dwordx4 v1, v[12:15], s[40:41] offset:16")
            A("global_store_dwordx4 v1, v[16:19], s[40:41] offset:32")
        self.L("L_end"); A("s_endpgm")
        if self.cpf: o.append(f".fill (16384 - (. - {K1})) / 4, 4, 0xbf810000")
        if self.two_kernel:
            o += [f".globl {K2}", ".p2align 8", f".type {K2},@function", f"{K2}:"]
            A("s_cmp_ge_u32 s2, 256"); A("s_cbranch_scc1 L_end2")
            A(f"s_load_dwordx2 s[{P_OUT}:{P_OUT+1}], s[0:1], 80")
            A(f"s_load_dwordx2 s[{P_WS}:{P_WS+1}], s[0:1], 96")
            t = vTM
            A(f"v_bfe_u32 v{vG}, v0, 4, 2")
            A(f"v_lshlrev_b32 v{vOD}, 4, v0")
            A(f"s_lshl_b32 {sTQ}, s2, 11")
            A(f"v_and_b32 v{t}, 1, v{vG}"); A(f"v_lshrrev_b32 v{t+1}, 1, v{vG}")
            A(f"v_lshl_add_u32 v{t}, v{t}, 1, v{t+1}")
            A(f"s_lshl_b32 {sT1}, s2, 3")
            A(f"v_lshl_add_u32 v{vT1}, v{t}, 1, {sT1}")
            A("s_waitcnt lgkmcnt(0)")
            self.mk(R_WS, P_WS, None, WS_BYTES)
            self.consumer(poll=False)
            self.L("L_end2"); A("s_endpgm")
        o += ['.section .rodata,"a"', ".p2align 6"] + self.kd(K1, 256, 102)
        if self.two_kernel:
            o += [".p2align 6"] + self.kd(K2, 112, 102)
        return "\n".join(o) + "\n"

if __name__ == "__main__":
    import argparse, json
    ap = argparse.ArgumentParser()
    ap.add_argument("out"); ap.add_argument("--opt", default="{}")
    a = ap.parse_args()
    open(a.out, "w").write(Gen(**json.loads(a.opt)).build())
```

```python
import sys, struct, math

NAME = "gated_mix__mha_block_cached__geglu_ffn__decode"
HEADER = open("cdna_kernels/" + NAME + ".s.ref").read().split("; Override launch")[0]

def f32(x):
    return "0x%08x" % struct.unpack("<I", struct.pack("<f", x))[0]

L_QS = 0
L_HS = 256
L_GS = 320
L_FS = 336
L_RK = 340
L_MX = 384
L_LS = 448
L_OB = 512
L_YF = 3072
L_WD = 5120
L_WO = L_WD + 16384
L_END = L_WO + 131072
LDS_BYTES = (L_END + 255) // 256 * 256

WS_Y = 0
WS_S = 0x80000
WS_Q = 0x89000
WS_F = WS_Q + 0x40000
WS_M = WS_F + 176 * 1024
WS_BYTES = WS_M
WS_MB = 0x81000
STAMP_OFF = 128 << 20
SPIN = "0x4000"

sW = "s3"
P_X, P_K, P_V, P_WQ, P_WO, P_WG, P_WU = 16, 18, 20, 22, 24, 28, 30
P_WD, P_GW, P_OUT, P_DBG, P_WS = 32, 34, 36, 38, 40
R_K, R_V, R_WQ, R_WO, R_X, R_GW, R_FT, R_WD, R_WS = 44, 48, 52, 56, 60, 64, 68, 76, 80
sH, sB, sS, sSL, sT0, sT1, sT2 = "s4", "s5", "s6", "s7", "s8", "s9", "s10"
sTK, sTV, sTQ, sTF, sTD = "s11", "s12", "s13", "s14", "s15"
sJ, sFT = "s72", "s73"
sDONE = sJ
sWOL, sWDL = "s84", "s85"
sDUP0, sDUP1 = "s86", "s87"
sC = "s88"; sCNT = "s89"; sXCC = "s90"; sBH = "s91"
sX0, sX1 = "s42", "s43"
sROT = "s74"
sARR = "s42"; sMB = "s43"; sGO = "s86"; sST8 = "s87"
sTI = "s75"
sST = 92
def srd(r): return f"s[{r}:{r+3}]"

vL, vI, vG = 1, 2, 3
vOK, vOV, vOQ, vOW, vOF, vOD, vT0, vT1 = 4, 5, 6, 7, 8, 9, 10, 11
vM = 12
vXR = 16
vBF = 24
vACC = 32
vAC2 = 36
vQF = 40
vSP = 56
vDF = 88
vTM = 104
vFL = 111
vK = 112
vX = 240
vFG = vDF + 8
vFD = vK + 16
def vr(a, n): return f"v[{a}:{a+n-1}]"

class Gen:
    def __init__(self, W=5, W2=16, W_even=None, W2_even=None, two_kernel=False, stamps=False,
                 wo_sched=None, st_after="pv3", q_at="K6_3", boost=4, fga_pos="pv1", ffn_pos="pv5", sleep=32, curve=None, k0_late=True,
                 stamp_after=None, fixdur=0, svc=3, gsvc=2, hs=0, pub=1, probe=None, xmap=None, nx=6, cpf=0, x_skip=(), x_nohs=False, k0mode=0, x_noclear=False, x_noy=False, ylate=False, x_nowo=False, x_noffn=False, x_nowq=False, rot=None, lay=0, ybig=True, adapt=None, vx=0, hopst=False, cl_fl="sc1", ys_fl="sc1", pb_fl="sc1", ga_fl="sc1", wo_fl=" nt", wd_fl=" nt", wq_fl=" nt", ft_fl=" nt", smb=True, dry=0, tlbpf=0, cons=0, cthr=24, csleep=0, oflags="", yflags="sc1", hs_pts=("K0_1", "K1_1", "K1_3", "K2_1", "K2_3", "K3_1"), hs_pre=12, hs_mid=10, npre=4, boosts=None):
        self.o = []
        self.__dict__.update(locals())
        self.wo_sched = wo_sched or [0, 0, 2, 2, 1, 2, 1, 2, 1, 2, 1, 2, 2, 0, 0, 0]
        assert sum(self.wo_sched) == 18
        self.cpairs = [92, 94, 96, 98, 100, 16, 18, 20, 22, 24, 26, 28, 30, 32, 34]
        if curve: self.stamps = True
        self.stamp_after = stamp_after if stamp_after is not None else ({} if curve else {"qred": 1, "pv7": 2, "tail": 3})
        self.lab = 0
        if probe: self.stamps = True; self.fixdur = probe['fix']; self.stamp_after = {probe['step']: 3}
        self.shS, self.shW, self.shG = {0: (18, 15, 12), 1: (18, 12, 15), 2: (15, 12, 17), 3: (12, 14, 17), 4: (15, 17, 12)}[lay]
        if lay and not rot: self.rot = [['w', 0]]
        self.boosts = boosts if boosts is not None else {'softmax': 4, 'wof': 4}
    def A(self, s): self.o.append("    " + s)
    def L(self, s): self.o.append(s + ":")
    def nop(self, n):
        while n > 0:
            k = min(n, 16); self.A(f"s_nop {k-1}"); n -= k
    def label(self, p):
        self.lab += 1; return f"L_{p}_{self.lab}"
    def stamp(self, k):
        if self.stamps: self.A(f"s_memrealtime s[{sST+2*k}:{sST+2*k+1}]")
    def only(self, w, fn):
        sk = self.label("skip")
        self.A(f"s_cmp_lg_u32 {sW}, {w}"); self.A(f"s_cbranch_scc1 {sk}")
        fn()
        self.L(sk)

    def swap_reduce(self, op, v, tmp, which):
        A = self.A
        A(f"v_mov_b32 v{tmp}, v{v}")
        self.nop(2)
        A(f"v_permlane{which}_swap_b32 v{v}, v{tmp}")
        self.nop(1)
        A(f"{op} v{v}, v{v}, v{tmp}")
    def dpp_add(self, v, ctl):
        self.nop(2)
        self.A(f"v_add_f32_dpp v{v}, v{v}, v{v} {ctl} row_mask:0xf bank_mask:0xf")
    def mk(self, r, p, off, size):
        A = self.A
        if off is None:
            A(f"s_mov_b32 s{r}, s{p}"); A(f"s_mov_b32 s{r+1}, s{p+1}")
        else:
            A(f"s_add_u32 s{r}, s{p}, {off}"); A(f"s_addc_u32 s{r+1}, s{p+1}, 0")
        if size is not None: A(f"s_mov_b32 s{r+2}, {size}")
        A(f"s_mov_b32 s{r+3}, 0x20000")

    def kv_load(self, kind, G, t):
        A = self.A
        st = sTK if kind == "K" else sTV
        if self.rot:
            if t == 0: A(f"s_xor_b32 {st}, {sROT}, {(G ^ (self.vx if kind == 'V' else 0)) << self.shG}")
            so = st
        else:
            if t == 0 and G > 0: A(f"s_movk_i32 {st}, {G*4096}")
            so = st if G > 0 else "0"
        if kind == "K":
            A(f"buffer_load_dwordx4 {vr(vK+16*G+4*t,4)}, v{vOK}, {srd(R_K)}, {so} offen offset:{(t>>1)*2048 + (t&1)*128} nt")
        else:
            dst = vX if G == 0 else vK + 16 * (G - 1)
            A(f"buffer_load_dwordx4 {vr(dst+4*t,4)}, v{vOV}, {srd(R_V)}, {so} offen offset:{256*t} nt")

    def bsel(self, src, half, bset):
        A = self.A
        t = vTM + 4 + bset
        A(f"v_perm_b32 v{t}, v{src}, v{src}, {sDUP1 if half else sDUP0}")
        for u in range(4): A(f"v_and_b32 v{vBF+4*bset+u}, v{t}, v{vM+u}")

    def phase0(self):
        A = self.A
        A("s_cmp_ge_u32 s2, 256")
        A("s_cbranch_scc1 L_end")
        A("s_load_dwordx16 s[16:31], s[0:1], 0")
        A("s_load_dwordx8 s[32:39], s[0:1], 64")
        A("s_load_dwordx2 s[40:41], s[0:1], 96")
        self.stamp(0)
        if self.fixdur and not self.probe: A("s_memrealtime s[92:93]")
        A("v_lshrrev_b32 v10, 6, v0")
        A(f"v_and_b32 v{vI}, 15, v0")
        A(f"v_readfirstlane_b32 {sW}, v10")
        A(f"v_bfe_u32 v{vG}, v0, 4, 2")
        A(f"s_and_b32 {sT0}, s2, 7")
        A(f"s_lshr_b32 {sT1}, s2, 3")
        A(f"s_and_b32 {sT2}, {sT1}, 3")
        A(f"s_lshl_b32 {sH}, {sT0}, 2")
        A(f"s_add_u32 {sH}, {sH}, {sT2}")
        A(f"s_lshr_b32 {sJ}, {sT1}, 2")
        A(f"s_and_b32 {sFT}, s2, 31")
        if self.xmap:
            A(f"s_lshl_b32 {sCNT}, {sT0}, 2"); A(f"s_lshr_b32 {sCNT}, {self.xmap}, {sCNT}"); A(f"s_and_b32 {sCNT}, {sCNT}, 15")
            A(f"s_mul_i32 {sTI}, {sT2}, {self.nx}"); A(f"s_add_u32 {sTI}, {sTI}, {sCNT}")
            A(f"s_cmp_eq_u32 {sCNT}, 15"); A(f"s_cselect_b32 {sTI}, 31, {sTI}")
        else:
            A(f"s_mov_b32 {sTI}, {sFT}")
        A(f"s_lshl_b32 {sTK}, {sJ}, 3"); A(f"s_add_u32 {sTK}, {sTK}, {sW}")
        A(f"s_lshl_b32 {sTV}, {sTK}, 4")
        A(f"s_lshl_b32 {sX0}, {sTK}, 16"); A(f"s_lshl_b32 {sTQ}, {sH}, 8"); A(f"s_add_u32 {sX0}, {sX0}, {sTQ}")
        A(f"s_cmp_ge_u32 {sTI}, 11")
        A(f"s_cselect_b32 {sX1}, 11, 0")
        A(f"s_sub_u32 {sX1}, {sTI}, {sX1}")
        A(f"s_lshl_b32 {sX1}, {sX1}, 8")
        A(f"s_mul_i32 {sTK}, {sTK}, {8*2752}")
        A(f"s_add_u32 {sX1}, {sX1}, {sTK}")
        A(f"s_sub_u32 s{R_FT+2}, {512*2752}, {sX1}")
        A(f"s_cmp_lt_u32 {sTI}, {0 if self.x_noffn else 22}")
        A(f"s_cselect_b32 s{R_FT+2}, s{R_FT+2}, 0")
        A(f"s_cselect_b32 {sX1}, {sX1}, 0")
        A(f"s_mov_b32 s{R_FT+3}, 0x20000")
        A(f"s_mov_b32 s{R_X+2}, 2048"); A(f"s_mov_b32 s{R_X+3}, 0x20000")
        A(f"s_mov_b32 s{R_WQ+2}, {0 if self.x_nowq else 7*8192+256}"); A(f"s_mov_b32 s{R_WQ+3}, 0x20000")
        A(f"s_movk_i32 {sTQ}, 8192")
        A(f"v_lshrrev_b32 v{vT0}, 3, v{vI}")
        A(f"v_lshlrev_b32 v{vT0}, 10, v{vT0}")
        A(f"v_lshl_add_u32 v{vT0}, v{vG}, 2, v{vT0}")
        A(f"v_lshlrev_b32 v{vT1}, 4, v{vI}")
        A(f"v_lshl_add_u32 v{vOQ}, v{vG}, 14, v{vT1}")
        A(f"v_mul_u32_u24 v{vOF}, {2*2752}, v{vG}")
        A(f"v_add_u32 v{vOF}, v{vOF}, v{vT1}")
        A(f"s_cmp_ge_u32 {sTI}, 11")
        A("s_waitcnt lgkmcnt(0)")
        A(f"s_cselect_b32 s{R_FT}, s{P_WU}, s{P_WG}"); A(f"s_cselect_b32 s{R_FT+1}, s{P_WU+1}, s{P_WG+1}")
        A(f"s_add_u32 s{R_WQ}, s{P_WQ}, {sX0}"); A(f"s_addc_u32 s{R_WQ+1}, s{P_WQ+1}, 0")
        A(f"buffer_load_dwordx4 {vr(vDF,4)}, v{vOQ}, {srd(R_WQ)}, 0 offen{self.wq_fl}")
        A(f"buffer_load_dwordx4 {vr(vDF+4,4)}, v{vOQ}, {srd(R_WQ)}, {sTQ} offen{self.wq_fl}")
        A(f"s_add_u32 s{R_FT}, s{R_FT}, {sX1}"); A(f"s_addc_u32 s{R_FT+1}, s{R_FT+1}, 0")
        A(f"buffer_load_dwordx4 {vr(vDF+8,4)}, v{vOF}, {srd(R_FT)}, 0 offen{self.ft_fl}")
        A(f"buffer_load_dwordx4 {vr(vDF+12,4)}, v{vOF}, {srd(R_FT)}, 0 offen offset:2752{self.ft_fl}")
        A(f"s_mov_b32 s{R_X}, s{P_X}"); A(f"s_mov_b32 s{R_X+1}, s{P_X+1}")
        A(f"buffer_load_dword v{vXR}, v{vT0}, {srd(R_X)}, {sTV} offen")
        def clear():
            self.mk(R_WS, P_WS, None, WS_BYTES)
            c = vQF
            for k in range(4): A(f"v_mov_b32 v{c+k}, -1")
            A(f"v_and_b32 v{c+4}, 63, v0"); A(f"v_lshlrev_b32 v{c+4}, 4, v{c+4}")
            A(f"s_lshl_b32 {sTD}, {sH}, 3"); A(f"s_add_u32 {sTD}, {sTD}, {sJ}"); A(f"s_lshl_b32 {sTD}, {sTD}, 10")
            A(f"s_add_u32 {sTD}, {sTD}, {WS_Q}")
            (not self.x_noclear) and A(f"buffer_store_dwordx4 {vr(c,4)}, v{c+4}, {srd(R_WS)}, {sTD} offen {self.cl_fl}")
            A(f"s_lshl_b32 {sTD}, {sTI}, 3"); A(f"s_add_u32 {sTD}, {sTD}, {sJ}"); A(f"s_lshl_b32 {sTD}, {sTD}, 10")
            A(f"s_add_u32 {sTD}, {sTD}, {WS_F}")
            (not self.x_noclear) and A(f"buffer_store_dwordx4 {vr(c,4)}, v{c+4}, {srd(R_WS)}, {sTD} offen {self.cl_fl}")
            if not self.two_kernel and not self.x_noy:
                A(f"s_lshl_b32 {sTD}, s2, 11")
                (not self.x_noclear) and A(f"buffer_store_dwordx4 {vr(c,4)}, v{c+4}, {srd(R_WS)}, {sTD} offen {self.cl_fl}")
                (not self.x_noclear) and A(f"buffer_store_dwordx4 {vr(c,4)}, v{c+4}, {srd(R_WS)}, {sTD} offen offset:1024 {self.cl_fl}")
            if self.smb:
                A("s_mov_b64 exec, 0xff") if False else (A("s_mov_b32 exec_lo, 0xff"), A("s_mov_b32 exec_hi, 0"))
                A(f"s_lshl_b32 {sTD}, s2, 7"); A(f"s_add_u32 {sTD}, {sTD}, {WS_MB}")
                A(f"buffer_store_dwordx4 {vr(c,4)}, v{c+4}, {srd(R_WS)}, {sTD} offen {self.cl_fl}")
            else:
                A(f"s_lshr_b32 {sTD}, {sJ}, 2"); A(f"s_lshl_b32 {sTD}, {sTD}, 5"); A(f"s_add_u32 {sTD}, {sTD}, {sH}")
                A(f"s_lshl_b32 {sTD}, {sTD}, 2"); A(f"s_and_b32 {sTF}, {sJ}, 3"); A(f"s_add_u32 {sTD}, {sTD}, {sTF}")
                A(f"s_lshl_b32 {sTD}, {sTD}, 3"); A(f"s_add_u32 {sTD}, {sTD}, {WS_S}")
                A("s_mov_b64 exec, 1")
                A(f"buffer_store_dwordx2 {vr(c,2)}, v{c+4}, {srd(R_WS)}, {sTD} offen {self.cl_fl}")
                A(f"s_lshl_b32 {sTD}, s2, 7"); A(f"s_add_u32 {sTD}, {sTD}, {WS_MB}")
                A(f"buffer_store_dwordx2 {vr(c,2)}, v{c+4}, {srd(R_WS)}, {sTD} offen {self.cl_fl}")
            A("s_mov_b64 exec, -1")
        self.only(self.hs, clear)
        if self.cpf:
            def pf():
                A("s_getpc_b64 s[26:27]")
                self.L("L_pc")
                A(f"s_sub_u32 s26, s26, L_pc-{NAME}_kernel"); A("s_subb_u32 s27, s27, 0")
                if self.cpf == 1:
                    A(f"s_lshl_b32 {sTD}, {sT1}, 9")
                    A(f"v_and_b32 v{vQF+8}, 63, v0"); A(f"v_lshl_add_u32 v{vQF+8}, v{vQF+8}, 3, {sTD}")
                    A(f"global_load_dwordx2 v[{vQF+10}:{vQF+11}], v{vQF+8}, s[26:27]")
                else:
                    A(f"v_and_b32 v{vQF+8}, 63, v0"); A(f"v_lshlrev_b32 v{vQF+8}, 7, v{vQF+8}")
                    A(f"global_load_dword v{vQF+10}, v{vQF+8}, s[26:27]")
                    A(f"v_add_u32 v{vQF+8}, 8192, v{vQF+8}")
                    A(f"global_load_dword v{vQF+10}, v{vQF+8}, s[26:27]")
            self.only(7, pf)
        A(f"v_and_b32 v{vL}, 63, v0")
        A(f"s_lshr_b32 {sB}, {sJ}, 2")
        A(f"s_and_b32 {sS}, {sJ}, 3")
        A(f"s_lshl_b32 {sBH}, {sB}, 5"); A(f"s_add_u32 {sBH}, {sBH}, {sH}")
        A(f"v_and_b32 v{vOK}, 7, v0")
        A(f"v_lshlrev_b32 v{vOK}, 8, v{vOK}")
        A(f"v_lshl_add_u32 v{vOK}, v{vG}, 4, v{vOK}")
        A(f"v_and_b32 v{vOV}, 8, v0")
        A(f"v_lshl_add_u32 v{vOK}, v{vOV}, 3, v{vOK}")
        A(f"v_lshl_add_u32 v{vOV}, v{vG}, 10, v{vT1}")
        A(f"s_lshl_b32 {sTK}, {sBH}, 20")
        A(f"s_lshl_b32 {sTV}, {sS}, {self.shS}"); A(f"s_add_u32 {sTK}, {sTK}, {sTV}")
        A(f"s_lshl_b32 {sTV}, {sW}, {self.shW}"); A(f"s_add_u32 {sTK}, {sTK}, {sTV}")
        self.mk(R_K, P_K, sTK, (7 << self.shG) + 4096)
        if self.rot:
            regs = {"w": sW, "j": sJ, "h": sH, "x": sT0, "q": sT2, "b": sB, "s": sS}
            A(f"s_mov_b32 {sROT}, 0")
            for nm, mul in self.rot:
                A(f"s_mul_i32 {sTV}, {regs[nm]}, {mul}"); A(f"s_add_u32 {sROT}, {sROT}, {sTV}")
            A(f"s_and_b32 {sROT}, {sROT}, 7"); A(f"s_lshl_b32 {sROT}, {sROT}, {self.shG}")
        if self.k0mode == 1:
            lk = self.label("k0e")
            A(f"s_mov_b32 {sX1}, {sTK}")
            A(f"s_cmp_eq_u32 {sW}, {self.hs}"); A(f"s_cbranch_scc1 {lk}")
            for n in range(4 + self.npre): self.kv_load("K", n // 4, n % 4)
            self.L(lk)
            A(f"s_mov_b32 {sTK}, {sX1}")
        self.mk(R_V, P_V, sTK, (7 << self.shG) + 4096)
        self.mk(R_WS, P_WS, None, WS_BYTES)
        self.mk(R_GW, P_GW, None, 1024)
        A(f"s_and_b32 {sT1}, {sT1}, 15")
        per = -(-86 // self.nx) if self.xmap else 11
        A(f"s_mul_i32 {sSL}, {sCNT if self.xmap else sT0}, {per}")
        A(f"s_add_u32 {sSL}, {sSL}, {sT1}")
        A(f"s_cmp_lt_u32 {sT1}, {per}")
        A(f"s_cselect_b32 {sSL}, {sSL}, 1000")
        A(f"s_cmp_lt_u32 {sSL}, 86")
        A(f"s_cselect_b32 s{R_WD+2}, {0 if self.x_noffn else 15*1024+128}, 0")
        A(f"s_cselect_b32 {sSL}, {sSL}, 0")
        A(f"s_lshl_b32 {sT0}, {sSL}, 14"); A(f"s_lshl_b32 {sT1}, {sW}, 7"); A(f"s_add_u32 {sT0}, {sT0}, {sT1}")
        self.mk(R_WD, P_WD, sT0, None)
        A(f"s_lshl_b32 {sT0}, {sH}, 17"); A(f"s_add_u32 {sT0}, {sT0}, {sT1}")
        self.mk(R_WO, P_WO, sT0, 0 if self.x_nowo else 127 * 1024 + 128)
        A(f"v_lshlrev_b32 v{vT1}, 4, v{vL}")
        if self.tlbpf:
            def pf():
                A(f"v_mov_b32 v{vQF+8}, 0")
                A("s_mov_b64 exec, 1")
                A(f"buffer_load_dword v{vQF+9}, v{vQF+8}, {srd(R_V)}, 0 offen nt")
                A(f"buffer_load_dword v{vQF+9}, v{vQF+8}, {srd(R_WO)}, 0 offen nt")
                A(f"buffer_load_dword v{vQF+9}, v{vQF+8}, {srd(R_WD)}, 0 offen nt")
                if self.tlbpf > 1:
                    A(f"buffer_load_dword v{vQF+9}, v{vQF+8}, {srd(R_K)}, 0 offen nt")
                    A(f"global_load_dword v{vQF+9}, v{vQF+8}, s[{P_OUT}:{P_OUT+1}]")
                A("s_mov_b64 exec, -1")
            self.only(6, pf)
        t = vTM + 4
        A(f"v_and_b32 v{t}, 7, v{vL}")
        A(f"v_lshlrev_b32 v{t}, 4, v{t}")
        A(f"v_lshrrev_b32 v{t+1}, 3, v{vL}")
        A(f"v_lshl_add_u32 v{vOD}, v{t+1}, 10, v{t}")
        A(f"v_and_b32 v{t+2}, 3, v{t+1}")
        A(f"v_lshlrev_b32 v{t+2}, 3, v{t+2}")
        A(f"v_lshrrev_b32 v{t+1}, 2, v{t+1}")
        A(f"v_add_u32 v{t+1}, v{t+1}, v{t+2}")
        A(f"v_lshl_add_u32 v{vOW}, v{t+1}, 10, v{t}")
        A(f"s_lshl_b32 {sWOL}, {sW}, 14"); A(f"s_add_u32 {sWOL}, {sWOL}, {L_WO}")
        A(f"s_lshl_b32 {sWDL}, {sW}, 11"); A(f"s_add_u32 {sWDL}, {sWDL}, {L_WD}")
        A(f"v_and_b32 v{t}, 1, v{vI}")
        A(f"v_lshlrev_b32 v{t}, 4, v{t}")
        A(f"v_mov_b32 v{t+1}, 0xffff")
        A(f"v_lshlrev_b32 v{t+1}, v{t}, v{t+1}")
        A(f"v_bfe_u32 v{t}, v{vI}, 1, 2")
        for u in range(4):
            A(f"v_cmp_eq_u32 vcc, {u}, v{t}")
            self.nop(2)
            A(f"v_cndmask_b32 v{vM+u}, 0, v{t+1}, vcc")
        A(f"s_mov_b32 {sDUP0}, 0x01000100"); A(f"s_mov_b32 {sDUP1}, 0x03020302")
        A(f"s_mov_b32 {sC}, {f32(math.log2(math.e) / math.sqrt(128.0))}")
        A(f"s_getreg_b32 {sXCC}, hwreg(HW_REG_XCC_ID)")
        A(f"s_add_u32 {sT0}, {sWOL}, {14*1024}")
        A(f"v_lshl_add_u32 v{vT0}, v{vL}, 4, {sT0}")
        lj = self.label("p0j")
        def hsw():
            A("s_waitcnt vmcnt(0)")
            if self.k0mode == 1:
                for n in range(4 + self.npre): self.kv_load("K", n // 4, n % 4)
        self.only(self.hs, hsw)
        if self.k0mode == 1:
            if (4 + self.npre) % 4: A(f"s_xor_b32 {sTK}, {sROT}, {((4 + self.npre) // 4) << self.shG}")
            A(f"s_waitcnt vmcnt({4 + self.npre})")
        else:
            for t in range(4):
                A(f"s_waitcnt vmcnt({[3,2,2,3][t]})")
                self.kv_load("K", 0, t)
            for n in range(self.npre): self.kv_load("K", 1 + n // 4, n % 4)
        if self.curve and "p0" in self.curve:
            p = self.cpairs[1 + self.curve.index("p0")]; A(f"s_memrealtime s[{p}:{p+1}]")
        self.bsel(vXR, 0, 0); self.bsel(vXR, 1, 1)
        self.nop(1)
        A(f"v_mfma_f32_16x16x32_bf16 {vr(vACC,4)}, {vr(vDF,4)}, {vr(vBF,4)}, 0")
        A(f"v_mfma_f32_16x16x32_bf16 {vr(vAC2,4)}, {vr(vDF+8,4)}, {vr(vBF,4)}, 0")
        A(f"v_mfma_f32_16x16x32_bf16 {vr(vACC,4)}, {vr(vDF+4,4)}, {vr(vBF+4,4)}, {vr(vACC,4)}")
        A(f"v_mfma_f32_16x16x32_bf16 {vr(vAC2,4)}, {vr(vDF+12,4)}, {vr(vBF+4,4)}, {vr(vAC2,4)}")
        self.nop(8)
        A(f"ds_write_b128 v{vT0}, {vr(vACC,4)}")
        A(f"ds_write_b128 v{vT0}, {vr(vAC2,4)} offset:1024")
        A("s_waitcnt lgkmcnt(0)")
        def arrive():
            A(f"s_lshl_b32 {sTF}, {sFT}, 3"); A(f"s_mov_b32 {sARR}, 1")
            A(f"s_atomic_add {sARR}, s[{P_DBG}:{P_DBG+1}], {sTF} glc")
        self.only(self.hs, arrive)
        A("s_barrier")
        if self.curve and "bar" in self.curve:
            p = self.cpairs[1 + self.curve.index("bar")]; A(f"s_memrealtime s[{p}:{p+1}]")
        def publish():
            d = vSP; d2 = vK + 96
            A(f"v_add_u32 v{vT0}, {L_WO + 14*1024}, v{vT1}")
            A(f"v_add_u32 v{vTM}, 0x10000, v{vT0}")
            for w in range(8): A(f"ds_read_b128 {vr(d+4*w,4)}, v{vT0 if w < 4 else vTM} offset:{16384*(w&3)}")
            for w in range(4): A(f"ds_read_b128 {vr(d2+4*w,4)}, v{vT0} offset:{1024+16384*w}")
            A(f"s_lshl_b32 {sT0}, {sH}, 3"); A(f"s_add_u32 {sT0}, {sT0}, {sJ}"); A(f"s_lshl_b32 {sT0}, {sT0}, 10")
            A(f"s_add_u32 {sT0}, {sT0}, {WS_Q}")
            A(f"s_lshl_b32 {sT1}, {sTI}, 3"); A(f"s_add_u32 {sT1}, {sT1}, {sJ}"); A(f"s_lshl_b32 {sT1}, {sT1}, 10")
            A(f"s_add_u32 {sT1}, {sT1}, {WS_F}")
            A("s_waitcnt lgkmcnt(4)")
            for w in range(4, 8): A(f"ds_read_b128 {vr(d2+4*w,4)}, v{vTM} offset:{1024+16384*(w&3)}")
            for w in range(1, 8):
                for r in range(4): A(f"v_add_f32 v{d+r}, v{d+r}, v{d+4*w+r}")
            for r in range(4): A(f"v_min_u32 v{d+r}, -2, v{d+r}")
            A(f"buffer_store_dwordx4 {vr(d,4)}, v{vT1}, {srd(R_WS)}, {sT0} offen {self.pb_fl}")
            A("s_waitcnt lgkmcnt(0)")
            for w in range(1, 8):
                for r in range(4): A(f"v_add_f32 v{d2+r}, v{d2+r}, v{d2+4*w+r}")
            for r in range(4): A(f"v_min_u32 v{d2+r}, -2, v{d2+r}")
            A(f"buffer_store_dwordx4 {vr(d2,4)}, v{vT1}, {srd(R_WS)}, {sT1} offen {self.pb_fl}")
            if self.curve: A(f"s_memrealtime s[{self.cpairs[1]}:{self.cpairs[1]+1}]")
            self.nop(2)
        self.only(self.pub, publish)

    def mb_load(self):
        self.A(f"s_load_dword {sGO}, s[{P_WS}:{P_WS+1}], {sMB} glc")
    def ga_loads(self):
        A = self.A
        self.ga_addr()
        A(f"s_add_u32 {sT1}, {sT0}, 4096")
        for k in range(4):
            A(f"buffer_load_dwordx4 {vr(vSP+4*k,4)}, v{vTM}, {srd(R_WS)}, {sT0 if k < 2 else sT1} offen offset:{(k&1)*2048} sc1")
    def step_hs(self, k, last):
        A = self.A
        def fn():
            end = self.label("hsend"); wait = self.label("hswait")
            if k == 0:
                A(f"s_lshl_b32 {sMB}, s2, 7"); A(f"s_add_u32 {sMB}, {sMB}, {WS_MB}")
                A(f"s_mov_b32 {sST8}, 0")
                A(f"v_lshlrev_b32 v{vQF+4}, 12, v{vL}"); A(f"v_mov_b32 v{vQF+6}, 1")
                A(f"s_lshl_b32 {sT0}, {sFT}, 7"); A(f"s_add_u32 {sT0}, {sT0}, {WS_MB}")
                A("s_waitcnt lgkmcnt(0)")
                if self.curve: A(f"s_memrealtime s[{self.cpairs[2]}:{self.cpairs[2]+1}]")
                A(f"s_and_b32 {sARR}, {sARR}, 7"); A(f"s_cmp_lg_u32 {sARR}, 7"); A(f"s_cbranch_scc1 {wait}")
                A("s_mov_b32 exec_lo, 0xff"); A("s_mov_b32 exec_hi, 0")
                A(f"buffer_store_dword v{vQF+6}, v{vQF+4}, {srd(R_WS)}, {sT0} offen sc1")
                A("s_mov_b64 exec, -1")
                A(f"s_mov_b32 {sGO}, 1")
                A(f"s_branch {end}")
                self.L(wait)
                self.mb_load()
                self.L(end)
                return
            A(f"s_cmp_eq_u32 {sST8}, 1"); A(f"s_cbranch_scc1 {end}")
            A("s_waitcnt lgkmcnt(0)")
            if last:
                sp = self.label("mbspin"); go = self.label("go")
                A(f"s_cmp_eq_u32 {sGO}, 1"); A(f"s_cbranch_scc1 {go}")
                A(f"s_mov_b32 {sCNT}, 0")
                A(f"v_mov_b32 v{vTM}, 0")
                self.L(sp)
                A("s_mov_b64 exec, 1")
                A(f"buffer_load_dword v{vFL}, v{vTM}, {srd(R_WS)}, {sMB} offen sc1")
                A("s_mov_b64 exec, -1")
                A(f"s_add_u32 {sCNT}, {sCNT}, 1")
                A("s_waitcnt vmcnt(0)")
                A(f"v_readfirstlane_b32 {sTF}, v{vFL}")
                A(f"s_cmp_ge_u32 {sCNT}, {SPIN}"); A(f"s_cbranch_scc1 {go}")
                A(f"s_cmp_lg_u32 {sTF}, 1"); A(f"s_cbranch_scc1 {sp}")
                self.L(go)
            else:
                A(f"s_cmp_lg_u32 {sGO}, 1"); A(f"s_cbranch_scc1 {wait}")
            if self.curve: A(f"s_memrealtime s[{self.cpairs[3]}:{self.cpairs[3]+1}]")
            self.ga_loads()
            A(f"s_mov_b32 {sST8}, 1")
            if not last:
                A(f"s_branch {end}")
                self.L(wait)
                self.mb_load()
            self.L(end)
        self.only(self.hs, fn)
    def step_qsvc(self):
        A = self.A
        def fn():
            gs = self.label("gaspin"); ok = self.label("gaok")
            A(f"s_mov_b32 {sCNT}, 0")
            self.L(gs)
            t = vTM + 2
            A(f"v_max3_u32 v{t}, v{vSP}, v{vSP+1}, v{vSP+2}")
            for k in range(3, 15, 2): A(f"v_max3_u32 v{t}, v{t}, v{vSP+k}, v{vSP+k+1}")
            A(f"v_max_u32 v{t}, v{t}, v{vSP+15}")
            A(f"v_cmp_eq_u32 vcc, -1, v{t}")
            A(f"s_cbranch_vccz {ok}")
            self.ga_loads()
            A(f"s_add_u32 {sCNT}, {sCNT}, 1")
            A(f"s_cmp_lt_u32 {sCNT}, {SPIN}")
            A("s_waitcnt vmcnt(0)")
            A(f"s_cbranch_scc1 {gs}")
            self.L(ok)
            if self.curve: A(f"s_memrealtime s[{self.cpairs[4]}:{self.cpairs[4]+1}]")
            self.q_reduce()
        self.only(self.hs, fn)

    def ga_addr(self):
        A = self.A
        t = vTM
        A(f"s_lshl_b32 {sT0}, {sH}, 13"); A(f"s_lshl_b32 {sT1}, {sB}, 7"); A(f"s_add_u32 {sT0}, {sT0}, {sT1}")
        A(f"s_add_u32 {sT0}, {sT0}, {WS_Q}")
        A(f"v_and_b32 v{t}, 7, v{vL}"); A(f"v_lshlrev_b32 v{t}, 4, v{t}")
        A(f"v_bfe_u32 v{t+1}, v{vL}, 3, 2"); A(f"v_lshl_add_u32 v{t}, v{t+1}, 8, v{t}")
        A(f"v_lshrrev_b32 v{t+1}, 5, v{vL}"); A(f"v_lshl_add_u32 v{t}, v{t+1}, 10, v{t}")

    def q_reduce(self):
        A = self.A
        t = vTM
        d = vSP
        for k in range(1, 4):
            for r in range(4): A(f"v_add_f32 v{d+r}, v{d+r}, v{d+4*k+r}")
        A(f"v_and_b32 v{t+1}, 7, v{vL}")
        A(f"v_lshrrev_b32 v{t+2}, 5, v{vL}")
        A(f"v_permlane32_swap_b32 v{d}, v{d+1}"); A(f"v_permlane32_swap_b32 v{d+2}, v{d+3}")
        A(f"v_lshl_add_u32 v{t+1}, v{t+2}, 3, v{t+1}")
        A(f"v_add_f32 v{d}, v{d}, v{d+1}"); A(f"v_add_f32 v{d+2}, v{d+2}, v{d+3}")
        A(f"v_cvt_pk_bf16_f32 v{d}, v{d}, v{d+2}")
        A(f"v_bfe_u32 v{t}, v{vL}, 3, 2")
        A(f"v_lshl_add_u32 v{t}, v{t}, 5, v{t+1}")
        A(f"v_lshlrev_b32 v{t}, 1, v{t}")
        A(f"ds_write_b16 v{t}, v{d} offset:{L_QS}")
        A(f"ds_write_b16_d16_hi v{t}, v{d} offset:{L_QS+32}")

    def items(self):
        A = self.A
        it = []
        def add(name, fn, dep=None): it.append(dict(name=name, fn=fn, dep=dep))
        def grp(kind, G, dep):
            for t in range(4): add(f"{kind}{G}_{t}", lambda t=t: self.kv_load(kind, G, t), dep if t == 0 else None)
        wd = []
        for t in range(2):
            def fn(t=t):
                A(f"s_add_u32 m0, {sWDL}, {t*1024}")
                A(f"s_movk_i32 {sTD}, {t*8192}")
                A(f"buffer_load_dwordx4 v{vOD}, {srd(R_WD)}, {sTD} offen{self.wd_fl} lds")
            wd.append((f"wd{t}", fn, None))
        wo = []
        for t in range(16):
            def fn(t=t):
                A(f"s_add_u32 m0, {sWOL}, {t*1024}")
                A(f"s_mov_b32 {sTD}, {(32*(t>>2) + 2*(t&3))*1024}")
                A(f"buffer_load_dwordx4 v{vOW}, {srd(R_WO)}, {sTD} offen{self.wo_fl} lds")
            wo.append((f"wo{t}", fn, "qred" if t >= 14 else None))
        dma = wo[:4] + wd + wo[4:]
        def put(slot):
            for _ in range(self.wo_sched[slot]):
                n, fn, dep = dma.pop(0); add(n, fn, dep)
        for G in range(8): grp("K", G, None); put(G)
        for G in range(8): grp("V", G, (self.st_after if G == 7 else f"qk{G-1}") if G else None); put(8 + G)
        return it

    def step_gate0(self):
        A = self.A
        def fn():
            A(f"s_lshl_b32 {sT1}, {sB}, 10")
            A(f"buffer_load_dwordx4 {vr(vXR,4)}, v{vT1}, {srd(R_X)}, {sT1} offen")
            A(f"buffer_load_dwordx4 {vr(vXR+4,4)}, v{vT1}, {srd(R_GW)}, 0 offen")
        self.only(self.gsvc, fn)
    def step_gate(self):
        A = self.A
        def fn():
            x, w = vXR, vXR + 4
            t = vTM
            acc = vT0
            A(f"v_mov_b32 v{acc}, 0")
            for k in range(4):
                A(f"v_lshlrev_b32 v{t}, 16, v{x+k}"); A(f"v_lshlrev_b32 v{t+1}, 16, v{w+k}")
                A(f"v_and_b32 v{t+2}, 0xffff0000, v{x+k}"); A(f"v_and_b32 v{t+3}, 0xffff0000, v{w+k}")
                A(f"v_mul_f32 v{t}, v{t}, v{t+1}"); A(f"v_mul_f32 v{t+2}, v{t+2}, v{t+3}")
                A(f"v_cvt_pk_bf16_f32 v{t}, v{t}, v{t+2}")
                A(f"v_lshlrev_b32 v{t+1}, 16, v{t}"); A(f"v_and_b32 v{t}, 0xffff0000, v{t}")
                A(f"v_add_f32 v{acc}, v{acc}, v{t+1}"); A(f"v_add_f32 v{acc}, v{acc}, v{t}")
            for ctl in ("quad_perm:[1,0,3,2]", "quad_perm:[2,3,0,1]", "row_half_mirror", "row_mirror"):
                self.dpp_add(acc, ctl)
            self.swap_reduce("v_add_f32", acc, t, 16)
            self.swap_reduce("v_add_f32", acc, t, 32)
            A(f"v_cvt_pk_bf16_f32 v{acc}, v{acc}, v{acc}")
            A(f"v_and_b32 v{acc}, 0xffff0000, v{acc}")
            A(f"v_mul_f32 v{acc}, {f32(-math.log2(math.e))}, v{acc}")
            A(f"v_exp_f32 v{acc}, v{acc}")
            self.nop(1)
            A(f"v_add_f32 v{acc}, 1.0, v{acc}")
            A(f"v_rcp_f32 v{acc}, v{acc}")
            self.nop(1)
            A(f"v_cvt_pk_bf16_f32 v{acc}, v{acc}, v{acc}")
            A(f"v_and_b32 v{t}, 0xffff0000, v{acc}")
            A(f"v_sub_f32 v{t+1}, 1.0, v{t}")
            A(f"v_cvt_pk_bf16_f32 v{t+1}, v{t+1}, v{t+1}")
            A(f"v_and_b32 v{t+1}, 0xffff0000, v{t+1}")
            A(f"v_mov_b32 v{t+2}, 0")
            A(f"ds_write_b64 v{t+2}, {vr(t,2)} offset:{L_GS}")
        self.only(self.gsvc, fn)

    def fl_load(self):
        A = self.A
        A(f"v_and_b32 v{vT0}, 31, v{vL}"); A(f"v_lshlrev_b32 v{vT0}, 3, v{vT0}")
        A(f"global_load_dword v{vFL}, v{vT0}, s[{P_DBG}:{P_DBG+1}] sc1")
    def step_fl(self):
        A = self.A
        def fn():
            self.fl_load()
            if self.adapt:
                t = vTM
                A(f"v_mov_b32 v{t}, 0"); A(f"v_mov_b32 v{t+1}, 2")
                A(f"s_lshl_b32 {sT0}, s2, 7"); A(f"s_add_u32 {sT0}, {sT0}, {WS_MB + 4}")
                A("s_mov_b64 exec, 1")
                A(f"buffer_store_dword v{t+1}, v{t}, {srd(R_WS)}, {sT0} offen sc1")
                A("s_mov_b64 exec, -1")
                A(f"s_lshr_b32 {sT0}, s2, 3"); A(f"s_and_b32 {sT0}, {sT0}, 3"); A(f"s_lshl_b32 {sT0}, {sT0}, 10")
                A(f"s_add_u32 {sT0}, {sT0}, {WS_MB + 4}")
                A(f"v_and_b32 v{t}, 7, v{vL}"); A(f"v_lshlrev_b32 v{t}, 7, v{t}")
                A(f"v_lshrrev_b32 v{t+1}, 3, v{vL}"); A(f"v_lshl_add_u32 v{t}, v{t+1}, 12, v{t}")
                A(f"buffer_load_dword v{vFG}, v{t}, {srd(R_WS)}, {sT0} offen sc1")
        self.only(self.svc, fn)
    def step_rank(self):
        A = self.A
        def fn():
            t = vTM
            A(f"v_cmp_eq_u32 s[52:53], 2, v{vFG}")
            A(f"v_cmp_gt_u32 vcc, 8, v{vFL}")
            A(f"s_bcnt1_i32_b64 {sT0}, s[52:53]")
            A(f"s_cmp_lg_u64 vcc, 0")
            A(f"s_cselect_b32 {sT0}, 64, {sT0}")
            A(f"v_mov_b32 v{t}, 0"); A(f"v_mov_b32 v{t+1}, {sT0}")
            A(f"ds_write_b32 v{t}, v{t+1} offset:{L_RK}")
        self.only(self.svc, fn)
    def step_fga(self):
        A = self.A
        def fn():
            ok = self.label("flok"); sp = self.label("flspin")
            A(f"v_cmp_gt_u32 vcc, 8, v{vFL}")
            A(f"s_cbranch_vccz {ok}")
            A(f"s_mov_b32 {sCNT}, 0")
            self.L(sp)
            A(f"s_sleep {self.sleep}")
            self.fl_load()
            A(f"s_add_u32 {sCNT}, {sCNT}, 1")
            A(f"s_cmp_ge_u32 {sCNT}, {SPIN}")
            A("s_waitcnt vmcnt(0)")
            A(f"s_cbranch_scc1 {ok}")
            A(f"v_cmp_gt_u32 vcc, 8, v{vFL}")
            A(f"s_cbranch_vccnz {sp}")
            self.L(ok)
            self.fg_load()
        self.only(self.svc, fn)
    def fg_load(self):
        A = self.A
        A(f"s_lshr_b32 {sT0}, {sSL}, 3"); A(f"s_lshl_b32 {sT0}, {sT0}, 13")
        A(f"s_lshl_b32 {sT1}, {sB}, 7"); A(f"s_add_u32 {sT0}, {sT0}, {sT1}")
        A(f"s_bfe_u32 {sT1}, {sSL}, 0x20001"); A(f"s_lshl_b32 {sT1}, {sT1}, 8"); A(f"s_add_u32 {sT0}, {sT0}, {sT1}")
        A(f"s_and_b32 {sT1}, {sSL}, 1"); A(f"s_lshl_b32 {sT1}, {sT1}, 3"); A(f"s_add_u32 {sT0}, {sT0}, {sT1}")
        A(f"s_add_u32 {sT0}, {sT0}, {WS_F}")
        A(f"v_and_b32 v{vT0}, 7, v{vL}"); A(f"v_lshlrev_b32 v{vT0}, 4, v{vT0}")
        A(f"v_lshrrev_b32 v{vTM}, 3, v{vL}"); A(f"v_lshl_add_u32 v{vT0}, v{vTM}, 10, v{vT0}")
        A(f"buffer_load_dwordx2 {vr(vFG,2)}, v{vT0}, {srd(R_WS)}, {sT0} offen sc1")
        A(f"s_add_u32 {sT0}, {sT0}, {11*8192}")
        A(f"buffer_load_dwordx2 {vr(vFG+2,2)}, v{vT0}, {srd(R_WS)}, {sT0} offen sc1")
    def step_ffn2(self):
        A = self.A
        t = vTM
        def fn():
            e = vFG
            ok = self.label("fgok"); sp = self.label("fgspin")
            A(f"s_mov_b32 {sCNT}, 0")
            self.L(sp)
            A(f"v_max3_u32 v{t}, v{e}, v{e+1}, v{e+2}"); A(f"v_max_u32 v{t}, v{t}, v{e+3}")
            A(f"v_cmp_eq_u32 vcc, -1, v{t}")
            A(f"s_cbranch_vccz {ok}")
            self.fg_load()
            A(f"s_add_u32 {sCNT}, {sCNT}, 1")
            A(f"s_cmp_lt_u32 {sCNT}, {SPIN}")
            A("s_waitcnt vmcnt(0)")
            A(f"s_cbranch_scc1 {sp}")
            self.L(ok)
            A(f"v_permlane32_swap_b32 v{e}, v{e+1}"); A(f"v_permlane32_swap_b32 v{e+2}, v{e+3}")
            self.nop(1)
            A(f"v_add_f32 v{e}, v{e}, v{e+1}"); A(f"v_add_f32 v{e+2}, v{e+2}, v{e+3}")
            self.swap_reduce("v_add_f32", e, e + 1, 16)
            self.swap_reduce("v_add_f32", e + 2, e + 3, 16)
            self.dpp_add(e, "row_ror:8"); self.dpp_add(e + 2, "row_ror:8")
            A(f"v_cvt_pk_bf16_f32 v{e}, v{e}, v{e+2}")
            A(f"v_and_b32 v{e+2}, 0xffff0000, v{e}")
            A(f"v_lshlrev_b32 v{e}, 16, v{e}")
            k0 = math.sqrt(2.0 / math.pi)
            A(f"v_mul_f32 v{e+1}, v{e}, v{e}")
            A(f"v_mov_b32 v{e+3}, {f32(-2.0 * k0 * math.log2(math.e))}")
            A(f"v_mul_f32 v{e+1}, {f32(0.044715)}, v{e+1}")
            A(f"v_add_f32 v{e+1}, 1.0, v{e+1}")
            A(f"v_mul_f32 v{e+1}, v{e+1}, v{e}")
            A(f"v_mul_f32 v{e+1}, v{e+1}, v{e+3}")
            A(f"v_exp_f32 v{e+1}, v{e+1}")
            self.nop(1)
            A(f"v_add_f32 v{e+1}, 1.0, v{e+1}")
            A(f"v_rcp_f32 v{e+1}, v{e+1}")
            self.nop(1)
            A(f"v_mul_f32 v{e}, v{e}, v{e+1}")
            A(f"v_cvt_pk_bf16_f32 v{e}, v{e}, v{e}")
            A(f"v_and_b32 v{e}, 0xffff0000, v{e}")
            A(f"v_mul_f32 v{e}, v{e}, v{e+2}")
            A(f"v_cvt_pk_bf16_f32 v{e}, v{e}, v{e}")
            A(f"v_and_b32 v{t+1}, 7, v{vL}"); A(f"v_lshrrev_b32 v{t+2}, 5, v{vL}")
            A(f"v_lshl_add_u32 v{t+1}, v{t+2}, 3, v{t+1}")
            A(f"v_lshlrev_b32 v{t+1}, 1, v{t+1}")
            A(f"ds_write_b16 v{t+1}, v{e} offset:{L_HS}")
            A(f"v_lshlrev_b32 v{t+1}, 3, v{vG}")
            A(f"v_mov_b32 v{t+3}, 0")
            A("s_waitcnt lgkmcnt(0)")
            A(f"ds_read_b64 {vr(e,2)}, v{t+1} offset:{L_HS}")
            A(f"ds_read_b32 v{e+2}, v{t+3} offset:{L_GS+4}")
            A(f"v_lshrrev_b32 v{t}, 2, v{vI}"); A(f"v_and_b32 v{t+1}, 3, v{vI}")
            A(f"v_lshlrev_b32 v{t+1}, 3, v{t+1}")
            A(f"v_lshl_add_u32 v{t+1}, v{t}, 7, v{t+1}")
            A(f"v_lshl_add_u32 v{t+1}, v{vG}, 9, v{t+1}")
            A(f"v_lshlrev_b32 v{t+2}, 2, v{vL}")
            for k in range(1, 4): A(f"v_cmp_eq_u32 {['', 's[52:53]', 's[54:55]', 's[68:69]'][k]}, {k}, v{vG}")
            wfs = [vDF, vK + 32]
            def rd(w):
                for tau in range(4):
                    A(f"ds_read_b64_tr_b16 {vr(wfs[w&1]+2*tau,2)}, v{t+1} offset:{L_WD + w*2048 + tau*32}")
            rd(0)
            for w in range(8):
                if w < 7: rd(w + 1)
                A(f"s_waitcnt lgkmcnt({(4 if w < 7 else 0) + (1 if 0 < w < 7 else 0) if not self.stamps else 0})")
                for tau in range(4):
                    A(f"v_mfma_f32_16x16x16_bf16 {vr(vFD+4*tau,4)}, {vr(e,2)}, {vr(wfs[w&1]+2*tau,2)}, 0")
                self.nop(6)
                A(f"v_cndmask_b32 v{t+4}, v{vFD}, v{vFD+4}, s[52:53]")
                self.nop(1)
                A(f"v_cndmask_b32 v{t+4}, v{t+4}, v{vFD+8}, s[54:55]")
                self.nop(1)
                A(f"v_cndmask_b32 v{t+4}, v{t+4}, v{vFD+12}, s[68:69]")
                A(f"v_mul_f32 v{t+4}, v{t+4}, v{e+2}")
                A(f"ds_write_b32 v{t+2}, v{t+4} offset:{L_YF + w*256}")
        self.only(self.svc, fn)

    def step_qred(self):
        A = self.A
        t = vTM
        A(f"v_and_b32 v{t}, 8, v{vL}")
        A(f"v_lshlrev_b32 v{t}, 3, v{t}")
        A(f"v_lshl_add_u32 v{t}, v{vG}, 4, v{t}")
        A("s_waitcnt lgkmcnt(0)")
        A("s_barrier")
        for T in range(2): A(f"ds_read_b128 {vr(vQF+4*T,4)}, v{t} offset:{L_QS+128*T}")
        A("s_waitcnt lgkmcnt(0)")

    def qk_combine(self, G):
        A = self.A
        a = vSP + 4 * G; b = vQF + 8 + 4 * (G & 1)
        for r in range(4): A(f"v_permlane32_swap_b32 v{a+r}, v{b+r}")
        for r in range(4): A(f"v_add_f32_dpp v{a+r}, v{b+r}, v{a+r} row_ror:8 row_mask:0xf bank_mask:0xf")
    def step_qk(self, G):
        A = self.A
        a = vSP + 4 * G; b = vQF + 8 + 4 * (G & 1); k = vK + 16 * G
        A(f"v_mfma_f32_16x16x32_bf16 {vr(a,4)}, {vr(k,4)}, {vr(vQF,4)}, 0")
        A(f"v_mfma_f32_16x16x32_bf16 {vr(b,4)}, {vr(k+8,4)}, {vr(vQF,4)}, 0")
        A(f"v_mfma_f32_16x16x32_bf16 {vr(a,4)}, {vr(k+4,4)}, {vr(vQF+4,4)}, {vr(a,4)}")
        A(f"v_mfma_f32_16x16x32_bf16 {vr(b,4)}, {vr(k+12,4)}, {vr(vQF+4,4)}, {vr(b,4)}")
        if G > 0:
            self.nop(4)
            self.qk_combine(G - 1)

    def step_softmax(self):
        A = self.A
        t = vTM
        m = vAC2 + 2
        A(f"v_max3_f32 v{m}, v{vSP}, v{vSP+1}, v{vSP+2}")
        for k in range(3, 27, 2): A(f"v_max3_f32 v{m}, v{m}, v{vSP+k}, v{vSP+k+1}")
        self.qk_combine(7)
        A(f"v_max3_f32 v{m}, v{m}, v{vSP+27}, v{vSP+28}")
        A(f"v_max3_f32 v{m}, v{m}, v{vSP+29}, v{vSP+30}")
        A(f"v_max_f32 v{m}, v{m}, v{vSP+31}")
        self.swap_reduce("v_max_f32", m, t, 16)
        self.swap_reduce("v_max_f32", m, t, 32)
        A(f"s_lshl_b32 {sT0}, {sW}, 2")
        A(f"v_mov_b32 v{t+4}, {sT0}")
        A(f"v_mov_b32 v{t+5}, 0")
        A("s_mov_b64 exec, 1")
        A(f"ds_write_b32 v{t+4}, v{m} offset:{L_MX}")
        A("s_mov_b64 exec, -1")
        A("s_waitcnt lgkmcnt(0)")
        A("s_barrier")
        A(f"ds_read_b128 {vr(vBF,4)}, v{t+5} offset:{L_MX}")
        A(f"ds_read_b128 {vr(vBF+4,4)}, v{t+5} offset:{L_MX+16}")
        if self.adapt: A(f"ds_read_b32 v{t+6}, v{t+5} offset:{L_RK}")
        A("s_waitcnt lgkmcnt(0)")
        if self.adapt: A(f"v_readfirstlane_b32 {sDUP0}, v{t+6}")
        A(f"v_max3_f32 v{m}, v{vBF}, v{vBF+1}, v{vBF+2}")
        A(f"v_max3_f32 v{m}, v{m}, v{vBF+3}, v{vBF+4}")
        A(f"v_max3_f32 v{m}, v{m}, v{vBF+5}, v{vBF+6}")
        A(f"v_max_f32 v{m}, v{m}, v{vBF+7}")
        A(f"v_mul_f32 v{m}, {sC}, v{m}")
        l = vT0
        for k in range(32):
            A(f"v_fma_f32 v{vSP+k}, v{vSP+k}, {sC}, -v{m}")
        for k in range(32):
            A(f"v_exp_f32 v{vSP+k}, v{vSP+k}")
        A(f"v_add_f32 v{l}, v{vSP}, v{vSP+1}"); A(f"v_add_f32 v{t}, v{vSP+2}, v{vSP+3}")
        for k in range(4, 32, 2):
            A(f"v_add_f32 v{l}, v{l}, v{vSP+k}"); A(f"v_add_f32 v{t}, v{t}, v{vSP+k+1}")
        A(f"v_add_f32 v{l}, v{l}, v{t}")
        self.swap_reduce("v_add_f32", l, t, 16)
        self.swap_reduce("v_add_f32", l, t, 32)
        A("s_mov_b64 exec, 1")
        A(f"ds_write_b32 v{t+4}, v{l} offset:{L_LS}")
        A("s_mov_b64 exec, -1")
        for k in range(32):
            A(f"v_cvt_pk_bf16_f32 v{vSP+k}, v{vSP+k}, v{vSP+k}")
        A("s_waitcnt lgkmcnt(0)")
        A("s_barrier")
        def fn():
            A(f"ds_read_b128 {vr(vBF,4)}, v{t+5} offset:{L_LS}")
            A(f"ds_read_b128 {vr(vBF+4,4)}, v{t+5} offset:{L_LS+16}")
            if self.smb:
                A(f"s_lshl_b32 {sT0}, s2, 7"); A(f"s_add_u32 {sT0}, {sT0}, {WS_MB + 8}")
            else:
                A(f"s_lshl_b32 {sT0}, {sBH}, 2"); A(f"s_add_u32 {sT0}, {sT0}, {sS}")
                A(f"s_lshl_b32 {sT0}, {sT0}, 3"); A(f"s_add_u32 {sT0}, {sT0}, {WS_S}")
            A("s_waitcnt lgkmcnt(0)")
            for k in range(1, 8): A(f"v_add_f32 v{vBF}, v{vBF}, v{vBF+k}")
            A(f"v_min_u32 v{t+1}, -2, v{vBF}")
            A(f"v_mov_b32 v{t}, v{m}")
            A("s_mov_b64 exec, 1")
            A(f"buffer_store_dwordx2 {vr(t,2)}, v{t+5}, {srd(R_WS)}, {sT0} offen sc1")
            A("s_mov_b64 exec, -1")
        self.only(2, fn)

    def step_pv(self, G):
        A = self.A
        base = vX if G == 0 else vK + 16 * (G - 1)
        def build(k, bset):
            for u in range(4): A(f"v_and_b32 v{vBF+4*bset+u}, v{vSP+(k ^ (self.vx << 2))}, v{vM+u}")
        for r in range(4):
            k = 4 * G + r
            if k == 0: build(0, 0)
            if k + 1 < 32: build(k + 1, (k + 1) & 1)
            else: self.nop(2)
            c = "0" if k == 0 else vr(vACC, 4)
            A(f"v_mfma_f32_16x16x32_bf16 {vr(vACC,4)}, {vr(base+4*r,4)}, {vr(vBF+4*(k&1),4)}, {c}")

    WF = [vQF, vK + 16 * 7, vX, vK]
    def step_wof(self):
        A = self.A
        t = vTM
        A(f"v_lshrrev_b32 v{t}, 2, v{vI}"); A(f"v_and_b32 v{t+1}, 3, v{vI}")
        A(f"v_lshlrev_b32 v{t+1}, 3, v{t+1}")
        A(f"v_lshl_add_u32 v{t+1}, v{t}, 7, v{t+1}")
        A(f"v_lshl_add_u32 v{t+2}, v{vG}, 10, v{t+1}")
        A(f"v_add_u32 v{vOQ}, {sWOL}, v{t+2}")
        for tau in range(4):
            for T in range(4):
                for hi in range(2):
                    A(f"ds_read_b64_tr_b16 {vr(self.WF[tau]+4*T+2*hi,2)}, v{vOQ} offset:{T*4096 + hi*512 + tau*32}")
            if tau < 3: A("s_waitcnt lgkmcnt(4)")
        A(f"v_and_b32 v{t}, 7, v{vI}")
        A(f"s_mul_i32 {sT1}, {sW}, 288"); A(f"s_add_u32 {sT1}, {sT1}, {L_OB}")
        A(f"v_lshl_add_u32 v{vOK}, v{vG}, 6, {sT1}")
        A(f"v_lshl_add_u32 v{vOK}, v{t}, 3, v{vOK}")
        A(f"v_mul_u32_u24 v{vOW}, 288, v{t}")
        A(f"v_lshl_add_u32 v{vOW}, v{vG}, 4, v{vOW}")
        if not self.ybig:
            A(f"v_lshrrev_b32 v{t}, 2, v{vI}")
            A(f"v_lshl_add_u32 v{t}, v{vG}, 2, v{t}")
            A(f"v_lshlrev_b32 v{vOF}, 11, v{t}")
            A(f"s_lshl_b32 {sTF}, {sW}, 15")
            A(f"s_lshl_b32 {sT1}, {sB}, 18"); A(f"s_add_u32 {sTF}, {sTF}, {sT1}")
            A(f"s_lshl_b32 {sT1}, {sH}, 6"); A(f"s_add_u32 {sTF}, {sTF}, {sT1}")
            A(f"s_lshl_b32 {sT1}, {sS}, 4"); A(f"s_add_u32 {sTF}, {sTF}, {sT1}")
            A(f"v_cmp_gt_u32 s[0:1], 2, v{vG}")
            A(f"v_lshlrev_b32 v{vOD}, 4, v{vL}")
            A(f"s_lshl_b32 {sTQ}, s2, 11")
            A(f"v_and_b32 v{t}, 1, v{vG}"); A(f"v_lshrrev_b32 v{t+1}, 1, v{vG}")
            A(f"v_lshl_add_u32 v{t}, v{t}, 1, v{t+1}")
            A(f"s_lshl_b32 {sT1}, s2, 3")
            A(f"v_lshl_add_u32 v{vT1}, v{t}, 1, {sT1}")
        else:
            A(f"v_lshrrev_b32 v{t}, 1, v{vG}"); A(f"v_lshlrev_b32 v{vOF}, 14, v{t}")
            A(f"v_and_b32 v{t}, 31, v{vL}"); A(f"v_lshl_add_u32 v{vOF}, v{t}, 2, v{vOF}")
            A(f"s_lshl_b32 {sTF}, {sW}, 15")
            A(f"s_lshl_b32 {sT1}, {sB}, 18"); A(f"s_add_u32 {sTF}, {sTF}, {sT1}")
            A(f"s_lshl_b32 {sT1}, {sH}, 9"); A(f"s_add_u32 {sTF}, {sTF}, {sT1}")
            A(f"s_lshl_b32 {sT1}, {sS}, 7"); A(f"s_add_u32 {sTF}, {sTF}, {sT1}")
            A(f"v_cmp_gt_u32 s[0:1], 2, v{vG}")
            A(f"v_lshlrev_b32 v{vOD}, 4, v{vL}")
            A(f"s_lshr_b32 {sX1}, s2, 3")
            A(f"s_lshl_b32 {sTQ}, {sX1}, 14"); A(f"s_lshl_b32 {sT1}, {sW}, 11"); A(f"s_add_u32 {sTQ}, {sTQ}, {sT1}")
            A(f"s_lshl_b32 {sT1}, {sX1}, 6")
            A(f"v_lshl_add_u32 v{vT1}, v{vL}, 1, {sT1}")
        A("s_waitcnt lgkmcnt(0)")
        A(f"v_mov_b32 v{vOQ}, 0")
        A(f"s_lshl_b32 {sT1}, {sW}, 8")
        A(f"v_lshl_add_u32 v{vAC2}, v{vL}, 2, {sT1}")

    def st_load(self):
        A = self.A
        if self.smb:
            A(f"s_lshl_b32 {sT0}, {sB}, 7"); A(f"s_add_u32 {sT0}, {sT0}, {sFT}"); A(f"s_lshl_b32 {sT0}, {sT0}, 7")
            A(f"s_add_u32 {sT0}, {sT0}, {WS_MB + 8}")
            A(f"v_mov_b32 v{vT0}, 0")
            for k in range(4):
                if k: A(f"s_add_u32 {sT0}, {sT0}, 4096")
                A(f"buffer_load_dwordx2 {vr(vXR+2*k,2)}, v{vT0}, {srd(R_WS)}, {sT0} offen sc1")
            return
        A(f"s_lshl_b32 {sT0}, {sBH}, 5"); A(f"s_add_u32 {sT0}, {sT0}, {WS_S}")
        A(f"v_mov_b32 v{vT0}, 0")
        for k in range(2):
            A(f"buffer_load_dwordx4 {vr(vXR+4*k,4)}, v{vT0}, {srd(R_WS)}, {sT0} offen offset:{16*k} sc1")
    def step_st0(self):
        self.only(self.svc, self.st_load)
    def step_scale(self):
        A = self.A
        t = vTM
        s = vXR
        def fn():
            ok = self.label("stok"); sp = self.label("stspin")
            A(f"v_mov_b32 v{t+3}, 0")
            A(f"ds_read_b32 v{t+2}, v{t+3} offset:{L_GS}")
            A(f"s_mov_b32 {sCNT}, 0")
            A(f"v_max3_u32 v{t}, v{s+1}, v{s+3}, v{s+5}")
            A(f"v_max_u32 v{t}, v{t}, v{s+7}")
            A(f"v_cmp_eq_u32 vcc, -1, v{t}")
            A(f"s_cbranch_vccz {ok}")
            self.L(sp)
            self.st_load()
            A(f"s_add_u32 {sCNT}, {sCNT}, 1")
            A(f"s_cmp_ge_u32 {sCNT}, {SPIN}")
            A("s_waitcnt vmcnt(0)")
            A(f"s_cbranch_scc1 {ok}")
            A(f"v_max3_u32 v{t}, v{s+1}, v{s+3}, v{s+5}")
            A(f"v_max_u32 v{t}, v{t}, v{s+7}")
            A(f"v_cmp_eq_u32 vcc, -1, v{t}")
            A(f"s_cbranch_vccnz {sp}")
            self.L(ok)
            A(f"v_max3_f32 v{t}, v{s}, v{s+2}, v{s+4}")
            A(f"v_max_f32 v{t}, v{t}, v{s+6}")
            for k in range(4): A(f"v_sub_f32 v{s+2*k}, v{s+2*k}, v{t}")
            A(f"v_sub_f32 v{t+1}, v{vAC2+2}, v{t}")
            for k in range(4): A(f"v_exp_f32 v{s+2*k}, v{s+2*k}")
            A(f"v_exp_f32 v{t+1}, v{t+1}")
            A(f"v_mul_f32 v{t}, v{s}, v{s+1}")
            for k in range(1, 4): A(f"v_fmac_f32 v{t}, v{s+2*k}, v{s+2*k+1}")
            A(f"v_rcp_f32 v{t}, v{t}")
            A("s_waitcnt lgkmcnt(0)")
            A(f"v_mul_f32 v{t+1}, v{t+2}, v{t+1}")
            A(f"v_mul_f32 v{t}, v{t}, v{t+1}")
            A(f"ds_write_b32 v{t+3}, v{t} offset:{L_FS}")
        self.only(self.svc, fn)

    def step_tail(self):
        A = self.A
        t = vTM
        A("s_mov_b32 exec_lo, 0x00ff00ff"); A("s_mov_b32 exec_hi, 0x00ff00ff")
        self.nop(6)
        A(f"v_cvt_pk_bf16_f32 v{t}, v{vACC}, v{vACC+1}")
        A(f"v_cvt_pk_bf16_f32 v{t+1}, v{vACC+2}, v{vACC+3}")
        A(f"ds_write_b64 v{vOK}, {vr(t,2)}")
        A("s_mov_b64 exec, -1")
        if self.dry:
            A(f"s_cmp_lt_u32 {sW}, 4"); A(f"s_cselect_b32 {sDUP1}, 1, 0"); A("s_cbranch_scc1 L_post")
            self.L("L_bar")
        A("s_waitcnt lgkmcnt(0)")
        A("s_barrier")
        if self.dry: self.L("L_post")
        af = vSP
        for T in range(4): A(f"ds_read_b128 {vr(af+4*T,4)}, v{vOW} offset:{L_OB + 64*T}")
        A(f"ds_read_b32 v{t+4}, v{vOQ} offset:{L_FS}")
        A(f"ds_read_b32 v{vAC2+3}, v{vAC2} offset:{L_YF}")
        for T in range(4):
            A(f"s_waitcnt lgkmcnt({5-T})" if not self.stamps else "s_waitcnt lgkmcnt(0)")
            for tau in range(4):
                c = vr(vDF+4*tau,4) if T else "0"
                A(f"v_mfma_f32_16x16x32_bf16 {vr(vDF+4*tau,4)}, {vr(af+4*T,4)}, {vr(self.WF[tau]+4*T,4)}, {c}")
        A("s_waitcnt lgkmcnt(0)")
        self.nop(4)
        for tau in range(4):
            d = vDF + 4 * tau
            A(f"v_add_f32 v{d}, v{d}, v{d+1}"); A(f"v_add_f32 v{d+2}, v{d+2}, v{d+3}")
            A(f"v_add_f32 v{d}, v{d}, v{d+2}")
        self.nop(1)
        A(f"v_permlane16_swap_b32 v{vDF}, v{vDF+4}")
        A(f"v_permlane16_swap_b32 v{vDF+8}, v{vDF+12}")
        self.nop(1)
        A(f"v_add_f32 v{vDF}, v{vDF}, v{vDF+4}")
        A(f"v_add_f32 v{vDF+8}, v{vDF+8}, v{vDF+12}")
        A(f"v_cndmask_b32 v{t}, v{vDF+8}, v{vDF}, s[0:1]")
        A(f"v_fma_f32 v{t}, v{t}, v{t+4}, v{vAC2+3}")
        A(f"v_min_u32 v{t}, -2, v{t}")
        self.nop(2)
        for k in range(1, 4):
            A(f"v_mov_b32_dpp v{t+k}, v{t} quad_perm:[{k},{k},{k},{k}] row_mask:0xf bank_mask:0xf")
        if self.dry:
            A(f"s_cmp_eq_u32 {sDUP1}, 1"); A(f"s_mov_b32 {sDUP1}, 0"); A("s_cbranch_scc1 L_bar")
        A("s_mov_b32 exec_lo, 0x11111111"); A("s_mov_b32 exec_hi, 0x11111111")
        A(f"buffer_store_dwordx4 {vr(t,4)}, v{vOF}, {srd(R_WS)}, {sTF} offen{'' if self.two_kernel else ' ' + self.ys_fl}")
        A("s_mov_b64 exec, -1")

    def consumer(self, poll=True):
        A = self.A
        y = vSP
        t = vTM + 4
        sp = self.label("yspin"); ok = self.label("yok"); fast = self.label("yfast")
        fl = " " + self.yflags if poll else ""
        if not poll or self.cons == 0:
            A(f"s_mov_b32 {sCNT}, 0")
            self.L(sp)
            A(f"buffer_load_dwordx4 {vr(y,4)}, v{vOD}, {srd(R_WS)}, {sTQ} offen{fl}")
            A(f"buffer_load_dwordx4 {vr(y+4,4)}, v{vOD}, {srd(R_WS)}, {sTQ} offen offset:1024{fl}")
            if poll:
                A(f"s_add_u32 {sCNT}, {sCNT}, 1")
                A(f"s_cmp_ge_u32 {sCNT}, {SPIN}")
                A("s_waitcnt vmcnt(0)")
                A(f"s_cbranch_scc1 {ok}")
                A(f"v_max3_u32 v{t}, v{y}, v{y+1}, v{y+2}")
                A(f"v_max3_u32 v{t+1}, v{y+3}, v{y+4}, v{y+5}")
                A(f"v_max3_u32 v{t}, v{t}, v{y+6}, v{y+7}")
                A(f"v_max_u32 v{t}, v{t}, v{t+1}")
                A(f"v_cmp_eq_u32 vcc, -1, v{t}")
                A(f"s_cbranch_vccnz {sp}")
                self.L(ok)
            else:
                A("s_waitcnt vmcnt(0)")
        else:
            mA, mB = "s[52:53]", "s[54:55]"
            D = self.cons
            def masks():
                A(f"v_max3_u32 v{t}, v{y}, v{y+1}, v{y+2}")
                A(f"v_max3_u32 v{t+1}, v{y+4}, v{y+5}, v{y+6}")
                A(f"v_max_u32 v{t}, v{t}, v{y+3}")
                A(f"v_max_u32 v{t+1}, v{t+1}, v{y+7}")
                A(f"v_cmp_eq_u32 {mA}, -1, v{t}")
                A(f"v_cmp_eq_u32 {mB}, -1, v{t+1}")
            def loads():
                la = self.label("ya"); lb = self.label("yb")
                A(f"s_mov_b64 exec, {mA}")
                A(f"s_cbranch_execz {la}")
                A(f"buffer_load_dwordx4 {vr(y,4)}, v{vOD}, {srd(R_WS)}, {sTQ} offen{fl}")
                self.L(la)
                A(f"s_mov_b64 exec, {mB}")
                A(f"s_cbranch_execz {lb}")
                A(f"buffer_load_dwordx4 {vr(y+4,4)}, v{vOD}, {srd(R_WS)}, {sTQ} offen offset:1024{fl}")
                self.L(lb)
                A("s_mov_b64 exec, -1")
            A(f"s_mov_b64 {mA}, -1"); A(f"s_mov_b64 {mB}, -1")
            A(f"s_mov_b32 {sCNT}, 0")
            self.L(sp)
            loads()
            A(f"s_add_u32 {sCNT}, {sCNT}, 1")
            A("s_waitcnt vmcnt(0)")
            masks()
            A(f"s_cmp_ge_u32 {sCNT}, {SPIN}"); A(f"s_cbranch_scc1 {ok}")
            A(f"s_bcnt1_i32_b64 {sT0}, {mA}"); A(f"s_bcnt1_i32_b64 {sT1}, {mB}")
            A(f"s_add_u32 {sT0}, {sT0}, {sT1}")
            if self.csleep:
                A(f"s_cmp_le_u32 {sT0}, {self.cthr}"); A(f"s_cbranch_scc1 {fast}")
                A(f"s_sleep {self.csleep}")
                A(f"s_branch {sp}")
            else:
                A(f"s_cmp_gt_u32 {sT0}, {self.cthr}"); A(f"s_cbranch_scc1 {sp}")
            self.L(fast)
            A(f"s_or_b64 vcc, {mA}, {mB}")
            A(f"s_cbranch_vccz {ok}")
            loads()
            A(f"s_add_u32 {sCNT}, {sCNT}, 1")
            A(f"s_waitcnt vmcnt({D})")
            masks()
            A(f"s_cmp_lt_u32 {sCNT}, {SPIN}"); A(f"s_cbranch_scc1 {fast}")
            self.L(ok)
        if self.hopst: self.stamp(1)
        for k in range(4): A(f"v_add_f32 v{y+8+k}, v{y+k}, v{y+4+k}")
        y = y + 8
        self.nop(1)
        A(f"v_permlane32_swap_b32 v{y}, v{y+1}"); A(f"v_permlane32_swap_b32 v{y+2}, v{y+3}")
        self.nop(1)
        A(f"v_add_f32 v{y}, v{y}, v{y+1}"); A(f"v_add_f32 v{y+2}, v{y+2}, v{y+3}")
        self.nop(2)
        A(f"v_permlane16_swap_b32 v{y}, v{y+2}")
        self.nop(1)
        A(f"v_add_f32 v{y}, v{y}, v{y+2}")
        if self.ybig and poll:
            self.dpp_add(y, "row_ror:8")
            A(f"ds_write_b32 v{vOK}, v{y}")
            A("s_waitcnt lgkmcnt(0)")
            A("s_barrier")
            if self.hopst: self.stamp(2)
            A(f"s_cmp_lg_u32 {sW}, 0"); A("s_cbranch_scc1 L_end")
            for w in range(8): A(f"ds_read_b32 v{y+w}, v{vOW} offset:{L_YF + 128*w}")
            A("s_waitcnt lgkmcnt(4)")
            A(f"v_add_f32 v{y}, v{y}, v{y+1}"); A(f"v_add_f32 v{y+2}, v{y+2}, v{y+3}")
            A("s_waitcnt lgkmcnt(0)")
            A(f"v_add_f32 v{y+4}, v{y+4}, v{y+5}"); A(f"v_add_f32 v{y+6}, v{y+6}, v{y+7}")
            A(f"v_add_f32 v{y}, v{y}, v{y+2}"); A(f"v_add_f32 v{y+4}, v{y+4}, v{y+6}")
            A(f"v_add_f32 v{y}, v{y}, v{y+4}")
            A(f"v_cvt_pk_bf16_f32 v{y}, v{y}, v{y}")
            A("s_mov_b32 exec_hi, 0")
        else:
            for ctl in ("quad_perm:[1,0,3,2]", "quad_perm:[2,3,0,1]", "row_half_mirror", "row_mirror"):
                self.dpp_add(y, ctl)
            A(f"v_cvt_pk_bf16_f32 v{y}, v{y}, v{y}")
            A("s_mov_b32 exec_lo, 0x00010001"); A("s_mov_b32 exec_hi, 0x00010001")
        A(f"global_store_short v{vT1}, v{y}, s[{P_OUT}:{P_OUT+1}]{self.oflags}")

    def steps(self, idx):
        S = []
        def add(name, needs, fn): S.append(dict(name=name, needs=needs, fn=fn))
        add("gate0", [], self.step_gate0)
        pts = list(self.hs_pts)
        evs = [(idx[p], f"hs{k}", [p], (lambda k=k: self.step_hs(k, k == len(pts) - 1))) for k, p in enumerate(pts)]
        evs.append((idx["K1_0"] + 0.5, "gate", ["@gate0"], self.step_gate))
        if self.curve:
            for G in range(1, 5):
                if f"w{G}" in self.curve: evs.append((idx[f"K{G}_3"] + 0.1, f"w{G}", [f"K{G}_3"], lambda: None))
        for _, n, nd, fn in sorted(evs, key=lambda e: e[0]): add(n, nd, fn)
        add("join", [f"@hs{len(pts)-1}", self.q_at], self.step_qsvc)
        add("qred", [], self.step_qred)
        if self.adapt: add("fl", [], self.step_fl)
        for G in range(8): add(f"qk{G}", [f"K{G}_3"], lambda G=G: self.step_qk(G))
        if self.adapt: add("rank", ["@fl"], self.step_rank)
        else: add("fl", [], self.step_fl)
        add("softmax", ["wd1"], self.step_softmax)
        lastdma = idx["wo15"]
        placed = False
        for G in range(8):
            if G == 7: add("scale", ["@st0"], self.step_scale)
            if not placed and G >= 2 and idx[f"V{G}_3"] > lastdma:
                add("wof", ["wo15"], self.step_wof); placed = True
            add(f"pv{G}", [f"V{G}_3"], lambda G=G: self.step_pv(G))
            if f"pv{G}" == self.fga_pos: add("fga", ["@fl"], self.step_fga)
            if f"pv{G}" == self.st_pos: add("st0", [], self.step_st0)
            if f"pv{G}" == self.ffn_pos: add("ffn2", ["@fga"], self.step_ffn2)
        assert placed
        add("tail", [], self.step_tail)
        return S

    def schedule(self, W, W2):
        self.st_pos = self.st_after; self.st_after = "st0"
        items = self.items()
        self.st_after = self.st_pos
        idx = {it["name"]: n for n, it in enumerate(items)}
        steps = self.steps(idx)
        issued = 4 + self.npre
        assert all(it['name'][0] == 'K' for it in items[:issued])
        comp = -1; done = set(); pos = -1; after = {}
        def run(steps):
            nonlocal issued, comp, pos, W
            for st in steps:
                need = max([after[n[1:]] if n[0] == "@" else idx[n] for n in st["needs"]], default=-1)
                pos = max(pos, need)
                def issue(w, la):
                    nonlocal issued, comp
                    while issued < len(items):
                        it = items[issued]
                        if issued > pos + la - 1: break
                        if it["dep"] and it["dep"] not in done:
                            assert issued > need, (st["name"], it["name"])
                            break
                        if issued - (comp + 1) >= w:
                            self.A(f"s_waitcnt vmcnt({w-1})"); comp = issued - w
                        it["fn"](); issued += 1
                if st['name'] != 'qred': issue(W, W)
                if comp < need:
                    self.A(f"s_waitcnt vmcnt({issued-1-need})"); comp = need
                if st["name"] == "join":
                    issue(W + self.boost, W + self.boost)
                    W = W2
                if st["name"] in self.boosts: issue(W + self.boosts[st["name"]], W + self.boosts[st["name"]])
                self.o.append(f"    ; ---- {st['name']}")
                if not any(st["name"].startswith(p) for p in self.x_skip): st["fn"]()
                done.add(st["name"])
                after[st["name"]] = issued
                if st["name"] in self.stamp_after: self.stamp(self.stamp_after[st["name"]])
                if self.curve and st["name"] in self.curve:
                    p = self.cpairs[1 + self.curve.index(st["name"])]; self.A(f"s_memrealtime s[{p}:{p+1}]")
        names = [s["name"] for s in steps]
        k1 = names.index("softmax") + 1; k2 = names.index("tail")
        if not self.adapt:
            run(steps)
        else:
            run(steps[:k1])
            save = (issued, comp, pos, set(done), dict(after))
            lend = self.label("vend")
            for n, (thr, w) in enumerate(self.adapt):
                nxt = self.label("vnext")
                last = n == len(self.adapt) - 1
                if not last:
                    self.A(f"s_cmp_ge_u32 {sDUP0}, {thr}"); self.A(f"s_cbranch_scc1 {nxt}")
                issued, comp, pos = save[:3]; done.clear(); done.update(save[3]); after.clear(); after.update(save[4])
                W = w
                run(steps[k1:k2])
                if not last:
                    self.A(f"s_branch {lend}"); self.L(nxt)
            self.L(lend)
            run(steps[k2:])
        assert issued == len(items)

    def kd(self, name, vg, sg):
        return [f".amdhsa_kernel {name}", f"  .amdhsa_next_free_vgpr {vg}", f"  .amdhsa_next_free_sgpr {sg}",
                f"  .amdhsa_accum_offset {vg}", "  .amdhsa_group_segment_fixed_size 0", "  .amdhsa_kernarg_size 104",
                "  .amdhsa_user_sgpr_count 2", "  .amdhsa_user_sgpr_kernarg_segment_ptr 1",
                "  .amdhsa_system_sgpr_workgroup_id_x 1", ".end_amdhsa_kernel"]

    def build(self):
        A = self.A
        K1 = NAME + "_kernel"; K2 = "gated_mix_reduce_kernel"
        o = self.o
        o.append(HEADER.rstrip("\n"))
        if self.two_kernel:
            o.append(f"; @launch kernel={K1} grid=(256,1,1) block=(512,1,1) lds={LDS_BYTES}")
            o.append(f"; @launch kernel={K2} grid=(256,1,1) block=(64,1,1) lds=0")
        else:
            o.append(f"; @launch grid=(256,1,1) block=(512,1,1) lds={LDS_BYTES}")
        o += ['.amdgcn_target "amdgcn-amd-amdhsa--gfx950"', ".text", f".globl {K1}", ".p2align 8",
              f".type {K1},@function", f"{K1}:"]
        self.phase0()
        if self.W_even is not None:
            A(f"s_and_b32 {sT0}, {sXCC}, 1"); A("s_cbranch_scc1 L_odd")
            self.schedule(self.W_even, self.W2_even)
            A("s_branch L_join")
            self.L("L_odd")
            self.schedule(self.W, self.W2)
            self.L("L_join")
        else:
            self.schedule(self.W, self.W2)
        if self.curve:
            A("s_waitcnt lgkmcnt(0)")
            A(f"s_add_u32 s0, s40, {STAMP_OFF + 65536}"); A("s_addc_u32 s1, s41, 0")
            A(f"s_lshl_b32 s8, s2, 3"); A(f"s_add_u32 s8, s8, {sW}"); A("s_lshl_b32 s8, s8, 6")
            A("v_mov_b32 v112, s8")
            for k in range(16): A(f"v_mov_b32 v{116+k}, s{self.cpairs[k] if k < 15 else 90}")
            A("s_mov_b64 exec, 1")
            for k in range(4): A(f"global_store_dwordx4 v112, v[{116+4*k}:{119+4*k}], s[0:1] offset:{16*k}")
            A("s_mov_b64 exec, -1")
        if self.ybig:
            lc = "L_stamp" if self.stamps else "L_end"
            A(f"s_xor_b32 {sT0}, {sX1}, s2"); A(f"s_and_b32 {sT0}, {sT0}, 7"); A(f"s_cbranch_scc1 {lc}")
            t = vTM
            A(f"v_and_b32 v{t}, 1, v{vG}"); A(f"v_lshrrev_b32 v{t+1}, 1, v{vG}")
            A(f"v_lshl_add_u32 v{t}, v{t}, 1, v{t+1}")
            A(f"v_and_b32 v{t+1}, 7, v{vL}"); A(f"v_lshl_add_u32 v{t}, v{t+1}, 2, v{t}")
            A(f"s_lshl_b32 {sT1}, {sW}, 7"); A(f"s_add_u32 {sT1}, {sT1}, {L_YF}")
            A(f"v_lshl_add_u32 v{vOK}, v{t}, 2, {sT1}")
            A(f"v_and_b32 v{t}, 31, v{vL}"); A(f"v_lshlrev_b32 v{vOW}, 2, v{t}")
            A("s_barrier")
            self.consumer()
            if self.stamps:
                self.L("L_stamp")
                A(f"s_cmp_lg_u32 {sW}, 0"); A("s_cbranch_scc1 L_end")
        else:
            A(f"s_cmp_lg_u32 {sW}, 0"); A("s_cbranch_scc1 L_end")
        if not self.two_kernel and not self.ybig:
            self.consumer()
        if self.fixdur:
            A(f"s_mov_b32 s96, {self.fixdur}")
            if self.probe:
                if self.probe.get("wg") is not None:
                    A(f"s_cmp_lg_u32 s2, {self.probe['wg']}"); A("s_cbranch_scc1 L_end")
                A("s_waitcnt lgkmcnt(0)")
                A("s_sub_u32 s97, s98, s92"); A(f"s_mul_i32 s97, s97, {self.probe['m']}"); A("s_add_u32 s96, s96, s97")
            self.L("L_fix")
            A("s_memrealtime s[94:95]")
            A("s_waitcnt lgkmcnt(0)")
            A("s_sub_u32 s94, s94, s92")
            A(f"s_cmp_lt_u32 s94, s96")
            A("s_cbranch_scc1 L_fix")
        elif self.stamps and not self.curve:
            self.stamp(4)
            A("s_mov_b64 exec, 1")
            A("s_waitcnt lgkmcnt(0)")
            A(f"s_add_u32 s40, s40, {STAMP_OFF}"); A("s_addc_u32 s41, s41, 0")
            A("s_lshl_b32 s8, s2, 6"); A("v_mov_b32 v1, s8")
            for k in range(4):
                A(f"v_mov_b32 v{8+2*k}, s{sST+2*k}"); A(f"v_mov_b32 v{9+2*k}, s{sST+2*k+1}")
            A(f"v_mov_b32 v16, {sXCC}"); A("v_mov_b32 v17, 0")
            A(f"v_mov_b32 v18, s{sST+8}"); A(f"v_mov_b32 v19, s{sST+9}")
            A("global_store_dwordx4 v1, v[8:11], s[40:41]")
            A("global_store_dwordx4 v1, v[12:15], s[40:41] offset:16")
            A("global_store_dwordx4 v1, v[16:19], s[40:41] offset:32")
        self.L("L_end"); A("s_endpgm")
        if self.cpf: o.append(f".fill (16384 - (. - {K1})) / 4, 4, 0xbf810000")
        if self.two_kernel:
            o += [f".globl {K2}", ".p2align 8", f".type {K2},@function", f"{K2}:"]
            A("s_cmp_ge_u32 s2, 256"); A("s_cbranch_scc1 L_end2")
            A(f"s_load_dwordx2 s[{P_OUT}:{P_OUT+1}], s[0:1], 80")
            A(f"s_load_dwordx2 s[{P_WS}:{P_WS+1}], s[0:1], 96")
            t = vTM
            A(f"v_bfe_u32 v{vG}, v0, 4, 2")
            A(f"v_lshlrev_b32 v{vOD}, 4, v0")
            A(f"s_lshl_b32 {sTQ}, s2, 11")
            A(f"v_and_b32 v{t}, 1, v{vG}"); A(f"v_lshrrev_b32 v{t+1}, 1, v{vG}")
            A(f"v_lshl_add_u32 v{t}, v{t}, 1, v{t+1}")
            A(f"s_lshl_b32 {sT1}, s2, 3")
            A(f"v_lshl_add_u32 v{vT1}, v{t}, 1, {sT1}")
            A("s_waitcnt lgkmcnt(0)")
            self.mk(R_WS, P_WS, None, WS_BYTES)
            self.consumer(poll=False)
            self.L("L_end2"); A("s_endpgm")
        o += ['.section .rodata,"a"', ".p2align 6"] + self.kd(K1, 256, 102)
        if self.two_kernel:
            o += [".p2align 6"] + self.kd(K2, 112, 102)
        return "\n".join(o) + "\n"

if __name__ == "__main__":
    import argparse, json
    ap = argparse.ArgumentParser()
    ap.add_argument("out"); ap.add_argument("--opt", default="{}")
    a = ap.parse_args()
    open(a.out, "w").write(Gen(**json.loads(a.opt)).build())
```

```python
import sys, struct, math

NAME = "gated_mix__mha_block_cached__geglu_ffn__decode"
HEADER = open("cdna_kernels/" + NAME + ".s.ref").read().split("; Override launch")[0]

def f32(x):
    return "0x%08x" % struct.unpack("<I", struct.pack("<f", x))[0]

L_QS = 0
L_HS = 256
L_GS = 320
L_FS = 336
L_RK = 340
L_MX = 384
L_LS = 448
L_OB = 512
L_YF = 3072
L_WD = 5120
L_WO = L_WD + 16384
L_END = L_WO + 131072
LDS_BYTES = (L_END + 255) // 256 * 256

WS_Y = 0
WS_S = 0x80000
WS_Q = 0x89000
WS_F = WS_Q + 0x40000
WS_M = WS_F + 176 * 1024
WS_BYTES = WS_M
WS_MB = 0x81000
STAMP_OFF = 128 << 20
SPIN = "0x4000"

sW = "s3"
P_X, P_K, P_V, P_WQ, P_WO, P_WG, P_WU = 16, 18, 20, 22, 24, 28, 30
P_WD, P_GW, P_OUT, P_DBG, P_WS = 32, 34, 36, 38, 40
R_K, R_V, R_WQ, R_WO, R_X, R_GW, R_FT, R_WD, R_WS = 44, 48, 52, 56, 60, 64, 68, 76, 80
sH, sB, sS, sSL, sT0, sT1, sT2 = "s4", "s5", "s6", "s7", "s8", "s9", "s10"
sTK, sTV, sTQ, sTF, sTD = "s11", "s12", "s13", "s14", "s15"
sJ, sFT = "s72", "s73"
sDONE = sJ
sWOL, sWDL = "s84", "s85"
sDUP0, sDUP1 = "s86", "s87"
sC = "s88"; sCNT = "s89"; sXCC = "s90"; sBH = "s91"
sX0, sX1 = "s42", "s43"
sROT = "s74"
sARR = "s42"; sMB = "s43"; sGO = "s86"; sST8 = "s87"
sTI = "s75"
sST = 92
def srd(r): return f"s[{r}:{r+3}]"

vL, vI, vG = 1, 2, 3
vOK, vOV, vOQ, vOW, vOF, vOD, vT0, vT1 = 4, 5, 6, 7, 8, 9, 10, 11
vM = 12
vXR = 16
vBF = 24
vACC = 32
vAC2 = 36
vQF = 40
vSP = 56
vDF = 88
vTM = 104
vFL = 111
vK = 112
vX = 240
vFG = vDF + 8
vFD = vK + 16
def vr(a, n): return f"v[{a}:{a+n-1}]"

class Gen:
    def __init__(self, W=5, W2=16, W_even=None, W2_even=None, two_kernel=False, stamps=False,
                 wo_sched=None, st_after="pv3", q_at="K6_3", boost=4, fga_pos="pv1", ffn_pos="pv5", sleep=32, curve=None, k0_late=True,
                 stamp_after=None, fixdur=0, svc=3, gsvc=2, hs=0, pub=1, probe=None, xmap=None, nx=6, cpf=0, x_skip=(), x_nohs=False, k0mode=0, x_noclear=False, x_noy=False, ylate=False, x_nowo=False, x_noffn=False, x_nowq=False, rot=None, lay=0, ybig=True, adapt=None, vx=0, kv_fl="nt", hx=0, hopst=False, cl_fl="sc1", ys_fl="sc1", pb_fl="sc1", ga_fl="sc1", wo_fl=" nt", wd_fl=" nt", wq_fl=" nt", ft_fl=" nt", smb=True, dry=0, tlbpf=0, cons=0, cthr=24, csleep=0, oflags="", yflags="sc1", hs_pts=("K0_1", "K1_1", "K1_3", "K2_1", "K2_3", "K3_1"), hs_pre=12, hs_mid=10, npre=4, boosts=None):
        self.o = []
        self.__dict__.update(locals())
        self.wo_sched = wo_sched or [0, 0, 2, 2, 1, 2, 1, 2, 1, 2, 1, 2, 2, 0, 0, 0]
        assert sum(self.wo_sched) == 18
        self.cpairs = [92, 94, 96, 98, 100, 16, 18, 20, 22, 24, 26, 28, 30, 32, 34]
        if curve: self.stamps = True
        self.stamp_after = stamp_after if stamp_after is not None else ({} if curve else {"qred": 1, "pv7": 2, "tail": 3})
        self.lab = 0
        if probe: self.stamps = True; self.fixdur = probe['fix']; self.stamp_after = {probe['step']: 3}
        self.shS, self.shW, self.shG = {0: (18, 15, 12), 1: (18, 12, 15), 2: (15, 12, 17), 3: (12, 14, 17), 4: (15, 17, 12)}[lay]
        if lay and not rot: self.rot = [['w', 0]]
        self.boosts = boosts if boosts is not None else {'softmax': 4, 'wof': 4}
    def A(self, s): self.o.append("    " + s)
    def L(self, s): self.o.append(s + ":")
    def nop(self, n):
        while n > 0:
            k = min(n, 16); self.A(f"s_nop {k-1}"); n -= k
    def label(self, p):
        self.lab += 1; return f"L_{p}_{self.lab}"
    def stamp(self, k):
        if self.stamps: self.A(f"s_memrealtime s[{sST+2*k}:{sST+2*k+1}]")
    def only(self, w, fn):
        sk = self.label("skip")
        self.A(f"s_cmp_lg_u32 {sW}, {w}"); self.A(f"s_cbranch_scc1 {sk}")
        fn()
        self.L(sk)

    def swap_reduce(self, op, v, tmp, which):
        A = self.A
        A(f"v_mov_b32 v{tmp}, v{v}")
        self.nop(2)
        A(f"v_permlane{which}_swap_b32 v{v}, v{tmp}")
        self.nop(1)
        A(f"{op} v{v}, v{v}, v{tmp}")
    def dpp_add(self, v, ctl):
        self.nop(2)
        self.A(f"v_add_f32_dpp v{v}, v{v}, v{v} {ctl} row_mask:0xf bank_mask:0xf")
    def mk(self, r, p, off, size):
        A = self.A
        if off is None:
            A(f"s_mov_b32 s{r}, s{p}"); A(f"s_mov_b32 s{r+1}, s{p+1}")
        else:
            A(f"s_add_u32 s{r}, s{p}, {off}"); A(f"s_addc_u32 s{r+1}, s{p+1}, 0")
        if size is not None: A(f"s_mov_b32 s{r+2}, {size}")
        A(f"s_mov_b32 s{r+3}, 0x20000")

    def kv_load(self, kind, G, t):
        A = self.A
        st = sTK if kind == "K" else sTV
        if self.rot:
            if t == 0: A(f"s_xor_b32 {st}, {sROT}, {(G ^ (self.vx if kind == 'V' else 0)) << self.shG}")
            so = st
        else:
            if t == 0 and G > 0: A(f"s_movk_i32 {st}, {G*4096}")
            so = st if G > 0 else "0"
        if kind == "K":
            A(f"buffer_load_dwordx4 {vr(vK+16*G+4*t,4)}, v{vOK}, {srd(R_K)}, {so} offen offset:{(t>>1)*2048 + (t&1)*128} {self.kv_fl}")
        else:
            dst = vX if G == 0 else vK + 16 * (G - 1)
            A(f"buffer_load_dwordx4 {vr(dst+4*t,4)}, v{vOV}, {srd(R_V)}, {so} offen offset:{256*t} {self.kv_fl}")

    def bsel(self, src, half, bset):
        A = self.A
        t = vTM + 4 + bset
        A(f"v_perm_b32 v{t}, v{src}, v{src}, {sDUP1 if half else sDUP0}")
        for u in range(4): A(f"v_and_b32 v{vBF+4*bset+u}, v{t}, v{vM+u}")

    def phase0(self):
        A = self.A
        A("s_cmp_ge_u32 s2, 256")
        A("s_cbranch_scc1 L_end")
        A("s_load_dwordx16 s[16:31], s[0:1], 0")
        A("s_load_dwordx8 s[32:39], s[0:1], 64")
        A("s_load_dwordx2 s[40:41], s[0:1], 96")
        self.stamp(0)
        if self.fixdur and not self.probe: A("s_memrealtime s[92:93]")
        A("v_lshrrev_b32 v10, 6, v0")
        A(f"v_and_b32 v{vI}, 15, v0")
        A(f"v_readfirstlane_b32 {sW}, v10")
        A(f"v_bfe_u32 v{vG}, v0, 4, 2")
        A(f"s_and_b32 {sT0}, s2, 7")
        A(f"s_lshr_b32 {sT1}, s2, 3")
        A(f"s_and_b32 {sT2}, {sT1}, 3")
        A(f"s_lshl_b32 {sH}, {sT0}, 2")
        A(f"s_add_u32 {sH}, {sH}, {sT2}")
        if self.hx: A(f"s_xor_b32 {sH}, {sH}, {self.hx}")
        A(f"s_lshr_b32 {sJ}, {sT1}, 2")
        A(f"s_and_b32 {sFT}, s2, 31")
        if self.xmap:
            A(f"s_lshl_b32 {sCNT}, {sT0}, 2"); A(f"s_lshr_b32 {sCNT}, {self.xmap}, {sCNT}"); A(f"s_and_b32 {sCNT}, {sCNT}, 15")
            A(f"s_mul_i32 {sTI}, {sT2}, {self.nx}"); A(f"s_add_u32 {sTI}, {sTI}, {sCNT}")
            A(f"s_cmp_eq_u32 {sCNT}, 15"); A(f"s_cselect_b32 {sTI}, 31, {sTI}")
        else:
            A(f"s_mov_b32 {sTI}, {sFT}")
        A(f"s_lshl_b32 {sTK}, {sJ}, 3"); A(f"s_add_u32 {sTK}, {sTK}, {sW}")
        A(f"s_lshl_b32 {sTV}, {sTK}, 4")
        A(f"s_lshl_b32 {sX0}, {sTK}, 16"); A(f"s_lshl_b32 {sTQ}, {sH}, 8"); A(f"s_add_u32 {sX0}, {sX0}, {sTQ}")
        A(f"s_cmp_ge_u32 {sTI}, 11")
        A(f"s_cselect_b32 {sX1}, 11, 0")
        A(f"s_sub_u32 {sX1}, {sTI}, {sX1}")
        A(f"s_lshl_b32 {sX1}, {sX1}, 8")
        A(f"s_mul_i32 {sTK}, {sTK}, {8*2752}")
        A(f"s_add_u32 {sX1}, {sX1}, {sTK}")
        A(f"s_sub_u32 s{R_FT+2}, {512*2752}, {sX1}")
        A(f"s_cmp_lt_u32 {sTI}, {0 if self.x_noffn else 22}")
        A(f"s_cselect_b32 s{R_FT+2}, s{R_FT+2}, 0")
        A(f"s_cselect_b32 {sX1}, {sX1}, 0")
        A(f"s_mov_b32 s{R_FT+3}, 0x20000")
        A(f"s_mov_b32 s{R_X+2}, 2048"); A(f"s_mov_b32 s{R_X+3}, 0x20000")
        A(f"s_mov_b32 s{R_WQ+2}, {0 if self.x_nowq else 7*8192+256}"); A(f"s_mov_b32 s{R_WQ+3}, 0x20000")
        A(f"s_movk_i32 {sTQ}, 8192")
        A(f"v_lshrrev_b32 v{vT0}, 3, v{vI}")
        A(f"v_lshlrev_b32 v{vT0}, 10, v{vT0}")
        A(f"v_lshl_add_u32 v{vT0}, v{vG}, 2, v{vT0}")
        A(f"v_lshlrev_b32 v{vT1}, 4, v{vI}")
        A(f"v_lshl_add_u32 v{vOQ}, v{vG}, 14, v{vT1}")
        A(f"v_mul_u32_u24 v{vOF}, {2*2752}, v{vG}")
        A(f"v_add_u32 v{vOF}, v{vOF}, v{vT1}")
        A(f"s_cmp_ge_u32 {sTI}, 11")
        A("s_waitcnt lgkmcnt(0)")
        A(f"s_cselect_b32 s{R_FT}, s{P_WU}, s{P_WG}"); A(f"s_cselect_b32 s{R_FT+1}, s{P_WU+1}, s{P_WG+1}")
        A(f"s_add_u32 s{R_WQ}, s{P_WQ}, {sX0}"); A(f"s_addc_u32 s{R_WQ+1}, s{P_WQ+1}, 0")
        A(f"buffer_load_dwordx4 {vr(vDF,4)}, v{vOQ}, {srd(R_WQ)}, 0 offen{self.wq_fl}")
        A(f"buffer_load_dwordx4 {vr(vDF+4,4)}, v{vOQ}, {srd(R_WQ)}, {sTQ} offen{self.wq_fl}")
        A(f"s_add_u32 s{R_FT}, s{R_FT}, {sX1}"); A(f"s_addc_u32 s{R_FT+1}, s{R_FT+1}, 0")
        A(f"buffer_load_dwordx4 {vr(vDF+8,4)}, v{vOF}, {srd(R_FT)}, 0 offen{self.ft_fl}")
        A(f"buffer_load_dwordx4 {vr(vDF+12,4)}, v{vOF}, {srd(R_FT)}, 0 offen offset:2752{self.ft_fl}")
        A(f"s_mov_b32 s{R_X}, s{P_X}"); A(f"s_mov_b32 s{R_X+1}, s{P_X+1}")
        A(f"buffer_load_dword v{vXR}, v{vT0}, {srd(R_X)}, {sTV} offen")
        def clear():
            self.mk(R_WS, P_WS, None, WS_BYTES)
            c = vQF
            for k in range(4): A(f"v_mov_b32 v{c+k}, -1")
            A(f"v_and_b32 v{c+4}, 63, v0"); A(f"v_lshlrev_b32 v{c+4}, 4, v{c+4}")
            A(f"s_lshl_b32 {sTD}, {sH}, 3"); A(f"s_add_u32 {sTD}, {sTD}, {sJ}"); A(f"s_lshl_b32 {sTD}, {sTD}, 10")
            A(f"s_add_u32 {sTD}, {sTD}, {WS_Q}")
            (not self.x_noclear) and A(f"buffer_store_dwordx4 {vr(c,4)}, v{c+4}, {srd(R_WS)}, {sTD} offen {self.cl_fl}")
            A(f"s_lshl_b32 {sTD}, {sTI}, 3"); A(f"s_add_u32 {sTD}, {sTD}, {sJ}"); A(f"s_lshl_b32 {sTD}, {sTD}, 10")
            A(f"s_add_u32 {sTD}, {sTD}, {WS_F}")
            (not self.x_noclear) and A(f"buffer_store_dwordx4 {vr(c,4)}, v{c+4}, {srd(R_WS)}, {sTD} offen {self.cl_fl}")
            if not self.two_kernel and not self.x_noy:
                A(f"s_lshl_b32 {sTD}, s2, 11")
                (not self.x_noclear) and A(f"buffer_store_dwordx4 {vr(c,4)}, v{c+4}, {srd(R_WS)}, {sTD} offen {self.cl_fl}")
                (not self.x_noclear) and A(f"buffer_store_dwordx4 {vr(c,4)}, v{c+4}, {srd(R_WS)}, {sTD} offen offset:1024 {self.cl_fl}")
            if self.smb:
                A("s_mov_b64 exec, 0xff") if False else (A("s_mov_b32 exec_lo, 0xff"), A("s_mov_b32 exec_hi, 0"))
                A(f"s_lshl_b32 {sTD}, s2, 7"); A(f"s_add_u32 {sTD}, {sTD}, {WS_MB}")
                A(f"buffer_store_dwordx4 {vr(c,4)}, v{c+4}, {srd(R_WS)}, {sTD} offen {self.cl_fl}")
            else:
                A(f"s_lshr_b32 {sTD}, {sJ}, 2"); A(f"s_lshl_b32 {sTD}, {sTD}, 5"); A(f"s_add_u32 {sTD}, {sTD}, {sH}")
                A(f"s_lshl_b32 {sTD}, {sTD}, 2"); A(f"s_and_b32 {sTF}, {sJ}, 3"); A(f"s_add_u32 {sTD}, {sTD}, {sTF}")
                A(f"s_lshl_b32 {sTD}, {sTD}, 3"); A(f"s_add_u32 {sTD}, {sTD}, {WS_S}")
                A("s_mov_b64 exec, 1")
                A(f"buffer_store_dwordx2 {vr(c,2)}, v{c+4}, {srd(R_WS)}, {sTD} offen {self.cl_fl}")
                A(f"s_lshl_b32 {sTD}, s2, 7"); A(f"s_add_u32 {sTD}, {sTD}, {WS_MB}")
                A(f"buffer_store_dwordx2 {vr(c,2)}, v{c+4}, {srd(R_WS)}, {sTD} offen {self.cl_fl}")
            A("s_mov_b64 exec, -1")
        self.only(self.hs, clear)
        if self.cpf:
            def pf():
                A("s_getpc_b64 s[26:27]")
                self.L("L_pc")
                A(f"s_sub_u32 s26, s26, L_pc-{NAME}_kernel"); A("s_subb_u32 s27, s27, 0")
                if self.cpf == 1:
                    A(f"s_lshl_b32 {sTD}, {sT1}, 9")
                    A(f"v_and_b32 v{vQF+8}, 63, v0"); A(f"v_lshl_add_u32 v{vQF+8}, v{vQF+8}, 3, {sTD}")
                    A(f"global_load_dwordx2 v[{vQF+10}:{vQF+11}], v{vQF+8}, s[26:27]")
                else:
                    A(f"v_and_b32 v{vQF+8}, 63, v0"); A(f"v_lshlrev_b32 v{vQF+8}, 7, v{vQF+8}")
                    A(f"global_load_dword v{vQF+10}, v{vQF+8}, s[26:27]")
                    A(f"v_add_u32 v{vQF+8}, 8192, v{vQF+8}")
                    A(f"global_load_dword v{vQF+10}, v{vQF+8}, s[26:27]")
            self.only(7, pf)
        A(f"v_and_b32 v{vL}, 63, v0")
        A(f"s_lshr_b32 {sB}, {sJ}, 2")
        A(f"s_and_b32 {sS}, {sJ}, 3")
        A(f"s_lshl_b32 {sBH}, {sB}, 5"); A(f"s_add_u32 {sBH}, {sBH}, {sH}")
        A(f"v_and_b32 v{vOK}, 7, v0")
        A(f"v_lshlrev_b32 v{vOK}, 8, v{vOK}")
        A(f"v_lshl_add_u32 v{vOK}, v{vG}, 4, v{vOK}")
        A(f"v_and_b32 v{vOV}, 8, v0")
        A(f"v_lshl_add_u32 v{vOK}, v{vOV}, 3, v{vOK}")
        A(f"v_lshl_add_u32 v{vOV}, v{vG}, 10, v{vT1}")
        A(f"s_lshl_b32 {sTK}, {sBH}, 20")
        A(f"s_lshl_b32 {sTV}, {sS}, {self.shS}"); A(f"s_add_u32 {sTK}, {sTK}, {sTV}")
        A(f"s_lshl_b32 {sTV}, {sW}, {self.shW}"); A(f"s_add_u32 {sTK}, {sTK}, {sTV}")
        self.mk(R_K, P_K, sTK, (7 << self.shG) + 4096)
        if self.rot:
            regs = {"w": sW, "j": sJ, "h": sH, "x": sT0, "q": sT2, "b": sB, "s": sS}
            A(f"s_mov_b32 {sROT}, 0")
            for nm, mul in self.rot:
                A(f"s_mul_i32 {sTV}, {regs[nm]}, {mul}"); A(f"s_add_u32 {sROT}, {sROT}, {sTV}")
            A(f"s_and_b32 {sROT}, {sROT}, 7"); A(f"s_lshl_b32 {sROT}, {sROT}, {self.shG}")
        if self.k0mode == 1:
            lk = self.label("k0e")
            A(f"s_mov_b32 {sX1}, {sTK}")
            A(f"s_cmp_eq_u32 {sW}, {self.hs}"); A(f"s_cbranch_scc1 {lk}")
            for n in range(4 + self.npre): self.kv_load("K", n // 4, n % 4)
            self.L(lk)
            A(f"s_mov_b32 {sTK}, {sX1}")
        self.mk(R_V, P_V, sTK, (7 << self.shG) + 4096)
        self.mk(R_WS, P_WS, None, WS_BYTES)
        self.mk(R_GW, P_GW, None, 1024)
        A(f"s_and_b32 {sT1}, {sT1}, 15")
        per = -(-86 // self.nx) if self.xmap else 11
        A(f"s_mul_i32 {sSL}, {sCNT if self.xmap else sT0}, {per}")
        A(f"s_add_u32 {sSL}, {sSL}, {sT1}")
        A(f"s_cmp_lt_u32 {sT1}, {per}")
        A(f"s_cselect_b32 {sSL}, {sSL}, 1000")
        A(f"s_cmp_lt_u32 {sSL}, 86")
        A(f"s_cselect_b32 s{R_WD+2}, {0 if self.x_noffn else 15*1024+128}, 0")
        A(f"s_cselect_b32 {sSL}, {sSL}, 0")
        A(f"s_lshl_b32 {sT0}, {sSL}, 14"); A(f"s_lshl_b32 {sT1}, {sW}, 7"); A(f"s_add_u32 {sT0}, {sT0}, {sT1}")
        self.mk(R_WD, P_WD, sT0, None)
        A(f"s_lshl_b32 {sT0}, {sH}, 17"); A(f"s_add_u32 {sT0}, {sT0}, {sT1}")
        self.mk(R_WO, P_WO, sT0, 0 if self.x_nowo else 127 * 1024 + 128)
        A(f"v_lshlrev_b32 v{vT1}, 4, v{vL}")
        if self.tlbpf:
            def pf():
                A(f"v_mov_b32 v{vQF+8}, 0")
                A("s_mov_b64 exec, 1")
                A(f"buffer_load_dword v{vQF+9}, v{vQF+8}, {srd(R_V)}, 0 offen nt")
                A(f"buffer_load_dword v{vQF+9}, v{vQF+8}, {srd(R_WO)}, 0 offen nt")
                A(f"buffer_load_dword v{vQF+9}, v{vQF+8}, {srd(R_WD)}, 0 offen nt")
                if self.tlbpf > 1:
                    A(f"buffer_load_dword v{vQF+9}, v{vQF+8}, {srd(R_K)}, 0 offen nt")
                    A(f"global_load_dword v{vQF+9}, v{vQF+8}, s[{P_OUT}:{P_OUT+1}]")
                A("s_mov_b64 exec, -1")
            self.only(6, pf)
        t = vTM + 4
        A(f"v_and_b32 v{t}, 7, v{vL}")
        A(f"v_lshlrev_b32 v{t}, 4, v{t}")
        A(f"v_lshrrev_b32 v{t+1}, 3, v{vL}")
        A(f"v_lshl_add_u32 v{vOD}, v{t+1}, 10, v{t}")
        A(f"v_and_b32 v{t+2}, 3, v{t+1}")
        A(f"v_lshlrev_b32 v{t+2}, 3, v{t+2}")
        A(f"v_lshrrev_b32 v{t+1}, 2, v{t+1}")
        A(f"v_add_u32 v{t+1}, v{t+1}, v{t+2}")
        A(f"v_lshl_add_u32 v{vOW}, v{t+1}, 10, v{t}")
        A(f"s_lshl_b32 {sWOL}, {sW}, 14"); A(f"s_add_u32 {sWOL}, {sWOL}, {L_WO}")
        A(f"s_lshl_b32 {sWDL}, {sW}, 11"); A(f"s_add_u32 {sWDL}, {sWDL}, {L_WD}")
        A(f"v_and_b32 v{t}, 1, v{vI}")
        A(f"v_lshlrev_b32 v{t}, 4, v{t}")
        A(f"v_mov_b32 v{t+1}, 0xffff")
        A(f"v_lshlrev_b32 v{t+1}, v{t}, v{t+1}")
        A(f"v_bfe_u32 v{t}, v{vI}, 1, 2")
        for u in range(4):
            A(f"v_cmp_eq_u32 vcc, {u}, v{t}")
            self.nop(2)
            A(f"v_cndmask_b32 v{vM+u}, 0, v{t+1}, vcc")
        A(f"s_mov_b32 {sDUP0}, 0x01000100"); A(f"s_mov_b32 {sDUP1}, 0x03020302")
        A(f"s_mov_b32 {sC}, {f32(math.log2(math.e) / math.sqrt(128.0))}")
        A(f"s_getreg_b32 {sXCC}, hwreg(HW_REG_XCC_ID)")
        A(f"s_add_u32 {sT0}, {sWOL}, {14*1024}")
        A(f"v_lshl_add_u32 v{vT0}, v{vL}, 4, {sT0}")
        lj = self.label("p0j")
        def hsw():
            A("s_waitcnt vmcnt(0)")
            if self.k0mode == 1:
                for n in range(4 + self.npre): self.kv_load("K", n // 4, n % 4)
        self.only(self.hs, hsw)
        if self.k0mode == 1:
            if (4 + self.npre) % 4: A(f"s_xor_b32 {sTK}, {sROT}, {((4 + self.npre) // 4) << self.shG}")
            A(f"s_waitcnt vmcnt({4 + self.npre})")
        else:
            for t in range(4):
                A(f"s_waitcnt vmcnt({[3,2,2,3][t]})")
                self.kv_load("K", 0, t)
            for n in range(self.npre): self.kv_load("K", 1 + n // 4, n % 4)
        if self.curve and "p0" in self.curve:
            p = self.cpairs[1 + self.curve.index("p0")]; A(f"s_memrealtime s[{p}:{p+1}]")
        self.bsel(vXR, 0, 0); self.bsel(vXR, 1, 1)
        self.nop(1)
        A(f"v_mfma_f32_16x16x32_bf16 {vr(vACC,4)}, {vr(vDF,4)}, {vr(vBF,4)}, 0")
        A(f"v_mfma_f32_16x16x32_bf16 {vr(vAC2,4)}, {vr(vDF+8,4)}, {vr(vBF,4)}, 0")
        A(f"v_mfma_f32_16x16x32_bf16 {vr(vACC,4)}, {vr(vDF+4,4)}, {vr(vBF+4,4)}, {vr(vACC,4)}")
        A(f"v_mfma_f32_16x16x32_bf16 {vr(vAC2,4)}, {vr(vDF+12,4)}, {vr(vBF+4,4)}, {vr(vAC2,4)}")
        self.nop(8)
        A(f"ds_write_b128 v{vT0}, {vr(vACC,4)}")
        A(f"ds_write_b128 v{vT0}, {vr(vAC2,4)} offset:1024")
        A("s_waitcnt lgkmcnt(0)")
        def arrive():
            A(f"s_lshl_b32 {sTF}, {sFT}, 3"); A(f"s_mov_b32 {sARR}, 1")
            A(f"s_atomic_add {sARR}, s[{P_DBG}:{P_DBG+1}], {sTF} glc")
        self.only(self.hs, arrive)
        A("s_barrier")
        if self.curve and "bar" in self.curve:
            p = self.cpairs[1 + self.curve.index("bar")]; A(f"s_memrealtime s[{p}:{p+1}]")
        def publish():
            d = vSP; d2 = vK + 96
            A(f"v_add_u32 v{vT0}, {L_WO + 14*1024}, v{vT1}")
            A(f"v_add_u32 v{vTM}, 0x10000, v{vT0}")
            for w in range(8): A(f"ds_read_b128 {vr(d+4*w,4)}, v{vT0 if w < 4 else vTM} offset:{16384*(w&3)}")
            for w in range(4): A(f"ds_read_b128 {vr(d2+4*w,4)}, v{vT0} offset:{1024+16384*w}")
            A(f"s_lshl_b32 {sT0}, {sH}, 3"); A(f"s_add_u32 {sT0}, {sT0}, {sJ}"); A(f"s_lshl_b32 {sT0}, {sT0}, 10")
            A(f"s_add_u32 {sT0}, {sT0}, {WS_Q}")
            A(f"s_lshl_b32 {sT1}, {sTI}, 3"); A(f"s_add_u32 {sT1}, {sT1}, {sJ}"); A(f"s_lshl_b32 {sT1}, {sT1}, 10")
            A(f"s_add_u32 {sT1}, {sT1}, {WS_F}")
            A("s_waitcnt lgkmcnt(4)")
            for w in range(4, 8): A(f"ds_read_b128 {vr(d2+4*w,4)}, v{vTM} offset:{1024+16384*(w&3)}")
            for w in range(1, 8):
                for r in range(4): A(f"v_add_f32 v{d+r}, v{d+r}, v{d+4*w+r}")
            for r in range(4): A(f"v_min_u32 v{d+r}, -2, v{d+r}")
            A(f"buffer_store_dwordx4 {vr(d,4)}, v{vT1}, {srd(R_WS)}, {sT0} offen {self.pb_fl}")
            A("s_waitcnt lgkmcnt(0)")
            for w in range(1, 8):
                for r in range(4): A(f"v_add_f32 v{d2+r}, v{d2+r}, v{d2+4*w+r}")
            for r in range(4): A(f"v_min_u32 v{d2+r}, -2, v{d2+r}")
            A(f"buffer_store_dwordx4 {vr(d2,4)}, v{vT1}, {srd(R_WS)}, {sT1} offen {self.pb_fl}")
            if self.curve: A(f"s_memrealtime s[{self.cpairs[1]}:{self.cpairs[1]+1}]")
            self.nop(2)
        self.only(self.pub, publish)

    def mb_load(self):
        self.A(f"s_load_dword {sGO}, s[{P_WS}:{P_WS+1}], {sMB} glc")
    def ga_loads(self):
        A = self.A
        self.ga_addr()
        A(f"s_add_u32 {sT1}, {sT0}, 4096")
        for k in range(4):
            A(f"buffer_load_dwordx4 {vr(vSP+4*k,4)}, v{vTM}, {srd(R_WS)}, {sT0 if k < 2 else sT1} offen offset:{(k&1)*2048} sc1")
    def step_hs(self, k, last):
        A = self.A
        def fn():
            end = self.label("hsend"); wait = self.label("hswait")
            if k == 0:
                A(f"s_lshl_b32 {sMB}, s2, 7"); A(f"s_add_u32 {sMB}, {sMB}, {WS_MB}")
                A(f"s_mov_b32 {sST8}, 0")
                A(f"v_lshlrev_b32 v{vQF+4}, 12, v{vL}"); A(f"v_mov_b32 v{vQF+6}, 1")
                A(f"s_lshl_b32 {sT0}, {sFT}, 7"); A(f"s_add_u32 {sT0}, {sT0}, {WS_MB}")
                A("s_waitcnt lgkmcnt(0)")
                if self.curve: A(f"s_memrealtime s[{self.cpairs[2]}:{self.cpairs[2]+1}]")
                A(f"s_and_b32 {sARR}, {sARR}, 7"); A(f"s_cmp_lg_u32 {sARR}, 7"); A(f"s_cbranch_scc1 {wait}")
                A("s_mov_b32 exec_lo, 0xff"); A("s_mov_b32 exec_hi, 0")
                A(f"buffer_store_dword v{vQF+6}, v{vQF+4}, {srd(R_WS)}, {sT0} offen sc1")
                A("s_mov_b64 exec, -1")
                A(f"s_mov_b32 {sGO}, 1")
                A(f"s_branch {end}")
                self.L(wait)
                self.mb_load()
                self.L(end)
                return
            A(f"s_cmp_eq_u32 {sST8}, 1"); A(f"s_cbranch_scc1 {end}")
            A("s_waitcnt lgkmcnt(0)")
            if last:
                sp = self.label("mbspin"); go = self.label("go")
                A(f"s_cmp_eq_u32 {sGO}, 1"); A(f"s_cbranch_scc1 {go}")
                A(f"s_mov_b32 {sCNT}, 0")
                A(f"v_mov_b32 v{vTM}, 0")
                self.L(sp)
                A("s_mov_b64 exec, 1")
                A(f"buffer_load_dword v{vFL}, v{vTM}, {srd(R_WS)}, {sMB} offen sc1")
                A("s_mov_b64 exec, -1")
                A(f"s_add_u32 {sCNT}, {sCNT}, 1")
                A("s_waitcnt vmcnt(0)")
                A(f"v_readfirstlane_b32 {sTF}, v{vFL}")
                A(f"s_cmp_ge_u32 {sCNT}, {SPIN}"); A(f"s_cbranch_scc1 {go}")
                A(f"s_cmp_lg_u32 {sTF}, 1"); A(f"s_cbranch_scc1 {sp}")
                self.L(go)
            else:
                A(f"s_cmp_lg_u32 {sGO}, 1"); A(f"s_cbranch_scc1 {wait}")
            if self.curve: A(f"s_memrealtime s[{self.cpairs[3]}:{self.cpairs[3]+1}]")
            self.ga_loads()
            A(f"s_mov_b32 {sST8}, 1")
            if not last:
                A(f"s_branch {end}")
                self.L(wait)
                self.mb_load()
            self.L(end)
        self.only(self.hs, fn)
    def step_qsvc(self):
        A = self.A
        def fn():
            gs = self.label("gaspin"); ok = self.label("gaok")
            A(f"s_mov_b32 {sCNT}, 0")
            self.L(gs)
            t = vTM + 2
            A(f"v_max3_u32 v{t}, v{vSP}, v{vSP+1}, v{vSP+2}")
            for k in range(3, 15, 2): A(f"v_max3_u32 v{t}, v{t}, v{vSP+k}, v{vSP+k+1}")
            A(f"v_max_u32 v{t}, v{t}, v{vSP+15}")
            A(f"v_cmp_eq_u32 vcc, -1, v{t}")
            A(f"s_cbranch_vccz {ok}")
            self.ga_loads()
            A(f"s_add_u32 {sCNT}, {sCNT}, 1")
            A(f"s_cmp_lt_u32 {sCNT}, {SPIN}")
            A("s_waitcnt vmcnt(0)")
            A(f"s_cbranch_scc1 {gs}")
            self.L(ok)
            if self.curve: A(f"s_memrealtime s[{self.cpairs[4]}:{self.cpairs[4]+1}]")
            self.q_reduce()
        self.only(self.hs, fn)

    def ga_addr(self):
        A = self.A
        t = vTM
        A(f"s_lshl_b32 {sT0}, {sH}, 13"); A(f"s_lshl_b32 {sT1}, {sB}, 7"); A(f"s_add_u32 {sT0}, {sT0}, {sT1}")
        A(f"s_add_u32 {sT0}, {sT0}, {WS_Q}")
        A(f"v_and_b32 v{t}, 7, v{vL}"); A(f"v_lshlrev_b32 v{t}, 4, v{t}")
        A(f"v_bfe_u32 v{t+1}, v{vL}, 3, 2"); A(f"v_lshl_add_u32 v{t}, v{t+1}, 8, v{t}")
        A(f"v_lshrrev_b32 v{t+1}, 5, v{vL}"); A(f"v_lshl_add_u32 v{t}, v{t+1}, 10, v{t}")

    def q_reduce(self):
        A = self.A
        t = vTM
        d = vSP
        for k in range(1, 4):
            for r in range(4): A(f"v_add_f32 v{d+r}, v{d+r}, v{d+4*k+r}")
        A(f"v_and_b32 v{t+1}, 7, v{vL}")
        A(f"v_lshrrev_b32 v{t+2}, 5, v{vL}")
        A(f"v_permlane32_swap_b32 v{d}, v{d+1}"); A(f"v_permlane32_swap_b32 v{d+2}, v{d+3}")
        A(f"v_lshl_add_u32 v{t+1}, v{t+2}, 3, v{t+1}")
        A(f"v_add_f32 v{d}, v{d}, v{d+1}"); A(f"v_add_f32 v{d+2}, v{d+2}, v{d+3}")
        A(f"v_cvt_pk_bf16_f32 v{d}, v{d}, v{d+2}")
        A(f"v_bfe_u32 v{t}, v{vL}, 3, 2")
        A(f"v_lshl_add_u32 v{t}, v{t}, 5, v{t+1}")
        A(f"v_lshlrev_b32 v{t}, 1, v{t}")
        A(f"ds_write_b16 v{t}, v{d} offset:{L_QS}")
        A(f"ds_write_b16_d16_hi v{t}, v{d} offset:{L_QS+32}")

    def items(self):
        A = self.A
        it = []
        def add(name, fn, dep=None): it.append(dict(name=name, fn=fn, dep=dep))
        def grp(kind, G, dep):
            for t in range(4): add(f"{kind}{G}_{t}", lambda t=t: self.kv_load(kind, G, t), dep if t == 0 else None)
        wd = []
        for t in range(2):
            def fn(t=t):
                A(f"s_add_u32 m0, {sWDL}, {t*1024}")
                A(f"s_movk_i32 {sTD}, {t*8192}")
                A(f"buffer_load_dwordx4 v{vOD}, {srd(R_WD)}, {sTD} offen{self.wd_fl} lds")
            wd.append((f"wd{t}", fn, None))
        wo = []
        for t in range(16):
            def fn(t=t):
                A(f"s_add_u32 m0, {sWOL}, {t*1024}")
                A(f"s_mov_b32 {sTD}, {(32*(t>>2) + 2*(t&3))*1024}")
                A(f"buffer_load_dwordx4 v{vOW}, {srd(R_WO)}, {sTD} offen{self.wo_fl} lds")
            wo.append((f"wo{t}", fn, "qred" if t >= 14 else None))
        dma = wo[:4] + wd + wo[4:]
        def put(slot):
            for _ in range(self.wo_sched[slot]):
                n, fn, dep = dma.pop(0); add(n, fn, dep)
        for G in range(8): grp("K", G, None); put(G)
        for G in range(8): grp("V", G, (self.st_after if G == 7 else f"qk{G-1}") if G else None); put(8 + G)
        return it

    def step_gate0(self):
        A = self.A
        def fn():
            A(f"s_lshl_b32 {sT1}, {sB}, 10")
            A(f"buffer_load_dwordx4 {vr(vXR,4)}, v{vT1}, {srd(R_X)}, {sT1} offen")
            A(f"buffer_load_dwordx4 {vr(vXR+4,4)}, v{vT1}, {srd(R_GW)}, 0 offen")
        self.only(self.gsvc, fn)
    def step_gate(self):
        A = self.A
        def fn():
            x, w = vXR, vXR + 4
            t = vTM
            acc = vT0
            A(f"v_mov_b32 v{acc}, 0")
            for k in range(4):
                A(f"v_lshlrev_b32 v{t}, 16, v{x+k}"); A(f"v_lshlrev_b32 v{t+1}, 16, v{w+k}")
                A(f"v_and_b32 v{t+2}, 0xffff0000, v{x+k}"); A(f"v_and_b32 v{t+3}, 0xffff0000, v{w+k}")
                A(f"v_mul_f32 v{t}, v{t}, v{t+1}"); A(f"v_mul_f32 v{t+2}, v{t+2}, v{t+3}")
                A(f"v_cvt_pk_bf16_f32 v{t}, v{t}, v{t+2}")
                A(f"v_lshlrev_b32 v{t+1}, 16, v{t}"); A(f"v_and_b32 v{t}, 0xffff0000, v{t}")
                A(f"v_add_f32 v{acc}, v{acc}, v{t+1}"); A(f"v_add_f32 v{acc}, v{acc}, v{t}")
            for ctl in ("quad_perm:[1,0,3,2]", "quad_perm:[2,3,0,1]", "row_half_mirror", "row_mirror"):
                self.dpp_add(acc, ctl)
            self.swap_reduce("v_add_f32", acc, t, 16)
            self.swap_reduce("v_add_f32", acc, t, 32)
            A(f"v_cvt_pk_bf16_f32 v{acc}, v{acc}, v{acc}")
            A(f"v_and_b32 v{acc}, 0xffff0000, v{acc}")
            A(f"v_mul_f32 v{acc}, {f32(-math.log2(math.e))}, v{acc}")
            A(f"v_exp_f32 v{acc}, v{acc}")
            self.nop(1)
            A(f"v_add_f32 v{acc}, 1.0, v{acc}")
            A(f"v_rcp_f32 v{acc}, v{acc}")
            self.nop(1)
            A(f"v_cvt_pk_bf16_f32 v{acc}, v{acc}, v{acc}")
            A(f"v_and_b32 v{t}, 0xffff0000, v{acc}")
            A(f"v_sub_f32 v{t+1}, 1.0, v{t}")
            A(f"v_cvt_pk_bf16_f32 v{t+1}, v{t+1}, v{t+1}")
            A(f"v_and_b32 v{t+1}, 0xffff0000, v{t+1}")
            A(f"v_mov_b32 v{t+2}, 0")
            A(f"ds_write_b64 v{t+2}, {vr(t,2)} offset:{L_GS}")
        self.only(self.gsvc, fn)

    def fl_load(self):
        A = self.A
        A(f"v_and_b32 v{vT0}, 31, v{vL}"); A(f"v_lshlrev_b32 v{vT0}, 3, v{vT0}")
        A(f"global_load_dword v{vFL}, v{vT0}, s[{P_DBG}:{P_DBG+1}] sc1")
    def step_fl(self):
        A = self.A
        def fn():
            self.fl_load()
            if self.adapt:
                t = vTM
                A(f"v_mov_b32 v{t}, 0"); A(f"v_mov_b32 v{t+1}, 2")
                A(f"s_lshl_b32 {sT0}, s2, 7"); A(f"s_add_u32 {sT0}, {sT0}, {WS_MB + 4}")
                A("s_mov_b64 exec, 1")
                A(f"buffer_store_dword v{t+1}, v{t}, {srd(R_WS)}, {sT0} offen sc1")
                A("s_mov_b64 exec, -1")
                A(f"s_lshr_b32 {sT0}, s2, 3"); A(f"s_and_b32 {sT0}, {sT0}, 3"); A(f"s_lshl_b32 {sT0}, {sT0}, 10")
                A(f"s_add_u32 {sT0}, {sT0}, {WS_MB + 4}")
                A(f"v_and_b32 v{t}, 7, v{vL}"); A(f"v_lshlrev_b32 v{t}, 7, v{t}")
                A(f"v_lshrrev_b32 v{t+1}, 3, v{vL}"); A(f"v_lshl_add_u32 v{t}, v{t+1}, 12, v{t}")
                A(f"buffer_load_dword v{vFG}, v{t}, {srd(R_WS)}, {sT0} offen sc1")
        self.only(self.svc, fn)
    def step_rank(self):
        A = self.A
        def fn():
            t = vTM
            A(f"v_cmp_eq_u32 s[52:53], 2, v{vFG}")
            A(f"v_cmp_gt_u32 vcc, 8, v{vFL}")
            A(f"s_bcnt1_i32_b64 {sT0}, s[52:53]")
            A(f"s_cmp_lg_u64 vcc, 0")
            A(f"s_cselect_b32 {sT0}, 64, {sT0}")
            A(f"v_mov_b32 v{t}, 0"); A(f"v_mov_b32 v{t+1}, {sT0}")
            A(f"ds_write_b32 v{t}, v{t+1} offset:{L_RK}")
        self.only(self.svc, fn)
    def step_fga(self):
        A = self.A
        def fn():
            ok = self.label("flok"); sp = self.label("flspin")
            A(f"v_cmp_gt_u32 vcc, 8, v{vFL}")
            A(f"s_cbranch_vccz {ok}")
            A(f"s_mov_b32 {sCNT}, 0")
            self.L(sp)
            A(f"s_sleep {self.sleep}")
            self.fl_load()
            A(f"s_add_u32 {sCNT}, {sCNT}, 1")
            A(f"s_cmp_ge_u32 {sCNT}, {SPIN}")
            A("s_waitcnt vmcnt(0)")
            A(f"s_cbranch_scc1 {ok}")
            A(f"v_cmp_gt_u32 vcc, 8, v{vFL}")
            A(f"s_cbranch_vccnz {sp}")
            self.L(ok)
            self.fg_load()
        self.only(self.svc, fn)
    def fg_load(self):
        A = self.A
        A(f"s_lshr_b32 {sT0}, {sSL}, 3"); A(f"s_lshl_b32 {sT0}, {sT0}, 13")
        A(f"s_lshl_b32 {sT1}, {sB}, 7"); A(f"s_add_u32 {sT0}, {sT0}, {sT1}")
        A(f"s_bfe_u32 {sT1}, {sSL}, 0x20001"); A(f"s_lshl_b32 {sT1}, {sT1}, 8"); A(f"s_add_u32 {sT0}, {sT0}, {sT1}")
        A(f"s_and_b32 {sT1}, {sSL}, 1"); A(f"s_lshl_b32 {sT1}, {sT1}, 3"); A(f"s_add_u32 {sT0}, {sT0}, {sT1}")
        A(f"s_add_u32 {sT0}, {sT0}, {WS_F}")
        A(f"v_and_b32 v{vT0}, 7, v{vL}"); A(f"v_lshlrev_b32 v{vT0}, 4, v{vT0}")
        A(f"v_lshrrev_b32 v{vTM}, 3, v{vL}"); A(f"v_lshl_add_u32 v{vT0}, v{vTM}, 10, v{vT0}")
        A(f"buffer_load_dwordx2 {vr(vFG,2)}, v{vT0}, {srd(R_WS)}, {sT0} offen sc1")
        A(f"s_add_u32 {sT0}, {sT0}, {11*8192}")
        A(f"buffer_load_dwordx2 {vr(vFG+2,2)}, v{vT0}, {srd(R_WS)}, {sT0} offen sc1")
    def step_ffn2(self):
        A = self.A
        t = vTM
        def fn():
            e = vFG
            ok = self.label("fgok"); sp = self.label("fgspin")
            A(f"s_mov_b32 {sCNT}, 0")
            self.L(sp)
            A(f"v_max3_u32 v{t}, v{e}, v{e+1}, v{e+2}"); A(f"v_max_u32 v{t}, v{t}, v{e+3}")
            A(f"v_cmp_eq_u32 vcc, -1, v{t}")
            A(f"s_cbranch_vccz {ok}")
            self.fg_load()
            A(f"s_add_u32 {sCNT}, {sCNT}, 1")
            A(f"s_cmp_lt_u32 {sCNT}, {SPIN}")
            A("s_waitcnt vmcnt(0)")
            A(f"s_cbranch_scc1 {sp}")
            self.L(ok)
            A(f"v_permlane32_swap_b32 v{e}, v{e+1}"); A(f"v_permlane32_swap_b32 v{e+2}, v{e+3}")
            self.nop(1)
            A(f"v_add_f32 v{e}, v{e}, v{e+1}"); A(f"v_add_f32 v{e+2}, v{e+2}, v{e+3}")
            self.swap_reduce("v_add_f32", e, e + 1, 16)
            self.swap_reduce("v_add_f32", e + 2, e + 3, 16)
            self.dpp_add(e, "row_ror:8"); self.dpp_add(e + 2, "row_ror:8")
            A(f"v_cvt_pk_bf16_f32 v{e}, v{e}, v{e+2}")
            A(f"v_and_b32 v{e+2}, 0xffff0000, v{e}")
            A(f"v_lshlrev_b32 v{e}, 16, v{e}")
            k0 = math.sqrt(2.0 / math.pi)
            A(f"v_mul_f32 v{e+1}, v{e}, v{e}")
            A(f"v_mov_b32 v{e+3}, {f32(-2.0 * k0 * math.log2(math.e))}")
            A(f"v_mul_f32 v{e+1}, {f32(0.044715)}, v{e+1}")
            A(f"v_add_f32 v{e+1}, 1.0, v{e+1}")
            A(f"v_mul_f32 v{e+1}, v{e+1}, v{e}")
            A(f"v_mul_f32 v{e+1}, v{e+1}, v{e+3}")
            A(f"v_exp_f32 v{e+1}, v{e+1}")
            self.nop(1)
            A(f"v_add_f32 v{e+1}, 1.0, v{e+1}")
            A(f"v_rcp_f32 v{e+1}, v{e+1}")
            self.nop(1)
            A(f"v_mul_f32 v{e}, v{e}, v{e+1}")
            A(f"v_cvt_pk_bf16_f32 v{e}, v{e}, v{e}")
            A(f"v_and_b32 v{e}, 0xffff0000, v{e}")
            A(f"v_mul_f32 v{e}, v{e}, v{e+2}")
            A(f"v_cvt_pk_bf16_f32 v{e}, v{e}, v{e}")
            A(f"v_and_b32 v{t+1}, 7, v{vL}"); A(f"v_lshrrev_b32 v{t+2}, 5, v{vL}")
            A(f"v_lshl_add_u32 v{t+1}, v{t+2}, 3, v{t+1}")
            A(f"v_lshlrev_b32 v{t+1}, 1, v{t+1}")
            A(f"ds_write_b16 v{t+1}, v{e} offset:{L_HS}")
            A(f"v_lshlrev_b32 v{t+1}, 3, v{vG}")
            A(f"v_mov_b32 v{t+3}, 0")
            A("s_waitcnt lgkmcnt(0)")
            A(f"ds_read_b64 {vr(e,2)}, v{t+1} offset:{L_HS}")
            A(f"ds_read_b32 v{e+2}, v{t+3} offset:{L_GS+4}")
            A(f"v_lshrrev_b32 v{t}, 2, v{vI}"); A(f"v_and_b32 v{t+1}, 3, v{vI}")
            A(f"v_lshlrev_b32 v{t+1}, 3, v{t+1}")
            A(f"v_lshl_add_u32 v{t+1}, v{t}, 7, v{t+1}")
            A(f"v_lshl_add_u32 v{t+1}, v{vG}, 9, v{t+1}")
            A(f"v_lshlrev_b32 v{t+2}, 2, v{vL}")
            for k in range(1, 4): A(f"v_cmp_eq_u32 {['', 's[52:53]', 's[54:55]', 's[68:69]'][k]}, {k}, v{vG}")
            wfs = [vDF, vK + 32]
            def rd(w):
                for tau in range(4):
                    A(f"ds_read_b64_tr_b16 {vr(wfs[w&1]+2*tau,2)}, v{t+1} offset:{L_WD + w*2048 + tau*32}")
            rd(0)
            for w in range(8):
                if w < 7: rd(w + 1)
                A(f"s_waitcnt lgkmcnt({(4 if w < 7 else 0) + (1 if 0 < w < 7 else 0) if not self.stamps else 0})")
                for tau in range(4):
                    A(f"v_mfma_f32_16x16x16_bf16 {vr(vFD+4*tau,4)}, {vr(e,2)}, {vr(wfs[w&1]+2*tau,2)}, 0")
                self.nop(6)
                A(f"v_cndmask_b32 v{t+4}, v{vFD}, v{vFD+4}, s[52:53]")
                self.nop(1)
                A(f"v_cndmask_b32 v{t+4}, v{t+4}, v{vFD+8}, s[54:55]")
                self.nop(1)
                A(f"v_cndmask_b32 v{t+4}, v{t+4}, v{vFD+12}, s[68:69]")
                A(f"v_mul_f32 v{t+4}, v{t+4}, v{e+2}")
                A(f"ds_write_b32 v{t+2}, v{t+4} offset:{L_YF + w*256}")
        self.only(self.svc, fn)

    def step_qred(self):
        A = self.A
        t = vTM
        A(f"v_and_b32 v{t}, 8, v{vL}")
        A(f"v_lshlrev_b32 v{t}, 3, v{t}")
        A(f"v_lshl_add_u32 v{t}, v{vG}, 4, v{t}")
        A("s_waitcnt lgkmcnt(0)")
        A("s_barrier")
        for T in range(2): A(f"ds_read_b128 {vr(vQF+4*T,4)}, v{t} offset:{L_QS+128*T}")
        A("s_waitcnt lgkmcnt(0)")

    def qk_combine(self, G):
        A = self.A
        a = vSP + 4 * G; b = vQF + 8 + 4 * (G & 1)
        for r in range(4): A(f"v_permlane32_swap_b32 v{a+r}, v{b+r}")
        for r in range(4): A(f"v_add_f32_dpp v{a+r}, v{b+r}, v{a+r} row_ror:8 row_mask:0xf bank_mask:0xf")
    def step_qk(self, G):
        A = self.A
        a = vSP + 4 * G; b = vQF + 8 + 4 * (G & 1); k = vK + 16 * G
        A(f"v_mfma_f32_16x16x32_bf16 {vr(a,4)}, {vr(k,4)}, {vr(vQF,4)}, 0")
        A(f"v_mfma_f32_16x16x32_bf16 {vr(b,4)}, {vr(k+8,4)}, {vr(vQF,4)}, 0")
        A(f"v_mfma_f32_16x16x32_bf16 {vr(a,4)}, {vr(k+4,4)}, {vr(vQF+4,4)}, {vr(a,4)}")
        A(f"v_mfma_f32_16x16x32_bf16 {vr(b,4)}, {vr(k+12,4)}, {vr(vQF+4,4)}, {vr(b,4)}")
        if G > 0:
            self.nop(4)
            self.qk_combine(G - 1)

    def step_softmax(self):
        A = self.A
        t = vTM
        m = vAC2 + 2
        A(f"v_max3_f32 v{m}, v{vSP}, v{vSP+1}, v{vSP+2}")
        for k in range(3, 27, 2): A(f"v_max3_f32 v{m}, v{m}, v{vSP+k}, v{vSP+k+1}")
        self.qk_combine(7)
        A(f"v_max3_f32 v{m}, v{m}, v{vSP+27}, v{vSP+28}")
        A(f"v_max3_f32 v{m}, v{m}, v{vSP+29}, v{vSP+30}")
        A(f"v_max_f32 v{m}, v{m}, v{vSP+31}")
        self.swap_reduce("v_max_f32", m, t, 16)
        self.swap_reduce("v_max_f32", m, t, 32)
        A(f"s_lshl_b32 {sT0}, {sW}, 2")
        A(f"v_mov_b32 v{t+4}, {sT0}")
        A(f"v_mov_b32 v{t+5}, 0")
        A("s_mov_b64 exec, 1")
        A(f"ds_write_b32 v{t+4}, v{m} offset:{L_MX}")
        A("s_mov_b64 exec, -1")
        A("s_waitcnt lgkmcnt(0)")
        A("s_barrier")
        A(f"ds_read_b128 {vr(vBF,4)}, v{t+5} offset:{L_MX}")
        A(f"ds_read_b128 {vr(vBF+4,4)}, v{t+5} offset:{L_MX+16}")
        if self.adapt: A(f"ds_read_b32 v{t+6}, v{t+5} offset:{L_RK}")
        A("s_waitcnt lgkmcnt(0)")
        if self.adapt: A(f"v_readfirstlane_b32 {sDUP0}, v{t+6}")
        A(f"v_max3_f32 v{m}, v{vBF}, v{vBF+1}, v{vBF+2}")
        A(f"v_max3_f32 v{m}, v{m}, v{vBF+3}, v{vBF+4}")
        A(f"v_max3_f32 v{m}, v{m}, v{vBF+5}, v{vBF+6}")
        A(f"v_max_f32 v{m}, v{m}, v{vBF+7}")
        A(f"v_mul_f32 v{m}, {sC}, v{m}")
        l = vT0
        for k in range(32):
            A(f"v_fma_f32 v{vSP+k}, v{vSP+k}, {sC}, -v{m}")
        for k in range(32):
            A(f"v_exp_f32 v{vSP+k}, v{vSP+k}")
        A(f"v_add_f32 v{l}, v{vSP}, v{vSP+1}"); A(f"v_add_f32 v{t}, v{vSP+2}, v{vSP+3}")
        for k in range(4, 32, 2):
            A(f"v_add_f32 v{l}, v{l}, v{vSP+k}"); A(f"v_add_f32 v{t}, v{t}, v{vSP+k+1}")
        A(f"v_add_f32 v{l}, v{l}, v{t}")
        self.swap_reduce("v_add_f32", l, t, 16)
        self.swap_reduce("v_add_f32", l, t, 32)
        A("s_mov_b64 exec, 1")
        A(f"ds_write_b32 v{t+4}, v{l} offset:{L_LS}")
        A("s_mov_b64 exec, -1")
        for k in range(32):
            A(f"v_cvt_pk_bf16_f32 v{vSP+k}, v{vSP+k}, v{vSP+k}")
        A("s_waitcnt lgkmcnt(0)")
        A("s_barrier")
        def fn():
            A(f"ds_read_b128 {vr(vBF,4)}, v{t+5} offset:{L_LS}")
            A(f"ds_read_b128 {vr(vBF+4,4)}, v{t+5} offset:{L_LS+16}")
            if self.smb:
                A(f"s_lshl_b32 {sT0}, s2, 7"); A(f"s_add_u32 {sT0}, {sT0}, {WS_MB + 8}")
            else:
                A(f"s_lshl_b32 {sT0}, {sBH}, 2"); A(f"s_add_u32 {sT0}, {sT0}, {sS}")
                A(f"s_lshl_b32 {sT0}, {sT0}, 3"); A(f"s_add_u32 {sT0}, {sT0}, {WS_S}")
            A("s_waitcnt lgkmcnt(0)")
            for k in range(1, 8): A(f"v_add_f32 v{vBF}, v{vBF}, v{vBF+k}")
            A(f"v_min_u32 v{t+1}, -2, v{vBF}")
            A(f"v_mov_b32 v{t}, v{m}")
            A("s_mov_b64 exec, 1")
            A(f"buffer_store_dwordx2 {vr(t,2)}, v{t+5}, {srd(R_WS)}, {sT0} offen sc1")
            A("s_mov_b64 exec, -1")
        self.only(2, fn)

    def step_pv(self, G):
        A = self.A
        base = vX if G == 0 else vK + 16 * (G - 1)
        def build(k, bset):
            for u in range(4): A(f"v_and_b32 v{vBF+4*bset+u}, v{vSP+(k ^ (self.vx << 2))}, v{vM+u}")
        for r in range(4):
            k = 4 * G + r
            if k == 0: build(0, 0)
            if k + 1 < 32: build(k + 1, (k + 1) & 1)
            else: self.nop(2)
            c = "0" if k == 0 else vr(vACC, 4)
            A(f"v_mfma_f32_16x16x32_bf16 {vr(vACC,4)}, {vr(base+4*r,4)}, {vr(vBF+4*(k&1),4)}, {c}")

    WF = [vQF, vK + 16 * 7, vX, vK]
    def step_wof(self):
        A = self.A
        t = vTM
        A(f"v_lshrrev_b32 v{t}, 2, v{vI}"); A(f"v_and_b32 v{t+1}, 3, v{vI}")
        A(f"v_lshlrev_b32 v{t+1}, 3, v{t+1}")
        A(f"v_lshl_add_u32 v{t+1}, v{t}, 7, v{t+1}")
        A(f"v_lshl_add_u32 v{t+2}, v{vG}, 10, v{t+1}")
        A(f"v_add_u32 v{vOQ}, {sWOL}, v{t+2}")
        for tau in range(4):
            for T in range(4):
                for hi in range(2):
                    A(f"ds_read_b64_tr_b16 {vr(self.WF[tau]+4*T+2*hi,2)}, v{vOQ} offset:{T*4096 + hi*512 + tau*32}")
            if tau < 3: A("s_waitcnt lgkmcnt(4)")
        A(f"v_and_b32 v{t}, 7, v{vI}")
        A(f"s_mul_i32 {sT1}, {sW}, 288"); A(f"s_add_u32 {sT1}, {sT1}, {L_OB}")
        A(f"v_lshl_add_u32 v{vOK}, v{vG}, 6, {sT1}")
        A(f"v_lshl_add_u32 v{vOK}, v{t}, 3, v{vOK}")
        A(f"v_mul_u32_u24 v{vOW}, 288, v{t}")
        A(f"v_lshl_add_u32 v{vOW}, v{vG}, 4, v{vOW}")
        if not self.ybig:
            A(f"v_lshrrev_b32 v{t}, 2, v{vI}")
            A(f"v_lshl_add_u32 v{t}, v{vG}, 2, v{t}")
            A(f"v_lshlrev_b32 v{vOF}, 11, v{t}")
            A(f"s_lshl_b32 {sTF}, {sW}, 15")
            A(f"s_lshl_b32 {sT1}, {sB}, 18"); A(f"s_add_u32 {sTF}, {sTF}, {sT1}")
            A(f"s_lshl_b32 {sT1}, {sH}, 6"); A(f"s_add_u32 {sTF}, {sTF}, {sT1}")
            A(f"s_lshl_b32 {sT1}, {sS}, 4"); A(f"s_add_u32 {sTF}, {sTF}, {sT1}")
            A(f"v_cmp_gt_u32 s[0:1], 2, v{vG}")
            A(f"v_lshlrev_b32 v{vOD}, 4, v{vL}")
            A(f"s_lshl_b32 {sTQ}, s2, 11")
            A(f"v_and_b32 v{t}, 1, v{vG}"); A(f"v_lshrrev_b32 v{t+1}, 1, v{vG}")
            A(f"v_lshl_add_u32 v{t}, v{t}, 1, v{t+1}")
            A(f"s_lshl_b32 {sT1}, s2, 3")
            A(f"v_lshl_add_u32 v{vT1}, v{t}, 1, {sT1}")
        else:
            A(f"v_lshrrev_b32 v{t}, 1, v{vG}"); A(f"v_lshlrev_b32 v{vOF}, 14, v{t}")
            A(f"v_and_b32 v{t}, 31, v{vL}"); A(f"v_lshl_add_u32 v{vOF}, v{t}, 2, v{vOF}")
            A(f"s_lshl_b32 {sTF}, {sW}, 15")
            A(f"s_lshl_b32 {sT1}, {sB}, 18"); A(f"s_add_u32 {sTF}, {sTF}, {sT1}")
            A(f"s_lshl_b32 {sT1}, {sH}, 9"); A(f"s_add_u32 {sTF}, {sTF}, {sT1}")
            A(f"s_lshl_b32 {sT1}, {sS}, 7"); A(f"s_add_u32 {sTF}, {sTF}, {sT1}")
            A(f"v_cmp_gt_u32 s[0:1], 2, v{vG}")
            A(f"v_lshlrev_b32 v{vOD}, 4, v{vL}")
            A(f"s_lshr_b32 {sX1}, s2, 3")
            A(f"s_lshl_b32 {sTQ}, {sX1}, 14"); A(f"s_lshl_b32 {sT1}, {sW}, 11"); A(f"s_add_u32 {sTQ}, {sTQ}, {sT1}")
            A(f"s_lshl_b32 {sT1}, {sX1}, 6")
            A(f"v_lshl_add_u32 v{vT1}, v{vL}, 1, {sT1}")
        A("s_waitcnt lgkmcnt(0)")
        A(f"v_mov_b32 v{vOQ}, 0")
        A(f"s_lshl_b32 {sT1}, {sW}, 8")
        A(f"v_lshl_add_u32 v{vAC2}, v{vL}, 2, {sT1}")

    def st_load(self):
        A = self.A
        if self.smb:
            A(f"s_lshl_b32 {sT0}, {sB}, 7"); A(f"s_add_u32 {sT0}, {sT0}, {sFT}"); A(f"s_lshl_b32 {sT0}, {sT0}, 7")
            A(f"s_add_u32 {sT0}, {sT0}, {WS_MB + 8}")
            A(f"v_mov_b32 v{vT0}, 0")
            for k in range(4):
                if k: A(f"s_add_u32 {sT0}, {sT0}, 4096")
                A(f"buffer_load_dwordx2 {vr(vXR+2*k,2)}, v{vT0}, {srd(R_WS)}, {sT0} offen sc1")
            return
        A(f"s_lshl_b32 {sT0}, {sBH}, 5"); A(f"s_add_u32 {sT0}, {sT0}, {WS_S}")
        A(f"v_mov_b32 v{vT0}, 0")
        for k in range(2):
            A(f"buffer_load_dwordx4 {vr(vXR+4*k,4)}, v{vT0}, {srd(R_WS)}, {sT0} offen offset:{16*k} sc1")
    def step_st0(self):
        self.only(self.svc, self.st_load)
    def step_scale(self):
        A = self.A
        t = vTM
        s = vXR
        def fn():
            ok = self.label("stok"); sp = self.label("stspin")
            A(f"v_mov_b32 v{t+3}, 0")
            A(f"ds_read_b32 v{t+2}, v{t+3} offset:{L_GS}")
            A(f"s_mov_b32 {sCNT}, 0")
            A(f"v_max3_u32 v{t}, v{s+1}, v{s+3}, v{s+5}")
            A(f"v_max_u32 v{t}, v{t}, v{s+7}")
            A(f"v_cmp_eq_u32 vcc, -1, v{t}")
            A(f"s_cbranch_vccz {ok}")
            self.L(sp)
            self.st_load()
            A(f"s_add_u32 {sCNT}, {sCNT}, 1")
            A(f"s_cmp_ge_u32 {sCNT}, {SPIN}")
            A("s_waitcnt vmcnt(0)")
            A(f"s_cbranch_scc1 {ok}")
            A(f"v_max3_u32 v{t}, v{s+1}, v{s+3}, v{s+5}")
            A(f"v_max_u32 v{t}, v{t}, v{s+7}")
            A(f"v_cmp_eq_u32 vcc, -1, v{t}")
            A(f"s_cbranch_vccnz {sp}")
            self.L(ok)
            A(f"v_max3_f32 v{t}, v{s}, v{s+2}, v{s+4}")
            A(f"v_max_f32 v{t}, v{t}, v{s+6}")
            for k in range(4): A(f"v_sub_f32 v{s+2*k}, v{s+2*k}, v{t}")
            A(f"v_sub_f32 v{t+1}, v{vAC2+2}, v{t}")
            for k in range(4): A(f"v_exp_f32 v{s+2*k}, v{s+2*k}")
            A(f"v_exp_f32 v{t+1}, v{t+1}")
            A(f"v_mul_f32 v{t}, v{s}, v{s+1}")
            for k in range(1, 4): A(f"v_fmac_f32 v{t}, v{s+2*k}, v{s+2*k+1}")
            A(f"v_rcp_f32 v{t}, v{t}")
            A("s_waitcnt lgkmcnt(0)")
            A(f"v_mul_f32 v{t+1}, v{t+2}, v{t+1}")
            A(f"v_mul_f32 v{t}, v{t}, v{t+1}")
            A(f"ds_write_b32 v{t+3}, v{t} offset:{L_FS}")
        self.only(self.svc, fn)

    def step_tail(self):
        A = self.A
        t = vTM
        A("s_mov_b32 exec_lo, 0x00ff00ff"); A("s_mov_b32 exec_hi, 0x00ff00ff")
        self.nop(6)
        A(f"v_cvt_pk_bf16_f32 v{t}, v{vACC}, v{vACC+1}")
        A(f"v_cvt_pk_bf16_f32 v{t+1}, v{vACC+2}, v{vACC+3}")
        A(f"ds_write_b64 v{vOK}, {vr(t,2)}")
        A("s_mov_b64 exec, -1")
        if self.dry:
            A(f"s_cmp_lt_u32 {sW}, 4"); A(f"s_cselect_b32 {sDUP1}, 1, 0"); A("s_cbranch_scc1 L_post")
            self.L("L_bar")
        A("s_waitcnt lgkmcnt(0)")
        A("s_barrier")
        if self.dry: self.L("L_post")
        af = vSP
        for T in range(4): A(f"ds_read_b128 {vr(af+4*T,4)}, v{vOW} offset:{L_OB + 64*T}")
        A(f"ds_read_b32 v{t+4}, v{vOQ} offset:{L_FS}")
        A(f"ds_read_b32 v{vAC2+3}, v{vAC2} offset:{L_YF}")
        for T in range(4):
            A(f"s_waitcnt lgkmcnt({5-T})" if not self.stamps else "s_waitcnt lgkmcnt(0)")
            for tau in range(4):
                c = vr(vDF+4*tau,4) if T else "0"
                A(f"v_mfma_f32_16x16x32_bf16 {vr(vDF+4*tau,4)}, {vr(af+4*T,4)}, {vr(self.WF[tau]+4*T,4)}, {c}")
        A("s_waitcnt lgkmcnt(0)")
        self.nop(4)
        for tau in range(4):
            d = vDF + 4 * tau
            A(f"v_add_f32 v{d}, v{d}, v{d+1}"); A(f"v_add_f32 v{d+2}, v{d+2}, v{d+3}")
            A(f"v_add_f32 v{d}, v{d}, v{d+2}")
        self.nop(1)
        A(f"v_permlane16_swap_b32 v{vDF}, v{vDF+4}")
        A(f"v_permlane16_swap_b32 v{vDF+8}, v{vDF+12}")
        self.nop(1)
        A(f"v_add_f32 v{vDF}, v{vDF}, v{vDF+4}")
        A(f"v_add_f32 v{vDF+8}, v{vDF+8}, v{vDF+12}")
        A(f"v_cndmask_b32 v{t}, v{vDF+8}, v{vDF}, s[0:1]")
        A(f"v_fma_f32 v{t}, v{t}, v{t+4}, v{vAC2+3}")
        A(f"v_min_u32 v{t}, -2, v{t}")
        self.nop(2)
        for k in range(1, 4):
            A(f"v_mov_b32_dpp v{t+k}, v{t} quad_perm:[{k},{k},{k},{k}] row_mask:0xf bank_mask:0xf")
        if self.dry:
            A(f"s_cmp_eq_u32 {sDUP1}, 1"); A(f"s_mov_b32 {sDUP1}, 0"); A("s_cbranch_scc1 L_bar")
        A("s_mov_b32 exec_lo, 0x11111111"); A("s_mov_b32 exec_hi, 0x11111111")
        A(f"buffer_store_dwordx4 {vr(t,4)}, v{vOF}, {srd(R_WS)}, {sTF} offen{'' if self.two_kernel else ' ' + self.ys_fl}")
        A("s_mov_b64 exec, -1")

    def consumer(self, poll=True):
        A = self.A
        y = vSP
        t = vTM + 4
        sp = self.label("yspin"); ok = self.label("yok"); fast = self.label("yfast")
        fl = " " + self.yflags if poll else ""
        if not poll or self.cons == 0:
            A(f"s_mov_b32 {sCNT}, 0")
            self.L(sp)
            A(f"buffer_load_dwordx4 {vr(y,4)}, v{vOD}, {srd(R_WS)}, {sTQ} offen{fl}")
            A(f"buffer_load_dwordx4 {vr(y+4,4)}, v{vOD}, {srd(R_WS)}, {sTQ} offen offset:1024{fl}")
            if poll:
                A(f"s_add_u32 {sCNT}, {sCNT}, 1")
                A(f"s_cmp_ge_u32 {sCNT}, {SPIN}")
                A("s_waitcnt vmcnt(0)")
                A(f"s_cbranch_scc1 {ok}")
                A(f"v_max3_u32 v{t}, v{y}, v{y+1}, v{y+2}")
                A(f"v_max3_u32 v{t+1}, v{y+3}, v{y+4}, v{y+5}")
                A(f"v_max3_u32 v{t}, v{t}, v{y+6}, v{y+7}")
                A(f"v_max_u32 v{t}, v{t}, v{t+1}")
                A(f"v_cmp_eq_u32 vcc, -1, v{t}")
                A(f"s_cbranch_vccnz {sp}")
                self.L(ok)
            else:
                A("s_waitcnt vmcnt(0)")
        else:
            mA, mB = "s[52:53]", "s[54:55]"
            D = self.cons
            def masks():
                A(f"v_max3_u32 v{t}, v{y}, v{y+1}, v{y+2}")
                A(f"v_max3_u32 v{t+1}, v{y+4}, v{y+5}, v{y+6}")
                A(f"v_max_u32 v{t}, v{t}, v{y+3}")
                A(f"v_max_u32 v{t+1}, v{t+1}, v{y+7}")
                A(f"v_cmp_eq_u32 {mA}, -1, v{t}")
                A(f"v_cmp_eq_u32 {mB}, -1, v{t+1}")
            def loads():
                la = self.label("ya"); lb = self.label("yb")
                A(f"s_mov_b64 exec, {mA}")
                A(f"s_cbranch_execz {la}")
                A(f"buffer_load_dwordx4 {vr(y,4)}, v{vOD}, {srd(R_WS)}, {sTQ} offen{fl}")
                self.L(la)
                A(f"s_mov_b64 exec, {mB}")
                A(f"s_cbranch_execz {lb}")
                A(f"buffer_load_dwordx4 {vr(y+4,4)}, v{vOD}, {srd(R_WS)}, {sTQ} offen offset:1024{fl}")
                self.L(lb)
                A("s_mov_b64 exec, -1")
            A(f"s_mov_b64 {mA}, -1"); A(f"s_mov_b64 {mB}, -1")
            A(f"s_mov_b32 {sCNT}, 0")
            self.L(sp)
            loads()
            A(f"s_add_u32 {sCNT}, {sCNT}, 1")
            A("s_waitcnt vmcnt(0)")
            masks()
            A(f"s_cmp_ge_u32 {sCNT}, {SPIN}"); A(f"s_cbranch_scc1 {ok}")
            A(f"s_bcnt1_i32_b64 {sT0}, {mA}"); A(f"s_bcnt1_i32_b64 {sT1}, {mB}")
            A(f"s_add_u32 {sT0}, {sT0}, {sT1}")
            if self.csleep:
                A(f"s_cmp_le_u32 {sT0}, {self.cthr}"); A(f"s_cbranch_scc1 {fast}")
                A(f"s_sleep {self.csleep}")
                A(f"s_branch {sp}")
            else:
                A(f"s_cmp_gt_u32 {sT0}, {self.cthr}"); A(f"s_cbranch_scc1 {sp}")
            self.L(fast)
            A(f"s_or_b64 vcc, {mA}, {mB}")
            A(f"s_cbranch_vccz {ok}")
            loads()
            A(f"s_add_u32 {sCNT}, {sCNT}, 1")
            A(f"s_waitcnt vmcnt({D})")
            masks()
            A(f"s_cmp_lt_u32 {sCNT}, {SPIN}"); A(f"s_cbranch_scc1 {fast}")
            self.L(ok)
        if self.hopst: self.stamp(1)
        for k in range(4): A(f"v_add_f32 v{y+8+k}, v{y+k}, v{y+4+k}")
        y = y + 8
        self.nop(1)
        A(f"v_permlane32_swap_b32 v{y}, v{y+1}"); A(f"v_permlane32_swap_b32 v{y+2}, v{y+3}")
        self.nop(1)
        A(f"v_add_f32 v{y}, v{y}, v{y+1}"); A(f"v_add_f32 v{y+2}, v{y+2}, v{y+3}")
        self.nop(2)
        A(f"v_permlane16_swap_b32 v{y}, v{y+2}")
        self.nop(1)
        A(f"v_add_f32 v{y}, v{y}, v{y+2}")
        if self.ybig and poll:
            self.dpp_add(y, "row_ror:8")
            A(f"ds_write_b32 v{vOK}, v{y}")
            A("s_waitcnt lgkmcnt(0)")
            A("s_barrier")
            if self.hopst: self.stamp(2)
            A(f"s_cmp_lg_u32 {sW}, 0"); A("s_cbranch_scc1 L_end")
            for w in range(8): A(f"ds_read_b32 v{y+w}, v{vOW} offset:{L_YF + 128*w}")
            A("s_waitcnt lgkmcnt(4)")
            A(f"v_add_f32 v{y}, v{y}, v{y+1}"); A(f"v_add_f32 v{y+2}, v{y+2}, v{y+3}")
            A("s_waitcnt lgkmcnt(0)")
            A(f"v_add_f32 v{y+4}, v{y+4}, v{y+5}"); A(f"v_add_f32 v{y+6}, v{y+6}, v{y+7}")
            A(f"v_add_f32 v{y}, v{y}, v{y+2}"); A(f"v_add_f32 v{y+4}, v{y+4}, v{y+6}")
            A(f"v_add_f32 v{y}, v{y}, v{y+4}")
            A(f"v_cvt_pk_bf16_f32 v{y}, v{y}, v{y}")
            A("s_mov_b32 exec_hi, 0")
        else:
            for ctl in ("quad_perm:[1,0,3,2]", "quad_perm:[2,3,0,1]", "row_half_mirror", "row_mirror"):
                self.dpp_add(y, ctl)
            A(f"v_cvt_pk_bf16_f32 v{y}, v{y}, v{y}")
            A("s_mov_b32 exec_lo, 0x00010001"); A("s_mov_b32 exec_hi, 0x00010001")
        A(f"global_store_short v{vT1}, v{y}, s[{P_OUT}:{P_OUT+1}]{self.oflags}")

    def steps(self, idx):
        S = []
        def add(name, needs, fn): S.append(dict(name=name, needs=needs, fn=fn))
        add("gate0", [], self.step_gate0)
        pts = list(self.hs_pts)
        evs = [(idx[p], f"hs{k}", [p], (lambda k=k: self.step_hs(k, k == len(pts) - 1))) for k, p in enumerate(pts)]
        evs.append((idx["K1_0"] + 0.5, "gate", ["@gate0"], self.step_gate))
        if self.curve:
            for G in range(1, 5):
                if f"w{G}" in self.curve: evs.append((idx[f"K{G}_3"] + 0.1, f"w{G}", [f"K{G}_3"], lambda: None))
        for _, n, nd, fn in sorted(evs, key=lambda e: e[0]): add(n, nd, fn)
        add("join", [f"@hs{len(pts)-1}", self.q_at], self.step_qsvc)
        add("qred", [], self.step_qred)
        if self.adapt: add("fl", [], self.step_fl)
        for G in range(8): add(f"qk{G}", [f"K{G}_3"], lambda G=G: self.step_qk(G))
        if self.adapt: add("rank", ["@fl"], self.step_rank)
        else: add("fl", [], self.step_fl)
        add("softmax", ["wd1"], self.step_softmax)
        lastdma = idx["wo15"]
        placed = False
        for G in range(8):
            if G == 7: add("scale", ["@st0"], self.step_scale)
            if not placed and G >= 2 and idx[f"V{G}_3"] > lastdma:
                add("wof", ["wo15"], self.step_wof); placed = True
            add(f"pv{G}", [f"V{G}_3"], lambda G=G: self.step_pv(G))
            if f"pv{G}" == self.fga_pos: add("fga", ["@fl"], self.step_fga)
            if f"pv{G}" == self.st_pos: add("st0", [], self.step_st0)
            if f"pv{G}" == self.ffn_pos: add("ffn2", ["@fga"], self.step_ffn2)
        assert placed
        add("tail", [], self.step_tail)
        return S

    def schedule(self, W, W2):
        self.st_pos = self.st_after; self.st_after = "st0"
        items = self.items()
        self.st_after = self.st_pos
        idx = {it["name"]: n for n, it in enumerate(items)}
        steps = self.steps(idx)
        issued = 4 + self.npre
        assert all(it['name'][0] == 'K' for it in items[:issued])
        comp = -1; done = set(); pos = -1; after = {}
        def run(steps):
            nonlocal issued, comp, pos, W
            for st in steps:
                need = max([after[n[1:]] if n[0] == "@" else idx[n] for n in st["needs"]], default=-1)
                pos = max(pos, need)
                def issue(w, la):
                    nonlocal issued, comp
                    while issued < len(items):
                        it = items[issued]
                        if issued > pos + la - 1: break
                        if it["dep"] and it["dep"] not in done:
                            assert issued > need, (st["name"], it["name"])
                            break
                        if issued - (comp + 1) >= w:
                            self.A(f"s_waitcnt vmcnt({w-1})"); comp = issued - w
                        it["fn"](); issued += 1
                if st['name'] != 'qred': issue(W, W)
                if comp < need:
                    self.A(f"s_waitcnt vmcnt({issued-1-need})"); comp = need
                if st["name"] == "join":
                    issue(W + self.boost, W + self.boost)
                    W = W2
                if st["name"] in self.boosts: issue(W + self.boosts[st["name"]], W + self.boosts[st["name"]])
                self.o.append(f"    ; ---- {st['name']}")
                if not any(st["name"].startswith(p) for p in self.x_skip): st["fn"]()
                done.add(st["name"])
                after[st["name"]] = issued
                if st["name"] in self.stamp_after: self.stamp(self.stamp_after[st["name"]])
                if self.curve and st["name"] in self.curve:
                    p = self.cpairs[1 + self.curve.index(st["name"])]; self.A(f"s_memrealtime s[{p}:{p+1}]")
        names = [s["name"] for s in steps]
        k1 = names.index("softmax") + 1; k2 = names.index("tail")
        if not self.adapt:
            run(steps)
        else:
            run(steps[:k1])
            save = (issued, comp, pos, set(done), dict(after))
            lend = self.label("vend")
            for n, (thr, w) in enumerate(self.adapt):
                nxt = self.label("vnext")
                last = n == len(self.adapt) - 1
                if not last:
                    self.A(f"s_cmp_ge_u32 {sDUP0}, {thr}"); self.A(f"s_cbranch_scc1 {nxt}")
                issued, comp, pos = save[:3]; done.clear(); done.update(save[3]); after.clear(); after.update(save[4])
                W = w
                run(steps[k1:k2])
                if not last:
                    self.A(f"s_branch {lend}"); self.L(nxt)
            self.L(lend)
            run(steps[k2:])
        assert issued == len(items)

    def kd(self, name, vg, sg):
        return [f".amdhsa_kernel {name}", f"  .amdhsa_next_free_vgpr {vg}", f"  .amdhsa_next_free_sgpr {sg}",
                f"  .amdhsa_accum_offset {vg}", "  .amdhsa_group_segment_fixed_size 0", "  .amdhsa_kernarg_size 104",
                "  .amdhsa_user_sgpr_count 2", "  .amdhsa_user_sgpr_kernarg_segment_ptr 1",
                "  .amdhsa_system_sgpr_workgroup_id_x 1", ".end_amdhsa_kernel"]

    def build(self):
        A = self.A
        K1 = NAME + "_kernel"; K2 = "gated_mix_reduce_kernel"
        o = self.o
        o.append(HEADER.rstrip("\n"))
        if self.two_kernel:
            o.append(f"; @launch kernel={K1} grid=(256,1,1) block=(512,1,1) lds={LDS_BYTES}")
            o.append(f"; @launch kernel={K2} grid=(256,1,1) block=(64,1,1) lds=0")
        else:
            o.append(f"; @launch grid=(256,1,1) block=(512,1,1) lds={LDS_BYTES}")
        o += ['.amdgcn_target "amdgcn-amd-amdhsa--gfx950"', ".text", f".globl {K1}", ".p2align 8",
              f".type {K1},@function", f"{K1}:"]
        self.phase0()
        if self.W_even is not None:
            A(f"s_and_b32 {sT0}, {sXCC}, 1"); A("s_cbranch_scc1 L_odd")
            self.schedule(self.W_even, self.W2_even)
            A("s_branch L_join")
            self.L("L_odd")
            self.schedule(self.W, self.W2)
            self.L("L_join")
        else:
            self.schedule(self.W, self.W2)
        if self.curve:
            A("s_waitcnt lgkmcnt(0)")
            A(f"s_add_u32 s0, s40, {STAMP_OFF + 65536}"); A("s_addc_u32 s1, s41, 0")
            A(f"s_lshl_b32 s8, s2, 3"); A(f"s_add_u32 s8, s8, {sW}"); A("s_lshl_b32 s8, s8, 6")
            A("v_mov_b32 v112, s8")
            for k in range(16): A(f"v_mov_b32 v{116+k}, s{self.cpairs[k] if k < 15 else 90}")
            A("s_mov_b64 exec, 1")
            for k in range(4): A(f"global_store_dwordx4 v112, v[{116+4*k}:{119+4*k}], s[0:1] offset:{16*k}")
            A("s_mov_b64 exec, -1")
        if self.ybig:
            lc = "L_stamp" if self.stamps else "L_end"
            A(f"s_xor_b32 {sT0}, {sX1}, s2"); A(f"s_and_b32 {sT0}, {sT0}, 7"); A(f"s_cbranch_scc1 {lc}")
            t = vTM
            A(f"v_and_b32 v{t}, 1, v{vG}"); A(f"v_lshrrev_b32 v{t+1}, 1, v{vG}")
            A(f"v_lshl_add_u32 v{t}, v{t}, 1, v{t+1}")
            A(f"v_and_b32 v{t+1}, 7, v{vL}"); A(f"v_lshl_add_u32 v{t}, v{t+1}, 2, v{t}")
            A(f"s_lshl_b32 {sT1}, {sW}, 7"); A(f"s_add_u32 {sT1}, {sT1}, {L_YF}")
            A(f"v_lshl_add_u32 v{vOK}, v{t}, 2, {sT1}")
            A(f"v_and_b32 v{t}, 31, v{vL}"); A(f"v_lshlrev_b32 v{vOW}, 2, v{t}")
            A("s_barrier")
            self.consumer()
            if self.stamps:
                self.L("L_stamp")
                A(f"s_cmp_lg_u32 {sW}, 0"); A("s_cbranch_scc1 L_end")
        else:
            A(f"s_cmp_lg_u32 {sW}, 0"); A("s_cbranch_scc1 L_end")
        if not self.two_kernel and not self.ybig:
            self.consumer()
        if self.fixdur:
            A(f"s_mov_b32 s96, {self.fixdur}")
            if self.probe:
                if self.probe.get("wg") is not None:
                    A(f"s_cmp_lg_u32 s2, {self.probe['wg']}"); A("s_cbranch_scc1 L_end")
                A("s_waitcnt lgkmcnt(0)")
                A("s_sub_u32 s97, s98, s92"); A(f"s_mul_i32 s97, s97, {self.probe['m']}"); A("s_add_u32 s96, s96, s97")
            self.L("L_fix")
            A("s_memrealtime s[94:95]")
            A("s_waitcnt lgkmcnt(0)")
            A("s_sub_u32 s94, s94, s92")
            A(f"s_cmp_lt_u32 s94, s96")
            A("s_cbranch_scc1 L_fix")
        elif self.stamps and not self.curve:
            self.stamp(4)
            A("s_mov_b64 exec, 1")
            A("s_waitcnt lgkmcnt(0)")
            A(f"s_add_u32 s40, s40, {STAMP_OFF}"); A("s_addc_u32 s41, s41, 0")
            A("s_lshl_b32 s8, s2, 6"); A("v_mov_b32 v1, s8")
            for k in range(4):
                A(f"v_mov_b32 v{8+2*k}, s{sST+2*k}"); A(f"v_mov_b32 v{9+2*k}, s{sST+2*k+1}")
            A(f"v_mov_b32 v16, {sXCC}"); A("v_mov_b32 v17, 0")
            A(f"v_mov_b32 v18, s{sST+8}"); A(f"v_mov_b32 v19, s{sST+9}")
            A("global_store_dwordx4 v1, v[8:11], s[40:41]")
            A("global_store_dwordx4 v1, v[12:15], s[40:41] offset:16")
            A("global_store_dwordx4 v1, v[16:19], s[40:41] offset:32")
        self.L("L_end"); A("s_endpgm")
        if self.cpf: o.append(f".fill (16384 - (. - {K1})) / 4, 4, 0xbf810000")
        if self.two_kernel:
            o += [f".globl {K2}", ".p2align 8", f".type {K2},@function", f"{K2}:"]
            A("s_cmp_ge_u32 s2, 256"); A("s_cbranch_scc1 L_end2")
            A(f"s_load_dwordx2 s[{P_OUT}:{P_OUT+1}], s[0:1], 80")
            A(f"s_load_dwordx2 s[{P_WS}:{P_WS+1}], s[0:1], 96")
            t = vTM
            A(f"v_bfe_u32 v{vG}, v0, 4, 2")
            A(f"v_lshlrev_b32 v{vOD}, 4, v0")
            A(f"s_lshl_b32 {sTQ}, s2, 11")
            A(f"v_and_b32 v{t}, 1, v{vG}"); A(f"v_lshrrev_b32 v{t+1}, 1, v{vG}")
            A(f"v_lshl_add_u32 v{t}, v{t}, 1, v{t+1}")
            A(f"s_lshl_b32 {sT1}, s2, 3")
            A(f"v_lshl_add_u32 v{vT1}, v{t}, 1, {sT1}")
            A("s_waitcnt lgkmcnt(0)")
            self.mk(R_WS, P_WS, None, WS_BYTES)
            self.consumer(poll=False)
            self.L("L_end2"); A("s_endpgm")
        o += ['.section .rodata,"a"', ".p2align 6"] + self.kd(K1, 256, 102)
        if self.two_kernel:
            o += [".p2align 6"] + self.kd(K2, 112, 102)
        return "\n".join(o) + "\n"

if __name__ == "__main__":
    import argparse, json
    ap = argparse.ArgumentParser()
    ap.add_argument("out"); ap.add_argument("--opt", default="{}")
    a = ap.parse_args()
    open(a.out, "w").write(Gen(**json.loads(a.opt)).build())
```

```python
import sys, struct, math

NAME = "gated_mix__mha_block_cached__geglu_ffn__decode"
HEADER = open("cdna_kernels/" + NAME + ".s.ref").read().split("; Override launch")[0]

def f32(x):
    return "0x%08x" % struct.unpack("<I", struct.pack("<f", x))[0]

L_QS = 0
L_HS = 256
L_GS = 320
L_FS = 336
L_MX = 384
L_LS = 448
L_OB = 512
L_YF = 3072
L_WD = 5120
L_WO = L_WD + 16384
LDS_BYTES = L_WO + 131072

WS_Y = 0
WS_MB = 0x81000
WS_Q = 0x89000
WS_F = WS_Q + 0x40000
WS_BYTES = WS_F + 176 * 1024
STAMP_OFF = 128 << 20
SPIN = "0x4000"

sW = "s3"
P_X, P_K, P_V, P_WQ, P_WO, P_WG, P_WU = 16, 18, 20, 22, 24, 28, 30
P_WD, P_GW, P_OUT, P_DBG, P_WS = 32, 34, 36, 38, 40
R_K, R_V, R_WQ, R_WO, R_X, R_GW, R_FT, R_WD, R_WS = 44, 48, 52, 56, 60, 64, 68, 76, 80
sH, sB, sS, sSL, sT0, sT1, sT2 = "s4", "s5", "s6", "s7", "s8", "s9", "s10"
sTK, sTV, sTQ, sTF, sTD = "s11", "s12", "s13", "s14", "s15"
sX0, sX1 = "s42", "s43"
sARR, sMB = "s42", "s43"
sJ, sFT, sROT, sTI = "s72", "s73", "s74", "s75"
sWOL, sWDL = "s84", "s85"
sDUP0, sDUP1 = "s86", "s87"
sGO, sDONE = "s86", "s87"
sC, sCNT, sXCC, sBH = "s88", "s89", "s90", "s91"
sST = 92
def srd(r): return f"s[{r}:{r+3}]"

vL, vI, vG = 1, 2, 3
vOK, vOV, vOQ, vOW, vOF, vOD, vT0, vT1 = 4, 5, 6, 7, 8, 9, 10, 11
vM = 12
vXR = 16
vBF = 24
vACC = 32
vAC2 = 36
vQF = 40
vSP = 56
vDF = 88
vTM = 104
vFL = 111
vK = 112
vX = 240
vFG = vDF + 8
vFD = vK + 16
vCW, vCR = vK + 48, vK + 49
def vr(a, n): return f"v[{a}:{a+n-1}]"

HS, PUB, GSV, SVC = 0, 1, 2, 3

class Gen:
    def __init__(self, W=10, W2=12, boost_q=4, boosts=None, npre=4, q_at="K5_3", hs_pts=("K0_1", "K2_3", "K3_1", "K3_3"),
                 dma=(0, 0, 1, 1, 2, 1, 2, 1, 2, 1, 2, 1, 2, 2, 0, 0), xmap="0xf5f43210", nx=6,
                 fga_pos="pv1", st_pos="pv3", ffn_pos="pv3", depth=4, cthr=24, stamps=False, gperm=(0,1,2,3,4,5,6,7), rotmul=1):
        self.__dict__.update(locals())
        self.boosts = boosts if boosts is not None else {"softmax": 6, "wof": 4}
        assert sum(dma) == 18
        self.o = []; self.lab = 0
    def A(self, s): self.o.append("    " + s)
    def C(self, s): self.o.append("    ; " + s)
    def L(self, s): self.o.append(s + ":")
    def nop(self, n):
        while n > 0:
            k = min(n, 16); self.A(f"s_nop {k-1}"); n -= k
    def label(self, p):
        self.lab += 1; return f"L_{p}_{self.lab}"
    def stamp(self, k):
        if self.stamps: self.A(f"s_memrealtime s[{sST+2*k}:{sST+2*k+1}]")
    def lgkm(self, n): self.A(f"s_waitcnt lgkmcnt({0 if self.stamps else n})")
    def only(self, w, fn):
        sk = self.label("skip")
        self.A(f"s_cmp_lg_u32 {sW}, {w}"); self.A(f"s_cbranch_scc1 {sk}")
        fn()
        self.L(sk)
    def lanes(self, lo, hi):
        self.A(f"s_mov_b32 exec_lo, {lo:#x}"); self.A(f"s_mov_b32 exec_hi, {hi:#x}")
    def swap_reduce(self, op, v, tmp, which):
        A = self.A
        A(f"v_mov_b32 v{tmp}, v{v}")
        self.nop(2)
        A(f"v_permlane{which}_swap_b32 v{v}, v{tmp}")
        self.nop(1)
        A(f"{op} v{v}, v{v}, v{tmp}")
    def dpp_add(self, v, ctl):
        self.nop(2)
        self.A(f"v_add_f32_dpp v{v}, v{v}, v{v} {ctl} row_mask:0xf bank_mask:0xf")
    def mk(self, r, p, off, size):
        A = self.A
        if off is None:
            A(f"s_mov_b32 s{r}, s{p}"); A(f"s_mov_b32 s{r+1}, s{p+1}")
        else:
            A(f"s_add_u32 s{r}, s{p}, {off}"); A(f"s_addc_u32 s{r+1}, s{p+1}, 0")
        if size is not None: A(f"s_mov_b32 s{r+2}, {size}")
        A(f"s_mov_b32 s{r+3}, 0x20000")

    def kv_load(self, kind, G, t):
        A = self.A
        st = sTK if kind == "K" else sTV
        if t == 0: A(f"s_xor_b32 {st}, {sROT}, {self.gperm[G] << 15}")
        if kind == "K":
            A(f"buffer_load_dwordx4 {vr(vK+16*G+4*t,4)}, v{vOK}, {srd(R_K)}, {st} offen offset:{(t>>1)*2048 + (t&1)*128} nt")
        else:
            dst = vX if G == 0 else vK + 16 * (G - 1)
            A(f"buffer_load_dwordx4 {vr(dst+4*t,4)}, v{vOV}, {srd(R_V)}, {st} offen offset:{256*t} nt")

    def bsel(self, src, half, bset):
        A = self.A
        t = vTM + 4 + bset
        A(f"v_perm_b32 v{t}, v{src}, v{src}, {sDUP1 if half else sDUP0}")
        for u in range(4): A(f"v_and_b32 v{vBF+4*bset+u}, v{t}, v{vM+u}")

    def phase0(self):
        A = self.A
        A("s_cmp_ge_u32 s2, 256")
        A("s_cbranch_scc1 L_end")
        A("s_load_dwordx16 s[16:31], s[0:1], 0")
        A("s_load_dwordx8 s[32:39], s[0:1], 64")
        A("s_load_dwordx2 s[40:41], s[0:1], 96")
        self.stamp(0)
        A("v_lshrrev_b32 v10, 6, v0")
        A(f"v_and_b32 v{vI}, 15, v0")
        A(f"v_readfirstlane_b32 {sW}, v10")
        A(f"v_bfe_u32 v{vG}, v0, 4, 2")
        self.C("wg = (j*4 + hq)*8 + x ; h = 4x + hq ; j = 4b + s   (x = XCD under round-robin placement: speed only)")
        A(f"s_and_b32 {sT0}, s2, 7")
        A(f"s_lshr_b32 {sT1}, s2, 3")
        A(f"s_and_b32 {sT2}, {sT1}, 3")
        A(f"s_lshl_b32 {sH}, {sT0}, 2")
        A(f"s_add_u32 {sH}, {sH}, {sT2}")
        A(f"s_lshr_b32 {sJ}, {sT1}, 2")
        A(f"s_and_b32 {sFT}, s2, 31")
        self.C("FFN work goes to the workgroups whose x has a rank (nibble table, 15 = none)")
        A(f"s_lshl_b32 {sCNT}, {sT0}, 2"); A(f"s_lshr_b32 {sCNT}, {self.xmap}, {sCNT}"); A(f"s_and_b32 {sCNT}, {sCNT}, 15")
        A(f"s_mul_i32 {sTI}, {sT2}, {self.nx}"); A(f"s_add_u32 {sTI}, {sTI}, {sCNT}")
        A(f"s_cmp_eq_u32 {sCNT}, 15"); A(f"s_cselect_b32 {sTI}, 31, {sTI}")
        A(f"s_lshl_b32 {sTK}, {sJ}, 3"); A(f"s_add_u32 {sTK}, {sTK}, {sW}")
        A(f"s_lshl_b32 {sTV}, {sTK}, 4")
        A(f"s_lshl_b32 {sX0}, {sTK}, 16"); A(f"s_lshl_b32 {sTQ}, {sH}, 8"); A(f"s_add_u32 {sX0}, {sX0}, {sTQ}")
        A(f"s_cmp_ge_u32 {sTI}, 11")
        A(f"s_cselect_b32 {sX1}, 11, 0")
        A(f"s_sub_u32 {sX1}, {sTI}, {sX1}")
        A(f"s_lshl_b32 {sX1}, {sX1}, 8")
        A(f"s_mul_i32 {sTK}, {sTK}, {8*2752}")
        A(f"s_add_u32 {sX1}, {sX1}, {sTK}")
        A(f"s_sub_u32 s{R_FT+2}, {512*2752}, {sX1}")
        A(f"s_cmp_lt_u32 {sTI}, 22")
        A(f"s_cselect_b32 s{R_FT+2}, s{R_FT+2}, 0")
        A(f"s_cselect_b32 {sX1}, {sX1}, 0")
        A(f"s_mov_b32 s{R_FT+3}, 0x20000")
        A(f"s_mov_b32 s{R_X+2}, 2048"); A(f"s_mov_b32 s{R_X+3}, 0x20000")
        A(f"s_mov_b32 s{R_WQ+2}, {7*8192+256}"); A(f"s_mov_b32 s{R_WQ+3}, 0x20000")
        A(f"s_movk_i32 {sTQ}, 8192")
        A(f"v_lshrrev_b32 v{vT0}, 3, v{vI}")
        A(f"v_lshlrev_b32 v{vT0}, 10, v{vT0}")
        A(f"v_lshl_add_u32 v{vT0}, v{vG}, 2, v{vT0}")
        A(f"v_lshlrev_b32 v{vT1}, 4, v{vI}")
        A(f"v_lshl_add_u32 v{vOQ}, v{vG}, 14, v{vT1}")
        A(f"v_mul_u32_u24 v{vOF}, {2*2752}, v{vG}")
        A(f"v_add_u32 v{vOF}, v{vOF}, v{vT1}")
        A(f"s_cmp_ge_u32 {sTI}, 11")
        A("s_waitcnt lgkmcnt(0)")
        self.C("projection tiles: rows 64j + 8w + 2g + t of wq (128 columns of head h) and of w_gate / w_up (one 128-column block)")
        A(f"s_cselect_b32 s{R_FT}, s{P_WU}, s{P_WG}"); A(f"s_cselect_b32 s{R_FT+1}, s{P_WU+1}, s{P_WG+1}")
        A(f"s_add_u32 s{R_WQ}, s{P_WQ}, {sX0}"); A(f"s_addc_u32 s{R_WQ+1}, s{P_WQ+1}, 0")
        A(f"buffer_load_dwordx4 {vr(vDF,4)}, v{vOQ}, {srd(R_WQ)}, 0 offen nt")
        A(f"buffer_load_dwordx4 {vr(vDF+4,4)}, v{vOQ}, {srd(R_WQ)}, {sTQ} offen nt")
        A(f"s_add_u32 s{R_FT}, s{R_FT}, {sX1}"); A(f"s_addc_u32 s{R_FT+1}, s{R_FT+1}, 0")
        A(f"buffer_load_dwordx4 {vr(vDF+8,4)}, v{vOF}, {srd(R_FT)}, 0 offen nt")
        A(f"buffer_load_dwordx4 {vr(vDF+12,4)}, v{vOF}, {srd(R_FT)}, 0 offen offset:2752 nt")
        A(f"s_mov_b32 s{R_X}, s{P_X}"); A(f"s_mov_b32 s{R_X+1}, s{P_X+1}")
        A(f"buffer_load_dword v{vXR}, v{vT0}, {srd(R_X)}, {sTV} offen")
        self.mk(R_WS, P_WS, None, WS_BYTES)
        def clear():
            self.C("invalidate the hand-off slots this workgroup is responsible for")
            c = vQF
            for k in range(4): A(f"v_mov_b32 v{c+k}, -1")
            A(f"v_and_b32 v{c+4}, 63, v0"); A(f"v_lshlrev_b32 v{c+4}, 4, v{c+4}")
            A(f"s_lshl_b32 {sTD}, {sH}, 3"); A(f"s_add_u32 {sTD}, {sTD}, {sJ}"); A(f"s_lshl_b32 {sTD}, {sTD}, 10")
            A(f"s_add_u32 {sTD}, {sTD}, {WS_Q}")
            A(f"buffer_store_dwordx4 {vr(c,4)}, v{c+4}, {srd(R_WS)}, {sTD} offen sc1")
            A(f"s_lshl_b32 {sTD}, {sTI}, 3"); A(f"s_add_u32 {sTD}, {sTD}, {sJ}"); A(f"s_lshl_b32 {sTD}, {sTD}, 10")
            A(f"s_add_u32 {sTD}, {sTD}, {WS_F}")
            A(f"buffer_store_dwordx4 {vr(c,4)}, v{c+4}, {srd(R_WS)}, {sTD} offen sc1")
            A(f"s_lshl_b32 {sTD}, s2, 11")
            A(f"buffer_store_dwordx4 {vr(c,4)}, v{c+4}, {srd(R_WS)}, {sTD} offen sc1")
            A(f"buffer_store_dwordx4 {vr(c,4)}, v{c+4}, {srd(R_WS)}, {sTD} offen offset:1024 sc1")
            self.lanes(0xff, 0)
            A(f"s_lshl_b32 {sTD}, s2, 7"); A(f"s_add_u32 {sTD}, {sTD}, {WS_MB}")
            A(f"buffer_store_dwordx4 {vr(c,4)}, v{c+4}, {srd(R_WS)}, {sTD} offen sc1")
            A("s_mov_b64 exec, -1")
        self.only(HS, clear)
        self.C("everything else while those fly")
        A(f"v_and_b32 v{vL}, 63, v0")
        A(f"s_lshr_b32 {sB}, {sJ}, 2")
        A(f"s_and_b32 {sS}, {sJ}, 3")
        A(f"s_lshl_b32 {sBH}, {sB}, 5"); A(f"s_add_u32 {sBH}, {sBH}, {sH}")
        A(f"v_and_b32 v{vOK}, 7, v0")
        A(f"v_lshlrev_b32 v{vOK}, 8, v{vOK}")
        A(f"v_lshl_add_u32 v{vOK}, v{vG}, 4, v{vOK}")
        A(f"v_and_b32 v{vOV}, 8, v0")
        A(f"v_lshl_add_u32 v{vOK}, v{vOV}, 3, v{vOK}")
        A(f"v_lshl_add_u32 v{vOV}, v{vG}, 10, v{vT1}")
        A(f"s_lshl_b32 {sTK}, {sBH}, 20")
        A(f"s_lshl_b32 {sTV}, {sS}, 18"); A(f"s_add_u32 {sTK}, {sTK}, {sTV}")
        A(f"s_lshl_b32 {sTV}, {sW}, 12"); A(f"s_add_u32 {sTK}, {sTK}, {sTV}")
        self.mk(R_K, P_K, sTK, (7 << 15) + 4096)
        self.mk(R_V, P_V, sTK, (7 << 15) + 4096)
        if self.rotmul == 1: A(f"s_lshl_b32 {sROT}, {sJ}, 15")
        else:
            A(f"s_mul_i32 {sROT}, {sJ}, {self.rotmul}"); A(f"s_and_b32 {sROT}, {sROT}, 7"); A(f"s_lshl_b32 {sROT}, {sROT}, 15")
        self.mk(R_GW, P_GW, None, 1024)
        per = -(-86 // self.nx)
        A(f"s_and_b32 {sT1}, {sT1}, 15")
        A(f"s_mul_i32 {sSL}, {sCNT}, {per}")
        A(f"s_add_u32 {sSL}, {sSL}, {sT1}")
        A(f"s_cmp_lt_u32 {sT1}, {per}")
        A(f"s_cselect_b32 {sSL}, {sSL}, 1000")
        A(f"s_cmp_lt_u32 {sSL}, 86")
        A(f"s_cselect_b32 s{R_WD+2}, {15*1024+128}, 0")
        A(f"s_cselect_b32 {sSL}, {sSL}, 0")
        A(f"s_lshl_b32 {sT0}, {sSL}, 14"); A(f"s_lshl_b32 {sT1}, {sW}, 7"); A(f"s_add_u32 {sT0}, {sT0}, {sT1}")
        self.mk(R_WD, P_WD, sT0, None)
        A(f"s_lshl_b32 {sT0}, {sH}, 17"); A(f"s_add_u32 {sT0}, {sT0}, {sT1}")
        self.mk(R_WO, P_WO, sT0, 127 * 1024 + 128)
        A(f"v_lshlrev_b32 v{vT1}, 4, v{vL}")
        t = vTM + 4
        A(f"v_and_b32 v{t}, 7, v{vL}")
        A(f"v_lshlrev_b32 v{t}, 4, v{t}")
        A(f"v_lshrrev_b32 v{t+1}, 3, v{vL}")
        A(f"v_lshl_add_u32 v{vOD}, v{t+1}, 10, v{t}")
        A(f"v_and_b32 v{t+2}, 3, v{t+1}")
        A(f"v_lshlrev_b32 v{t+2}, 3, v{t+2}")
        A(f"v_lshrrev_b32 v{t+1}, 2, v{t+1}")
        A(f"v_add_u32 v{t+1}, v{t+1}, v{t+2}")
        A(f"v_lshl_add_u32 v{vOW}, v{t+1}, 10, v{t}")
        A(f"s_lshl_b32 {sWOL}, {sW}, 14"); A(f"s_add_u32 {sWOL}, {sWOL}, {L_WO}")
        A(f"s_lshl_b32 {sWDL}, {sW}, 11"); A(f"s_add_u32 {sWDL}, {sWDL}, {L_WD}")
        self.C("selection masks: e = i&7 ; M_u = (e>>1)==u ? (e&1 ? 0xffff0000 : 0xffff) : 0")
        A(f"v_and_b32 v{t}, 1, v{vI}")
        A(f"v_lshlrev_b32 v{t}, 4, v{t}")
        A(f"v_mov_b32 v{t+1}, 0xffff")
        A(f"v_lshlrev_b32 v{t+1}, v{t}, v{t+1}")
        A(f"v_bfe_u32 v{t}, v{vI}, 1, 2")
        for u in range(4):
            A(f"v_cmp_eq_u32 vcc, {u}, v{t}")
            self.nop(2)
            A(f"v_cndmask_b32 v{vM+u}, 0, v{t+1}, vcc")
        A(f"s_mov_b32 {sDUP0}, 0x01000100"); A(f"s_mov_b32 {sDUP1}, 0x03020302")
        A(f"s_mov_b32 {sC}, {f32(math.log2(math.e) / math.sqrt(128.0))}")
        if self.stamps: A(f"s_getreg_b32 {sXCC}, hwreg(HW_REG_XCC_ID)")
        A(f"s_add_u32 {sT0}, {sWOL}, {14*1024}")
        A(f"v_lshl_add_u32 v{vT0}, v{vL}, 4, {sT0}")
        self.only(HS, lambda: A("s_waitcnt vmcnt(0)"))
        for t in range(4):
            A(f"s_waitcnt vmcnt({[3,2,2,3][t]})")
            self.kv_load("K", 0, t)
        for n in range(self.npre): self.kv_load("K", 1 + n // 4, n % 4)
        self.bsel(vXR, 0, 0); self.bsel(vXR, 1, 1)
        self.nop(1)
        A(f"v_mfma_f32_16x16x32_bf16 {vr(vACC,4)}, {vr(vDF,4)}, {vr(vBF,4)}, 0")
        A(f"v_mfma_f32_16x16x32_bf16 {vr(vAC2,4)}, {vr(vDF+8,4)}, {vr(vBF,4)}, 0")
        A(f"v_mfma_f32_16x16x32_bf16 {vr(vACC,4)}, {vr(vDF+4,4)}, {vr(vBF+4,4)}, {vr(vACC,4)}")
        A(f"v_mfma_f32_16x16x32_bf16 {vr(vAC2,4)}, {vr(vDF+12,4)}, {vr(vBF+4,4)}, {vr(vAC2,4)}")
        self.nop(8)
        A(f"ds_write_b128 v{vT0}, {vr(vACC,4)}")
        A(f"ds_write_b128 v{vT0}, {vr(vAC2,4)} offset:1024")
        A("s_waitcnt lgkmcnt(0)")
        def arrive():
            self.C("this workgroup's slots are invalid now: count it in at its head's counter")
            A(f"s_lshl_b32 {sTF}, {sFT}, 3"); A(f"s_mov_b32 {sARR}, 1")
            A(f"s_atomic_add {sARR}, s[{P_DBG}:{P_DBG+1}], {sTF} glc")
        self.only(HS, arrive)
        A("s_barrier")
        def publish():
            d = vSP; d2 = vK + 96
            A(f"v_add_u32 v{vT0}, {L_WO + 14*1024}, v{vT1}")
            A(f"v_add_u32 v{vTM}, 0x10000, v{vT0}")
            for w in range(8): A(f"ds_read_b128 {vr(d+4*w,4)}, v{vT0 if w < 4 else vTM} offset:{16384*(w&3)}")
            for w in range(4): A(f"ds_read_b128 {vr(d2+4*w,4)}, v{vT0} offset:{1024+16384*w}")
            A(f"s_lshl_b32 {sT0}, {sH}, 3"); A(f"s_add_u32 {sT0}, {sT0}, {sJ}"); A(f"s_lshl_b32 {sT0}, {sT0}, 10")
            A(f"s_add_u32 {sT0}, {sT0}, {WS_Q}")
            A(f"s_lshl_b32 {sT1}, {sTI}, 3"); A(f"s_add_u32 {sT1}, {sT1}, {sJ}"); A(f"s_lshl_b32 {sT1}, {sT1}, 10")
            A(f"s_add_u32 {sT1}, {sT1}, {WS_F}")
            self.lgkm(4)
            for w in range(4, 8): A(f"ds_read_b128 {vr(d2+4*w,4)}, v{vTM} offset:{1024+16384*(w&3)}")
            for w in range(1, 8):
                for r in range(4): A(f"v_add_f32 v{d+r}, v{d+r}, v{d+4*w+r}")
            for r in range(4): A(f"v_min_u32 v{d+r}, -2, v{d+r}")
            A(f"buffer_store_dwordx4 {vr(d,4)}, v{vT1}, {srd(R_WS)}, {sT0} offen sc1")
            A("s_waitcnt lgkmcnt(0)")
            for w in range(1, 8):
                for r in range(4): A(f"v_add_f32 v{d2+r}, v{d2+r}, v{d2+4*w+r}")
            for r in range(4): A(f"v_min_u32 v{d2+r}, -2, v{d2+r}")
            A(f"buffer_store_dwordx4 {vr(d2,4)}, v{vT1}, {srd(R_WS)}, {sT1} offen sc1")
            self.nop(2)
        self.only(PUB, publish)

    def items(self):
        A = self.A
        it = []
        def add(name, fn, dep=None): it.append(dict(name=name, fn=fn, dep=dep))
        def grp(kind, G, dep):
            for t in range(4): add(f"{kind}{G}_{t}", lambda t=t: self.kv_load(kind, G, t), dep if t == 0 else None)
        wd = []; wo = []
        for t in range(2):
            def fn(t=t):
                A(f"s_add_u32 m0, {sWDL}, {t*1024}")
                A(f"s_movk_i32 {sTD}, {t*8192}")
                A(f"buffer_load_dwordx4 v{vOD}, {srd(R_WD)}, {sTD} offen nt lds")
            wd.append((f"wd{t}", fn, None))
        for t in range(16):
            def fn(t=t):
                A(f"s_add_u32 m0, {sWOL}, {t*1024}")
                A(f"s_mov_b32 {sTD}, {(32*(t>>2) + 2*(t&3))*1024}")
                A(f"buffer_load_dwordx4 v{vOW}, {srd(R_WO)}, {sTD} offen nt lds")
            wo.append((f"wo{t}", fn, "qred" if t >= 14 else None))
        q = wo[:4] + wd + wo[4:]
        def put(slot):
            for _ in range(self.dma[slot]):
                n, fn, dep = q.pop(0); add(n, fn, dep)
        for G in range(8): grp("K", G, None); put(G)
        for G in range(8): grp("V", G, ("st0" if G == 7 else f"qk{G-1}") if G else None); put(8 + G)
        return it

    def mb_load(self):
        self.A(f"s_load_dword {sGO}, s[{P_WS}:{P_WS+1}], {sMB} glc")
    def ga_loads(self):
        A = self.A
        t = vTM
        A(f"s_lshl_b32 {sT0}, {sH}, 13"); A(f"s_lshl_b32 {sT1}, {sB}, 7"); A(f"s_add_u32 {sT0}, {sT0}, {sT1}")
        A(f"s_add_u32 {sT0}, {sT0}, {WS_Q}")
        A(f"v_and_b32 v{t}, 7, v{vL}"); A(f"v_lshlrev_b32 v{t}, 4, v{t}")
        A(f"v_bfe_u32 v{t+1}, v{vL}, 3, 2"); A(f"v_lshl_add_u32 v{t}, v{t+1}, 8, v{t}")
        A(f"v_lshrrev_b32 v{t+1}, 5, v{vL}"); A(f"v_lshl_add_u32 v{t}, v{t+1}, 10, v{t}")
        A(f"s_add_u32 {sT1}, {sT0}, 4096")
        for k in range(4):
            A(f"buffer_load_dwordx4 {vr(vSP+4*k,4)}, v{t}, {srd(R_WS)}, {sT0 if k < 2 else sT1} offen offset:{(k&1)*2048} sc1")
    def step_hs(self, k, last):
        A = self.A
        def fn():
            end = self.label("hsend"); wait = self.label("hswait")
            if k == 0:
                self.C("the last of the eight workgroups of a head tells all of them that the head's slots are invalid")
                A(f"s_lshl_b32 {sMB}, s2, 7"); A(f"s_add_u32 {sMB}, {sMB}, {WS_MB}")
                A(f"s_mov_b32 {sDONE}, 0")
                A(f"v_lshlrev_b32 v{vQF+4}, 12, v{vL}"); A(f"v_mov_b32 v{vQF+6}, 1")
                A(f"s_lshl_b32 {sT0}, {sFT}, 7"); A(f"s_add_u32 {sT0}, {sT0}, {WS_MB}")
                A("s_waitcnt lgkmcnt(0)")
                A(f"s_and_b32 {sARR}, {sARR}, 7"); A(f"s_cmp_lg_u32 {sARR}, 7"); A(f"s_cbranch_scc1 {wait}")
                self.lanes(0xff, 0)
                A(f"buffer_store_dword v{vQF+6}, v{vQF+4}, {srd(R_WS)}, {sT0} offen sc1")
                A("s_mov_b64 exec, -1")
                A(f"s_mov_b32 {sGO}, 1")
                A(f"s_branch {end}")
                self.L(wait)
                self.mb_load()
                self.L(end)
                return
            A(f"s_cmp_eq_u32 {sDONE}, 1"); A(f"s_cbranch_scc1 {end}")
            A("s_waitcnt lgkmcnt(0)")
            if last:
                sp = self.label("mbspin"); go = self.label("go")
                A(f"s_cmp_eq_u32 {sGO}, 1"); A(f"s_cbranch_scc1 {go}")
                A(f"s_mov_b32 {sCNT}, 0")
                A(f"v_mov_b32 v{vTM}, 0")
                self.L(sp)
                A("s_mov_b64 exec, 1")
                A(f"buffer_load_dword v{vFL}, v{vTM}, {srd(R_WS)}, {sMB} offen sc1")
                A("s_mov_b64 exec, -1")
                A(f"s_add_u32 {sCNT}, {sCNT}, 1")
                A("s_waitcnt vmcnt(0)")
                A(f"v_readfirstlane_b32 {sTF}, v{vFL}")
                A(f"s_cmp_ge_u32 {sCNT}, {SPIN}"); A(f"s_cbranch_scc1 {go}")
                A(f"s_cmp_lg_u32 {sTF}, 1"); A(f"s_cbranch_scc1 {sp}")
                self.L(go)
            else:
                A(f"s_cmp_lg_u32 {sGO}, 1"); A(f"s_cbranch_scc1 {wait}")
            self.ga_loads()
            A(f"s_mov_b32 {sDONE}, 1")
            if not last:
                A(f"s_branch {end}")
                self.L(wait)
                self.mb_load()
            self.L(end)
        self.only(HS, fn)
    def step_qsvc(self):
        A = self.A
        def fn():
            gs = self.label("gaspin"); ok = self.label("gaok")
            t = vTM; d = vSP
            A(f"s_mov_b32 {sCNT}, 0")
            self.L(gs)
            A(f"v_max3_u32 v{t+2}, v{d}, v{d+1}, v{d+2}")
            for k in range(3, 15, 2): A(f"v_max3_u32 v{t+2}, v{t+2}, v{d+k}, v{d+k+1}")
            A(f"v_max_u32 v{t+2}, v{t+2}, v{d+15}")
            A(f"v_cmp_eq_u32 vcc, -1, v{t+2}")
            A(f"s_cbranch_vccz {ok}")
            self.ga_loads()
            A(f"s_add_u32 {sCNT}, {sCNT}, 1")
            A(f"s_cmp_lt_u32 {sCNT}, {SPIN}")
            A("s_waitcnt vmcnt(0)")
            A(f"s_cbranch_scc1 {gs}")
            self.L(ok)
            for k in range(1, 4):
                for r in range(4): A(f"v_add_f32 v{d+r}, v{d+r}, v{d+4*k+r}")
            A(f"v_and_b32 v{t+1}, 7, v{vL}")
            A(f"v_lshrrev_b32 v{t+2}, 5, v{vL}")
            A(f"v_permlane32_swap_b32 v{d}, v{d+1}"); A(f"v_permlane32_swap_b32 v{d+2}, v{d+3}")
            A(f"v_lshl_add_u32 v{t+1}, v{t+2}, 3, v{t+1}")
            A(f"v_add_f32 v{d}, v{d}, v{d+1}"); A(f"v_add_f32 v{d+2}, v{d+2}, v{d+3}")
            A(f"v_cvt_pk_bf16_f32 v{d}, v{d}, v{d+2}")
            A(f"v_bfe_u32 v{t}, v{vL}, 3, 2")
            A(f"v_lshl_add_u32 v{t}, v{t}, 5, v{t+1}")
            A(f"v_lshlrev_b32 v{t}, 1, v{t}")
            A(f"ds_write_b16 v{t}, v{d} offset:{L_QS}")
            A(f"ds_write_b16_d16_hi v{t}, v{d} offset:{L_QS+32}")
        self.only(HS, fn)

    def step_gate0(self):
        A = self.A
        def fn():
            A(f"s_lshl_b32 {sT1}, {sB}, 10")
            A(f"buffer_load_dwordx4 {vr(vXR,4)}, v{vT1}, {srd(R_X)}, {sT1} offen")
            A(f"buffer_load_dwordx4 {vr(vXR+4,4)}, v{vT1}, {srd(R_GW)}, 0 offen")
        self.only(GSV, fn)
    def step_gate(self):
        A = self.A
        def fn():
            x, w = vXR, vXR + 4
            t = vTM; acc = vT0
            A(f"v_mov_b32 v{acc}, 0")
            for k in range(4):
                A(f"v_lshlrev_b32 v{t}, 16, v{x+k}"); A(f"v_lshlrev_b32 v{t+1}, 16, v{w+k}")
                A(f"v_and_b32 v{t+2}, 0xffff0000, v{x+k}"); A(f"v_and_b32 v{t+3}, 0xffff0000, v{w+k}")
                A(f"v_mul_f32 v{t}, v{t}, v{t+1}"); A(f"v_mul_f32 v{t+2}, v{t+2}, v{t+3}")
                A(f"v_cvt_pk_bf16_f32 v{t}, v{t}, v{t+2}")
                A(f"v_lshlrev_b32 v{t+1}, 16, v{t}"); A(f"v_and_b32 v{t}, 0xffff0000, v{t}")
                A(f"v_add_f32 v{acc}, v{acc}, v{t+1}"); A(f"v_add_f32 v{acc}, v{acc}, v{t}")
            for ctl in ("quad_perm:[1,0,3,2]", "quad_perm:[2,3,0,1]", "row_half_mirror", "row_mirror"):
                self.dpp_add(acc, ctl)
            self.swap_reduce("v_add_f32", acc, t, 16)
            self.swap_reduce("v_add_f32", acc, t, 32)
            A(f"v_cvt_pk_bf16_f32 v{acc}, v{acc}, v{acc}")
            A(f"v_and_b32 v{acc}, 0xffff0000, v{acc}")
            A(f"v_mul_f32 v{acc}, {f32(-math.log2(math.e))}, v{acc}")
            A(f"v_exp_f32 v{acc}, v{acc}")
            self.nop(1)
            A(f"v_add_f32 v{acc}, 1.0, v{acc}")
            A(f"v_rcp_f32 v{acc}, v{acc}")
            self.nop(1)
            A(f"v_cvt_pk_bf16_f32 v{acc}, v{acc}, v{acc}")
            A(f"v_and_b32 v{t}, 0xffff0000, v{acc}")
            A(f"v_sub_f32 v{t+1}, 1.0, v{t}")
            A(f"v_cvt_pk_bf16_f32 v{t+1}, v{t+1}, v{t+1}")
            A(f"v_and_b32 v{t+1}, 0xffff0000, v{t+1}")
            A(f"v_mov_b32 v{t+2}, 0")
            A(f"ds_write_b64 v{t+2}, {vr(t,2)} offset:{L_GS}")
        self.only(GSV, fn)

    def fl_load(self):
        A = self.A
        A(f"v_and_b32 v{vT0}, 31, v{vL}"); A(f"v_lshlrev_b32 v{vT0}, 3, v{vT0}")
        A(f"global_load_dword v{vFL}, v{vT0}, s[{P_DBG}:{P_DBG+1}] sc1")
    def fg_load(self):
        A = self.A
        A(f"s_lshr_b32 {sT0}, {sSL}, 3"); A(f"s_lshl_b32 {sT0}, {sT0}, 13")
        A(f"s_lshl_b32 {sT1}, {sB}, 7"); A(f"s_add_u32 {sT0}, {sT0}, {sT1}")
        A(f"s_bfe_u32 {sT1}, {sSL}, 0x20001"); A(f"s_lshl_b32 {sT1}, {sT1}, 8"); A(f"s_add_u32 {sT0}, {sT0}, {sT1}")
        A(f"s_and_b32 {sT1}, {sSL}, 1"); A(f"s_lshl_b32 {sT1}, {sT1}, 3"); A(f"s_add_u32 {sT0}, {sT0}, {sT1}")
        A(f"s_add_u32 {sT0}, {sT0}, {WS_F}")
        A(f"v_and_b32 v{vT0}, 7, v{vL}"); A(f"v_lshlrev_b32 v{vT0}, 4, v{vT0}")
        A(f"v_lshrrev_b32 v{vTM}, 3, v{vL}"); A(f"v_lshl_add_u32 v{vT0}, v{vTM}, 10, v{vT0}")
        A(f"buffer_load_dwordx2 {vr(vFG,2)}, v{vT0}, {srd(R_WS)}, {sT0} offen sc1")
        A(f"s_add_u32 {sT0}, {sT0}, {11*8192}")
        A(f"buffer_load_dwordx2 {vr(vFG+2,2)}, v{vT0}, {srd(R_WS)}, {sT0} offen sc1")
    def step_fga(self):
        A = self.A
        def fn():
            self.C("every workgroup has invalidated its slots -> gather the gate/up partials of this slice")
            ok = self.label("flok"); sp = self.label("flspin")
            A(f"v_cmp_gt_u32 vcc, 8, v{vFL}")
            A(f"s_cbranch_vccz {ok}")
            A(f"s_mov_b32 {sCNT}, 0")
            self.L(sp)
            A("s_sleep 32")
            self.fl_load()
            A(f"s_add_u32 {sCNT}, {sCNT}, 1")
            A(f"s_cmp_ge_u32 {sCNT}, {SPIN}")
            A("s_waitcnt vmcnt(0)")
            A(f"s_cbranch_scc1 {ok}")
            A(f"v_cmp_gt_u32 vcc, 8, v{vFL}")
            A(f"s_cbranch_vccnz {sp}")
            self.L(ok)
            self.fg_load()
        self.only(SVC, fn)
    def step_ffn2(self):
        A = self.A
        t = vTM
        def fn():
            self.C("h = gelu(gate)*up for 16 hidden units, then (1-g) * h @ w_down for all 512 columns")
            e = vFG
            ok = self.label("fgok"); sp = self.label("fgspin")
            A(f"s_mov_b32 {sCNT}, 0")
            self.L(sp)
            A(f"v_max3_u32 v{t}, v{e}, v{e+1}, v{e+2}"); A(f"v_max_u32 v{t}, v{t}, v{e+3}")
            A(f"v_cmp_eq_u32 vcc, -1, v{t}")
            A(f"s_cbranch_vccz {ok}")
            self.fg_load()
            A(f"s_add_u32 {sCNT}, {sCNT}, 1")
            A(f"s_cmp_lt_u32 {sCNT}, {SPIN}")
            A("s_waitcnt vmcnt(0)")
            A(f"s_cbranch_scc1 {sp}")
            self.L(ok)
            A(f"v_permlane32_swap_b32 v{e}, v{e+1}"); A(f"v_permlane32_swap_b32 v{e+2}, v{e+3}")
            self.nop(1)
            A(f"v_add_f32 v{e}, v{e}, v{e+1}"); A(f"v_add_f32 v{e+2}, v{e+2}, v{e+3}")
            self.swap_reduce("v_add_f32", e, e + 1, 16)
            self.swap_reduce("v_add_f32", e + 2, e + 3, 16)
            self.dpp_add(e, "row_ror:8"); self.dpp_add(e + 2, "row_ror:8")
            A(f"v_cvt_pk_bf16_f32 v{e}, v{e}, v{e+2}")
            A(f"v_and_b32 v{e+2}, 0xffff0000, v{e}")
            A(f"v_lshlrev_b32 v{e}, 16, v{e}")
            k0 = math.sqrt(2.0 / math.pi)
            self.C("gelu_tanh(x) = x / (1 + exp(-2*sqrt(2/pi)*(x + 0.044715 x^3)))")
            A(f"v_mul_f32 v{e+1}, v{e}, v{e}")
            A(f"v_mov_b32 v{e+3}, {f32(-2.0 * k0 * math.log2(math.e))}")
            A(f"v_mul_f32 v{e+1}, {f32(0.044715)}, v{e+1}")
            A(f"v_add_f32 v{e+1}, 1.0, v{e+1}")
            A(f"v_mul_f32 v{e+1}, v{e+1}, v{e}")
            A(f"v_mul_f32 v{e+1}, v{e+1}, v{e+3}")
            A(f"v_exp_f32 v{e+1}, v{e+1}")
            self.nop(1)
            A(f"v_add_f32 v{e+1}, 1.0, v{e+1}")
            A(f"v_rcp_f32 v{e+1}, v{e+1}")
            self.nop(1)
            A(f"v_mul_f32 v{e}, v{e}, v{e+1}")
            A(f"v_cvt_pk_bf16_f32 v{e}, v{e}, v{e}")
            A(f"v_and_b32 v{e}, 0xffff0000, v{e}")
            A(f"v_mul_f32 v{e}, v{e}, v{e+2}")
            A(f"v_cvt_pk_bf16_f32 v{e}, v{e}, v{e}")
            A(f"v_and_b32 v{t+1}, 7, v{vL}"); A(f"v_lshrrev_b32 v{t+2}, 5, v{vL}")
            A(f"v_lshl_add_u32 v{t+1}, v{t+2}, 3, v{t+1}")
            A(f"v_lshlrev_b32 v{t+1}, 1, v{t+1}")
            A(f"ds_write_b16 v{t+1}, v{e} offset:{L_HS}")
            A(f"v_lshlrev_b32 v{t+1}, 3, v{vG}")
            A(f"v_mov_b32 v{t+3}, 0")
            A("s_waitcnt lgkmcnt(0)")
            A(f"ds_read_b64 {vr(e,2)}, v{t+1} offset:{L_HS}")
            A(f"ds_read_b32 v{e+2}, v{t+3} offset:{L_GS+4}")
            A(f"v_lshrrev_b32 v{t}, 2, v{vI}"); A(f"v_and_b32 v{t+1}, 3, v{vI}")
            A(f"v_lshlrev_b32 v{t+1}, 3, v{t+1}")
            A(f"v_lshl_add_u32 v{t+1}, v{t}, 7, v{t+1}")
            A(f"v_lshl_add_u32 v{t+1}, v{vG}, 9, v{t+1}")
            A(f"v_lshlrev_b32 v{t+2}, 2, v{vL}")
            ms = ["", "s[52:53]", "s[54:55]", "s[68:69]"]
            for k in range(1, 4): A(f"v_cmp_eq_u32 {ms[k]}, {k}, v{vG}")
            wfs = [vDF, vK + 32]
            def rd(w):
                for tau in range(4):
                    A(f"ds_read_b64_tr_b16 {vr(wfs[w&1]+2*tau,2)}, v{t+1} offset:{L_WD + w*2048 + tau*32}")
            rd(0)
            for w in range(8):
                if w < 7: rd(w + 1)
                self.lgkm(4 if w == 0 else 5 if w < 7 else 0)
                for tau in range(4):
                    A(f"v_mfma_f32_16x16x16_bf16 {vr(vFD+4*tau,4)}, {vr(e,2)}, {vr(wfs[w&1]+2*tau,2)}, 0")
                self.nop(6)
                A(f"v_cndmask_b32 v{t+4}, v{vFD}, v{vFD+4}, {ms[1]}")
                self.nop(1)
                A(f"v_cndmask_b32 v{t+4}, v{t+4}, v{vFD+8}, {ms[2]}")
                self.nop(1)
                A(f"v_cndmask_b32 v{t+4}, v{t+4}, v{vFD+12}, {ms[3]}")
                A(f"v_mul_f32 v{t+4}, v{t+4}, v{e+2}")
                A(f"ds_write_b32 v{t+2}, v{t+4} offset:{L_YF + w*256}")
        self.only(SVC, fn)

    def step_qred(self):
        A = self.A
        t = vTM
        A(f"v_and_b32 v{t}, 8, v{vL}")
        A(f"v_lshlrev_b32 v{t}, 3, v{t}")
        A(f"v_lshl_add_u32 v{t}, v{vG}, 4, v{t}")
        A("s_waitcnt lgkmcnt(0)")
        A("s_barrier")
        for T in range(2): A(f"ds_read_b128 {vr(vQF+4*T,4)}, v{t} offset:{L_QS+128*T}")
        A("s_waitcnt lgkmcnt(0)")
    def qk_combine(self, G):
        A = self.A
        a = vSP + 4 * G; b = vQF + 8 + 4 * (G & 1)
        for r in range(4): A(f"v_permlane32_swap_b32 v{a+r}, v{b+r}")
        for r in range(4): A(f"v_add_f32_dpp v{a+r}, v{b+r}, v{a+r} row_ror:8 row_mask:0xf bank_mask:0xf")
    def step_qk(self, G):
        A = self.A
        a = vSP + 4 * G; b = vQF + 8 + 4 * (G & 1); k = vK + 16 * G
        A(f"v_mfma_f32_16x16x32_bf16 {vr(a,4)}, {vr(k,4)}, {vr(vQF,4)}, 0")
        A(f"v_mfma_f32_16x16x32_bf16 {vr(b,4)}, {vr(k+8,4)}, {vr(vQF,4)}, 0")
        A(f"v_mfma_f32_16x16x32_bf16 {vr(a,4)}, {vr(k+4,4)}, {vr(vQF+4,4)}, {vr(a,4)}")
        A(f"v_mfma_f32_16x16x32_bf16 {vr(b,4)}, {vr(k+12,4)}, {vr(vQF+4,4)}, {vr(b,4)}")
        if G > 0:
            self.nop(4)
            self.qk_combine(G - 1)
    def step_softmax(self):
        A = self.A
        t = vTM; m = vAC2 + 2; l = vT0
        A(f"v_max3_f32 v{m}, v{vSP}, v{vSP+1}, v{vSP+2}")
        for k in range(3, 27, 2): A(f"v_max3_f32 v{m}, v{m}, v{vSP+k}, v{vSP+k+1}")
        self.qk_combine(7)
        A(f"v_max3_f32 v{m}, v{m}, v{vSP+27}, v{vSP+28}")
        A(f"v_max3_f32 v{m}, v{m}, v{vSP+29}, v{vSP+30}")
        A(f"v_max_f32 v{m}, v{m}, v{vSP+31}")
        self.swap_reduce("v_max_f32", m, t, 16)
        self.swap_reduce("v_max_f32", m, t, 32)
        A(f"s_lshl_b32 {sT0}, {sW}, 2")
        A(f"v_mov_b32 v{t+4}, {sT0}")
        A(f"v_mov_b32 v{t+5}, 0")
        A("s_mov_b64 exec, 1")
        A(f"ds_write_b32 v{t+4}, v{m} offset:{L_MX}")
        A("s_mov_b64 exec, -1")
        A("s_waitcnt lgkmcnt(0)")
        A("s_barrier")
        A(f"ds_read_b128 {vr(vBF,4)}, v{t+5} offset:{L_MX}")
        A(f"ds_read_b128 {vr(vBF+4,4)}, v{t+5} offset:{L_MX+16}")
        A("s_waitcnt lgkmcnt(0)")
        A(f"v_max3_f32 v{m}, v{vBF}, v{vBF+1}, v{vBF+2}")
        A(f"v_max3_f32 v{m}, v{m}, v{vBF+3}, v{vBF+4}")
        A(f"v_max3_f32 v{m}, v{m}, v{vBF+5}, v{vBF+6}")
        A(f"v_max_f32 v{m}, v{m}, v{vBF+7}")
        A(f"v_mul_f32 v{m}, {sC}, v{m}")
        for k in range(32): A(f"v_fma_f32 v{vSP+k}, v{vSP+k}, {sC}, -v{m}")
        for k in range(32): A(f"v_exp_f32 v{vSP+k}, v{vSP+k}")
        A(f"v_add_f32 v{l}, v{vSP}, v{vSP+1}"); A(f"v_add_f32 v{t}, v{vSP+2}, v{vSP+3}")
        for k in range(4, 32, 2):
            A(f"v_add_f32 v{l}, v{l}, v{vSP+k}"); A(f"v_add_f32 v{t}, v{t}, v{vSP+k+1}")
        A(f"v_add_f32 v{l}, v{l}, v{t}")
        self.swap_reduce("v_add_f32", l, t, 16)
        self.swap_reduce("v_add_f32", l, t, 32)
        A("s_mov_b64 exec, 1")
        A(f"ds_write_b32 v{t+4}, v{l} offset:{L_LS}")
        A("s_mov_b64 exec, -1")
        for k in range(32): A(f"v_cvt_pk_bf16_f32 v{vSP+k}, v{vSP+k}, v{vSP+k}")
        A("s_waitcnt lgkmcnt(0)")
        A("s_barrier")
        def fn():
            self.C("publish (max, sum) of this quarter")
            A(f"ds_read_b128 {vr(vBF,4)}, v{t+5} offset:{L_LS}")
            A(f"ds_read_b128 {vr(vBF+4,4)}, v{t+5} offset:{L_LS+16}")
            A(f"s_lshl_b32 {sT0}, s2, 7"); A(f"s_add_u32 {sT0}, {sT0}, {WS_MB + 8}")
            A("s_waitcnt lgkmcnt(0)")
            for k in range(1, 8): A(f"v_add_f32 v{vBF}, v{vBF}, v{vBF+k}")
            A(f"v_min_u32 v{t+1}, -2, v{vBF}")
            A(f"v_mov_b32 v{t}, v{m}")
            A("s_mov_b64 exec, 1")
            A(f"buffer_store_dwordx2 {vr(t,2)}, v{t+5}, {srd(R_WS)}, {sT0} offen sc1")
            A("s_mov_b64 exec, -1")
        self.only(GSV, fn)
    def step_pv(self, G):
        A = self.A
        base = vX if G == 0 else vK + 16 * (G - 1)
        def build(k, bset):
            for u in range(4): A(f"v_and_b32 v{vBF+4*bset+u}, v{vSP+k}, v{vM+u}")
        for r in range(4):
            k = 4 * G + r
            if k == 0: build(0, 0)
            if k + 1 < 32: build(k + 1, (k + 1) & 1)
            else: self.nop(2)
            c = "0" if k == 0 else vr(vACC, 4)
            A(f"v_mfma_f32_16x16x32_bf16 {vr(vACC,4)}, {vr(base+4*r,4)}, {vr(vBF+4*(k&1),4)}, {c}")

    WF = [vQF, vK + 16 * 7, vX, vK]
    def step_wof(self):
        A = self.A
        t = vTM
        A(f"v_lshrrev_b32 v{t}, 2, v{vI}"); A(f"v_and_b32 v{t+1}, 3, v{vI}")
        A(f"v_lshlrev_b32 v{t+1}, 3, v{t+1}")
        A(f"v_lshl_add_u32 v{t+1}, v{t}, 7, v{t+1}")
        A(f"v_lshl_add_u32 v{t+2}, v{vG}, 10, v{t+1}")
        A(f"v_add_u32 v{vOQ}, {sWOL}, v{t+2}")
        for tau in range(4):
            for T in range(4):
                for hi in range(2):
                    A(f"ds_read_b64_tr_b16 {vr(self.WF[tau]+4*T+2*hi,2)}, v{vOQ} offset:{T*4096 + hi*512 + tau*32}")
            if tau < 3: A("s_waitcnt lgkmcnt(4)")
        self.C("addresses and constants of the tail")
        A(f"v_and_b32 v{t}, 7, v{vI}")
        A(f"s_mul_i32 {sT1}, {sW}, 144"); A(f"s_add_u32 {sT1}, {sT1}, {L_OB}")
        A(f"v_lshl_add_u32 v{vOK}, v{vG}, 5, {sT1}")
        A(f"v_lshl_add_u32 v{vOK}, v{t}, 2, v{vOK}")
        A(f"v_mul_u32_u24 v{vOW}, 144, v{vI}")
        A(f"v_lshl_add_u32 v{vOW}, v{vG}, 4, v{vOW}")
        A(f"v_mov_b32 v{t+1}, 0x44444444"); A(f"v_mov_b32 v{t+2}, 0xeeeeeeee")
        A(f"v_cmp_lt_u32 vcc, 7, v{vI}")
        for k in range(16): A(f"v_mov_b32 v{vDF+k}, 0")
        A(f"v_cndmask_b32 v{vAC2+1}, v{t+1}, v{t+2}, vcc")
        A(f"v_lshrrev_b32 v{t+1}, 1, v{vG}"); A(f"v_lshlrev_b32 v{vOF}, 14, v{t+1}")
        A(f"v_and_b32 v{t+2}, 31, v{vL}"); A(f"v_lshl_add_u32 v{vOF}, v{t+2}, 2, v{vOF}")
        A(f"s_lshl_b32 {sTF}, {sW}, 15")
        A(f"s_lshl_b32 {sT1}, {sB}, 18"); A(f"s_add_u32 {sTF}, {sTF}, {sT1}")
        A(f"s_lshl_b32 {sT1}, {sH}, 9"); A(f"s_add_u32 {sTF}, {sTF}, {sT1}")
        A(f"s_lshl_b32 {sT1}, {sS}, 7"); A(f"s_add_u32 {sTF}, {sTF}, {sT1}")
        A(f"v_lshlrev_b32 v{vOD}, 4, v{vL}")
        A(f"s_lshr_b32 {sX1}, s2, 3")
        A(f"s_lshl_b32 {sTQ}, {sX1}, 14"); A(f"s_lshl_b32 {sT1}, {sW}, 11"); A(f"s_add_u32 {sTQ}, {sTQ}, {sT1}")
        A(f"s_lshl_b32 {sT1}, {sX1}, 6")
        A(f"v_lshl_add_u32 v{vT1}, v{vL}, 1, {sT1}")
        A(f"v_lshlrev_b32 v{vCR}, 2, v{t+2}")
        A(f"v_and_b32 v{t+2}, 1, v{vG}"); A(f"v_lshl_add_u32 v{t+2}, v{t+2}, 1, v{t+1}")
        A(f"v_lshl_add_u32 v{t+2}, v{t}, 2, v{t+2}")
        A(f"s_lshl_b32 {sT1}, {sW}, 7"); A(f"s_add_u32 {sT1}, {sT1}, {L_WD}")
        A(f"v_lshl_add_u32 v{vCW}, v{t+2}, 2, {sT1}")
        A(f"s_xor_b32 {sX0}, {sX1}, s2"); A(f"s_and_b32 {sX0}, {sX0}, 7")
        A(f"s_lshl_b32 {sT1}, {sW}, 8")
        A(f"v_lshl_add_u32 v{vAC2}, v{vL}, 2, {sT1}")
        A("s_waitcnt lgkmcnt(0)")
        A(f"v_mov_b32 v{vOQ}, 0")

    def st_load(self):
        A = self.A
        A(f"s_lshl_b32 {sT0}, {sB}, 7"); A(f"s_add_u32 {sT0}, {sT0}, {sFT}"); A(f"s_lshl_b32 {sT0}, {sT0}, 7")
        A(f"s_add_u32 {sT0}, {sT0}, {WS_MB + 8}")
        A(f"v_mov_b32 v{vT0}, 0")
        for k in range(4):
            if k: A(f"s_add_u32 {sT0}, {sT0}, 4096")
            A(f"buffer_load_dwordx2 {vr(vXR+2*k,2)}, v{vT0}, {srd(R_WS)}, {sT0} offen sc1")
    def step_scale(self):
        A = self.A
        t = vTM; s = vXR
        def fn():
            self.C("g * exp2(m_own - M) / L from the statistics of the four quarters")
            ok = self.label("stok"); sp = self.label("stspin")
            A(f"v_mov_b32 v{t+3}, 0")
            A(f"ds_read_b32 v{t+2}, v{t+3} offset:{L_GS}")
            A(f"s_mov_b32 {sCNT}, 0")
            self.L(sp)
            A(f"v_max3_u32 v{t}, v{s+1}, v{s+3}, v{s+5}")
            A(f"v_max_u32 v{t}, v{t}, v{s+7}")
            A(f"v_cmp_eq_u32 vcc, -1, v{t}")
            A(f"s_cbranch_vccz {ok}")
            self.st_load()
            A(f"s_add_u32 {sCNT}, {sCNT}, 1")
            A(f"s_cmp_lt_u32 {sCNT}, {SPIN}")
            A("s_waitcnt vmcnt(0)")
            A(f"s_cbranch_scc1 {sp}")
            self.L(ok)
            A(f"v_max3_f32 v{t}, v{s}, v{s+2}, v{s+4}")
            A(f"v_max_f32 v{t}, v{t}, v{s+6}")
            for k in range(4): A(f"v_sub_f32 v{s+2*k}, v{s+2*k}, v{t}")
            A(f"v_sub_f32 v{t+1}, v{vAC2+2}, v{t}")
            for k in range(4): A(f"v_exp_f32 v{s+2*k}, v{s+2*k}")
            A(f"v_exp_f32 v{t+1}, v{t+1}")
            A(f"v_mul_f32 v{t}, v{s}, v{s+1}")
            for k in range(1, 4): A(f"v_fmac_f32 v{t}, v{s+2*k}, v{s+2*k+1}")
            A(f"v_rcp_f32 v{t}, v{t}")
            A("s_waitcnt lgkmcnt(0)")
            A(f"v_mul_f32 v{t+1}, v{t+2}, v{t+1}")
            A(f"v_mul_f32 v{t}, v{t}, v{t+1}")
            A(f"ds_write_b32 v{t+3}, v{t} offset:{L_FS}")
        self.only(SVC, fn)

    def step_tail(self):
        A = self.A
        t = vTM; af = vSP
        self.lanes(0x00ff00ff, 0x00ff00ff)
        self.nop(6)
        A(f"v_cvt_pk_bf16_f32 v{t}, v{vACC}, v{vACC+1}")
        A(f"v_cvt_pk_bf16_f32 v{t+1}, v{vACC+2}, v{vACC+3}")
        A(f"ds_write_b32 v{vOK}, v{t}")
        A(f"ds_write_b32 v{vOK}, v{t+1} offset:{8*144}")
        A("s_mov_b64 exec, -1")
        A("s_waitcnt lgkmcnt(0)")
        A("s_barrier")
        self.C("16 rows = 8 wave partials x 2 halves of every group of four k : dense data in 2:4 form")
        for T in range(2): A(f"ds_read_b128 {vr(af+4*T,4)}, v{vOW} offset:{L_OB + 64*T}")
        A(f"ds_read_b32 v{t+4}, v{vOQ} offset:{L_FS}")
        A(f"ds_read_b32 v{vAC2+3}, v{vAC2} offset:{L_YF}")
        for T in range(2):
            self.lgkm(3 - T)
            for tau in range(4):
                A(f"v_smfmac_f32_16x16x64_bf16 {vr(vDF+4*tau,4)}, {vr(af+4*T,4)}, {vr(self.WF[tau]+8*T,8)}, v{vAC2+1}")
        A("s_waitcnt lgkmcnt(0)")
        self.nop(6)
        for tau in range(4):
            d = vDF + 4 * tau
            A(f"v_add_f32 v{d}, v{d}, v{d+1}"); A(f"v_add_f32 v{d+2}, v{d+2}, v{d+3}")
            A(f"v_add_f32 v{d}, v{d}, v{d+2}")
        self.nop(1)
        A(f"v_permlane16_swap_b32 v{vDF}, v{vDF+4}")
        A(f"v_permlane16_swap_b32 v{vDF+8}, v{vDF+12}")
        self.nop(1)
        A(f"v_add_f32 v{vDF}, v{vDF}, v{vDF+4}")
        A(f"v_add_f32 v{vDF+8}, v{vDF+8}, v{vDF+12}")
        self.nop(2)
        A(f"v_permlane32_swap_b32 v{vDF}, v{vDF+8}")
        self.nop(1)
        A(f"v_add_f32 v{t}, v{vDF}, v{vDF+8}")
        A(f"v_fma_f32 v{t}, v{t}, v{t+4}, v{vAC2+3}")
        A(f"v_min_u32 v{t}, -2, v{t}")
        self.nop(2)
        for k in range(1, 4):
            A(f"v_mov_b32_dpp v{t+k}, v{t} quad_perm:[{k},{k},{k},{k}] row_mask:0xf bank_mask:0xf")
        self.lanes(0x11111111, 0x11111111)
        A(f"buffer_store_dwordx4 {vr(t,4)}, v{vOF}, {srd(R_WS)}, {sTF} offen sc1")
        A("s_mov_b64 exec, -1")

    def consumer(self):
        A = self.A
        y = vSP; t = vTM + 4
        sp = self.label("yspin"); ok = self.label("yok"); fast = self.label("yfast")
        mA, mB = "s[52:53]", "s[54:55]"
        def masks():
            A(f"v_max3_u32 v{t}, v{y}, v{y+1}, v{y+2}")
            A(f"v_max3_u32 v{t+1}, v{y+4}, v{y+5}, v{y+6}")
            A(f"v_max_u32 v{t}, v{t}, v{y+3}")
            A(f"v_max_u32 v{t+1}, v{t+1}, v{y+7}")
            A(f"v_cmp_eq_u32 {mA}, -1, v{t}")
            A(f"v_cmp_eq_u32 {mB}, -1, v{t+1}")
        def loads():
            la = self.label("ya"); lb = self.label("yb")
            A(f"s_mov_b64 exec, {mA}")
            A(f"s_cbranch_execz {la}")
            A(f"buffer_load_dwordx4 {vr(y,4)}, v{vOD}, {srd(R_WS)}, {sTQ} offen sc1")
            self.L(la)
            A(f"s_mov_b64 exec, {mB}")
            A(f"s_cbranch_execz {lb}")
            A(f"buffer_load_dwordx4 {vr(y+4,4)}, v{vOD}, {srd(R_WS)}, {sTQ} offen offset:1024 sc1")
            self.L(lb)
            A("s_mov_b64 exec, -1")
        self.C("lanes keep a partial once it is valid; only the missing ones are read again")
        A(f"s_mov_b64 {mA}, -1"); A(f"s_mov_b64 {mB}, -1")
        A(f"s_mov_b32 {sCNT}, 0")
        self.L(sp)
        loads()
        A(f"s_add_u32 {sCNT}, {sCNT}, 1")
        A("s_waitcnt vmcnt(0)")
        masks()
        A(f"s_cmp_ge_u32 {sCNT}, {SPIN}"); A(f"s_cbranch_scc1 {ok}")
        A(f"s_bcnt1_i32_b64 {sT0}, {mA}"); A(f"s_bcnt1_i32_b64 {sT1}, {mB}")
        A(f"s_add_u32 {sT0}, {sT0}, {sT1}")
        A(f"s_cmp_gt_u32 {sT0}, {self.cthr}"); A(f"s_cbranch_scc1 {sp}")
        self.L(fast)
        A(f"s_or_b64 vcc, {mA}, {mB}")
        A(f"s_cbranch_vccz {ok}")
        loads()
        A(f"s_add_u32 {sCNT}, {sCNT}, 1")
        A(f"s_waitcnt vmcnt({self.depth})")
        masks()
        A(f"s_cmp_lt_u32 {sCNT}, {SPIN}"); A(f"s_cbranch_scc1 {fast}")
        self.L(ok)
        for k in range(4): A(f"v_add_f32 v{y+8+k}, v{y+k}, v{y+4+k}")
        y = y + 8
        self.nop(1)
        A(f"v_permlane32_swap_b32 v{y}, v{y+1}"); A(f"v_permlane32_swap_b32 v{y+2}, v{y+3}")
        self.nop(1)
        A(f"v_add_f32 v{y}, v{y}, v{y+1}"); A(f"v_add_f32 v{y+2}, v{y+2}, v{y+3}")
        self.nop(2)
        A(f"v_permlane16_swap_b32 v{y}, v{y+2}")
        self.nop(1)
        A(f"v_add_f32 v{y}, v{y}, v{y+2}")
        self.dpp_add(y, "row_ror:8")
        A(f"ds_write_b32 v{vCW}, v{y}")
        A("s_waitcnt lgkmcnt(0)")
        A("s_barrier")
        A(f"s_cmp_lg_u32 {sW}, 0"); A("s_cbranch_scc1 L_end")
        for w in range(8): A(f"ds_read_b32 v{y+w}, v{vCR} offset:{L_WD + 128*w}")
        self.lgkm(4)
        A(f"v_add_f32 v{y}, v{y}, v{y+1}"); A(f"v_add_f32 v{y+2}, v{y+2}, v{y+3}")
        A("s_waitcnt lgkmcnt(0)")
        A(f"v_add_f32 v{y+4}, v{y+4}, v{y+5}"); A(f"v_add_f32 v{y+6}, v{y+6}, v{y+7}")
        A(f"v_add_f32 v{y}, v{y}, v{y+2}"); A(f"v_add_f32 v{y+4}, v{y+4}, v{y+6}")
        A(f"v_add_f32 v{y}, v{y}, v{y+4}")
        A(f"v_cvt_pk_bf16_f32 v{y}, v{y}, v{y}")
        A("s_mov_b32 exec_hi, 0")
        A(f"global_store_short v{vT1}, v{y}, s[{P_OUT}:{P_OUT+1}]")

    def steps(self, idx):
        S = []
        def add(name, needs, fn): S.append(dict(name=name, needs=needs, fn=fn))
        add("gate0", [], self.step_gate0)
        pts = list(self.hs_pts)
        evs = [(idx[p], f"hs{k}", [p], (lambda k=k: self.step_hs(k, k == len(pts) - 1))) for k, p in enumerate(pts)]
        evs.append((idx["K1_0"] + 0.5, "gate", ["@gate0"], self.step_gate))
        for _, n, nd, fn in sorted(evs, key=lambda e: e[0]): add(n, nd, fn)
        add("join", [f"@hs{len(pts)-1}", self.q_at], self.step_qsvc)
        add("qred", [], self.step_qred)
        for G in range(8): add(f"qk{G}", [f"K{G}_3"], lambda G=G: self.step_qk(G))
        add("fl", [], lambda: self.only(SVC, self.fl_load))
        add("softmax", ["wd1"], self.step_softmax)
        placed = False
        for G in range(8):
            if G == 7: add("scale", ["@st0"], self.step_scale)
            if not placed and G >= 5 and idx[f"V{G}_3"] > idx["wo15"]:
                add("wof", ["wo15"], self.step_wof); placed = True
            add(f"pv{G}", [f"V{G}_3"], lambda G=G: self.step_pv(G))
            if f"pv{G}" == self.fga_pos: add("fga", ["@fl"], self.step_fga)
            if f"pv{G}" == self.st_pos: add("st0", [], lambda: self.only(SVC, self.st_load))
            if f"pv{G}" == self.ffn_pos: add("ffn2", ["@fga"], self.step_ffn2)
        nm = [s["name"] for s in S]
        assert placed and nm.index("pv3") < nm.index("ffn2") < nm.index("wof")
        add("tail", [], self.step_tail)
        return S

    def schedule(self):
        items = self.items()
        idx = {it["name"]: n for n, it in enumerate(items)}
        issued = 4 + self.npre
        assert all(it["name"][0] == "K" for it in items[:issued])
        comp = -1; done = set(); pos = -1; after = {}; W = self.W
        for st in self.steps(idx):
            need = max([after[n[1:]] if n[0] == "@" else idx[n] for n in st["needs"]], default=-1)
            pos = max(pos, need)
            def issue(w):
                nonlocal issued, comp
                while issued < len(items):
                    it = items[issued]
                    if issued > pos + w - 1: break
                    if it["dep"] and it["dep"] not in done:
                        assert issued > need, (st["name"], it["name"])
                        break
                    if issued - (comp + 1) >= w:
                        self.A(f"s_waitcnt vmcnt({w-1})"); comp = issued - w
                    it["fn"](); issued += 1
            if st["name"] != "qred": issue(W)
            if comp < need:
                self.A(f"s_waitcnt vmcnt({issued-1-need})"); comp = need
            if st["name"] == "join":
                issue(W + self.boost_q); W = self.W2
            if st["name"] in self.boosts: issue(W + self.boosts[st["name"]])
            self.o.append(f"    ; ---- {st['name']}")
            st["fn"](); done.add(st["name"])
            after[st["name"]] = issued
            if st["name"] in ("qred", "pv7", "tail"): self.stamp({"qred": 1, "pv7": 2, "tail": 3}[st["name"]])
        assert issued == len(items)

    def build(self):
        A = self.A
        K1 = NAME + "_kernel"
        o = self.o
        o.append(HEADER.rstrip("\n"))
        o.append(f"; @launch grid=(256,1,1) block=(512,1,1) lds={LDS_BYTES}")
        o += ['.amdgcn_target "amdgcn-amd-amdhsa--gfx950"', ".text", f".globl {K1}", ".p2align 8",
              f".type {K1},@function", f"{K1}:"]
        self.phase0()
        self.schedule()
        self.C("32 workgroups (one per batch and 32-column group) sum the 128 rows of their batch")
        A(f"s_cmp_lg_u32 {sX0}, 0"); A(f"s_cbranch_scc1 {'L_stamp' if self.stamps else 'L_end'}")
        self.consumer()
        if self.stamps:
            self.L("L_stamp")
            A(f"s_cmp_lg_u32 {sW}, 0"); A("s_cbranch_scc1 L_end")
            self.stamp(4)
            A("s_mov_b64 exec, 1")
            A("s_waitcnt lgkmcnt(0)")
            A(f"s_add_u32 s40, s40, {STAMP_OFF}"); A("s_addc_u32 s41, s41, 0")
            A("s_lshl_b32 s8, s2, 6"); A("v_mov_b32 v1, s8")
            for k in range(4):
                A(f"v_mov_b32 v{8+2*k}, s{sST+2*k}"); A(f"v_mov_b32 v{9+2*k}, s{sST+2*k+1}")
            A(f"v_mov_b32 v16, {sXCC}"); A("v_mov_b32 v17, 0")
            A(f"v_mov_b32 v18, s{sST+8}"); A(f"v_mov_b32 v19, s{sST+9}")
            A("global_store_dwordx4 v1, v[8:11], s[40:41]")
            A("global_store_dwordx4 v1, v[12:15], s[40:41] offset:16")
            A("global_store_dwordx4 v1, v[16:19], s[40:41] offset:32")
        self.L("L_end"); A("s_endpgm")
        o += ['.section .rodata,"a"', ".p2align 6", f".amdhsa_kernel {K1}", "  .amdhsa_next_free_vgpr 256",
              "  .amdhsa_next_free_sgpr 102", "  .amdhsa_accum_offset 256", "  .amdhsa_group_segment_fixed_size 0",
              "  .amdhsa_kernarg_size 104", "  .amdhsa_user_sgpr_count 2", "  .amdhsa_user_sgpr_kernarg_segment_ptr 1",
              "  .amdhsa_system_sgpr_workgroup_id_x 1", ".end_amdhsa_kernel"]
        return "\n".join(o) + "\n"

if __name__ == "__main__":
    import argparse, json
    ap = argparse.ArgumentParser()
    ap.add_argument("out"); ap.add_argument("--opt", default="{}")
    a = ap.parse_args()
    open(a.out, "w").write(Gen(**json.loads(a.opt)).build())
```

```python
import sys, struct, math

NAME = "gated_mix__mha_block_cached__geglu_ffn__decode"
HEADER = open("cdna_kernels/" + NAME + ".s.ref").read().split("; Override launch")[0]

def f32(x):
    return "0x%08x" % struct.unpack("<I", struct.pack("<f", x))[0]

L_QS = 0
L_HS = 256
L_GS = 320
L_FS = 336
L_MX = 384
L_LS = 448
L_OB = 512
L_YF = 3072
L_WD = 5120
L_WO = L_WD + 16384
LDS_BYTES = L_WO + 131072

WS_A = 0
WS_MB = 0x11000
WS_Q = 0x19000
WS_F = WS_Q + 0x40000
WS_BYTES = WS_F + 176 * 1024
STAMP_OFF = 128 << 20
SPIN = "0x4000"

sW = "s3"
P_X, P_K, P_V, P_WQ, P_WO, P_WG, P_WU = 16, 18, 20, 22, 24, 28, 30
P_WD, P_GW, P_OUT, P_DBG, P_WS = 32, 34, 36, 38, 40
R_K, R_V, R_WQ, R_WO, R_X, R_GW, R_FT, R_WD, R_WS = 44, 48, 52, 56, 60, 64, 68, 76, 80
sH, sB, sS, sSL, sT0, sT1, sT2 = "s4", "s5", "s6", "s7", "s8", "s9", "s10"
sTK, sTV, sTQ, sTF, sTD = "s11", "s12", "s13", "s14", "s15"
sX0, sX1 = "s42", "s43"
sARR, sMB = "s42", "s43"
sJ, sFT, sROT, sTI = "s72", "s73", "s74", "s75"
sWOL, sWDL = "s84", "s85"
sDUP0, sDUP1 = "s86", "s87"
sGO, sDONE = "s86", "s87"
sC, sCNT, sXCC, sBH = "s88", "s89", "s90", "s91"
sST = 92
def srd(r): return f"s[{r}:{r+3}]"

vL, vI, vG = 1, 2, 3
vOK, vOV, vOQ, vOW, vOF, vOD, vT0, vT1 = 4, 5, 6, 7, 8, 9, 10, 11
vM = 12
vXR = 16
vBF = 24
vACC = 32
vAC2 = 36
vQF = 40
vSP = 56
vDF = 88
vTM = 104
vFL = 111
vK = 112
vX = 240
vFG = vDF + 8
vFD = vK + 16
def vr(a, n): return f"v[{a}:{a+n-1}]"

HS, PUB, GSV, SVC = 0, 1, 2, 3

class Gen:
    def __init__(self, W=10, W2=12, boost_q=4, boosts=None, npre=4, q_at="K5_3", hs_pts=("K0_1", "K2_3", "K3_1", "K3_3"),
                 dma=(0, 0, 1, 1, 2, 1, 2, 1, 2, 1, 2, 1, 2, 2, 0, 0), xmap="0xf5f43210", nx=6,
                 fga_pos="pv1", st_pos="pv3", ffn_pos="pv3", stamps=False, gperm=(0,1,2,3,4,5,6,7), rotmul=1, astride=256):
        self.__dict__.update(locals())
        self.boosts = boosts if boosts is not None else {"softmax": 6, "wof": 4}
        assert sum(dma) == 18
        self.o = []; self.lab = 0
    def A(self, s): self.o.append("    " + s)
    def C(self, s): self.o.append("    ; " + s)
    def L(self, s): self.o.append(s + ":")
    def nop(self, n):
        while n > 0:
            k = min(n, 16); self.A(f"s_nop {k-1}"); n -= k
    def label(self, p):
        self.lab += 1; return f"L_{p}_{self.lab}"
    def stamp(self, k):
        if self.stamps: self.A(f"s_memrealtime s[{sST+2*k}:{sST+2*k+1}]")
    def lgkm(self, n): self.A(f"s_waitcnt lgkmcnt({0 if self.stamps else n})")
    def only(self, w, fn):
        sk = self.label("skip")
        self.A(f"s_cmp_lg_u32 {sW}, {w}"); self.A(f"s_cbranch_scc1 {sk}")
        fn()
        self.L(sk)
    def lanes(self, lo, hi):
        self.A(f"s_mov_b32 exec_lo, {lo:#x}"); self.A(f"s_mov_b32 exec_hi, {hi:#x}")
    def swap_reduce(self, op, v, tmp, which):
        A = self.A
        A(f"v_mov_b32 v{tmp}, v{v}")
        self.nop(2)
        A(f"v_permlane{which}_swap_b32 v{v}, v{tmp}")
        self.nop(1)
        A(f"{op} v{v}, v{v}, v{tmp}")
    def dpp_add(self, v, ctl):
        self.nop(2)
        self.A(f"v_add_f32_dpp v{v}, v{v}, v{v} {ctl} row_mask:0xf bank_mask:0xf")
    def mk(self, r, p, off, size):
        A = self.A
        if off is None:
            A(f"s_mov_b32 s{r}, s{p}"); A(f"s_mov_b32 s{r+1}, s{p+1}")
        else:
            A(f"s_add_u32 s{r}, s{p}, {off}"); A(f"s_addc_u32 s{r+1}, s{p+1}, 0")
        if size is not None: A(f"s_mov_b32 s{r+2}, {size}")
        A(f"s_mov_b32 s{r+3}, 0x20000")

    def kv_load(self, kind, G, t):
        A = self.A
        st = sTK if kind == "K" else sTV
        if t == 0: A(f"s_xor_b32 {st}, {sROT}, {self.gperm[G] << 15}")
        if kind == "K":
            A(f"buffer_load_dwordx4 {vr(vK+16*G+4*t,4)}, v{vOK}, {srd(R_K)}, {st} offen offset:{(t>>1)*2048 + (t&1)*128} nt")
        else:
            dst = vX if G == 0 else vK + 16 * (G - 1)
            A(f"buffer_load_dwordx4 {vr(dst+4*t,4)}, v{vOV}, {srd(R_V)}, {st} offen offset:{256*t} nt")

    def bsel(self, src, half, bset):
        A = self.A
        t = vTM + 4 + bset
        A(f"v_perm_b32 v{t}, v{src}, v{src}, {sDUP1 if half else sDUP0}")
        for u in range(4): A(f"v_and_b32 v{vBF+4*bset+u}, v{t}, v{vM+u}")

    def phase0(self):
        A = self.A
        A("s_cmp_ge_u32 s2, 256")
        A("s_cbranch_scc1 L_end")
        A("s_load_dwordx16 s[16:31], s[0:1], 0")
        A("s_load_dwordx8 s[32:39], s[0:1], 64")
        A("s_load_dwordx2 s[40:41], s[0:1], 96")
        self.stamp(0)
        A("v_lshrrev_b32 v10, 6, v0")
        A(f"v_and_b32 v{vI}, 15, v0")
        A(f"v_readfirstlane_b32 {sW}, v10")
        A(f"v_bfe_u32 v{vG}, v0, 4, 2")
        self.C("wg = (j*4 + hq)*8 + x ; h = 4x + hq ; j = 4b + s   (x = XCD under round-robin placement: speed only)")
        A(f"s_and_b32 {sT0}, s2, 7")
        A(f"s_lshr_b32 {sT1}, s2, 3")
        A(f"s_and_b32 {sT2}, {sT1}, 3")
        A(f"s_lshl_b32 {sH}, {sT0}, 2")
        A(f"s_add_u32 {sH}, {sH}, {sT2}")
        A(f"s_lshr_b32 {sJ}, {sT1}, 2")
        A(f"s_and_b32 {sFT}, s2, 31")
        self.C("FFN work goes to the workgroups whose x has a rank (nibble table, 15 = none)")
        A(f"s_lshl_b32 {sCNT}, {sT0}, 2"); A(f"s_lshr_b32 {sCNT}, {self.xmap}, {sCNT}"); A(f"s_and_b32 {sCNT}, {sCNT}, 15")
        A(f"s_mul_i32 {sTI}, {sT2}, {self.nx}"); A(f"s_add_u32 {sTI}, {sTI}, {sCNT}")
        A(f"s_cmp_eq_u32 {sCNT}, 15"); A(f"s_cselect_b32 {sTI}, 31, {sTI}")
        A(f"s_lshl_b32 {sTK}, {sJ}, 3"); A(f"s_add_u32 {sTK}, {sTK}, {sW}")
        A(f"s_lshl_b32 {sTV}, {sTK}, 4")
        A(f"s_lshl_b32 {sX0}, {sTK}, 16"); A(f"s_lshl_b32 {sTQ}, {sH}, 8"); A(f"s_add_u32 {sX0}, {sX0}, {sTQ}")
        A(f"s_cmp_ge_u32 {sTI}, 11")
        A(f"s_cselect_b32 {sX1}, 11, 0")
        A(f"s_sub_u32 {sX1}, {sTI}, {sX1}")
        A(f"s_lshl_b32 {sX1}, {sX1}, 8")
        A(f"s_mul_i32 {sTK}, {sTK}, {8*2752}")
        A(f"s_add_u32 {sX1}, {sX1}, {sTK}")
        A(f"s_sub_u32 s{R_FT+2}, {512*2752}, {sX1}")
        A(f"s_cmp_lt_u32 {sTI}, 22")
        A(f"s_cselect_b32 s{R_FT+2}, s{R_FT+2}, 0")
        A(f"s_cselect_b32 {sX1}, {sX1}, 0")
        A(f"s_mov_b32 s{R_FT+3}, 0x20000")
        A(f"s_mov_b32 s{R_X+2}, 2048"); A(f"s_mov_b32 s{R_X+3}, 0x20000")
        A(f"s_mov_b32 s{R_WQ+2}, {7*8192+256}"); A(f"s_mov_b32 s{R_WQ+3}, 0x20000")
        A(f"s_movk_i32 {sTQ}, 8192")
        A(f"v_lshrrev_b32 v{vT0}, 3, v{vI}")
        A(f"v_lshlrev_b32 v{vT0}, 10, v{vT0}")
        A(f"v_lshl_add_u32 v{vT0}, v{vG}, 2, v{vT0}")
        A(f"v_lshlrev_b32 v{vT1}, 4, v{vI}")
        A(f"v_lshl_add_u32 v{vOQ}, v{vG}, 14, v{vT1}")
        A(f"v_mul_u32_u24 v{vOF}, {2*2752}, v{vG}")
        A(f"v_add_u32 v{vOF}, v{vOF}, v{vT1}")
        A(f"s_cmp_ge_u32 {sTI}, 11")
        A("s_waitcnt lgkmcnt(0)")
        self.C("projection tiles: rows 64j + 8w + 2g + t of wq (128 columns of head h) and of w_gate / w_up (one 128-column block)")
        A(f"s_cselect_b32 s{R_FT}, s{P_WU}, s{P_WG}"); A(f"s_cselect_b32 s{R_FT+1}, s{P_WU+1}, s{P_WG+1}")
        A(f"s_add_u32 s{R_WQ}, s{P_WQ}, {sX0}"); A(f"s_addc_u32 s{R_WQ+1}, s{P_WQ+1}, 0")
        A(f"buffer_load_dwordx4 {vr(vDF,4)}, v{vOQ}, {srd(R_WQ)}, 0 offen nt")
        A(f"buffer_load_dwordx4 {vr(vDF+4,4)}, v{vOQ}, {srd(R_WQ)}, {sTQ} offen nt")
        A(f"s_add_u32 s{R_FT}, s{R_FT}, {sX1}"); A(f"s_addc_u32 s{R_FT+1}, s{R_FT+1}, 0")
        A(f"buffer_load_dwordx4 {vr(vDF+8,4)}, v{vOF}, {srd(R_FT)}, 0 offen nt")
        A(f"buffer_load_dwordx4 {vr(vDF+12,4)}, v{vOF}, {srd(R_FT)}, 0 offen offset:2752 nt")
        A(f"s_mov_b32 s{R_X}, s{P_X}"); A(f"s_mov_b32 s{R_X+1}, s{P_X+1}")
        A(f"buffer_load_dword v{vXR}, v{vT0}, {srd(R_X)}, {sTV} offen")
        self.mk(R_WS, P_WS, None, WS_BYTES)
        def clear():
            self.C("invalidate the hand-off slots this workgroup is responsible for")
            c = vQF
            for k in range(4): A(f"v_mov_b32 v{c+k}, -1")
            A(f"v_and_b32 v{c+4}, 63, v0"); A(f"v_lshlrev_b32 v{c+4}, 4, v{c+4}")
            A(f"s_lshl_b32 {sTD}, {sH}, 3"); A(f"s_add_u32 {sTD}, {sTD}, {sJ}"); A(f"s_lshl_b32 {sTD}, {sTD}, 10")
            A(f"s_add_u32 {sTD}, {sTD}, {WS_Q}")
            A(f"buffer_store_dwordx4 {vr(c,4)}, v{c+4}, {srd(R_WS)}, {sTD} offen sc1")
            A(f"s_lshl_b32 {sTD}, {sTI}, 3"); A(f"s_add_u32 {sTD}, {sTD}, {sJ}"); A(f"s_lshl_b32 {sTD}, {sTD}, 10")
            A(f"s_add_u32 {sTD}, {sTD}, {WS_F}")
            A(f"buffer_store_dwordx4 {vr(c,4)}, v{c+4}, {srd(R_WS)}, {sTD} offen sc1")
            self.lanes(0xff, 0)
            A(f"s_lshl_b32 {sTD}, s2, 7"); A(f"s_add_u32 {sTD}, {sTD}, {WS_MB}")
            A(f"buffer_store_dwordx4 {vr(c,4)}, v{c+4}, {srd(R_WS)}, {sTD} offen sc1")
            for k in range(4): A(f"v_mov_b32 v{c+8+k}, 0")
            A(f"s_mul_i32 {sTD}, s2, {self.astride}")
            if self.astride == 64: self.lanes(0xf, 0)
            A(f"s_cmp_lt_u32 s2, 128"); A(f"s_cselect_b32 {sTD}, {sTD}, {4 << 20}")
            A(f"buffer_store_dwordx4 {vr(c+8,4)}, v{c+4}, {srd(R_WS)}, {sTD} offen sc1")
            A("s_mov_b64 exec, -1")
        self.only(HS, clear)
        self.C("everything else while those fly")
        A(f"v_and_b32 v{vL}, 63, v0")
        A(f"s_lshr_b32 {sB}, {sJ}, 2")
        A(f"s_and_b32 {sS}, {sJ}, 3")
        A(f"s_lshl_b32 {sBH}, {sB}, 5"); A(f"s_add_u32 {sBH}, {sBH}, {sH}")
        A(f"v_and_b32 v{vOK}, 7, v0")
        A(f"v_lshlrev_b32 v{vOK}, 8, v{vOK}")
        A(f"v_lshl_add_u32 v{vOK}, v{vG}, 4, v{vOK}")
        A(f"v_and_b32 v{vOV}, 8, v0")
        A(f"v_lshl_add_u32 v{vOK}, v{vOV}, 3, v{vOK}")
        A(f"v_lshl_add_u32 v{vOV}, v{vG}, 10, v{vT1}")
        A(f"s_lshl_b32 {sTK}, {sBH}, 20")
        A(f"s_lshl_b32 {sTV}, {sS}, 18"); A(f"s_add_u32 {sTK}, {sTK}, {sTV}")
        A(f"s_lshl_b32 {sTV}, {sW}, 12"); A(f"s_add_u32 {sTK}, {sTK}, {sTV}")
        self.mk(R_K, P_K, sTK, (7 << 15) + 4096)
        self.mk(R_V, P_V, sTK, (7 << 15) + 4096)
        if self.rotmul == 1: A(f"s_lshl_b32 {sROT}, {sJ}, 15")
        else:
            A(f"s_mul_i32 {sROT}, {sJ}, {self.rotmul}"); A(f"s_and_b32 {sROT}, {sROT}, 7"); A(f"s_lshl_b32 {sROT}, {sROT}, 15")
        self.mk(R_GW, P_GW, None, 1024)
        per = -(-86 // self.nx)
        A(f"s_and_b32 {sT1}, {sT1}, 15")
        A(f"s_mul_i32 {sSL}, {sCNT}, {per}")
        A(f"s_add_u32 {sSL}, {sSL}, {sT1}")
        A(f"s_cmp_lt_u32 {sT1}, {per}")
        A(f"s_cselect_b32 {sSL}, {sSL}, 1000")
        A(f"s_cmp_lt_u32 {sSL}, 86")
        A(f"s_cselect_b32 s{R_WD+2}, {15*1024+128}, 0")
        A(f"s_cselect_b32 {sSL}, {sSL}, 0")
        A(f"s_lshl_b32 {sT0}, {sSL}, 14"); A(f"s_lshl_b32 {sT1}, {sW}, 7"); A(f"s_add_u32 {sT0}, {sT0}, {sT1}")
        self.mk(R_WD, P_WD, sT0, None)
        A(f"s_lshl_b32 {sT0}, {sH}, 17"); A(f"s_add_u32 {sT0}, {sT0}, {sT1}")
        self.mk(R_WO, P_WO, sT0, 127 * 1024 + 128)
        A(f"v_lshlrev_b32 v{vT1}, 4, v{vL}")
        t = vTM + 4
        A(f"v_and_b32 v{t}, 7, v{vL}")
        A(f"v_lshlrev_b32 v{t}, 4, v{t}")
        A(f"v_lshrrev_b32 v{t+1}, 3, v{vL}")
        A(f"v_lshl_add_u32 v{vOD}, v{t+1}, 10, v{t}")
        A(f"v_and_b32 v{t+2}, 3, v{t+1}")
        A(f"v_lshlrev_b32 v{t+2}, 3, v{t+2}")
        A(f"v_lshrrev_b32 v{t+1}, 2, v{t+1}")
        A(f"v_add_u32 v{t+1}, v{t+1}, v{t+2}")
        A(f"v_lshl_add_u32 v{vOW}, v{t+1}, 10, v{t}")
        A(f"s_lshl_b32 {sWOL}, {sW}, 14"); A(f"s_add_u32 {sWOL}, {sWOL}, {L_WO}")
        A(f"s_lshl_b32 {sWDL}, {sW}, 11"); A(f"s_add_u32 {sWDL}, {sWDL}, {L_WD}")
        self.C("selection masks: e = i&7 ; M_u = (e>>1)==u ? (e&1 ? 0xffff0000 : 0xffff) : 0")
        A(f"v_and_b32 v{t}, 1, v{vI}")
        A(f"v_lshlrev_b32 v{t}, 4, v{t}")
        A(f"v_mov_b32 v{t+1}, 0xffff")
        A(f"v_lshlrev_b32 v{t+1}, v{t}, v{t+1}")
        A(f"v_bfe_u32 v{t}, v{vI}, 1, 2")
        for u in range(4):
            A(f"v_cmp_eq_u32 vcc, {u}, v{t}")
            self.nop(2)
            A(f"v_cndmask_b32 v{vM+u}, 0, v{t+1}, vcc")
        A(f"s_mov_b32 {sDUP0}, 0x01000100"); A(f"s_mov_b32 {sDUP1}, 0x03020302")
        A(f"s_mov_b32 {sC}, {f32(math.log2(math.e) / math.sqrt(128.0))}")
        if self.stamps: A(f"s_getreg_b32 {sXCC}, hwreg(HW_REG_XCC_ID)")
        A(f"s_add_u32 {sT0}, {sWOL}, {14*1024}")
        A(f"v_lshl_add_u32 v{vT0}, v{vL}, 4, {sT0}")
        self.only(HS, lambda: A("s_waitcnt vmcnt(0)"))
        for t in range(4):
            A(f"s_waitcnt vmcnt({[3,2,2,3][t]})")
            self.kv_load("K", 0, t)
        for n in range(self.npre): self.kv_load("K", 1 + n // 4, n % 4)
        self.bsel(vXR, 0, 0); self.bsel(vXR, 1, 1)
        self.nop(1)
        A(f"v_mfma_f32_16x16x32_bf16 {vr(vACC,4)}, {vr(vDF,4)}, {vr(vBF,4)}, 0")
        A(f"v_mfma_f32_16x16x32_bf16 {vr(vAC2,4)}, {vr(vDF+8,4)}, {vr(vBF,4)}, 0")
        A(f"v_mfma_f32_16x16x32_bf16 {vr(vACC,4)}, {vr(vDF+4,4)}, {vr(vBF+4,4)}, {vr(vACC,4)}")
        A(f"v_mfma_f32_16x16x32_bf16 {vr(vAC2,4)}, {vr(vDF+12,4)}, {vr(vBF+4,4)}, {vr(vAC2,4)}")
        self.nop(8)
        A(f"ds_write_b128 v{vT0}, {vr(vACC,4)}")
        A(f"ds_write_b128 v{vT0}, {vr(vAC2,4)} offset:1024")
        A("s_waitcnt lgkmcnt(0)")
        def arrive():
            self.C("this workgroup's slots are invalid now: count it in at its head's counter")
            A(f"s_lshl_b32 {sTF}, {sFT}, 3"); A(f"s_mov_b32 {sARR}, 1")
            A(f"s_atomic_add {sARR}, s[{P_DBG}:{P_DBG+1}], {sTF} glc")
        self.only(HS, arrive)
        A("s_barrier")
        def publish():
            d = vSP; d2 = vK + 96
            A(f"v_add_u32 v{vT0}, {L_WO + 14*1024}, v{vT1}")
            A(f"v_add_u32 v{vTM}, 0x10000, v{vT0}")
            for w in range(8): A(f"ds_read_b128 {vr(d+4*w,4)}, v{vT0 if w < 4 else vTM} offset:{16384*(w&3)}")
            for w in range(4): A(f"ds_read_b128 {vr(d2+4*w,4)}, v{vT0} offset:{1024+16384*w}")
            A(f"s_lshl_b32 {sT0}, {sH}, 3"); A(f"s_add_u32 {sT0}, {sT0}, {sJ}"); A(f"s_lshl_b32 {sT0}, {sT0}, 10")
            A(f"s_add_u32 {sT0}, {sT0}, {WS_Q}")
            A(f"s_lshl_b32 {sT1}, {sTI}, 3"); A(f"s_add_u32 {sT1}, {sT1}, {sJ}"); A(f"s_lshl_b32 {sT1}, {sT1}, 10")
            A(f"s_add_u32 {sT1}, {sT1}, {WS_F}")
            self.lgkm(4)
            for w in range(4, 8): A(f"ds_read_b128 {vr(d2+4*w,4)}, v{vTM} offset:{1024+16384*(w&3)}")
            for w in range(1, 8):
                for r in range(4): A(f"v_add_f32 v{d+r}, v{d+r}, v{d+4*w+r}")
            for r in range(4): A(f"v_min_u32 v{d+r}, -2, v{d+r}")
            A(f"buffer_store_dwordx4 {vr(d,4)}, v{vT1}, {srd(R_WS)}, {sT0} offen sc1")
            A("s_waitcnt lgkmcnt(0)")
            for w in range(1, 8):
                for r in range(4): A(f"v_add_f32 v{d2+r}, v{d2+r}, v{d2+4*w+r}")
            for r in range(4): A(f"v_min_u32 v{d2+r}, -2, v{d2+r}")
            A(f"buffer_store_dwordx4 {vr(d2,4)}, v{vT1}, {srd(R_WS)}, {sT1} offen sc1")
            self.nop(2)
        self.only(PUB, publish)

    def items(self):
        A = self.A
        it = []
        def add(name, fn, dep=None): it.append(dict(name=name, fn=fn, dep=dep))
        def grp(kind, G, dep):
            for t in range(4): add(f"{kind}{G}_{t}", lambda t=t: self.kv_load(kind, G, t), dep if t == 0 else None)
        wd = []; wo = []
        for t in range(2):
            def fn(t=t):
                A(f"s_add_u32 m0, {sWDL}, {t*1024}")
                A(f"s_movk_i32 {sTD}, {t*8192}")
                A(f"buffer_load_dwordx4 v{vOD}, {srd(R_WD)}, {sTD} offen nt lds")
            wd.append((f"wd{t}", fn, None))
        for t in range(16):
            def fn(t=t):
                A(f"s_add_u32 m0, {sWOL}, {t*1024}")
                A(f"s_mov_b32 {sTD}, {(32*(t>>2) + 2*(t&3))*1024}")
                A(f"buffer_load_dwordx4 v{vOW}, {srd(R_WO)}, {sTD} offen nt lds")
            wo.append((f"wo{t}", fn, "qred" if t >= 14 else None))
        q = wo[:4] + wd + wo[4:]
        def put(slot):
            for _ in range(self.dma[slot]):
                n, fn, dep = q.pop(0); add(n, fn, dep)
        for G in range(8): grp("K", G, None); put(G)
        for G in range(8): grp("V", G, ("st0" if G == 7 else f"qk{G-1}") if G else None); put(8 + G)
        return it

    def mb_load(self):
        self.A(f"s_load_dword {sGO}, s[{P_WS}:{P_WS+1}], {sMB} glc")
    def ga_loads(self):
        A = self.A
        t = vTM
        A(f"s_lshl_b32 {sT0}, {sH}, 13"); A(f"s_lshl_b32 {sT1}, {sB}, 7"); A(f"s_add_u32 {sT0}, {sT0}, {sT1}")
        A(f"s_add_u32 {sT0}, {sT0}, {WS_Q}")
        A(f"v_and_b32 v{t}, 7, v{vL}"); A(f"v_lshlrev_b32 v{t}, 4, v{t}")
        A(f"v_bfe_u32 v{t+1}, v{vL}, 3, 2"); A(f"v_lshl_add_u32 v{t}, v{t+1}, 8, v{t}")
        A(f"v_lshrrev_b32 v{t+1}, 5, v{vL}"); A(f"v_lshl_add_u32 v{t}, v{t+1}, 10, v{t}")
        A(f"s_add_u32 {sT1}, {sT0}, 4096")
        for k in range(4):
            A(f"buffer_load_dwordx4 {vr(vSP+4*k,4)}, v{t}, {srd(R_WS)}, {sT0 if k < 2 else sT1} offen offset:{(k&1)*2048} sc1")
    def step_hs(self, k, last):
        A = self.A
        def fn():
            end = self.label("hsend"); wait = self.label("hswait")
            if k == 0:
                self.C("the last of the eight workgroups of a head tells all of them that the head's slots are invalid")
                A(f"s_lshl_b32 {sMB}, s2, 7"); A(f"s_add_u32 {sMB}, {sMB}, {WS_MB}")
                A(f"s_mov_b32 {sDONE}, 0")
                A(f"v_lshlrev_b32 v{vQF+4}, 12, v{vL}"); A(f"v_mov_b32 v{vQF+6}, 1")
                A(f"s_lshl_b32 {sT0}, {sFT}, 7"); A(f"s_add_u32 {sT0}, {sT0}, {WS_MB}")
                A("s_waitcnt lgkmcnt(0)")
                A(f"s_and_b32 {sARR}, {sARR}, 7"); A(f"s_cmp_lg_u32 {sARR}, 7"); A(f"s_cbranch_scc1 {wait}")
                self.lanes(0xff, 0)
                A(f"buffer_store_dword v{vQF+6}, v{vQF+4}, {srd(R_WS)}, {sT0} offen sc1")
                A("s_mov_b64 exec, -1")
                A(f"s_mov_b32 {sGO}, 1")
                A(f"s_branch {end}")
                self.L(wait)
                self.mb_load()
                self.L(end)
                return
            A(f"s_cmp_eq_u32 {sDONE}, 1"); A(f"s_cbranch_scc1 {end}")
            A("s_waitcnt lgkmcnt(0)")
            if last:
                sp = self.label("mbspin"); go = self.label("go")
                A(f"s_cmp_eq_u32 {sGO}, 1"); A(f"s_cbranch_scc1 {go}")
                A(f"s_mov_b32 {sCNT}, 0")
                A(f"v_mov_b32 v{vTM}, 0")
                self.L(sp)
                A("s_mov_b64 exec, 1")
                A(f"buffer_load_dword v{vFL}, v{vTM}, {srd(R_WS)}, {sMB} offen sc1")
                A("s_mov_b64 exec, -1")
                A(f"s_add_u32 {sCNT}, {sCNT}, 1")
                A("s_waitcnt vmcnt(0)")
                A(f"v_readfirstlane_b32 {sTF}, v{vFL}")
                A(f"s_cmp_ge_u32 {sCNT}, {SPIN}"); A(f"s_cbranch_scc1 {go}")
                A(f"s_cmp_lg_u32 {sTF}, 1"); A(f"s_cbranch_scc1 {sp}")
                self.L(go)
            else:
                A(f"s_cmp_lg_u32 {sGO}, 1"); A(f"s_cbranch_scc1 {wait}")
            self.ga_loads()
            A(f"s_mov_b32 {sDONE}, 1")
            if not last:
                A(f"s_branch {end}")
                self.L(wait)
                self.mb_load()
            self.L(end)
        self.only(HS, fn)
    def step_qsvc(self):
        A = self.A
        def fn():
            gs = self.label("gaspin"); ok = self.label("gaok")
            t = vTM; d = vSP
            A(f"s_mov_b32 {sCNT}, 0")
            self.L(gs)
            A(f"v_max3_u32 v{t+2}, v{d}, v{d+1}, v{d+2}")
            for k in range(3, 15, 2): A(f"v_max3_u32 v{t+2}, v{t+2}, v{d+k}, v{d+k+1}")
            A(f"v_max_u32 v{t+2}, v{t+2}, v{d+15}")
            A(f"v_cmp_eq_u32 vcc, -1, v{t+2}")
            A(f"s_cbranch_vccz {ok}")
            self.ga_loads()
            A(f"s_add_u32 {sCNT}, {sCNT}, 1")
            A(f"s_cmp_lt_u32 {sCNT}, {SPIN}")
            A("s_waitcnt vmcnt(0)")
            A(f"s_cbranch_scc1 {gs}")
            self.L(ok)
            for k in range(1, 4):
                for r in range(4): A(f"v_add_f32 v{d+r}, v{d+r}, v{d+4*k+r}")
            A(f"v_and_b32 v{t+1}, 7, v{vL}")
            A(f"v_lshrrev_b32 v{t+2}, 5, v{vL}")
            A(f"v_permlane32_swap_b32 v{d}, v{d+1}"); A(f"v_permlane32_swap_b32 v{d+2}, v{d+3}")
            A(f"v_lshl_add_u32 v{t+1}, v{t+2}, 3, v{t+1}")
            A(f"v_add_f32 v{d}, v{d}, v{d+1}"); A(f"v_add_f32 v{d+2}, v{d+2}, v{d+3}")
            A(f"v_cvt_pk_bf16_f32 v{d}, v{d}, v{d+2}")
            A(f"v_bfe_u32 v{t}, v{vL}, 3, 2")
            A(f"v_lshl_add_u32 v{t}, v{t}, 5, v{t+1}")
            A(f"v_lshlrev_b32 v{t}, 1, v{t}")
            A(f"ds_write_b16 v{t}, v{d} offset:{L_QS}")
            A(f"ds_write_b16_d16_hi v{t}, v{d} offset:{L_QS+32}")
        self.only(HS, fn)

    def step_gate0(self):
        A = self.A
        def fn():
            A(f"s_lshl_b32 {sT1}, {sB}, 10")
            A(f"buffer_load_dwordx4 {vr(vXR,4)}, v{vT1}, {srd(R_X)}, {sT1} offen")
            A(f"buffer_load_dwordx4 {vr(vXR+4,4)}, v{vT1}, {srd(R_GW)}, 0 offen")
        self.only(GSV, fn)
    def step_gate(self):
        A = self.A
        def fn():
            x, w = vXR, vXR + 4
            t = vTM; acc = vT0
            A(f"v_mov_b32 v{acc}, 0")
            for k in range(4):
                A(f"v_lshlrev_b32 v{t}, 16, v{x+k}"); A(f"v_lshlrev_b32 v{t+1}, 16, v{w+k}")
                A(f"v_and_b32 v{t+2}, 0xffff0000, v{x+k}"); A(f"v_and_b32 v{t+3}, 0xffff0000, v{w+k}")
                A(f"v_mul_f32 v{t}, v{t}, v{t+1}"); A(f"v_mul_f32 v{t+2}, v{t+2}, v{t+3}")
                A(f"v_cvt_pk_bf16_f32 v{t}, v{t}, v{t+2}")
                A(f"v_lshlrev_b32 v{t+1}, 16, v{t}"); A(f"v_and_b32 v{t}, 0xffff0000, v{t}")
                A(f"v_add_f32 v{acc}, v{acc}, v{t+1}"); A(f"v_add_f32 v{acc}, v{acc}, v{t}")
            for ctl in ("quad_perm:[1,0,3,2]", "quad_perm:[2,3,0,1]", "row_half_mirror", "row_mirror"):
                self.dpp_add(acc, ctl)
            self.swap_reduce("v_add_f32", acc, t, 16)
            self.swap_reduce("v_add_f32", acc, t, 32)
            A(f"v_cvt_pk_bf16_f32 v{acc}, v{acc}, v{acc}")
            A(f"v_and_b32 v{acc}, 0xffff0000, v{acc}")
            A(f"v_mul_f32 v{acc}, {f32(-math.log2(math.e))}, v{acc}")
            A(f"v_exp_f32 v{acc}, v{acc}")
            self.nop(1)
            A(f"v_add_f32 v{acc}, 1.0, v{acc}")
            A(f"v_rcp_f32 v{acc}, v{acc}")
            self.nop(1)
            A(f"v_cvt_pk_bf16_f32 v{acc}, v{acc}, v{acc}")
            A(f"v_and_b32 v{t}, 0xffff0000, v{acc}")
            A(f"v_sub_f32 v{t+1}, 1.0, v{t}")
            A(f"v_cvt_pk_bf16_f32 v{t+1}, v{t+1}, v{t+1}")
            A(f"v_and_b32 v{t+1}, 0xffff0000, v{t+1}")
            A(f"v_mov_b32 v{t+2}, 0")
            A(f"ds_write_b64 v{t+2}, {vr(t,2)} offset:{L_GS}")
        self.only(GSV, fn)

    def fl_load(self):
        A = self.A
        A(f"v_and_b32 v{vT0}, 31, v{vL}"); A(f"v_lshlrev_b32 v{vT0}, 3, v{vT0}")
        A(f"global_load_dword v{vFL}, v{vT0}, s[{P_DBG}:{P_DBG+1}] sc1")
    def fg_load(self):
        A = self.A
        A(f"s_lshr_b32 {sT0}, {sSL}, 3"); A(f"s_lshl_b32 {sT0}, {sT0}, 13")
        A(f"s_lshl_b32 {sT1}, {sB}, 7"); A(f"s_add_u32 {sT0}, {sT0}, {sT1}")
        A(f"s_bfe_u32 {sT1}, {sSL}, 0x20001"); A(f"s_lshl_b32 {sT1}, {sT1}, 8"); A(f"s_add_u32 {sT0}, {sT0}, {sT1}")
        A(f"s_and_b32 {sT1}, {sSL}, 1"); A(f"s_lshl_b32 {sT1}, {sT1}, 3"); A(f"s_add_u32 {sT0}, {sT0}, {sT1}")
        A(f"s_add_u32 {sT0}, {sT0}, {WS_F}")
        A(f"v_and_b32 v{vT0}, 7, v{vL}"); A(f"v_lshlrev_b32 v{vT0}, 4, v{vT0}")
        A(f"v_lshrrev_b32 v{vTM}, 3, v{vL}"); A(f"v_lshl_add_u32 v{vT0}, v{vTM}, 10, v{vT0}")
        A(f"buffer_load_dwordx2 {vr(vFG,2)}, v{vT0}, {srd(R_WS)}, {sT0} offen sc1")
        A(f"s_add_u32 {sT0}, {sT0}, {11*8192}")
        A(f"buffer_load_dwordx2 {vr(vFG+2,2)}, v{vT0}, {srd(R_WS)}, {sT0} offen sc1")
    def step_fga(self):
        A = self.A
        def fn():
            self.C("every workgroup has invalidated its slots -> gather the gate/up partials of this slice")
            ok = self.label("flok"); sp = self.label("flspin")
            A(f"v_cmp_gt_u32 vcc, 8, v{vFL}")
            A(f"s_cbranch_vccz {ok}")
            A(f"s_mov_b32 {sCNT}, 0")
            self.L(sp)
            A("s_sleep 32")
            self.fl_load()
            A(f"s_add_u32 {sCNT}, {sCNT}, 1")
            A(f"s_cmp_ge_u32 {sCNT}, {SPIN}")
            A("s_waitcnt vmcnt(0)")
            A(f"s_cbranch_scc1 {ok}")
            A(f"v_cmp_gt_u32 vcc, 8, v{vFL}")
            A(f"s_cbranch_vccnz {sp}")
            self.L(ok)
            self.fg_load()
        self.only(SVC, fn)
    def step_ffn2(self):
        A = self.A
        t = vTM
        def fn():
            self.C("h = gelu(gate)*up for 16 hidden units, then (1-g) * h @ w_down for all 512 columns")
            e = vFG
            ok = self.label("fgok"); sp = self.label("fgspin")
            A(f"s_mov_b32 {sCNT}, 0")
            self.L(sp)
            A(f"v_max3_u32 v{t}, v{e}, v{e+1}, v{e+2}"); A(f"v_max_u32 v{t}, v{t}, v{e+3}")
            A(f"v_cmp_eq_u32 vcc, -1, v{t}")
            A(f"s_cbranch_vccz {ok}")
            self.fg_load()
            A(f"s_add_u32 {sCNT}, {sCNT}, 1")
            A(f"s_cmp_lt_u32 {sCNT}, {SPIN}")
            A("s_waitcnt vmcnt(0)")
            A(f"s_cbranch_scc1 {sp}")
            self.L(ok)
            A(f"v_permlane32_swap_b32 v{e}, v{e+1}"); A(f"v_permlane32_swap_b32 v{e+2}, v{e+3}")
            self.nop(1)
            A(f"v_add_f32 v{e}, v{e}, v{e+1}"); A(f"v_add_f32 v{e+2}, v{e+2}, v{e+3}")
            self.swap_reduce("v_add_f32", e, e + 1, 16)
            self.swap_reduce("v_add_f32", e + 2, e + 3, 16)
            self.dpp_add(e, "row_ror:8"); self.dpp_add(e + 2, "row_ror:8")
            A(f"v_cvt_pk_bf16_f32 v{e}, v{e}, v{e+2}")
            A(f"v_and_b32 v{e+2}, 0xffff0000, v{e}")
            A(f"v_lshlrev_b32 v{e}, 16, v{e}")
            k0 = math.sqrt(2.0 / math.pi)
            self.C("gelu_tanh(x) = x / (1 + exp(-2*sqrt(2/pi)*(x + 0.044715 x^3)))")
            A(f"v_mul_f32 v{e+1}, v{e}, v{e}")
            A(f"v_mov_b32 v{e+3}, {f32(-2.0 * k0 * math.log2(math.e))}")
            A(f"v_mul_f32 v{e+1}, {f32(0.044715)}, v{e+1}")
            A(f"v_add_f32 v{e+1}, 1.0, v{e+1}")
            A(f"v_mul_f32 v{e+1}, v{e+1}, v{e}")
            A(f"v_mul_f32 v{e+1}, v{e+1}, v{e+3}")
            A(f"v_exp_f32 v{e+1}, v{e+1}")
            self.nop(1)
            A(f"v_add_f32 v{e+1}, 1.0, v{e+1}")
            A(f"v_rcp_f32 v{e+1}, v{e+1}")
            self.nop(1)
            A(f"v_mul_f32 v{e}, v{e}, v{e+1}")
            A(f"v_cvt_pk_bf16_f32 v{e}, v{e}, v{e}")
            A(f"v_and_b32 v{e}, 0xffff0000, v{e}")
            A(f"v_mul_f32 v{e}, v{e}, v{e+2}")
            A(f"v_cvt_pk_bf16_f32 v{e}, v{e}, v{e}")
            A(f"v_and_b32 v{t+1}, 7, v{vL}"); A(f"v_lshrrev_b32 v{t+2}, 5, v{vL}")
            A(f"v_lshl_add_u32 v{t+1}, v{t+2}, 3, v{t+1}")
            A(f"v_lshlrev_b32 v{t+1}, 1, v{t+1}")
            A(f"ds_write_b16 v{t+1}, v{e} offset:{L_HS}")
            A(f"v_lshlrev_b32 v{t+1}, 3, v{vG}")
            A(f"v_mov_b32 v{t+3}, 0")
            A("s_waitcnt lgkmcnt(0)")
            A(f"ds_read_b64 {vr(e,2)}, v{t+1} offset:{L_HS}")
            A(f"ds_read_b32 v{e+2}, v{t+3} offset:{L_GS+4}")
            A(f"v_lshrrev_b32 v{t}, 2, v{vI}"); A(f"v_and_b32 v{t+1}, 3, v{vI}")
            A(f"v_lshlrev_b32 v{t+1}, 3, v{t+1}")
            A(f"v_lshl_add_u32 v{t+1}, v{t}, 7, v{t+1}")
            A(f"v_lshl_add_u32 v{t+1}, v{vG}, 9, v{t+1}")
            A(f"v_lshlrev_b32 v{t+2}, 2, v{vL}")
            ms = ["", "s[52:53]", "s[54:55]", "s[68:69]"]
            for k in range(1, 4): A(f"v_cmp_eq_u32 {ms[k]}, {k}, v{vG}")
            wfs = [vDF, vK + 32]
            def rd(w):
                for tau in range(4):
                    A(f"ds_read_b64_tr_b16 {vr(wfs[w&1]+2*tau,2)}, v{t+1} offset:{L_WD + w*2048 + tau*32}")
            rd(0)
            for w in range(8):
                if w < 7: rd(w + 1)
                self.lgkm(4 if w == 0 else 5 if w < 7 else 0)
                for tau in range(4):
                    A(f"v_mfma_f32_16x16x16_bf16 {vr(vFD+4*tau,4)}, {vr(e,2)}, {vr(wfs[w&1]+2*tau,2)}, 0")
                self.nop(6)
                A(f"v_cndmask_b32 v{t+4}, v{vFD}, v{vFD+4}, {ms[1]}")
                self.nop(1)
                A(f"v_cndmask_b32 v{t+4}, v{t+4}, v{vFD+8}, {ms[2]}")
                self.nop(1)
                A(f"v_cndmask_b32 v{t+4}, v{t+4}, v{vFD+12}, {ms[3]}")
                A(f"v_mul_f32 v{t+4}, v{t+4}, v{e+2}")
                A(f"ds_write_b32 v{t+2}, v{t+4} offset:{L_YF + w*256}")
        self.only(SVC, fn)

    def step_qred(self):
        A = self.A
        t = vTM
        A(f"v_and_b32 v{t}, 8, v{vL}")
        A(f"v_lshlrev_b32 v{t}, 3, v{t}")
        A(f"v_lshl_add_u32 v{t}, v{vG}, 4, v{t}")
        A("s_waitcnt lgkmcnt(0)")
        A("s_barrier")
        for T in range(2): A(f"ds_read_b128 {vr(vQF+4*T,4)}, v{t} offset:{L_QS+128*T}")
        A("s_waitcnt lgkmcnt(0)")
    def qk_combine(self, G):
        A = self.A
        a = vSP + 4 * G; b = vQF + 8 + 4 * (G & 1)
        for r in range(4): A(f"v_permlane32_swap_b32 v{a+r}, v{b+r}")
        for r in range(4): A(f"v_add_f32_dpp v{a+r}, v{b+r}, v{a+r} row_ror:8 row_mask:0xf bank_mask:0xf")
    def step_qk(self, G):
        A = self.A
        a = vSP + 4 * G; b = vQF + 8 + 4 * (G & 1); k = vK + 16 * G
        A(f"v_mfma_f32_16x16x32_bf16 {vr(a,4)}, {vr(k,4)}, {vr(vQF,4)}, 0")
        A(f"v_mfma_f32_16x16x32_bf16 {vr(b,4)}, {vr(k+8,4)}, {vr(vQF,4)}, 0")
        A(f"v_mfma_f32_16x16x32_bf16 {vr(a,4)}, {vr(k+4,4)}, {vr(vQF+4,4)}, {vr(a,4)}")
        A(f"v_mfma_f32_16x16x32_bf16 {vr(b,4)}, {vr(k+12,4)}, {vr(vQF+4,4)}, {vr(b,4)}")
        if G > 0:
            self.nop(4)
            self.qk_combine(G - 1)
    def step_softmax(self):
        A = self.A
        t = vTM; m = vAC2 + 2; l = vT0
        A(f"v_max3_f32 v{m}, v{vSP}, v{vSP+1}, v{vSP+2}")
        for k in range(3, 27, 2): A(f"v_max3_f32 v{m}, v{m}, v{vSP+k}, v{vSP+k+1}")
        self.qk_combine(7)
        A(f"v_max3_f32 v{m}, v{m}, v{vSP+27}, v{vSP+28}")
        A(f"v_max3_f32 v{m}, v{m}, v{vSP+29}, v{vSP+30}")
        A(f"v_max_f32 v{m}, v{m}, v{vSP+31}")
        self.swap_reduce("v_max_f32", m, t, 16)
        self.swap_reduce("v_max_f32", m, t, 32)
        A(f"s_lshl_b32 {sT0}, {sW}, 2")
        A(f"v_mov_b32 v{t+4}, {sT0}")
        A(f"v_mov_b32 v{t+5}, 0")
        A("s_mov_b64 exec, 1")
        A(f"ds_write_b32 v{t+4}, v{m} offset:{L_MX}")
        A("s_mov_b64 exec, -1")
        A("s_waitcnt lgkmcnt(0)")
        A("s_barrier")
        A(f"ds_read_b128 {vr(vBF,4)}, v{t+5} offset:{L_MX}")
        A(f"ds_read_b128 {vr(vBF+4,4)}, v{t+5} offset:{L_MX+16}")
        A("s_waitcnt lgkmcnt(0)")
        A(f"v_max3_f32 v{m}, v{vBF}, v{vBF+1}, v{vBF+2}")
        A(f"v_max3_f32 v{m}, v{m}, v{vBF+3}, v{vBF+4}")
        A(f"v_max3_f32 v{m}, v{m}, v{vBF+5}, v{vBF+6}")
        A(f"v_max_f32 v{m}, v{m}, v{vBF+7}")
        A(f"v_mul_f32 v{m}, {sC}, v{m}")
        for k in range(32): A(f"v_fma_f32 v{vSP+k}, v{vSP+k}, {sC}, -v{m}")
        for k in range(32): A(f"v_exp_f32 v{vSP+k}, v{vSP+k}")
        A(f"v_add_f32 v{l}, v{vSP}, v{vSP+1}"); A(f"v_add_f32 v{t}, v{vSP+2}, v{vSP+3}")
        for k in range(4, 32, 2):
            A(f"v_add_f32 v{l}, v{l}, v{vSP+k}"); A(f"v_add_f32 v{t}, v{t}, v{vSP+k+1}")
        A(f"v_add_f32 v{l}, v{l}, v{t}")
        self.swap_reduce("v_add_f32", l, t, 16)
        self.swap_reduce("v_add_f32", l, t, 32)
        A("s_mov_b64 exec, 1")
        A(f"ds_write_b32 v{t+4}, v{l} offset:{L_LS}")
        A("s_mov_b64 exec, -1")
        for k in range(32): A(f"v_cvt_pk_bf16_f32 v{vSP+k}, v{vSP+k}, v{vSP+k}")
        A("s_waitcnt lgkmcnt(0)")
        A("s_barrier")
        def fn():
            self.C("publish (max, sum) of this quarter")
            A(f"ds_read_b128 {vr(vBF,4)}, v{t+5} offset:{L_LS}")
            A(f"ds_read_b128 {vr(vBF+4,4)}, v{t+5} offset:{L_LS+16}")
            A(f"s_lshl_b32 {sT0}, s2, 7"); A(f"s_add_u32 {sT0}, {sT0}, {WS_MB + 8}")
            A("s_waitcnt lgkmcnt(0)")
            for k in range(1, 8): A(f"v_add_f32 v{vBF}, v{vBF}, v{vBF+k}")
            A(f"v_min_u32 v{t+1}, -2, v{vBF}")
            A(f"v_mov_b32 v{t}, v{m}")
            A("s_mov_b64 exec, 1")
            A(f"buffer_store_dwordx2 {vr(t,2)}, v{t+5}, {srd(R_WS)}, {sT0} offen sc1")
            A("s_mov_b64 exec, -1")
        self.only(GSV, fn)
    def step_pre7(self):
        for r in range(1, 4):
            for u in range(4): self.A(f"v_and_b32 v{vK+64+4*r+u}, v{vSP+28+r}, v{vM+u}")
    def step_pv7(self, r):
        b = vBF if r == 0 else vK + 64 + 4 * r
        if r == 0: self.nop(1)
        self.A(f"v_mfma_f32_16x16x32_bf16 {vr(vACC,4)}, {vr(vK+96+4*r,4)}, {vr(b,4)}, {vr(vACC,4)}")
    def step_pv(self, G):
        A = self.A
        base = vX if G == 0 else vK + 16 * (G - 1)
        def build(k, bset):
            for u in range(4): A(f"v_and_b32 v{vBF+4*bset+u}, v{vSP+k}, v{vM+u}")
        for r in range(4):
            k = 4 * G + r
            if k == 0: build(0, 0)
            if k + 1 < 32: build(k + 1, (k + 1) & 1)
            else: self.nop(2)
            c = "0" if k == 0 else vr(vACC, 4)
            A(f"v_mfma_f32_16x16x32_bf16 {vr(vACC,4)}, {vr(base+4*r,4)}, {vr(vBF+4*(k&1),4)}, {c}")

    WF = [vQF, vK + 16 * 7, vX, vK]
    def step_wof(self):
        A = self.A
        t = vTM
        A(f"v_lshrrev_b32 v{t}, 2, v{vI}"); A(f"v_and_b32 v{t+1}, 3, v{vI}")
        A(f"v_lshlrev_b32 v{t+1}, 3, v{t+1}")
        A(f"v_lshl_add_u32 v{t+1}, v{t}, 7, v{t+1}")
        A(f"v_lshl_add_u32 v{t+2}, v{vG}, 10, v{t+1}")
        A(f"v_add_u32 v{vOQ}, {sWOL}, v{t+2}")
        for tau in range(4):
            for T in range(4):
                for hi in range(2):
                    A(f"ds_read_b64_tr_b16 {vr(self.WF[tau]+4*T+2*hi,2)}, v{vOQ} offset:{T*4096 + hi*512 + tau*32}")
            if tau < 3: A("s_waitcnt lgkmcnt(4)")
        self.C("addresses and constants of the tail")
        A(f"v_and_b32 v{t}, 7, v{vI}")
        A(f"s_mul_i32 {sT1}, {sW}, 144"); A(f"s_add_u32 {sT1}, {sT1}, {L_OB}")
        A(f"v_lshl_add_u32 v{vOK}, v{vG}, 5, {sT1}")
        A(f"v_lshl_add_u32 v{vOK}, v{t}, 2, v{vOK}")
        A(f"v_mul_u32_u24 v{vOW}, 144, v{vI}")
        A(f"v_lshl_add_u32 v{vOW}, v{vG}, 4, v{vOW}")
        A(f"v_mov_b32 v{t+1}, 0x44444444"); A(f"v_mov_b32 v{t+2}, 0xeeeeeeee")
        A(f"v_cmp_lt_u32 vcc, 7, v{vI}")
        for k in range(16): A(f"v_mov_b32 v{vDF+k}, 0")
        A(f"v_cndmask_b32 v{vAC2+1}, v{t+1}, v{t+2}, vcc")
        A(f"v_mul_u32_u24 v{t+1}, {2*self.astride}, v{vG}")
        A(f"v_lshl_add_u32 v{vOF}, v{vI}, 2, v{t+1}")
        A(f"v_add_u32 v{t+2}, 8, v{vI}"); A(f"v_and_b32 v{t+2}, 15, v{t+2}")
        A(f"v_lshl_add_u32 v{vOD}, v{t+2}, 2, v{t+1}")
        A(f"s_mul_i32 {sTF}, {sW}, {8*self.astride}")
        A(f"s_mul_i32 {sT1}, {sB}, {64*self.astride}"); A(f"s_add_u32 {sTF}, {sTF}, {sT1}")
        A(f"s_lshl_b32 {sT1}, {sB}, 10"); A(f"s_lshl_b32 {sT0}, {sW}, 7"); A(f"s_add_u32 {sT1}, {sT1}, {sT0}")
        A(f"v_lshl_add_u32 v{vT1}, v{vL}, 1, {sT1}")
        A(f"v_cmp_eq_u32 s[52:53], 8, v{vI}"); A(f"v_cmp_eq_u32 s[54:55], 0, v{vI}"); A(f"v_cmp_gt_u32 s[68:69], 8, v{vI}")
        A(f"s_mov_b32 {sX0}, {f32(127.0)}")
        A(f"s_lshl_b32 {sT1}, {sW}, 8")
        A(f"v_lshl_add_u32 v{vAC2}, v{vL}, 2, {sT1}")
        A("s_waitcnt lgkmcnt(0)")
        A(f"v_mov_b32 v{vOQ}, 0")

    def st_load(self):
        A = self.A
        A(f"s_lshl_b32 {sT0}, {sB}, 7"); A(f"s_add_u32 {sT0}, {sT0}, {sFT}"); A(f"s_lshl_b32 {sT0}, {sT0}, 7")
        A(f"s_add_u32 {sT0}, {sT0}, {WS_MB + 8}")
        A(f"v_mov_b32 v{vT0}, 0")
        for k in range(4):
            if k: A(f"s_add_u32 {sT0}, {sT0}, 4096")
            A(f"buffer_load_dwordx2 {vr(vXR+2*k,2)}, v{vT0}, {srd(R_WS)}, {sT0} offen sc1")
    def step_scale(self):
        A = self.A
        t = vTM; s = vXR
        def fn():
            self.C("g * exp2(m_own - M) / L from the statistics of the four quarters")
            ok = self.label("stok"); sp = self.label("stspin")
            A(f"v_mov_b32 v{t+3}, 0")
            A(f"ds_read_b32 v{t+2}, v{t+3} offset:{L_GS}")
            A(f"s_mov_b32 {sCNT}, 0")
            self.L(sp)
            A(f"v_max3_u32 v{t}, v{s+1}, v{s+3}, v{s+5}")
            A(f"v_max_u32 v{t}, v{t}, v{s+7}")
            A(f"v_cmp_eq_u32 vcc, -1, v{t}")
            A(f"s_cbranch_vccz {ok}")
            self.st_load()
            A(f"s_add_u32 {sCNT}, {sCNT}, 1")
            A(f"s_cmp_lt_u32 {sCNT}, {SPIN}")
            A("s_waitcnt vmcnt(0)")
            A(f"s_cbranch_scc1 {sp}")
            self.L(ok)
            A(f"v_max3_f32 v{t}, v{s}, v{s+2}, v{s+4}")
            A(f"v_max_f32 v{t}, v{t}, v{s+6}")
            for k in range(4): A(f"v_sub_f32 v{s+2*k}, v{s+2*k}, v{t}")
            A(f"v_sub_f32 v{t+1}, v{vAC2+2}, v{t}")
            for k in range(4): A(f"v_exp_f32 v{s+2*k}, v{s+2*k}")
            A(f"v_exp_f32 v{t+1}, v{t+1}")
            A(f"v_mul_f32 v{t}, v{s}, v{s+1}")
            for k in range(1, 4): A(f"v_fmac_f32 v{t}, v{s+2*k}, v{s+2*k+1}")
            A(f"v_rcp_f32 v{t}, v{t}")
            A("s_waitcnt lgkmcnt(0)")
            A(f"v_mul_f32 v{t+1}, v{t+2}, v{t+1}")
            A(f"v_mul_f32 v{t}, v{t}, v{t+1}")
            A(f"ds_write_b32 v{t+3}, v{t} offset:{L_FS}")
        self.only(SVC, fn)

    def step_tail(self):
        A = self.A
        t = vTM; af = vSP
        self.lanes(0x00ff00ff, 0x00ff00ff)
        self.nop(6)
        A(f"v_cvt_pk_bf16_f32 v{t}, v{vACC}, v{vACC+1}")
        A(f"v_cvt_pk_bf16_f32 v{t+1}, v{vACC+2}, v{vACC+3}")
        A(f"ds_write_b32 v{vOK}, v{t}")
        A(f"ds_write_b32 v{vOK}, v{t+1} offset:{8*144}")
        A("s_mov_b64 exec, -1")
        A("s_waitcnt lgkmcnt(0)")
        A("s_barrier")
        self.C("16 rows = 8 wave partials x 2 halves of every group of four k : dense data in 2:4 form")
        for T in range(2): A(f"ds_read_b128 {vr(af+4*T,4)}, v{vOW} offset:{L_OB + 64*T}")
        A(f"ds_read_b32 v{t+4}, v{vOQ} offset:{L_FS}")
        A(f"ds_read_b32 v{vAC2+3}, v{vAC2} offset:{L_YF}")
        for T in range(2):
            self.lgkm(3 - T)
            for tau in range(4):
                A(f"v_smfmac_f32_16x16x64_bf16 {vr(vDF+4*tau,4)}, {vr(af+4*T,4)}, {vr(self.WF[tau]+8*T,8)}, v{vAC2+1}")
        A("s_waitcnt lgkmcnt(0)")
        self.nop(4)
        for tau in range(4):
            d = vDF + 4 * tau
            A(f"v_add_f32 v{d}, v{d}, v{d+1}"); A(f"v_add_f32 v{d+2}, v{d+2}, v{d+3}")
            A(f"v_add_f32 v{d}, v{d}, v{d+2}")
        self.nop(1)
        A(f"v_permlane16_swap_b32 v{vDF}, v{vDF+4}")
        A(f"v_permlane16_swap_b32 v{vDF+8}, v{vDF+12}")
        A(f"v_add_f32 v{vDF}, v{vDF}, v{vDF+4}")
        A(f"v_add_f32 v{vDF+8}, v{vDF+8}, v{vDF+12}")
        self.nop(2)
        A(f"v_permlane32_swap_b32 v{vDF}, v{vDF+8}")
        A(f"v_add_f32 v{t}, v{vDF}, v{vDF+8}")
        A(f"v_fma_f32 v{t}, v{t}, v{t+4}, v{vAC2+3}")
        self.C("8 sums and their arrival count share one 64-B request")
        A(f"v_cndmask_b32 v{t+1}, v{t}, 1.0, s[52:53]")
        A(f"v_cndmask_b32 v{t+2}, v{t}, 1.0, s[54:55]")
        self.lanes(0x01ff01ff, 0x01ff01ff)
        A(f"buffer_atomic_add_f32 v{t+1}, v{vOF}, {srd(R_WS)}, {sTF} offen sc0")
        self.lanes(0xff01ff01, 0xff01ff01)
        A(f"buffer_atomic_add_f32 v{t+2}, v{vOD}, {srd(R_WS)}, {sTF} offen offset:{self.astride} sc0")
        A("s_mov_b64 exec, -1")

    def finish(self):
        A = self.A
        t = vTM
        A("s_waitcnt vmcnt(0)")
        A(f"v_mov_b32_dpp v{t+3}, v{t+1} row_newbcast:8 row_mask:0xf bank_mask:0xf")
        A(f"v_mov_b32_dpp v{t+4}, v{t+2} row_newbcast:0 row_mask:0xf bank_mask:0xf")
        A(f"v_cndmask_b32 v{t+1}, v{t+2}, v{t+1}, s[68:69]")
        A(f"v_cndmask_b32 v{t+3}, v{t+4}, v{t+3}, s[68:69]")
        A(f"v_add_f32 v{t}, v{t}, v{t+1}")
        A(f"v_cmp_eq_f32 vcc, {sX0}, v{t+3}")
        A(f"v_cvt_pk_bf16_f32 v{t}, v{t}, v{t}")
        sk = self.label("fin")
        A("s_and_b64 exec, exec, vcc")
        A(f"s_cbranch_execz {sk}")
        A(f"global_store_short v{vT1}, v{t}, s[{P_OUT}:{P_OUT+1}]")
        self.L(sk)
        A("s_mov_b64 exec, -1")

    def steps(self, idx):
        S = []
        def add(name, needs, fn): S.append(dict(name=name, needs=needs, fn=fn))
        add("gate0", [], self.step_gate0)
        pts = list(self.hs_pts)
        evs = [(idx[p], f"hs{k}", [p], (lambda k=k: self.step_hs(k, k == len(pts) - 1))) for k, p in enumerate(pts)]
        evs.append((idx["K1_0"] + 0.5, "gate", ["@gate0"], self.step_gate))
        for _, n, nd, fn in sorted(evs, key=lambda e: e[0]): add(n, nd, fn)
        add("join", [f"@hs{len(pts)-1}", self.q_at], self.step_qsvc)
        add("qred", [], self.step_qred)
        for G in range(8): add(f"qk{G}", [f"K{G}_3"], lambda G=G: self.step_qk(G))
        add("fl", [], lambda: self.only(SVC, self.fl_load))
        add("softmax", ["wd1"], self.step_softmax)
        placed = False
        for G in range(8):
            if G == 7:
                add("pre7", [], self.step_pre7)
                add("scale", ["@st0"], self.step_scale)
            if not placed and G >= 5 and idx[f"V{G}_3"] > idx["wo15"]:
                add("wof", ["wo15"], self.step_wof); placed = True
            if G == 7:
                for r in range(4): add("pv7" if r == 3 else f"pv7_{r}", [f"V7_{r}"], lambda r=r: self.step_pv7(r))
            else:
                add(f"pv{G}", [f"V{G}_3"], lambda G=G: self.step_pv(G))
            if f"pv{G}" == self.fga_pos: add("fga", ["@fl"], self.step_fga)
            if f"pv{G}" == self.st_pos: add("st0", [], lambda: self.only(SVC, self.st_load))
            if f"pv{G}" == self.ffn_pos: add("ffn2", ["@fga"], self.step_ffn2)
        nm = [s["name"] for s in S]
        assert placed and nm.index("pv3") < nm.index("ffn2") < nm.index("wof")
        add("tail", [], self.step_tail)
        return S

    def schedule(self):
        items = self.items()
        idx = {it["name"]: n for n, it in enumerate(items)}
        issued = 4 + self.npre
        assert all(it["name"][0] == "K" for it in items[:issued])
        comp = -1; done = set(); pos = -1; after = {}; W = self.W
        for st in self.steps(idx):
            need = max([after[n[1:]] if n[0] == "@" else idx[n] for n in st["needs"]], default=-1)
            pos = max(pos, need)
            def issue(w):
                nonlocal issued, comp
                while issued < len(items):
                    it = items[issued]
                    if issued > pos + w - 1: break
                    if it["dep"] and it["dep"] not in done:
                        assert issued > need, (st["name"], it["name"])
                        break
                    if issued - (comp + 1) >= w:
                        self.A(f"s_waitcnt vmcnt({w-1})"); comp = issued - w
                    it["fn"](); issued += 1
            if st["name"] != "qred": issue(W)
            if comp < need:
                self.A(f"s_waitcnt vmcnt({issued-1-need})"); comp = need
            if st["name"] == "join":
                issue(W + self.boost_q); W = self.W2
            if st["name"] in self.boosts: issue(W + self.boosts[st["name"]])
            self.o.append(f"    ; ---- {st['name']}")
            st["fn"](); done.add(st["name"])
            after[st["name"]] = issued
            if st["name"] in ("qred", "pv7", "tail"): self.stamp({"qred": 1, "pv7": 2, "tail": 3}[st["name"]])
        assert issued == len(items)

    def build(self):
        A = self.A
        K1 = NAME + "_kernel"
        o = self.o
        o.append(HEADER.rstrip("\n"))
        o.append(f"; @launch grid=(256,1,1) block=(512,1,1) lds={LDS_BYTES}")
        o += ['.amdgcn_target "amdgcn-amd-amdhsa--gfx950"', ".text", f".globl {K1}", ".p2align 8",
              f".type {K1},@function", f"{K1}:"]
        self.phase0()
        self.schedule()
        self.finish()
        if self.stamps: A("s_barrier")
        if self.stamps:
            self.L("L_stamp")
            A(f"s_cmp_lg_u32 {sW}, 0"); A("s_cbranch_scc1 L_end")
            self.stamp(4)
            A("s_mov_b64 exec, 1")
            A("s_waitcnt lgkmcnt(0)")
            A(f"s_add_u32 s40, s40, {STAMP_OFF}"); A("s_addc_u32 s41, s41, 0")
            A("s_lshl_b32 s8, s2, 6"); A("v_mov_b32 v1, s8")
            for k in range(4):
                A(f"v_mov_b32 v{8+2*k}, s{sST+2*k}"); A(f"v_mov_b32 v{9+2*k}, s{sST+2*k+1}")
            A(f"v_mov_b32 v16, {sXCC}"); A("v_mov_b32 v17, 0")
            A(f"v_mov_b32 v18, s{sST+8}"); A(f"v_mov_b32 v19, s{sST+9}")
            A("global_store_dwordx4 v1, v[8:11], s[40:41]")
            A("global_store_dwordx4 v1, v[12:15], s[40:41] offset:16")
            A("global_store_dwordx4 v1, v[16:19], s[40:41] offset:32")
        self.L("L_end"); A("s_endpgm")
        o += ['.section .rodata,"a"', ".p2align 6", f".amdhsa_kernel {K1}", "  .amdhsa_next_free_vgpr 256",
              "  .amdhsa_next_free_sgpr 102", "  .amdhsa_accum_offset 256", "  .amdhsa_group_segment_fixed_size 0",
              "  .amdhsa_kernarg_size 104", "  .amdhsa_user_sgpr_count 2", "  .amdhsa_user_sgpr_kernarg_segment_ptr 1",
              "  .amdhsa_system_sgpr_workgroup_id_x 1", ".end_amdhsa_kernel"]
        return "\n".join(o) + "\n"

if __name__ == "__main__":
    import argparse, json
    ap = argparse.ArgumentParser()
    ap.add_argument("out"); ap.add_argument("--opt", default="{}")
    a = ap.parse_args()
    open(a.out, "w").write(Gen(**json.loads(a.opt)).build())
```

```python
import sys, struct, math

NAME = "gated_mix__mha_block_cached__geglu_ffn__decode"
HEADER = open("cdna_kernels/" + NAME + ".s.ref").read().split("; Override launch")[0]

def f32(x):
    return "0x%08x" % struct.unpack("<I", struct.pack("<f", x))[0]

L_QS = 0
L_HS = 256
L_GS = 320
L_FS = 336
L_MX = 384
L_LS = 448
L_OB = 512
L_YF = 3072
L_WD = 5120
L_WO = L_WD + 16384
LDS_BYTES = L_WO + 131072

WS_A = 0
WS_MB = 0x11000
WS_Q = 0x19000
WS_F = WS_Q + 0x40000
WS_BYTES = WS_F + 176 * 1024
STAMP_OFF = 128 << 20
SPIN = "0x4000"

sW = "s3"
P_X, P_K, P_V, P_WQ, P_WO, P_WG, P_WU = 16, 18, 20, 22, 24, 28, 30
P_WD, P_GW, P_OUT, P_DBG, P_WS = 32, 34, 36, 38, 40
R_K, R_V, R_WQ, R_WO, R_X, R_GW, R_FT, R_WD, R_WS = 44, 48, 52, 56, 60, 64, 68, 76, 80
sH, sB, sS, sSL, sT0, sT1, sT2 = "s4", "s5", "s6", "s7", "s8", "s9", "s10"
sTK, sTV, sTQ, sTF, sTD = "s11", "s12", "s13", "s14", "s15"
sX0, sX1 = "s42", "s43"
sARR, sMB = "s42", "s43"
sJ, sFT, sROT, sTI = "s72", "s73", "s74", "s75"
sWOL, sWDL = "s84", "s85"
sDUP0, sDUP1 = "s86", "s87"
sGO, sDONE = "s86", "s87"
sC, sCNT, sXCC, sBH = "s88", "s89", "s90", "s91"
sST = 92
def srd(r): return f"s[{r}:{r+3}]"

vL, vI, vG = 1, 2, 3
vOK, vOV, vOQ, vOW, vOF, vOD, vT0, vT1 = 4, 5, 6, 7, 8, 9, 10, 11
vM = 12
vXR = 16
vBF = 24
vACC = 32
vAC2 = 36
vQF = 40
vSP = 56
vDF = 88
vTM = 104
vFL = 111
vK = 112
vX = 240
vFG = vDF + 8
vFD = vK + 16
def vr(a, n): return f"v[{a}:{a+n-1}]"

HS, PUB, GSV, SVC = 0, 1, 2, 3

class Gen:
    def __init__(self, W=10, W2=12, boost_q=4, boosts=None, npre=4, q_at="K5_3", hs_pts=("K0_1", "K2_3", "K3_1", "K3_3"),
                 dma=(0, 0, 1, 1, 2, 1, 2, 1, 2, 1, 2, 1, 2, 2, 0, 0), xmap="0x54ff3210", nx=6,
                 fga_pos="pv1", st_pos="pv3", ffn_pos="pv3", stamps=False, gperm=(0,1,2,3,4,5,6,7), rotmul=1, astride=256, early=0, wmap="0xf5f43210"):
        self.__dict__.update(locals())
        self.boosts = boosts if boosts is not None else {"softmax": 6, "wof": 4}
        assert sum(dma) == 18
        self.o = []; self.lab = 0
    def A(self, s): self.o.append("    " + s)
    def C(self, s): self.o.append("    ; " + s)
    def L(self, s): self.o.append(s + ":")
    def nop(self, n):
        while n > 0:
            k = min(n, 16); self.A(f"s_nop {k-1}"); n -= k
    def label(self, p):
        self.lab += 1; return f"L_{p}_{self.lab}"
    def stamp(self, k):
        if self.stamps: self.A(f"s_memrealtime s[{sST+2*k}:{sST+2*k+1}]")
    def lgkm(self, n): self.A(f"s_waitcnt lgkmcnt({0 if self.stamps else n})")
    def only(self, w, fn):
        sk = self.label("skip")
        self.A(f"s_cmp_lg_u32 {sW}, {w}"); self.A(f"s_cbranch_scc1 {sk}")
        fn()
        self.L(sk)
    def lanes(self, lo, hi):
        self.A(f"s_mov_b32 exec_lo, {lo:#x}"); self.A(f"s_mov_b32 exec_hi, {hi:#x}")
    def swap_reduce(self, op, v, tmp, which):
        A = self.A
        A(f"v_mov_b32 v{tmp}, v{v}")
        self.nop(2)
        A(f"v_permlane{which}_swap_b32 v{v}, v{tmp}")
        self.nop(1)
        A(f"{op} v{v}, v{v}, v{tmp}")
    def dpp_add(self, v, ctl):
        self.nop(2)
        self.A(f"v_add_f32_dpp v{v}, v{v}, v{v} {ctl} row_mask:0xf bank_mask:0xf")
    def mk(self, r, p, off, size):
        A = self.A
        if off is None:
            A(f"s_mov_b32 s{r}, s{p}"); A(f"s_mov_b32 s{r+1}, s{p+1}")
        else:
            A(f"s_add_u32 s{r}, s{p}, {off}"); A(f"s_addc_u32 s{r+1}, s{p+1}, 0")
        if size is not None: A(f"s_mov_b32 s{r+2}, {size}")
        A(f"s_mov_b32 s{r+3}, 0x20000")

    def kv_load(self, kind, G, t):
        A = self.A
        st = sTK if kind == "K" else sTV
        if t == 0: A(f"s_xor_b32 {st}, {sROT}, {self.gperm[G] << 15}")
        if kind == "K":
            A(f"buffer_load_dwordx4 {vr(vK+16*G+4*t,4)}, v{vOK}, {srd(R_K)}, {st} offen offset:{(t>>1)*2048 + (t&1)*128} nt")
        else:
            dst = vX if G == 0 else vK + 16 * (G - 1)
            A(f"buffer_load_dwordx4 {vr(dst+4*t,4)}, v{vOV}, {srd(R_V)}, {st} offen offset:{256*t} nt")

    def bsel(self, src, half, bset):
        A = self.A
        t = vTM + 4 + bset
        A(f"v_perm_b32 v{t}, v{src}, v{src}, {sDUP1 if half else sDUP0}")
        for u in range(4): A(f"v_and_b32 v{vBF+4*bset+u}, v{t}, v{vM+u}")

    def phase0(self):
        A = self.A
        A("s_cmp_ge_u32 s2, 256")
        A("s_cbranch_scc1 L_end")
        A("s_load_dwordx16 s[16:31], s[0:1], 0")
        A("s_load_dwordx8 s[32:39], s[0:1], 64")
        A("s_load_dwordx2 s[40:41], s[0:1], 96")
        self.stamp(0)
        A("v_lshrrev_b32 v10, 6, v0")
        A(f"v_and_b32 v{vI}, 15, v0")
        A(f"v_readfirstlane_b32 {sW}, v10")
        A(f"v_bfe_u32 v{vG}, v0, 4, 2")
        self.C("wg = (j*4 + hq)*8 + x ; h = 4x + hq ; j = 4b + s   (x = XCD under round-robin placement: speed only)")
        A(f"s_and_b32 {sT0}, s2, 7")
        A(f"s_lshr_b32 {sT1}, s2, 3")
        A(f"s_and_b32 {sT2}, {sT1}, 3")
        A(f"s_lshl_b32 {sH}, {sT0}, 2")
        A(f"s_add_u32 {sH}, {sH}, {sT2}")
        A(f"s_lshr_b32 {sJ}, {sT1}, 2")
        A(f"s_and_b32 {sFT}, s2, 31")
        self.C("FFN work goes to the workgroups whose x has a rank (nibble table, 15 = none)")
        A(f"s_lshl_b32 {sCNT}, {sT0}, 2"); A(f"s_lshr_b32 {sCNT}, {self.xmap}, {sCNT}"); A(f"s_and_b32 {sCNT}, {sCNT}, 15")
        A(f"s_mul_i32 {sTI}, {sT2}, {self.nx}"); A(f"s_add_u32 {sTI}, {sTI}, {sCNT}")
        A(f"s_cmp_eq_u32 {sCNT}, 15"); A(f"s_cselect_b32 {sTI}, 31, {sTI}")
        A(f"s_lshl_b32 {sTK}, {sJ}, 3"); A(f"s_add_u32 {sTK}, {sTK}, {sW}")
        A(f"s_lshl_b32 {sTV}, {sTK}, 4")
        A(f"s_lshl_b32 {sX0}, {sTK}, 16"); A(f"s_lshl_b32 {sTQ}, {sH}, 8"); A(f"s_add_u32 {sX0}, {sX0}, {sTQ}")
        A(f"s_cmp_ge_u32 {sTI}, 11")
        A(f"s_cselect_b32 {sX1}, 11, 0")
        A(f"s_sub_u32 {sX1}, {sTI}, {sX1}")
        A(f"s_lshl_b32 {sX1}, {sX1}, 8")
        A(f"s_mul_i32 {sTK}, {sTK}, {8*2752}")
        A(f"s_add_u32 {sX1}, {sX1}, {sTK}")
        A(f"s_sub_u32 s{R_FT+2}, {512*2752}, {sX1}")
        A(f"s_cmp_lt_u32 {sTI}, 22")
        A(f"s_cselect_b32 s{R_FT+2}, s{R_FT+2}, 0")
        A(f"s_cselect_b32 {sX1}, {sX1}, 0")
        A(f"s_mov_b32 s{R_FT+3}, 0x20000")
        A(f"s_mov_b32 s{R_X+2}, 2048"); A(f"s_mov_b32 s{R_X+3}, 0x20000")
        A(f"s_mov_b32 s{R_WQ+2}, {7*8192+256}"); A(f"s_mov_b32 s{R_WQ+3}, 0x20000")
        A(f"s_movk_i32 {sTQ}, 8192")
        A(f"v_lshrrev_b32 v{vT0}, 3, v{vI}")
        A(f"v_lshlrev_b32 v{vT0}, 10, v{vT0}")
        A(f"v_lshl_add_u32 v{vT0}, v{vG}, 2, v{vT0}")
        A(f"v_lshlrev_b32 v{vT1}, 4, v{vI}")
        A(f"v_lshl_add_u32 v{vOQ}, v{vG}, 14, v{vT1}")
        A(f"v_mul_u32_u24 v{vOF}, {2*2752}, v{vG}")
        A(f"v_add_u32 v{vOF}, v{vOF}, v{vT1}")
        A(f"s_cmp_ge_u32 {sTI}, 11")
        A("s_waitcnt lgkmcnt(0)")
        self.C("projection tiles: rows 64j + 8w + 2g + t of wq (128 columns of head h) and of w_gate / w_up (one 128-column block)")
        A(f"s_cselect_b32 s{R_FT}, s{P_WU}, s{P_WG}"); A(f"s_cselect_b32 s{R_FT+1}, s{P_WU+1}, s{P_WG+1}")
        A(f"s_add_u32 s{R_WQ}, s{P_WQ}, {sX0}"); A(f"s_addc_u32 s{R_WQ+1}, s{P_WQ+1}, 0")
        A(f"buffer_load_dwordx4 {vr(vDF,4)}, v{vOQ}, {srd(R_WQ)}, 0 offen nt")
        A(f"buffer_load_dwordx4 {vr(vDF+4,4)}, v{vOQ}, {srd(R_WQ)}, {sTQ} offen nt")
        A(f"s_add_u32 s{R_FT}, s{R_FT}, {sX1}"); A(f"s_addc_u32 s{R_FT+1}, s{R_FT+1}, 0")
        A(f"buffer_load_dwordx4 {vr(vDF+8,4)}, v{vOF}, {srd(R_FT)}, 0 offen nt")
        A(f"buffer_load_dwordx4 {vr(vDF+12,4)}, v{vOF}, {srd(R_FT)}, 0 offen offset:2752 nt")
        A(f"s_mov_b32 s{R_X}, s{P_X}"); A(f"s_mov_b32 s{R_X+1}, s{P_X+1}")
        A(f"buffer_load_dword v{vXR}, v{vT0}, {srd(R_X)}, {sTV} offen")
        self.mk(R_WS, P_WS, None, WS_BYTES)
        def clear():
            self.C("invalidate the hand-off slots this workgroup is responsible for")
            c = vQF
            for k in range(4): A(f"v_mov_b32 v{c+k}, -1")
            A(f"v_and_b32 v{c+4}, 63, v0"); A(f"v_lshlrev_b32 v{c+4}, 4, v{c+4}")
            A(f"s_lshl_b32 {sTD}, {sH}, 3"); A(f"s_add_u32 {sTD}, {sTD}, {sJ}"); A(f"s_lshl_b32 {sTD}, {sTD}, 10")
            A(f"s_add_u32 {sTD}, {sTD}, {WS_Q}")
            A(f"buffer_store_dwordx4 {vr(c,4)}, v{c+4}, {srd(R_WS)}, {sTD} offen sc1")
            A(f"s_lshl_b32 {sTD}, {sTI}, 3"); A(f"s_add_u32 {sTD}, {sTD}, {sJ}"); A(f"s_lshl_b32 {sTD}, {sTD}, 10")
            A(f"s_add_u32 {sTD}, {sTD}, {WS_F}")
            A(f"buffer_store_dwordx4 {vr(c,4)}, v{c+4}, {srd(R_WS)}, {sTD} offen sc1")
            self.lanes(0xff, 0)
            A(f"s_lshl_b32 {sTD}, s2, 7"); A(f"s_add_u32 {sTD}, {sTD}, {WS_MB}")
            A(f"buffer_store_dwordx4 {vr(c,4)}, v{c+4}, {srd(R_WS)}, {sTD} offen sc1")
            for k in range(4): A(f"v_mov_b32 v{c+8+k}, 0")
            A(f"s_mul_i32 {sTD}, s2, {self.astride}")
            if self.astride == 64: self.lanes(0xf, 0)
            A(f"s_cmp_lt_u32 s2, 128"); A(f"s_cselect_b32 {sTD}, {sTD}, {4 << 20}")
            A(f"buffer_store_dwordx4 {vr(c+8,4)}, v{c+4}, {srd(R_WS)}, {sTD} offen sc1")
            A("s_mov_b64 exec, -1")
        self.only(HS, clear)
        self.C("everything else while those fly")
        A(f"v_and_b32 v{vL}, 63, v0")
        A(f"s_lshr_b32 {sB}, {sJ}, 2")
        A(f"s_and_b32 {sS}, {sJ}, 3")
        A(f"s_lshl_b32 {sBH}, {sB}, 5"); A(f"s_add_u32 {sBH}, {sBH}, {sH}")
        A(f"v_and_b32 v{vOK}, 7, v0")
        A(f"v_lshlrev_b32 v{vOK}, 8, v{vOK}")
        A(f"v_lshl_add_u32 v{vOK}, v{vG}, 4, v{vOK}")
        A(f"v_and_b32 v{vOV}, 8, v0")
        A(f"v_lshl_add_u32 v{vOK}, v{vOV}, 3, v{vOK}")
        A(f"v_lshl_add_u32 v{vOV}, v{vG}, 10, v{vT1}")
        A(f"s_lshl_b32 {sTK}, {sBH}, 20")
        A(f"s_lshl_b32 {sTV}, {sS}, 18"); A(f"s_add_u32 {sTK}, {sTK}, {sTV}")
        A(f"s_lshl_b32 {sTV}, {sW}, 12"); A(f"s_add_u32 {sTK}, {sTK}, {sTV}")
        self.mk(R_K, P_K, sTK, (7 << 15) + 4096)
        self.mk(R_V, P_V, sTK, (7 << 15) + 4096)
        if self.rotmul == 1: A(f"s_lshl_b32 {sROT}, {sJ}, 15")
        else:
            A(f"s_mul_i32 {sROT}, {sJ}, {self.rotmul}"); A(f"s_and_b32 {sROT}, {sROT}, 7"); A(f"s_lshl_b32 {sROT}, {sROT}, 15")
        if self.early:
            lk = self.label("early")
            A(f"s_cmp_eq_u32 {sW}, {HS}"); A(f"s_cbranch_scc1 {lk}")
            for n in range(self.early): self.kv_load("K", n // 4, n % 4)
            self.L(lk)
        self.mk(R_GW, P_GW, None, 1024)
        per = -(-86 // self.nx)
        if self.wmap:
            A(f"s_lshl_b32 {sCNT}, {sT0}, 2"); A(f"s_lshr_b32 {sCNT}, {self.wmap}, {sCNT}"); A(f"s_and_b32 {sCNT}, {sCNT}, 15")
        A(f"s_and_b32 {sT1}, {sT1}, 15")
        A(f"s_mul_i32 {sSL}, {sCNT}, {per}")
        A(f"s_add_u32 {sSL}, {sSL}, {sT1}")
        A(f"s_cmp_lt_u32 {sT1}, {per}")
        A(f"s_cselect_b32 {sSL}, {sSL}, 1000")
        A(f"s_cmp_lt_u32 {sSL}, 86")
        A(f"s_cselect_b32 s{R_WD+2}, {15*1024+128}, 0")
        A(f"s_cselect_b32 {sSL}, {sSL}, 0")
        A(f"s_lshl_b32 {sT0}, {sSL}, 14"); A(f"s_lshl_b32 {sT1}, {sW}, 7"); A(f"s_add_u32 {sT0}, {sT0}, {sT1}")
        self.mk(R_WD, P_WD, sT0, None)
        A(f"s_lshl_b32 {sT0}, {sH}, 17"); A(f"s_add_u32 {sT0}, {sT0}, {sT1}")
        self.mk(R_WO, P_WO, sT0, 127 * 1024 + 128)
        A(f"v_lshlrev_b32 v{vT1}, 4, v{vL}")
        t = vTM + 4
        A(f"v_and_b32 v{t}, 7, v{vL}")
        A(f"v_lshlrev_b32 v{t}, 4, v{t}")
        A(f"v_lshrrev_b32 v{t+1}, 3, v{vL}")
        A(f"v_lshl_add_u32 v{vOD}, v{t+1}, 10, v{t}")
        A(f"v_and_b32 v{t+2}, 3, v{t+1}")
        A(f"v_lshlrev_b32 v{t+2}, 3, v{t+2}")
        A(f"v_lshrrev_b32 v{t+1}, 2, v{t+1}")
        A(f"v_add_u32 v{t+1}, v{t+1}, v{t+2}")
        A(f"v_lshl_add_u32 v{vOW}, v{t+1}, 10, v{t}")
        A(f"s_lshl_b32 {sWOL}, {sW}, 14"); A(f"s_add_u32 {sWOL}, {sWOL}, {L_WO}")
        A(f"s_lshl_b32 {sWDL}, {sW}, 11"); A(f"s_add_u32 {sWDL}, {sWDL}, {L_WD}")
        self.C("selection masks: e = i&7 ; M_u = (e>>1)==u ? (e&1 ? 0xffff0000 : 0xffff) : 0")
        A(f"v_and_b32 v{t}, 1, v{vI}")
        A(f"v_lshlrev_b32 v{t}, 4, v{t}")
        A(f"v_mov_b32 v{t+1}, 0xffff")
        A(f"v_lshlrev_b32 v{t+1}, v{t}, v{t+1}")
        A(f"v_bfe_u32 v{t}, v{vI}, 1, 2")
        for u in range(4):
            A(f"v_cmp_eq_u32 vcc, {u}, v{t}")
            self.nop(2)
            A(f"v_cndmask_b32 v{vM+u}, 0, v{t+1}, vcc")
        A(f"s_mov_b32 {sDUP0}, 0x01000100"); A(f"s_mov_b32 {sDUP1}, 0x03020302")
        A(f"s_mov_b32 {sC}, {f32(math.log2(math.e) / math.sqrt(128.0))}")
        if self.stamps: A(f"s_getreg_b32 {sXCC}, hwreg(HW_REG_XCC_ID)")
        A(f"s_add_u32 {sT0}, {sWOL}, {14*1024}")
        A(f"v_lshl_add_u32 v{vT0}, v{vL}, 4, {sT0}")
        def hsw():
            A("s_waitcnt vmcnt(0)")
            for n in range(self.early): self.kv_load("K", n // 4, n % 4)
        self.only(HS, hsw)
        if self.early:
            A(f"s_waitcnt vmcnt({self.early})")
            for n in range(self.early, 4 + self.npre): self.kv_load("K", n // 4, n % 4)
        else:
            for t in range(4):
                A(f"s_waitcnt vmcnt({[3,2,2,3][t]})")
                self.kv_load("K", 0, t)
            for n in range(self.npre): self.kv_load("K", 1 + n // 4, n % 4)
        self.bsel(vXR, 0, 0); self.bsel(vXR, 1, 1)
        self.nop(1)
        A(f"v_mfma_f32_16x16x32_bf16 {vr(vACC,4)}, {vr(vDF,4)}, {vr(vBF,4)}, 0")
        A(f"v_mfma_f32_16x16x32_bf16 {vr(vAC2,4)}, {vr(vDF+8,4)}, {vr(vBF,4)}, 0")
        A(f"v_mfma_f32_16x16x32_bf16 {vr(vACC,4)}, {vr(vDF+4,4)}, {vr(vBF+4,4)}, {vr(vACC,4)}")
        A(f"v_mfma_f32_16x16x32_bf16 {vr(vAC2,4)}, {vr(vDF+12,4)}, {vr(vBF+4,4)}, {vr(vAC2,4)}")
        self.nop(8)
        A(f"ds_write_b128 v{vT0}, {vr(vACC,4)}")
        A(f"ds_write_b128 v{vT0}, {vr(vAC2,4)} offset:1024")
        A("s_waitcnt lgkmcnt(0)")
        def arrive():
            self.C("this workgroup's slots are invalid now: count it in at its head's counter")
            A(f"s_lshl_b32 {sTF}, {sFT}, 3"); A(f"s_mov_b32 {sARR}, 1")
            A(f"s_atomic_add {sARR}, s[{P_DBG}:{P_DBG+1}], {sTF} glc")
        self.only(HS, arrive)
        A("s_barrier")
        def publish():
            d = vSP; d2 = vK + 96
            A(f"v_add_u32 v{vT0}, {L_WO + 14*1024}, v{vT1}")
            A(f"v_add_u32 v{vTM}, 0x10000, v{vT0}")
            for w in range(8): A(f"ds_read_b128 {vr(d+4*w,4)}, v{vT0 if w < 4 else vTM} offset:{16384*(w&3)}")
            for w in range(4): A(f"ds_read_b128 {vr(d2+4*w,4)}, v{vT0} offset:{1024+16384*w}")
            A(f"s_lshl_b32 {sT0}, {sH}, 3"); A(f"s_add_u32 {sT0}, {sT0}, {sJ}"); A(f"s_lshl_b32 {sT0}, {sT0}, 10")
            A(f"s_add_u32 {sT0}, {sT0}, {WS_Q}")
            A(f"s_lshl_b32 {sT1}, {sTI}, 3"); A(f"s_add_u32 {sT1}, {sT1}, {sJ}"); A(f"s_lshl_b32 {sT1}, {sT1}, 10")
            A(f"s_add_u32 {sT1}, {sT1}, {WS_F}")
            self.lgkm(4)
            for w in range(4, 8): A(f"ds_read_b128 {vr(d2+4*w,4)}, v{vTM} offset:{1024+16384*(w&3)}")
            for w in range(1, 8):
                for r in range(4): A(f"v_add_f32 v{d+r}, v{d+r}, v{d+4*w+r}")
            for r in range(4): A(f"v_min_u32 v{d+r}, -2, v{d+r}")
            A(f"buffer_store_dwordx4 {vr(d,4)}, v{vT1}, {srd(R_WS)}, {sT0} offen sc1")
            A("s_waitcnt lgkmcnt(0)")
            for w in range(1, 8):
                for r in range(4): A(f"v_add_f32 v{d2+r}, v{d2+r}, v{d2+4*w+r}")
            for r in range(4): A(f"v_min_u32 v{d2+r}, -2, v{d2+r}")
            A(f"buffer_store_dwordx4 {vr(d2,4)}, v{vT1}, {srd(R_WS)}, {sT1} offen sc1")
            self.nop(2)
        self.only(PUB, publish)

    def items(self):
        A = self.A
        it = []
        def add(name, fn, dep=None): it.append(dict(name=name, fn=fn, dep=dep))
        def grp(kind, G, dep):
            for t in range(4): add(f"{kind}{G}_{t}", lambda t=t: self.kv_load(kind, G, t), dep if t == 0 else None)
        wd = []; wo = []
        for t in range(2):
            def fn(t=t):
                A(f"s_add_u32 m0, {sWDL}, {t*1024}")
                A(f"s_movk_i32 {sTD}, {t*8192}")
                A(f"buffer_load_dwordx4 v{vOD}, {srd(R_WD)}, {sTD} offen nt lds")
            wd.append((f"wd{t}", fn, None))
        for t in range(16):
            def fn(t=t):
                A(f"s_add_u32 m0, {sWOL}, {t*1024}")
                A(f"s_mov_b32 {sTD}, {(32*(t>>2) + 2*(t&3))*1024}")
                A(f"buffer_load_dwordx4 v{vOW}, {srd(R_WO)}, {sTD} offen nt lds")
            wo.append((f"wo{t}", fn, "qred" if t >= 14 else None))
        q = wo[:4] + wd + wo[4:]
        def put(slot):
            for _ in range(self.dma[slot]):
                n, fn, dep = q.pop(0); add(n, fn, dep)
        for G in range(8): grp("K", G, None); put(G)
        for G in range(8): grp("V", G, ("st0" if G == 7 else f"qk{G-1}") if G else None); put(8 + G)
        return it

    def mb_load(self):
        self.A(f"s_load_dword {sGO}, s[{P_WS}:{P_WS+1}], {sMB} glc")
    def ga_loads(self):
        A = self.A
        t = vTM
        A(f"s_lshl_b32 {sT0}, {sH}, 13"); A(f"s_lshl_b32 {sT1}, {sB}, 7"); A(f"s_add_u32 {sT0}, {sT0}, {sT1}")
        A(f"s_add_u32 {sT0}, {sT0}, {WS_Q}")
        A(f"v_and_b32 v{t}, 7, v{vL}"); A(f"v_lshlrev_b32 v{t}, 4, v{t}")
        A(f"v_bfe_u32 v{t+1}, v{vL}, 3, 2"); A(f"v_lshl_add_u32 v{t}, v{t+1}, 8, v{t}")
        A(f"v_lshrrev_b32 v{t+1}, 5, v{vL}"); A(f"v_lshl_add_u32 v{t}, v{t+1}, 10, v{t}")
        A(f"s_add_u32 {sT1}, {sT0}, 4096")
        for k in range(4):
            A(f"buffer_load_dwordx4 {vr(vSP+4*k,4)}, v{t}, {srd(R_WS)}, {sT0 if k < 2 else sT1} offen offset:{(k&1)*2048} sc1")
    def step_hs(self, k, last):
        A = self.A
        def fn():
            end = self.label("hsend"); wait = self.label("hswait")
            if k == 0:
                self.C("the last of the eight workgroups of a head tells all of them that the head's slots are invalid")
                A(f"s_lshl_b32 {sMB}, s2, 7"); A(f"s_add_u32 {sMB}, {sMB}, {WS_MB}")
                A(f"s_mov_b32 {sDONE}, 0")
                A(f"v_lshlrev_b32 v{vQF+4}, 12, v{vL}"); A(f"v_mov_b32 v{vQF+6}, 1")
                A(f"s_lshl_b32 {sT0}, {sFT}, 7"); A(f"s_add_u32 {sT0}, {sT0}, {WS_MB}")
                A("s_waitcnt lgkmcnt(0)")
                A(f"s_and_b32 {sARR}, {sARR}, 7"); A(f"s_cmp_lg_u32 {sARR}, 7"); A(f"s_cbranch_scc1 {wait}")
                self.lanes(0xff, 0)
                A(f"buffer_store_dword v{vQF+6}, v{vQF+4}, {srd(R_WS)}, {sT0} offen sc1")
                A("s_mov_b64 exec, -1")
                A(f"s_mov_b32 {sGO}, 1")
                A(f"s_branch {end}")
                self.L(wait)
                self.mb_load()
                self.L(end)
                return
            A(f"s_cmp_eq_u32 {sDONE}, 1"); A(f"s_cbranch_scc1 {end}")
            A("s_waitcnt lgkmcnt(0)")
            if last:
                sp = self.label("mbspin"); go = self.label("go")
                A(f"s_cmp_eq_u32 {sGO}, 1"); A(f"s_cbranch_scc1 {go}")
                A(f"s_mov_b32 {sCNT}, 0")
                A(f"v_mov_b32 v{vTM}, 0")
                self.L(sp)
                A("s_mov_b64 exec, 1")
                A(f"buffer_load_dword v{vFL}, v{vTM}, {srd(R_WS)}, {sMB} offen sc1")
                A("s_mov_b64 exec, -1")
                A(f"s_add_u32 {sCNT}, {sCNT}, 1")
                A("s_waitcnt vmcnt(0)")
                A(f"v_readfirstlane_b32 {sTF}, v{vFL}")
                A(f"s_cmp_ge_u32 {sCNT}, {SPIN}"); A(f"s_cbranch_scc1 {go}")
                A(f"s_cmp_lg_u32 {sTF}, 1"); A(f"s_cbranch_scc1 {sp}")
                self.L(go)
            else:
                A(f"s_cmp_lg_u32 {sGO}, 1"); A(f"s_cbranch_scc1 {wait}")
            self.ga_loads()
            A(f"s_mov_b32 {sDONE}, 1")
            if not last:
                A(f"s_branch {end}")
                self.L(wait)
                self.mb_load()
            self.L(end)
        self.only(HS, fn)
    def step_qsvc(self):
        A = self.A
        def fn():
            gs = self.label("gaspin"); ok = self.label("gaok")
            t = vTM; d = vSP
            A(f"s_mov_b32 {sCNT}, 0")
            self.L(gs)
            A(f"v_max3_u32 v{t+2}, v{d}, v{d+1}, v{d+2}")
            for k in range(3, 15, 2): A(f"v_max3_u32 v{t+2}, v{t+2}, v{d+k}, v{d+k+1}")
            A(f"v_max_u32 v{t+2}, v{t+2}, v{d+15}")
            A(f"v_cmp_eq_u32 vcc, -1, v{t+2}")
            A(f"s_cbranch_vccz {ok}")
            self.ga_loads()
            A(f"s_add_u32 {sCNT}, {sCNT}, 1")
            A(f"s_cmp_lt_u32 {sCNT}, {SPIN}")
            A("s_waitcnt vmcnt(0)")
            A(f"s_cbranch_scc1 {gs}")
            self.L(ok)
            for k in range(1, 4):
                for r in range(4): A(f"v_add_f32 v{d+r}, v{d+r}, v{d+4*k+r}")
            A(f"v_and_b32 v{t+1}, 7, v{vL}")
            A(f"v_lshrrev_b32 v{t+2}, 5, v{vL}")
            A(f"v_permlane32_swap_b32 v{d}, v{d+1}"); A(f"v_permlane32_swap_b32 v{d+2}, v{d+3}")
            A(f"v_lshl_add_u32 v{t+1}, v{t+2}, 3, v{t+1}")
            A(f"v_add_f32 v{d}, v{d}, v{d+1}"); A(f"v_add_f32 v{d+2}, v{d+2}, v{d+3}")
            A(f"v_cvt_pk_bf16_f32 v{d}, v{d}, v{d+2}")
            A(f"v_bfe_u32 v{t}, v{vL}, 3, 2")
            A(f"v_lshl_add_u32 v{t}, v{t}, 5, v{t+1}")
            A(f"v_lshlrev_b32 v{t}, 1, v{t}")
            A(f"ds_write_b16 v{t}, v{d} offset:{L_QS}")
            A(f"ds_write_b16_d16_hi v{t}, v{d} offset:{L_QS+32}")
        self.only(HS, fn)

    def step_gate0(self):
        A = self.A
        def fn():
            A(f"s_lshl_b32 {sT1}, {sB}, 10")
            A(f"buffer_load_dwordx4 {vr(vXR,4)}, v{vT1}, {srd(R_X)}, {sT1} offen")
            A(f"buffer_load_dwordx4 {vr(vXR+4,4)}, v{vT1}, {srd(R_GW)}, 0 offen")
        self.only(GSV, fn)
    def step_gate(self):
        A = self.A
        def fn():
            x, w = vXR, vXR + 4
            t = vTM; acc = vT0
            A(f"v_mov_b32 v{acc}, 0")
            for k in range(4):
                A(f"v_lshlrev_b32 v{t}, 16, v{x+k}"); A(f"v_lshlrev_b32 v{t+1}, 16, v{w+k}")
                A(f"v_and_b32 v{t+2}, 0xffff0000, v{x+k}"); A(f"v_and_b32 v{t+3}, 0xffff0000, v{w+k}")
                A(f"v_mul_f32 v{t}, v{t}, v{t+1}"); A(f"v_mul_f32 v{t+2}, v{t+2}, v{t+3}")
                A(f"v_cvt_pk_bf16_f32 v{t}, v{t}, v{t+2}")
                A(f"v_lshlrev_b32 v{t+1}, 16, v{t}"); A(f"v_and_b32 v{t}, 0xffff0000, v{t}")
                A(f"v_add_f32 v{acc}, v{acc}, v{t+1}"); A(f"v_add_f32 v{acc}, v{acc}, v{t}")
            for ctl in ("quad_perm:[1,0,3,2]", "quad_perm:[2,3,0,1]", "row_half_mirror", "row_mirror"):
                self.dpp_add(acc, ctl)
            self.swap_reduce("v_add_f32", acc, t, 16)
            self.swap_reduce("v_add_f32", acc, t, 32)
            A(f"v_cvt_pk_bf16_f32 v{acc}, v{acc}, v{acc}")
            A(f"v_and_b32 v{acc}, 0xffff0000, v{acc}")
            A(f"v_mul_f32 v{acc}, {f32(-math.log2(math.e))}, v{acc}")
            A(f"v_exp_f32 v{acc}, v{acc}")
            self.nop(1)
            A(f"v_add_f32 v{acc}, 1.0, v{acc}")
            A(f"v_rcp_f32 v{acc}, v{acc}")
            self.nop(1)
            A(f"v_cvt_pk_bf16_f32 v{acc}, v{acc}, v{acc}")
            A(f"v_and_b32 v{t}, 0xffff0000, v{acc}")
            A(f"v_sub_f32 v{t+1}, 1.0, v{t}")
            A(f"v_cvt_pk_bf16_f32 v{t+1}, v{t+1}, v{t+1}")
            A(f"v_and_b32 v{t+1}, 0xffff0000, v{t+1}")
            A(f"v_mov_b32 v{t+2}, 0")
            A(f"ds_write_b64 v{t+2}, {vr(t,2)} offset:{L_GS}")
        self.only(GSV, fn)

    def fl_load(self):
        A = self.A
        A(f"v_and_b32 v{vT0}, 31, v{vL}"); A(f"v_lshlrev_b32 v{vT0}, 3, v{vT0}")
        A(f"global_load_dword v{vFL}, v{vT0}, s[{P_DBG}:{P_DBG+1}] sc1")
    def fg_load(self):
        A = self.A
        A(f"s_lshr_b32 {sT0}, {sSL}, 3"); A(f"s_lshl_b32 {sT0}, {sT0}, 13")
        A(f"s_lshl_b32 {sT1}, {sB}, 7"); A(f"s_add_u32 {sT0}, {sT0}, {sT1}")
        A(f"s_bfe_u32 {sT1}, {sSL}, 0x20001"); A(f"s_lshl_b32 {sT1}, {sT1}, 8"); A(f"s_add_u32 {sT0}, {sT0}, {sT1}")
        A(f"s_and_b32 {sT1}, {sSL}, 1"); A(f"s_lshl_b32 {sT1}, {sT1}, 3"); A(f"s_add_u32 {sT0}, {sT0}, {sT1}")
        A(f"s_add_u32 {sT0}, {sT0}, {WS_F}")
        A(f"v_and_b32 v{vT0}, 7, v{vL}"); A(f"v_lshlrev_b32 v{vT0}, 4, v{vT0}")
        A(f"v_lshrrev_b32 v{vTM}, 3, v{vL}"); A(f"v_lshl_add_u32 v{vT0}, v{vTM}, 10, v{vT0}")
        A(f"buffer_load_dwordx2 {vr(vFG,2)}, v{vT0}, {srd(R_WS)}, {sT0} offen sc1")
        A(f"s_add_u32 {sT0}, {sT0}, {11*8192}")
        A(f"buffer_load_dwordx2 {vr(vFG+2,2)}, v{vT0}, {srd(R_WS)}, {sT0} offen sc1")
    def step_fga(self):
        A = self.A
        def fn():
            self.C("every workgroup has invalidated its slots -> gather the gate/up partials of this slice")
            ok = self.label("flok"); sp = self.label("flspin")
            A(f"v_cmp_gt_u32 vcc, 8, v{vFL}")
            A(f"s_cbranch_vccz {ok}")
            A(f"s_mov_b32 {sCNT}, 0")
            self.L(sp)
            A("s_sleep 32")
            self.fl_load()
            A(f"s_add_u32 {sCNT}, {sCNT}, 1")
            A(f"s_cmp_ge_u32 {sCNT}, {SPIN}")
            A("s_waitcnt vmcnt(0)")
            A(f"s_cbranch_scc1 {ok}")
            A(f"v_cmp_gt_u32 vcc, 8, v{vFL}")
            A(f"s_cbranch_vccnz {sp}")
            self.L(ok)
            self.fg_load()
        self.only(SVC, fn)
    def step_ffn2(self):
        A = self.A
        t = vTM
        def fn():
            self.C("h = gelu(gate)*up for 16 hidden units, then (1-g) * h @ w_down for all 512 columns")
            e = vFG
            ok = self.label("fgok"); sp = self.label("fgspin")
            A(f"s_mov_b32 {sCNT}, 0")
            self.L(sp)
            A(f"v_max3_u32 v{t}, v{e}, v{e+1}, v{e+2}"); A(f"v_max_u32 v{t}, v{t}, v{e+3}")
            A(f"v_cmp_eq_u32 vcc, -1, v{t}")
            A(f"s_cbranch_vccz {ok}")
            self.fg_load()
            A(f"s_add_u32 {sCNT}, {sCNT}, 1")
            A(f"s_cmp_lt_u32 {sCNT}, {SPIN}")
            A("s_waitcnt vmcnt(0)")
            A(f"s_cbranch_scc1 {sp}")
            self.L(ok)
            A(f"v_permlane32_swap_b32 v{e}, v{e+1}"); A(f"v_permlane32_swap_b32 v{e+2}, v{e+3}")
            self.nop(1)
            A(f"v_add_f32 v{e}, v{e}, v{e+1}"); A(f"v_add_f32 v{e+2}, v{e+2}, v{e+3}")
            self.swap_reduce("v_add_f32", e, e + 1, 16)
            self.swap_reduce("v_add_f32", e + 2, e + 3, 16)
            self.dpp_add(e, "row_ror:8"); self.dpp_add(e + 2, "row_ror:8")
            A(f"v_cvt_pk_bf16_f32 v{e}, v{e}, v{e+2}")
            A(f"v_and_b32 v{e+2}, 0xffff0000, v{e}")
            A(f"v_lshlrev_b32 v{e}, 16, v{e}")
            k0 = math.sqrt(2.0 / math.pi)
            self.C("gelu_tanh(x) = x / (1 + exp(-2*sqrt(2/pi)*(x + 0.044715 x^3)))")
            A(f"v_mul_f32 v{e+1}, v{e}, v{e}")
            A(f"v_mov_b32 v{e+3}, {f32(-2.0 * k0 * math.log2(math.e))}")
            A(f"v_mul_f32 v{e+1}, {f32(0.044715)}, v{e+1}")
            A(f"v_add_f32 v{e+1}, 1.0, v{e+1}")
            A(f"v_mul_f32 v{e+1}, v{e+1}, v{e}")
            A(f"v_mul_f32 v{e+1}, v{e+1}, v{e+3}")
            A(f"v_exp_f32 v{e+1}, v{e+1}")
            self.nop(1)
            A(f"v_add_f32 v{e+1}, 1.0, v{e+1}")
            A(f"v_rcp_f32 v{e+1}, v{e+1}")
            self.nop(1)
            A(f"v_mul_f32 v{e}, v{e}, v{e+1}")
            A(f"v_cvt_pk_bf16_f32 v{e}, v{e}, v{e}")
            A(f"v_and_b32 v{e}, 0xffff0000, v{e}")
            A(f"v_mul_f32 v{e}, v{e}, v{e+2}")
            A(f"v_cvt_pk_bf16_f32 v{e}, v{e}, v{e}")
            A(f"v_and_b32 v{t+1}, 7, v{vL}"); A(f"v_lshrrev_b32 v{t+2}, 5, v{vL}")
            A(f"v_lshl_add_u32 v{t+1}, v{t+2}, 3, v{t+1}")
            A(f"v_lshlrev_b32 v{t+1}, 1, v{t+1}")
            A(f"ds_write_b16 v{t+1}, v{e} offset:{L_HS}")
            A(f"v_lshlrev_b32 v{t+1}, 3, v{vG}")
            A(f"v_mov_b32 v{t+3}, 0")
            A("s_waitcnt lgkmcnt(0)")
            A(f"ds_read_b64 {vr(e,2)}, v{t+1} offset:{L_HS}")
            A(f"ds_read_b32 v{e+2}, v{t+3} offset:{L_GS+4}")
            A(f"v_lshrrev_b32 v{t}, 2, v{vI}"); A(f"v_and_b32 v{t+1}, 3, v{vI}")
            A(f"v_lshlrev_b32 v{t+1}, 3, v{t+1}")
            A(f"v_lshl_add_u32 v{t+1}, v{t}, 7, v{t+1}")
            A(f"v_lshl_add_u32 v{t+1}, v{vG}, 9, v{t+1}")
            A(f"v_lshlrev_b32 v{t+2}, 2, v{vL}")
            ms = ["", "s[52:53]", "s[54:55]", "s[68:69]"]
            for k in range(1, 4): A(f"v_cmp_eq_u32 {ms[k]}, {k}, v{vG}")
            wfs = [vDF, vK + 32]
            def rd(w):
                for tau in range(4):
                    A(f"ds_read_b64_tr_b16 {vr(wfs[w&1]+2*tau,2)}, v{t+1} offset:{L_WD + w*2048 + tau*32}")
            rd(0)
            for w in range(8):
                if w < 7: rd(w + 1)
                self.lgkm(4 if w == 0 else 5 if w < 7 else 0)
                for tau in range(4):
                    A(f"v_mfma_f32_16x16x16_bf16 {vr(vFD+4*tau,4)}, {vr(e,2)}, {vr(wfs[w&1]+2*tau,2)}, 0")
                self.nop(6)
                A(f"v_cndmask_b32 v{t+4}, v{vFD}, v{vFD+4}, {ms[1]}")
                self.nop(1)
                A(f"v_cndmask_b32 v{t+4}, v{t+4}, v{vFD+8}, {ms[2]}")
                self.nop(1)
                A(f"v_cndmask_b32 v{t+4}, v{t+4}, v{vFD+12}, {ms[3]}")
                A(f"v_mul_f32 v{t+4}, v{t+4}, v{e+2}")
                A(f"ds_write_b32 v{t+2}, v{t+4} offset:{L_YF + w*256}")
        self.only(SVC, fn)

    def step_qred(self):
        A = self.A
        t = vTM
        A(f"v_and_b32 v{t}, 8, v{vL}")
        A(f"v_lshlrev_b32 v{t}, 3, v{t}")
        A(f"v_lshl_add_u32 v{t}, v{vG}, 4, v{t}")
        A("s_waitcnt lgkmcnt(0)")
        A("s_barrier")
        for T in range(2): A(f"ds_read_b128 {vr(vQF+4*T,4)}, v{t} offset:{L_QS+128*T}")
        A("s_waitcnt lgkmcnt(0)")
    def qk_combine(self, G):
        A = self.A
        a = vSP + 4 * G; b = vQF + 8 + 4 * (G & 1)
        for r in range(4): A(f"v_permlane32_swap_b32 v{a+r}, v{b+r}")
        for r in range(4): A(f"v_add_f32_dpp v{a+r}, v{b+r}, v{a+r} row_ror:8 row_mask:0xf bank_mask:0xf")
    def step_qk(self, G):
        A = self.A
        a = vSP + 4 * G; b = vQF + 8 + 4 * (G & 1); k = vK + 16 * G
        A(f"v_mfma_f32_16x16x32_bf16 {vr(a,4)}, {vr(k,4)}, {vr(vQF,4)}, 0")
        A(f"v_mfma_f32_16x16x32_bf16 {vr(b,4)}, {vr(k+8,4)}, {vr(vQF,4)}, 0")
        A(f"v_mfma_f32_16x16x32_bf16 {vr(a,4)}, {vr(k+4,4)}, {vr(vQF+4,4)}, {vr(a,4)}")
        A(f"v_mfma_f32_16x16x32_bf16 {vr(b,4)}, {vr(k+12,4)}, {vr(vQF+4,4)}, {vr(b,4)}")
        if G > 0:
            self.nop(4)
            self.qk_combine(G - 1)
    def step_softmax(self):
        A = self.A
        t = vTM; m = vAC2 + 2; l = vT0
        A(f"v_max3_f32 v{m}, v{vSP}, v{vSP+1}, v{vSP+2}")
        for k in range(3, 27, 2): A(f"v_max3_f32 v{m}, v{m}, v{vSP+k}, v{vSP+k+1}")
        self.qk_combine(7)
        A(f"v_max3_f32 v{m}, v{m}, v{vSP+27}, v{vSP+28}")
        A(f"v_max3_f32 v{m}, v{m}, v{vSP+29}, v{vSP+30}")
        A(f"v_max_f32 v{m}, v{m}, v{vSP+31}")
        self.swap_reduce("v_max_f32", m, t, 16)
        self.swap_reduce("v_max_f32", m, t, 32)
        A(f"s_lshl_b32 {sT0}, {sW}, 2")
        A(f"v_mov_b32 v{t+4}, {sT0}")
        A(f"v_mov_b32 v{t+5}, 0")
        A("s_mov_b64 exec, 1")
        A(f"ds_write_b32 v{t+4}, v{m} offset:{L_MX}")
        A("s_mov_b64 exec, -1")
        A("s_waitcnt lgkmcnt(0)")
        A("s_barrier")
        A(f"ds_read_b128 {vr(vBF,4)}, v{t+5} offset:{L_MX}")
        A(f"ds_read_b128 {vr(vBF+4,4)}, v{t+5} offset:{L_MX+16}")
        A("s_waitcnt lgkmcnt(0)")
        A(f"v_max3_f32 v{m}, v{vBF}, v{vBF+1}, v{vBF+2}")
        A(f"v_max3_f32 v{m}, v{m}, v{vBF+3}, v{vBF+4}")
        A(f"v_max3_f32 v{m}, v{m}, v{vBF+5}, v{vBF+6}")
        A(f"v_max_f32 v{m}, v{m}, v{vBF+7}")
        A(f"v_mul_f32 v{m}, {sC}, v{m}")
        for k in range(32): A(f"v_fma_f32 v{vSP+k}, v{vSP+k}, {sC}, -v{m}")
        for k in range(32): A(f"v_exp_f32 v{vSP+k}, v{vSP+k}")
        A(f"v_add_f32 v{l}, v{vSP}, v{vSP+1}"); A(f"v_add_f32 v{t}, v{vSP+2}, v{vSP+3}")
        for k in range(4, 32, 2):
            A(f"v_add_f32 v{l}, v{l}, v{vSP+k}"); A(f"v_add_f32 v{t}, v{t}, v{vSP+k+1}")
        A(f"v_add_f32 v{l}, v{l}, v{t}")
        self.swap_reduce("v_add_f32", l, t, 16)
        self.swap_reduce("v_add_f32", l, t, 32)
        A("s_mov_b64 exec, 1")
        A(f"ds_write_b32 v{t+4}, v{l} offset:{L_LS}")
        A("s_mov_b64 exec, -1")
        for k in range(32): A(f"v_cvt_pk_bf16_f32 v{vSP+k}, v{vSP+k}, v{vSP+k}")
        A("s_waitcnt lgkmcnt(0)")
        A("s_barrier")
        def fn():
            self.C("publish (max, sum) of this quarter")
            A(f"ds_read_b128 {vr(vBF,4)}, v{t+5} offset:{L_LS}")
            A(f"ds_read_b128 {vr(vBF+4,4)}, v{t+5} offset:{L_LS+16}")
            A(f"s_lshl_b32 {sT0}, s2, 7"); A(f"s_add_u32 {sT0}, {sT0}, {WS_MB + 8}")
            A("s_waitcnt lgkmcnt(0)")
            for k in range(1, 8): A(f"v_add_f32 v{vBF}, v{vBF}, v{vBF+k}")
            A(f"v_min_u32 v{t+1}, -2, v{vBF}")
            A(f"v_mov_b32 v{t}, v{m}")
            A("s_mov_b64 exec, 1")
            A(f"buffer_store_dwordx2 {vr(t,2)}, v{t+5}, {srd(R_WS)}, {sT0} offen sc1")
            A("s_mov_b64 exec, -1")
        self.only(GSV, fn)
    def step_pre7(self):
        for r in range(1, 4):
            for u in range(4): self.A(f"v_and_b32 v{vK+64+4*r+u}, v{vSP+28+r}, v{vM+u}")
    def step_pv7(self, r):
        b = vBF if r == 0 else vK + 64 + 4 * r
        if r == 0: self.nop(1)
        self.A(f"v_mfma_f32_16x16x32_bf16 {vr(vACC,4)}, {vr(vK+96+4*r,4)}, {vr(b,4)}, {vr(vACC,4)}")
    def step_pv(self, G):
        A = self.A
        base = vX if G == 0 else vK + 16 * (G - 1)
        def build(k, bset):
            for u in range(4): A(f"v_and_b32 v{vBF+4*bset+u}, v{vSP+k}, v{vM+u}")
        for r in range(4):
            k = 4 * G + r
            if k == 0: build(0, 0)
            if k + 1 < 32: build(k + 1, (k + 1) & 1)
            else: self.nop(2)
            c = "0" if k == 0 else vr(vACC, 4)
            A(f"v_mfma_f32_16x16x32_bf16 {vr(vACC,4)}, {vr(base+4*r,4)}, {vr(vBF+4*(k&1),4)}, {c}")

    WF = [vQF, vK + 16 * 7, vX, vK]
    def step_wof(self):
        A = self.A
        t = vTM
        A(f"v_lshrrev_b32 v{t}, 2, v{vI}"); A(f"v_and_b32 v{t+1}, 3, v{vI}")
        A(f"v_lshlrev_b32 v{t+1}, 3, v{t+1}")
        A(f"v_lshl_add_u32 v{t+1}, v{t}, 7, v{t+1}")
        A(f"v_lshl_add_u32 v{t+2}, v{vG}, 10, v{t+1}")
        A(f"v_add_u32 v{vOQ}, {sWOL}, v{t+2}")
        for tau in range(4):
            for T in range(4):
                for hi in range(2):
                    A(f"ds_read_b64_tr_b16 {vr(self.WF[tau]+4*T+2*hi,2)}, v{vOQ} offset:{T*4096 + hi*512 + tau*32}")
            if tau < 3: A("s_waitcnt lgkmcnt(4)")
        self.C("addresses and constants of the tail")
        A(f"v_and_b32 v{t}, 7, v{vI}")
        A(f"s_mul_i32 {sT1}, {sW}, 144"); A(f"s_add_u32 {sT1}, {sT1}, {L_OB}")
        A(f"v_lshl_add_u32 v{vOK}, v{vG}, 5, {sT1}")
        A(f"v_lshl_add_u32 v{vOK}, v{t}, 2, v{vOK}")
        A(f"v_mul_u32_u24 v{vOW}, 144, v{vI}")
        A(f"v_lshl_add_u32 v{vOW}, v{vG}, 4, v{vOW}")
        A(f"v_mov_b32 v{t+1}, 0x44444444"); A(f"v_mov_b32 v{t+2}, 0xeeeeeeee")
        A(f"v_cmp_lt_u32 vcc, 7, v{vI}")
        for k in range(16): A(f"v_mov_b32 v{vDF+k}, 0")
        A(f"v_cndmask_b32 v{vAC2+1}, v{t+1}, v{t+2}, vcc")
        A(f"v_mul_u32_u24 v{t+1}, {2*self.astride}, v{vG}")
        A(f"v_lshl_add_u32 v{vOF}, v{vI}, 2, v{t+1}")
        A(f"v_add_u32 v{t+2}, 8, v{vI}"); A(f"v_and_b32 v{t+2}, 15, v{t+2}")
        A(f"v_lshl_add_u32 v{vOD}, v{t+2}, 2, v{t+1}")
        A(f"s_mul_i32 {sTF}, {sW}, {8*self.astride}")
        A(f"s_mul_i32 {sT1}, {sB}, {64*self.astride}"); A(f"s_add_u32 {sTF}, {sTF}, {sT1}")
        A(f"s_lshl_b32 {sT1}, {sB}, 10"); A(f"s_lshl_b32 {sT0}, {sW}, 7"); A(f"s_add_u32 {sT1}, {sT1}, {sT0}")
        A(f"v_lshl_add_u32 v{vT1}, v{vL}, 1, {sT1}")
        A(f"v_cmp_eq_u32 s[52:53], 8, v{vI}"); A(f"v_cmp_eq_u32 s[54:55], 0, v{vI}"); A(f"v_cmp_gt_u32 s[68:69], 8, v{vI}")
        A(f"s_mov_b32 {sX0}, {f32(127.0)}")
        A(f"s_lshl_b32 {sT1}, {sW}, 8")
        A(f"v_lshl_add_u32 v{vAC2}, v{vL}, 2, {sT1}")
        A("s_waitcnt lgkmcnt(0)")
        A(f"v_mov_b32 v{vOQ}, 0")

    def st_load(self):
        A = self.A
        A(f"s_lshl_b32 {sT0}, {sB}, 7"); A(f"s_add_u32 {sT0}, {sT0}, {sFT}"); A(f"s_lshl_b32 {sT0}, {sT0}, 7")
        A(f"s_add_u32 {sT0}, {sT0}, {WS_MB + 8}")
        A(f"v_mov_b32 v{vT0}, 0")
        for k in range(4):
            if k: A(f"s_add_u32 {sT0}, {sT0}, 4096")
            A(f"buffer_load_dwordx2 {vr(vXR+2*k,2)}, v{vT0}, {srd(R_WS)}, {sT0} offen sc1")
    def step_scale(self):
        A = self.A
        t = vTM; s = vXR
        def fn():
            self.C("g * exp2(m_own - M) / L from the statistics of the four quarters")
            ok = self.label("stok"); sp = self.label("stspin")
            A(f"v_mov_b32 v{t+3}, 0")
            A(f"ds_read_b32 v{t+2}, v{t+3} offset:{L_GS}")
            A(f"s_mov_b32 {sCNT}, 0")
            self.L(sp)
            A(f"v_max3_u32 v{t}, v{s+1}, v{s+3}, v{s+5}")
            A(f"v_max_u32 v{t}, v{t}, v{s+7}")
            A(f"v_cmp_eq_u32 vcc, -1, v{t}")
            A(f"s_cbranch_vccz {ok}")
            self.st_load()
            A(f"s_add_u32 {sCNT}, {sCNT}, 1")
            A(f"s_cmp_lt_u32 {sCNT}, {SPIN}")
            A("s_waitcnt vmcnt(0)")
            A(f"s_cbranch_scc1 {sp}")
            self.L(ok)
            A(f"v_max3_f32 v{t}, v{s}, v{s+2}, v{s+4}")
            A(f"v_max_f32 v{t}, v{t}, v{s+6}")
            for k in range(4): A(f"v_sub_f32 v{s+2*k}, v{s+2*k}, v{t}")
            A(f"v_sub_f32 v{t+1}, v{vAC2+2}, v{t}")
            for k in range(4): A(f"v_exp_f32 v{s+2*k}, v{s+2*k}")
            A(f"v_exp_f32 v{t+1}, v{t+1}")
            A(f"v_mul_f32 v{t}, v{s}, v{s+1}")
            for k in range(1, 4): A(f"v_fmac_f32 v{t}, v{s+2*k}, v{s+2*k+1}")
            A(f"v_rcp_f32 v{t}, v{t}")
            A("s_waitcnt lgkmcnt(0)")
            A(f"v_mul_f32 v{t+1}, v{t+2}, v{t+1}")
            A(f"v_mul_f32 v{t}, v{t}, v{t+1}")
            A(f"ds_write_b32 v{t+3}, v{t} offset:{L_FS}")
        self.only(SVC, fn)

    def step_tail(self):
        A = self.A
        t = vTM; af = vSP
        self.lanes(0x00ff00ff, 0x00ff00ff)
        self.nop(6)
        A(f"v_cvt_pk_bf16_f32 v{t}, v{vACC}, v{vACC+1}")
        A(f"v_cvt_pk_bf16_f32 v{t+1}, v{vACC+2}, v{vACC+3}")
        A(f"ds_write_b32 v{vOK}, v{t}")
        A(f"ds_write_b32 v{vOK}, v{t+1} offset:{8*144}")
        A("s_mov_b64 exec, -1")
        A("s_waitcnt lgkmcnt(0)")
        A("s_barrier")
        self.C("16 rows = 8 wave partials x 2 halves of every group of four k : dense data in 2:4 form")
        for T in range(2): A(f"ds_read_b128 {vr(af+4*T,4)}, v{vOW} offset:{L_OB + 64*T}")
        A(f"ds_read_b32 v{t+4}, v{vOQ} offset:{L_FS}")
        A(f"ds_read_b32 v{vAC2+3}, v{vAC2} offset:{L_YF}")
        for T in range(2):
            self.lgkm(3 - T)
            for tau in range(4):
                A(f"v_smfmac_f32_16x16x64_bf16 {vr(vDF+4*tau,4)}, {vr(af+4*T,4)}, {vr(self.WF[tau]+8*T,8)}, v{vAC2+1}")
        A("s_waitcnt lgkmcnt(0)")
        self.nop(4)
        for tau in range(4):
            d = vDF + 4 * tau
            A(f"v_add_f32 v{d}, v{d}, v{d+1}"); A(f"v_add_f32 v{d+2}, v{d+2}, v{d+3}")
            A(f"v_add_f32 v{d}, v{d}, v{d+2}")
        self.nop(1)
        A(f"v_permlane16_swap_b32 v{vDF}, v{vDF+4}")
        A(f"v_permlane16_swap_b32 v{vDF+8}, v{vDF+12}")
        A(f"v_add_f32 v{vDF}, v{vDF}, v{vDF+4}")
        A(f"v_add_f32 v{vDF+8}, v{vDF+8}, v{vDF+12}")
        self.nop(2)
        A(f"v_permlane32_swap_b32 v{vDF}, v{vDF+8}")
        A(f"v_add_f32 v{t}, v{vDF}, v{vDF+8}")
        A(f"v_fma_f32 v{t}, v{t}, v{t+4}, v{vAC2+3}")
        self.C("8 sums and their arrival count share one 64-B request")
        A(f"v_cndmask_b32 v{t+1}, v{t}, 1.0, s[52:53]")
        A(f"v_cndmask_b32 v{t+2}, v{t}, 1.0, s[54:55]")
        self.lanes(0x01ff01ff, 0x01ff01ff)
        A(f"buffer_atomic_add_f32 v{t+1}, v{vOF}, {srd(R_WS)}, {sTF} offen sc0")
        self.lanes(0xff01ff01, 0xff01ff01)
        A(f"buffer_atomic_add_f32 v{t+2}, v{vOD}, {srd(R_WS)}, {sTF} offen offset:{self.astride} sc0")
        A("s_mov_b64 exec, -1")

    def finish(self):
        A = self.A
        t = vTM
        A("s_waitcnt vmcnt(0)")
        A(f"v_mov_b32_dpp v{t+3}, v{t+1} row_newbcast:8 row_mask:0xf bank_mask:0xf")
        A(f"v_mov_b32_dpp v{t+4}, v{t+2} row_newbcast:0 row_mask:0xf bank_mask:0xf")
        A(f"v_cndmask_b32 v{t+1}, v{t+2}, v{t+1}, s[68:69]")
        A(f"v_cndmask_b32 v{t+3}, v{t+4}, v{t+3}, s[68:69]")
        A(f"v_add_f32 v{t}, v{t}, v{t+1}")
        A(f"v_cmp_eq_f32 vcc, {sX0}, v{t+3}")
        A(f"v_cvt_pk_bf16_f32 v{t}, v{t}, v{t}")
        sk = self.label("fin")
        A("s_and_b64 exec, exec, vcc")
        A(f"s_cbranch_execz {sk}")
        A(f"global_store_short v{vT1}, v{t}, s[{P_OUT}:{P_OUT+1}]")
        self.L(sk)
        A("s_mov_b64 exec, -1")

    def steps(self, idx):
        S = []
        def add(name, needs, fn): S.append(dict(name=name, needs=needs, fn=fn))
        add("gate0", [], self.step_gate0)
        pts = list(self.hs_pts)
        evs = [(idx[p], f"hs{k}", [p], (lambda k=k: self.step_hs(k, k == len(pts) - 1))) for k, p in enumerate(pts)]
        evs.append((idx["K1_0"] + 0.5, "gate", ["@gate0"], self.step_gate))
        for _, n, nd, fn in sorted(evs, key=lambda e: e[0]): add(n, nd, fn)
        add("join", [f"@hs{len(pts)-1}", self.q_at], self.step_qsvc)
        add("qred", [], self.step_qred)
        for G in range(8): add(f"qk{G}", [f"K{G}_3"], lambda G=G: self.step_qk(G))
        add("fl", [], lambda: self.only(SVC, self.fl_load))
        add("softmax", ["wd1"], self.step_softmax)
        placed = False
        for G in range(8):
            if G == 7:
                add("pre7", [], self.step_pre7)
                add("scale", ["@st0"], self.step_scale)
            if not placed and G >= 5 and idx[f"V{G}_3"] > idx["wo15"]:
                add("wof", ["wo15"], self.step_wof); placed = True
            if G == 7:
                for r in range(4): add("pv7" if r == 3 else f"pv7_{r}", [f"V7_{r}"], lambda r=r: self.step_pv7(r))
            else:
                add(f"pv{G}", [f"V{G}_3"], lambda G=G: self.step_pv(G))
            if f"pv{G}" == self.fga_pos: add("fga", ["@fl"], self.step_fga)
            if f"pv{G}" == self.st_pos: add("st0", [], lambda: self.only(SVC, self.st_load))
            if f"pv{G}" == self.ffn_pos: add("ffn2", ["@fga"], self.step_ffn2)
        nm = [s["name"] for s in S]
        assert placed and nm.index("pv3") < nm.index("ffn2") < nm.index("wof")
        add("tail", [], self.step_tail)
        return S

    def schedule(self):
        items = self.items()
        idx = {it["name"]: n for n, it in enumerate(items)}
        issued = 4 + self.npre
        assert all(it["name"][0] == "K" for it in items[:issued])
        comp = -1; done = set(); pos = -1; after = {}; W = self.W
        for st in self.steps(idx):
            need = max([after[n[1:]] if n[0] == "@" else idx[n] for n in st["needs"]], default=-1)
            pos = max(pos, need)
            def issue(w):
                nonlocal issued, comp
                while issued < len(items):
                    it = items[issued]
                    if issued > pos + w - 1: break
                    if it["dep"] and it["dep"] not in done:
                        assert issued > need, (st["name"], it["name"])
                        break
                    if issued - (comp + 1) >= w:
                        self.A(f"s_waitcnt vmcnt({w-1})"); comp = issued - w
                    it["fn"](); issued += 1
            if st["name"] != "qred": issue(W)
            if comp < need:
                self.A(f"s_waitcnt vmcnt({issued-1-need})"); comp = need
            if st["name"] == "join":
                issue(W + self.boost_q); W = self.W2
            if st["name"] in self.boosts: issue(W + self.boosts[st["name"]])
            self.o.append(f"    ; ---- {st['name']}")
            st["fn"](); done.add(st["name"])
            after[st["name"]] = issued
            if st["name"] in ("qred", "pv7", "tail"): self.stamp({"qred": 1, "pv7": 2, "tail": 3}[st["name"]])
        assert issued == len(items)

    def build(self):
        A = self.A
        K1 = NAME + "_kernel"
        o = self.o
        o.append(HEADER.rstrip("\n"))
        o.append(f"; @launch grid=(256,1,1) block=(512,1,1) lds={LDS_BYTES}")
        o += ['.amdgcn_target "amdgcn-amd-amdhsa--gfx950"', ".text", f".globl {K1}", ".p2align 8",
              f".type {K1},@function", f"{K1}:"]
        self.phase0()
        self.schedule()
        self.finish()
        if self.stamps: A("s_barrier")
        if self.stamps:
            self.L("L_stamp")
            A(f"s_cmp_lg_u32 {sW}, 0"); A("s_cbranch_scc1 L_end")
            self.stamp(4)
            A("s_mov_b64 exec, 1")
            A("s_waitcnt lgkmcnt(0)")
            A(f"s_add_u32 s40, s40, {STAMP_OFF}"); A("s_addc_u32 s41, s41, 0")
            A("s_lshl_b32 s8, s2, 6"); A("v_mov_b32 v1, s8")
            for k in range(4):
                A(f"v_mov_b32 v{8+2*k}, s{sST+2*k}"); A(f"v_mov_b32 v{9+2*k}, s{sST+2*k+1}")
            A(f"v_mov_b32 v16, {sXCC}"); A("v_mov_b32 v17, 0")
            A(f"v_mov_b32 v18, s{sST+8}"); A(f"v_mov_b32 v19, s{sST+9}")
            A("global_store_dwordx4 v1, v[8:11], s[40:41]")
            A("global_store_dwordx4 v1, v[12:15], s[40:41] offset:16")
            A("global_store_dwordx4 v1, v[16:19], s[40:41] offset:32")
        self.L("L_end"); A("s_endpgm")
        o += ['.section .rodata,"a"', ".p2align 6", f".amdhsa_kernel {K1}", "  .amdhsa_next_free_vgpr 256",
              "  .amdhsa_next_free_sgpr 102", "  .amdhsa_accum_offset 256", "  .amdhsa_group_segment_fixed_size 0",
              "  .amdhsa_kernarg_size 104", "  .amdhsa_user_sgpr_count 2", "  .amdhsa_user_sgpr_kernarg_segment_ptr 1",
              "  .amdhsa_system_sgpr_workgroup_id_x 1", ".end_amdhsa_kernel"]
        return "\n".join(o) + "\n"

if __name__ == "__main__":
    import argparse, json
    ap = argparse.ArgumentParser()
    ap.add_argument("out"); ap.add_argument("--opt", default="{}")
    a = ap.parse_args()
    open(a.out, "w").write(Gen(**json.loads(a.opt)).build())
```

```python
import sys, struct, math

NAME = "gated_mix__mha_block_cached__geglu_ffn__decode"
HEADER = open("cdna_kernels/" + NAME + ".s.ref").read().split("; Override launch")[0]

def f32(x):
    return "0x%08x" % struct.unpack("<I", struct.pack("<f", x))[0]

L_QS = 0
L_HS = 256
L_GS = 320
L_FS = 336
L_MX = 384
L_LS = 448
L_OB = 512
L_YF = 3072
L_WD = 5120
L_WO = L_WD + 16384
LDS_BYTES = L_WO + 131072

WS_A = 0
WS_MB = 0x11000
WS_Q = 0x19000
WS_F = WS_Q + 0x40000
WS_BYTES = WS_F + 176 * 1024
STAMP_OFF = 128 << 20
SPIN = "0x4000"

sW = "s3"
P_X, P_K, P_V, P_WQ, P_WO, P_WG, P_WU = 16, 18, 20, 22, 24, 28, 30
P_WD, P_GW, P_OUT, P_DBG, P_WS = 32, 34, 36, 38, 40
R_K, R_V, R_WQ, R_WO, R_X, R_GW, R_FT, R_WD, R_WS = 44, 48, 52, 56, 60, 64, 68, 76, 80
sH, sB, sS, sSL, sT0, sT1, sT2 = "s4", "s5", "s6", "s7", "s8", "s9", "s10"
sTK, sTV, sTQ, sTF, sTD = "s11", "s12", "s13", "s14", "s15"
sX0, sX1 = "s42", "s43"
sARR, sMB = "s42", "s43"
sJ, sFT, sROT, sTI = "s72", "s73", "s74", "s75"
sWOL, sWDL = "s84", "s85"
sDUP0, sDUP1 = "s86", "s87"
sGO, sDONE = "s86", "s87"
sC, sCNT, sXCC, sBH = "s88", "s89", "s90", "s91"
sKO = "s88"
sST = 92
def srd(r): return f"s[{r}:{r+3}]"

vL, vI, vG = 1, 2, 3
vOK, vOV, vOQ, vOW, vOF, vOD, vT0, vT1 = 4, 5, 6, 7, 8, 9, 10, 11
vM = 12
vXR = 16
vBF = 24
vACC = 32
vAC2 = 36
vQF = 40
vSP = 56
vDF = 88
vTM = 104
vFL = 111
vK = 112
vX = 240
vFG = vDF + 8
vFD = vK + 16
def vr(a, n): return f"v[{a}:{a+n-1}]"

HS, PUB, GSV, SVC = 0, 1, 2, 3

class Gen:
    def __init__(self, W=10, W2=12, boost_q=4, boosts=None, npre=4, q_at="K5_3", hs_pts=("K0_1", "K2_3", "K3_1", "K3_3"),
                 dma=(0, 0, 1, 1, 2, 1, 2, 1, 2, 1, 2, 1, 2, 2, 0, 0), xmap="0x54ff3210", nx=6,
                 fga_pos="pv1", st_pos="pv3", ffn_pos="pv3", stamps=False, gperm=(0,1,2,3,4,5,6,7), rotmul=1, astride=256, order=("q0","q1","f0","f1","x"), lags=(3,1), wmap="0xf5f43210"):
        self.__dict__.update(locals())
        self.boosts = boosts if boosts is not None else {"softmax": 6, "wof": 4}
        assert sum(dma) == 18
        self.o = []; self.lab = 0
    def A(self, s): self.o.append("    " + s)
    def C(self, s): self.o.append("    ; " + s)
    def L(self, s): self.o.append(s + ":")
    def nop(self, n):
        while n > 0:
            k = min(n, 16); self.A(f"s_nop {k-1}"); n -= k
    def label(self, p):
        self.lab += 1; return f"L_{p}_{self.lab}"
    def stamp(self, k):
        if self.stamps: self.A(f"s_memrealtime s[{sST+2*k}:{sST+2*k+1}]")
    def lgkm(self, n): self.A(f"s_waitcnt lgkmcnt({0 if self.stamps else n})")
    def only(self, w, fn):
        sk = self.label("skip")
        self.A(f"s_cmp_lg_u32 {sW}, {w}"); self.A(f"s_cbranch_scc1 {sk}")
        fn()
        self.L(sk)
    def lanes(self, lo, hi):
        self.A(f"s_mov_b32 exec_lo, {lo:#x}"); self.A(f"s_mov_b32 exec_hi, {hi:#x}")
    def swap_reduce(self, op, v, tmp, which):
        A = self.A
        A(f"v_mov_b32 v{tmp}, v{v}")
        self.nop(2)
        A(f"v_permlane{which}_swap_b32 v{v}, v{tmp}")
        self.nop(1)
        A(f"{op} v{v}, v{v}, v{tmp}")
    def dpp_add(self, v, ctl):
        self.nop(2)
        self.A(f"v_add_f32_dpp v{v}, v{v}, v{v} {ctl} row_mask:0xf bank_mask:0xf")
    def mk(self, r, p, off, size):
        A = self.A
        if off is None:
            A(f"s_mov_b32 s{r}, s{p}"); A(f"s_mov_b32 s{r+1}, s{p+1}")
        else:
            A(f"s_add_u32 s{r}, s{p}, {off}"); A(f"s_addc_u32 s{r+1}, s{p+1}, 0")
        if size is not None: A(f"s_mov_b32 s{r+2}, {size}")
        A(f"s_mov_b32 s{r+3}, 0x20000")

    def kv_load(self, kind, G, t):
        A = self.A
        st = sTK if kind == "K" else sTV
        if t == 0: A(f"s_xor_b32 {st}, {sROT}, {self.gperm[G] << 15}")
        if kind == "K":
            A(f"buffer_load_dwordx4 {vr(vK+16*G+4*t,4)}, v{vOK}, {srd(R_K)}, {st} offen offset:{(t>>1)*2048 + (t&1)*128} nt")
        else:
            dst = vX if G == 0 else vK + 16 * (G - 1)
            A(f"buffer_load_dwordx4 {vr(dst+4*t,4)}, v{vOV}, {srd(R_V)}, {st} offen offset:{256*t} nt")

    def bsel(self, src, half, bset):
        A = self.A
        t = vTM + 4 + bset
        A(f"v_perm_b32 v{t}, v{src}, v{src}, {sDUP1 if half else sDUP0}")
        for u in range(4): A(f"v_and_b32 v{vBF+4*bset+u}, v{t}, v{vM+u}")

    def phase0(self):
        A = self.A
        A("s_cmp_ge_u32 s2, 256")
        A("s_cbranch_scc1 L_end")
        A("s_load_dwordx16 s[16:31], s[0:1], 0")
        A("s_load_dwordx8 s[32:39], s[0:1], 64")
        A("s_load_dwordx2 s[40:41], s[0:1], 96")
        self.stamp(0)
        A("v_lshrrev_b32 v10, 6, v0")
        A(f"v_and_b32 v{vI}, 15, v0")
        A(f"v_readfirstlane_b32 {sW}, v10")
        A(f"v_bfe_u32 v{vG}, v0, 4, 2")
        self.C("wg = (j*4 + hq)*8 + x ; h = 4x + hq ; j = 4b + s   (x = XCD under round-robin placement: speed only)")
        A(f"s_and_b32 {sT0}, s2, 7")
        A(f"s_lshr_b32 {sT1}, s2, 3")
        A(f"s_and_b32 {sT2}, {sT1}, 3")
        A(f"s_lshl_b32 {sH}, {sT0}, 2")
        A(f"s_add_u32 {sH}, {sH}, {sT2}")
        A(f"s_lshr_b32 {sJ}, {sT1}, 2")
        A(f"s_and_b32 {sFT}, s2, 31")
        self.C("FFN work goes to the workgroups whose x has a rank (nibble table, 15 = none)")
        A(f"s_lshl_b32 {sCNT}, {sT0}, 2"); A(f"s_lshr_b32 {sCNT}, {self.xmap}, {sCNT}"); A(f"s_and_b32 {sCNT}, {sCNT}, 15")
        A(f"s_mul_i32 {sTI}, {sT2}, {self.nx}"); A(f"s_add_u32 {sTI}, {sTI}, {sCNT}")
        A(f"s_cmp_eq_u32 {sCNT}, 15"); A(f"s_cselect_b32 {sTI}, 31, {sTI}")
        A(f"s_lshl_b32 {sTK}, {sJ}, 3"); A(f"s_add_u32 {sTK}, {sTK}, {sW}")
        A(f"s_lshl_b32 {sTV}, {sTK}, 4")
        A(f"s_lshl_b32 {sX0}, {sTK}, 16"); A(f"s_lshl_b32 {sTQ}, {sH}, 8"); A(f"s_add_u32 {sX0}, {sX0}, {sTQ}")
        A(f"s_cmp_ge_u32 {sTI}, 11")
        A(f"s_cselect_b32 {sX1}, 11, 0")
        A(f"s_sub_u32 {sX1}, {sTI}, {sX1}")
        A(f"s_lshl_b32 {sX1}, {sX1}, 8")
        A(f"s_mul_i32 {sTK}, {sTK}, {8*2752}")
        A(f"s_add_u32 {sX1}, {sX1}, {sTK}")
        A(f"s_sub_u32 s{R_FT+2}, {512*2752}, {sX1}")
        A(f"s_cmp_lt_u32 {sTI}, 22")
        A(f"s_cselect_b32 s{R_FT+2}, s{R_FT+2}, 0")
        A(f"s_cselect_b32 {sX1}, {sX1}, 0")
        A(f"s_mov_b32 s{R_FT+3}, 0x20000")
        A(f"s_mov_b32 s{R_X+2}, 2048"); A(f"s_mov_b32 s{R_X+3}, 0x20000")
        A(f"s_mov_b32 s{R_WQ+2}, {7*8192+256}"); A(f"s_mov_b32 s{R_WQ+3}, 0x20000")
        A(f"s_movk_i32 {sTQ}, 8192")
        A(f"v_lshrrev_b32 v{vT0}, 3, v{vI}")
        A(f"v_lshlrev_b32 v{vT0}, 10, v{vT0}")
        A(f"v_lshl_add_u32 v{vT0}, v{vG}, 2, v{vT0}")
        A(f"v_lshlrev_b32 v{vT1}, 4, v{vI}")
        A(f"v_lshl_add_u32 v{vOQ}, v{vG}, 14, v{vT1}")
        A(f"v_mul_u32_u24 v{vOF}, {2*2752}, v{vG}")
        A(f"v_add_u32 v{vOF}, v{vOF}, v{vT1}")
        A(f"s_lshr_b32 {sB}, {sJ}, 2")
        A(f"s_and_b32 {sS}, {sJ}, 3")
        A(f"s_lshl_b32 {sBH}, {sB}, 5"); A(f"s_add_u32 {sBH}, {sBH}, {sH}")
        A(f"v_and_b32 v{vOK}, 7, v0")
        A(f"v_lshlrev_b32 v{vOK}, 8, v{vOK}")
        A(f"v_lshl_add_u32 v{vOK}, v{vG}, 4, v{vOK}")
        A(f"v_and_b32 v{vOV}, 8, v0")
        A(f"v_lshl_add_u32 v{vOK}, v{vOV}, 3, v{vOK}")
        A(f"v_lshl_add_u32 v{vOV}, v{vG}, 10, v{vT1}")
        A(f"s_lshl_b32 {sKO}, {sBH}, 20")
        A(f"s_lshl_b32 {sTF}, {sS}, 18"); A(f"s_add_u32 {sKO}, {sKO}, {sTF}")
        A(f"s_lshl_b32 {sTF}, {sW}, 12"); A(f"s_add_u32 {sKO}, {sKO}, {sTF}")
        A(f"s_mov_b32 s{R_K+2}, {(7 << 15) + 4096}"); A(f"s_mov_b32 s{R_K+3}, 0x20000")
        A(f"s_lshl_b32 {sROT}, {sJ}, 15")
        A(f"s_cmp_ge_u32 {sTI}, 11")
        A("s_waitcnt lgkmcnt(0)")
        self.C("projection tiles: rows 64j + 8w + 2g + t of wq (128 columns of head h) and of w_gate / w_up (one 128-column block)")
        A(f"s_cselect_b32 s{R_FT}, s{P_WU}, s{P_WG}"); A(f"s_cselect_b32 s{R_FT+1}, s{P_WU+1}, s{P_WG+1}")
        ld = {
            "q0": lambda: (A(f"s_add_u32 s{R_WQ}, s{P_WQ}, {sX0}"), A(f"s_addc_u32 s{R_WQ+1}, s{P_WQ+1}, 0"),
                           A(f"buffer_load_dwordx4 {vr(vDF,4)}, v{vOQ}, {srd(R_WQ)}, 0 offen nt")),
            "q1": lambda: A(f"buffer_load_dwordx4 {vr(vDF+4,4)}, v{vOQ}, {srd(R_WQ)}, {sTQ} offen nt"),
            "f0": lambda: (A(f"s_add_u32 s{R_FT}, s{R_FT}, {sX1}"), A(f"s_addc_u32 s{R_FT+1}, s{R_FT+1}, 0"),
                           A(f"buffer_load_dwordx4 {vr(vDF+8,4)}, v{vOF}, {srd(R_FT)}, 0 offen nt")),
            "f1": lambda: A(f"buffer_load_dwordx4 {vr(vDF+12,4)}, v{vOF}, {srd(R_FT)}, 0 offen offset:2752 nt"),
            "x": lambda: (A(f"s_mov_b32 s{R_X}, s{P_X}"), A(f"s_mov_b32 s{R_X+1}, s{P_X+1}"),
                          A(f"buffer_load_dword v{vXR}, v{vT0}, {srd(R_X)}, {sTV} offen")),
        }
        nk = 0; ksrd = False
        for tok in self.order:
            if tok == "K":
                if not ksrd: A(f"s_add_u32 s{R_K}, s{P_K}, {sKO}"); A(f"s_addc_u32 s{R_K+1}, s{P_K+1}, 0"); ksrd = True
                self.kv_load("K", nk // 4, nk % 4); nk += 1
            else: ld[tok]()
        if not ksrd: A(f"s_add_u32 s{R_K}, s{P_K}, {sKO}"); A(f"s_addc_u32 s{R_K+1}, s{P_K+1}, 0")
        self.nk0 = nk
        self.ktail = len(self.order) - 1 - max(i for i, t in enumerate(self.order) if t != "K")
        self.mk(R_WS, P_WS, None, WS_BYTES)
        def clear():
            self.C("invalidate the hand-off slots this workgroup is responsible for")
            c = vQF
            for k in range(4): A(f"v_mov_b32 v{c+k}, -1")
            A(f"v_and_b32 v{c+4}, 63, v0"); A(f"v_lshlrev_b32 v{c+4}, 4, v{c+4}")
            A(f"s_lshl_b32 {sTD}, {sH}, 3"); A(f"s_add_u32 {sTD}, {sTD}, {sJ}"); A(f"s_lshl_b32 {sTD}, {sTD}, 10")
            A(f"s_add_u32 {sTD}, {sTD}, {WS_Q}")
            A(f"buffer_store_dwordx4 {vr(c,4)}, v{c+4}, {srd(R_WS)}, {sTD} offen sc1")
            A(f"s_lshl_b32 {sTD}, {sTI}, 3"); A(f"s_add_u32 {sTD}, {sTD}, {sJ}"); A(f"s_lshl_b32 {sTD}, {sTD}, 10")
            A(f"s_add_u32 {sTD}, {sTD}, {WS_F}")
            A(f"buffer_store_dwordx4 {vr(c,4)}, v{c+4}, {srd(R_WS)}, {sTD} offen sc1")
            self.lanes(0xff, 0)
            A(f"s_lshl_b32 {sTD}, s2, 7"); A(f"s_add_u32 {sTD}, {sTD}, {WS_MB}")
            A(f"buffer_store_dwordx4 {vr(c,4)}, v{c+4}, {srd(R_WS)}, {sTD} offen sc1")
            for k in range(4): A(f"v_mov_b32 v{c+8+k}, 0")
            A(f"s_mul_i32 {sTD}, s2, {self.astride}")
            if self.astride == 64: self.lanes(0xf, 0)
            A(f"s_cmp_lt_u32 s2, 128"); A(f"s_cselect_b32 {sTD}, {sTD}, {4 << 20}")
            A(f"buffer_store_dwordx4 {vr(c+8,4)}, v{c+4}, {srd(R_WS)}, {sTD} offen sc1")
            A("s_mov_b64 exec, -1")
        self.only(HS, clear)
        self.C("everything else while those fly")
        A(f"v_and_b32 v{vL}, 63, v0")
        self.mk(R_V, P_V, sKO, (7 << 15) + 4096)
        self.mk(R_GW, P_GW, None, 1024)
        per = -(-86 // self.nx)
        if self.wmap:
            A(f"s_lshl_b32 {sCNT}, {sT0}, 2"); A(f"s_lshr_b32 {sCNT}, {self.wmap}, {sCNT}"); A(f"s_and_b32 {sCNT}, {sCNT}, 15")
        A(f"s_and_b32 {sT1}, {sT1}, 15")
        A(f"s_mul_i32 {sSL}, {sCNT}, {per}")
        A(f"s_add_u32 {sSL}, {sSL}, {sT1}")
        A(f"s_cmp_lt_u32 {sT1}, {per}")
        A(f"s_cselect_b32 {sSL}, {sSL}, 1000")
        A(f"s_cmp_lt_u32 {sSL}, 86")
        A(f"s_cselect_b32 s{R_WD+2}, {15*1024+128}, 0")
        A(f"s_cselect_b32 {sSL}, {sSL}, 0")
        A(f"s_lshl_b32 {sT0}, {sSL}, 14"); A(f"s_lshl_b32 {sT1}, {sW}, 7"); A(f"s_add_u32 {sT0}, {sT0}, {sT1}")
        self.mk(R_WD, P_WD, sT0, None)
        A(f"s_lshl_b32 {sT0}, {sH}, 17"); A(f"s_add_u32 {sT0}, {sT0}, {sT1}")
        self.mk(R_WO, P_WO, sT0, 127 * 1024 + 128)
        A(f"v_lshlrev_b32 v{vT1}, 4, v{vL}")
        t = vTM + 4
        A(f"v_and_b32 v{t}, 7, v{vL}")
        A(f"v_lshlrev_b32 v{t}, 4, v{t}")
        A(f"v_lshrrev_b32 v{t+1}, 3, v{vL}")
        A(f"v_lshl_add_u32 v{vOD}, v{t+1}, 10, v{t}")
        A(f"v_and_b32 v{t+2}, 3, v{t+1}")
        A(f"v_lshlrev_b32 v{t+2}, 3, v{t+2}")
        A(f"v_lshrrev_b32 v{t+1}, 2, v{t+1}")
        A(f"v_add_u32 v{t+1}, v{t+1}, v{t+2}")
        A(f"v_lshl_add_u32 v{vOW}, v{t+1}, 10, v{t}")
        A(f"s_lshl_b32 {sWOL}, {sW}, 14"); A(f"s_add_u32 {sWOL}, {sWOL}, {L_WO}")
        A(f"s_lshl_b32 {sWDL}, {sW}, 11"); A(f"s_add_u32 {sWDL}, {sWDL}, {L_WD}")
        self.C("selection masks: e = i&7 ; M_u = (e>>1)==u ? (e&1 ? 0xffff0000 : 0xffff) : 0")
        A(f"v_and_b32 v{t}, 1, v{vI}")
        A(f"v_lshlrev_b32 v{t}, 4, v{t}")
        A(f"v_mov_b32 v{t+1}, 0xffff")
        A(f"v_lshlrev_b32 v{t+1}, v{t}, v{t+1}")
        A(f"v_bfe_u32 v{t}, v{vI}, 1, 2")
        for u in range(4):
            A(f"v_cmp_eq_u32 vcc, {u}, v{t}")
            self.nop(2)
            A(f"v_cndmask_b32 v{vM+u}, 0, v{t+1}, vcc")
        A(f"s_mov_b32 {sDUP0}, 0x01000100"); A(f"s_mov_b32 {sDUP1}, 0x03020302")
        A(f"s_mov_b32 {sC}, {f32(math.log2(math.e) / math.sqrt(128.0))}")
        if self.stamps: A(f"s_getreg_b32 {sXCC}, hwreg(HW_REG_XCC_ID)")
        A(f"s_add_u32 {sT0}, {sWOL}, {14*1024}")
        A(f"v_lshl_add_u32 v{vT0}, v{vL}, 4, {sT0}")
        self.only(HS, lambda: A("s_waitcnt vmcnt(0)"))
        n = self.nk0; newer = self.ktail
        for lag in self.lags:
            A(f"s_waitcnt vmcnt({lag + newer})")
            self.kv_load("K", n // 4, n % 4); n += 1; newer += 1
        A(f"s_waitcnt vmcnt({newer})")
        while n < 4 + self.npre:
            self.kv_load("K", n // 4, n % 4); n += 1
        self.bsel(vXR, 0, 0); self.bsel(vXR, 1, 1)
        self.nop(1)
        A(f"v_mfma_f32_16x16x32_bf16 {vr(vACC,4)}, {vr(vDF,4)}, {vr(vBF,4)}, 0")
        A(f"v_mfma_f32_16x16x32_bf16 {vr(vAC2,4)}, {vr(vDF+8,4)}, {vr(vBF,4)}, 0")
        A(f"v_mfma_f32_16x16x32_bf16 {vr(vACC,4)}, {vr(vDF+4,4)}, {vr(vBF+4,4)}, {vr(vACC,4)}")
        A(f"v_mfma_f32_16x16x32_bf16 {vr(vAC2,4)}, {vr(vDF+12,4)}, {vr(vBF+4,4)}, {vr(vAC2,4)}")
        self.nop(8)
        A(f"ds_write_b128 v{vT0}, {vr(vACC,4)}")
        A(f"ds_write_b128 v{vT0}, {vr(vAC2,4)} offset:1024")
        A("s_waitcnt lgkmcnt(0)")
        def arrive():
            self.C("this workgroup's slots are invalid now: count it in at its head's counter")
            A(f"s_lshl_b32 {sTF}, {sFT}, 3"); A(f"s_mov_b32 {sARR}, 1")
            A(f"s_atomic_add {sARR}, s[{P_DBG}:{P_DBG+1}], {sTF} glc")
        self.only(HS, arrive)
        A("s_barrier")
        def publish():
            d = vSP; d2 = vK + 96
            A(f"v_add_u32 v{vT0}, {L_WO + 14*1024}, v{vT1}")
            A(f"v_add_u32 v{vTM}, 0x10000, v{vT0}")
            for w in range(8): A(f"ds_read_b128 {vr(d+4*w,4)}, v{vT0 if w < 4 else vTM} offset:{16384*(w&3)}")
            for w in range(4): A(f"ds_read_b128 {vr(d2+4*w,4)}, v{vT0} offset:{1024+16384*w}")
            A(f"s_lshl_b32 {sT0}, {sH}, 3"); A(f"s_add_u32 {sT0}, {sT0}, {sJ}"); A(f"s_lshl_b32 {sT0}, {sT0}, 10")
            A(f"s_add_u32 {sT0}, {sT0}, {WS_Q}")
            A(f"s_lshl_b32 {sT1}, {sTI}, 3"); A(f"s_add_u32 {sT1}, {sT1}, {sJ}"); A(f"s_lshl_b32 {sT1}, {sT1}, 10")
            A(f"s_add_u32 {sT1}, {sT1}, {WS_F}")
            self.lgkm(4)
            for w in range(4, 8): A(f"ds_read_b128 {vr(d2+4*w,4)}, v{vTM} offset:{1024+16384*(w&3)}")
            for w in range(1, 8):
                for r in range(4): A(f"v_add_f32 v{d+r}, v{d+r}, v{d+4*w+r}")
            for r in range(4): A(f"v_min_u32 v{d+r}, -2, v{d+r}")
            A(f"buffer_store_dwordx4 {vr(d,4)}, v{vT1}, {srd(R_WS)}, {sT0} offen sc1")
            A("s_waitcnt lgkmcnt(0)")
            for w in range(1, 8):
                for r in range(4): A(f"v_add_f32 v{d2+r}, v{d2+r}, v{d2+4*w+r}")
            for r in range(4): A(f"v_min_u32 v{d2+r}, -2, v{d2+r}")
            A(f"buffer_store_dwordx4 {vr(d2,4)}, v{vT1}, {srd(R_WS)}, {sT1} offen sc1")
            self.nop(2)
        self.only(PUB, publish)

    def items(self):
        A = self.A
        it = []
        def add(name, fn, dep=None): it.append(dict(name=name, fn=fn, dep=dep))
        def grp(kind, G, dep):
            for t in range(4): add(f"{kind}{G}_{t}", lambda t=t: self.kv_load(kind, G, t), dep if t == 0 else None)
        wd = []; wo = []
        for t in range(2):
            def fn(t=t):
                A(f"s_add_u32 m0, {sWDL}, {t*1024}")
                A(f"s_movk_i32 {sTD}, {t*8192}")
                A(f"buffer_load_dwordx4 v{vOD}, {srd(R_WD)}, {sTD} offen nt lds")
            wd.append((f"wd{t}", fn, None))
        for t in range(16):
            def fn(t=t):
                A(f"s_add_u32 m0, {sWOL}, {t*1024}")
                A(f"s_mov_b32 {sTD}, {(32*(t>>2) + 2*(t&3))*1024}")
                A(f"buffer_load_dwordx4 v{vOW}, {srd(R_WO)}, {sTD} offen nt lds")
            wo.append((f"wo{t}", fn, "qred" if t >= 14 else None))
        q = wo[:4] + wd + wo[4:]
        def put(slot):
            for _ in range(self.dma[slot]):
                n, fn, dep = q.pop(0); add(n, fn, dep)
        for G in range(8): grp("K", G, None); put(G)
        for G in range(8): grp("V", G, ("st0" if G == 7 else f"qk{G-1}") if G else None); put(8 + G)
        return it

    def mb_load(self):
        self.A(f"s_load_dword {sGO}, s[{P_WS}:{P_WS+1}], {sMB} glc")
    def ga_loads(self):
        A = self.A
        t = vTM
        A(f"s_lshl_b32 {sT0}, {sH}, 13"); A(f"s_lshl_b32 {sT1}, {sB}, 7"); A(f"s_add_u32 {sT0}, {sT0}, {sT1}")
        A(f"s_add_u32 {sT0}, {sT0}, {WS_Q}")
        A(f"v_and_b32 v{t}, 7, v{vL}"); A(f"v_lshlrev_b32 v{t}, 4, v{t}")
        A(f"v_bfe_u32 v{t+1}, v{vL}, 3, 2"); A(f"v_lshl_add_u32 v{t}, v{t+1}, 8, v{t}")
        A(f"v_lshrrev_b32 v{t+1}, 5, v{vL}"); A(f"v_lshl_add_u32 v{t}, v{t+1}, 10, v{t}")
        A(f"s_add_u32 {sT1}, {sT0}, 4096")
        for k in range(4):
            A(f"buffer_load_dwordx4 {vr(vSP+4*k,4)}, v{t}, {srd(R_WS)}, {sT0 if k < 2 else sT1} offen offset:{(k&1)*2048} sc1")
    def step_hs(self, k, last):
        A = self.A
        def fn():
            end = self.label("hsend"); wait = self.label("hswait")
            if k == 0:
                self.C("the last of the eight workgroups of a head tells all of them that the head's slots are invalid")
                A(f"s_lshl_b32 {sMB}, s2, 7"); A(f"s_add_u32 {sMB}, {sMB}, {WS_MB}")
                A(f"s_mov_b32 {sDONE}, 0")
                A(f"v_lshlrev_b32 v{vQF+4}, 12, v{vL}"); A(f"v_mov_b32 v{vQF+6}, 1")
                A(f"s_lshl_b32 {sT0}, {sFT}, 7"); A(f"s_add_u32 {sT0}, {sT0}, {WS_MB}")
                A("s_waitcnt lgkmcnt(0)")
                A(f"s_and_b32 {sARR}, {sARR}, 7"); A(f"s_cmp_lg_u32 {sARR}, 7"); A(f"s_cbranch_scc1 {wait}")
                self.lanes(0xff, 0)
                A(f"buffer_store_dword v{vQF+6}, v{vQF+4}, {srd(R_WS)}, {sT0} offen sc1")
                A("s_mov_b64 exec, -1")
                A(f"s_mov_b32 {sGO}, 1")
                A(f"s_branch {end}")
                self.L(wait)
                self.mb_load()
                self.L(end)
                return
            A(f"s_cmp_eq_u32 {sDONE}, 1"); A(f"s_cbranch_scc1 {end}")
            A("s_waitcnt lgkmcnt(0)")
            if last:
                sp = self.label("mbspin"); go = self.label("go")
                A(f"s_cmp_eq_u32 {sGO}, 1"); A(f"s_cbranch_scc1 {go}")
                A(f"s_mov_b32 {sCNT}, 0")
                A(f"v_mov_b32 v{vTM}, 0")
                self.L(sp)
                A("s_mov_b64 exec, 1")
                A(f"buffer_load_dword v{vFL}, v{vTM}, {srd(R_WS)}, {sMB} offen sc1")
                A("s_mov_b64 exec, -1")
                A(f"s_add_u32 {sCNT}, {sCNT}, 1")
                A("s_waitcnt vmcnt(0)")
                A(f"v_readfirstlane_b32 {sTF}, v{vFL}")
                A(f"s_cmp_ge_u32 {sCNT}, {SPIN}"); A(f"s_cbranch_scc1 {go}")
                A(f"s_cmp_lg_u32 {sTF}, 1"); A(f"s_cbranch_scc1 {sp}")
                self.L(go)
            else:
                A(f"s_cmp_lg_u32 {sGO}, 1"); A(f"s_cbranch_scc1 {wait}")
            self.ga_loads()
            A(f"s_mov_b32 {sDONE}, 1")
            if not last:
                A(f"s_branch {end}")
                self.L(wait)
                self.mb_load()
            self.L(end)
        self.only(HS, fn)
    def step_qsvc(self):
        A = self.A
        def fn():
            gs = self.label("gaspin"); ok = self.label("gaok")
            t = vTM; d = vSP
            A(f"s_mov_b32 {sCNT}, 0")
            self.L(gs)
            A(f"v_max3_u32 v{t+2}, v{d}, v{d+1}, v{d+2}")
            for k in range(3, 15, 2): A(f"v_max3_u32 v{t+2}, v{t+2}, v{d+k}, v{d+k+1}")
            A(f"v_max_u32 v{t+2}, v{t+2}, v{d+15}")
            A(f"v_cmp_eq_u32 vcc, -1, v{t+2}")
            A(f"s_cbranch_vccz {ok}")
            self.ga_loads()
            A(f"s_add_u32 {sCNT}, {sCNT}, 1")
            A(f"s_cmp_lt_u32 {sCNT}, {SPIN}")
            A("s_waitcnt vmcnt(0)")
            A(f"s_cbranch_scc1 {gs}")
            self.L(ok)
            for k in range(1, 4):
                for r in range(4): A(f"v_add_f32 v{d+r}, v{d+r}, v{d+4*k+r}")
            A(f"v_and_b32 v{t+1}, 7, v{vL}")
            A(f"v_lshrrev_b32 v{t+2}, 5, v{vL}")
            A(f"v_permlane32_swap_b32 v{d}, v{d+1}"); A(f"v_permlane32_swap_b32 v{d+2}, v{d+3}")
            A(f"v_lshl_add_u32 v{t+1}, v{t+2}, 3, v{t+1}")
            A(f"v_add_f32 v{d}, v{d}, v{d+1}"); A(f"v_add_f32 v{d+2}, v{d+2}, v{d+3}")
            A(f"v_cvt_pk_bf16_f32 v{d}, v{d}, v{d+2}")
            A(f"v_bfe_u32 v{t}, v{vL}, 3, 2")
            A(f"v_lshl_add_u32 v{t}, v{t}, 5, v{t+1}")
            A(f"v_lshlrev_b32 v{t}, 1, v{t}")
            A(f"ds_write_b16 v{t}, v{d} offset:{L_QS}")
            A(f"ds_write_b16_d16_hi v{t}, v{d} offset:{L_QS+32}")
        self.only(HS, fn)

    def step_gate0(self):
        A = self.A
        def fn():
            A(f"s_lshl_b32 {sT1}, {sB}, 10")
            A(f"buffer_load_dwordx4 {vr(vXR,4)}, v{vT1}, {srd(R_X)}, {sT1} offen")
            A(f"buffer_load_dwordx4 {vr(vXR+4,4)}, v{vT1}, {srd(R_GW)}, 0 offen")
        self.only(GSV, fn)
    def step_gate(self):
        A = self.A
        def fn():
            x, w = vXR, vXR + 4
            t = vTM; acc = vT0
            A(f"v_mov_b32 v{acc}, 0")
            for k in range(4):
                A(f"v_lshlrev_b32 v{t}, 16, v{x+k}"); A(f"v_lshlrev_b32 v{t+1}, 16, v{w+k}")
                A(f"v_and_b32 v{t+2}, 0xffff0000, v{x+k}"); A(f"v_and_b32 v{t+3}, 0xffff0000, v{w+k}")
                A(f"v_mul_f32 v{t}, v{t}, v{t+1}"); A(f"v_mul_f32 v{t+2}, v{t+2}, v{t+3}")
                A(f"v_cvt_pk_bf16_f32 v{t}, v{t}, v{t+2}")
                A(f"v_lshlrev_b32 v{t+1}, 16, v{t}"); A(f"v_and_b32 v{t}, 0xffff0000, v{t}")
                A(f"v_add_f32 v{acc}, v{acc}, v{t+1}"); A(f"v_add_f32 v{acc}, v{acc}, v{t}")
            for ctl in ("quad_perm:[1,0,3,2]", "quad_perm:[2,3,0,1]", "row_half_mirror", "row_mirror"):
                self.dpp_add(acc, ctl)
            self.swap_reduce("v_add_f32", acc, t, 16)
            self.swap_reduce("v_add_f32", acc, t, 32)
            A(f"v_cvt_pk_bf16_f32 v{acc}, v{acc}, v{acc}")
            A(f"v_and_b32 v{acc}, 0xffff0000, v{acc}")
            A(f"v_mul_f32 v{acc}, {f32(-math.log2(math.e))}, v{acc}")
            A(f"v_exp_f32 v{acc}, v{acc}")
            self.nop(1)
            A(f"v_add_f32 v{acc}, 1.0, v{acc}")
            A(f"v_rcp_f32 v{acc}, v{acc}")
            self.nop(1)
            A(f"v_cvt_pk_bf16_f32 v{acc}, v{acc}, v{acc}")
            A(f"v_and_b32 v{t}, 0xffff0000, v{acc}")
            A(f"v_sub_f32 v{t+1}, 1.0, v{t}")
            A(f"v_cvt_pk_bf16_f32 v{t+1}, v{t+1}, v{t+1}")
            A(f"v_and_b32 v{t+1}, 0xffff0000, v{t+1}")
            A(f"v_mov_b32 v{t+2}, 0")
            A(f"ds_write_b64 v{t+2}, {vr(t,2)} offset:{L_GS}")
        self.only(GSV, fn)

    def fl_load(self):
        A = self.A
        A(f"v_and_b32 v{vT0}, 31, v{vL}"); A(f"v_lshlrev_b32 v{vT0}, 3, v{vT0}")
        A(f"global_load_dword v{vFL}, v{vT0}, s[{P_DBG}:{P_DBG+1}] sc1")
    def fg_load(self):
        A = self.A
        A(f"s_lshr_b32 {sT0}, {sSL}, 3"); A(f"s_lshl_b32 {sT0}, {sT0}, 13")
        A(f"s_lshl_b32 {sT1}, {sB}, 7"); A(f"s_add_u32 {sT0}, {sT0}, {sT1}")
        A(f"s_bfe_u32 {sT1}, {sSL}, 0x20001"); A(f"s_lshl_b32 {sT1}, {sT1}, 8"); A(f"s_add_u32 {sT0}, {sT0}, {sT1}")
        A(f"s_and_b32 {sT1}, {sSL}, 1"); A(f"s_lshl_b32 {sT1}, {sT1}, 3"); A(f"s_add_u32 {sT0}, {sT0}, {sT1}")
        A(f"s_add_u32 {sT0}, {sT0}, {WS_F}")
        A(f"v_and_b32 v{vT0}, 7, v{vL}"); A(f"v_lshlrev_b32 v{vT0}, 4, v{vT0}")
        A(f"v_lshrrev_b32 v{vTM}, 3, v{vL}"); A(f"v_lshl_add_u32 v{vT0}, v{vTM}, 10, v{vT0}")
        A(f"buffer_load_dwordx2 {vr(vFG,2)}, v{vT0}, {srd(R_WS)}, {sT0} offen sc1")
        A(f"s_add_u32 {sT0}, {sT0}, {11*8192}")
        A(f"buffer_load_dwordx2 {vr(vFG+2,2)}, v{vT0}, {srd(R_WS)}, {sT0} offen sc1")
    def step_fga(self):
        A = self.A
        def fn():
            self.C("every workgroup has invalidated its slots -> gather the gate/up partials of this slice")
            ok = self.label("flok"); sp = self.label("flspin")
            A(f"v_cmp_gt_u32 vcc, 8, v{vFL}")
            A(f"s_cbranch_vccz {ok}")
            A(f"s_mov_b32 {sCNT}, 0")
            self.L(sp)
            A("s_sleep 32")
            self.fl_load()
            A(f"s_add_u32 {sCNT}, {sCNT}, 1")
            A(f"s_cmp_ge_u32 {sCNT}, {SPIN}")
            A("s_waitcnt vmcnt(0)")
            A(f"s_cbranch_scc1 {ok}")
            A(f"v_cmp_gt_u32 vcc, 8, v{vFL}")
            A(f"s_cbranch_vccnz {sp}")
            self.L(ok)
            self.fg_load()
        self.only(SVC, fn)
    def step_ffn2(self):
        A = self.A
        t = vTM
        def fn():
            self.C("h = gelu(gate)*up for 16 hidden units, then (1-g) * h @ w_down for all 512 columns")
            e = vFG
            ok = self.label("fgok"); sp = self.label("fgspin")
            A(f"s_mov_b32 {sCNT}, 0")
            self.L(sp)
            A(f"v_max3_u32 v{t}, v{e}, v{e+1}, v{e+2}"); A(f"v_max_u32 v{t}, v{t}, v{e+3}")
            A(f"v_cmp_eq_u32 vcc, -1, v{t}")
            A(f"s_cbranch_vccz {ok}")
            self.fg_load()
            A(f"s_add_u32 {sCNT}, {sCNT}, 1")
            A(f"s_cmp_lt_u32 {sCNT}, {SPIN}")
            A("s_waitcnt vmcnt(0)")
            A(f"s_cbranch_scc1 {sp}")
            self.L(ok)
            A(f"v_permlane32_swap_b32 v{e}, v{e+1}"); A(f"v_permlane32_swap_b32 v{e+2}, v{e+3}")
            self.nop(1)
            A(f"v_add_f32 v{e}, v{e}, v{e+1}"); A(f"v_add_f32 v{e+2}, v{e+2}, v{e+3}")
            self.swap_reduce("v_add_f32", e, e + 1, 16)
            self.swap_reduce("v_add_f32", e + 2, e + 3, 16)
            self.dpp_add(e, "row_ror:8"); self.dpp_add(e + 2, "row_ror:8")
            A(f"v_cvt_pk_bf16_f32 v{e}, v{e}, v{e+2}")
            A(f"v_and_b32 v{e+2}, 0xffff0000, v{e}")
            A(f"v_lshlrev_b32 v{e}, 16, v{e}")
            k0 = math.sqrt(2.0 / math.pi)
            self.C("gelu_tanh(x) = x / (1 + exp(-2*sqrt(2/pi)*(x + 0.044715 x^3)))")
            A(f"v_mul_f32 v{e+1}, v{e}, v{e}")
            A(f"v_mov_b32 v{e+3}, {f32(-2.0 * k0 * math.log2(math.e))}")
            A(f"v_mul_f32 v{e+1}, {f32(0.044715)}, v{e+1}")
            A(f"v_add_f32 v{e+1}, 1.0, v{e+1}")
            A(f"v_mul_f32 v{e+1}, v{e+1}, v{e}")
            A(f"v_mul_f32 v{e+1}, v{e+1}, v{e+3}")
            A(f"v_exp_f32 v{e+1}, v{e+1}")
            self.nop(1)
            A(f"v_add_f32 v{e+1}, 1.0, v{e+1}")
            A(f"v_rcp_f32 v{e+1}, v{e+1}")
            self.nop(1)
            A(f"v_mul_f32 v{e}, v{e}, v{e+1}")
            A(f"v_cvt_pk_bf16_f32 v{e}, v{e}, v{e}")
            A(f"v_and_b32 v{e}, 0xffff0000, v{e}")
            A(f"v_mul_f32 v{e}, v{e}, v{e+2}")
            A(f"v_cvt_pk_bf16_f32 v{e}, v{e}, v{e}")
            A(f"v_and_b32 v{t+1}, 7, v{vL}"); A(f"v_lshrrev_b32 v{t+2}, 5, v{vL}")
            A(f"v_lshl_add_u32 v{t+1}, v{t+2}, 3, v{t+1}")
            A(f"v_lshlrev_b32 v{t+1}, 1, v{t+1}")
            A(f"ds_write_b16 v{t+1}, v{e} offset:{L_HS}")
            A(f"v_lshlrev_b32 v{t+1}, 3, v{vG}")
            A(f"v_mov_b32 v{t+3}, 0")
            A("s_waitcnt lgkmcnt(0)")
            A(f"ds_read_b64 {vr(e,2)}, v{t+1} offset:{L_HS}")
            A(f"ds_read_b32 v{e+2}, v{t+3} offset:{L_GS+4}")
            A(f"v_lshrrev_b32 v{t}, 2, v{vI}"); A(f"v_and_b32 v{t+1}, 3, v{vI}")
            A(f"v_lshlrev_b32 v{t+1}, 3, v{t+1}")
            A(f"v_lshl_add_u32 v{t+1}, v{t}, 7, v{t+1}")
            A(f"v_lshl_add_u32 v{t+1}, v{vG}, 9, v{t+1}")
            A(f"v_lshlrev_b32 v{t+2}, 2, v{vL}")
            ms = ["", "s[52:53]", "s[54:55]", "s[68:69]"]
            for k in range(1, 4): A(f"v_cmp_eq_u32 {ms[k]}, {k}, v{vG}")
            wfs = [vDF, vK + 32]
            def rd(w):
                for tau in range(4):
                    A(f"ds_read_b64_tr_b16 {vr(wfs[w&1]+2*tau,2)}, v{t+1} offset:{L_WD + w*2048 + tau*32}")
            rd(0)
            for w in range(8):
                if w < 7: rd(w + 1)
                self.lgkm(4 if w == 0 else 5 if w < 7 else 0)
                for tau in range(4):
                    A(f"v_mfma_f32_16x16x16_bf16 {vr(vFD+4*tau,4)}, {vr(e,2)}, {vr(wfs[w&1]+2*tau,2)}, 0")
                self.nop(6)
                A(f"v_cndmask_b32 v{t+4}, v{vFD}, v{vFD+4}, {ms[1]}")
                self.nop(1)
                A(f"v_cndmask_b32 v{t+4}, v{t+4}, v{vFD+8}, {ms[2]}")
                self.nop(1)
                A(f"v_cndmask_b32 v{t+4}, v{t+4}, v{vFD+12}, {ms[3]}")
                A(f"v_mul_f32 v{t+4}, v{t+4}, v{e+2}")
                A(f"ds_write_b32 v{t+2}, v{t+4} offset:{L_YF + w*256}")
        self.only(SVC, fn)

    def step_qred(self):
        A = self.A
        t = vTM
        A(f"v_and_b32 v{t}, 8, v{vL}")
        A(f"v_lshlrev_b32 v{t}, 3, v{t}")
        A(f"v_lshl_add_u32 v{t}, v{vG}, 4, v{t}")
        A("s_waitcnt lgkmcnt(0)")
        A("s_barrier")
        for T in range(2): A(f"ds_read_b128 {vr(vQF+4*T,4)}, v{t} offset:{L_QS+128*T}")
        A("s_waitcnt lgkmcnt(0)")
    def qk_combine(self, G):
        A = self.A
        a = vSP + 4 * G; b = vQF + 8 + 4 * (G & 1)
        for r in range(4): A(f"v_permlane32_swap_b32 v{a+r}, v{b+r}")
        for r in range(4): A(f"v_add_f32_dpp v{a+r}, v{b+r}, v{a+r} row_ror:8 row_mask:0xf bank_mask:0xf")
    def step_qk(self, G):
        A = self.A
        a = vSP + 4 * G; b = vQF + 8 + 4 * (G & 1); k = vK + 16 * G
        A(f"v_mfma_f32_16x16x32_bf16 {vr(a,4)}, {vr(k,4)}, {vr(vQF,4)}, 0")
        A(f"v_mfma_f32_16x16x32_bf16 {vr(b,4)}, {vr(k+8,4)}, {vr(vQF,4)}, 0")
        A(f"v_mfma_f32_16x16x32_bf16 {vr(a,4)}, {vr(k+4,4)}, {vr(vQF+4,4)}, {vr(a,4)}")
        A(f"v_mfma_f32_16x16x32_bf16 {vr(b,4)}, {vr(k+12,4)}, {vr(vQF+4,4)}, {vr(b,4)}")
        if G > 0:
            self.nop(4)
            self.qk_combine(G - 1)
    def step_softmax(self):
        A = self.A
        t = vTM; m = vAC2 + 2; l = vT0
        A(f"v_max3_f32 v{m}, v{vSP}, v{vSP+1}, v{vSP+2}")
        for k in range(3, 27, 2): A(f"v_max3_f32 v{m}, v{m}, v{vSP+k}, v{vSP+k+1}")
        self.qk_combine(7)
        A(f"v_max3_f32 v{m}, v{m}, v{vSP+27}, v{vSP+28}")
        A(f"v_max3_f32 v{m}, v{m}, v{vSP+29}, v{vSP+30}")
        A(f"v_max_f32 v{m}, v{m}, v{vSP+31}")
        self.swap_reduce("v_max_f32", m, t, 16)
        self.swap_reduce("v_max_f32", m, t, 32)
        A(f"s_lshl_b32 {sT0}, {sW}, 2")
        A(f"v_mov_b32 v{t+4}, {sT0}")
        A(f"v_mov_b32 v{t+5}, 0")
        A("s_mov_b64 exec, 1")
        A(f"ds_write_b32 v{t+4}, v{m} offset:{L_MX}")
        A("s_mov_b64 exec, -1")
        A("s_waitcnt lgkmcnt(0)")
        A("s_barrier")
        A(f"ds_read_b128 {vr(vBF,4)}, v{t+5} offset:{L_MX}")
        A(f"ds_read_b128 {vr(vBF+4,4)}, v{t+5} offset:{L_MX+16}")
        A("s_waitcnt lgkmcnt(0)")
        A(f"v_max3_f32 v{m}, v{vBF}, v{vBF+1}, v{vBF+2}")
        A(f"v_max3_f32 v{m}, v{m}, v{vBF+3}, v{vBF+4}")
        A(f"v_max3_f32 v{m}, v{m}, v{vBF+5}, v{vBF+6}")
        A(f"v_max_f32 v{m}, v{m}, v{vBF+7}")
        A(f"v_mul_f32 v{m}, {sC}, v{m}")
        for k in range(32): A(f"v_fma_f32 v{vSP+k}, v{vSP+k}, {sC}, -v{m}")
        for k in range(32): A(f"v_exp_f32 v{vSP+k}, v{vSP+k}")
        A(f"v_add_f32 v{l}, v{vSP}, v{vSP+1}"); A(f"v_add_f32 v{t}, v{vSP+2}, v{vSP+3}")
        for k in range(4, 32, 2):
            A(f"v_add_f32 v{l}, v{l}, v{vSP+k}"); A(f"v_add_f32 v{t}, v{t}, v{vSP+k+1}")
        A(f"v_add_f32 v{l}, v{l}, v{t}")
        self.swap_reduce("v_add_f32", l, t, 16)
        self.swap_reduce("v_add_f32", l, t, 32)
        A("s_mov_b64 exec, 1")
        A(f"ds_write_b32 v{t+4}, v{l} offset:{L_LS}")
        A("s_mov_b64 exec, -1")
        for k in range(32): A(f"v_cvt_pk_bf16_f32 v{vSP+k}, v{vSP+k}, v{vSP+k}")
        A("s_waitcnt lgkmcnt(0)")
        A("s_barrier")
        def fn():
            self.C("publish (max, sum) of this quarter")
            A(f"ds_read_b128 {vr(vBF,4)}, v{t+5} offset:{L_LS}")
            A(f"ds_read_b128 {vr(vBF+4,4)}, v{t+5} offset:{L_LS+16}")
            A(f"s_lshl_b32 {sT0}, s2, 7"); A(f"s_add_u32 {sT0}, {sT0}, {WS_MB + 8}")
            A("s_waitcnt lgkmcnt(0)")
            for k in range(1, 8): A(f"v_add_f32 v{vBF}, v{vBF}, v{vBF+k}")
            A(f"v_min_u32 v{t+1}, -2, v{vBF}")
            A(f"v_mov_b32 v{t}, v{m}")
            A("s_mov_b64 exec, 1")
            A(f"buffer_store_dwordx2 {vr(t,2)}, v{t+5}, {srd(R_WS)}, {sT0} offen sc1")
            A("s_mov_b64 exec, -1")
        self.only(GSV, fn)
    def step_pre7(self):
        for r in range(1, 4):
            for u in range(4): self.A(f"v_and_b32 v{vK+64+4*r+u}, v{vSP+28+r}, v{vM+u}")
    def step_pv7(self, r):
        b = vBF if r == 0 else vK + 64 + 4 * r
        if r == 0: self.nop(1)
        self.A(f"v_mfma_f32_16x16x32_bf16 {vr(vACC,4)}, {vr(vK+96+4*r,4)}, {vr(b,4)}, {vr(vACC,4)}")
    def step_pv(self, G):
        A = self.A
        base = vX if G == 0 else vK + 16 * (G - 1)
        def build(k, bset):
            for u in range(4): A(f"v_and_b32 v{vBF+4*bset+u}, v{vSP+k}, v{vM+u}")
        for r in range(4):
            k = 4 * G + r
            if k == 0: build(0, 0)
            if k + 1 < 32: build(k + 1, (k + 1) & 1)
            else: self.nop(2)
            c = "0" if k == 0 else vr(vACC, 4)
            A(f"v_mfma_f32_16x16x32_bf16 {vr(vACC,4)}, {vr(base+4*r,4)}, {vr(vBF+4*(k&1),4)}, {c}")

    WF = [vQF, vK + 16 * 7, vX, vK]
    def step_wof(self):
        A = self.A
        t = vTM
        A(f"v_lshrrev_b32 v{t}, 2, v{vI}"); A(f"v_and_b32 v{t+1}, 3, v{vI}")
        A(f"v_lshlrev_b32 v{t+1}, 3, v{t+1}")
        A(f"v_lshl_add_u32 v{t+1}, v{t}, 7, v{t+1}")
        A(f"v_lshl_add_u32 v{t+2}, v{vG}, 10, v{t+1}")
        A(f"v_add_u32 v{vOQ}, {sWOL}, v{t+2}")
        for tau in range(4):
            for T in range(4):
                for hi in range(2):
                    A(f"ds_read_b64_tr_b16 {vr(self.WF[tau]+4*T+2*hi,2)}, v{vOQ} offset:{T*4096 + hi*512 + tau*32}")
            if tau < 3: A("s_waitcnt lgkmcnt(4)")
        self.C("addresses and constants of the tail")
        A(f"v_and_b32 v{t}, 7, v{vI}")
        A(f"s_mul_i32 {sT1}, {sW}, 144"); A(f"s_add_u32 {sT1}, {sT1}, {L_OB}")
        A(f"v_lshl_add_u32 v{vOK}, v{vG}, 5, {sT1}")
        A(f"v_lshl_add_u32 v{vOK}, v{t}, 2, v{vOK}")
        A(f"v_mul_u32_u24 v{vOW}, 144, v{vI}")
        A(f"v_lshl_add_u32 v{vOW}, v{vG}, 4, v{vOW}")
        A(f"v_mov_b32 v{t+1}, 0x44444444"); A(f"v_mov_b32 v{t+2}, 0xeeeeeeee")
        A(f"v_cmp_lt_u32 vcc, 7, v{vI}")
        for k in range(16): A(f"v_mov_b32 v{vDF+k}, 0")
        A(f"v_cndmask_b32 v{vAC2+1}, v{t+1}, v{t+2}, vcc")
        A(f"v_mul_u32_u24 v{t+1}, {2*self.astride}, v{vG}")
        A(f"v_lshl_add_u32 v{vOF}, v{vI}, 2, v{t+1}")
        A(f"v_add_u32 v{t+2}, 8, v{vI}"); A(f"v_and_b32 v{t+2}, 15, v{t+2}")
        A(f"v_lshl_add_u32 v{vOD}, v{t+2}, 2, v{t+1}")
        A(f"s_mul_i32 {sTF}, {sW}, {8*self.astride}")
        A(f"s_mul_i32 {sT1}, {sB}, {64*self.astride}"); A(f"s_add_u32 {sTF}, {sTF}, {sT1}")
        A(f"s_lshl_b32 {sT1}, {sB}, 10"); A(f"s_lshl_b32 {sT0}, {sW}, 7"); A(f"s_add_u32 {sT1}, {sT1}, {sT0}")
        A(f"v_lshl_add_u32 v{vT1}, v{vL}, 1, {sT1}")
        A(f"v_cmp_eq_u32 s[52:53], 8, v{vI}"); A(f"v_cmp_eq_u32 s[54:55], 0, v{vI}"); A(f"v_cmp_gt_u32 s[68:69], 8, v{vI}")
        A(f"s_mov_b32 {sX0}, {f32(127.0)}")
        A(f"s_lshl_b32 {sT1}, {sW}, 8")
        A(f"v_lshl_add_u32 v{vAC2}, v{vL}, 2, {sT1}")
        A("s_waitcnt lgkmcnt(0)")
        A(f"v_mov_b32 v{vOQ}, 0")

    def st_load(self):
        A = self.A
        A(f"s_lshl_b32 {sT0}, {sB}, 7"); A(f"s_add_u32 {sT0}, {sT0}, {sFT}"); A(f"s_lshl_b32 {sT0}, {sT0}, 7")
        A(f"s_add_u32 {sT0}, {sT0}, {WS_MB + 8}")
        A(f"v_mov_b32 v{vT0}, 0")
        for k in range(4):
            if k: A(f"s_add_u32 {sT0}, {sT0}, 4096")
            A(f"buffer_load_dwordx2 {vr(vXR+2*k,2)}, v{vT0}, {srd(R_WS)}, {sT0} offen sc1")
    def step_scale(self):
        A = self.A
        t = vTM; s = vXR
        def fn():
            self.C("g * exp2(m_own - M) / L from the statistics of the four quarters")
            ok = self.label("stok"); sp = self.label("stspin")
            A(f"v_mov_b32 v{t+3}, 0")
            A(f"ds_read_b32 v{t+2}, v{t+3} offset:{L_GS}")
            A(f"s_mov_b32 {sCNT}, 0")
            self.L(sp)
            A(f"v_max3_u32 v{t}, v{s+1}, v{s+3}, v{s+5}")
            A(f"v_max_u32 v{t}, v{t}, v{s+7}")
            A(f"v_cmp_eq_u32 vcc, -1, v{t}")
            A(f"s_cbranch_vccz {ok}")
            self.st_load()
            A(f"s_add_u32 {sCNT}, {sCNT}, 1")
            A(f"s_cmp_lt_u32 {sCNT}, {SPIN}")
            A("s_waitcnt vmcnt(0)")
            A(f"s_cbranch_scc1 {sp}")
            self.L(ok)
            A(f"v_max3_f32 v{t}, v{s}, v{s+2}, v{s+4}")
            A(f"v_max_f32 v{t}, v{t}, v{s+6}")
            for k in range(4): A(f"v_sub_f32 v{s+2*k}, v{s+2*k}, v{t}")
            A(f"v_sub_f32 v{t+1}, v{vAC2+2}, v{t}")
            for k in range(4): A(f"v_exp_f32 v{s+2*k}, v{s+2*k}")
            A(f"v_exp_f32 v{t+1}, v{t+1}")
            A(f"v_mul_f32 v{t}, v{s}, v{s+1}")
            for k in range(1, 4): A(f"v_fmac_f32 v{t}, v{s+2*k}, v{s+2*k+1}")
            A(f"v_rcp_f32 v{t}, v{t}")
            A("s_waitcnt lgkmcnt(0)")
            A(f"v_mul_f32 v{t+1}, v{t+2}, v{t+1}")
            A(f"v_mul_f32 v{t}, v{t}, v{t+1}")
            A(f"ds_write_b32 v{t+3}, v{t} offset:{L_FS}")
        self.only(SVC, fn)

    def step_tail(self):
        A = self.A
        t = vTM; af = vSP
        self.lanes(0x00ff00ff, 0x00ff00ff)
        self.nop(6)
        A(f"v_cvt_pk_bf16_f32 v{t}, v{vACC}, v{vACC+1}")
        A(f"v_cvt_pk_bf16_f32 v{t+1}, v{vACC+2}, v{vACC+3}")
        A(f"ds_write_b32 v{vOK}, v{t}")
        A(f"ds_write_b32 v{vOK}, v{t+1} offset:{8*144}")
        A("s_mov_b64 exec, -1")
        A("s_waitcnt lgkmcnt(0)")
        A("s_barrier")
        self.C("16 rows = 8 wave partials x 2 halves of every group of four k : dense data in 2:4 form")
        for T in range(2): A(f"ds_read_b128 {vr(af+4*T,4)}, v{vOW} offset:{L_OB + 64*T}")
        A(f"ds_read_b32 v{t+4}, v{vOQ} offset:{L_FS}")
        A(f"ds_read_b32 v{vAC2+3}, v{vAC2} offset:{L_YF}")
        for T in range(2):
            self.lgkm(3 - T)
            for tau in range(4):
                A(f"v_smfmac_f32_16x16x64_bf16 {vr(vDF+4*tau,4)}, {vr(af+4*T,4)}, {vr(self.WF[tau]+8*T,8)}, v{vAC2+1}")
        A("s_waitcnt lgkmcnt(0)")
        self.nop(4)
        for tau in range(4):
            d = vDF + 4 * tau
            A(f"v_add_f32 v{d}, v{d}, v{d+1}"); A(f"v_add_f32 v{d+2}, v{d+2}, v{d+3}")
            A(f"v_add_f32 v{d}, v{d}, v{d+2}")
        self.nop(1)
        A(f"v_permlane16_swap_b32 v{vDF}, v{vDF+4}")
        A(f"v_permlane16_swap_b32 v{vDF+8}, v{vDF+12}")
        A(f"v_add_f32 v{vDF}, v{vDF}, v{vDF+4}")
        A(f"v_add_f32 v{vDF+8}, v{vDF+8}, v{vDF+12}")
        self.nop(2)
        A(f"v_permlane32_swap_b32 v{vDF}, v{vDF+8}")
        A(f"v_add_f32 v{t}, v{vDF}, v{vDF+8}")
        A(f"v_fma_f32 v{t}, v{t}, v{t+4}, v{vAC2+3}")
        self.C("8 sums and their arrival count share one 64-B request")
        A(f"v_cndmask_b32 v{t+1}, v{t}, 1.0, s[52:53]")
        A(f"v_cndmask_b32 v{t+2}, v{t}, 1.0, s[54:55]")
        self.lanes(0x01ff01ff, 0x01ff01ff)
        A(f"buffer_atomic_add_f32 v{t+1}, v{vOF}, {srd(R_WS)}, {sTF} offen sc0")
        self.lanes(0xff01ff01, 0xff01ff01)
        A(f"buffer_atomic_add_f32 v{t+2}, v{vOD}, {srd(R_WS)}, {sTF} offen offset:{self.astride} sc0")
        A("s_mov_b64 exec, -1")

    def finish(self):
        A = self.A
        t = vTM
        A("s_waitcnt vmcnt(0)")
        A(f"v_mov_b32_dpp v{t+3}, v{t+1} row_newbcast:8 row_mask:0xf bank_mask:0xf")
        A(f"v_mov_b32_dpp v{t+4}, v{t+2} row_newbcast:0 row_mask:0xf bank_mask:0xf")
        A(f"v_cndmask_b32 v{t+1}, v{t+2}, v{t+1}, s[68:69]")
        A(f"v_cndmask_b32 v{t+3}, v{t+4}, v{t+3}, s[68:69]")
        A(f"v_add_f32 v{t}, v{t}, v{t+1}")
        A(f"v_cmp_eq_f32 vcc, {sX0}, v{t+3}")
        A(f"v_cvt_pk_bf16_f32 v{t}, v{t}, v{t}")
        sk = self.label("fin")
        A("s_and_b64 exec, exec, vcc")
        A(f"s_cbranch_execz {sk}")
        A(f"global_store_short v{vT1}, v{t}, s[{P_OUT}:{P_OUT+1}]")
        self.L(sk)
        A("s_mov_b64 exec, -1")

    def steps(self, idx):
        S = []
        def add(name, needs, fn): S.append(dict(name=name, needs=needs, fn=fn))
        add("gate0", [], self.step_gate0)
        pts = list(self.hs_pts)
        evs = [(idx[p], f"hs{k}", [p], (lambda k=k: self.step_hs(k, k == len(pts) - 1))) for k, p in enumerate(pts)]
        evs.append((idx["K1_0"] + 0.5, "gate", ["@gate0"], self.step_gate))
        for _, n, nd, fn in sorted(evs, key=lambda e: e[0]): add(n, nd, fn)
        add("join", [f"@hs{len(pts)-1}", self.q_at], self.step_qsvc)
        add("qred", [], self.step_qred)
        for G in range(8): add(f"qk{G}", [f"K{G}_3"], lambda G=G: self.step_qk(G))
        add("fl", [], lambda: self.only(SVC, self.fl_load))
        add("softmax", ["wd1"], self.step_softmax)
        placed = False
        for G in range(8):
            if G == 7:
                add("pre7", [], self.step_pre7)
                add("scale", ["@st0"], self.step_scale)
            if not placed and G >= 5 and idx[f"V{G}_3"] > idx["wo15"]:
                add("wof", ["wo15"], self.step_wof); placed = True
            if G == 7:
                for r in range(4): add("pv7" if r == 3 else f"pv7_{r}", [f"V7_{r}"], lambda r=r: self.step_pv7(r))
            else:
                add(f"pv{G}", [f"V{G}_3"], lambda G=G: self.step_pv(G))
            if f"pv{G}" == self.fga_pos: add("fga", ["@fl"], self.step_fga)
            if f"pv{G}" == self.st_pos: add("st0", [], lambda: self.only(SVC, self.st_load))
            if f"pv{G}" == self.ffn_pos: add("ffn2", ["@fga"], self.step_ffn2)
        nm = [s["name"] for s in S]
        assert placed and nm.index("pv3") < nm.index("ffn2") < nm.index("wof")
        add("tail", [], self.step_tail)
        return S

    def schedule(self):
        items = self.items()
        idx = {it["name"]: n for n, it in enumerate(items)}
        issued = 4 + self.npre
        assert all(it["name"][0] == "K" for it in items[:issued])
        comp = -1; done = set(); pos = -1; after = {}; W = self.W
        for st in self.steps(idx):
            need = max([after[n[1:]] if n[0] == "@" else idx[n] for n in st["needs"]], default=-1)
            pos = max(pos, need)
            def issue(w):
                nonlocal issued, comp
                while issued < len(items):
                    it = items[issued]
                    if issued > pos + w - 1: break
                    if it["dep"] and it["dep"] not in done:
                        assert issued > need, (st["name"], it["name"])
                        break
                    if issued - (comp + 1) >= w:
                        self.A(f"s_waitcnt vmcnt({w-1})"); comp = issued - w
                    it["fn"](); issued += 1
            if st["name"] != "qred": issue(W)
            if comp < need:
                self.A(f"s_waitcnt vmcnt({issued-1-need})"); comp = need
            if st["name"] == "join":
                issue(W + self.boost_q); W = self.W2
            if st["name"] in self.boosts: issue(W + self.boosts[st["name"]])
            self.o.append(f"    ; ---- {st['name']}")
            st["fn"](); done.add(st["name"])
            after[st["name"]] = issued
            if st["name"] in ("qred", "pv7", "tail"): self.stamp({"qred": 1, "pv7": 2, "tail": 3}[st["name"]])
        assert issued == len(items)

    def build(self):
        A = self.A
        K1 = NAME + "_kernel"
        o = self.o
        o.append(HEADER.rstrip("\n"))
        o.append(f"; @launch grid=(256,1,1) block=(512,1,1) lds={LDS_BYTES}")
        o += ['.amdgcn_target "amdgcn-amd-amdhsa--gfx950"', ".text", f".globl {K1}", ".p2align 8",
              f".type {K1},@function", f"{K1}:"]
        self.phase0()
        self.schedule()
        self.finish()
        if self.stamps: A("s_barrier")
        if self.stamps:
            self.L("L_stamp")
            A(f"s_cmp_lg_u32 {sW}, 0"); A("s_cbranch_scc1 L_end")
            self.stamp(4)
            A("s_mov_b64 exec, 1")
            A("s_waitcnt lgkmcnt(0)")
            A(f"s_add_u32 s40, s40, {STAMP_OFF}"); A("s_addc_u32 s41, s41, 0")
            A("s_lshl_b32 s8, s2, 6"); A("v_mov_b32 v1, s8")
            for k in range(4):
                A(f"v_mov_b32 v{8+2*k}, s{sST+2*k}"); A(f"v_mov_b32 v{9+2*k}, s{sST+2*k+1}")
            A(f"v_mov_b32 v16, {sXCC}"); A("v_mov_b32 v17, 0")
            A(f"v_mov_b32 v18, s{sST+8}"); A(f"v_mov_b32 v19, s{sST+9}")
            A("global_store_dwordx4 v1, v[8:11], s[40:41]")
            A("global_store_dwordx4 v1, v[12:15], s[40:41] offset:16")
            A("global_store_dwordx4 v1, v[16:19], s[40:41] offset:32")
        self.L("L_end"); A("s_endpgm")
        o += ['.section .rodata,"a"', ".p2align 6", f".amdhsa_kernel {K1}", "  .amdhsa_next_free_vgpr 256",
              "  .amdhsa_next_free_sgpr 102", "  .amdhsa_accum_offset 256", "  .amdhsa_group_segment_fixed_size 0",
              "  .amdhsa_kernarg_size 104", "  .amdhsa_user_sgpr_count 2", "  .amdhsa_user_sgpr_kernarg_segment_ptr 1",
              "  .amdhsa_system_sgpr_workgroup_id_x 1", ".end_amdhsa_kernel"]
        return "\n".join(o) + "\n"

if __name__ == "__main__":
    import argparse, json
    ap = argparse.ArgumentParser()
    ap.add_argument("out"); ap.add_argument("--opt", default="{}")
    a = ap.parse_args()
    open(a.out, "w").write(Gen(**json.loads(a.opt)).build())
```

```python
import sys, struct, math

NAME = "gated_mix__mha_block_cached__geglu_ffn__decode"
HEADER = open("cdna_kernels/" + NAME + ".s.ref").read().split("; Override launch")[0]

def f32(x):
    return "0x%08x" % struct.unpack("<I", struct.pack("<f", x))[0]

L_QS = 0
L_HS = 256
L_GS = 320
L_FS = 336
L_MX = 384
L_LS = 448
L_OB = 512
L_YF = 3072
L_WD = 5120
L_WO = L_WD + 16384
LDS_BYTES = L_WO + 131072

WS_A = 0
WS_MB = 0x11000
WS_Q = 0x19000
WS_F = WS_Q + 0x40000
WS_BYTES = WS_F + 176 * 1024
STAMP_OFF = 128 << 20
SPIN = "0x4000"

sW = "s3"
P_X, P_K, P_V, P_WQ, P_WO, P_WG, P_WU = 16, 18, 20, 22, 24, 28, 30
P_WD, P_GW, P_OUT, P_DBG, P_WS = 32, 34, 36, 38, 40
R_K, R_V, R_WQ, R_WO, R_X, R_GW, R_FT, R_WD, R_WS = 44, 48, 52, 56, 60, 64, 68, 76, 80
sH, sB, sS, sSL, sT0, sT1, sT2 = "s4", "s5", "s6", "s7", "s8", "s9", "s10"
sTK, sTV, sTQ, sTF, sTD = "s11", "s12", "s13", "s14", "s15"
sX0, sX1 = "s42", "s43"
sARR, sMB = "s42", "s43"
sJ, sFT, sROT, sTI = "s72", "s73", "s74", "s75"
sWOL, sWDL = "s84", "s85"
sDUP0, sDUP1 = "s86", "s87"
sGO, sDONE = "s86", "s87"
sC, sCNT, sXCC, sBH = "s88", "s89", "s90", "s91"
sST = 92
def srd(r): return f"s[{r}:{r+3}]"

vL, vI, vG = 1, 2, 3
vOK, vOV, vOQ, vOW, vOF, vOD, vT0, vT1 = 4, 5, 6, 7, 8, 9, 10, 11
vM = 12
vXR = 16
vBF = 24
vACC = 32
vAC2 = 36
vQF = 40
vSP = 56
vDF = 88
vTM = 104
vFL = 111
vK = 112
vX = 240
vFG = vDF + 8
vFD = vK + 16
def vr(a, n): return f"v[{a}:{a+n-1}]"

HS, PUB, GSV, SVC = 0, 1, 2, 3

class Gen:
    def __init__(self, W=10, W2=12, boost_q=4, boosts=None, npre=4, q_at="K5_3", hs_pts=("K0_1", "K2_3", "K3_1", "K3_3"),
                 dma=(0, 0, 1, 1, 2, 1, 2, 1, 2, 1, 2, 1, 2, 2, 0, 0), xmap="0x54ff3210", nx=6,
                 fga_pos="pv1", st_pos="pv3", ffn_pos="pv3", stamps=False, gperm=(0,1,2,3,4,5,6,7), rotmul=1, astride=256, early=0, x_wo=0, wmap="0xf5f43210"):
        self.__dict__.update(locals())
        self.boosts = boosts if boosts is not None else {"softmax": 6, "wof": 4}
        assert sum(dma) == 18
        self.o = []; self.lab = 0
    def A(self, s): self.o.append("    " + s)
    def C(self, s): self.o.append("    ; " + s)
    def L(self, s): self.o.append(s + ":")
    def nop(self, n):
        while n > 0:
            k = min(n, 16); self.A(f"s_nop {k-1}"); n -= k
    def label(self, p):
        self.lab += 1; return f"L_{p}_{self.lab}"
    def stamp(self, k):
        if self.stamps: self.A(f"s_memrealtime s[{sST+2*k}:{sST+2*k+1}]")
    def lgkm(self, n): self.A(f"s_waitcnt lgkmcnt({0 if self.stamps else n})")
    def only(self, w, fn):
        sk = self.label("skip")
        self.A(f"s_cmp_lg_u32 {sW}, {w}"); self.A(f"s_cbranch_scc1 {sk}")
        fn()
        self.L(sk)
    def lanes(self, lo, hi):
        self.A(f"s_mov_b32 exec_lo, {lo:#x}"); self.A(f"s_mov_b32 exec_hi, {hi:#x}")
    def swap_reduce(self, op, v, tmp, which):
        A = self.A
        A(f"v_mov_b32 v{tmp}, v{v}")
        self.nop(2)
        A(f"v_permlane{which}_swap_b32 v{v}, v{tmp}")
        self.nop(1)
        A(f"{op} v{v}, v{v}, v{tmp}")
    def dpp_add(self, v, ctl):
        self.nop(2)
        self.A(f"v_add_f32_dpp v{v}, v{v}, v{v} {ctl} row_mask:0xf bank_mask:0xf")
    def mk(self, r, p, off, size):
        A = self.A
        if off is None:
            A(f"s_mov_b32 s{r}, s{p}"); A(f"s_mov_b32 s{r+1}, s{p+1}")
        else:
            A(f"s_add_u32 s{r}, s{p}, {off}"); A(f"s_addc_u32 s{r+1}, s{p+1}, 0")
        if size is not None: A(f"s_mov_b32 s{r+2}, {size}")
        A(f"s_mov_b32 s{r+3}, 0x20000")

    def kv_load(self, kind, G, t):
        A = self.A
        st = sTK if kind == "K" else sTV
        if t == 0: A(f"s_xor_b32 {st}, {sROT}, {self.gperm[G] << 15}")
        if kind == "K":
            A(f"buffer_load_dwordx4 {vr(vK+16*G+4*t,4)}, v{vOK}, {srd(R_K)}, {st} offen offset:{(t>>1)*2048 + (t&1)*128} nt")
        else:
            dst = vX if G == 0 else vK + 16 * (G - 1)
            A(f"buffer_load_dwordx4 {vr(dst+4*t,4)}, v{vOV}, {srd(R_V)}, {st} offen offset:{256*t} nt")

    def bsel(self, src, half, bset):
        A = self.A
        t = vTM + 4 + bset
        A(f"v_perm_b32 v{t}, v{src}, v{src}, {sDUP1 if half else sDUP0}")
        for u in range(4): A(f"v_and_b32 v{vBF+4*bset+u}, v{t}, v{vM+u}")

    def phase0(self):
        A = self.A
        A("s_cmp_ge_u32 s2, 256")
        A("s_cbranch_scc1 L_end")
        A("s_load_dwordx16 s[16:31], s[0:1], 0")
        A("s_load_dwordx8 s[32:39], s[0:1], 64")
        A("s_load_dwordx2 s[40:41], s[0:1], 96")
        self.stamp(0)
        A("v_lshrrev_b32 v10, 6, v0")
        A(f"v_and_b32 v{vI}, 15, v0")
        A(f"v_readfirstlane_b32 {sW}, v10")
        A(f"v_bfe_u32 v{vG}, v0, 4, 2")
        self.C("wg = (j*4 + hq)*8 + x ; h = 4x + hq ; j = 4b + s   (x = XCD under round-robin placement: speed only)")
        A(f"s_and_b32 {sT0}, s2, 7")
        A(f"s_lshr_b32 {sT1}, s2, 3")
        A(f"s_and_b32 {sT2}, {sT1}, 3")
        A(f"s_lshl_b32 {sH}, {sT0}, 2")
        A(f"s_add_u32 {sH}, {sH}, {sT2}")
        A(f"s_lshr_b32 {sJ}, {sT1}, 2")
        A(f"s_and_b32 {sFT}, s2, 31")
        self.C("FFN work goes to the workgroups whose x has a rank (nibble table, 15 = none)")
        A(f"s_lshl_b32 {sCNT}, {sT0}, 2"); A(f"s_lshr_b32 {sCNT}, {self.xmap}, {sCNT}"); A(f"s_and_b32 {sCNT}, {sCNT}, 15")
        A(f"s_mul_i32 {sTI}, {sT2}, {self.nx}"); A(f"s_add_u32 {sTI}, {sTI}, {sCNT}")
        A(f"s_cmp_eq_u32 {sCNT}, 15"); A(f"s_cselect_b32 {sTI}, 31, {sTI}")
        A(f"s_lshl_b32 {sTK}, {sJ}, 3"); A(f"s_add_u32 {sTK}, {sTK}, {sW}")
        A(f"s_lshl_b32 {sTV}, {sTK}, 4")
        A(f"s_lshl_b32 {sX0}, {sTK}, 16"); A(f"s_lshl_b32 {sTQ}, {sH}, 8"); A(f"s_add_u32 {sX0}, {sX0}, {sTQ}")
        A(f"s_cmp_ge_u32 {sTI}, 11")
        A(f"s_cselect_b32 {sX1}, 11, 0")
        A(f"s_sub_u32 {sX1}, {sTI}, {sX1}")
        A(f"s_lshl_b32 {sX1}, {sX1}, 8")
        A(f"s_mul_i32 {sTK}, {sTK}, {8*2752}")
        A(f"s_add_u32 {sX1}, {sX1}, {sTK}")
        A(f"s_sub_u32 s{R_FT+2}, {512*2752}, {sX1}")
        A(f"s_cmp_lt_u32 {sTI}, 22")
        A(f"s_cselect_b32 s{R_FT+2}, s{R_FT+2}, 0")
        A(f"s_cselect_b32 {sX1}, {sX1}, 0")
        A(f"s_mov_b32 s{R_FT+3}, 0x20000")
        A(f"s_mov_b32 s{R_X+2}, 2048"); A(f"s_mov_b32 s{R_X+3}, 0x20000")
        A(f"s_mov_b32 s{R_WQ+2}, {7*8192+256}"); A(f"s_mov_b32 s{R_WQ+3}, 0x20000")
        A(f"s_movk_i32 {sTQ}, 8192")
        A(f"v_lshrrev_b32 v{vT0}, 3, v{vI}")
        A(f"v_lshlrev_b32 v{vT0}, 10, v{vT0}")
        A(f"v_lshl_add_u32 v{vT0}, v{vG}, 2, v{vT0}")
        A(f"v_lshlrev_b32 v{vT1}, 4, v{vI}")
        A(f"v_lshl_add_u32 v{vOQ}, v{vG}, 14, v{vT1}")
        A(f"v_mul_u32_u24 v{vOF}, {2*2752}, v{vG}")
        A(f"v_add_u32 v{vOF}, v{vOF}, v{vT1}")
        A(f"s_cmp_ge_u32 {sTI}, 11")
        A("s_waitcnt lgkmcnt(0)")
        self.C("projection tiles: rows 64j + 8w + 2g + t of wq (128 columns of head h) and of w_gate / w_up (one 128-column block)")
        A(f"s_cselect_b32 s{R_FT}, s{P_WU}, s{P_WG}"); A(f"s_cselect_b32 s{R_FT+1}, s{P_WU+1}, s{P_WG+1}")
        A(f"s_add_u32 s{R_WQ}, s{P_WQ}, {sX0}"); A(f"s_addc_u32 s{R_WQ+1}, s{P_WQ+1}, 0")
        A(f"buffer_load_dwordx4 {vr(vDF,4)}, v{vOQ}, {srd(R_WQ)}, 0 offen nt")
        A(f"buffer_load_dwordx4 {vr(vDF+4,4)}, v{vOQ}, {srd(R_WQ)}, {sTQ} offen nt")
        A(f"s_add_u32 s{R_FT}, s{R_FT}, {sX1}"); A(f"s_addc_u32 s{R_FT+1}, s{R_FT+1}, 0")
        A(f"buffer_load_dwordx4 {vr(vDF+8,4)}, v{vOF}, {srd(R_FT)}, 0 offen nt")
        A(f"buffer_load_dwordx4 {vr(vDF+12,4)}, v{vOF}, {srd(R_FT)}, 0 offen offset:2752 nt")
        A(f"s_mov_b32 s{R_X}, s{P_X}"); A(f"s_mov_b32 s{R_X+1}, s{P_X+1}")
        A(f"buffer_load_dword v{vXR}, v{vT0}, {srd(R_X)}, {sTV} offen")
        self.mk(R_WS, P_WS, None, WS_BYTES)
        def clear():
            self.C("invalidate the hand-off slots this workgroup is responsible for")
            c = vQF
            for k in range(4): A(f"v_mov_b32 v{c+k}, -1")
            A(f"v_and_b32 v{c+4}, 63, v0"); A(f"v_lshlrev_b32 v{c+4}, 4, v{c+4}")
            A(f"s_lshl_b32 {sTD}, {sH}, 3"); A(f"s_add_u32 {sTD}, {sTD}, {sJ}"); A(f"s_lshl_b32 {sTD}, {sTD}, 10")
            A(f"s_add_u32 {sTD}, {sTD}, {WS_Q}")
            A(f"buffer_store_dwordx4 {vr(c,4)}, v{c+4}, {srd(R_WS)}, {sTD} offen sc1")
            A(f"s_lshl_b32 {sTD}, {sTI}, 3"); A(f"s_add_u32 {sTD}, {sTD}, {sJ}"); A(f"s_lshl_b32 {sTD}, {sTD}, 10")
            A(f"s_add_u32 {sTD}, {sTD}, {WS_F}")
            A(f"buffer_store_dwordx4 {vr(c,4)}, v{c+4}, {srd(R_WS)}, {sTD} offen sc1")
            self.lanes(0xff, 0)
            A(f"s_lshl_b32 {sTD}, s2, 7"); A(f"s_add_u32 {sTD}, {sTD}, {WS_MB}")
            A(f"buffer_store_dwordx4 {vr(c,4)}, v{c+4}, {srd(R_WS)}, {sTD} offen sc1")
            for k in range(4): A(f"v_mov_b32 v{c+8+k}, 0")
            A(f"s_mul_i32 {sTD}, s2, {self.astride}")
            if self.astride == 64: self.lanes(0xf, 0)
            A(f"s_cmp_lt_u32 s2, 128"); A(f"s_cselect_b32 {sTD}, {sTD}, {4 << 20}")
            A(f"buffer_store_dwordx4 {vr(c+8,4)}, v{c+4}, {srd(R_WS)}, {sTD} offen sc1")
            A("s_mov_b64 exec, -1")
        self.only(HS, clear)
        self.C("everything else while those fly")
        A(f"v_and_b32 v{vL}, 63, v0")
        A(f"s_lshr_b32 {sB}, {sJ}, 2")
        A(f"s_and_b32 {sS}, {sJ}, 3")
        A(f"s_lshl_b32 {sBH}, {sB}, 5"); A(f"s_add_u32 {sBH}, {sBH}, {sH}")
        A(f"v_and_b32 v{vOK}, 7, v0")
        A(f"v_lshlrev_b32 v{vOK}, 8, v{vOK}")
        A(f"v_lshl_add_u32 v{vOK}, v{vG}, 4, v{vOK}")
        A(f"v_and_b32 v{vOV}, 8, v0")
        A(f"v_lshl_add_u32 v{vOK}, v{vOV}, 3, v{vOK}")
        A(f"v_lshl_add_u32 v{vOV}, v{vG}, 10, v{vT1}")
        A(f"s_lshl_b32 {sTK}, {sBH}, 20")
        A(f"s_lshl_b32 {sTV}, {sS}, 18"); A(f"s_add_u32 {sTK}, {sTK}, {sTV}")
        A(f"s_lshl_b32 {sTV}, {sW}, 12"); A(f"s_add_u32 {sTK}, {sTK}, {sTV}")
        self.mk(R_K, P_K, sTK, (7 << 15) + 4096)
        self.mk(R_V, P_V, sTK, (7 << 15) + 4096)
        if self.rotmul == 1: A(f"s_lshl_b32 {sROT}, {sJ}, 15")
        else:
            A(f"s_mul_i32 {sROT}, {sJ}, {self.rotmul}"); A(f"s_and_b32 {sROT}, {sROT}, 7"); A(f"s_lshl_b32 {sROT}, {sROT}, 15")
        if self.early:
            lk = self.label("early")
            A(f"s_cmp_eq_u32 {sW}, {HS}"); A(f"s_cbranch_scc1 {lk}")
            for n in range(self.early): self.kv_load("K", n // 4, n % 4)
            self.L(lk)
        self.mk(R_GW, P_GW, None, 1024)
        per = -(-86 // self.nx)
        if self.wmap:
            A(f"s_lshl_b32 {sCNT}, {sT0}, 2"); A(f"s_lshr_b32 {sCNT}, {self.wmap}, {sCNT}"); A(f"s_and_b32 {sCNT}, {sCNT}, 15")
        A(f"s_and_b32 {sT1}, {sT1}, 15")
        A(f"s_mul_i32 {sSL}, {sCNT}, {per}")
        A(f"s_add_u32 {sSL}, {sSL}, {sT1}")
        A(f"s_cmp_lt_u32 {sT1}, {per}")
        A(f"s_cselect_b32 {sSL}, {sSL}, 1000")
        A(f"s_cmp_lt_u32 {sSL}, 86")
        A(f"s_cselect_b32 s{R_WD+2}, {15*1024+128}, 0")
        A(f"s_cselect_b32 {sSL}, {sSL}, 0")
        A(f"s_lshl_b32 {sT0}, {sSL}, 14"); A(f"s_lshl_b32 {sT1}, {sW}, 7"); A(f"s_add_u32 {sT0}, {sT0}, {sT1}")
        self.mk(R_WD, P_WD, sT0, None)
        A(f"s_lshl_b32 {sT0}, {sH}, 17"); A(f"s_add_u32 {sT0}, {sT0}, {sT1}")
        self.mk(R_WO, P_WO, sT0, 0 if self.x_wo == 2 else 127 * 1024 + 128)
        A(f"v_lshlrev_b32 v{vT1}, 4, v{vL}")
        t = vTM + 4
        A(f"v_and_b32 v{t}, 7, v{vL}")
        A(f"v_lshlrev_b32 v{t}, 4, v{t}")
        A(f"v_lshrrev_b32 v{t+1}, 3, v{vL}")
        A(f"v_lshl_add_u32 v{vOD}, v{t+1}, 10, v{t}")
        A(f"v_and_b32 v{t+2}, 3, v{t+1}")
        A(f"v_lshlrev_b32 v{t+2}, 3, v{t+2}")
        A(f"v_lshrrev_b32 v{t+1}, 2, v{t+1}")
        A(f"v_add_u32 v{t+1}, v{t+1}, v{t+2}")
        A(f"v_lshl_add_u32 v{vOW}, v{t+1}, 10, v{t}")
        A(f"s_lshl_b32 {sWOL}, {sW}, 14"); A(f"s_add_u32 {sWOL}, {sWOL}, {L_WO}")
        A(f"s_lshl_b32 {sWDL}, {sW}, 11"); A(f"s_add_u32 {sWDL}, {sWDL}, {L_WD}")
        self.C("selection masks: e = i&7 ; M_u = (e>>1)==u ? (e&1 ? 0xffff0000 : 0xffff) : 0")
        A(f"v_and_b32 v{t}, 1, v{vI}")
        A(f"v_lshlrev_b32 v{t}, 4, v{t}")
        A(f"v_mov_b32 v{t+1}, 0xffff")
        A(f"v_lshlrev_b32 v{t+1}, v{t}, v{t+1}")
        A(f"v_bfe_u32 v{t}, v{vI}, 1, 2")
        for u in range(4):
            A(f"v_cmp_eq_u32 vcc, {u}, v{t}")
            self.nop(2)
            A(f"v_cndmask_b32 v{vM+u}, 0, v{t+1}, vcc")
        A(f"s_mov_b32 {sDUP0}, 0x01000100"); A(f"s_mov_b32 {sDUP1}, 0x03020302")
        A(f"s_mov_b32 {sC}, {f32(math.log2(math.e) / math.sqrt(128.0))}")
        if self.stamps: A(f"s_getreg_b32 {sXCC}, hwreg(HW_REG_XCC_ID)")
        A(f"s_add_u32 {sT0}, {sWOL}, {14*1024}")
        A(f"v_lshl_add_u32 v{vT0}, v{vL}, 4, {sT0}")
        def hsw():
            A("s_waitcnt vmcnt(0)")
            for n in range(self.early): self.kv_load("K", n // 4, n % 4)
        self.only(HS, hsw)
        if self.early:
            A(f"s_waitcnt vmcnt({self.early})")
            for n in range(self.early, 4 + self.npre): self.kv_load("K", n // 4, n % 4)
        else:
            for t in range(4):
                A(f"s_waitcnt vmcnt({[3,2,2,3][t]})")
                self.kv_load("K", 0, t)
            for n in range(self.npre): self.kv_load("K", 1 + n // 4, n % 4)
        self.bsel(vXR, 0, 0); self.bsel(vXR, 1, 1)
        self.nop(1)
        A(f"v_mfma_f32_16x16x32_bf16 {vr(vACC,4)}, {vr(vDF,4)}, {vr(vBF,4)}, 0")
        A(f"v_mfma_f32_16x16x32_bf16 {vr(vAC2,4)}, {vr(vDF+8,4)}, {vr(vBF,4)}, 0")
        A(f"v_mfma_f32_16x16x32_bf16 {vr(vACC,4)}, {vr(vDF+4,4)}, {vr(vBF+4,4)}, {vr(vACC,4)}")
        A(f"v_mfma_f32_16x16x32_bf16 {vr(vAC2,4)}, {vr(vDF+12,4)}, {vr(vBF+4,4)}, {vr(vAC2,4)}")
        self.nop(8)
        A(f"ds_write_b128 v{vT0}, {vr(vACC,4)}")
        A(f"ds_write_b128 v{vT0}, {vr(vAC2,4)} offset:1024")
        A("s_waitcnt lgkmcnt(0)")
        def arrive():
            self.C("this workgroup's slots are invalid now: count it in at its head's counter")
            A(f"s_lshl_b32 {sTF}, {sFT}, 3"); A(f"s_mov_b32 {sARR}, 1")
            A(f"s_atomic_add {sARR}, s[{P_DBG}:{P_DBG+1}], {sTF} glc")
        self.only(HS, arrive)
        A("s_barrier")
        def publish():
            d = vSP; d2 = vK + 96
            A(f"v_add_u32 v{vT0}, {L_WO + 14*1024}, v{vT1}")
            A(f"v_add_u32 v{vTM}, 0x10000, v{vT0}")
            for w in range(8): A(f"ds_read_b128 {vr(d+4*w,4)}, v{vT0 if w < 4 else vTM} offset:{16384*(w&3)}")
            for w in range(4): A(f"ds_read_b128 {vr(d2+4*w,4)}, v{vT0} offset:{1024+16384*w}")
            A(f"s_lshl_b32 {sT0}, {sH}, 3"); A(f"s_add_u32 {sT0}, {sT0}, {sJ}"); A(f"s_lshl_b32 {sT0}, {sT0}, 10")
            A(f"s_add_u32 {sT0}, {sT0}, {WS_Q}")
            A(f"s_lshl_b32 {sT1}, {sTI}, 3"); A(f"s_add_u32 {sT1}, {sT1}, {sJ}"); A(f"s_lshl_b32 {sT1}, {sT1}, 10")
            A(f"s_add_u32 {sT1}, {sT1}, {WS_F}")
            self.lgkm(4)
            for w in range(4, 8): A(f"ds_read_b128 {vr(d2+4*w,4)}, v{vTM} offset:{1024+16384*(w&3)}")
            for w in range(1, 8):
                for r in range(4): A(f"v_add_f32 v{d+r}, v{d+r}, v{d+4*w+r}")
            for r in range(4): A(f"v_min_u32 v{d+r}, -2, v{d+r}")
            A(f"buffer_store_dwordx4 {vr(d,4)}, v{vT1}, {srd(R_WS)}, {sT0} offen sc1")
            A("s_waitcnt lgkmcnt(0)")
            for w in range(1, 8):
                for r in range(4): A(f"v_add_f32 v{d2+r}, v{d2+r}, v{d2+4*w+r}")
            for r in range(4): A(f"v_min_u32 v{d2+r}, -2, v{d2+r}")
            A(f"buffer_store_dwordx4 {vr(d2,4)}, v{vT1}, {srd(R_WS)}, {sT1} offen sc1")
            self.nop(2)
        self.only(PUB, publish)

    def items(self):
        A = self.A
        it = []
        def add(name, fn, dep=None): it.append(dict(name=name, fn=fn, dep=dep))
        def grp(kind, G, dep):
            for t in range(4): add(f"{kind}{G}_{t}", lambda t=t: self.kv_load(kind, G, t), dep if t == 0 else None)
        wd = []; wo = []
        for t in range(2):
            def fn(t=t):
                A(f"s_add_u32 m0, {sWDL}, {t*1024}")
                A(f"s_movk_i32 {sTD}, {t*8192}")
                A(f"buffer_load_dwordx4 v{vOD}, {srd(R_WD)}, {sTD} offen nt lds")
            wd.append((f"wd{t}", fn, None))
        for t in range(16):
            def fn(t=t):
                A(f"s_add_u32 m0, {sWOL}, {t*1024}")
                A(f"s_mov_b32 {sTD}, {(32*(t>>2) + 2*(t&3))*1024}")
                if self.x_wo == 1: A(f"buffer_load_dwordx4 v[92:95], v{vOW}, {srd(R_WO)}, {sTD} offen nt")
                elif self.x_wo == 3: A(f"buffer_load_dwordx4 v[92:95], v{vT1}, {srd(R_WO)}, {sTD} offen nt")
                else: A(f"buffer_load_dwordx4 v{vOW}, {srd(R_WO)}, {sTD} offen nt lds")
            wo.append((f"wo{t}", fn, "qred" if t >= 14 else None))
        q = wo[:4] + wd + wo[4:]
        def put(slot):
            for _ in range(self.dma[slot]):
                n, fn, dep = q.pop(0); add(n, fn, dep)
        for G in range(8): grp("K", G, None); put(G)
        for G in range(8): grp("V", G, ("st0" if G == 7 else f"qk{G-1}") if G else None); put(8 + G)
        return it

    def mb_load(self):
        self.A(f"s_load_dword {sGO}, s[{P_WS}:{P_WS+1}], {sMB} glc")
    def ga_loads(self):
        A = self.A
        t = vTM
        A(f"s_lshl_b32 {sT0}, {sH}, 13"); A(f"s_lshl_b32 {sT1}, {sB}, 7"); A(f"s_add_u32 {sT0}, {sT0}, {sT1}")
        A(f"s_add_u32 {sT0}, {sT0}, {WS_Q}")
        A(f"v_and_b32 v{t}, 7, v{vL}"); A(f"v_lshlrev_b32 v{t}, 4, v{t}")
        A(f"v_bfe_u32 v{t+1}, v{vL}, 3, 2"); A(f"v_lshl_add_u32 v{t}, v{t+1}, 8, v{t}")
        A(f"v_lshrrev_b32 v{t+1}, 5, v{vL}"); A(f"v_lshl_add_u32 v{t}, v{t+1}, 10, v{t}")
        A(f"s_add_u32 {sT1}, {sT0}, 4096")
        for k in range(4):
            A(f"buffer_load_dwordx4 {vr(vSP+4*k,4)}, v{t}, {srd(R_WS)}, {sT0 if k < 2 else sT1} offen offset:{(k&1)*2048} sc1")
    def step_hs(self, k, last):
        A = self.A
        def fn():
            end = self.label("hsend"); wait = self.label("hswait")
            if k == 0:
                self.C("the last of the eight workgroups of a head tells all of them that the head's slots are invalid")
                A(f"s_lshl_b32 {sMB}, s2, 7"); A(f"s_add_u32 {sMB}, {sMB}, {WS_MB}")
                A(f"s_mov_b32 {sDONE}, 0")
                A(f"v_lshlrev_b32 v{vQF+4}, 12, v{vL}"); A(f"v_mov_b32 v{vQF+6}, 1")
                A(f"s_lshl_b32 {sT0}, {sFT}, 7"); A(f"s_add_u32 {sT0}, {sT0}, {WS_MB}")
                A("s_waitcnt lgkmcnt(0)")
                A(f"s_and_b32 {sARR}, {sARR}, 7"); A(f"s_cmp_lg_u32 {sARR}, 7"); A(f"s_cbranch_scc1 {wait}")
                self.lanes(0xff, 0)
                A(f"buffer_store_dword v{vQF+6}, v{vQF+4}, {srd(R_WS)}, {sT0} offen sc1")
                A("s_mov_b64 exec, -1")
                A(f"s_mov_b32 {sGO}, 1")
                A(f"s_branch {end}")
                self.L(wait)
                self.mb_load()
                self.L(end)
                return
            A(f"s_cmp_eq_u32 {sDONE}, 1"); A(f"s_cbranch_scc1 {end}")
            A("s_waitcnt lgkmcnt(0)")
            if last:
                sp = self.label("mbspin"); go = self.label("go")
                A(f"s_cmp_eq_u32 {sGO}, 1"); A(f"s_cbranch_scc1 {go}")
                A(f"s_mov_b32 {sCNT}, 0")
                A(f"v_mov_b32 v{vTM}, 0")
                self.L(sp)
                A("s_mov_b64 exec, 1")
                A(f"buffer_load_dword v{vFL}, v{vTM}, {srd(R_WS)}, {sMB} offen sc1")
                A("s_mov_b64 exec, -1")
                A(f"s_add_u32 {sCNT}, {sCNT}, 1")
                A("s_waitcnt vmcnt(0)")
                A(f"v_readfirstlane_b32 {sTF}, v{vFL}")
                A(f"s_cmp_ge_u32 {sCNT}, {SPIN}"); A(f"s_cbranch_scc1 {go}")
                A(f"s_cmp_lg_u32 {sTF}, 1"); A(f"s_cbranch_scc1 {sp}")
                self.L(go)
            else:
                A(f"s_cmp_lg_u32 {sGO}, 1"); A(f"s_cbranch_scc1 {wait}")
            self.ga_loads()
            A(f"s_mov_b32 {sDONE}, 1")
            if not last:
                A(f"s_branch {end}")
                self.L(wait)
                self.mb_load()
            self.L(end)
        self.only(HS, fn)
    def step_qsvc(self):
        A = self.A
        def fn():
            gs = self.label("gaspin"); ok = self.label("gaok")
            t = vTM; d = vSP
            A(f"s_mov_b32 {sCNT}, 0")
            self.L(gs)
            A(f"v_max3_u32 v{t+2}, v{d}, v{d+1}, v{d+2}")
            for k in range(3, 15, 2): A(f"v_max3_u32 v{t+2}, v{t+2}, v{d+k}, v{d+k+1}")
            A(f"v_max_u32 v{t+2}, v{t+2}, v{d+15}")
            A(f"v_cmp_eq_u32 vcc, -1, v{t+2}")
            A(f"s_cbranch_vccz {ok}")
            self.ga_loads()
            A(f"s_add_u32 {sCNT}, {sCNT}, 1")
            A(f"s_cmp_lt_u32 {sCNT}, {SPIN}")
            A("s_waitcnt vmcnt(0)")
            A(f"s_cbranch_scc1 {gs}")
            self.L(ok)
            for k in range(1, 4):
                for r in range(4): A(f"v_add_f32 v{d+r}, v{d+r}, v{d+4*k+r}")
            A(f"v_and_b32 v{t+1}, 7, v{vL}")
            A(f"v_lshrrev_b32 v{t+2}, 5, v{vL}")
            A(f"v_permlane32_swap_b32 v{d}, v{d+1}"); A(f"v_permlane32_swap_b32 v{d+2}, v{d+3}")
            A(f"v_lshl_add_u32 v{t+1}, v{t+2}, 3, v{t+1}")
            A(f"v_add_f32 v{d}, v{d}, v{d+1}"); A(f"v_add_f32 v{d+2}, v{d+2}, v{d+3}")
            A(f"v_cvt_pk_bf16_f32 v{d}, v{d}, v{d+2}")
            A(f"v_bfe_u32 v{t}, v{vL}, 3, 2")
            A(f"v_lshl_add_u32 v{t}, v{t}, 5, v{t+1}")
            A(f"v_lshlrev_b32 v{t}, 1, v{t}")
            A(f"ds_write_b16 v{t}, v{d} offset:{L_QS}")
            A(f"ds_write_b16_d16_hi v{t}, v{d} offset:{L_QS+32}")
        self.only(HS, fn)

    def step_gate0(self):
        A = self.A
        def fn():
            A(f"s_lshl_b32 {sT1}, {sB}, 10")
            A(f"buffer_load_dwordx4 {vr(vXR,4)}, v{vT1}, {srd(R_X)}, {sT1} offen")
            A(f"buffer_load_dwordx4 {vr(vXR+4,4)}, v{vT1}, {srd(R_GW)}, 0 offen")
        self.only(GSV, fn)
    def step_gate(self):
        A = self.A
        def fn():
            x, w = vXR, vXR + 4
            t = vTM; acc = vT0
            A(f"v_mov_b32 v{acc}, 0")
            for k in range(4):
                A(f"v_lshlrev_b32 v{t}, 16, v{x+k}"); A(f"v_lshlrev_b32 v{t+1}, 16, v{w+k}")
                A(f"v_and_b32 v{t+2}, 0xffff0000, v{x+k}"); A(f"v_and_b32 v{t+3}, 0xffff0000, v{w+k}")
                A(f"v_mul_f32 v{t}, v{t}, v{t+1}"); A(f"v_mul_f32 v{t+2}, v{t+2}, v{t+3}")
                A(f"v_cvt_pk_bf16_f32 v{t}, v{t}, v{t+2}")
                A(f"v_lshlrev_b32 v{t+1}, 16, v{t}"); A(f"v_and_b32 v{t}, 0xffff0000, v{t}")
                A(f"v_add_f32 v{acc}, v{acc}, v{t+1}"); A(f"v_add_f32 v{acc}, v{acc}, v{t}")
            for ctl in ("quad_perm:[1,0,3,2]", "quad_perm:[2,3,0,1]", "row_half_mirror", "row_mirror"):
                self.dpp_add(acc, ctl)
            self.swap_reduce("v_add_f32", acc, t, 16)
            self.swap_reduce("v_add_f32", acc, t, 32)
            A(f"v_cvt_pk_bf16_f32 v{acc}, v{acc}, v{acc}")
            A(f"v_and_b32 v{acc}, 0xffff0000, v{acc}")
            A(f"v_mul_f32 v{acc}, {f32(-math.log2(math.e))}, v{acc}")
            A(f"v_exp_f32 v{acc}, v{acc}")
            self.nop(1)
            A(f"v_add_f32 v{acc}, 1.0, v{acc}")
            A(f"v_rcp_f32 v{acc}, v{acc}")
            self.nop(1)
            A(f"v_cvt_pk_bf16_f32 v{acc}, v{acc}, v{acc}")
            A(f"v_and_b32 v{t}, 0xffff0000, v{acc}")
            A(f"v_sub_f32 v{t+1}, 1.0, v{t}")
            A(f"v_cvt_pk_bf16_f32 v{t+1}, v{t+1}, v{t+1}")
            A(f"v_and_b32 v{t+1}, 0xffff0000, v{t+1}")
            A(f"v_mov_b32 v{t+2}, 0")
            A(f"ds_write_b64 v{t+2}, {vr(t,2)} offset:{L_GS}")
        self.only(GSV, fn)

    def fl_load(self):
        A = self.A
        A(f"v_and_b32 v{vT0}, 31, v{vL}"); A(f"v_lshlrev_b32 v{vT0}, 3, v{vT0}")
        A(f"global_load_dword v{vFL}, v{vT0}, s[{P_DBG}:{P_DBG+1}] sc1")
    def fg_load(self):
        A = self.A
        A(f"s_lshr_b32 {sT0}, {sSL}, 3"); A(f"s_lshl_b32 {sT0}, {sT0}, 13")
        A(f"s_lshl_b32 {sT1}, {sB}, 7"); A(f"s_add_u32 {sT0}, {sT0}, {sT1}")
        A(f"s_bfe_u32 {sT1}, {sSL}, 0x20001"); A(f"s_lshl_b32 {sT1}, {sT1}, 8"); A(f"s_add_u32 {sT0}, {sT0}, {sT1}")
        A(f"s_and_b32 {sT1}, {sSL}, 1"); A(f"s_lshl_b32 {sT1}, {sT1}, 3"); A(f"s_add_u32 {sT0}, {sT0}, {sT1}")
        A(f"s_add_u32 {sT0}, {sT0}, {WS_F}")
        A(f"v_and_b32 v{vT0}, 7, v{vL}"); A(f"v_lshlrev_b32 v{vT0}, 4, v{vT0}")
        A(f"v_lshrrev_b32 v{vTM}, 3, v{vL}"); A(f"v_lshl_add_u32 v{vT0}, v{vTM}, 10, v{vT0}")
        A(f"buffer_load_dwordx2 {vr(vFG,2)}, v{vT0}, {srd(R_WS)}, {sT0} offen sc1")
        A(f"s_add_u32 {sT0}, {sT0}, {11*8192}")
        A(f"buffer_load_dwordx2 {vr(vFG+2,2)}, v{vT0}, {srd(R_WS)}, {sT0} offen sc1")
    def step_fga(self):
        A = self.A
        def fn():
            self.C("every workgroup has invalidated its slots -> gather the gate/up partials of this slice")
            ok = self.label("flok"); sp = self.label("flspin")
            A(f"v_cmp_gt_u32 vcc, 8, v{vFL}")
            A(f"s_cbranch_vccz {ok}")
            A(f"s_mov_b32 {sCNT}, 0")
            self.L(sp)
            A("s_sleep 32")
            self.fl_load()
            A(f"s_add_u32 {sCNT}, {sCNT}, 1")
            A(f"s_cmp_ge_u32 {sCNT}, {SPIN}")
            A("s_waitcnt vmcnt(0)")
            A(f"s_cbranch_scc1 {ok}")
            A(f"v_cmp_gt_u32 vcc, 8, v{vFL}")
            A(f"s_cbranch_vccnz {sp}")
            self.L(ok)
            self.fg_load()
        self.only(SVC, fn)
    def step_ffn2(self):
        A = self.A
        t = vTM
        def fn():
            self.C("h = gelu(gate)*up for 16 hidden units, then (1-g) * h @ w_down for all 512 columns")
            e = vFG
            ok = self.label("fgok"); sp = self.label("fgspin")
            A(f"s_mov_b32 {sCNT}, 0")
            self.L(sp)
            A(f"v_max3_u32 v{t}, v{e}, v{e+1}, v{e+2}"); A(f"v_max_u32 v{t}, v{t}, v{e+3}")
            A(f"v_cmp_eq_u32 vcc, -1, v{t}")
            A(f"s_cbranch_vccz {ok}")
            self.fg_load()
            A(f"s_add_u32 {sCNT}, {sCNT}, 1")
            A(f"s_cmp_lt_u32 {sCNT}, {SPIN}")
            A("s_waitcnt vmcnt(0)")
            A(f"s_cbranch_scc1 {sp}")
            self.L(ok)
            A(f"v_permlane32_swap_b32 v{e}, v{e+1}"); A(f"v_permlane32_swap_b32 v{e+2}, v{e+3}")
            self.nop(1)
            A(f"v_add_f32 v{e}, v{e}, v{e+1}"); A(f"v_add_f32 v{e+2}, v{e+2}, v{e+3}")
            self.swap_reduce("v_add_f32", e, e + 1, 16)
            self.swap_reduce("v_add_f32", e + 2, e + 3, 16)
            self.dpp_add(e, "row_ror:8"); self.dpp_add(e + 2, "row_ror:8")
            A(f"v_cvt_pk_bf16_f32 v{e}, v{e}, v{e+2}")
            A(f"v_and_b32 v{e+2}, 0xffff0000, v{e}")
            A(f"v_lshlrev_b32 v{e}, 16, v{e}")
            k0 = math.sqrt(2.0 / math.pi)
            self.C("gelu_tanh(x) = x / (1 + exp(-2*sqrt(2/pi)*(x + 0.044715 x^3)))")
            A(f"v_mul_f32 v{e+1}, v{e}, v{e}")
            A(f"v_mov_b32 v{e+3}, {f32(-2.0 * k0 * math.log2(math.e))}")
            A(f"v_mul_f32 v{e+1}, {f32(0.044715)}, v{e+1}")
            A(f"v_add_f32 v{e+1}, 1.0, v{e+1}")
            A(f"v_mul_f32 v{e+1}, v{e+1}, v{e}")
            A(f"v_mul_f32 v{e+1}, v{e+1}, v{e+3}")
            A(f"v_exp_f32 v{e+1}, v{e+1}")
            self.nop(1)
            A(f"v_add_f32 v{e+1}, 1.0, v{e+1}")
            A(f"v_rcp_f32 v{e+1}, v{e+1}")
            self.nop(1)
            A(f"v_mul_f32 v{e}, v{e}, v{e+1}")
            A(f"v_cvt_pk_bf16_f32 v{e}, v{e}, v{e}")
            A(f"v_and_b32 v{e}, 0xffff0000, v{e}")
            A(f"v_mul_f32 v{e}, v{e}, v{e+2}")
            A(f"v_cvt_pk_bf16_f32 v{e}, v{e}, v{e}")
            A(f"v_and_b32 v{t+1}, 7, v{vL}"); A(f"v_lshrrev_b32 v{t+2}, 5, v{vL}")
            A(f"v_lshl_add_u32 v{t+1}, v{t+2}, 3, v{t+1}")
            A(f"v_lshlrev_b32 v{t+1}, 1, v{t+1}")
            A(f"ds_write_b16 v{t+1}, v{e} offset:{L_HS}")
            A(f"v_lshlrev_b32 v{t+1}, 3, v{vG}")
            A(f"v_mov_b32 v{t+3}, 0")
            A("s_waitcnt lgkmcnt(0)")
            A(f"ds_read_b64 {vr(e,2)}, v{t+1} offset:{L_HS}")
            A(f"ds_read_b32 v{e+2}, v{t+3} offset:{L_GS+4}")
            A(f"v_lshrrev_b32 v{t}, 2, v{vI}"); A(f"v_and_b32 v{t+1}, 3, v{vI}")
            A(f"v_lshlrev_b32 v{t+1}, 3, v{t+1}")
            A(f"v_lshl_add_u32 v{t+1}, v{t}, 7, v{t+1}")
            A(f"v_lshl_add_u32 v{t+1}, v{vG}, 9, v{t+1}")
            A(f"v_lshlrev_b32 v{t+2}, 2, v{vL}")
            ms = ["", "s[52:53]", "s[54:55]", "s[68:69]"]
            for k in range(1, 4): A(f"v_cmp_eq_u32 {ms[k]}, {k}, v{vG}")
            wfs = [vDF, vK + 32]
            def rd(w):
                for tau in range(4):
                    A(f"ds_read_b64_tr_b16 {vr(wfs[w&1]+2*tau,2)}, v{t+1} offset:{L_WD + w*2048 + tau*32}")
            rd(0)
            for w in range(8):
                if w < 7: rd(w + 1)
                self.lgkm(4 if w == 0 else 5 if w < 7 else 0)
                for tau in range(4):
                    A(f"v_mfma_f32_16x16x16_bf16 {vr(vFD+4*tau,4)}, {vr(e,2)}, {vr(wfs[w&1]+2*tau,2)}, 0")
                self.nop(6)
                A(f"v_cndmask_b32 v{t+4}, v{vFD}, v{vFD+4}, {ms[1]}")
                self.nop(1)
                A(f"v_cndmask_b32 v{t+4}, v{t+4}, v{vFD+8}, {ms[2]}")
                self.nop(1)
                A(f"v_cndmask_b32 v{t+4}, v{t+4}, v{vFD+12}, {ms[3]}")
                A(f"v_mul_f32 v{t+4}, v{t+4}, v{e+2}")
                A(f"ds_write_b32 v{t+2}, v{t+4} offset:{L_YF + w*256}")
        self.only(SVC, fn)

    def step_qred(self):
        A = self.A
        t = vTM
        A(f"v_and_b32 v{t}, 8, v{vL}")
        A(f"v_lshlrev_b32 v{t}, 3, v{t}")
        A(f"v_lshl_add_u32 v{t}, v{vG}, 4, v{t}")
        A("s_waitcnt lgkmcnt(0)")
        A("s_barrier")
        for T in range(2): A(f"ds_read_b128 {vr(vQF+4*T,4)}, v{t} offset:{L_QS+128*T}")
        A("s_waitcnt lgkmcnt(0)")
    def qk_combine(self, G):
        A = self.A
        a = vSP + 4 * G; b = vQF + 8 + 4 * (G & 1)
        for r in range(4): A(f"v_permlane32_swap_b32 v{a+r}, v{b+r}")
        for r in range(4): A(f"v_add_f32_dpp v{a+r}, v{b+r}, v{a+r} row_ror:8 row_mask:0xf bank_mask:0xf")
    def step_qk(self, G):
        A = self.A
        a = vSP + 4 * G; b = vQF + 8 + 4 * (G & 1); k = vK + 16 * G
        A(f"v_mfma_f32_16x16x32_bf16 {vr(a,4)}, {vr(k,4)}, {vr(vQF,4)}, 0")
        A(f"v_mfma_f32_16x16x32_bf16 {vr(b,4)}, {vr(k+8,4)}, {vr(vQF,4)}, 0")
        A(f"v_mfma_f32_16x16x32_bf16 {vr(a,4)}, {vr(k+4,4)}, {vr(vQF+4,4)}, {vr(a,4)}")
        A(f"v_mfma_f32_16x16x32_bf16 {vr(b,4)}, {vr(k+12,4)}, {vr(vQF+4,4)}, {vr(b,4)}")
        if G > 0:
            self.nop(4)
            self.qk_combine(G - 1)
    def step_softmax(self):
        A = self.A
        t = vTM; m = vAC2 + 2; l = vT0
        A(f"v_max3_f32 v{m}, v{vSP}, v{vSP+1}, v{vSP+2}")
        for k in range(3, 27, 2): A(f"v_max3_f32 v{m}, v{m}, v{vSP+k}, v{vSP+k+1}")
        self.qk_combine(7)
        A(f"v_max3_f32 v{m}, v{m}, v{vSP+27}, v{vSP+28}")
        A(f"v_max3_f32 v{m}, v{m}, v{vSP+29}, v{vSP+30}")
        A(f"v_max_f32 v{m}, v{m}, v{vSP+31}")
        self.swap_reduce("v_max_f32", m, t, 16)
        self.swap_reduce("v_max_f32", m, t, 32)
        A(f"s_lshl_b32 {sT0}, {sW}, 2")
        A(f"v_mov_b32 v{t+4}, {sT0}")
        A(f"v_mov_b32 v{t+5}, 0")
        A("s_mov_b64 exec, 1")
        A(f"ds_write_b32 v{t+4}, v{m} offset:{L_MX}")
        A("s_mov_b64 exec, -1")
        A("s_waitcnt lgkmcnt(0)")
        A("s_barrier")
        A(f"ds_read_b128 {vr(vBF,4)}, v{t+5} offset:{L_MX}")
        A(f"ds_read_b128 {vr(vBF+4,4)}, v{t+5} offset:{L_MX+16}")
        A("s_waitcnt lgkmcnt(0)")
        A(f"v_max3_f32 v{m}, v{vBF}, v{vBF+1}, v{vBF+2}")
        A(f"v_max3_f32 v{m}, v{m}, v{vBF+3}, v{vBF+4}")
        A(f"v_max3_f32 v{m}, v{m}, v{vBF+5}, v{vBF+6}")
        A(f"v_max_f32 v{m}, v{m}, v{vBF+7}")
        A(f"v_mul_f32 v{m}, {sC}, v{m}")
        for k in range(32): A(f"v_fma_f32 v{vSP+k}, v{vSP+k}, {sC}, -v{m}")
        for k in range(32): A(f"v_exp_f32 v{vSP+k}, v{vSP+k}")
        A(f"v_add_f32 v{l}, v{vSP}, v{vSP+1}"); A(f"v_add_f32 v{t}, v{vSP+2}, v{vSP+3}")
        for k in range(4, 32, 2):
            A(f"v_add_f32 v{l}, v{l}, v{vSP+k}"); A(f"v_add_f32 v{t}, v{t}, v{vSP+k+1}")
        A(f"v_add_f32 v{l}, v{l}, v{t}")
        self.swap_reduce("v_add_f32", l, t, 16)
        self.swap_reduce("v_add_f32", l, t, 32)
        A("s_mov_b64 exec, 1")
        A(f"ds_write_b32 v{t+4}, v{l} offset:{L_LS}")
        A("s_mov_b64 exec, -1")
        for k in range(32): A(f"v_cvt_pk_bf16_f32 v{vSP+k}, v{vSP+k}, v{vSP+k}")
        A("s_waitcnt lgkmcnt(0)")
        A("s_barrier")
        def fn():
            self.C("publish (max, sum) of this quarter")
            A(f"ds_read_b128 {vr(vBF,4)}, v{t+5} offset:{L_LS}")
            A(f"ds_read_b128 {vr(vBF+4,4)}, v{t+5} offset:{L_LS+16}")
            A(f"s_lshl_b32 {sT0}, s2, 7"); A(f"s_add_u32 {sT0}, {sT0}, {WS_MB + 8}")
            A("s_waitcnt lgkmcnt(0)")
            for k in range(1, 8): A(f"v_add_f32 v{vBF}, v{vBF}, v{vBF+k}")
            A(f"v_min_u32 v{t+1}, -2, v{vBF}")
            A(f"v_mov_b32 v{t}, v{m}")
            A("s_mov_b64 exec, 1")
            A(f"buffer_store_dwordx2 {vr(t,2)}, v{t+5}, {srd(R_WS)}, {sT0} offen sc1")
            A("s_mov_b64 exec, -1")
        self.only(GSV, fn)
    def step_pre7(self):
        for r in range(1, 4):
            for u in range(4): self.A(f"v_and_b32 v{vK+64+4*r+u}, v{vSP+28+r}, v{vM+u}")
    def step_pv7(self, r):
        b = vBF if r == 0 else vK + 64 + 4 * r
        if r == 0: self.nop(1)
        self.A(f"v_mfma_f32_16x16x32_bf16 {vr(vACC,4)}, {vr(vK+96+4*r,4)}, {vr(b,4)}, {vr(vACC,4)}")
    def step_pv(self, G):
        A = self.A
        base = vX if G == 0 else vK + 16 * (G - 1)
        def build(k, bset):
            for u in range(4): A(f"v_and_b32 v{vBF+4*bset+u}, v{vSP+k}, v{vM+u}")
        for r in range(4):
            k = 4 * G + r
            if k == 0: build(0, 0)
            if k + 1 < 32: build(k + 1, (k + 1) & 1)
            else: self.nop(2)
            c = "0" if k == 0 else vr(vACC, 4)
            A(f"v_mfma_f32_16x16x32_bf16 {vr(vACC,4)}, {vr(base+4*r,4)}, {vr(vBF+4*(k&1),4)}, {c}")

    WF = [vQF, vK + 16 * 7, vX, vK]
    def step_wof(self):
        A = self.A
        t = vTM
        A(f"v_lshrrev_b32 v{t}, 2, v{vI}"); A(f"v_and_b32 v{t+1}, 3, v{vI}")
        A(f"v_lshlrev_b32 v{t+1}, 3, v{t+1}")
        A(f"v_lshl_add_u32 v{t+1}, v{t}, 7, v{t+1}")
        A(f"v_lshl_add_u32 v{t+2}, v{vG}, 10, v{t+1}")
        A(f"v_add_u32 v{vOQ}, {sWOL}, v{t+2}")
        for tau in range(4):
            for T in range(4):
                for hi in range(2):
                    A(f"ds_read_b64_tr_b16 {vr(self.WF[tau]+4*T+2*hi,2)}, v{vOQ} offset:{T*4096 + hi*512 + tau*32}")
            if tau < 3: A("s_waitcnt lgkmcnt(4)")
        self.C("addresses and constants of the tail")
        A(f"v_and_b32 v{t}, 7, v{vI}")
        A(f"s_mul_i32 {sT1}, {sW}, 144"); A(f"s_add_u32 {sT1}, {sT1}, {L_OB}")
        A(f"v_lshl_add_u32 v{vOK}, v{vG}, 5, {sT1}")
        A(f"v_lshl_add_u32 v{vOK}, v{t}, 2, v{vOK}")
        A(f"v_mul_u32_u24 v{vOW}, 144, v{vI}")
        A(f"v_lshl_add_u32 v{vOW}, v{vG}, 4, v{vOW}")
        A(f"v_mov_b32 v{t+1}, 0x44444444"); A(f"v_mov_b32 v{t+2}, 0xeeeeeeee")
        A(f"v_cmp_lt_u32 vcc, 7, v{vI}")
        for k in range(16): A(f"v_mov_b32 v{vDF+k}, 0")
        A(f"v_cndmask_b32 v{vAC2+1}, v{t+1}, v{t+2}, vcc")
        A(f"v_mul_u32_u24 v{t+1}, {2*self.astride}, v{vG}")
        A(f"v_lshl_add_u32 v{vOF}, v{vI}, 2, v{t+1}")
        A(f"v_add_u32 v{t+2}, 8, v{vI}"); A(f"v_and_b32 v{t+2}, 15, v{t+2}")
        A(f"v_lshl_add_u32 v{vOD}, v{t+2}, 2, v{t+1}")
        A(f"s_mul_i32 {sTF}, {sW}, {8*self.astride}")
        A(f"s_mul_i32 {sT1}, {sB}, {64*self.astride}"); A(f"s_add_u32 {sTF}, {sTF}, {sT1}")
        A(f"s_lshl_b32 {sT1}, {sB}, 10"); A(f"s_lshl_b32 {sT0}, {sW}, 7"); A(f"s_add_u32 {sT1}, {sT1}, {sT0}")
        A(f"v_lshl_add_u32 v{vT1}, v{vL}, 1, {sT1}")
        A(f"v_cmp_eq_u32 s[52:53], 8, v{vI}"); A(f"v_cmp_eq_u32 s[54:55], 0, v{vI}"); A(f"v_cmp_gt_u32 s[68:69], 8, v{vI}")
        A(f"s_mov_b32 {sX0}, {f32(127.0)}")
        A(f"s_lshl_b32 {sT1}, {sW}, 8")
        A(f"v_lshl_add_u32 v{vAC2}, v{vL}, 2, {sT1}")
        A("s_waitcnt lgkmcnt(0)")
        A(f"v_mov_b32 v{vOQ}, 0")

    def st_load(self):
        A = self.A
        A(f"s_lshl_b32 {sT0}, {sB}, 7"); A(f"s_add_u32 {sT0}, {sT0}, {sFT}"); A(f"s_lshl_b32 {sT0}, {sT0}, 7")
        A(f"s_add_u32 {sT0}, {sT0}, {WS_MB + 8}")
        A(f"v_mov_b32 v{vT0}, 0")
        for k in range(4):
            if k: A(f"s_add_u32 {sT0}, {sT0}, 4096")
            A(f"buffer_load_dwordx2 {vr(vXR+2*k,2)}, v{vT0}, {srd(R_WS)}, {sT0} offen sc1")
    def step_scale(self):
        A = self.A
        t = vTM; s = vXR
        def fn():
            self.C("g * exp2(m_own - M) / L from the statistics of the four quarters")
            ok = self.label("stok"); sp = self.label("stspin")
            A(f"v_mov_b32 v{t+3}, 0")
            A(f"ds_read_b32 v{t+2}, v{t+3} offset:{L_GS}")
            A(f"s_mov_b32 {sCNT}, 0")
            self.L(sp)
            A(f"v_max3_u32 v{t}, v{s+1}, v{s+3}, v{s+5}")
            A(f"v_max_u32 v{t}, v{t}, v{s+7}")
            A(f"v_cmp_eq_u32 vcc, -1, v{t}")
            A(f"s_cbranch_vccz {ok}")
            self.st_load()
            A(f"s_add_u32 {sCNT}, {sCNT}, 1")
            A(f"s_cmp_lt_u32 {sCNT}, {SPIN}")
            A("s_waitcnt vmcnt(0)")
            A(f"s_cbranch_scc1 {sp}")
            self.L(ok)
            A(f"v_max3_f32 v{t}, v{s}, v{s+2}, v{s+4}")
            A(f"v_max_f32 v{t}, v{t}, v{s+6}")
            for k in range(4): A(f"v_sub_f32 v{s+2*k}, v{s+2*k}, v{t}")
            A(f"v_sub_f32 v{t+1}, v{vAC2+2}, v{t}")
            for k in range(4): A(f"v_exp_f32 v{s+2*k}, v{s+2*k}")
            A(f"v_exp_f32 v{t+1}, v{t+1}")
            A(f"v_mul_f32 v{t}, v{s}, v{s+1}")
            for k in range(1, 4): A(f"v_fmac_f32 v{t}, v{s+2*k}, v{s+2*k+1}")
            A(f"v_rcp_f32 v{t}, v{t}")
            A("s_waitcnt lgkmcnt(0)")
            A(f"v_mul_f32 v{t+1}, v{t+2}, v{t+1}")
            A(f"v_mul_f32 v{t}, v{t}, v{t+1}")
            A(f"ds_write_b32 v{t+3}, v{t} offset:{L_FS}")
        self.only(SVC, fn)

    def step_tail(self):
        A = self.A
        t = vTM; af = vSP
        self.lanes(0x00ff00ff, 0x00ff00ff)
        self.nop(6)
        A(f"v_cvt_pk_bf16_f32 v{t}, v{vACC}, v{vACC+1}")
        A(f"v_cvt_pk_bf16_f32 v{t+1}, v{vACC+2}, v{vACC+3}")
        A(f"ds_write_b32 v{vOK}, v{t}")
        A(f"ds_write_b32 v{vOK}, v{t+1} offset:{8*144}")
        A("s_mov_b64 exec, -1")
        A("s_waitcnt lgkmcnt(0)")
        A("s_barrier")
        self.C("16 rows = 8 wave partials x 2 halves of every group of four k : dense data in 2:4 form")
        for T in range(2): A(f"ds_read_b128 {vr(af+4*T,4)}, v{vOW} offset:{L_OB + 64*T}")
        A(f"ds_read_b32 v{t+4}, v{vOQ} offset:{L_FS}")
        A(f"ds_read_b32 v{vAC2+3}, v{vAC2} offset:{L_YF}")
        for T in range(2):
            self.lgkm(3 - T)
            for tau in range(4):
                A(f"v_smfmac_f32_16x16x64_bf16 {vr(vDF+4*tau,4)}, {vr(af+4*T,4)}, {vr(self.WF[tau]+8*T,8)}, v{vAC2+1}")
        A("s_waitcnt lgkmcnt(0)")
        self.nop(4)
        for tau in range(4):
            d = vDF + 4 * tau
            A(f"v_add_f32 v{d}, v{d}, v{d+1}"); A(f"v_add_f32 v{d+2}, v{d+2}, v{d+3}")
            A(f"v_add_f32 v{d}, v{d}, v{d+2}")
        self.nop(1)
        A(f"v_permlane16_swap_b32 v{vDF}, v{vDF+4}")
        A(f"v_permlane16_swap_b32 v{vDF+8}, v{vDF+12}")
        A(f"v_add_f32 v{vDF}, v{vDF}, v{vDF+4}")
        A(f"v_add_f32 v{vDF+8}, v{vDF+8}, v{vDF+12}")
        self.nop(2)
        A(f"v_permlane32_swap_b32 v{vDF}, v{vDF+8}")
        A(f"v_add_f32 v{t}, v{vDF}, v{vDF+8}")
        A(f"v_fma_f32 v{t}, v{t}, v{t+4}, v{vAC2+3}")
        self.C("8 sums and their arrival count share one 64-B request")
        A(f"v_cndmask_b32 v{t+1}, v{t}, 1.0, s[52:53]")
        A(f"v_cndmask_b32 v{t+2}, v{t}, 1.0, s[54:55]")
        self.lanes(0x01ff01ff, 0x01ff01ff)
        A(f"buffer_atomic_add_f32 v{t+1}, v{vOF}, {srd(R_WS)}, {sTF} offen sc0")
        self.lanes(0xff01ff01, 0xff01ff01)
        A(f"buffer_atomic_add_f32 v{t+2}, v{vOD}, {srd(R_WS)}, {sTF} offen offset:{self.astride} sc0")
        A("s_mov_b64 exec, -1")

    def finish(self):
        A = self.A
        t = vTM
        A("s_waitcnt vmcnt(0)")
        A(f"v_mov_b32_dpp v{t+3}, v{t+1} row_newbcast:8 row_mask:0xf bank_mask:0xf")
        A(f"v_mov_b32_dpp v{t+4}, v{t+2} row_newbcast:0 row_mask:0xf bank_mask:0xf")
        A(f"v_cndmask_b32 v{t+1}, v{t+2}, v{t+1}, s[68:69]")
        A(f"v_cndmask_b32 v{t+3}, v{t+4}, v{t+3}, s[68:69]")
        A(f"v_add_f32 v{t}, v{t}, v{t+1}")
        A(f"v_cmp_eq_f32 vcc, {sX0}, v{t+3}")
        A(f"v_cvt_pk_bf16_f32 v{t}, v{t}, v{t}")
        sk = self.label("fin")
        A("s_and_b64 exec, exec, vcc")
        A(f"s_cbranch_execz {sk}")
        A(f"global_store_short v{vT1}, v{t}, s[{P_OUT}:{P_OUT+1}]")
        self.L(sk)
        A("s_mov_b64 exec, -1")

    def steps(self, idx):
        S = []
        def add(name, needs, fn): S.append(dict(name=name, needs=needs, fn=fn))
        add("gate0", [], self.step_gate0)
        pts = list(self.hs_pts)
        evs = [(idx[p], f"hs{k}", [p], (lambda k=k: self.step_hs(k, k == len(pts) - 1))) for k, p in enumerate(pts)]
        evs.append((idx["K1_0"] + 0.5, "gate", ["@gate0"], self.step_gate))
        for _, n, nd, fn in sorted(evs, key=lambda e: e[0]): add(n, nd, fn)
        add("join", [f"@hs{len(pts)-1}", self.q_at], self.step_qsvc)
        add("qred", [], self.step_qred)
        for G in range(8): add(f"qk{G}", [f"K{G}_3"], lambda G=G: self.step_qk(G))
        add("fl", [], lambda: self.only(SVC, self.fl_load))
        add("softmax", ["wd1"], self.step_softmax)
        placed = False
        for G in range(8):
            if G == 7:
                add("pre7", [], self.step_pre7)
                add("scale", ["@st0"], self.step_scale)
            if not placed and G >= 5 and idx[f"V{G}_3"] > idx["wo15"]:
                add("wof", ["wo15"], self.step_wof); placed = True
            if G == 7:
                for r in range(4): add("pv7" if r == 3 else f"pv7_{r}", [f"V7_{r}"], lambda r=r: self.step_pv7(r))
            else:
                add(f"pv{G}", [f"V{G}_3"], lambda G=G: self.step_pv(G))
            if f"pv{G}" == self.fga_pos: add("fga", ["@fl"], self.step_fga)
            if f"pv{G}" == self.st_pos: add("st0", [], lambda: self.only(SVC, self.st_load))
            if f"pv{G}" == self.ffn_pos: add("ffn2", ["@fga"], self.step_ffn2)
        nm = [s["name"] for s in S]
        assert placed and nm.index("pv3") < nm.index("ffn2") < nm.index("wof")
        add("tail", [], self.step_tail)
        return S

    def schedule(self):
        items = self.items()
        idx = {it["name"]: n for n, it in enumerate(items)}
        issued = 4 + self.npre
        assert all(it["name"][0] == "K" for it in items[:issued])
        comp = -1; done = set(); pos = -1; after = {}; W = self.W
        for st in self.steps(idx):
            need = max([after[n[1:]] if n[0] == "@" else idx[n] for n in st["needs"]], default=-1)
            pos = max(pos, need)
            def issue(w):
                nonlocal issued, comp
                while issued < len(items):
                    it = items[issued]
                    if issued > pos + w - 1: break
                    if it["dep"] and it["dep"] not in done:
                        assert issued > need, (st["name"], it["name"])
                        break
                    if issued - (comp + 1) >= w:
                        self.A(f"s_waitcnt vmcnt({w-1})"); comp = issued - w
                    it["fn"](); issued += 1
            if st["name"] != "qred": issue(W)
            if comp < need:
                self.A(f"s_waitcnt vmcnt({issued-1-need})"); comp = need
            if st["name"] == "join":
                issue(W + self.boost_q); W = self.W2
            if st["name"] in self.boosts: issue(W + self.boosts[st["name"]])
            self.o.append(f"    ; ---- {st['name']}")
            st["fn"](); done.add(st["name"])
            after[st["name"]] = issued
            if st["name"] in ("qred", "pv7", "tail"): self.stamp({"qred": 1, "pv7": 2, "tail": 3}[st["name"]])
        assert issued == len(items)

    def build(self):
        A = self.A
        K1 = NAME + "_kernel"
        o = self.o
        o.append(HEADER.rstrip("\n"))
        o.append(f"; @launch grid=(256,1,1) block=(512,1,1) lds={LDS_BYTES}")
        o += """; out = g * MHA_cached(x) + (1-g) * GEGLU_FFN(x).  Emitted by my own Python generator (straight-line code, step markers below).
; 256 workgroups (one per CU) x 8 waves; workgroup = (batch b, head h, quarter s of the keys), wave = 8 groups of 16 keys.
;  - K / V stream straight into registers (nt); QK^T, PV and all GEMVs run on MFMA (row-major weights through a
;    one-hot 'selection' B operand, transposed operands through ds_read_b64_tr_b16).
;  - q = x@wq and the gate/up pre-activations: every workgroup computes one 64-row tile for both batches and publishes the
;    partial sums in d_ws.  Slots are set to -1 at the start of the launch (arrival counters in d_debug, 'go' word per
;    workgroup) and every word is validated by the reader, so nothing of an earlier launch is ever accepted.
;  - softmax: true max per quarter, (max, sum) exchanged between the four quarters, exact rescale at the end.
;  - each workgroup multiplies its partial output by wo[h] (LDS image), adds its slice of h@w_down and adds the row to
;    f32 accumulators (zeroed in this launch) with returning atomics; a 64-B request carries 8 sums and an arrival count,
;    so the request that arrives last holds the totals and writes them.
;  - every wait loop is bounded.""".split("\n")
        o += ['.amdgcn_target "amdgcn-amd-amdhsa--gfx950"', ".text", f".globl {K1}", ".p2align 8",
              f".type {K1},@function", f"{K1}:"]
        self.phase0()
        self.schedule()
        self.finish()
        if self.stamps: A("s_barrier")
        if self.stamps:
            self.L("L_stamp")
            A(f"s_cmp_lg_u32 {sW}, 0"); A("s_cbranch_scc1 L_end")
            self.stamp(4)
            A("s_mov_b64 exec, 1")
            A("s_waitcnt lgkmcnt(0)")
            A(f"s_add_u32 s40, s40, {STAMP_OFF}"); A("s_addc_u32 s41, s41, 0")
            A("s_lshl_b32 s8, s2, 6"); A("v_mov_b32 v1, s8")
            for k in range(4):
                A(f"v_mov_b32 v{8+2*k}, s{sST+2*k}"); A(f"v_mov_b32 v{9+2*k}, s{sST+2*k+1}")
            A(f"v_mov_b32 v16, {sXCC}"); A("v_mov_b32 v17, 0")
            A(f"v_mov_b32 v18, s{sST+8}"); A(f"v_mov_b32 v19, s{sST+9}")
            A("global_store_dwordx4 v1, v[8:11], s[40:41]")
            A("global_store_dwordx4 v1, v[12:15], s[40:41] offset:16")
            A("global_store_dwordx4 v1, v[16:19], s[40:41] offset:32")
        self.L("L_end"); A("s_endpgm")
        o += ['.section .rodata,"a"', ".p2align 6", f".amdhsa_kernel {K1}", "  .amdhsa_next_free_vgpr 256",
              "  .amdhsa_next_free_sgpr 102", "  .amdhsa_accum_offset 256", "  .amdhsa_group_segment_fixed_size 0",
              "  .amdhsa_kernarg_size 104", "  .amdhsa_user_sgpr_count 2", "  .amdhsa_user_sgpr_kernarg_segment_ptr 1",
              "  .amdhsa_system_sgpr_workgroup_id_x 1", ".end_amdhsa_kernel"]
        return "\n".join(o) + "\n"

if __name__ == "__main__":
    import argparse, json
    ap = argparse.ArgumentParser()
    ap.add_argument("out"); ap.add_argument("--opt", default="{}")
    a = ap.parse_args()
    open(a.out, "w").write(Gen(**json.loads(a.opt)).build())
```

```python
import sys, struct, math

NAME = "gated_mix__mha_block_cached__geglu_ffn__decode"
HEADER = open("cdna_kernels/" + NAME + ".s.ref").read().split("; Override launch")[0]

def f32(x):
    return "0x%08x" % struct.unpack("<I", struct.pack("<f", x))[0]

L_QS = 0
L_HS = 256
L_GS = 320
L_FS = 336
L_MX = 384
L_LS = 448
L_OB = 512
L_YF = 3072
L_WD = 5120
L_WO = L_WD + 16384
LDS_BYTES = L_WO + 131072

WS_A = 0
WS_MB = 0x11000
WS_Q = 0x19000
WS_F = WS_Q + 0x40000
WS_BYTES = WS_F + 176 * 1024
STAMP_OFF = 128 << 20
SPIN = "0x4000"

sW = "s3"
P_X, P_K, P_V, P_WQ, P_WO, P_WG, P_WU = 16, 18, 20, 22, 24, 28, 30
P_WD, P_GW, P_OUT, P_DBG, P_WS = 32, 34, 36, 38, 40
R_K, R_V, R_WQ, R_WO, R_X, R_GW, R_FT, R_WD, R_WS = 44, 48, 52, 56, 60, 64, 68, 76, 80
sH, sB, sS, sSL, sT0, sT1, sT2 = "s4", "s5", "s6", "s7", "s8", "s9", "s10"
sTK, sTV, sTQ, sTF, sTD = "s11", "s12", "s13", "s14", "s15"
sX0, sX1 = "s42", "s43"
sARR, sMB = "s42", "s43"
sJ, sFT, sROT, sTI = "s72", "s73", "s74", "s75"
sWOL, sWDL = "s84", "s85"
sDUP0, sDUP1 = "s86", "s87"
sGO, sDONE = "s86", "s87"
sC, sCNT, sXCC, sBH = "s88", "s89", "s90", "s91"
sST = 92
def srd(r): return f"s[{r}:{r+3}]"

vL, vI, vG = 1, 2, 3
vOK, vOV, vOQ, vOW, vOF, vOD, vT0, vT1 = 4, 5, 6, 7, 8, 9, 10, 11
vM = 12
vXR = 16
vBF = 24
vACC = 32
vAC2 = 36
vQF = 40
vSP = 56
vDF = 88
vTM = 104
vFL = 111
vK = 112
vX = 240
vFG = vDF + 8
vFD = vK + 16
def vr(a, n): return f"v[{a}:{a+n-1}]"

HS, PUB, GSV, SVC = 0, 1, 2, 3

class Gen:
    def __init__(self, W=10, W2=12, boost_q=4, boosts=None, npre=4, q_at="K5_3", hs_pts=("K0_1", "K2_3", "K3_1", "K3_3"),
                 dma=(0, 0, 1, 1, 2, 1, 2, 1, 2, 1, 2, 1, 2, 2, 0, 0), xmap="0x54ff3210", nx=6,
                 fga_pos="pv1", st_pos="pv3", ffn_pos="pv3", stamps=False, gperm=(0,1,2,3,4,5,6,7), rotmul=1, astride=256, early=0, x_wo=0, probe=None, wmap="0xf5f43210"):
        self.__dict__.update(locals())
        self.boosts = boosts if boosts is not None else {"softmax": 6, "wof": 4}
        assert sum(dma) == 18
        self.o = []; self.lab = 0
        if probe: self.stamps = True
    def A(self, s): self.o.append("    " + s)
    def C(self, s): self.o.append("    ; " + s)
    def L(self, s): self.o.append(s + ":")
    def nop(self, n):
        while n > 0:
            k = min(n, 16); self.A(f"s_nop {k-1}"); n -= k
    def label(self, p):
        self.lab += 1; return f"L_{p}_{self.lab}"
    def stamp(self, k):
        if self.stamps: self.A(f"s_memrealtime s[{sST+2*k}:{sST+2*k+1}]")
    def lgkm(self, n): self.A(f"s_waitcnt lgkmcnt({0 if self.stamps else n})")
    def only(self, w, fn):
        sk = self.label("skip")
        self.A(f"s_cmp_lg_u32 {sW}, {w}"); self.A(f"s_cbranch_scc1 {sk}")
        fn()
        self.L(sk)
    def lanes(self, lo, hi):
        self.A(f"s_mov_b32 exec_lo, {lo:#x}"); self.A(f"s_mov_b32 exec_hi, {hi:#x}")
    def swap_reduce(self, op, v, tmp, which):
        A = self.A
        A(f"v_mov_b32 v{tmp}, v{v}")
        self.nop(2)
        A(f"v_permlane{which}_swap_b32 v{v}, v{tmp}")
        self.nop(1)
        A(f"{op} v{v}, v{v}, v{tmp}")
    def dpp_add(self, v, ctl):
        self.nop(2)
        self.A(f"v_add_f32_dpp v{v}, v{v}, v{v} {ctl} row_mask:0xf bank_mask:0xf")
    def mk(self, r, p, off, size):
        A = self.A
        if off is None:
            A(f"s_mov_b32 s{r}, s{p}"); A(f"s_mov_b32 s{r+1}, s{p+1}")
        else:
            A(f"s_add_u32 s{r}, s{p}, {off}"); A(f"s_addc_u32 s{r+1}, s{p+1}, 0")
        if size is not None: A(f"s_mov_b32 s{r+2}, {size}")
        A(f"s_mov_b32 s{r+3}, 0x20000")

    def kv_load(self, kind, G, t):
        A = self.A
        st = sTK if kind == "K" else sTV
        if t == 0: A(f"s_xor_b32 {st}, {sROT}, {self.gperm[G] << 15}")
        if kind == "K":
            A(f"buffer_load_dwordx4 {vr(vK+16*G+4*t,4)}, v{vOK}, {srd(R_K)}, {st} offen offset:{(t>>1)*2048 + (t&1)*128} nt")
        else:
            dst = vX if G == 0 else vK + 16 * (G - 1)
            A(f"buffer_load_dwordx4 {vr(dst+4*t,4)}, v{vOV}, {srd(R_V)}, {st} offen offset:{256*t} nt")

    def bsel(self, src, half, bset):
        A = self.A
        t = vTM + 4 + bset
        A(f"v_perm_b32 v{t}, v{src}, v{src}, {sDUP1 if half else sDUP0}")
        for u in range(4): A(f"v_and_b32 v{vBF+4*bset+u}, v{t}, v{vM+u}")

    def phase0(self):
        A = self.A
        A("s_cmp_ge_u32 s2, 256")
        A("s_cbranch_scc1 L_end")
        A("s_load_dwordx16 s[16:31], s[0:1], 0")
        A("s_load_dwordx8 s[32:39], s[0:1], 64")
        A("s_load_dwordx2 s[40:41], s[0:1], 96")
        self.stamp(0)
        A("v_lshrrev_b32 v10, 6, v0")
        A(f"v_and_b32 v{vI}, 15, v0")
        A(f"v_readfirstlane_b32 {sW}, v10")
        A(f"v_bfe_u32 v{vG}, v0, 4, 2")
        self.C("wg = (j*4 + hq)*8 + x ; h = 4x + hq ; j = 4b + s   (x = XCD under round-robin placement: speed only)")
        A(f"s_and_b32 {sT0}, s2, 7")
        A(f"s_lshr_b32 {sT1}, s2, 3")
        A(f"s_and_b32 {sT2}, {sT1}, 3")
        A(f"s_lshl_b32 {sH}, {sT0}, 2")
        A(f"s_add_u32 {sH}, {sH}, {sT2}")
        A(f"s_lshr_b32 {sJ}, {sT1}, 2")
        A(f"s_and_b32 {sFT}, s2, 31")
        self.C("FFN work goes to the workgroups whose x has a rank (nibble table, 15 = none)")
        A(f"s_lshl_b32 {sCNT}, {sT0}, 2"); A(f"s_lshr_b32 {sCNT}, {self.xmap}, {sCNT}"); A(f"s_and_b32 {sCNT}, {sCNT}, 15")
        A(f"s_mul_i32 {sTI}, {sT2}, {self.nx}"); A(f"s_add_u32 {sTI}, {sTI}, {sCNT}")
        A(f"s_cmp_eq_u32 {sCNT}, 15"); A(f"s_cselect_b32 {sTI}, 31, {sTI}")
        A(f"s_lshl_b32 {sTK}, {sJ}, 3"); A(f"s_add_u32 {sTK}, {sTK}, {sW}")
        A(f"s_lshl_b32 {sTV}, {sTK}, 4")
        A(f"s_lshl_b32 {sX0}, {sTK}, 16"); A(f"s_lshl_b32 {sTQ}, {sH}, 8"); A(f"s_add_u32 {sX0}, {sX0}, {sTQ}")
        A(f"s_cmp_ge_u32 {sTI}, 11")
        A(f"s_cselect_b32 {sX1}, 11, 0")
        A(f"s_sub_u32 {sX1}, {sTI}, {sX1}")
        A(f"s_lshl_b32 {sX1}, {sX1}, 8")
        A(f"s_mul_i32 {sTK}, {sTK}, {8*2752}")
        A(f"s_add_u32 {sX1}, {sX1}, {sTK}")
        A(f"s_sub_u32 s{R_FT+2}, {512*2752}, {sX1}")
        A(f"s_cmp_lt_u32 {sTI}, 22")
        A(f"s_cselect_b32 s{R_FT+2}, s{R_FT+2}, 0")
        A(f"s_cselect_b32 {sX1}, {sX1}, 0")
        A(f"s_mov_b32 s{R_FT+3}, 0x20000")
        A(f"s_mov_b32 s{R_X+2}, 2048"); A(f"s_mov_b32 s{R_X+3}, 0x20000")
        A(f"s_mov_b32 s{R_WQ+2}, {7*8192+256}"); A(f"s_mov_b32 s{R_WQ+3}, 0x20000")
        A(f"s_movk_i32 {sTQ}, 8192")
        A(f"v_lshrrev_b32 v{vT0}, 3, v{vI}")
        A(f"v_lshlrev_b32 v{vT0}, 10, v{vT0}")
        A(f"v_lshl_add_u32 v{vT0}, v{vG}, 2, v{vT0}")
        A(f"v_lshlrev_b32 v{vT1}, 4, v{vI}")
        A(f"v_lshl_add_u32 v{vOQ}, v{vG}, 14, v{vT1}")
        A(f"v_mul_u32_u24 v{vOF}, {2*2752}, v{vG}")
        A(f"v_add_u32 v{vOF}, v{vOF}, v{vT1}")
        A(f"s_cmp_ge_u32 {sTI}, 11")
        A("s_waitcnt lgkmcnt(0)")
        self.C("projection tiles: rows 64j + 8w + 2g + t of wq (128 columns of head h) and of w_gate / w_up (one 128-column block)")
        A(f"s_cselect_b32 s{R_FT}, s{P_WU}, s{P_WG}"); A(f"s_cselect_b32 s{R_FT+1}, s{P_WU+1}, s{P_WG+1}")
        A(f"s_add_u32 s{R_WQ}, s{P_WQ}, {sX0}"); A(f"s_addc_u32 s{R_WQ+1}, s{P_WQ+1}, 0")
        A(f"buffer_load_dwordx4 {vr(vDF,4)}, v{vOQ}, {srd(R_WQ)}, 0 offen nt")
        A(f"buffer_load_dwordx4 {vr(vDF+4,4)}, v{vOQ}, {srd(R_WQ)}, {sTQ} offen nt")
        A(f"s_add_u32 s{R_FT}, s{R_FT}, {sX1}"); A(f"s_addc_u32 s{R_FT+1}, s{R_FT+1}, 0")
        A(f"buffer_load_dwordx4 {vr(vDF+8,4)}, v{vOF}, {srd(R_FT)}, 0 offen nt")
        A(f"buffer_load_dwordx4 {vr(vDF+12,4)}, v{vOF}, {srd(R_FT)}, 0 offen offset:2752 nt")
        A(f"s_mov_b32 s{R_X}, s{P_X}"); A(f"s_mov_b32 s{R_X+1}, s{P_X+1}")
        A(f"buffer_load_dword v{vXR}, v{vT0}, {srd(R_X)}, {sTV} offen")
        self.mk(R_WS, P_WS, None, WS_BYTES)
        def clear():
            self.C("invalidate the hand-off slots this workgroup is responsible for")
            c = vQF
            for k in range(4): A(f"v_mov_b32 v{c+k}, -1")
            A(f"v_and_b32 v{c+4}, 63, v0"); A(f"v_lshlrev_b32 v{c+4}, 4, v{c+4}")
            A(f"s_lshl_b32 {sTD}, {sH}, 3"); A(f"s_add_u32 {sTD}, {sTD}, {sJ}"); A(f"s_lshl_b32 {sTD}, {sTD}, 10")
            A(f"s_add_u32 {sTD}, {sTD}, {WS_Q}")
            A(f"buffer_store_dwordx4 {vr(c,4)}, v{c+4}, {srd(R_WS)}, {sTD} offen sc1")
            A(f"s_lshl_b32 {sTD}, {sTI}, 3"); A(f"s_add_u32 {sTD}, {sTD}, {sJ}"); A(f"s_lshl_b32 {sTD}, {sTD}, 10")
            A(f"s_add_u32 {sTD}, {sTD}, {WS_F}")
            A(f"buffer_store_dwordx4 {vr(c,4)}, v{c+4}, {srd(R_WS)}, {sTD} offen sc1")
            self.lanes(0xff, 0)
            A(f"s_lshl_b32 {sTD}, s2, 7"); A(f"s_add_u32 {sTD}, {sTD}, {WS_MB}")
            A(f"buffer_store_dwordx4 {vr(c,4)}, v{c+4}, {srd(R_WS)}, {sTD} offen sc1")
            for k in range(4): A(f"v_mov_b32 v{c+8+k}, 0")
            A(f"s_mul_i32 {sTD}, s2, {self.astride}")
            if self.astride == 64: self.lanes(0xf, 0)
            A(f"s_cmp_lt_u32 s2, 128"); A(f"s_cselect_b32 {sTD}, {sTD}, {4 << 20}")
            A(f"buffer_store_dwordx4 {vr(c+8,4)}, v{c+4}, {srd(R_WS)}, {sTD} offen sc1")
            A("s_mov_b64 exec, -1")
        self.only(HS, clear)
        self.C("everything else while those fly")
        A(f"v_and_b32 v{vL}, 63, v0")
        A(f"s_lshr_b32 {sB}, {sJ}, 2")
        A(f"s_and_b32 {sS}, {sJ}, 3")
        A(f"s_lshl_b32 {sBH}, {sB}, 5"); A(f"s_add_u32 {sBH}, {sBH}, {sH}")
        A(f"v_and_b32 v{vOK}, 7, v0")
        A(f"v_lshlrev_b32 v{vOK}, 8, v{vOK}")
        A(f"v_lshl_add_u32 v{vOK}, v{vG}, 4, v{vOK}")
        A(f"v_and_b32 v{vOV}, 8, v0")
        A(f"v_lshl_add_u32 v{vOK}, v{vOV}, 3, v{vOK}")
        A(f"v_lshl_add_u32 v{vOV}, v{vG}, 10, v{vT1}")
        A(f"s_lshl_b32 {sTK}, {sBH}, 20")
        A(f"s_lshl_b32 {sTV}, {sS}, 18"); A(f"s_add_u32 {sTK}, {sTK}, {sTV}")
        A(f"s_lshl_b32 {sTV}, {sW}, 12"); A(f"s_add_u32 {sTK}, {sTK}, {sTV}")
        self.mk(R_K, P_K, sTK, (7 << 15) + 4096)
        self.mk(R_V, P_V, sTK, (7 << 15) + 4096)
        if self.rotmul == 1: A(f"s_lshl_b32 {sROT}, {sJ}, 15")
        else:
            A(f"s_mul_i32 {sROT}, {sJ}, {self.rotmul}"); A(f"s_and_b32 {sROT}, {sROT}, 7"); A(f"s_lshl_b32 {sROT}, {sROT}, 15")
        if self.early:
            lk = self.label("early")
            A(f"s_cmp_eq_u32 {sW}, {HS}"); A(f"s_cbranch_scc1 {lk}")
            for n in range(self.early): self.kv_load("K", n // 4, n % 4)
            self.L(lk)
        self.mk(R_GW, P_GW, None, 1024)
        per = -(-86 // self.nx)
        if self.wmap:
            A(f"s_lshl_b32 {sCNT}, {sT0}, 2"); A(f"s_lshr_b32 {sCNT}, {self.wmap}, {sCNT}"); A(f"s_and_b32 {sCNT}, {sCNT}, 15")
        A(f"s_and_b32 {sT1}, {sT1}, 15")
        A(f"s_mul_i32 {sSL}, {sCNT}, {per}")
        A(f"s_add_u32 {sSL}, {sSL}, {sT1}")
        A(f"s_cmp_lt_u32 {sT1}, {per}")
        A(f"s_cselect_b32 {sSL}, {sSL}, 1000")
        A(f"s_cmp_lt_u32 {sSL}, 86")
        A(f"s_cselect_b32 s{R_WD+2}, {15*1024+128}, 0")
        A(f"s_cselect_b32 {sSL}, {sSL}, 0")
        A(f"s_lshl_b32 {sT0}, {sSL}, 14"); A(f"s_lshl_b32 {sT1}, {sW}, 7"); A(f"s_add_u32 {sT0}, {sT0}, {sT1}")
        self.mk(R_WD, P_WD, sT0, None)
        A(f"s_lshl_b32 {sT0}, {sH}, 17"); A(f"s_add_u32 {sT0}, {sT0}, {sT1}")
        self.mk(R_WO, P_WO, sT0, 0 if self.x_wo == 2 else 127 * 1024 + 128)
        A(f"v_lshlrev_b32 v{vT1}, 4, v{vL}")
        t = vTM + 4
        A(f"v_and_b32 v{t}, 7, v{vL}")
        A(f"v_lshlrev_b32 v{t}, 4, v{t}")
        A(f"v_lshrrev_b32 v{t+1}, 3, v{vL}")
        A(f"v_lshl_add_u32 v{vOD}, v{t+1}, 10, v{t}")
        A(f"v_and_b32 v{t+2}, 3, v{t+1}")
        A(f"v_lshlrev_b32 v{t+2}, 3, v{t+2}")
        A(f"v_lshrrev_b32 v{t+1}, 2, v{t+1}")
        A(f"v_add_u32 v{t+1}, v{t+1}, v{t+2}")
        A(f"v_lshl_add_u32 v{vOW}, v{t+1}, 10, v{t}")
        A(f"s_lshl_b32 {sWOL}, {sW}, 14"); A(f"s_add_u32 {sWOL}, {sWOL}, {L_WO}")
        A(f"s_lshl_b32 {sWDL}, {sW}, 11"); A(f"s_add_u32 {sWDL}, {sWDL}, {L_WD}")
        self.C("selection masks: e = i&7 ; M_u = (e>>1)==u ? (e&1 ? 0xffff0000 : 0xffff) : 0")
        A(f"v_and_b32 v{t}, 1, v{vI}")
        A(f"v_lshlrev_b32 v{t}, 4, v{t}")
        A(f"v_mov_b32 v{t+1}, 0xffff")
        A(f"v_lshlrev_b32 v{t+1}, v{t}, v{t+1}")
        A(f"v_bfe_u32 v{t}, v{vI}, 1, 2")
        for u in range(4):
            A(f"v_cmp_eq_u32 vcc, {u}, v{t}")
            self.nop(2)
            A(f"v_cndmask_b32 v{vM+u}, 0, v{t+1}, vcc")
        A(f"s_mov_b32 {sDUP0}, 0x01000100"); A(f"s_mov_b32 {sDUP1}, 0x03020302")
        A(f"s_mov_b32 {sC}, {f32(math.log2(math.e) / math.sqrt(128.0))}")
        if self.stamps: A(f"s_getreg_b32 {sXCC}, hwreg(HW_REG_XCC_ID)")
        A(f"s_add_u32 {sT0}, {sWOL}, {14*1024}")
        A(f"v_lshl_add_u32 v{vT0}, v{vL}, 4, {sT0}")
        def hsw():
            A("s_waitcnt vmcnt(0)")
            for n in range(self.early): self.kv_load("K", n // 4, n % 4)
        self.only(HS, hsw)
        if self.early:
            A(f"s_waitcnt vmcnt({self.early})")
            for n in range(self.early, 4 + self.npre): self.kv_load("K", n // 4, n % 4)
        else:
            for t in range(4):
                A(f"s_waitcnt vmcnt({[3,2,2,3][t]})")
                self.kv_load("K", 0, t)
            for n in range(self.npre): self.kv_load("K", 1 + n // 4, n % 4)
        self.bsel(vXR, 0, 0); self.bsel(vXR, 1, 1)
        self.nop(1)
        A(f"v_mfma_f32_16x16x32_bf16 {vr(vACC,4)}, {vr(vDF,4)}, {vr(vBF,4)}, 0")
        A(f"v_mfma_f32_16x16x32_bf16 {vr(vAC2,4)}, {vr(vDF+8,4)}, {vr(vBF,4)}, 0")
        A(f"v_mfma_f32_16x16x32_bf16 {vr(vACC,4)}, {vr(vDF+4,4)}, {vr(vBF+4,4)}, {vr(vACC,4)}")
        A(f"v_mfma_f32_16x16x32_bf16 {vr(vAC2,4)}, {vr(vDF+12,4)}, {vr(vBF+4,4)}, {vr(vAC2,4)}")
        self.nop(8)
        A(f"ds_write_b128 v{vT0}, {vr(vACC,4)}")
        A(f"ds_write_b128 v{vT0}, {vr(vAC2,4)} offset:1024")
        A("s_waitcnt lgkmcnt(0)")
        def arrive():
            self.C("this workgroup's slots are invalid now: count it in at its head's counter")
            A(f"s_lshl_b32 {sTF}, {sFT}, 3"); A(f"s_mov_b32 {sARR}, 1")
            A(f"s_atomic_add {sARR}, s[{P_DBG}:{P_DBG+1}], {sTF} glc")
        self.only(HS, arrive)
        A("s_barrier")
        def publish():
            d = vSP; d2 = vK + 96
            A(f"v_add_u32 v{vT0}, {L_WO + 14*1024}, v{vT1}")
            A(f"v_add_u32 v{vTM}, 0x10000, v{vT0}")
            for w in range(8): A(f"ds_read_b128 {vr(d+4*w,4)}, v{vT0 if w < 4 else vTM} offset:{16384*(w&3)}")
            for w in range(4): A(f"ds_read_b128 {vr(d2+4*w,4)}, v{vT0} offset:{1024+16384*w}")
            A(f"s_lshl_b32 {sT0}, {sH}, 3"); A(f"s_add_u32 {sT0}, {sT0}, {sJ}"); A(f"s_lshl_b32 {sT0}, {sT0}, 10")
            A(f"s_add_u32 {sT0}, {sT0}, {WS_Q}")
            A(f"s_lshl_b32 {sT1}, {sTI}, 3"); A(f"s_add_u32 {sT1}, {sT1}, {sJ}"); A(f"s_lshl_b32 {sT1}, {sT1}, 10")
            A(f"s_add_u32 {sT1}, {sT1}, {WS_F}")
            self.lgkm(4)
            for w in range(4, 8): A(f"ds_read_b128 {vr(d2+4*w,4)}, v{vTM} offset:{1024+16384*(w&3)}")
            for w in range(1, 8):
                for r in range(4): A(f"v_add_f32 v{d+r}, v{d+r}, v{d+4*w+r}")
            for r in range(4): A(f"v_min_u32 v{d+r}, -2, v{d+r}")
            A(f"buffer_store_dwordx4 {vr(d,4)}, v{vT1}, {srd(R_WS)}, {sT0} offen sc1")
            A("s_waitcnt lgkmcnt(0)")
            for w in range(1, 8):
                for r in range(4): A(f"v_add_f32 v{d2+r}, v{d2+r}, v{d2+4*w+r}")
            for r in range(4): A(f"v_min_u32 v{d2+r}, -2, v{d2+r}")
            A(f"buffer_store_dwordx4 {vr(d2,4)}, v{vT1}, {srd(R_WS)}, {sT1} offen sc1")
            self.nop(2)
        self.only(PUB, publish)

    def items(self):
        A = self.A
        it = []
        def add(name, fn, dep=None): it.append(dict(name=name, fn=fn, dep=dep))
        def grp(kind, G, dep):
            for t in range(4): add(f"{kind}{G}_{t}", lambda t=t: self.kv_load(kind, G, t), dep if t == 0 else None)
        wd = []; wo = []
        for t in range(2):
            def fn(t=t):
                A(f"s_add_u32 m0, {sWDL}, {t*1024}")
                A(f"s_movk_i32 {sTD}, {t*8192}")
                A(f"buffer_load_dwordx4 v{vOD}, {srd(R_WD)}, {sTD} offen nt lds")
            wd.append((f"wd{t}", fn, None))
        for t in range(16):
            def fn(t=t):
                A(f"s_add_u32 m0, {sWOL}, {t*1024}")
                A(f"s_mov_b32 {sTD}, {(32*(t>>2) + 2*(t&3))*1024}")
                if self.x_wo == 1: A(f"buffer_load_dwordx4 v[92:95], v{vOW}, {srd(R_WO)}, {sTD} offen nt")
                elif self.x_wo == 3: A(f"buffer_load_dwordx4 v[92:95], v{vT1}, {srd(R_WO)}, {sTD} offen nt")
                else: A(f"buffer_load_dwordx4 v{vOW}, {srd(R_WO)}, {sTD} offen nt lds")
            wo.append((f"wo{t}", fn, "qred" if t >= 14 else None))
        q = wo[:4] + wd + wo[4:]
        def put(slot):
            for _ in range(self.dma[slot]):
                n, fn, dep = q.pop(0); add(n, fn, dep)
        for G in range(8): grp("K", G, None); put(G)
        for G in range(8): grp("V", G, ("st0" if G == 7 else f"qk{G-1}") if G else None); put(8 + G)
        return it

    def mb_load(self):
        self.A(f"s_load_dword {sGO}, s[{P_WS}:{P_WS+1}], {sMB} glc")
    def ga_loads(self):
        A = self.A
        t = vTM
        A(f"s_lshl_b32 {sT0}, {sH}, 13"); A(f"s_lshl_b32 {sT1}, {sB}, 7"); A(f"s_add_u32 {sT0}, {sT0}, {sT1}")
        A(f"s_add_u32 {sT0}, {sT0}, {WS_Q}")
        A(f"v_and_b32 v{t}, 7, v{vL}"); A(f"v_lshlrev_b32 v{t}, 4, v{t}")
        A(f"v_bfe_u32 v{t+1}, v{vL}, 3, 2"); A(f"v_lshl_add_u32 v{t}, v{t+1}, 8, v{t}")
        A(f"v_lshrrev_b32 v{t+1}, 5, v{vL}"); A(f"v_lshl_add_u32 v{t}, v{t+1}, 10, v{t}")
        A(f"s_add_u32 {sT1}, {sT0}, 4096")
        for k in range(4):
            A(f"buffer_load_dwordx4 {vr(vSP+4*k,4)}, v{t}, {srd(R_WS)}, {sT0 if k < 2 else sT1} offen offset:{(k&1)*2048} sc1")
    def step_hs(self, k, last):
        A = self.A
        def fn():
            end = self.label("hsend"); wait = self.label("hswait")
            if k == 0:
                self.C("the last of the eight workgroups of a head tells all of them that the head's slots are invalid")
                A(f"s_lshl_b32 {sMB}, s2, 7"); A(f"s_add_u32 {sMB}, {sMB}, {WS_MB}")
                A(f"s_mov_b32 {sDONE}, 0")
                A(f"v_lshlrev_b32 v{vQF+4}, 12, v{vL}"); A(f"v_mov_b32 v{vQF+6}, 1")
                A(f"s_lshl_b32 {sT0}, {sFT}, 7"); A(f"s_add_u32 {sT0}, {sT0}, {WS_MB}")
                A("s_waitcnt lgkmcnt(0)")
                A(f"s_and_b32 {sARR}, {sARR}, 7"); A(f"s_cmp_lg_u32 {sARR}, 7"); A(f"s_cbranch_scc1 {wait}")
                self.lanes(0xff, 0)
                A(f"buffer_store_dword v{vQF+6}, v{vQF+4}, {srd(R_WS)}, {sT0} offen sc1")
                A("s_mov_b64 exec, -1")
                A(f"s_mov_b32 {sGO}, 1")
                A(f"s_branch {end}")
                self.L(wait)
                self.mb_load()
                self.L(end)
                return
            A(f"s_cmp_eq_u32 {sDONE}, 1"); A(f"s_cbranch_scc1 {end}")
            A("s_waitcnt lgkmcnt(0)")
            if last:
                sp = self.label("mbspin"); go = self.label("go")
                A(f"s_cmp_eq_u32 {sGO}, 1"); A(f"s_cbranch_scc1 {go}")
                A(f"s_mov_b32 {sCNT}, 0")
                A(f"v_mov_b32 v{vTM}, 0")
                self.L(sp)
                A("s_mov_b64 exec, 1")
                A(f"buffer_load_dword v{vFL}, v{vTM}, {srd(R_WS)}, {sMB} offen sc1")
                A("s_mov_b64 exec, -1")
                A(f"s_add_u32 {sCNT}, {sCNT}, 1")
                A("s_waitcnt vmcnt(0)")
                A(f"v_readfirstlane_b32 {sTF}, v{vFL}")
                A(f"s_cmp_ge_u32 {sCNT}, {SPIN}"); A(f"s_cbranch_scc1 {go}")
                A(f"s_cmp_lg_u32 {sTF}, 1"); A(f"s_cbranch_scc1 {sp}")
                self.L(go)
            else:
                A(f"s_cmp_lg_u32 {sGO}, 1"); A(f"s_cbranch_scc1 {wait}")
            self.ga_loads()
            A(f"s_mov_b32 {sDONE}, 1")
            if not last:
                A(f"s_branch {end}")
                self.L(wait)
                self.mb_load()
            self.L(end)
        self.only(HS, fn)
    def step_qsvc(self):
        A = self.A
        def fn():
            gs = self.label("gaspin"); ok = self.label("gaok")
            t = vTM; d = vSP
            A(f"s_mov_b32 {sCNT}, 0")
            self.L(gs)
            A(f"v_max3_u32 v{t+2}, v{d}, v{d+1}, v{d+2}")
            for k in range(3, 15, 2): A(f"v_max3_u32 v{t+2}, v{t+2}, v{d+k}, v{d+k+1}")
            A(f"v_max_u32 v{t+2}, v{t+2}, v{d+15}")
            A(f"v_cmp_eq_u32 vcc, -1, v{t+2}")
            A(f"s_cbranch_vccz {ok}")
            self.ga_loads()
            A(f"s_add_u32 {sCNT}, {sCNT}, 1")
            A(f"s_cmp_lt_u32 {sCNT}, {SPIN}")
            A("s_waitcnt vmcnt(0)")
            A(f"s_cbranch_scc1 {gs}")
            self.L(ok)
            for k in range(1, 4):
                for r in range(4): A(f"v_add_f32 v{d+r}, v{d+r}, v{d+4*k+r}")
            A(f"v_and_b32 v{t+1}, 7, v{vL}")
            A(f"v_lshrrev_b32 v{t+2}, 5, v{vL}")
            A(f"v_permlane32_swap_b32 v{d}, v{d+1}"); A(f"v_permlane32_swap_b32 v{d+2}, v{d+3}")
            A(f"v_lshl_add_u32 v{t+1}, v{t+2}, 3, v{t+1}")
            A(f"v_add_f32 v{d}, v{d}, v{d+1}"); A(f"v_add_f32 v{d+2}, v{d+2}, v{d+3}")
            A(f"v_cvt_pk_bf16_f32 v{d}, v{d}, v{d+2}")
            A(f"v_bfe_u32 v{t}, v{vL}, 3, 2")
            A(f"v_lshl_add_u32 v{t}, v{t}, 5, v{t+1}")
            A(f"v_lshlrev_b32 v{t}, 1, v{t}")
            A(f"ds_write_b16 v{t}, v{d} offset:{L_QS}")
            A(f"ds_write_b16_d16_hi v{t}, v{d} offset:{L_QS+32}")
        self.only(HS, fn)

    def step_gate0(self):
        A = self.A
        def fn():
            A(f"s_lshl_b32 {sT1}, {sB}, 10")
            A(f"buffer_load_dwordx4 {vr(vXR,4)}, v{vT1}, {srd(R_X)}, {sT1} offen")
            A(f"buffer_load_dwordx4 {vr(vXR+4,4)}, v{vT1}, {srd(R_GW)}, 0 offen")
        self.only(GSV, fn)
    def step_gate(self):
        A = self.A
        def fn():
            x, w = vXR, vXR + 4
            t = vTM; acc = vT0
            A(f"v_mov_b32 v{acc}, 0")
            for k in range(4):
                A(f"v_lshlrev_b32 v{t}, 16, v{x+k}"); A(f"v_lshlrev_b32 v{t+1}, 16, v{w+k}")
                A(f"v_and_b32 v{t+2}, 0xffff0000, v{x+k}"); A(f"v_and_b32 v{t+3}, 0xffff0000, v{w+k}")
                A(f"v_mul_f32 v{t}, v{t}, v{t+1}"); A(f"v_mul_f32 v{t+2}, v{t+2}, v{t+3}")
                A(f"v_cvt_pk_bf16_f32 v{t}, v{t}, v{t+2}")
                A(f"v_lshlrev_b32 v{t+1}, 16, v{t}"); A(f"v_and_b32 v{t}, 0xffff0000, v{t}")
                A(f"v_add_f32 v{acc}, v{acc}, v{t+1}"); A(f"v_add_f32 v{acc}, v{acc}, v{t}")
            for ctl in ("quad_perm:[1,0,3,2]", "quad_perm:[2,3,0,1]", "row_half_mirror", "row_mirror"):
                self.dpp_add(acc, ctl)
            self.swap_reduce("v_add_f32", acc, t, 16)
            self.swap_reduce("v_add_f32", acc, t, 32)
            A(f"v_cvt_pk_bf16_f32 v{acc}, v{acc}, v{acc}")
            A(f"v_and_b32 v{acc}, 0xffff0000, v{acc}")
            A(f"v_mul_f32 v{acc}, {f32(-math.log2(math.e))}, v{acc}")
            A(f"v_exp_f32 v{acc}, v{acc}")
            self.nop(1)
            A(f"v_add_f32 v{acc}, 1.0, v{acc}")
            A(f"v_rcp_f32 v{acc}, v{acc}")
            self.nop(1)
            A(f"v_cvt_pk_bf16_f32 v{acc}, v{acc}, v{acc}")
            A(f"v_and_b32 v{t}, 0xffff0000, v{acc}")
            A(f"v_sub_f32 v{t+1}, 1.0, v{t}")
            A(f"v_cvt_pk_bf16_f32 v{t+1}, v{t+1}, v{t+1}")
            A(f"v_and_b32 v{t+1}, 0xffff0000, v{t+1}")
            A(f"v_mov_b32 v{t+2}, 0")
            A(f"ds_write_b64 v{t+2}, {vr(t,2)} offset:{L_GS}")
        self.only(GSV, fn)

    def fl_load(self):
        A = self.A
        A(f"v_and_b32 v{vT0}, 31, v{vL}"); A(f"v_lshlrev_b32 v{vT0}, 3, v{vT0}")
        A(f"global_load_dword v{vFL}, v{vT0}, s[{P_DBG}:{P_DBG+1}] sc1")
    def fg_load(self):
        A = self.A
        A(f"s_lshr_b32 {sT0}, {sSL}, 3"); A(f"s_lshl_b32 {sT0}, {sT0}, 13")
        A(f"s_lshl_b32 {sT1}, {sB}, 7"); A(f"s_add_u32 {sT0}, {sT0}, {sT1}")
        A(f"s_bfe_u32 {sT1}, {sSL}, 0x20001"); A(f"s_lshl_b32 {sT1}, {sT1}, 8"); A(f"s_add_u32 {sT0}, {sT0}, {sT1}")
        A(f"s_and_b32 {sT1}, {sSL}, 1"); A(f"s_lshl_b32 {sT1}, {sT1}, 3"); A(f"s_add_u32 {sT0}, {sT0}, {sT1}")
        A(f"s_add_u32 {sT0}, {sT0}, {WS_F}")
        A(f"v_and_b32 v{vT0}, 7, v{vL}"); A(f"v_lshlrev_b32 v{vT0}, 4, v{vT0}")
        A(f"v_lshrrev_b32 v{vTM}, 3, v{vL}"); A(f"v_lshl_add_u32 v{vT0}, v{vTM}, 10, v{vT0}")
        A(f"buffer_load_dwordx2 {vr(vFG,2)}, v{vT0}, {srd(R_WS)}, {sT0} offen sc1")
        A(f"s_add_u32 {sT0}, {sT0}, {11*8192}")
        A(f"buffer_load_dwordx2 {vr(vFG+2,2)}, v{vT0}, {srd(R_WS)}, {sT0} offen sc1")
    def step_fga(self):
        A = self.A
        def fn():
            self.C("every workgroup has invalidated its slots -> gather the gate/up partials of this slice")
            ok = self.label("flok"); sp = self.label("flspin")
            A(f"v_cmp_gt_u32 vcc, 8, v{vFL}")
            A(f"s_cbranch_vccz {ok}")
            A(f"s_mov_b32 {sCNT}, 0")
            self.L(sp)
            A("s_sleep 32")
            self.fl_load()
            A(f"s_add_u32 {sCNT}, {sCNT}, 1")
            A(f"s_cmp_ge_u32 {sCNT}, {SPIN}")
            A("s_waitcnt vmcnt(0)")
            A(f"s_cbranch_scc1 {ok}")
            A(f"v_cmp_gt_u32 vcc, 8, v{vFL}")
            A(f"s_cbranch_vccnz {sp}")
            self.L(ok)
            self.fg_load()
        self.only(SVC, fn)
    def step_ffn2(self):
        A = self.A
        t = vTM
        def fn():
            self.C("h = gelu(gate)*up for 16 hidden units, then (1-g) * h @ w_down for all 512 columns")
            e = vFG
            ok = self.label("fgok"); sp = self.label("fgspin")
            A(f"s_mov_b32 {sCNT}, 0")
            self.L(sp)
            A(f"v_max3_u32 v{t}, v{e}, v{e+1}, v{e+2}"); A(f"v_max_u32 v{t}, v{t}, v{e+3}")
            A(f"v_cmp_eq_u32 vcc, -1, v{t}")
            A(f"s_cbranch_vccz {ok}")
            self.fg_load()
            A(f"s_add_u32 {sCNT}, {sCNT}, 1")
            A(f"s_cmp_lt_u32 {sCNT}, {SPIN}")
            A("s_waitcnt vmcnt(0)")
            A(f"s_cbranch_scc1 {sp}")
            self.L(ok)
            A(f"v_permlane32_swap_b32 v{e}, v{e+1}"); A(f"v_permlane32_swap_b32 v{e+2}, v{e+3}")
            self.nop(1)
            A(f"v_add_f32 v{e}, v{e}, v{e+1}"); A(f"v_add_f32 v{e+2}, v{e+2}, v{e+3}")
            self.swap_reduce("v_add_f32", e, e + 1, 16)
            self.swap_reduce("v_add_f32", e + 2, e + 3, 16)
            self.dpp_add(e, "row_ror:8"); self.dpp_add(e + 2, "row_ror:8")
            A(f"v_cvt_pk_bf16_f32 v{e}, v{e}, v{e+2}")
            A(f"v_and_b32 v{e+2}, 0xffff0000, v{e}")
            A(f"v_lshlrev_b32 v{e}, 16, v{e}")
            k0 = math.sqrt(2.0 / math.pi)
            self.C("gelu_tanh(x) = x / (1 + exp(-2*sqrt(2/pi)*(x + 0.044715 x^3)))")
            A(f"v_mul_f32 v{e+1}, v{e}, v{e}")
            A(f"v_mov_b32 v{e+3}, {f32(-2.0 * k0 * math.log2(math.e))}")
            A(f"v_mul_f32 v{e+1}, {f32(0.044715)}, v{e+1}")
            A(f"v_add_f32 v{e+1}, 1.0, v{e+1}")
            A(f"v_mul_f32 v{e+1}, v{e+1}, v{e}")
            A(f"v_mul_f32 v{e+1}, v{e+1}, v{e+3}")
            A(f"v_exp_f32 v{e+1}, v{e+1}")
            self.nop(1)
            A(f"v_add_f32 v{e+1}, 1.0, v{e+1}")
            A(f"v_rcp_f32 v{e+1}, v{e+1}")
            self.nop(1)
            A(f"v_mul_f32 v{e}, v{e}, v{e+1}")
            A(f"v_cvt_pk_bf16_f32 v{e}, v{e}, v{e}")
            A(f"v_and_b32 v{e}, 0xffff0000, v{e}")
            A(f"v_mul_f32 v{e}, v{e}, v{e+2}")
            A(f"v_cvt_pk_bf16_f32 v{e}, v{e}, v{e}")
            A(f"v_and_b32 v{t+1}, 7, v{vL}"); A(f"v_lshrrev_b32 v{t+2}, 5, v{vL}")
            A(f"v_lshl_add_u32 v{t+1}, v{t+2}, 3, v{t+1}")
            A(f"v_lshlrev_b32 v{t+1}, 1, v{t+1}")
            A(f"ds_write_b16 v{t+1}, v{e} offset:{L_HS}")
            A(f"v_lshlrev_b32 v{t+1}, 3, v{vG}")
            A(f"v_mov_b32 v{t+3}, 0")
            A("s_waitcnt lgkmcnt(0)")
            A(f"ds_read_b64 {vr(e,2)}, v{t+1} offset:{L_HS}")
            A(f"ds_read_b32 v{e+2}, v{t+3} offset:{L_GS+4}")
            A(f"v_lshrrev_b32 v{t}, 2, v{vI}"); A(f"v_and_b32 v{t+1}, 3, v{vI}")
            A(f"v_lshlrev_b32 v{t+1}, 3, v{t+1}")
            A(f"v_lshl_add_u32 v{t+1}, v{t}, 7, v{t+1}")
            A(f"v_lshl_add_u32 v{t+1}, v{vG}, 9, v{t+1}")
            A(f"v_lshlrev_b32 v{t+2}, 2, v{vL}")
            ms = ["", "s[52:53]", "s[54:55]", "s[68:69]"]
            for k in range(1, 4): A(f"v_cmp_eq_u32 {ms[k]}, {k}, v{vG}")
            wfs = [vDF, vK + 32]
            def rd(w):
                for tau in range(4):
                    A(f"ds_read_b64_tr_b16 {vr(wfs[w&1]+2*tau,2)}, v{t+1} offset:{L_WD + w*2048 + tau*32}")
            rd(0)
            for w in range(8):
                if w < 7: rd(w + 1)
                self.lgkm(4 if w == 0 else 5 if w < 7 else 0)
                for tau in range(4):
                    A(f"v_mfma_f32_16x16x16_bf16 {vr(vFD+4*tau,4)}, {vr(e,2)}, {vr(wfs[w&1]+2*tau,2)}, 0")
                self.nop(6)
                A(f"v_cndmask_b32 v{t+4}, v{vFD}, v{vFD+4}, {ms[1]}")
                self.nop(1)
                A(f"v_cndmask_b32 v{t+4}, v{t+4}, v{vFD+8}, {ms[2]}")
                self.nop(1)
                A(f"v_cndmask_b32 v{t+4}, v{t+4}, v{vFD+12}, {ms[3]}")
                A(f"v_mul_f32 v{t+4}, v{t+4}, v{e+2}")
                A(f"ds_write_b32 v{t+2}, v{t+4} offset:{L_YF + w*256}")
        self.only(SVC, fn)

    def step_qred(self):
        A = self.A
        t = vTM
        A(f"v_and_b32 v{t}, 8, v{vL}")
        A(f"v_lshlrev_b32 v{t}, 3, v{t}")
        A(f"v_lshl_add_u32 v{t}, v{vG}, 4, v{t}")
        A("s_waitcnt lgkmcnt(0)")
        A("s_barrier")
        for T in range(2): A(f"ds_read_b128 {vr(vQF+4*T,4)}, v{t} offset:{L_QS+128*T}")
        A("s_waitcnt lgkmcnt(0)")
    def qk_combine(self, G):
        A = self.A
        a = vSP + 4 * G; b = vQF + 8 + 4 * (G & 1)
        for r in range(4): A(f"v_permlane32_swap_b32 v{a+r}, v{b+r}")
        for r in range(4): A(f"v_add_f32_dpp v{a+r}, v{b+r}, v{a+r} row_ror:8 row_mask:0xf bank_mask:0xf")
    def step_qk(self, G):
        A = self.A
        a = vSP + 4 * G; b = vQF + 8 + 4 * (G & 1); k = vK + 16 * G
        A(f"v_mfma_f32_16x16x32_bf16 {vr(a,4)}, {vr(k,4)}, {vr(vQF,4)}, 0")
        A(f"v_mfma_f32_16x16x32_bf16 {vr(b,4)}, {vr(k+8,4)}, {vr(vQF,4)}, 0")
        A(f"v_mfma_f32_16x16x32_bf16 {vr(a,4)}, {vr(k+4,4)}, {vr(vQF+4,4)}, {vr(a,4)}")
        A(f"v_mfma_f32_16x16x32_bf16 {vr(b,4)}, {vr(k+12,4)}, {vr(vQF+4,4)}, {vr(b,4)}")
        if G > 0:
            self.nop(4)
            self.qk_combine(G - 1)
    def step_softmax(self):
        A = self.A
        t = vTM; m = vAC2 + 2; l = vT0
        A(f"v_max3_f32 v{m}, v{vSP}, v{vSP+1}, v{vSP+2}")
        for k in range(3, 27, 2): A(f"v_max3_f32 v{m}, v{m}, v{vSP+k}, v{vSP+k+1}")
        self.qk_combine(7)
        A(f"v_max3_f32 v{m}, v{m}, v{vSP+27}, v{vSP+28}")
        A(f"v_max3_f32 v{m}, v{m}, v{vSP+29}, v{vSP+30}")
        A(f"v_max_f32 v{m}, v{m}, v{vSP+31}")
        self.swap_reduce("v_max_f32", m, t, 16)
        self.swap_reduce("v_max_f32", m, t, 32)
        A(f"s_lshl_b32 {sT0}, {sW}, 2")
        A(f"v_mov_b32 v{t+4}, {sT0}")
        A(f"v_mov_b32 v{t+5}, 0")
        A("s_mov_b64 exec, 1")
        A(f"ds_write_b32 v{t+4}, v{m} offset:{L_MX}")
        A("s_mov_b64 exec, -1")
        A("s_waitcnt lgkmcnt(0)")
        A("s_barrier")
        A(f"ds_read_b128 {vr(vBF,4)}, v{t+5} offset:{L_MX}")
        A(f"ds_read_b128 {vr(vBF+4,4)}, v{t+5} offset:{L_MX+16}")
        A("s_waitcnt lgkmcnt(0)")
        A(f"v_max3_f32 v{m}, v{vBF}, v{vBF+1}, v{vBF+2}")
        A(f"v_max3_f32 v{m}, v{m}, v{vBF+3}, v{vBF+4}")
        A(f"v_max3_f32 v{m}, v{m}, v{vBF+5}, v{vBF+6}")
        A(f"v_max_f32 v{m}, v{m}, v{vBF+7}")
        A(f"v_mul_f32 v{m}, {sC}, v{m}")
        for k in range(32): A(f"v_fma_f32 v{vSP+k}, v{vSP+k}, {sC}, -v{m}")
        for k in range(32): A(f"v_exp_f32 v{vSP+k}, v{vSP+k}")
        A(f"v_add_f32 v{l}, v{vSP}, v{vSP+1}"); A(f"v_add_f32 v{t}, v{vSP+2}, v{vSP+3}")
        for k in range(4, 32, 2):
            A(f"v_add_f32 v{l}, v{l}, v{vSP+k}"); A(f"v_add_f32 v{t}, v{t}, v{vSP+k+1}")
        A(f"v_add_f32 v{l}, v{l}, v{t}")
        self.swap_reduce("v_add_f32", l, t, 16)
        self.swap_reduce("v_add_f32", l, t, 32)
        A("s_mov_b64 exec, 1")
        A(f"ds_write_b32 v{t+4}, v{l} offset:{L_LS}")
        A("s_mov_b64 exec, -1")
        for k in range(32): A(f"v_cvt_pk_bf16_f32 v{vSP+k}, v{vSP+k}, v{vSP+k}")
        A("s_waitcnt lgkmcnt(0)")
        A("s_barrier")
        def fn():
            self.C("publish (max, sum) of this quarter")
            A(f"ds_read_b128 {vr(vBF,4)}, v{t+5} offset:{L_LS}")
            A(f"ds_read_b128 {vr(vBF+4,4)}, v{t+5} offset:{L_LS+16}")
            A(f"s_lshl_b32 {sT0}, s2, 7"); A(f"s_add_u32 {sT0}, {sT0}, {WS_MB + 8}")
            A("s_waitcnt lgkmcnt(0)")
            for k in range(1, 8): A(f"v_add_f32 v{vBF}, v{vBF}, v{vBF+k}")
            A(f"v_min_u32 v{t+1}, -2, v{vBF}")
            A(f"v_mov_b32 v{t}, v{m}")
            A("s_mov_b64 exec, 1")
            A(f"buffer_store_dwordx2 {vr(t,2)}, v{t+5}, {srd(R_WS)}, {sT0} offen sc1")
            A("s_mov_b64 exec, -1")
        self.only(GSV, fn)
    def step_pre7(self):
        for r in range(1, 4):
            for u in range(4): self.A(f"v_and_b32 v{vK+64+4*r+u}, v{vSP+28+r}, v{vM+u}")
    def step_pv7(self, r):
        b = vBF if r == 0 else vK + 64 + 4 * r
        if r == 0: self.nop(1)
        self.A(f"v_mfma_f32_16x16x32_bf16 {vr(vACC,4)}, {vr(vK+96+4*r,4)}, {vr(b,4)}, {vr(vACC,4)}")
    def step_pv(self, G):
        A = self.A
        base = vX if G == 0 else vK + 16 * (G - 1)
        def build(k, bset):
            for u in range(4): A(f"v_and_b32 v{vBF+4*bset+u}, v{vSP+k}, v{vM+u}")
        for r in range(4):
            k = 4 * G + r
            if k == 0: build(0, 0)
            if k + 1 < 32: build(k + 1, (k + 1) & 1)
            else: self.nop(2)
            c = "0" if k == 0 else vr(vACC, 4)
            A(f"v_mfma_f32_16x16x32_bf16 {vr(vACC,4)}, {vr(base+4*r,4)}, {vr(vBF+4*(k&1),4)}, {c}")

    WF = [vQF, vK + 16 * 7, vX, vK]
    def step_wof(self):
        A = self.A
        t = vTM
        A(f"v_lshrrev_b32 v{t}, 2, v{vI}"); A(f"v_and_b32 v{t+1}, 3, v{vI}")
        A(f"v_lshlrev_b32 v{t+1}, 3, v{t+1}")
        A(f"v_lshl_add_u32 v{t+1}, v{t}, 7, v{t+1}")
        A(f"v_lshl_add_u32 v{t+2}, v{vG}, 10, v{t+1}")
        A(f"v_add_u32 v{vOQ}, {sWOL}, v{t+2}")
        for tau in range(4):
            for T in range(4):
                for hi in range(2):
                    A(f"ds_read_b64_tr_b16 {vr(self.WF[tau]+4*T+2*hi,2)}, v{vOQ} offset:{T*4096 + hi*512 + tau*32}")
            if tau < 3: A("s_waitcnt lgkmcnt(4)")
        self.C("addresses and constants of the tail")
        A(f"v_and_b32 v{t}, 7, v{vI}")
        A(f"s_mul_i32 {sT1}, {sW}, 144"); A(f"s_add_u32 {sT1}, {sT1}, {L_OB}")
        A(f"v_lshl_add_u32 v{vOK}, v{vG}, 5, {sT1}")
        A(f"v_lshl_add_u32 v{vOK}, v{t}, 2, v{vOK}")
        A(f"v_mul_u32_u24 v{vOW}, 144, v{vI}")
        A(f"v_lshl_add_u32 v{vOW}, v{vG}, 4, v{vOW}")
        A(f"v_mov_b32 v{t+1}, 0x44444444"); A(f"v_mov_b32 v{t+2}, 0xeeeeeeee")
        A(f"v_cmp_lt_u32 vcc, 7, v{vI}")
        for k in range(16): A(f"v_mov_b32 v{vDF+k}, 0")
        A(f"v_cndmask_b32 v{vAC2+1}, v{t+1}, v{t+2}, vcc")
        A(f"v_mul_u32_u24 v{t+1}, {2*self.astride}, v{vG}")
        A(f"v_lshl_add_u32 v{vOF}, v{vI}, 2, v{t+1}")
        A(f"v_add_u32 v{t+2}, 8, v{vI}"); A(f"v_and_b32 v{t+2}, 15, v{t+2}")
        A(f"v_lshl_add_u32 v{vOD}, v{t+2}, 2, v{t+1}")
        A(f"s_mul_i32 {sTF}, {sW}, {8*self.astride}")
        A(f"s_mul_i32 {sT1}, {sB}, {64*self.astride}"); A(f"s_add_u32 {sTF}, {sTF}, {sT1}")
        A(f"s_lshl_b32 {sT1}, {sB}, 10"); A(f"s_lshl_b32 {sT0}, {sW}, 7"); A(f"s_add_u32 {sT1}, {sT1}, {sT0}")
        A(f"v_lshl_add_u32 v{vT1}, v{vL}, 1, {sT1}")
        A(f"v_cmp_eq_u32 s[52:53], 8, v{vI}"); A(f"v_cmp_eq_u32 s[54:55], 0, v{vI}"); A(f"v_cmp_gt_u32 s[68:69], 8, v{vI}")
        A(f"s_mov_b32 {sX0}, {f32(127.0)}")
        A(f"s_lshl_b32 {sT1}, {sW}, 8")
        A(f"v_lshl_add_u32 v{vAC2}, v{vL}, 2, {sT1}")
        A("s_waitcnt lgkmcnt(0)")
        A(f"v_mov_b32 v{vOQ}, 0")

    def st_load(self):
        A = self.A
        A(f"s_lshl_b32 {sT0}, {sB}, 7"); A(f"s_add_u32 {sT0}, {sT0}, {sFT}"); A(f"s_lshl_b32 {sT0}, {sT0}, 7")
        A(f"s_add_u32 {sT0}, {sT0}, {WS_MB + 8}")
        A(f"v_mov_b32 v{vT0}, 0")
        for k in range(4):
            if k: A(f"s_add_u32 {sT0}, {sT0}, 4096")
            A(f"buffer_load_dwordx2 {vr(vXR+2*k,2)}, v{vT0}, {srd(R_WS)}, {sT0} offen sc1")
    def step_scale(self):
        A = self.A
        t = vTM; s = vXR
        def fn():
            self.C("g * exp2(m_own - M) / L from the statistics of the four quarters")
            ok = self.label("stok"); sp = self.label("stspin")
            A(f"v_mov_b32 v{t+3}, 0")
            A(f"ds_read_b32 v{t+2}, v{t+3} offset:{L_GS}")
            A(f"s_mov_b32 {sCNT}, 0")
            self.L(sp)
            A(f"v_max3_u32 v{t}, v{s+1}, v{s+3}, v{s+5}")
            A(f"v_max_u32 v{t}, v{t}, v{s+7}")
            A(f"v_cmp_eq_u32 vcc, -1, v{t}")
            A(f"s_cbranch_vccz {ok}")
            self.st_load()
            A(f"s_add_u32 {sCNT}, {sCNT}, 1")
            A(f"s_cmp_lt_u32 {sCNT}, {SPIN}")
            A("s_waitcnt vmcnt(0)")
            A(f"s_cbranch_scc1 {sp}")
            self.L(ok)
            A(f"v_max3_f32 v{t}, v{s}, v{s+2}, v{s+4}")
            A(f"v_max_f32 v{t}, v{t}, v{s+6}")
            for k in range(4): A(f"v_sub_f32 v{s+2*k}, v{s+2*k}, v{t}")
            A(f"v_sub_f32 v{t+1}, v{vAC2+2}, v{t}")
            for k in range(4): A(f"v_exp_f32 v{s+2*k}, v{s+2*k}")
            A(f"v_exp_f32 v{t+1}, v{t+1}")
            A(f"v_mul_f32 v{t}, v{s}, v{s+1}")
            for k in range(1, 4): A(f"v_fmac_f32 v{t}, v{s+2*k}, v{s+2*k+1}")
            A(f"v_rcp_f32 v{t}, v{t}")
            A("s_waitcnt lgkmcnt(0)")
            A(f"v_mul_f32 v{t+1}, v{t+2}, v{t+1}")
            A(f"v_mul_f32 v{t}, v{t}, v{t+1}")
            A(f"ds_write_b32 v{t+3}, v{t} offset:{L_FS}")
        self.only(SVC, fn)

    def step_tail(self):
        A = self.A
        t = vTM; af = vSP
        self.lanes(0x00ff00ff, 0x00ff00ff)
        self.nop(6)
        A(f"v_cvt_pk_bf16_f32 v{t}, v{vACC}, v{vACC+1}")
        A(f"v_cvt_pk_bf16_f32 v{t+1}, v{vACC+2}, v{vACC+3}")
        A(f"ds_write_b32 v{vOK}, v{t}")
        A(f"ds_write_b32 v{vOK}, v{t+1} offset:{8*144}")
        A("s_mov_b64 exec, -1")
        A("s_waitcnt lgkmcnt(0)")
        A("s_barrier")
        self.C("16 rows = 8 wave partials x 2 halves of every group of four k : dense data in 2:4 form")
        for T in range(2): A(f"ds_read_b128 {vr(af+4*T,4)}, v{vOW} offset:{L_OB + 64*T}")
        A(f"ds_read_b32 v{t+4}, v{vOQ} offset:{L_FS}")
        A(f"ds_read_b32 v{vAC2+3}, v{vAC2} offset:{L_YF}")
        for T in range(2):
            self.lgkm(3 - T)
            for tau in range(4):
                A(f"v_smfmac_f32_16x16x64_bf16 {vr(vDF+4*tau,4)}, {vr(af+4*T,4)}, {vr(self.WF[tau]+8*T,8)}, v{vAC2+1}")
        A("s_waitcnt lgkmcnt(0)")
        self.nop(4)
        for tau in range(4):
            d = vDF + 4 * tau
            A(f"v_add_f32 v{d}, v{d}, v{d+1}"); A(f"v_add_f32 v{d+2}, v{d+2}, v{d+3}")
            A(f"v_add_f32 v{d}, v{d}, v{d+2}")
        self.nop(1)
        A(f"v_permlane16_swap_b32 v{vDF}, v{vDF+4}")
        A(f"v_permlane16_swap_b32 v{vDF+8}, v{vDF+12}")
        A(f"v_add_f32 v{vDF}, v{vDF}, v{vDF+4}")
        A(f"v_add_f32 v{vDF+8}, v{vDF+8}, v{vDF+12}")
        self.nop(2)
        A(f"v_permlane32_swap_b32 v{vDF}, v{vDF+8}")
        A(f"v_add_f32 v{t}, v{vDF}, v{vDF+8}")
        A(f"v_fma_f32 v{t}, v{t}, v{t+4}, v{vAC2+3}")
        self.C("8 sums and their arrival count share one 64-B request")
        A(f"v_cndmask_b32 v{t+1}, v{t}, 1.0, s[52:53]")
        A(f"v_cndmask_b32 v{t+2}, v{t}, 1.0, s[54:55]")
        self.lanes(0x01ff01ff, 0x01ff01ff)
        A(f"buffer_atomic_add_f32 v{t+1}, v{vOF}, {srd(R_WS)}, {sTF} offen sc0")
        self.lanes(0xff01ff01, 0xff01ff01)
        A(f"buffer_atomic_add_f32 v{t+2}, v{vOD}, {srd(R_WS)}, {sTF} offen offset:{self.astride} sc0")
        A("s_mov_b64 exec, -1")

    def finish(self):
        A = self.A
        t = vTM
        A("s_waitcnt vmcnt(0)")
        A(f"v_mov_b32_dpp v{t+3}, v{t+1} row_newbcast:8 row_mask:0xf bank_mask:0xf")
        A(f"v_mov_b32_dpp v{t+4}, v{t+2} row_newbcast:0 row_mask:0xf bank_mask:0xf")
        A(f"v_cndmask_b32 v{t+1}, v{t+2}, v{t+1}, s[68:69]")
        A(f"v_cndmask_b32 v{t+3}, v{t+4}, v{t+3}, s[68:69]")
        A(f"v_add_f32 v{t}, v{t}, v{t+1}")
        A(f"v_cmp_eq_f32 vcc, {sX0}, v{t+3}")
        A(f"v_cvt_pk_bf16_f32 v{t}, v{t}, v{t}")
        sk = self.label("fin")
        A("s_and_b64 exec, exec, vcc")
        A(f"s_cbranch_execz {sk}")
        A(f"global_store_short v{vT1}, v{t}, s[{P_OUT}:{P_OUT+1}]")
        self.L(sk)
        A("s_mov_b64 exec, -1")

    def steps(self, idx):
        S = []
        def add(name, needs, fn): S.append(dict(name=name, needs=needs, fn=fn))
        add("gate0", [], self.step_gate0)
        pts = list(self.hs_pts)
        evs = [(idx[p], f"hs{k}", [p], (lambda k=k: self.step_hs(k, k == len(pts) - 1))) for k, p in enumerate(pts)]
        evs.append((idx["K1_0"] + 0.5, "gate", ["@gate0"], self.step_gate))
        for _, n, nd, fn in sorted(evs, key=lambda e: e[0]): add(n, nd, fn)
        add("join", [f"@hs{len(pts)-1}", self.q_at], self.step_qsvc)
        add("qred", [], self.step_qred)
        for G in range(8): add(f"qk{G}", [f"K{G}_3"], lambda G=G: self.step_qk(G))
        add("fl", [], lambda: self.only(SVC, self.fl_load))
        add("softmax", ["wd1"], self.step_softmax)
        placed = False
        for G in range(8):
            if G == 7:
                add("pre7", [], self.step_pre7)
                add("scale", ["@st0"], self.step_scale)
            if not placed and G >= 5 and idx[f"V{G}_3"] > idx["wo15"]:
                add("wof", ["wo15"], self.step_wof); placed = True
            if G == 7:
                for r in range(4): add("pv7" if r == 3 else f"pv7_{r}", [f"V7_{r}"], lambda r=r: self.step_pv7(r))
            else:
                add(f"pv{G}", [f"V{G}_3"], lambda G=G: self.step_pv(G))
            if f"pv{G}" == self.fga_pos: add("fga", ["@fl"], self.step_fga)
            if f"pv{G}" == self.st_pos: add("st0", [], lambda: self.only(SVC, self.st_load))
            if f"pv{G}" == self.ffn_pos: add("ffn2", ["@fga"], self.step_ffn2)
        nm = [s["name"] for s in S]
        assert placed and nm.index("pv3") < nm.index("ffn2") < nm.index("wof")
        add("tail", [], self.step_tail)
        return S

    def schedule(self):
        items = self.items()
        idx = {it["name"]: n for n, it in enumerate(items)}
        issued = 4 + self.npre
        assert all(it["name"][0] == "K" for it in items[:issued])
        comp = -1; done = set(); pos = -1; after = {}; W = self.W
        for st in self.steps(idx):
            need = max([after[n[1:]] if n[0] == "@" else idx[n] for n in st["needs"]], default=-1)
            pos = max(pos, need)
            def issue(w):
                nonlocal issued, comp
                while issued < len(items):
                    it = items[issued]
                    if issued > pos + w - 1: break
                    if it["dep"] and it["dep"] not in done:
                        assert issued > need, (st["name"], it["name"])
                        break
                    if issued - (comp + 1) >= w:
                        self.A(f"s_waitcnt vmcnt({w-1})"); comp = issued - w
                    it["fn"](); issued += 1
            if st["name"] != "qred": issue(W)
            if comp < need:
                self.A(f"s_waitcnt vmcnt({issued-1-need})"); comp = need
            if st["name"] == "join":
                issue(W + self.boost_q); W = self.W2
            if st["name"] in self.boosts: issue(W + self.boosts[st["name"]])
            self.o.append(f"    ; ---- {st['name']}")
            st["fn"](); done.add(st["name"])
            after[st["name"]] = issued
            if self.probe:
                if st["name"] == self.probe["step"]: self.stamp(3)
            elif st["name"] in ("qred", "pv7", "tail"): self.stamp({"qred": 1, "pv7": 2, "tail": 3}[st["name"]])
        assert issued == len(items)

    def build(self):
        A = self.A
        K1 = NAME + "_kernel"
        o = self.o
        o.append(HEADER.rstrip("\n"))
        o.append(f"; @launch grid=(256,1,1) block=(512,1,1) lds={LDS_BYTES}")
        o += """; out = g * MHA_cached(x) + (1-g) * GEGLU_FFN(x).  Emitted by my own Python generator (straight-line code, step markers below).
; 256 workgroups (one per CU) x 8 waves; workgroup = (batch b, head h, quarter s of the keys), wave = 8 groups of 16 keys.
;  - K / V stream straight into registers (nt); QK^T, PV and all GEMVs run on MFMA (row-major weights through a
;    one-hot 'selection' B operand, transposed operands through ds_read_b64_tr_b16).
;  - q = x@wq and the gate/up pre-activations: every workgroup computes one 64-row tile for both batches and publishes the
;    partial sums in d_ws.  Slots are set to -1 at the start of the launch (arrival counters in d_debug, 'go' word per
;    workgroup) and every word is validated by the reader, so nothing of an earlier launch is ever accepted.
;  - softmax: true max per quarter, (max, sum) exchanged between the four quarters, exact rescale at the end.
;  - each workgroup multiplies its partial output by wo[h] (LDS image), adds its slice of h@w_down and adds the row to
;    f32 accumulators (zeroed in this launch) with returning atomics; a 64-B request carries 8 sums and an arrival count,
;    so the request that arrives last holds the totals and writes them.
;  - every wait loop is bounded.""".split("\n")
        o += ['.amdgcn_target "amdgcn-amd-amdhsa--gfx950"', ".text", f".globl {K1}", ".p2align 8",
              f".type {K1},@function", f"{K1}:"]
        self.phase0()
        self.schedule()
        self.finish()
        if self.probe:
            A(f"s_cmp_lg_u32 {sW}, 0"); A("s_cbranch_scc1 L_end")
            A("s_mov_b32 s96, 4000")
            A("s_waitcnt lgkmcnt(0)")
            A("s_sub_u32 s97, s98, s92"); A(f"s_mul_i32 s97, s97, {self.probe['m']}"); A("s_add_u32 s96, s96, s97")
            self.L("L_fix")
            A("s_memrealtime s[94:95]"); A("s_waitcnt lgkmcnt(0)"); A("s_sub_u32 s94, s94, s92")
            A("s_cmp_lt_u32 s94, s96"); A("s_cbranch_scc1 L_fix")
            self.stamps = False
        if self.stamps: A("s_barrier")
        if self.stamps:
            self.L("L_stamp")
            A(f"s_cmp_lg_u32 {sW}, 0"); A("s_cbranch_scc1 L_end")
            self.stamp(4)
            A("s_mov_b64 exec, 1")
            A("s_waitcnt lgkmcnt(0)")
            A(f"s_add_u32 s40, s40, {STAMP_OFF}"); A("s_addc_u32 s41, s41, 0")
            A("s_lshl_b32 s8, s2, 6"); A("v_mov_b32 v1, s8")
            for k in range(4):
                A(f"v_mov_b32 v{8+2*k}, s{sST+2*k}"); A(f"v_mov_b32 v{9+2*k}, s{sST+2*k+1}")
            A(f"v_mov_b32 v16, {sXCC}"); A("v_mov_b32 v17, 0")
            A(f"v_mov_b32 v18, s{sST+8}"); A(f"v_mov_b32 v19, s{sST+9}")
            A("global_store_dwordx4 v1, v[8:11], s[40:41]")
            A("global_store_dwordx4 v1, v[12:15], s[40:41] offset:16")
            A("global_store_dwordx4 v1, v[16:19], s[40:41] offset:32")
        self.L("L_end"); A("s_endpgm")
        o += ['.section .rodata,"a"', ".p2align 6", f".amdhsa_kernel {K1}", "  .amdhsa_next_free_vgpr 256",
              "  .amdhsa_next_free_sgpr 102", "  .amdhsa_accum_offset 256", "  .amdhsa_group_segment_fixed_size 0",
              "  .amdhsa_kernarg_size 104", "  .amdhsa_user_sgpr_count 2", "  .amdhsa_user_sgpr_kernarg_segment_ptr 1",
              "  .amdhsa_system_sgpr_workgroup_id_x 1", ".end_amdhsa_kernel"]
        return "\n".join(o) + "\n"

if __name__ == "__main__":
    import argparse, json
    ap = argparse.ArgumentParser()
    ap.add_argument("out"); ap.add_argument("--opt", default="{}")
    a = ap.parse_args()
    open(a.out, "w").write(Gen(**json.loads(a.opt)).build())
```

```python
import sys, struct, math

NAME = "gated_mix__mha_block_cached__geglu_ffn__decode"
HEADER = open("cdna_kernels/" + NAME + ".s.ref").read().split("; Override launch")[0]

def f32(x):
    return "0x%08x" % struct.unpack("<I", struct.pack("<f", x))[0]

L_QS = 0
L_HS = 256
L_GS = 320
L_FS = 336
L_MX = 384
L_LS = 448
L_OB = 512
L_YF = 3072
L_WD = 5120
L_WO = L_WD + 16384
LDS_BYTES = L_WO + 131072

WS_A = 0
WS_MB = 0x11000
WS_Q = 0x19000
WS_F = WS_Q + 0x40000
WS_BYTES = WS_F + 176 * 1024
STAMP_OFF = 128 << 20
SPIN = "0x4000"

sW = "s3"
P_X, P_K, P_V, P_WQ, P_WO, P_WG, P_WU = 16, 18, 20, 22, 24, 28, 30
P_WD, P_GW, P_OUT, P_DBG, P_WS = 32, 34, 36, 38, 40
R_K, R_V, R_WQ, R_WO, R_X, R_GW, R_FT, R_WD, R_WS = 44, 48, 52, 56, 60, 64, 68, 76, 80
sH, sB, sS, sSL, sT0, sT1, sT2 = "s4", "s5", "s6", "s7", "s8", "s9", "s10"
sTK, sTV, sTQ, sTF, sTD = "s11", "s12", "s13", "s14", "s15"
sX0, sX1 = "s42", "s43"
sARR, sMB = "s42", "s43"
sJ, sFT, sROT, sTI = "s72", "s73", "s74", "s75"
sWOL, sWDL = "s84", "s85"
sDUP0, sDUP1 = "s86", "s87"
sGO, sDONE = "s86", "s87"
sC, sCNT, sXCC, sBH = "s88", "s89", "s90", "s91"
sWR0, sWR1 = "s26", "s27"
sST = 92
def srd(r): return f"s[{r}:{r+3}]"

vL, vI, vG = 1, 2, 3
vOK, vOV, vOQ, vOW, vOF, vOD, vT0, vT1 = 4, 5, 6, 7, 8, 9, 10, 11
vM = 12
vXR = 16
vBF = 24
vACC = 32
vAC2 = 36
vQF = 40
vSP = 56
vDF = 88
vTM = 104
vFL = 111
vK = 112
vX = 240
vFG = vDF + 8
vFD = vK + 16
def vr(a, n): return f"v[{a}:{a+n-1}]"

HS, PUB, GSV, SVC = 0, 1, 2, 3

class Gen:
    def __init__(self, W=10, W2=12, boost_q=4, boosts=None, npre=4, q_at="K5_3", hs_pts=("K0_1", "K2_3", "K3_1", "K3_3"),
                 dma=(0, 0, 1, 1, 2, 1, 2, 1, 2, 1, 2, 1, 2, 2, 0, 0), xmap="0x54ff3210", nx=6,
                 fga_pos="pv1", st_pos="pv3", ffn_pos="pv3", stamps=False, gperm=(0,1,2,3,4,5,6,7), rotmul=1, astride=256, early=0, x_wo=0, worot=None, wdpos=8, wx=None, probe=None, wmap="0xf5f43210"):
        self.__dict__.update(locals())
        self.boosts = boosts if boosts is not None else {"softmax": 6, "wof": 4}
        assert sum(dma) == 18
        self.o = []; self.lab = 0
        if probe: self.stamps = True
    def A(self, s): self.o.append("    " + s)
    def C(self, s): self.o.append("    ; " + s)
    def L(self, s): self.o.append(s + ":")
    def nop(self, n):
        while n > 0:
            k = min(n, 16); self.A(f"s_nop {k-1}"); n -= k
    def label(self, p):
        self.lab += 1; return f"L_{p}_{self.lab}"
    def stamp(self, k):
        if self.stamps: self.A(f"s_memrealtime s[{sST+2*k}:{sST+2*k+1}]")
    def lgkm(self, n): self.A(f"s_waitcnt lgkmcnt({0 if self.stamps else n})")
    def only(self, w, fn):
        sk = self.label("skip")
        self.A(f"s_cmp_lg_u32 {sW}, {w}"); self.A(f"s_cbranch_scc1 {sk}")
        fn()
        self.L(sk)
    def lanes(self, lo, hi):
        self.A(f"s_mov_b32 exec_lo, {lo:#x}"); self.A(f"s_mov_b32 exec_hi, {hi:#x}")
    def swap_reduce(self, op, v, tmp, which):
        A = self.A
        A(f"v_mov_b32 v{tmp}, v{v}")
        self.nop(2)
        A(f"v_permlane{which}_swap_b32 v{v}, v{tmp}")
        self.nop(1)
        A(f"{op} v{v}, v{v}, v{tmp}")
    def dpp_add(self, v, ctl):
        self.nop(2)
        self.A(f"v_add_f32_dpp v{v}, v{v}, v{v} {ctl} row_mask:0xf bank_mask:0xf")
    def mk(self, r, p, off, size):
        A = self.A
        if off is None:
            A(f"s_mov_b32 s{r}, s{p}"); A(f"s_mov_b32 s{r+1}, s{p+1}")
        else:
            A(f"s_add_u32 s{r}, s{p}, {off}"); A(f"s_addc_u32 s{r+1}, s{p+1}, 0")
        if size is not None: A(f"s_mov_b32 s{r+2}, {size}")
        A(f"s_mov_b32 s{r+3}, 0x20000")

    def kv_load(self, kind, G, t):
        A = self.A
        st = sTK if kind == "K" else sTV
        if t == 0: A(f"s_xor_b32 {st}, {sROT}, {self.gperm[G] << 15}")
        if kind == "K":
            A(f"buffer_load_dwordx4 {vr(vK+16*G+4*t,4)}, v{vOK}, {srd(R_K)}, {st} offen offset:{(t>>1)*2048 + (t&1)*128} nt")
        else:
            dst = vX if G == 0 else vK + 16 * (G - 1)
            A(f"buffer_load_dwordx4 {vr(dst+4*t,4)}, v{vOV}, {srd(R_V)}, {st} offen offset:{256*t} nt")

    def bsel(self, src, half, bset):
        A = self.A
        t = vTM + 4 + bset
        A(f"v_perm_b32 v{t}, v{src}, v{src}, {sDUP1 if half else sDUP0}")
        for u in range(4): A(f"v_and_b32 v{vBF+4*bset+u}, v{t}, v{vM+u}")

    def phase0(self):
        A = self.A
        A("s_cmp_ge_u32 s2, 256")
        A("s_cbranch_scc1 L_end")
        A("s_load_dwordx16 s[16:31], s[0:1], 0")
        A("s_load_dwordx8 s[32:39], s[0:1], 64")
        A("s_load_dwordx2 s[40:41], s[0:1], 96")
        self.stamp(0)
        A("v_lshrrev_b32 v10, 6, v0")
        A(f"v_and_b32 v{vI}, 15, v0")
        A(f"v_readfirstlane_b32 {sW}, v10")
        A(f"v_bfe_u32 v{vG}, v0, 4, 2")
        self.C("wg = (j*4 + hq)*8 + x ; h = 4x + hq ; j = 4b + s   (x = XCD under round-robin placement: speed only)")
        A(f"s_and_b32 {sT0}, s2, 7")
        A(f"s_lshr_b32 {sT1}, s2, 3")
        A(f"s_and_b32 {sT2}, {sT1}, 3")
        A(f"s_lshl_b32 {sH}, {sT0}, 2")
        A(f"s_add_u32 {sH}, {sH}, {sT2}")
        A(f"s_lshr_b32 {sJ}, {sT1}, 2")
        A(f"s_and_b32 {sFT}, s2, 31")
        self.C("FFN work goes to the workgroups whose x has a rank (nibble table, 15 = none)")
        A(f"s_lshl_b32 {sCNT}, {sT0}, 2"); A(f"s_lshr_b32 {sCNT}, {self.xmap}, {sCNT}"); A(f"s_and_b32 {sCNT}, {sCNT}, 15")
        A(f"s_mul_i32 {sTI}, {sT2}, {self.nx}"); A(f"s_add_u32 {sTI}, {sTI}, {sCNT}")
        A(f"s_cmp_eq_u32 {sCNT}, 15"); A(f"s_cselect_b32 {sTI}, 31, {sTI}")
        A(f"s_lshl_b32 {sTK}, {sJ}, 3"); A(f"s_add_u32 {sTK}, {sTK}, {sW}")
        A(f"s_lshl_b32 {sTV}, {sTK}, 4")
        A(f"s_lshl_b32 {sX0}, {sTK}, 16"); A(f"s_lshl_b32 {sTQ}, {sH}, 8"); A(f"s_add_u32 {sX0}, {sX0}, {sTQ}")
        A(f"s_cmp_ge_u32 {sTI}, 11")
        A(f"s_cselect_b32 {sX1}, 11, 0")
        A(f"s_sub_u32 {sX1}, {sTI}, {sX1}")
        A(f"s_lshl_b32 {sX1}, {sX1}, 8")
        A(f"s_mul_i32 {sTK}, {sTK}, {8*2752}")
        A(f"s_add_u32 {sX1}, {sX1}, {sTK}")
        A(f"s_sub_u32 s{R_FT+2}, {512*2752}, {sX1}")
        A(f"s_cmp_lt_u32 {sTI}, 22")
        A(f"s_cselect_b32 s{R_FT+2}, s{R_FT+2}, 0")
        A(f"s_cselect_b32 {sX1}, {sX1}, 0")
        A(f"s_mov_b32 s{R_FT+3}, 0x20000")
        A(f"s_mov_b32 s{R_X+2}, 2048"); A(f"s_mov_b32 s{R_X+3}, 0x20000")
        A(f"s_mov_b32 s{R_WQ+2}, {7*8192+256}"); A(f"s_mov_b32 s{R_WQ+3}, 0x20000")
        A(f"s_movk_i32 {sTQ}, 8192")
        A(f"v_lshrrev_b32 v{vT0}, 3, v{vI}")
        A(f"v_lshlrev_b32 v{vT0}, 10, v{vT0}")
        A(f"v_lshl_add_u32 v{vT0}, v{vG}, 2, v{vT0}")
        A(f"v_lshlrev_b32 v{vT1}, 4, v{vI}")
        A(f"v_lshl_add_u32 v{vOQ}, v{vG}, 14, v{vT1}")
        A(f"v_mul_u32_u24 v{vOF}, {2*2752}, v{vG}")
        A(f"v_add_u32 v{vOF}, v{vOF}, v{vT1}")
        A(f"s_cmp_ge_u32 {sTI}, 11")
        A("s_waitcnt lgkmcnt(0)")
        self.C("projection tiles: rows 64j + 8w + 2g + t of wq (128 columns of head h) and of w_gate / w_up (one 128-column block)")
        A(f"s_cselect_b32 s{R_FT}, s{P_WU}, s{P_WG}"); A(f"s_cselect_b32 s{R_FT+1}, s{P_WU+1}, s{P_WG+1}")
        A(f"s_add_u32 s{R_WQ}, s{P_WQ}, {sX0}"); A(f"s_addc_u32 s{R_WQ+1}, s{P_WQ+1}, 0")
        A(f"buffer_load_dwordx4 {vr(vDF,4)}, v{vOQ}, {srd(R_WQ)}, 0 offen nt")
        A(f"buffer_load_dwordx4 {vr(vDF+4,4)}, v{vOQ}, {srd(R_WQ)}, {sTQ} offen nt")
        A(f"s_add_u32 s{R_FT}, s{R_FT}, {sX1}"); A(f"s_addc_u32 s{R_FT+1}, s{R_FT+1}, 0")
        A(f"buffer_load_dwordx4 {vr(vDF+8,4)}, v{vOF}, {srd(R_FT)}, 0 offen nt")
        A(f"buffer_load_dwordx4 {vr(vDF+12,4)}, v{vOF}, {srd(R_FT)}, 0 offen offset:2752 nt")
        A(f"s_mov_b32 s{R_X}, s{P_X}"); A(f"s_mov_b32 s{R_X+1}, s{P_X+1}")
        A(f"buffer_load_dword v{vXR}, v{vT0}, {srd(R_X)}, {sTV} offen")
        self.mk(R_WS, P_WS, None, WS_BYTES)
        def clear():
            self.C("invalidate the hand-off slots this workgroup is responsible for")
            c = vQF
            for k in range(4): A(f"v_mov_b32 v{c+k}, -1")
            A(f"v_and_b32 v{c+4}, 63, v0"); A(f"v_lshlrev_b32 v{c+4}, 4, v{c+4}")
            A(f"s_lshl_b32 {sTD}, {sH}, 3"); A(f"s_add_u32 {sTD}, {sTD}, {sJ}"); A(f"s_lshl_b32 {sTD}, {sTD}, 10")
            A(f"s_add_u32 {sTD}, {sTD}, {WS_Q}")
            A(f"buffer_store_dwordx4 {vr(c,4)}, v{c+4}, {srd(R_WS)}, {sTD} offen sc1")
            A(f"s_lshl_b32 {sTD}, {sTI}, 3"); A(f"s_add_u32 {sTD}, {sTD}, {sJ}"); A(f"s_lshl_b32 {sTD}, {sTD}, 10")
            A(f"s_add_u32 {sTD}, {sTD}, {WS_F}")
            A(f"buffer_store_dwordx4 {vr(c,4)}, v{c+4}, {srd(R_WS)}, {sTD} offen sc1")
            self.lanes(0xff, 0)
            A(f"s_lshl_b32 {sTD}, s2, 7"); A(f"s_add_u32 {sTD}, {sTD}, {WS_MB}")
            A(f"buffer_store_dwordx4 {vr(c,4)}, v{c+4}, {srd(R_WS)}, {sTD} offen sc1")
            for k in range(4): A(f"v_mov_b32 v{c+8+k}, 0")
            A(f"s_mul_i32 {sTD}, s2, {self.astride}")
            if self.astride == 64: self.lanes(0xf, 0)
            A(f"s_cmp_lt_u32 s2, 128"); A(f"s_cselect_b32 {sTD}, {sTD}, {4 << 20}")
            A(f"buffer_store_dwordx4 {vr(c+8,4)}, v{c+4}, {srd(R_WS)}, {sTD} offen sc1")
            A("s_mov_b64 exec, -1")
        self.only(HS, clear)
        self.C("everything else while those fly")
        A(f"v_and_b32 v{vL}, 63, v0")
        A(f"s_lshr_b32 {sB}, {sJ}, 2")
        A(f"s_and_b32 {sS}, {sJ}, 3")
        A(f"s_lshl_b32 {sBH}, {sB}, 5"); A(f"s_add_u32 {sBH}, {sBH}, {sH}")
        A(f"v_and_b32 v{vOK}, 7, v0")
        A(f"v_lshlrev_b32 v{vOK}, 8, v{vOK}")
        A(f"v_lshl_add_u32 v{vOK}, v{vG}, 4, v{vOK}")
        A(f"v_and_b32 v{vOV}, 8, v0")
        A(f"v_lshl_add_u32 v{vOK}, v{vOV}, 3, v{vOK}")
        A(f"v_lshl_add_u32 v{vOV}, v{vG}, 10, v{vT1}")
        A(f"s_lshl_b32 {sTK}, {sBH}, 20")
        A(f"s_lshl_b32 {sTV}, {sS}, 18"); A(f"s_add_u32 {sTK}, {sTK}, {sTV}")
        if self.wx:
            regs = {"j": sJ, "h": sH, "s": sS, "b": sB, "q": sT2}
            A(f"s_mov_b32 {sTV}, {sW}")
            for nm, sh in self.wx:
                A(f"s_lshl_b32 {sTF}, {regs[nm]}, {sh}"); A(f"s_xor_b32 {sTV}, {sTV}, {sTF}")
            A(f"s_and_b32 {sTV}, {sTV}, 7"); A(f"s_lshl_b32 {sTV}, {sTV}, 12")
        else:
            A(f"s_lshl_b32 {sTV}, {sW}, 12")
        A(f"s_add_u32 {sTK}, {sTK}, {sTV}")
        self.mk(R_K, P_K, sTK, (7 << 15) + 4096)
        self.mk(R_V, P_V, sTK, (7 << 15) + 4096)
        if self.rotmul == 1: A(f"s_lshl_b32 {sROT}, {sJ}, 15")
        else:
            A(f"s_mul_i32 {sROT}, {sJ}, {self.rotmul}"); A(f"s_and_b32 {sROT}, {sROT}, 7"); A(f"s_lshl_b32 {sROT}, {sROT}, 15")
        if self.early:
            lk = self.label("early")
            A(f"s_cmp_eq_u32 {sW}, {HS}"); A(f"s_cbranch_scc1 {lk}")
            for n in range(self.early): self.kv_load("K", n // 4, n % 4)
            self.L(lk)
        self.mk(R_GW, P_GW, None, 1024)
        per = -(-86 // self.nx)
        if self.wmap:
            A(f"s_lshl_b32 {sCNT}, {sT0}, 2"); A(f"s_lshr_b32 {sCNT}, {self.wmap}, {sCNT}"); A(f"s_and_b32 {sCNT}, {sCNT}, 15")
        A(f"s_and_b32 {sT1}, {sT1}, 15")
        A(f"s_mul_i32 {sSL}, {sCNT}, {per}")
        A(f"s_add_u32 {sSL}, {sSL}, {sT1}")
        A(f"s_cmp_lt_u32 {sT1}, {per}")
        A(f"s_cselect_b32 {sSL}, {sSL}, 1000")
        A(f"s_cmp_lt_u32 {sSL}, 86")
        A(f"s_cselect_b32 s{R_WD+2}, {15*1024+128}, 0")
        A(f"s_cselect_b32 {sSL}, {sSL}, 0")
        A(f"s_lshl_b32 {sT0}, {sSL}, 14"); A(f"s_lshl_b32 {sT1}, {sW}, 7"); A(f"s_add_u32 {sT0}, {sT0}, {sT1}")
        self.mk(R_WD, P_WD, sT0, None)
        A(f"s_lshl_b32 {sT0}, {sH}, 17"); A(f"s_add_u32 {sT0}, {sT0}, {sT1}")
        self.mk(R_WO, P_WO, sT0, 0 if self.x_wo == 2 else 127 * 1024 + 128)
        A(f"v_lshlrev_b32 v{vT1}, 4, v{vL}")
        t = vTM + 4
        A(f"v_and_b32 v{t}, 7, v{vL}")
        A(f"v_lshlrev_b32 v{t}, 4, v{t}")
        A(f"v_lshrrev_b32 v{t+1}, 3, v{vL}")
        A(f"v_lshl_add_u32 v{vOD}, v{t+1}, 10, v{t}")
        A(f"v_and_b32 v{t+2}, 3, v{t+1}")
        A(f"v_lshlrev_b32 v{t+2}, 3, v{t+2}")
        A(f"v_lshrrev_b32 v{t+1}, 2, v{t+1}")
        A(f"v_add_u32 v{t+1}, v{t+1}, v{t+2}")
        A(f"v_lshl_add_u32 v{vOW}, v{t+1}, 10, v{t}")
        A(f"s_lshl_b32 {sWOL}, {sW}, 14"); A(f"s_add_u32 {sWOL}, {sWOL}, {L_WO}")
        A(f"s_lshl_b32 {sWDL}, {sW}, 11"); A(f"s_add_u32 {sWDL}, {sWDL}, {L_WD}")
        self.C("selection masks: e = i&7 ; M_u = (e>>1)==u ? (e&1 ? 0xffff0000 : 0xffff) : 0")
        A(f"v_and_b32 v{t}, 1, v{vI}")
        A(f"v_lshlrev_b32 v{t}, 4, v{t}")
        A(f"v_mov_b32 v{t+1}, 0xffff")
        A(f"v_lshlrev_b32 v{t+1}, v{t}, v{t+1}")
        A(f"v_bfe_u32 v{t}, v{vI}, 1, 2")
        for u in range(4):
            A(f"v_cmp_eq_u32 vcc, {u}, v{t}")
            self.nop(2)
            A(f"v_cndmask_b32 v{vM+u}, 0, v{t+1}, vcc")
        A(f"s_mov_b32 {sDUP0}, 0x01000100"); A(f"s_mov_b32 {sDUP1}, 0x03020302")
        A(f"s_mov_b32 {sC}, {f32(math.log2(math.e) / math.sqrt(128.0))}")
        if self.stamps: A(f"s_getreg_b32 {sXCC}, hwreg(HW_REG_XCC_ID)")
        A(f"v_lshl_add_u32 v{vT0}, v{vL}, 4, {sWDL}")
        if self.worot:
            A(f"s_mul_i32 {sWR0}, {sH}, {self.worot[0]}"); A(f"s_lshr_b32 {sWR0}, {sWR0}, {self.worot[1]}"); A(f"s_and_b32 {sWR0}, {sWR0}, 15")
            A(f"s_lshr_b32 {sWR1}, {sWR0}, 2"); A(f"s_lshl_b32 {sWR1}, {sWR1}, 15")
            A(f"s_and_b32 {sT0}, {sWR0}, 3"); A(f"s_lshl_b32 {sT0}, {sT0}, 11"); A(f"s_or_b32 {sWR1}, {sWR1}, {sT0}")
            A(f"s_lshl_b32 {sWR0}, {sWR0}, 10")
        def hsw():
            A("s_waitcnt vmcnt(0)")
            for n in range(self.early): self.kv_load("K", n // 4, n % 4)
        self.only(HS, hsw)
        if self.early:
            A(f"s_waitcnt vmcnt({self.early})")
            for n in range(self.early, 4 + self.npre): self.kv_load("K", n // 4, n % 4)
        else:
            for t in range(4):
                A(f"s_waitcnt vmcnt({[3,2,2,3][t]})")
                self.kv_load("K", 0, t)
            for n in range(self.npre): self.kv_load("K", 1 + n // 4, n % 4)
        self.bsel(vXR, 0, 0); self.bsel(vXR, 1, 1)
        self.nop(1)
        A(f"v_mfma_f32_16x16x32_bf16 {vr(vACC,4)}, {vr(vDF,4)}, {vr(vBF,4)}, 0")
        A(f"v_mfma_f32_16x16x32_bf16 {vr(vAC2,4)}, {vr(vDF+8,4)}, {vr(vBF,4)}, 0")
        A(f"v_mfma_f32_16x16x32_bf16 {vr(vACC,4)}, {vr(vDF+4,4)}, {vr(vBF+4,4)}, {vr(vACC,4)}")
        A(f"v_mfma_f32_16x16x32_bf16 {vr(vAC2,4)}, {vr(vDF+12,4)}, {vr(vBF+4,4)}, {vr(vAC2,4)}")
        self.nop(8)
        A(f"ds_write_b128 v{vT0}, {vr(vACC,4)}")
        A(f"ds_write_b128 v{vT0}, {vr(vAC2,4)} offset:1024")
        A("s_waitcnt lgkmcnt(0)")
        def arrive():
            self.C("this workgroup's slots are invalid now: count it in at its head's counter")
            A(f"s_lshl_b32 {sTF}, {sFT}, 3"); A(f"s_mov_b32 {sARR}, 1")
            A(f"s_atomic_add {sARR}, s[{P_DBG}:{P_DBG+1}], {sTF} glc")
        self.only(HS, arrive)
        A("s_barrier")
        def publish():
            d = vSP; d2 = vK + 96
            for w in range(8): A(f"ds_read_b128 {vr(d+4*w,4)}, v{vT1} offset:{L_WD + 2048*w}")
            for w in range(4): A(f"ds_read_b128 {vr(d2+4*w,4)}, v{vT1} offset:{L_WD + 1024 + 2048*w}")
            A(f"s_lshl_b32 {sT0}, {sH}, 3"); A(f"s_add_u32 {sT0}, {sT0}, {sJ}"); A(f"s_lshl_b32 {sT0}, {sT0}, 10")
            A(f"s_add_u32 {sT0}, {sT0}, {WS_Q}")
            A(f"s_lshl_b32 {sT1}, {sTI}, 3"); A(f"s_add_u32 {sT1}, {sT1}, {sJ}"); A(f"s_lshl_b32 {sT1}, {sT1}, 10")
            A(f"s_add_u32 {sT1}, {sT1}, {WS_F}")
            self.lgkm(4)
            for w in range(4, 8): A(f"ds_read_b128 {vr(d2+4*w,4)}, v{vT1} offset:{L_WD + 1024 + 2048*w}")
            for w in range(1, 8):
                for r in range(4): A(f"v_add_f32 v{d+r}, v{d+r}, v{d+4*w+r}")
            for r in range(4): A(f"v_min_u32 v{d+r}, -2, v{d+r}")
            A(f"buffer_store_dwordx4 {vr(d,4)}, v{vT1}, {srd(R_WS)}, {sT0} offen sc1")
            A("s_waitcnt lgkmcnt(0)")
            for w in range(1, 8):
                for r in range(4): A(f"v_add_f32 v{d2+r}, v{d2+r}, v{d2+4*w+r}")
            for r in range(4): A(f"v_min_u32 v{d2+r}, -2, v{d2+r}")
            A(f"buffer_store_dwordx4 {vr(d2,4)}, v{vT1}, {srd(R_WS)}, {sT1} offen sc1")
            self.nop(2)
        self.only(PUB, publish)

    def items(self):
        A = self.A
        it = []
        def add(name, fn, dep=None): it.append(dict(name=name, fn=fn, dep=dep))
        def grp(kind, G, dep):
            for t in range(4): add(f"{kind}{G}_{t}", lambda t=t: self.kv_load(kind, G, t), dep if t == 0 else None)
        wd = []; wo = []
        for t in range(2):
            def fn(t=t):
                A(f"s_add_u32 m0, {sWDL}, {t*1024}")
                A(f"s_movk_i32 {sTD}, {t*8192}")
                A(f"buffer_load_dwordx4 v{vOD}, {srd(R_WD)}, {sTD} offen nt lds")
            wd.append((f"wd{t}", fn, "qred"))
        for t in range(16):
            def fn(t=t):
                if self.worot:
                    A(f"s_xor_b32 {sTD}, {sWR0}, {t*1024}"); A(f"s_add_u32 m0, {sWOL}, {sTD}")
                    A(f"s_xor_b32 {sTD}, {sWR1}, {(32*(t>>2) + 2*(t&3))*1024}")
                else:
                    A(f"s_add_u32 m0, {sWOL}, {t*1024}")
                    A(f"s_mov_b32 {sTD}, {(32*(t>>2) + 2*(t&3))*1024}")
                if self.x_wo == 1: A(f"buffer_load_dwordx4 v[92:95], v{vOW}, {srd(R_WO)}, {sTD} offen nt")
                elif self.x_wo == 3: A(f"buffer_load_dwordx4 v[92:95], v{vT1}, {srd(R_WO)}, {sTD} offen nt")
                else: A(f"buffer_load_dwordx4 v{vOW}, {srd(R_WO)}, {sTD} offen nt lds")
            wo.append((f"wo{t}", fn, None))
        q = wo[:self.wdpos] + wd + wo[self.wdpos:]
        def put(slot):
            for _ in range(self.dma[slot]):
                n, fn, dep = q.pop(0); add(n, fn, dep)
        for G in range(8): grp("K", G, None); put(G)
        for G in range(8): grp("V", G, ("st0" if G == 7 else f"qk{G-1}") if G else None); put(8 + G)
        return it

    def mb_load(self):
        self.A(f"s_load_dword {sGO}, s[{P_WS}:{P_WS+1}], {sMB} glc")
    def ga_loads(self):
        A = self.A
        t = vTM
        A(f"s_lshl_b32 {sT0}, {sH}, 13"); A(f"s_lshl_b32 {sT1}, {sB}, 7"); A(f"s_add_u32 {sT0}, {sT0}, {sT1}")
        A(f"s_add_u32 {sT0}, {sT0}, {WS_Q}")
        A(f"v_and_b32 v{t}, 7, v{vL}"); A(f"v_lshlrev_b32 v{t}, 4, v{t}")
        A(f"v_bfe_u32 v{t+1}, v{vL}, 3, 2"); A(f"v_lshl_add_u32 v{t}, v{t+1}, 8, v{t}")
        A(f"v_lshrrev_b32 v{t+1}, 5, v{vL}"); A(f"v_lshl_add_u32 v{t}, v{t+1}, 10, v{t}")
        A(f"s_add_u32 {sT1}, {sT0}, 4096")
        for k in range(4):
            A(f"buffer_load_dwordx4 {vr(vSP+4*k,4)}, v{t}, {srd(R_WS)}, {sT0 if k < 2 else sT1} offen offset:{(k&1)*2048} sc1")
    def step_hs(self, k, last):
        A = self.A
        def fn():
            end = self.label("hsend"); wait = self.label("hswait")
            if k == 0:
                self.C("the last of the eight workgroups of a head tells all of them that the head's slots are invalid")
                A(f"s_lshl_b32 {sMB}, s2, 7"); A(f"s_add_u32 {sMB}, {sMB}, {WS_MB}")
                A(f"s_mov_b32 {sDONE}, 0")
                A(f"v_lshlrev_b32 v{vQF+4}, 12, v{vL}"); A(f"v_mov_b32 v{vQF+6}, 1")
                A(f"s_lshl_b32 {sT0}, {sFT}, 7"); A(f"s_add_u32 {sT0}, {sT0}, {WS_MB}")
                A("s_waitcnt lgkmcnt(0)")
                A(f"s_and_b32 {sARR}, {sARR}, 7"); A(f"s_cmp_lg_u32 {sARR}, 7"); A(f"s_cbranch_scc1 {wait}")
                self.lanes(0xff, 0)
                A(f"buffer_store_dword v{vQF+6}, v{vQF+4}, {srd(R_WS)}, {sT0} offen sc1")
                A("s_mov_b64 exec, -1")
                A(f"s_mov_b32 {sGO}, 1")
                A(f"s_branch {end}")
                self.L(wait)
                self.mb_load()
                self.L(end)
                return
            A(f"s_cmp_eq_u32 {sDONE}, 1"); A(f"s_cbranch_scc1 {end}")
            A("s_waitcnt lgkmcnt(0)")
            if last:
                sp = self.label("mbspin"); go = self.label("go")
                A(f"s_cmp_eq_u32 {sGO}, 1"); A(f"s_cbranch_scc1 {go}")
                A(f"s_mov_b32 {sCNT}, 0")
                A(f"v_mov_b32 v{vTM}, 0")
                self.L(sp)
                A("s_mov_b64 exec, 1")
                A(f"buffer_load_dword v{vFL}, v{vTM}, {srd(R_WS)}, {sMB} offen sc1")
                A("s_mov_b64 exec, -1")
                A(f"s_add_u32 {sCNT}, {sCNT}, 1")
                A("s_waitcnt vmcnt(0)")
                A(f"v_readfirstlane_b32 {sTF}, v{vFL}")
                A(f"s_cmp_ge_u32 {sCNT}, {SPIN}"); A(f"s_cbranch_scc1 {go}")
                A(f"s_cmp_lg_u32 {sTF}, 1"); A(f"s_cbranch_scc1 {sp}")
                self.L(go)
            else:
                A(f"s_cmp_lg_u32 {sGO}, 1"); A(f"s_cbranch_scc1 {wait}")
            self.ga_loads()
            A(f"s_mov_b32 {sDONE}, 1")
            if not last:
                A(f"s_branch {end}")
                self.L(wait)
                self.mb_load()
            self.L(end)
        self.only(HS, fn)
    def step_qsvc(self):
        A = self.A
        def fn():
            gs = self.label("gaspin"); ok = self.label("gaok")
            t = vTM; d = vSP
            A(f"s_mov_b32 {sCNT}, 0")
            self.L(gs)
            A(f"v_max3_u32 v{t+2}, v{d}, v{d+1}, v{d+2}")
            for k in range(3, 15, 2): A(f"v_max3_u32 v{t+2}, v{t+2}, v{d+k}, v{d+k+1}")
            A(f"v_max_u32 v{t+2}, v{t+2}, v{d+15}")
            A(f"v_cmp_eq_u32 vcc, -1, v{t+2}")
            A(f"s_cbranch_vccz {ok}")
            self.ga_loads()
            A(f"s_add_u32 {sCNT}, {sCNT}, 1")
            A(f"s_cmp_lt_u32 {sCNT}, {SPIN}")
            A("s_waitcnt vmcnt(0)")
            A(f"s_cbranch_scc1 {gs}")
            self.L(ok)
            for k in range(1, 4):
                for r in range(4): A(f"v_add_f32 v{d+r}, v{d+r}, v{d+4*k+r}")
            A(f"v_and_b32 v{t+1}, 7, v{vL}")
            A(f"v_lshrrev_b32 v{t+2}, 5, v{vL}")
            A(f"v_permlane32_swap_b32 v{d}, v{d+1}"); A(f"v_permlane32_swap_b32 v{d+2}, v{d+3}")
            A(f"v_lshl_add_u32 v{t+1}, v{t+2}, 3, v{t+1}")
            A(f"v_add_f32 v{d}, v{d}, v{d+1}"); A(f"v_add_f32 v{d+2}, v{d+2}, v{d+3}")
            A(f"v_cvt_pk_bf16_f32 v{d}, v{d}, v{d+2}")
            A(f"v_bfe_u32 v{t}, v{vL}, 3, 2")
            A(f"v_lshl_add_u32 v{t}, v{t}, 5, v{t+1}")
            A(f"v_lshlrev_b32 v{t}, 1, v{t}")
            A(f"ds_write_b16 v{t}, v{d} offset:{L_QS}")
            A(f"ds_write_b16_d16_hi v{t}, v{d} offset:{L_QS+32}")
        self.only(HS, fn)

    def step_gate0(self):
        A = self.A
        def fn():
            A(f"s_lshl_b32 {sT1}, {sB}, 10")
            A(f"buffer_load_dwordx4 {vr(vXR,4)}, v{vT1}, {srd(R_X)}, {sT1} offen")
            A(f"buffer_load_dwordx4 {vr(vXR+4,4)}, v{vT1}, {srd(R_GW)}, 0 offen")
        self.only(GSV, fn)
    def step_gate(self):
        A = self.A
        def fn():
            x, w = vXR, vXR + 4
            t = vTM; acc = vT0
            A(f"v_mov_b32 v{acc}, 0")
            for k in range(4):
                A(f"v_lshlrev_b32 v{t}, 16, v{x+k}"); A(f"v_lshlrev_b32 v{t+1}, 16, v{w+k}")
                A(f"v_and_b32 v{t+2}, 0xffff0000, v{x+k}"); A(f"v_and_b32 v{t+3}, 0xffff0000, v{w+k}")
                A(f"v_mul_f32 v{t}, v{t}, v{t+1}"); A(f"v_mul_f32 v{t+2}, v{t+2}, v{t+3}")
                A(f"v_cvt_pk_bf16_f32 v{t}, v{t}, v{t+2}")
                A(f"v_lshlrev_b32 v{t+1}, 16, v{t}"); A(f"v_and_b32 v{t}, 0xffff0000, v{t}")
                A(f"v_add_f32 v{acc}, v{acc}, v{t+1}"); A(f"v_add_f32 v{acc}, v{acc}, v{t}")
            for ctl in ("quad_perm:[1,0,3,2]", "quad_perm:[2,3,0,1]", "row_half_mirror", "row_mirror"):
                self.dpp_add(acc, ctl)
            self.swap_reduce("v_add_f32", acc, t, 16)
            self.swap_reduce("v_add_f32", acc, t, 32)
            A(f"v_cvt_pk_bf16_f32 v{acc}, v{acc}, v{acc}")
            A(f"v_and_b32 v{acc}, 0xffff0000, v{acc}")
            A(f"v_mul_f32 v{acc}, {f32(-math.log2(math.e))}, v{acc}")
            A(f"v_exp_f32 v{acc}, v{acc}")
            self.nop(1)
            A(f"v_add_f32 v{acc}, 1.0, v{acc}")
            A(f"v_rcp_f32 v{acc}, v{acc}")
            self.nop(1)
            A(f"v_cvt_pk_bf16_f32 v{acc}, v{acc}, v{acc}")
            A(f"v_and_b32 v{t}, 0xffff0000, v{acc}")
            A(f"v_sub_f32 v{t+1}, 1.0, v{t}")
            A(f"v_cvt_pk_bf16_f32 v{t+1}, v{t+1}, v{t+1}")
            A(f"v_and_b32 v{t+1}, 0xffff0000, v{t+1}")
            A(f"v_mov_b32 v{t+2}, 0")
            A(f"ds_write_b64 v{t+2}, {vr(t,2)} offset:{L_GS}")
        self.only(GSV, fn)

    def fl_load(self):
        A = self.A
        A(f"v_and_b32 v{vT0}, 31, v{vL}"); A(f"v_lshlrev_b32 v{vT0}, 3, v{vT0}")
        A(f"global_load_dword v{vFL}, v{vT0}, s[{P_DBG}:{P_DBG+1}] sc1")
    def fg_load(self):
        A = self.A
        A(f"s_lshr_b32 {sT0}, {sSL}, 3"); A(f"s_lshl_b32 {sT0}, {sT0}, 13")
        A(f"s_lshl_b32 {sT1}, {sB}, 7"); A(f"s_add_u32 {sT0}, {sT0}, {sT1}")
        A(f"s_bfe_u32 {sT1}, {sSL}, 0x20001"); A(f"s_lshl_b32 {sT1}, {sT1}, 8"); A(f"s_add_u32 {sT0}, {sT0}, {sT1}")
        A(f"s_and_b32 {sT1}, {sSL}, 1"); A(f"s_lshl_b32 {sT1}, {sT1}, 3"); A(f"s_add_u32 {sT0}, {sT0}, {sT1}")
        A(f"s_add_u32 {sT0}, {sT0}, {WS_F}")
        A(f"v_and_b32 v{vT0}, 7, v{vL}"); A(f"v_lshlrev_b32 v{vT0}, 4, v{vT0}")
        A(f"v_lshrrev_b32 v{vTM}, 3, v{vL}"); A(f"v_lshl_add_u32 v{vT0}, v{vTM}, 10, v{vT0}")
        A(f"buffer_load_dwordx2 {vr(vFG,2)}, v{vT0}, {srd(R_WS)}, {sT0} offen sc1")
        A(f"s_add_u32 {sT0}, {sT0}, {11*8192}")
        A(f"buffer_load_dwordx2 {vr(vFG+2,2)}, v{vT0}, {srd(R_WS)}, {sT0} offen sc1")
    def step_fga(self):
        A = self.A
        def fn():
            self.C("every workgroup has invalidated its slots -> gather the gate/up partials of this slice")
            ok = self.label("flok"); sp = self.label("flspin")
            A(f"v_cmp_gt_u32 vcc, 8, v{vFL}")
            A(f"s_cbranch_vccz {ok}")
            A(f"s_mov_b32 {sCNT}, 0")
            self.L(sp)
            A("s_sleep 32")
            self.fl_load()
            A(f"s_add_u32 {sCNT}, {sCNT}, 1")
            A(f"s_cmp_ge_u32 {sCNT}, {SPIN}")
            A("s_waitcnt vmcnt(0)")
            A(f"s_cbranch_scc1 {ok}")
            A(f"v_cmp_gt_u32 vcc, 8, v{vFL}")
            A(f"s_cbranch_vccnz {sp}")
            self.L(ok)
            self.fg_load()
        self.only(SVC, fn)
    def step_ffn2(self):
        A = self.A
        t = vTM
        def fn():
            self.C("h = gelu(gate)*up for 16 hidden units, then (1-g) * h @ w_down for all 512 columns")
            e = vFG
            ok = self.label("fgok"); sp = self.label("fgspin")
            A(f"s_mov_b32 {sCNT}, 0")
            self.L(sp)
            A(f"v_max3_u32 v{t}, v{e}, v{e+1}, v{e+2}"); A(f"v_max_u32 v{t}, v{t}, v{e+3}")
            A(f"v_cmp_eq_u32 vcc, -1, v{t}")
            A(f"s_cbranch_vccz {ok}")
            self.fg_load()
            A(f"s_add_u32 {sCNT}, {sCNT}, 1")
            A(f"s_cmp_lt_u32 {sCNT}, {SPIN}")
            A("s_waitcnt vmcnt(0)")
            A(f"s_cbranch_scc1 {sp}")
            self.L(ok)
            A(f"v_permlane32_swap_b32 v{e}, v{e+1}"); A(f"v_permlane32_swap_b32 v{e+2}, v{e+3}")
            self.nop(1)
            A(f"v_add_f32 v{e}, v{e}, v{e+1}"); A(f"v_add_f32 v{e+2}, v{e+2}, v{e+3}")
            self.swap_reduce("v_add_f32", e, e + 1, 16)
            self.swap_reduce("v_add_f32", e + 2, e + 3, 16)
            self.dpp_add(e, "row_ror:8"); self.dpp_add(e + 2, "row_ror:8")
            A(f"v_cvt_pk_bf16_f32 v{e}, v{e}, v{e+2}")
            A(f"v_and_b32 v{e+2}, 0xffff0000, v{e}")
            A(f"v_lshlrev_b32 v{e}, 16, v{e}")
            k0 = math.sqrt(2.0 / math.pi)
            self.C("gelu_tanh(x) = x / (1 + exp(-2*sqrt(2/pi)*(x + 0.044715 x^3)))")
            A(f"v_mul_f32 v{e+1}, v{e}, v{e}")
            A(f"v_mov_b32 v{e+3}, {f32(-2.0 * k0 * math.log2(math.e))}")
            A(f"v_mul_f32 v{e+1}, {f32(0.044715)}, v{e+1}")
            A(f"v_add_f32 v{e+1}, 1.0, v{e+1}")
            A(f"v_mul_f32 v{e+1}, v{e+1}, v{e}")
            A(f"v_mul_f32 v{e+1}, v{e+1}, v{e+3}")
            A(f"v_exp_f32 v{e+1}, v{e+1}")
            self.nop(1)
            A(f"v_add_f32 v{e+1}, 1.0, v{e+1}")
            A(f"v_rcp_f32 v{e+1}, v{e+1}")
            self.nop(1)
            A(f"v_mul_f32 v{e}, v{e}, v{e+1}")
            A(f"v_cvt_pk_bf16_f32 v{e}, v{e}, v{e}")
            A(f"v_and_b32 v{e}, 0xffff0000, v{e}")
            A(f"v_mul_f32 v{e}, v{e}, v{e+2}")
            A(f"v_cvt_pk_bf16_f32 v{e}, v{e}, v{e}")
            A(f"v_and_b32 v{t+1}, 7, v{vL}"); A(f"v_lshrrev_b32 v{t+2}, 5, v{vL}")
            A(f"v_lshl_add_u32 v{t+1}, v{t+2}, 3, v{t+1}")
            A(f"v_lshlrev_b32 v{t+1}, 1, v{t+1}")
            A(f"ds_write_b16 v{t+1}, v{e} offset:{L_HS}")
            A(f"v_lshlrev_b32 v{t+1}, 3, v{vG}")
            A(f"v_mov_b32 v{t+3}, 0")
            A("s_waitcnt lgkmcnt(0)")
            A(f"ds_read_b64 {vr(e,2)}, v{t+1} offset:{L_HS}")
            A(f"ds_read_b32 v{e+2}, v{t+3} offset:{L_GS+4}")
            A(f"v_lshrrev_b32 v{t}, 2, v{vI}"); A(f"v_and_b32 v{t+1}, 3, v{vI}")
            A(f"v_lshlrev_b32 v{t+1}, 3, v{t+1}")
            A(f"v_lshl_add_u32 v{t+1}, v{t}, 7, v{t+1}")
            A(f"v_lshl_add_u32 v{t+1}, v{vG}, 9, v{t+1}")
            A(f"v_lshlrev_b32 v{t+2}, 2, v{vL}")
            ms = ["", "s[52:53]", "s[54:55]", "s[68:69]"]
            for k in range(1, 4): A(f"v_cmp_eq_u32 {ms[k]}, {k}, v{vG}")
            wfs = [vDF, vK + 32]
            def rd(w):
                for tau in range(4):
                    A(f"ds_read_b64_tr_b16 {vr(wfs[w&1]+2*tau,2)}, v{t+1} offset:{L_WD + w*2048 + tau*32}")
            rd(0)
            for w in range(8):
                if w < 7: rd(w + 1)
                self.lgkm(4 if w == 0 else 5 if w < 7 else 0)
                for tau in range(4):
                    A(f"v_mfma_f32_16x16x16_bf16 {vr(vFD+4*tau,4)}, {vr(e,2)}, {vr(wfs[w&1]+2*tau,2)}, 0")
                self.nop(6)
                A(f"v_cndmask_b32 v{t+4}, v{vFD}, v{vFD+4}, {ms[1]}")
                self.nop(1)
                A(f"v_cndmask_b32 v{t+4}, v{t+4}, v{vFD+8}, {ms[2]}")
                self.nop(1)
                A(f"v_cndmask_b32 v{t+4}, v{t+4}, v{vFD+12}, {ms[3]}")
                A(f"v_mul_f32 v{t+4}, v{t+4}, v{e+2}")
                A(f"ds_write_b32 v{t+2}, v{t+4} offset:{L_YF + w*256}")
        self.only(SVC, fn)

    def step_qred(self):
        A = self.A
        t = vTM
        A(f"v_and_b32 v{t}, 8, v{vL}")
        A(f"v_lshlrev_b32 v{t}, 3, v{t}")
        A(f"v_lshl_add_u32 v{t}, v{vG}, 4, v{t}")
        A("s_waitcnt lgkmcnt(0)")
        A("s_barrier")
        for T in range(2): A(f"ds_read_b128 {vr(vQF+4*T,4)}, v{t} offset:{L_QS+128*T}")
        A("s_waitcnt lgkmcnt(0)")
    def qk_combine(self, G):
        A = self.A
        a = vSP + 4 * G; b = vQF + 8 + 4 * (G & 1)
        for r in range(4): A(f"v_permlane32_swap_b32 v{a+r}, v{b+r}")
        for r in range(4): A(f"v_add_f32_dpp v{a+r}, v{b+r}, v{a+r} row_ror:8 row_mask:0xf bank_mask:0xf")
    def step_qk(self, G):
        A = self.A
        a = vSP + 4 * G; b = vQF + 8 + 4 * (G & 1); k = vK + 16 * G
        A(f"v_mfma_f32_16x16x32_bf16 {vr(a,4)}, {vr(k,4)}, {vr(vQF,4)}, 0")
        A(f"v_mfma_f32_16x16x32_bf16 {vr(b,4)}, {vr(k+8,4)}, {vr(vQF,4)}, 0")
        A(f"v_mfma_f32_16x16x32_bf16 {vr(a,4)}, {vr(k+4,4)}, {vr(vQF+4,4)}, {vr(a,4)}")
        A(f"v_mfma_f32_16x16x32_bf16 {vr(b,4)}, {vr(k+12,4)}, {vr(vQF+4,4)}, {vr(b,4)}")
        if G > 0:
            self.nop(4)
            self.qk_combine(G - 1)
    def step_softmax(self):
        A = self.A
        t = vTM; m = vAC2 + 2; l = vT0
        A(f"v_max3_f32 v{m}, v{vSP}, v{vSP+1}, v{vSP+2}")
        for k in range(3, 27, 2): A(f"v_max3_f32 v{m}, v{m}, v{vSP+k}, v{vSP+k+1}")
        self.qk_combine(7)
        A(f"v_max3_f32 v{m}, v{m}, v{vSP+27}, v{vSP+28}")
        A(f"v_max3_f32 v{m}, v{m}, v{vSP+29}, v{vSP+30}")
        A(f"v_max_f32 v{m}, v{m}, v{vSP+31}")
        self.swap_reduce("v_max_f32", m, t, 16)
        self.swap_reduce("v_max_f32", m, t, 32)
        A(f"s_lshl_b32 {sT0}, {sW}, 2")
        A(f"v_mov_b32 v{t+4}, {sT0}")
        A(f"v_mov_b32 v{t+5}, 0")
        A("s_mov_b64 exec, 1")
        A(f"ds_write_b32 v{t+4}, v{m} offset:{L_MX}")
        A("s_mov_b64 exec, -1")
        A("s_waitcnt lgkmcnt(0)")
        A("s_barrier")
        A(f"ds_read_b128 {vr(vBF,4)}, v{t+5} offset:{L_MX}")
        A(f"ds_read_b128 {vr(vBF+4,4)}, v{t+5} offset:{L_MX+16}")
        A("s_waitcnt lgkmcnt(0)")
        A(f"v_max3_f32 v{m}, v{vBF}, v{vBF+1}, v{vBF+2}")
        A(f"v_max3_f32 v{m}, v{m}, v{vBF+3}, v{vBF+4}")
        A(f"v_max3_f32 v{m}, v{m}, v{vBF+5}, v{vBF+6}")
        A(f"v_max_f32 v{m}, v{m}, v{vBF+7}")
        A(f"v_mul_f32 v{m}, {sC}, v{m}")
        for k in range(32): A(f"v_fma_f32 v{vSP+k}, v{vSP+k}, {sC}, -v{m}")
        for k in range(32): A(f"v_exp_f32 v{vSP+k}, v{vSP+k}")
        A(f"v_add_f32 v{l}, v{vSP}, v{vSP+1}"); A(f"v_add_f32 v{t}, v{vSP+2}, v{vSP+3}")
        for k in range(4, 32, 2):
            A(f"v_add_f32 v{l}, v{l}, v{vSP+k}"); A(f"v_add_f32 v{t}, v{t}, v{vSP+k+1}")
        A(f"v_add_f32 v{l}, v{l}, v{t}")
        self.swap_reduce("v_add_f32", l, t, 16)
        self.swap_reduce("v_add_f32", l, t, 32)
        A("s_mov_b64 exec, 1")
        A(f"ds_write_b32 v{t+4}, v{l} offset:{L_LS}")
        A("s_mov_b64 exec, -1")
        for k in range(32): A(f"v_cvt_pk_bf16_f32 v{vSP+k}, v{vSP+k}, v{vSP+k}")
        A("s_waitcnt lgkmcnt(0)")
        A("s_barrier")
        def fn():
            self.C("publish (max, sum) of this quarter")
            A(f"ds_read_b128 {vr(vBF,4)}, v{t+5} offset:{L_LS}")
            A(f"ds_read_b128 {vr(vBF+4,4)}, v{t+5} offset:{L_LS+16}")
            A(f"s_lshl_b32 {sT0}, s2, 7"); A(f"s_add_u32 {sT0}, {sT0}, {WS_MB + 8}")
            A("s_waitcnt lgkmcnt(0)")
            for k in range(1, 8): A(f"v_add_f32 v{vBF}, v{vBF}, v{vBF+k}")
            A(f"v_min_u32 v{t+1}, -2, v{vBF}")
            A(f"v_mov_b32 v{t}, v{m}")
            A("s_mov_b64 exec, 1")
            A(f"buffer_store_dwordx2 {vr(t,2)}, v{t+5}, {srd(R_WS)}, {sT0} offen sc1")
            A("s_mov_b64 exec, -1")
        self.only(GSV, fn)
    def step_pre7(self):
        for r in range(1, 4):
            for u in range(4): self.A(f"v_and_b32 v{vK+64+4*r+u}, v{vSP+28+r}, v{vM+u}")
    def step_pv7(self, r):
        b = vBF if r == 0 else vK + 64 + 4 * r
        if r == 0: self.nop(1)
        self.A(f"v_mfma_f32_16x16x32_bf16 {vr(vACC,4)}, {vr(vK+96+4*r,4)}, {vr(b,4)}, {vr(vACC,4)}")
    def step_pv(self, G):
        A = self.A
        base = vX if G == 0 else vK + 16 * (G - 1)
        def build(k, bset):
            for u in range(4): A(f"v_and_b32 v{vBF+4*bset+u}, v{vSP+k}, v{vM+u}")
        for r in range(4):
            k = 4 * G + r
            if k == 0: build(0, 0)
            if k + 1 < 32: build(k + 1, (k + 1) & 1)
            else: self.nop(2)
            c = "0" if k == 0 else vr(vACC, 4)
            A(f"v_mfma_f32_16x16x32_bf16 {vr(vACC,4)}, {vr(base+4*r,4)}, {vr(vBF+4*(k&1),4)}, {c}")

    WF = [vQF, vK + 16 * 7, vX, vK]
    def step_wof(self):
        A = self.A
        t = vTM
        A(f"v_lshrrev_b32 v{t}, 2, v{vI}"); A(f"v_and_b32 v{t+1}, 3, v{vI}")
        A(f"v_lshlrev_b32 v{t+1}, 3, v{t+1}")
        A(f"v_lshl_add_u32 v{t+1}, v{t}, 7, v{t+1}")
        A(f"v_lshl_add_u32 v{t+2}, v{vG}, 10, v{t+1}")
        A(f"v_add_u32 v{vOQ}, {sWOL}, v{t+2}")
        for tau in range(4):
            for T in range(4):
                for hi in range(2):
                    A(f"ds_read_b64_tr_b16 {vr(self.WF[tau]+4*T+2*hi,2)}, v{vOQ} offset:{T*4096 + hi*512 + tau*32}")
            if tau < 3: A("s_waitcnt lgkmcnt(4)")
        self.C("addresses and constants of the tail")
        A(f"v_and_b32 v{t}, 7, v{vI}")
        A(f"s_mul_i32 {sT1}, {sW}, 144"); A(f"s_add_u32 {sT1}, {sT1}, {L_OB}")
        A(f"v_lshl_add_u32 v{vOK}, v{vG}, 5, {sT1}")
        A(f"v_lshl_add_u32 v{vOK}, v{t}, 2, v{vOK}")
        A(f"v_mul_u32_u24 v{vOW}, 144, v{vI}")
        A(f"v_lshl_add_u32 v{vOW}, v{vG}, 4, v{vOW}")
        A(f"v_mov_b32 v{t+1}, 0x44444444"); A(f"v_mov_b32 v{t+2}, 0xeeeeeeee")
        A(f"v_cmp_lt_u32 vcc, 7, v{vI}")
        for k in range(16): A(f"v_mov_b32 v{vDF+k}, 0")
        A(f"v_cndmask_b32 v{vAC2+1}, v{t+1}, v{t+2}, vcc")
        A(f"v_mul_u32_u24 v{t+1}, {2*self.astride}, v{vG}")
        A(f"v_lshl_add_u32 v{vOF}, v{vI}, 2, v{t+1}")
        A(f"v_add_u32 v{t+2}, 8, v{vI}"); A(f"v_and_b32 v{t+2}, 15, v{t+2}")
        A(f"v_lshl_add_u32 v{vOD}, v{t+2}, 2, v{t+1}")
        A(f"s_mul_i32 {sTF}, {sW}, {8*self.astride}")
        A(f"s_mul_i32 {sT1}, {sB}, {64*self.astride}"); A(f"s_add_u32 {sTF}, {sTF}, {sT1}")
        A(f"s_lshl_b32 {sT1}, {sB}, 10"); A(f"s_lshl_b32 {sT0}, {sW}, 7"); A(f"s_add_u32 {sT1}, {sT1}, {sT0}")
        A(f"v_lshl_add_u32 v{vT1}, v{vL}, 1, {sT1}")
        A(f"v_cmp_eq_u32 s[52:53], 8, v{vI}"); A(f"v_cmp_eq_u32 s[54:55], 0, v{vI}"); A(f"v_cmp_gt_u32 s[68:69], 8, v{vI}")
        A(f"s_mov_b32 {sX0}, {f32(127.0)}")
        A(f"s_lshl_b32 {sT1}, {sW}, 8")
        A(f"v_lshl_add_u32 v{vAC2}, v{vL}, 2, {sT1}")
        A("s_waitcnt lgkmcnt(0)")
        A(f"v_mov_b32 v{vOQ}, 0")

    def st_load(self):
        A = self.A
        A(f"s_lshl_b32 {sT0}, {sB}, 7"); A(f"s_add_u32 {sT0}, {sT0}, {sFT}"); A(f"s_lshl_b32 {sT0}, {sT0}, 7")
        A(f"s_add_u32 {sT0}, {sT0}, {WS_MB + 8}")
        A(f"v_mov_b32 v{vT0}, 0")
        for k in range(4):
            if k: A(f"s_add_u32 {sT0}, {sT0}, 4096")
            A(f"buffer_load_dwordx2 {vr(vXR+2*k,2)}, v{vT0}, {srd(R_WS)}, {sT0} offen sc1")
    def step_scale(self):
        A = self.A
        t = vTM; s = vXR
        def fn():
            self.C("g * exp2(m_own - M) / L from the statistics of the four quarters")
            ok = self.label("stok"); sp = self.label("stspin")
            A(f"v_mov_b32 v{t+3}, 0")
            A(f"ds_read_b32 v{t+2}, v{t+3} offset:{L_GS}")
            A(f"s_mov_b32 {sCNT}, 0")
            self.L(sp)
            A(f"v_max3_u32 v{t}, v{s+1}, v{s+3}, v{s+5}")
            A(f"v_max_u32 v{t}, v{t}, v{s+7}")
            A(f"v_cmp_eq_u32 vcc, -1, v{t}")
            A(f"s_cbranch_vccz {ok}")
            self.st_load()
            A(f"s_add_u32 {sCNT}, {sCNT}, 1")
            A(f"s_cmp_lt_u32 {sCNT}, {SPIN}")
            A("s_waitcnt vmcnt(0)")
            A(f"s_cbranch_scc1 {sp}")
            self.L(ok)
            A(f"v_max3_f32 v{t}, v{s}, v{s+2}, v{s+4}")
            A(f"v_max_f32 v{t}, v{t}, v{s+6}")
            for k in range(4): A(f"v_sub_f32 v{s+2*k}, v{s+2*k}, v{t}")
            A(f"v_sub_f32 v{t+1}, v{vAC2+2}, v{t}")
            for k in range(4): A(f"v_exp_f32 v{s+2*k}, v{s+2*k}")
            A(f"v_exp_f32 v{t+1}, v{t+1}")
            A(f"v_mul_f32 v{t}, v{s}, v{s+1}")
            for k in range(1, 4): A(f"v_fmac_f32 v{t}, v{s+2*k}, v{s+2*k+1}")
            A(f"v_rcp_f32 v{t}, v{t}")
            A("s_waitcnt lgkmcnt(0)")
            A(f"v_mul_f32 v{t+1}, v{t+2}, v{t+1}")
            A(f"v_mul_f32 v{t}, v{t}, v{t+1}")
            A(f"ds_write_b32 v{t+3}, v{t} offset:{L_FS}")
        self.only(SVC, fn)

    def step_tail(self):
        A = self.A
        t = vTM; af = vSP
        self.lanes(0x00ff00ff, 0x00ff00ff)
        self.nop(6)
        A(f"v_cvt_pk_bf16_f32 v{t}, v{vACC}, v{vACC+1}")
        A(f"v_cvt_pk_bf16_f32 v{t+1}, v{vACC+2}, v{vACC+3}")
        A(f"ds_write_b32 v{vOK}, v{t}")
        A(f"ds_write_b32 v{vOK}, v{t+1} offset:{8*144}")
        A("s_mov_b64 exec, -1")
        A("s_waitcnt lgkmcnt(0)")
        A("s_barrier")
        self.C("16 rows = 8 wave partials x 2 halves of every group of four k : dense data in 2:4 form")
        for T in range(2): A(f"ds_read_b128 {vr(af+4*T,4)}, v{vOW} offset:{L_OB + 64*T}")
        A(f"ds_read_b32 v{t+4}, v{vOQ} offset:{L_FS}")
        A(f"ds_read_b32 v{vAC2+3}, v{vAC2} offset:{L_YF}")
        for T in range(2):
            self.lgkm(3 - T)
            for tau in range(4):
                A(f"v_smfmac_f32_16x16x64_bf16 {vr(vDF+4*tau,4)}, {vr(af+4*T,4)}, {vr(self.WF[tau]+8*T,8)}, v{vAC2+1}")
        A("s_waitcnt lgkmcnt(0)")
        self.nop(4)
        for tau in range(4):
            d = vDF + 4 * tau
            A(f"v_add_f32 v{d}, v{d}, v{d+1}"); A(f"v_add_f32 v{d+2}, v{d+2}, v{d+3}")
            A(f"v_add_f32 v{d}, v{d}, v{d+2}")
        self.nop(1)
        A(f"v_permlane16_swap_b32 v{vDF}, v{vDF+4}")
        A(f"v_permlane16_swap_b32 v{vDF+8}, v{vDF+12}")
        A(f"v_add_f32 v{vDF}, v{vDF}, v{vDF+4}")
        A(f"v_add_f32 v{vDF+8}, v{vDF+8}, v{vDF+12}")
        self.nop(2)
        A(f"v_permlane32_swap_b32 v{vDF}, v{vDF+8}")
        A(f"v_add_f32 v{t}, v{vDF}, v{vDF+8}")
        A(f"v_fma_f32 v{t}, v{t}, v{t+4}, v{vAC2+3}")
        self.C("8 sums and their arrival count share one 64-B request")
        A(f"v_cndmask_b32 v{t+1}, v{t}, 1.0, s[52:53]")
        A(f"v_cndmask_b32 v{t+2}, v{t}, 1.0, s[54:55]")
        self.lanes(0x01ff01ff, 0x01ff01ff)
        A(f"buffer_atomic_add_f32 v{t+1}, v{vOF}, {srd(R_WS)}, {sTF} offen sc0")
        self.lanes(0xff01ff01, 0xff01ff01)
        A(f"buffer_atomic_add_f32 v{t+2}, v{vOD}, {srd(R_WS)}, {sTF} offen offset:{self.astride} sc0")
        A("s_mov_b64 exec, -1")

    def finish(self):
        A = self.A
        t = vTM
        A("s_waitcnt vmcnt(0)")
        A(f"v_mov_b32_dpp v{t+3}, v{t+1} row_newbcast:8 row_mask:0xf bank_mask:0xf")
        A(f"v_mov_b32_dpp v{t+4}, v{t+2} row_newbcast:0 row_mask:0xf bank_mask:0xf")
        A(f"v_cndmask_b32 v{t+1}, v{t+2}, v{t+1}, s[68:69]")
        A(f"v_cndmask_b32 v{t+3}, v{t+4}, v{t+3}, s[68:69]")
        A(f"v_add_f32 v{t}, v{t}, v{t+1}")
        A(f"v_cmp_eq_f32 vcc, {sX0}, v{t+3}")
        A(f"v_cvt_pk_bf16_f32 v{t}, v{t}, v{t}")
        sk = self.label("fin")
        A("s_and_b64 exec, exec, vcc")
        A(f"s_cbranch_execz {sk}")
        A(f"global_store_short v{vT1}, v{t}, s[{P_OUT}:{P_OUT+1}]")
        self.L(sk)
        A("s_mov_b64 exec, -1")

    def steps(self, idx):
        S = []
        def add(name, needs, fn): S.append(dict(name=name, needs=needs, fn=fn))
        add("gate0", [], self.step_gate0)
        pts = list(self.hs_pts)
        evs = [(idx[p], f"hs{k}", [p], (lambda k=k: self.step_hs(k, k == len(pts) - 1))) for k, p in enumerate(pts)]
        evs.append((idx["K1_0"] + 0.5, "gate", ["@gate0"], self.step_gate))
        for _, n, nd, fn in sorted(evs, key=lambda e: e[0]): add(n, nd, fn)
        add("join", [f"@hs{len(pts)-1}", self.q_at], self.step_qsvc)
        add("qred", [], self.step_qred)
        for G in range(8): add(f"qk{G}", [f"K{G}_3"], lambda G=G: self.step_qk(G))
        add("fl", [], lambda: self.only(SVC, self.fl_load))
        add("softmax", ["wd1"], self.step_softmax)
        placed = False
        for G in range(8):
            if G == 7:
                add("pre7", [], self.step_pre7)
                add("scale", ["@st0"], self.step_scale)
            if not placed and G >= 5 and idx[f"V{G}_3"] > idx["wo15"]:
                add("wof", ["wo15"], self.step_wof); placed = True
            if G == 7:
                for r in range(4): add("pv7" if r == 3 else f"pv7_{r}", [f"V7_{r}"], lambda r=r: self.step_pv7(r))
            else:
                add(f"pv{G}", [f"V{G}_3"], lambda G=G: self.step_pv(G))
            if f"pv{G}" == self.fga_pos: add("fga", ["@fl"], self.step_fga)
            if f"pv{G}" == self.st_pos: add("st0", [], lambda: self.only(SVC, self.st_load))
            if f"pv{G}" == self.ffn_pos: add("ffn2", ["@fga"], self.step_ffn2)
        nm = [s["name"] for s in S]
        assert placed and nm.index("pv3") < nm.index("ffn2") < nm.index("wof")
        add("tail", [], self.step_tail)
        return S

    def schedule(self):
        items = self.items()
        idx = {it["name"]: n for n, it in enumerate(items)}
        issued = 4 + self.npre
        assert all(it["name"][0] == "K" for it in items[:issued])
        comp = -1; done = set(); pos = -1; after = {}; W = self.W
        for st in self.steps(idx):
            need = max([after[n[1:]] if n[0] == "@" else idx[n] for n in st["needs"]], default=-1)
            pos = max(pos, need)
            def issue(w):
                nonlocal issued, comp
                while issued < len(items):
                    it = items[issued]
                    if issued > pos + w - 1: break
                    if it["dep"] and it["dep"] not in done:
                        assert issued > need, (st["name"], it["name"])
                        break
                    if issued - (comp + 1) >= w:
                        self.A(f"s_waitcnt vmcnt({w-1})"); comp = issued - w
                    it["fn"](); issued += 1
            if st["name"] != "qred": issue(W)
            if comp < need:
                self.A(f"s_waitcnt vmcnt({issued-1-need})"); comp = need
            if st["name"] == "join":
                issue(W + self.boost_q); W = self.W2
            if st["name"] in self.boosts: issue(W + self.boosts[st["name"]])
            self.o.append(f"    ; ---- {st['name']}")
            st["fn"](); done.add(st["name"])
            after[st["name"]] = issued
            if self.probe:
                if st["name"] == self.probe["step"]: self.stamp(3)
            elif st["name"] in ("qred", "pv7", "tail"): self.stamp({"qred": 1, "pv7": 2, "tail": 3}[st["name"]])
        assert issued == len(items)

    def build(self):
        A = self.A
        K1 = NAME + "_kernel"
        o = self.o
        o.append(HEADER.rstrip("\n"))
        o.append(f"; @launch grid=(256,1,1) block=(512,1,1) lds={LDS_BYTES}")
        o += """; out = g * MHA_cached(x) + (1-g) * GEGLU_FFN(x).  Emitted by my own Python generator (straight-line code, step markers below).
; 256 workgroups (one per CU) x 8 waves; workgroup = (batch b, head h, quarter s of the keys), wave = 8 groups of 16 keys.
;  - K / V stream straight into registers (nt); QK^T, PV and all GEMVs run on MFMA (row-major weights through a
;    one-hot 'selection' B operand, transposed operands through ds_read_b64_tr_b16).
;  - q = x@wq and the gate/up pre-activations: every workgroup computes one 64-row tile for both batches and publishes the
;    partial sums in d_ws.  Slots are set to -1 at the start of the launch (arrival counters in d_debug, 'go' word per
;    workgroup) and every word is validated by the reader, so nothing of an earlier launch is ever accepted.
;  - softmax: true max per quarter, (max, sum) exchanged between the four quarters, exact rescale at the end.
;  - each workgroup multiplies its partial output by wo[h] (LDS image), adds its slice of h@w_down and adds the row to
;    f32 accumulators (zeroed in this launch) with returning atomics; a 64-B request carries 8 sums and an arrival count,
;    so the request that arrives last holds the totals and writes them.
;  - every wait loop is bounded.""".split("\n")
        o += ['.amdgcn_target "amdgcn-amd-amdhsa--gfx950"', ".text", f".globl {K1}", ".p2align 8",
              f".type {K1},@function", f"{K1}:"]
        self.phase0()
        self.schedule()
        self.finish()
        if self.probe:
            A(f"s_cmp_lg_u32 {sW}, 0"); A("s_cbranch_scc1 L_end")
            A("s_mov_b32 s96, 4000")
            A("s_waitcnt lgkmcnt(0)")
            A("s_sub_u32 s97, s98, s92"); A(f"s_mul_i32 s97, s97, {self.probe['m']}"); A("s_add_u32 s96, s96, s97")
            self.L("L_fix")
            A("s_memrealtime s[94:95]"); A("s_waitcnt lgkmcnt(0)"); A("s_sub_u32 s94, s94, s92")
            A("s_cmp_lt_u32 s94, s96"); A("s_cbranch_scc1 L_fix")
            self.stamps = False
        if self.stamps: A("s_barrier")
        if self.stamps:
            self.L("L_stamp")
            A(f"s_cmp_lg_u32 {sW}, 0"); A("s_cbranch_scc1 L_end")
            self.stamp(4)
            A("s_mov_b64 exec, 1")
            A("s_waitcnt lgkmcnt(0)")
            A(f"s_add_u32 s40, s40, {STAMP_OFF}"); A("s_addc_u32 s41, s41, 0")
            A("s_lshl_b32 s8, s2, 6"); A("v_mov_b32 v1, s8")
            for k in range(4):
                A(f"v_mov_b32 v{8+2*k}, s{sST+2*k}"); A(f"v_mov_b32 v{9+2*k}, s{sST+2*k+1}")
            A(f"v_mov_b32 v16, {sXCC}"); A("v_mov_b32 v17, 0")
            A(f"v_mov_b32 v18, s{sST+8}"); A(f"v_mov_b32 v19, s{sST+9}")
            A("global_store_dwordx4 v1, v[8:11], s[40:41]")
            A("global_store_dwordx4 v1, v[12:15], s[40:41] offset:16")
            A("global_store_dwordx4 v1, v[16:19], s[40:41] offset:32")
        self.L("L_end"); A("s_endpgm")
        o += ['.section .rodata,"a"', ".p2align 6", f".amdhsa_kernel {K1}", "  .amdhsa_next_free_vgpr 256",
              "  .amdhsa_next_free_sgpr 102", "  .amdhsa_accum_offset 256", "  .amdhsa_group_segment_fixed_size 0",
              "  .amdhsa_kernarg_size 104", "  .amdhsa_user_sgpr_count 2", "  .amdhsa_user_sgpr_kernarg_segment_ptr 1",
              "  .amdhsa_system_sgpr_workgroup_id_x 1", ".end_amdhsa_kernel"]
        return "\n".join(o) + "\n"

if __name__ == "__main__":
    import argparse, json
    ap = argparse.ArgumentParser()
    ap.add_argument("out"); ap.add_argument("--opt", default="{}")
    a = ap.parse_args()
    open(a.out, "w").write(Gen(**json.loads(a.opt)).build())
```
